```python
import torch

def _softmax(x, axis=-1):
    return torch.softmax(x, dim=axis)

def _gelu(x):
    return torch.nn.functional.gelu(x, approximate='tanh')

def _silu(x):
    return torch.nn.functional.silu(x)

def _sigmoid(x):
    return torch.sigmoid(x)

def _layernorm(x, axis=-1, eps=1e-05):
    m = x.mean(dim=axis, keepdim=True)
    v = x.var(dim=axis, keepdim=True, unbiased=False)
    return (x - m) / torch.sqrt(v + eps)

def _scatter_add(tgt, idx, src, axis=0):
    return tgt.clone().index_add_(axis, idx, src)

def _segment_sum(src, seg, n):
    out = torch.zeros((n,) + src.shape[1:], dtype=src.dtype)
    return out.index_add_(0, seg, src)

def _pad(x, pw):
    flat = tuple((v for pair in reversed(pw) for v in pair))
    return torch.nn.functional.pad(x, flat)
kernel_name = 'sequential_preLN__memory_aug_recurrent_mem_tr__mixer_s_mlp__prompt'

def setup_inputs():

    _w = lambda a: (lambda t: t.to(torch.bfloat16) if t.is_floating_point() else t)(torch.as_tensor(a))

    def _A_setup():
        B, S, Dm = (1, 2048, 1024)
        H, Dh = (32, 128)
        M, seg = (8, 32)
        seg = min(seg, S)
        S = S // seg * seg
        return {'x': _w((lambda *s: torch.randn(*s, dtype=torch.bfloat16) * 0.05)(B, S, Dm)), 'mem0': _w((lambda *s: torch.randn(*s, dtype=torch.bfloat16) * 0.2)(B, M, Dm)), 'Wq': _w((lambda *s: torch.randn(*s, dtype=torch.bfloat16) * 1.6)(Dm, H, Dh) * Dm ** (-0.5)), 'Wk': _w((lambda *s: torch.randn(*s, dtype=torch.bfloat16) * 1.6)(Dm, H, Dh) * Dm ** (-0.5)), 'Wv': _w((lambda *s: torch.randn(*s, dtype=torch.bfloat16) * 0.2)(Dm, H, Dh) * Dm ** (-0.5)), 'Wo': _w((lambda *s: torch.randn(*s, dtype=torch.bfloat16) * 0.2)(H, Dh, Dm) * (H * Dh) ** (-0.5)), 'seg_len': seg}
    _A_in = _A_setup()

    def _B_setup():
        B, S, D, F = (1, 2048, 1024, 3584)
        return {'x': _w((lambda *s: torch.randn(*s, dtype=torch.bfloat16) * 0.05)(B, S, D)), 'w1': _w((lambda *s: torch.randn(*s, dtype=torch.bfloat16) * 0.8)(D, D) * D ** (-0.5)), 'w2': _w((lambda *s: torch.randn(*s, dtype=torch.bfloat16) * 0.8)(D, D) * D ** (-0.5)), 'w3': _w((lambda *s: torch.randn(*s, dtype=torch.bfloat16) * 0.8)(D, F) * D ** (-0.5)), 'w4': _w((lambda *s: torch.randn(*s, dtype=torch.bfloat16) * 0.8)(F, D) * F ** (-0.5))}
    _B_in = _B_setup()
    return {'A_x': _A_in['x'], 'A_mem0': _A_in['mem0'], 'A_Wq': _A_in['Wq'], 'A_Wk': _A_in['Wk'], 'A_Wv': _A_in['Wv'], 'A_Wo': _A_in['Wo'], 'A_seg_len': _A_in['seg_len'], 'B_x': _B_in['x'], 'B_w1': _B_in['w1'], 'B_w2': _B_in['w2'], 'B_w3': _B_in['w3'], 'B_w4': _B_in['w4']}

def reference(A_x, A_mem0, A_Wq, A_Wk, A_Wv, A_Wo, A_seg_len, B_x, B_w1, B_w2, B_w3, B_w4):

    def _A_ref(x, mem0, Wq, Wk, Wv, Wo, seg_len):
        B, S, Dm = x.shape
        H, Dh = (Wq.shape[1], Wq.shape[2])
        M = mem0.shape[1]
        scale = Dh ** (-0.5)
        n_seg = S // seg_len
        L = M + seg_len
        idx = torch.arange(L)
        mask = (idx[:, None] < M) | (idx[:, None] >= idx[None, :])
        mem = mem0
        outs = []
        for s in range(n_seg):
            xs = x[:, s * seg_len:(s + 1) * seg_len, :].clone()
            h = torch.concatenate([mem, xs], axis=1)
            q = torch.einsum('btd,dhe->bhte', h, Wq)
            k = torch.einsum('btd,dhe->bhte', h, Wk)
            v = torch.einsum('btd,dhe->bhte', h, Wv)
            scores = torch.einsum('bhqe,bhke->bhqk', q, k) * scale
            scores = torch.where(mask[None, None], scores, -1000000000.0)
            p = _softmax(scores, axis=-1)
            o = torch.einsum('bhqk,bhke->bhqe', p, v)
            o = torch.einsum('bhte,hed->btd', o, Wo)
            mem = o[:, :M, :].clone()
            outs.append(o[:, M:, :])
        return torch.concatenate(outs, axis=1)

    def _B_ref(x, w1, w2, w3, w4):
        B, S, D = x.shape
        h = _gelu(_layernorm(x, axis=-1) @ w1)
        c = D // 4
        g0 = _pad(h[:, :, 0 * c:1 * c], ((0, 0), (1, 0), (0, 0)))[:, :S, :]
        g1 = _pad(h[:, :, 1 * c:2 * c], ((0, 0), (0, 1), (0, 0)))[:, 1:, :]
        g2 = _pad(h[:, :, 2 * c:3 * c], ((0, 0), (2, 0), (0, 0)))[:, :S, :]
        g3 = _pad(h[:, :, 3 * c:], ((0, 0), (0, 2), (0, 0)))[:, 2:, :]
        hs = torch.concatenate([g0, g1, g2, g3], axis=-1) @ w2
        x1 = x + hs
        h2 = _gelu(_layernorm(x1, axis=-1) @ w3) @ w4
        return x1 + h2
    x = A_x
    h = x + _A_ref(_layernorm(x, axis=-1), A_mem0, A_Wq, A_Wk, A_Wv, A_Wo, A_seg_len)
    h2 = h + _B_ref(_layernorm(h, axis=-1), B_w1, B_w2, B_w3, B_w4)
    return h2
```

```python
class Asm:
    def __init__(self):
        self.L = []
        self._uid = 0
    def __call__(self, s):
        for line in s.split('\n'):
            line = line.strip()
            if line:
                self.L.append(line if line.endswith(':') else '    ' + line)
    def raw(self, s): self.L.append(s)
    def label(self, n): self.L.append(n + ':')
    def c(self, s): self.L.append('    ; ' + s)
    def uid(self, p='L'):
        self._uid += 1
        return '%s_%d' % (p, self._uid)
    def text(self): return '\n'.join(self.L) + '\n'
    def nop(self, n):
        while n > 0:
            k = min(n, 16)
            self('s_nop %d' % (k - 1))
            n -= k

def v(n, cnt=1):
    return 'v%d' % n if cnt == 1 else 'v[%d:%d]' % (n, n + cnt - 1)
def a(n, cnt=1):
    return 'a%d' % n if cnt == 1 else 'a[%d:%d]' % (n, n + cnt - 1)
def s(n, cnt=1):
    return 's%d' % n if cnt == 1 else 's[%d:%d]' % (n, n + cnt - 1)
def r(n, cnt=1):
    return v(n, cnt) if n < 256 else a(n - 256, cnt)

def kernel_header(A, name):
    A.raw('.globl %s' % name)
    A.raw('.p2align 8')
    A.raw('.type %s,@function' % name)
    A.label(name)

def kernel_desc(A, name, vgpr=512, sgpr=102, accum=256):
    A.raw('.amdhsa_kernel %s' % name)
    A.raw('  .amdhsa_next_free_vgpr %d' % vgpr)
    A.raw('  .amdhsa_next_free_sgpr %d' % sgpr)
    A.raw('  .amdhsa_accum_offset %d' % accum)
    A.raw('  .amdhsa_group_segment_fixed_size 0')
    A.raw('  .amdhsa_kernarg_size 120')
    A.raw('  .amdhsa_user_sgpr_count 2')
    A.raw('  .amdhsa_user_sgpr_kernarg_segment_ptr 1')
    A.raw('  .amdhsa_system_sgpr_workgroup_id_x 1')
    A.raw('  .amdhsa_float_denorm_mode_32 3')
    A.raw('.end_amdhsa_kernel')
```

```python
from asmlib import *
from layout import *
import struct, math

LDS_WO = 0
LDS_AF = 131072
LDS_KX = 147456
LDS_VX = 155648
LDS_RED = 159744
LDS_CHAIN_END = 163840
SPIN_LIMIT = 1 << 22

S_WS = 4
S_DBG = 6
SRD_WS = 8
SRD_T = 12
sX, sC, sW, sH, sJ, sS = 16, 17, 18, 19, 20, 21
sMEMc, sMEMn, sMEMp, sQKc, sQKp, sOBc, sOBp, sPTw, sPTr, sTAG, sKXo, sVXo, sKMo, sVMo, sSEG = range(22, 37)
sT0, sT1, sT2, sT3 = 37, 38, 39, 40
sSPIN = 41
sHI = 42
sN8 = 44
sC_ = 46
sFE = 47
sTM = 48
sLO32 = 54
sLO16 = 56
sKMM = 58
sRT = 80
sACC = 60

def wreg(kap, mu):
    idx = kap * 3 + mu
    return 256 + idx * 8 if idx < 32 else 128 + (idx - 32) * 8

def gen_chain(A, intra='', timing=False, nsteps=64, d4=0, d6=0, d1=0, d7=0, kvwait=None, looptime=False):
    I = intra
    def st(x): return (x + ' ' + I).rstrip()
    WS = 's[%d:%d]' % (SRD_WS, SRD_WS + 3)
    names = ['vMemLd', 'vAfW', 'vAf1', 'vAf2', 'vAf3', 'vQkSt', 'vQkLd', 'vKmLd', 'vOSt', 'vOLd', 'vOLd2', 'vL16', 'vMemSt', 'vIdx', 'vMaskF',
             'vKx0', 'vKx1', 'vKx2', 'vKx3', 'vVx', 'vWoR', 'vKmSt', 'vVmSt', 'vD0', 'vD1', 'vD2', 'vD3', 'vPq', 'vPo', 'vPm', 'vRedW', 'vRedR']
    R = {n: i for i, n in enumerate(names)}
    (vMemLd, vAfW, vAf1, vAf2, vAf3, vQkSt, vQkLd, vKmLd, vOSt, vOLd, vOLd2, vL16, vMemSt, vIdx, vMaskF,
     vKx0, vKx1, vKx2, vKx3, vVx, vWoR, vKmSt, vVmSt, vD0, vD1, vD2, vD3, vPq, vPo, vPm, vRedW, vRedR) = range(32)
    vKxD4 = [vD0, vD1, vD2, vD3]
    vT = 32
    vKeep = 36
    W0 = 42
    vLane, vG, vN = 120, 121, 122
    t0, t1, t2, t3 = 123, 124, 125, 126
    A.c('=== chain ===')
    A('v_and_b32 v%d, 63, v0' % vLane)
    A('v_lshrrev_b32 v%d, 6, v0' % t0)
    A('s_nop 0')
    A('v_readfirstlane_b32 s%d, v%d' % (sW, t0))
    A('v_lshrrev_b32 v%d, 4, v%d' % (vG, vLane))
    A('v_and_b32 v%d, 15, v%d' % (vN, vLane))
    A('s_lshr_b32 s%d, s%d, 1' % (sT0, sC))
    A('s_and_b32 s%d, s%d, 1' % (sJ, sC))
    A('s_lshl_b32 s%d, s%d, 4' % (sH, sX))
    A('s_add_u32 s%d, s%d, s%d' % (sH, sH, sT0))
    A('v_cmp_le_u32 s[%d:%d], 32, v%d' % (sHI, sHI + 1, vLane))
    A('v_cmp_gt_u32 s[%d:%d], 8, v%d' % (sN8, sN8 + 1, vN))
    cval = struct.unpack('<I', struct.pack('<f', (128 ** -0.5) * math.log2(math.e)))[0]
    A('s_mov_b32 s%d, 0x%08x' % (sC_, cval))
    A('s_mov_b32 s%d, 0xfffefffe' % sFE)
    A('s_mov_b32 s%d, -1' % sLO32)
    A('s_mov_b32 s%d, 0' % (sLO32 + 1))
    A('s_mov_b32 s%d, 0xffff' % sLO16)
    A('s_mov_b32 s%d, 0' % (sLO16 + 1))
    A('v_lshlrev_b32 v%d, 4, v%d' % (vL16, vLane))
    A('s_lshl_b32 s%d, s%d, 12' % (sT0, sW))
    A('v_add_u32 v%d, s%d, v%d' % (vMemLd, sT0, vL16))
    A('v_add_u32 v%d, %d, v%d' % (vAfW, LDS_AF, vMemLd))
    for q, reg in ((1, vAf1), (2, vAf2), (3, vAf3)):
        A('s_xor_b32 s%d, s%d, %d' % (sT0, sW, q))
        A('s_lshl_b32 s%d, s%d, 12' % (sT0, sT0))
        A('s_add_u32 s%d, s%d, %d' % (sT0, sT0, LDS_AF))
        A('v_add_u32 v%d, s%d, v%d' % (reg, sT0, vL16))
    A('s_lshl_b32 s%d, s%d, 13' % (sT0, sW))
    A('v_add_u32 v%d, s%d, v%d' % (vOLd, sT0, vL16))
    A('v_add_u32 v%d, 4096, v%d' % (vOLd2, vOLd))
    A('s_lshl_b32 s%d, s%d, 15' % (sT0, sW))
    A('v_add_u32 v%d, s%d, v%d' % (vWoR, sT0, vL16))
    A('s_lshl_b32 s%d, s%d, 10' % (sT0, sW))
    A('s_add_u32 s%d, s%d, %d' % (sT0, sT0, LDS_RED))
    A('v_add_u32 v%d, s%d, v%d' % (vRedW, sT0, vL16))
    A('v_add_u32 v%d, %d, v%d' % (vRedR, LDS_RED, vL16))
    A('v_and_b32 v%d, 7, v%d' % (t0, vN))
    A('v_lshrrev_b32 v%d, 3, v%d' % (t1, vN))
    A('v_lshrrev_b32 v%d, 5, v%d' % (t3, vLane))
    A('v_lshlrev_b32 v%d, 11, v%d' % (vQkSt, t3))
    A('v_lshl_add_u32 v%d, v%d, 7, v%d' % (vQkSt, t1, vQkSt))
    A('v_and_b32 v%d, 1, v%d' % (t2, vG))
    A('v_lshl_add_u32 v%d, v%d, 6, v%d' % (vQkSt, t2, vQkSt))
    A('v_lshl_add_u32 v%d, v%d, 1, v%d' % (vQkSt, t0, vQkSt))
    A('s_lshl_b32 s%d, s%d, 10' % (sT0, sJ))
    A('s_lshl_b32 s%d, s%d, 8' % (sT1, sW))
    A('s_add_u32 s%d, s%d, s%d' % (sT0, sT0, sT1))
    A('v_add_u32 v%d, s%d, v%d' % (vQkSt, sT0, vQkSt))
    A('v_lshlrev_b32 v%d, 8, v%d' % (vMemSt, t3))
    A('v_lshl_add_u32 v%d, v%d, 7, v%d' % (vMemSt, t1, vMemSt))
    A('v_lshl_add_u32 v%d, v%d, 6, v%d' % (vMemSt, t2, vMemSt))
    A('v_lshl_add_u32 v%d, v%d, 1, v%d' % (vMemSt, t0, vMemSt))
    A('s_lshl_b32 s%d, s%d, 9' % (sT1, sC))
    A('v_add_u32 v%d, s%d, v%d' % (vMemSt, sT1, vMemSt))
    A('v_lshlrev_b32 v%d, 7, v%d' % (vQkLd, vG))
    A('v_lshl_add_u32 v%d, v%d, 4, v%d' % (vQkLd, t0, vQkLd))
    A('s_lshl_b32 s%d, s%d, 9' % (sT0, sW))
    A('v_add_u32 v%d, s%d, v%d' % (vKmLd, sT0, vQkLd))
    A('v_lshlrev_b32 v%d, 4, v%d' % (vOSt, vN))
    A('v_lshrrev_b32 v%d, 1, v%d' % (t3, vG))
    A('v_lshl_add_u32 v%d, v%d, 7, v%d' % (vOSt, t3, vOSt))
    A('v_lshl_add_u32 v%d, v%d, 3, v%d' % (vOSt, t2, vOSt))
    A('s_lshl_b32 s%d, s%d, 10' % (sT1, sC))
    A('s_lshl_b32 s%d, s%d, 8' % (sT2, sW))
    A('s_add_u32 s%d, s%d, s%d' % (sT1, sT1, sT2))
    A('v_add_u32 v%d, s%d, v%d' % (vOSt, sT1, vOSt))
    A('v_mov_b32 v%d, 0x4444' % vIdx)
    A('v_mov_b32 v%d, 0xeeee' % t2)
    A('v_cndmask_b32 v%d, v%d, v%d, s[%d:%d]' % (vIdx, t2, vIdx, sN8, sN8 + 1))
    A('v_mov_b32 v%d, 1.0' % vMaskF)
    A('v_cndmask_b32 v%d, v%d, 0, s[%d:%d]' % (vMaskF, vMaskF, sHI, sHI + 1))
    A('v_xor_b32 v%d, v%d, v%d' % (t2, vG, vN))
    A('v_lshlrev_b32 v%d, 4, v%d' % (t2, t2))
    A('v_lshl_add_u32 v%d, v%d, 8, v%d' % (t2, vN, t2))
    A('v_add_u32 v%d, %d, v%d' % (vKx0, LDS_KX, t2))
    for k in range(1, 4):
        A('v_xor_b32 v%d, %d, v%d' % (vKx0 + k, k * 64, vKx0))
    A('v_lshrrev_b32 v%d, 2, v%d' % (t2, vN))
    A('v_lshl_add_u32 v%d, v%d, 2, v%d' % (t2, vG, t2))
    A('v_lshrrev_b32 v%d, 1, v%d' % (t3, t2))
    A('v_and_b32 v%d, 3, v%d' % (t3, t3))
    A('v_xor_b32 v%d, s%d, v%d' % (t3, sW, t3))
    A('v_lshlrev_b32 v%d, 5, v%d' % (t3, t3))
    A('v_lshl_add_u32 v%d, v%d, 7, v%d' % (t3, t2, t3))
    A('v_and_b32 v%d, 3, v%d' % (t2, vN))
    A('v_lshl_add_u32 v%d, v%d, 3, v%d' % (t3, t2, t3))
    A('v_add_u32 v%d, %d, v%d' % (vVx, LDS_VX, t3))
    A('v_lshlrev_b32 v%d, 4, v%d' % (vKmSt, vG))
    A('v_lshl_add_u32 v%d, v%d, 13, v%d' % (vKmSt, vN, vKmSt))
    A('v_lshlrev_b32 v%d, 3, v%d' % (vVmSt, vLane))
    for i in range(4):
        A('v_add_u32 v%d, %d, v%d' % (t2, 4 * i, vG))
        A('v_xor_b32 v%d, v%d, v%d' % (t3, t2, vN))
        A('v_lshlrev_b32 v%d, 4, v%d' % (t3, t3))
        A('v_lshl_add_u32 v%d, v%d, 13, v%d' % (t3, t2, t3))
        A('v_subrev_u32 v%d, %d, v%d' % (vKxD4[i], 1024 * i, t3))
    Lw3 = A.uid('w3')
    A('s_cmp_lg_u32 s%d, 3' % sW)
    A('s_cbranch_scc1 %s' % Lw3)
    for i in range(4):
        A('v_lshrrev_b32 v%d, 3, v%d' % (t2, vLane))
        A('v_add_u32 v%d, %d, v%d' % (t2, 8 * i, t2))
        A('v_lshrrev_b32 v%d, 1, v%d' % (t3, t2))
        A('v_and_b32 v%d, 3, v%d' % (t3, t3))
        A('v_bfe_u32 v%d, v%d, 1, 2' % (t1, vLane))
        A('v_xor_b32 v%d, v%d, v%d' % (t3, t3, t1))
        A('v_lshlrev_b32 v%d, 5, v%d' % (t3, t3))
        A('v_and_b32 v%d, 1, v%d' % (t1, vLane))
        A('v_lshl_add_u32 v%d, v%d, 4, v%d' % (t3, t1, t3))
        A('v_lshl_add_u32 v%d, v%d, 13, v%d' % (t3, t2, t3))
        A('v_subrev_u32 v%d, %d, v%d' % (vKxD4[i], 1024 * i, t3))
    A.label(Lw3)
    A('v_lshrrev_b32 v%d, 2, v%d' % (t2, vN))
    A('v_cmp_eq_u32 s[%d:%d], s%d, v%d' % (sKMM, sKMM + 1, sJ, t2))
    A('v_bfe_u32 v%d, v%d, 4, 1' % (t2, vLane))
    A('v_lshlrev_b32 v%d, 11, v%d' % (vPq, t2))
    A('v_lshl_add_u32 v%d, v%d, 4, v%d' % (vPq, vN, vPq))
    A('s_lshl_b32 s%d, s%d, 10' % (sT0, sJ))
    A('s_lshl_b32 s%d, s%d, 8' % (sT1, sW))
    A('s_add_u32 s%d, s%d, s%d' % (sT0, sT0, sT1))
    A('v_add_u32 v%d, s%d, v%d' % (vPq, sT0, vPq))
    A('s_lshl_b32 s%d, s%d, 10' % (sT0, sC))
    A('s_add_u32 s%d, s%d, s%d' % (sT0, sT0, sT1))
    A('v_add_u32 v%d, s%d, v%d' % (vPo, sT0, vL16))
    A('s_lshl_b32 s%d, s%d, 9' % (sT0, sC))
    A('v_add_u32 v%d, s%d, v%d' % (vPm, sT0, vL16))

    def slot_offsets(sreg_slot, dst_mem=None, dst_qk=None, dst_ob=None, dst_pt=False):
        if dst_mem is not None:
            A('s_lshl_b32 s%d, s%d, 2' % (sT0, sX))
            A('s_add_u32 s%d, s%d, s%d' % (sT0, sT0, sreg_slot))
            A('s_lshl_b32 s%d, s%d, 14' % (sT0, sT0))
            A('s_add_u32 s%d, s%d, %d' % (dst_mem, sT0, MEMB))
        if dst_qk is not None:
            A('s_lshl_b32 s%d, s%d, 2' % (sT0, sH))
            A('s_add_u32 s%d, s%d, s%d' % (sT0, sT0, sreg_slot))
            A('s_lshl_b32 s%d, s%d, 12' % (sT0, sT0))
            A('s_add_u32 s%d, s%d, %d' % (dst_qk, sT0, QKB))
        if dst_ob is not None:
            A('s_lshl_b32 s%d, s%d, 2' % (sT0, sX))
            A('s_add_u32 s%d, s%d, s%d' % (sT0, sT0, sreg_slot))
            A('s_lshl_b32 s%d, s%d, 15' % (sT0, sT0))
            A('s_add_u32 s%d, s%d, %d' % (dst_ob, sT0, OB))
        if dst_pt:
            A('s_lshl_b32 s%d, s%d, 5' % (sT0, sreg_slot))
            A('s_add_u32 s%d, s%d, s%d' % (sT0, sT0, sC))
            A('s_lshl_b32 s%d, s%d, 11' % (sT0, sT0))
            A('s_add_u32 s%d, s%d, %d' % (sT0, sT0, PART))
            A('s_lshl_b32 s%d, s%d, 10' % (sT1, sX))
            A('s_add_u32 s%d, s%d, s%d' % (sPTw, sT0, sT1))
            A('s_xor_b32 s%d, s%d, 1024' % (sT1, sT1))
            A('s_add_u32 s%d, s%d, s%d' % (sPTr, sT0, sT1))

    def poison(smem, sqk, sob, P4):
        for i in range(4): A('v_mov_b32 v%d, -1' % (P4 + i))
        A('s_mov_b64 exec, s[%d:%d]' % (sLO32, sLO32 + 1))
        A(st('buffer_store_dwordx4 v[%d:%d], v%d, %s, s%d offen' % (P4, P4 + 3, vPq, WS, sqk)))
        A('s_mov_b64 exec, s[%d:%d]' % (sLO16, sLO16 + 1))
        A(st('buffer_store_dwordx4 v[%d:%d], v%d, %s, s%d offen' % (P4, P4 + 3, vPo, WS, sob)))
        L = A.uid('pz')
        A('s_cmp_lg_u32 s%d, 0' % sW)
        A('s_cbranch_scc1 %s' % L)
        A('s_mov_b64 exec, s[%d:%d]' % (sLO32, sLO32 + 1))
        A(st('buffer_store_dwordx4 v[%d:%d], v%d, %s, s%d offen' % (P4, P4 + 3, vPm, WS, smem)))
        A.label(L)
        A('s_mov_b64 exec, -1')

    A.c('poison own regions (all 4 slots)')
    for sl in range(4):
        A('s_mov_b32 s%d, %d' % (sT3, sl))
        slot_offsets(sT3, dst_mem=sMEMp, dst_qk=sQKp, dst_ob=sOBp, dst_pt=True)
        poison(sMEMp, sQKp, sOBp, W0)
        Lq = A.uid('pp')
        A('s_cmp_lg_u32 s%d, 0' % sW)
        A('s_cbranch_scc1 %s' % Lq)
        A('buffer_store_dwordx4 v[%d:%d], v%d, %s, s%d offen sc1' % (W0, W0 + 3, vL16, WS, sPTw))
        A.label(Lq)
    A('s_waitcnt vmcnt(0)')
    Lm = A.uid('m0')
    A('s_cmp_lg_u32 s%d, 0' % sW)
    A('s_cbranch_scc1 %s' % Lm)
    A('s_load_dwordx2 s[%d:%d], s[0:1], %d' % (SRD_T, SRD_T + 1, A_MEM0))
    A('s_mov_b32 s%d, 16384' % (SRD_T + 2))
    A('s_mov_b32 s%d, 0x00020000' % (SRD_T + 3))
    A('s_mov_b32 s%d, 0' % sT3)
    slot_offsets(sT3, dst_mem=sMEMp)
    A('s_waitcnt lgkmcnt(0)')
    A('s_mov_b64 exec, s[%d:%d]' % (sLO32, sLO32 + 1))
    A('v_and_b32 v%d, 7, v%d' % (t2, vLane))
    A('v_lshlrev_b32 v%d, 11, v%d' % (t2, t2))
    A('v_lshrrev_b32 v%d, 3, v%d' % (t3, vLane))
    A('v_lshl_add_u32 v%d, v%d, 4, v%d' % (t2, t3, t2))
    A('s_lshl_b32 s%d, s%d, 6' % (sT1, sC))
    A('v_add_u32 v%d, s%d, v%d' % (t2, sT1, t2))
    A('buffer_load_dwordx4 v[%d:%d], v%d, s[%d:%d], 0 offen' % (W0, W0 + 3, t2, SRD_T, SRD_T + 3))
    A('s_waitcnt vmcnt(0)')
    for i in range(4): A('v_pk_min_u16 v%d, v%d, s%d' % (W0 + i, W0 + i, sFE))
    A(st('buffer_store_dwordx4 v[%d:%d], v%d, %s, s%d offen' % (W0, W0 + 3, vPm, WS, sMEMp)))
    A('s_mov_b64 exec, -1')
    A('s_waitcnt vmcnt(0)')
    A.label(Lm)
    A('s_mov_b64 exec, 1')
    A('v_mov_b32 v%d, 1' % t2)
    A('v_mov_b32 v%d, 64' % t3)
    A('global_atomic_add v%d, v%d, s[%d:%d] sc1' % (t3, t2, S_DBG, S_DBG + 1))
    A('s_mov_b64 exec, -1')

    A.c('weights -> LDS -> regs')
    vDq, vTr0, vTr1, vDo, vWt0, vWt1 = W0, W0 + 1, W0 + 2, W0 + 3, W0 + 4, W0 + 5
    A('v_lshrrev_b32 v%d, 3, v%d' % (t2, vLane))
    A('v_lshlrev_b32 v%d, 13, v%d' % (vDq, t2))
    A('v_and_b32 v%d, 7, v%d' % (t3, vLane))
    A('v_lshl_add_u32 v%d, v%d, 4, v%d' % (vDq, t3, vDq))
    A('v_bfe_u32 v%d, v%d, 2, 1' % (t2, vN))
    A('v_and_b32 v%d, 1, v%d' % (t3, vG))
    A('v_lshl_add_u32 v%d, v%d, 2, v%d' % (t2, t3, t2))
    A('v_lshrrev_b32 v%d, 3, v%d' % (t3, vN))
    A('v_lshl_add_u32 v%d, v%d, 3, v%d' % (t2, t3, t2))
    A('v_lshrrev_b32 v%d, 1, v%d' % (t3, vG))
    A('v_lshl_add_u32 v%d, v%d, 4, v%d' % (t2, t3, t2))
    A('v_lshlrev_b32 v%d, 7, v%d' % (t2, t2))
    A('v_and_b32 v%d, 3, v%d' % (t3, vN))
    A('v_lshl_add_u32 v%d, v%d, 3, v%d' % (t2, t3, t2))
    A('s_lshl_b32 s%d, s%d, 5' % (sT0, sW))
    A('v_add_u32 v%d, s%d, v%d' % (t2, sT0, t2))
    A('s_and_b32 s%d, s%d, 1' % (sT0, sW))
    A('s_lshl_b32 s%d, s%d, 15' % (sT0, sT0))
    A('v_add_u32 v%d, s%d, v%d' % (vTr0, sT0, t2))
    A('s_xor_b32 s%d, s%d, 32768' % (sT0, sT0))
    A('v_add_u32 v%d, s%d, v%d' % (vTr1, sT0, t2))
    A('v_lshrrev_b32 v%d, 2, v%d' % (t2, vLane))
    A('v_and_b32 v%d, 9, v%d' % (t3, t2))
    A('v_bfe_u32 v%d, v%d, 1, 1' % (t1, t2))
    A('v_lshl_add_u32 v%d, v%d, 2, v%d' % (t3, t1, t3))
    A('v_bfe_u32 v%d, v%d, 2, 1' % (t1, t2))
    A('v_lshl_add_u32 v%d, v%d, 1, v%d' % (t3, t1, t3))
    A('v_lshlrev_b32 v%d, 11, v%d' % (vDo, t3))
    A('v_bfe_u32 v%d, v%d, 1, 1' % (t1, vLane))
    A('v_lshrrev_b32 v%d, 5, v%d' % (t0, vLane))
    A('v_xor_b32 v%d, v%d, v%d' % (t1, t1, t0))
    A('v_lshl_add_u32 v%d, v%d, 5, v%d' % (vDo, t1, vDo))
    A('v_and_b32 v%d, 1, v%d' % (t1, vLane))
    A('v_lshl_add_u32 v%d, v%d, 4, v%d' % (vDo, t1, vDo))
    A('v_bfe_u32 v%d, v%d, 2, 1' % (t2, vN))
    A('v_and_b32 v%d, 1, v%d' % (t3, vG))
    A('v_lshl_add_u32 v%d, v%d, 1, v%d' % (t2, t3, t2))
    A('v_lshrrev_b32 v%d, 3, v%d' % (t3, vN))
    A('v_lshl_add_u32 v%d, v%d, 3, v%d' % (t2, t3, t2))
    A('v_lshrrev_b32 v%d, 1, v%d' % (t1, vG))
    A('v_lshl_add_u32 v%d, v%d, 4, v%d' % (t2, t1, t2))
    A('v_lshlrev_b32 v%d, 6, v%d' % (t2, t2))
    A('v_lshl_add_u32 v%d, v%d, 5, v%d' % (t2, t3, t2))
    A('v_and_b32 v%d, 3, v%d' % (t1, vN))
    A('v_lshl_add_u32 v%d, v%d, 3, v%d' % (t2, t1, t2))
    A('s_lshl_b32 s%d, s%d, 15' % (sT0, sW))
    A('v_add_u32 v%d, s%d, v%d' % (vWt0, sT0, t2))
    A('v_xor_b32 v%d, 32, v%d' % (vWt1, vWt0))

    wptr = [A_WQ, A_WK, A_WV]
    def issue_chunk(cidx):
        half = cidx & 1
        if cidx < 6:
            mu = cidx >> 1
            A('s_load_dwordx2 s[%d:%d], s[0:1], %d' % (SRD_T, SRD_T + 1, wptr[mu]))
            A('s_mov_b32 s%d, %d' % (SRD_T + 2, 8 * MB))
            A('s_mov_b32 s%d, 0x00020000' % (SRD_T + 3))
            A('s_lshl_b32 s%d, s%d, 8' % (sT0, sH))
            A('s_lshl_b32 s%d, s%d, 7' % (sT1, sJ))
            A('s_add_u32 s%d, s%d, s%d' % (sT0, sT0, sT1))
            A('s_lshl_b32 s%d, s%d, 20' % (sT1, sW))
            A('s_add_u32 s%d, s%d, s%d' % (sT0, sT0, sT1))
            A('s_add_u32 s%d, s%d, %d' % (sT0, sT0, half * 512 * 8192))
            A('s_lshl_b32 s%d, s%d, 14' % (sT1, sW))
            A('s_add_u32 s%d, s%d, %d' % (sT1, sT1, half * 65536))
            A('s_waitcnt lgkmcnt(0)')
            for i in range(16):
                A('s_add_u32 m0, s%d, %d' % (sT1, i * 1024))
                A('s_add_u32 s%d, s%d, %d' % (sT2, sT0, i * 65536))
                A('buffer_load_dwordx4 v%d, s[%d:%d], s%d offen lds' % (vDq, SRD_T, SRD_T + 3, sT2))
        else:
            A('s_load_dwordx2 s[%d:%d], s[0:1], %d' % (SRD_T, SRD_T + 1, A_WO))
            A('s_mov_b32 s%d, %d' % (SRD_T + 2, 8 * MB))
            A('s_mov_b32 s%d, 0x00020000' % (SRD_T + 3))
            A('s_lshl_b32 s%d, s%d, 22' % (sT0, sX))
            A('s_lshl_b32 s%d, s%d, 6' % (sT1, sC))
            A('s_add_u32 s%d, s%d, s%d' % (sT0, sT0, sT1))
            A('s_lshl_b32 s%d, s%d, 19' % (sT1, sW))
            A('s_add_u32 s%d, s%d, s%d' % (sT0, sT0, sT1))
            A('s_add_u32 s%d, s%d, %d' % (sT0, sT0, half * 1024 * 2048))
            A('s_lshl_b32 s%d, s%d, 14' % (sT1, sW))
            A('s_add_u32 s%d, s%d, %d' % (sT1, sT1, half * 65536))
            A('s_waitcnt lgkmcnt(0)')
            for i in range(16):
                A('s_add_u32 m0, s%d, %d' % (sT1, i * 1024))
                A('s_add_u32 s%d, s%d, %d' % (sT2, sT0, i * 32768))
                A('buffer_load_dwordx4 v%d, s[%d:%d], s%d offen lds' % (vDo, SRD_T, SRD_T + 3, sT2))
    def read_chunk(cidx):
        half = cidx & 1; mu = cidx >> 1
        b0, b1 = W0 + 6, W0 + 7
        A('v_add_u32 v%d, %d, v%d' % (b0, half * 65536, vTr0))
        A('v_add_u32 v%d, %d, v%d' % (b1, half * 65536, vTr1))
        Lo = A.uid('rc'); Le = A.uid('rce')
        A('s_lshr_b32 s%d, s%d, 1' % (sT0, sW))
        A('s_cmp_lg_u32 s%d, %d' % (sT0, half))
        A('s_cbranch_scc1 %s' % Lo)
        for variant in range(2):
            for kl in range(8):
                kap = 8 * variant + kl
                Rg = wreg(kap, mu)
                base = b1 if (kl & 4) else b0
                for sg in range(4):
                    off = (kl & 3) * 8192 + (sg & 1) * 256 + (sg >> 1) * 4096
                    A('ds_read_b64_tr_b16 %s, v%d offset:%d' % (r(Rg + 2 * sg, 2), base, off))
                if kl % 2 == 1: A('s_waitcnt lgkmcnt(0)')
            if variant == 0:
                A('s_branch %s' % Le)
                A.label(Lo)
        A.label(Le)
    issue_chunk(0)
    for cidx in range(6):
        issue_chunk(cidx + 1)
        A('s_waitcnt vmcnt(16)')
        A('s_barrier')
        read_chunk(cidx)
        A('s_waitcnt lgkmcnt(0)')
        A('s_barrier')
    issue_chunk(7)

    def prefetch_kv(seg_sreg):
        A('s_lshl_b32 s%d, s%d, 18' % (sT0, seg_sreg))
        A('s_lshl_b32 s%d, s%d, 8' % (sT1, sH))
        A('s_add_u32 s%d, s%d, s%d' % (sT0, sT0, sT1))
        A('s_add_u32 s%d, s%d, %d' % (sKXo, sT0, KX))
        A('s_lshl_b32 s%d, s%d, 7' % (sT1, sJ))
        A('s_add_u32 s%d, s%d, s%d' % (sT0, sT0, sT1))
        A('s_add_u32 s%d, s%d, %d' % (sVXo, sT0, VX))
        Lv = A.uid('pv'); Le = A.uid('pe')
        A('s_cmp_eq_u32 s%d, 3' % sW)
        A('s_cbranch_scc1 %s' % Lv)
        A('s_sub_u32 s%d, s%d, 1' % (sT1, sW))
        A('s_lshl_b32 s%d, s%d, 17' % (sT2, sT1))
        A('s_add_u32 s%d, s%d, s%d' % (sKXo, sKXo, sT2))
        A('s_lshl_b32 s%d, s%d, 12' % (sT1, sT1))
        A('s_add_u32 m0, s%d, %d' % (sT1, LDS_KX))
        A('s_nop 0')
        for i in range(4):
            A('buffer_load_dwordx4 v%d, %s, s%d offen offset:%d sc1 lds' % (vKxD4[i], WS, sKXo, 1024 * i))
        A('s_branch %s' % Le)
        A.label(Lv)
        A('s_mov_b32 m0, %d' % LDS_VX)
        A('s_nop 0')
        for i in range(4):
            A('buffer_load_dwordx4 v%d, %s, s%d offen offset:%d sc1 lds' % (vKxD4[i], WS, sVXo, 1024 * i))
        A.label(Le)

    def wait_flag(off_sreg_or_const, target, uid):
        pass

    A('s_mov_b32 s%d, 0' % sS)
    if kvwait: kvwait(A, sS)
    Lp0 = A.uid('p0')
    A('s_cmp_eq_u32 s%d, 0' % sW)
    A('s_cbranch_scc1 %s' % Lp0)
    prefetch_kv(sS)
    A.label(Lp0)
    A('s_waitcnt vmcnt(0)')
    A('s_barrier')
    CV = W0 + 8
    for hf in range(2):
        for kl in range(4):
            kap = 4 * hf + kl
            for tt in range(2):
                Rg = CV + (kl * 2 + tt) * 8
                for sg in range(4):
                    off = kap * 4096 + (sg & 1) * 256 + (sg >> 1) * 2048
                    A('ds_read_b64_tr_b16 v[%d:%d], v%d offset:%d' % (Rg + 2 * sg, Rg + 2 * sg + 1, vWt1 if tt else vWt0, off))
            A('s_waitcnt lgkmcnt(0)')
        for kl in range(4):
            kap = 4 * hf + kl
            for tt in range(2):
                Rg = CV + (kl * 2 + tt) * 8
                off = (kap * 2 + tt) * 2048
                A('ds_write_b128 v%d, v[%d:%d] offset:%d' % (vWoR, Rg, Rg + 3, off))
                A('ds_write_b128 v%d, v[%d:%d] offset:%d' % (vWoR, Rg + 4, Rg + 7, off + 1024))
        A('s_waitcnt lgkmcnt(0)')
    Lw = A.uid('pw')
    A('s_mov_b32 s%d, 0' % sSPIN)
    A('v_mov_b32 v%d, 64' % (vT + 1))
    A.label(Lw)
    A('global_load_dword v%d, v%d, s[%d:%d] sc1' % (vT, vT + 1, S_DBG, S_DBG + 1))
    A('s_waitcnt vmcnt(0)')
    A('v_readfirstlane_b32 s%d, v%d' % (sT0, vT))
    A('s_add_u32 s%d, s%d, 1' % (sSPIN, sSPIN))
    A('s_cmp_gt_u32 s%d, %d' % (sSPIN, SPIN_LIMIT))
    A('s_cbranch_scc1 chain_abort')
    A('s_cmp_lt_u32 s%d, 256' % sT0)
    A('s_cbranch_scc1 %s' % Lw)
    A('s_barrier')

    if timing or looptime:
        for i in range(16): A('s_mov_b32 s%d, 0' % (sACC + i))
    def stamp(i):
        if timing:
            A('s_memtime s[%d:%d]' % (sTM + 2, sTM + 3))
            A('s_waitcnt lgkmcnt(0)')
            A('s_sub_u32 s%d, s%d, s%d' % (sTM + 4, sTM + 2, sTM))
            A('s_add_u32 s%d, s%d, s%d' % (sACC + i, sACC + i, sTM + 4))
            A('s_mov_b32 s%d, s%d' % (sTM, sTM + 2))
    if timing:
        A('s_memtime s[%d:%d]' % (sTM, sTM + 1))
        A('s_waitcnt lgkmcnt(0)')

    def signal(sreg, delta):
        A('s_add_u32 s%d, s%d, %d' % (sT2, sreg, delta & 0xffffffff))
        A('s_mov_b64 exec, 1')
        A('v_mov_b32 v%d, 1' % (vT + 2))
        A('v_mov_b32 v%d, 0' % (vT + 3))
        A('buffer_store_dword v%d, v%d, %s, s%d offen sc1' % (vT + 2, vT + 3, WS, sT2))
        A('s_mov_b64 exec, -1')

    def poll(loads, regs, tagcheck=False, site=None):
        L = A.uid('poll')
        A('s_mov_b32 s%d, 0' % sSPIN)
        A.label(L)
        for x in loads: A(x)
        A('s_add_u32 s%d, s%d, 1' % (sSPIN, sSPIN))
        A('s_cmp_gt_u32 s%d, %d' % (sSPIN, SPIN_LIMIT))
        A('s_cbranch_scc1 chain_abort')
        A('s_waitcnt vmcnt(0)')
        m = vT
        rs = list(regs)
        if tagcheck:
            A('v_xor_b32 v%d, s%d, v%d' % (m, sTAG, rs[0]))
            for x in rs[1:]:
                A('v_xor_b32 v%d, s%d, v%d' % (m + 1, sTAG, x))
                A('v_or_b32 v%d, v%d, v%d' % (m, m, m + 1))
            A('v_and_b32 v%d, 3, v%d' % (m, m))
            A('v_cmp_ne_u32 vcc, 0, v%d' % m)
        else:
            if len(rs) == 1:
                A('v_cmp_eq_u32 vcc, -1, v%d' % rs[0])
            else:
                if len(rs) == 2:
                    A('v_max_u32 v%d, v%d, v%d' % (m, rs[0], rs[1])); rs = []
                else:
                    A('v_max3_u32 v%d, v%d, v%d, v%d' % (m, rs[0], rs[1], rs[2])); rs = rs[3:]
                while len(rs) >= 2:
                    A('v_max3_u32 v%d, v%d, v%d, v%d' % (m, m, rs[0], rs[1])); rs = rs[2:]
                if rs: A('v_max_u32 v%d, v%d, v%d' % (m, m, rs[0]))
                A('v_cmp_eq_u32 vcc, -1, v%d' % m)
        A('s_cbranch_vccnz %s' % L)
        if timing and site is not None:
            A('s_add_u32 s%d, s%d, s%d' % (sACC + 10 + site, sACC + 10 + site, sSPIN))

    if looptime:
        A('s_memrealtime s[%d:%d]' % (sRT, sRT + 1))
        A('s_waitcnt lgkmcnt(0)')
    A.label('chain_step')
    A('s_and_b32 s%d, s%d, 3' % (sT3, sS))
    slot_offsets(sT3, dst_mem=sMEMc, dst_qk=sQKc, dst_ob=sOBc, dst_pt=True)
    A('s_add_u32 s%d, s%d, 1' % (sT3, sS))
    A('s_and_b32 s%d, s%d, 3' % (sT3, sT3))
    slot_offsets(sT3, dst_mem=sMEMn)
    A('s_add_u32 s%d, s%d, 2' % (sT3, sS))
    A('s_and_b32 s%d, s%d, 3' % (sT3, sT3))
    slot_offsets(sT3, dst_qk=sQKp, dst_ob=sOBp)
    A('s_add_u32 s%d, s%d, 3' % (sT3, sS))
    A('s_and_b32 s%d, s%d, 3' % (sT3, sT3))
    slot_offsets(sT3, dst_mem=sMEMp)
    A('s_lshr_b32 s%d, s%d, 2' % (sTAG, sS))
    A('s_and_b32 s%d, s%d, 3' % (sTAG, sTAG))
    A('s_lshl_b32 s%d, s%d, 16' % (sT0, sS))
    A('s_lshl_b32 s%d, s%d, 8' % (sT1, sH))
    A('s_add_u32 s%d, s%d, s%d' % (sKMo, sT0, sT1))
    A('s_add_u32 s%d, s%d, %d' % (sKMo, sKMo, KM))
    A('s_lshl_b32 s%d, s%d, 6' % (sT1, sW))
    A('s_add_u32 s%d, s%d, s%d' % (sKMo, sKMo, sT1))
    A('s_lshl_b32 s%d, s%d, 5' % (sT0, sS))
    A('s_add_u32 s%d, s%d, s%d' % (sT0, sT0, sH))
    A('s_lshl_b32 s%d, s%d, 3' % (sT0, sT0))
    A('s_lshl_b32 s%d, s%d, 2' % (sT1, sJ))
    A('s_add_u32 s%d, s%d, s%d' % (sT0, sT0, sT1))
    A('s_add_u32 s%d, s%d, s%d' % (sT0, sT0, sW))
    A('s_lshl_b32 s%d, s%d, 8' % (sT0, sT0))
    A('s_add_u32 s%d, s%d, %d' % (sVMo, sT0, VMF))
    A('s_lshl_b32 s%d, s%d, 5' % (sT0, sS))
    A('s_add_u32 s%d, s%d, s%d' % (sT0, sT0, sH))
    A('s_lshl_b32 s%d, s%d, 3' % (sT0, sT0))
    A('s_lshl_b32 s%d, s%d, 2' % (sT1, sJ))
    A('s_add_u32 s%d, s%d, s%d' % (sT0, sT0, sT1))
    A('s_add_u32 s%d, s%d, s%d' % (sT0, sT0, sW))
    A('s_lshl_b32 s%d, s%d, 2' % (sT0, sT0))
    A('s_add_u32 s%d, s%d, %d' % (sSEG, sT0, FLG_SEG))
    vLD = W0
    vAcc = W0 + 16
    vAF = W0 + 28
    vKX = 96
    vVXF = 92
    A.c('P1: poll mem quarter')
    for i in range(12): A('v_mov_b32 v%d, 0' % (vAcc + i))
    if d1: A.nop(d1)
    loads = ['buffer_load_dwordx4 v[%d:%d], v%d, %s, s%d offen offset:%d sc1' % (vLD + 4 * k, vLD + 4 * k + 3, vMemLd, WS, sMEMc, 1024 * k) for k in range(4)]
    poll(loads, [vLD + 4 * k for k in range(4)], site=0)
    for k in range(4):
        A('ds_write_b128 v%d, v[%d:%d] offset:%d' % (vAfW, vLD + 4 * k, vLD + 4 * k + 3, 1024 * k))
    stamp(0)
    A.c('P2: QKV smfmac')
    def smf(kap, areg):
        for mu in range(3):
            A('v_smfmac_f32_16x16x64_bf16 v[%d:%d], v[%d:%d], %s, v%d' % (vAcc + 4 * mu, vAcc + 4 * mu + 3, areg, areg + 3, r(wreg(kap, mu), 8), vIdx))
    smf(0, vLD); smf(1, vLD + 4)
    A('s_waitcnt lgkmcnt(0)')
    A('s_barrier')
    afb = {1: vAf1, 2: vAf2, 3: vAf3}
    def afread(kap):
        slot = kap & 3
        A('ds_read_b128 v[%d:%d], v%d offset:%d' % (vAF + 4 * slot, vAF + 4 * slot + 3, afb[kap >> 2], 1024 * (kap & 3)))
    for kap in range(4, 8): afread(kap)
    smf(2, vLD + 8); smf(3, vLD + 12)
    for kap in range(4, 16):
        slot = kap & 3
        A('s_waitcnt lgkmcnt(%d)' % min(3, 15 - kap))
        smf(kap, vAF + 4 * slot)
        if kap + 4 < 16: afread(kap + 4)
    for tt in range(2):
        for k in range(4):
            Rg = vKX + (tt * 4 + k) * 4
            A('ds_read_b128 v[%d:%d], v%d offset:%d' % (Rg, Rg + 3, vKx0 + k, tt * 4096))
    A('ds_read_b64_tr_b16 v[%d:%d], v%d' % (vVXF, vVXF + 1, vVx))
    A('ds_read_b64_tr_b16 v[%d:%d], v%d offset:2048' % (vVXF + 2, vVXF + 3, vVx))
    A.nop(2)
    stamp(1)
    A.c('P3: combine + publish')
    q, kk_, vv = vAcc, vAcc + 4, vAcc + 8
    tv = vAF
    for i in range(4):
        A('v_permlane32_swap_b32 v%d, v%d' % (q + i, kk_ + i))
    for i in range(4): A('v_mov_b32 v%d, v%d' % (tv + i, vv + i))
    for i in range(4): A('v_add_f32 v%d, v%d, v%d' % (q + i, q + i, kk_ + i))
    A('v_cvt_pk_bf16_f32 v%d, v%d, v%d' % (kk_, q, q + 1))
    A('v_cvt_pk_bf16_f32 v%d, v%d, v%d' % (kk_ + 1, q + 2, q + 3))
    A('v_pk_min_u16 v%d, v%d, s%d' % (kk_, kk_, sFE))
    A('v_pk_min_u16 v%d, v%d, s%d' % (kk_ + 1, kk_ + 1, sFE))
    A('s_waitcnt lgkmcnt(0)')
    A(st('buffer_store_short v%d, v%d, %s, s%d offen' % (kk_, vQkSt, WS, sQKc)))
    A(st('buffer_store_short_d16_hi v%d, v%d, %s, s%d offen offset:16' % (kk_, vQkSt, WS, sQKc)))
    A(st('buffer_store_short v%d, v%d, %s, s%d offen offset:32' % (kk_ + 1, vQkSt, WS, sQKc)))
    A(st('buffer_store_short_d16_hi v%d, v%d, %s, s%d offen offset:48' % (kk_ + 1, vQkSt, WS, sQKc)))
    for i in range(4):
        A('v_permlane32_swap_b32 v%d, v%d' % (vv + i, tv + i))
    A('s_nop 0')
    for i in range(4): A('v_add_f32 v%d, v%d, v%d' % (vv + i, vv + i, tv + i))
    vVM = vKeep + 4
    A('v_cvt_pk_bf16_f32 v%d, v%d, v%d' % (vVM, vv, vv + 1))
    A('v_cvt_pk_bf16_f32 v%d, v%d, v%d' % (vVM + 1, vv + 2, vv + 3))
    stamp(2)
    A.c('P4: poll q,k frags')
    vQ, vKM = W0, W0 + 16
    if d4: A.nop(d4)
    loads = []
    for k in range(4):
        loads.append('buffer_load_dwordx4 v[%d:%d], v%d, %s, s%d offen offset:%d sc1' % (vQ + 4 * k, vQ + 4 * k + 3, vQkLd, WS, sQKc, 512 * k))
        loads.append('buffer_load_dwordx4 v[%d:%d], v%d, %s, s%d offen offset:%d sc1' % (vKM + 4 * k, vKM + 4 * k + 3, vQkLd, WS, sQKc, 2048 + 512 * k))
    poll(loads, [vQ + 4 * k for k in range(8)], site=1)
    stamp(3)
    T0, T1, T2 = 74, 78, 82
    for k in range(4):
        c1 = '0' if k == 0 else 'v[%d:%d]' % (T1, T1 + 3)
        c2 = '0' if k == 0 else 'v[%d:%d]' % (T2, T2 + 3)
        c0 = '0' if k == 0 else 'v[%d:%d]' % (T0, T0 + 3)
        A('v_mfma_f32_16x16x32_bf16 v[%d:%d], v[%d:%d], v[%d:%d], %s' % (T1, T1 + 3, vKX + 4 * k, vKX + 4 * k + 3, vQ + 4 * k, vQ + 4 * k + 3, c1))
        A('v_mfma_f32_16x16x32_bf16 v[%d:%d], v[%d:%d], v[%d:%d], %s' % (T2, T2 + 3, vKX + 16 + 4 * k, vKX + 16 + 4 * k + 3, vQ + 4 * k, vQ + 4 * k + 3, c2))
        A('v_mfma_f32_16x16x32_bf16 v[%d:%d], v[%d:%d], v[%d:%d], %s' % (T0, T0 + 3, vKM + 4 * k, vKM + 4 * k + 3, vQ + 4 * k, vQ + 4 * k + 3, c0))
    ops = [(kap, tt) for kap in range(8) for tt in range(2)]
    breg = [96, 104, 112, 120, 42, 50]
    def wo_read(n, Rg):
        kap, tt = ops[n]
        off = (kap * 2 + tt) * 2048
        A('ds_read_b128 v[%d:%d], v%d offset:%d' % (Rg, Rg + 3, vWoR, off))
        A('ds_read_b128 v[%d:%d], v%d offset:%d' % (Rg + 4, Rg + 7, vWoR, off + 1024))
    A.nop(4)
    for n in range(6): wo_read(n, breg[n])
    A.c('P5: softmax')
    m, t = vT, vT + 1
    A('v_max3_f32 v%d, v%d, v%d, v%d' % (m, T1, T1 + 1, T1 + 2))
    A('v_max3_f32 v%d, v%d, v%d, v%d' % (t, T1 + 3, T2, T2 + 1))
    A('v_max3_f32 v%d, v%d, v%d, v%d' % (m, m, T2 + 2, T2 + 3))
    A('v_max3_f32 v%d, v%d, v%d, v%d' % (t, t, T0, T0 + 1))
    A('v_max3_f32 v%d, v%d, v%d, v%d' % (m, m, T0 + 2, T0 + 3))
    A('v_max_f32 v%d, v%d, v%d' % (m, m, t))
    def xreduce(op, x, tmp):
        A('v_mov_b32 v%d, v%d' % (tmp, x))
        A('s_nop 1')
        A('v_permlane32_swap_b32 v%d, v%d' % (x, tmp))
        A('s_nop 0')
        A('%s v%d, v%d, v%d' % (op, x, x, tmp))
        A('v_mov_b32 v%d, v%d' % (tmp, x))
        A('s_nop 1')
        A('v_permlane16_swap_b32 v%d, v%d' % (x, tmp))
        A('s_nop 0')
        A('%s v%d, v%d, v%d' % (op, x, x, tmp))
    xreduce('v_max_f32', m, t)
    A('v_mul_f32 v%d, s%d, v%d' % (m, sC_, m))
    order = list(range(T1, T1 + 8)) + list(range(T0, T0 + 4))
    for x in order: A('v_fma_f32 v%d, v%d, s%d, -v%d' % (x, x, sC_, m))
    for x in order: A('v_exp_f32 v%d, v%d' % (x, x))
    vPx, vPm2 = 58, 62
    vO, vO2 = 64, 68
    A('v_cvt_pk_bf16_f32 v%d, v%d, v%d' % (vPx, T1, T1 + 1))
    A('v_cvt_pk_bf16_f32 v%d, v%d, v%d' % (vPx + 1, T1 + 2, T1 + 3))
    A('v_cvt_pk_bf16_f32 v%d, v%d, v%d' % (vPx + 2, T2, T2 + 1))
    A('v_cvt_pk_bf16_f32 v%d, v%d, v%d' % (vPx + 3, T2 + 2, T2 + 3))
    for i in range(4): A('v_mul_f32 v%d, v%d, v%d' % (T0 + i, T0 + i, vMaskF))
    A('v_mfma_f32_16x16x32_bf16 v[%d:%d], v[%d:%d], v[%d:%d], 0' % (vO, vO + 3, vVXF, vVXF + 3, vPx, vPx + 3))
    A('v_cvt_pk_bf16_f32 v%d, v%d, v%d' % (vPm2, T0, T0 + 1))
    A('v_cvt_pk_bf16_f32 v%d, v%d, v%d' % (vPm2 + 1, T0 + 2, T0 + 3))
    A('v_add_f32 v%d, v%d, v%d' % (m, T1, T1 + 1))
    A('v_add_f32 v%d, v%d, v%d' % (t, T1 + 2, T1 + 3))
    A('v_mfma_f32_16x16x16_bf16 v[%d:%d], v[%d:%d], v[%d:%d], 0' % (vO2, vO2 + 3, vVM, vVM + 1, vPm2, vPm2 + 1))
    for i in range(4, 8, 2):
        A('v_add_f32 v%d, v%d, v%d' % (m, m, T1 + i))
        A('v_add_f32 v%d, v%d, v%d' % (t, t, T1 + i + 1))
    for i in range(0, 4, 2):
        A('v_add_f32 v%d, v%d, v%d' % (m, m, T0 + i))
        A('v_add_f32 v%d, v%d, v%d' % (t, t, T0 + i + 1))
    A('v_add_f32 v%d, v%d, v%d' % (m, m, t))
    xreduce('v_add_f32', m, t)
    A('v_rcp_f32 v%d, v%d' % (m, m))
    for i in range(4): A('v_add_f32 v%d, v%d, v%d' % (vO + i, vO + i, vO2 + i))
    for i in range(4): A('v_mul_f32 v%d, v%d, v%d' % (vO + i, vO + i, m))
    A('v_cvt_pk_bf16_f32 v%d, v%d, v%d' % (vO, vO, vO + 1))
    A('v_cvt_pk_bf16_f32 v%d, v%d, v%d' % (vO + 1, vO + 2, vO + 3))
    A('v_pk_min_u16 v%d, v%d, s%d' % (vO, vO, sFE))
    A('v_pk_min_u16 v%d, v%d, s%d' % (vO + 1, vO + 1, sFE))
    A('s_mov_b64 exec, s[%d:%d]' % (sN8, sN8 + 1))
    A(st('buffer_store_dwordx2 v[%d:%d], v%d, %s, s%d offen' % (vO, vO + 1, vOSt, WS, sOBc)))
    A('s_mov_b64 exec, -1')
    stamp(4)
    A.c('P6: Wo')
    vOA = 60
    acc0, acc1 = 58, 0
    acc0 = vT
    acc1 = 92
    if d6: A.nop(d6)
    loads = ['buffer_load_dwordx4 v[%d:%d], v%d, %s, s%d offen offset:%d sc1' % (vOA + 4 * k, vOA + 4 * k + 3, vOLd if k < 4 else vOLd2, WS, sOBc, 1024 * (k & 3)) for k in range(8)]
    chk = []
    for k in range(8): chk += [vOA + 4 * k, vOA + 4 * k + 2]
    poll(loads, chk, site=2)
    stamp(5)
    for i in range(4):
        A('v_mov_b32 v%d, 0' % (acc0 + i))
        A('v_mov_b32 v%d, 0' % (acc1 + i))
    A('s_waitcnt lgkmcnt(0)')
    nb = len(breg); issued = nb
    for n, (kap, tt) in enumerate(ops):
        acc = acc1 if tt else acc0
        Rg = breg[n % nb]
        if n >= nb:
            later = (min(issued, 16) - (n + 1)) * 2
            A('s_waitcnt lgkmcnt(%d)' % min(later, 15))
        A('v_smfmac_f32_16x16x64_bf16 v[%d:%d], v[%d:%d], v[%d:%d], v%d' % (acc, acc + 3, vOA + 4 * kap, vOA + 4 * kap + 3, Rg, Rg + 7, vIdx))
        if issued < 16:
            wo_read(issued, Rg); issued += 1
    A.nop(9)
    for i in range(4): A('v_permlane32_swap_b32 v%d, v%d' % (acc0 + i, acc1 + i))
    A('s_nop 0')
    for i in range(4): A('v_add_f32 v%d, v%d, v%d' % (acc0 + i, acc0 + i, acc1 + i))
    Lw0 = A.uid('rw0'); Lw1 = A.uid('rw1')
    A('s_cmp_lg_u32 s%d, 0' % sW)
    A('s_cbranch_scc1 %s' % Lw0)
    A('ds_write_b64 v%d, v[%d:%d]' % (vRedR, vKeep + 4, vKeep + 5))
    A('s_branch %s' % Lw1)
    A.label(Lw0)
    A('ds_write_b128 v%d, v[%d:%d]' % (vRedW, acc0, acc0 + 3))
    A.label(Lw1)
    A('s_waitcnt lgkmcnt(0)')
    A('s_barrier')
    stamp(6)
    def offpath(P4, w0):
        if not w0:
            KA, KB, VB = P4 + 4, P4 + 8, P4 + 12
            A('buffer_load_dwordx4 v[%d:%d], v%d, %s, s%d offen offset:2048 sc1' % (KA, KA + 3, vKmLd, WS, sQKc))
            A('buffer_load_dwordx4 v[%d:%d], v%d, %s, s%d offen offset:2048 sc1' % (KB, KB + 3, vQkLd, WS, sQKc))
            A('ds_read_b64 v[%d:%d], v%d' % (VB, VB + 1, vRedR))
            A('s_waitcnt vmcnt(0) lgkmcnt(0)')
            A('s_mov_b64 exec, s[%d:%d]' % (sKMM, sKMM + 1))
            A('buffer_store_dwordx4 v[%d:%d], v%d, %s, s%d offen sc1' % (KA, KA + 3, vKmSt, WS, sKMo))
            A('s_mov_b64 exec, s[%d:%d]' % (sLO32, sLO32 + 1))
            A('buffer_store_dwordx2 v[%d:%d], v%d, %s, s%d offen sc1' % (vKeep + 4, vKeep + 5, vVmSt, WS, sVMo))
            A('s_mov_b64 exec, -1')
            Lx = A.uid('x1')
            A('s_cmp_lg_u32 s%d, 1' % sW)
            A('s_cbranch_scc1 %s' % Lx)
            A('s_sub_u32 s%d, s%d, 64' % (sT1, sKMo))
            A('s_sub_u32 s%d, s%d, 256' % (sT2, sVMo))
            A('s_mov_b64 exec, s[%d:%d]' % (sKMM, sKMM + 1))
            A('buffer_store_dwordx4 v[%d:%d], v%d, %s, s%d offen sc1' % (KB, KB + 3, vKmSt, WS, sT1))
            A('s_mov_b64 exec, s[%d:%d]' % (sLO32, sLO32 + 1))
            A('buffer_store_dwordx2 v[%d:%d], v%d, %s, s%d offen sc1' % (VB, VB + 1, vVmSt, WS, sT2))
            A('s_mov_b64 exec, -1')
            A.label(Lx)
        poison(sMEMp, sQKp, sOBp, P4)
        if not w0:
            Lsg = A.uid('sg')
            A('s_cmp_eq_u32 s%d, 0' % sS)
            A('s_cbranch_scc1 %s' % Lsg)
            signal(sSEG, -1024)
            A.label(Lsg)
    Lr = A.uid('red'); Lre = A.uid('rede')
    A('s_cmp_lg_u32 s%d, 0' % sW)
    A('s_cbranch_scc1 %s' % Lr)
    A.c('P7: reducer (wave 0)')
    S = W0
    for k in range(1, 4):
        A('ds_read_b128 v[%d:%d], v%d offset:%d' % (S + 4 * k, S + 4 * k + 3, vRedR, 1024 * k))
    A('s_waitcnt lgkmcnt(0)')
    for i in range(4): A('v_add_f32 v%d, v%d, v%d' % (S + i, acc0 + i, S + 4 + i))
    for k in range(2, 4):
        for i in range(4): A('v_add_f32 v%d, v%d, v%d' % (S + i, S + i, S + 4 * k + i))
    A('s_mov_b32 s%d, 0xfffffffc' % sT1)
    for i in range(4):
        A('v_and_b32 v%d, s%d, v%d' % (S + i, sT1, S + i))
        A('v_or_b32 v%d, s%d, v%d' % (S + i, sTAG, S + i))
    A('buffer_store_dwordx4 v[%d:%d], v%d, %s, s%d offen sc1' % (S, S + 3, vL16, WS, sPTw))
    offpath(W0 + 16, True)
    if d7: A.nop(d7)
    Rm = S + 4
    loads = ['buffer_load_dwordx4 v[%d:%d], v%d, %s, s%d offen sc1' % (Rm, Rm + 3, vL16, WS, sPTr)]
    poll(loads, list(range(Rm, Rm + 4)), tagcheck=True, site=3)
    for i in range(4): A('v_add_f32 v%d, v%d, v%d' % (S + i, S + i, Rm + i))
    A('v_cvt_pk_bf16_f32 v%d, v%d, v%d' % (S, S, S + 1))
    A('v_cvt_pk_bf16_f32 v%d, v%d, v%d' % (S + 1, S + 2, S + 3))
    A('v_pk_min_u16 v%d, v%d, s%d' % (S, S, sFE))
    A('v_pk_min_u16 v%d, v%d, s%d' % (S + 1, S + 1, sFE))
    A(st('buffer_store_short v%d, v%d, %s, s%d offen' % (S, vMemSt, WS, sMEMn)))
    A(st('buffer_store_short_d16_hi v%d, v%d, %s, s%d offen offset:16' % (S, vMemSt, WS, sMEMn)))
    A(st('buffer_store_short v%d, v%d, %s, s%d offen offset:32' % (S + 1, vMemSt, WS, sMEMn)))
    A(st('buffer_store_short_d16_hi v%d, v%d, %s, s%d offen offset:48' % (S + 1, vMemSt, WS, sMEMn)))
    A('s_branch %s' % Lre)
    A.label(Lr)
    offpath(W0 + 16, False)
    Lnp = A.uid('np')
    A('s_add_u32 s%d, s%d, 1' % (sT3, sS))
    A('s_cmp_ge_u32 s%d, %d' % (sT3, nsteps))
    A('s_cbranch_scc1 %s' % Lnp)
    if kvwait: kvwait(A, sT3)
    prefetch_kv(sT3)
    A.label(Lnp)
    A.label(Lre)
    stamp(7)
    A('s_add_u32 s%d, s%d, 1' % (sS, sS))
    A('s_cmp_lt_u32 s%d, %d' % (sS, nsteps))
    A('s_cbranch_scc1 chain_step')
    if looptime:
        A('s_memrealtime s[%d:%d]' % (sRT + 2, sRT + 3))
        A('s_waitcnt lgkmcnt(0)')
        A('s_sub_u32 s%d, s%d, s%d' % (sACC + 8, sRT + 2, sRT))
    A('s_waitcnt vmcnt(0)')
    Lf = A.uid('fs')
    A('s_cmp_eq_u32 s%d, 0' % sW)
    A('s_cbranch_scc1 %s' % Lf)
    signal(sSEG, 0)
    A.label(Lf)
    if timing or looptime:
        A('s_lshl_b32 s%d, s%d, 5' % (sT0, sX))
        A('s_add_u32 s%d, s%d, s%d' % (sT0, sT0, sC))
        A('s_lshl_b32 s%d, s%d, 2' % (sT0, sT0))
        A('s_add_u32 s%d, s%d, s%d' % (sT0, sT0, sW))
        A('s_lshl_b32 s%d, s%d, 6' % (sT0, sT0))
        A('s_add_u32 s%d, s%d, %d' % (sT0, sT0, CNT + 65536))
        for i in range(16): A('v_mov_b32 v%d, s%d' % (W0 + i, sACC + i))
        A('v_mov_b32 v%d, 0' % vT)
        A('s_mov_b64 exec, 1')
        A('buffer_store_dwordx4 v[%d:%d], v%d, %s, s%d offen' % (W0, W0 + 3, vT, WS, sT0))
        A('buffer_store_dwordx4 v[%d:%d], v%d, %s, s%d offen offset:16' % (W0 + 4, W0 + 7, vT, WS, sT0))
        A('buffer_store_dwordx4 v[%d:%d], v%d, %s, s%d offen offset:32' % (W0 + 8, W0 + 11, vT, WS, sT0))
        A('buffer_store_dwordx4 v[%d:%d], v%d, %s, s%d offen offset:48' % (W0 + 12, W0 + 15, vT, WS, sT0))
    A('s_waitcnt vmcnt(0)')
    A('s_endpgm')
    A.label('chain_abort')
    A('s_mov_b64 exec, 1')
    A('v_mov_b32 v%d, 1' % vT)
    A('v_mov_b32 v%d, 128' % (vT + 1))
    A('global_atomic_add v%d, v%d, s[%d:%d] sc1' % (vT + 1, vT, S_DBG, S_DBG + 1))
    A('s_waitcnt vmcnt(0)')
    A('s_endpgm')
```

```python
from asmlib import *
from layout import *

SRD_WS = 8
SRD_A = 12
SRD_B = 16
SRD_C = 20
SRD_R = 24
sAoff, sBoff, sCoff, sLda, sLdb, sLdc, sNk, sKi, sStR, sStW, sRoff, sR2off, sMode = range(28, 41)
sW, sWm, sWn = 41, 42, 43
sT0, sT1, sT2, sT3, sT4, sT5 = 44, 45, 46, 47, 48, 49
sA2 = 50
sShift = 51
sK1, sK2, sK3 = 52, 53, 54

def srd(n): return 's[%d:%d]' % (n, n + 3)

class Gemm:
    def __init__(self, A, BM, afl='sc1', bfl=''):
        self.A = A; self.BM = BM
        self.TM = BM // 32; self.TN = 4
        self.XSZ = BM * 128
        self.STAGE = self.XSZ + 16384
        self.afl = afl; self.bfl = bfl
        self.vLane, self.vG, self.vC = 1, 2, 3
        self.vXd = 4
        self.vWd = 8
        self.vXb = 12
        self.vWb = 14
        self.vXr = 18
        self.vWr = 20
        self.vT = 24
        self.set = [32, 32 + 16 + 4 * self.TM]
    def acc(self, tm, tn): return (tm * self.TN + tn) * 4

    def setup_lane(self):
        A = self.A
        A('v_and_b32 v%d, 63, v0' % self.vLane)
        A('v_lshrrev_b32 v%d, 6, v0' % self.vT)
        A('s_nop 0')
        A('v_readfirstlane_b32 s%d, v%d' % (sW, self.vT))
        A('v_lshrrev_b32 v%d, 4, v%d' % (self.vG, self.vLane))
        A('v_and_b32 v%d, 15, v%d' % (self.vC, self.vLane))
        A('s_nop 1')
        A('s_lshr_b32 s%d, s%d, 1' % (sWm, sW))
        A('s_and_b32 s%d, s%d, 1' % (sWn, sW))

    def prologue(self):
        A = self.A; TM = self.TM
        t0, t1, t2, t3 = self.vT, self.vT + 1, self.vT + 2, self.vT + 3
        L, G, C = self.vLane, self.vG, self.vC
        A.c('gemm prologue: addresses')
        A('v_lshrrev_b32 v%d, 3, v%d' % (t0, L))
        A('v_and_b32 v%d, 7, v%d' % (t1, L))
        A('v_xor_b32 v%d, v%d, v%d' % (t1, t1, t0))
        A('v_lshlrev_b32 v%d, 4, v%d' % (t1, t1))
        A('s_mul_i32 s%d, s%d, %d' % (sT0, sW, 8 * TM))
        for jj in range(4):
            A('s_add_u32 s%d, s%d, %d' % (sT1, sT0, 8 * jj))
            A('v_add_u32 v%d, s%d, v%d' % (t2, sT1, t0))
            A('v_mul_lo_u32 v%d, v%d, s%d' % (t2, t2, sLda))
            A('v_add_u32 v%d, v%d, v%d' % (t2, t2, t1))
            if jj: A('v_subrev_u32 v%d, %d, v%d' % (self.vXd + jj, 1024 * jj, t2))
            else: A('v_mov_b32 v%d, v%d' % (self.vXd, t2))
        A('v_lshrrev_b32 v%d, 1, v%d' % (t0, C))
        A('v_and_b32 v%d, 1, v%d' % (t3, C))
        A('s_lshl_b32 s%d, s%d, 4' % (sT0, sW))
        for jj in range(4):
            A('v_xor_b32 v%d, v%d, v%d' % (t1, t0, G))
            if (jj >> 1) & 1: A('v_xor_b32 v%d, 4, v%d' % (t1, t1))
            A('v_lshlrev_b32 v%d, 5, v%d' % (t1, t1))
            A('v_lshl_add_u32 v%d, v%d, 4, v%d' % (t1, t3, t1))
            A('s_add_u32 s%d, s%d, %d' % (sT1, sT0, 4 * jj))
            A('v_add_u32 v%d, s%d, v%d' % (t2, sT1, G))
            A('v_mul_lo_u32 v%d, v%d, s%d' % (t2, t2, sLdb))
            A('v_add_u32 v%d, v%d, v%d' % (t2, t2, t1))
            if jj: A('v_subrev_u32 v%d, %d, v%d' % (self.vWd + jj, 1024 * jj, t2))
            else: A('v_mov_b32 v%d, v%d' % (self.vWd, t2))
        A('v_and_b32 v%d, 7, v%d' % (t0, C))
        A('v_xor_b32 v%d, v%d, v%d' % (t0, t0, G))
        A('v_lshlrev_b32 v%d, 4, v%d' % (t0, t0))
        A('v_lshl_add_u32 v%d, v%d, 7, v%d' % (t0, C, t0))
        A('s_mul_i32 s%d, s%d, %d' % (sT0, sWm, (self.BM // 2) * 128))
        A('v_add_u32 v%d, s%d, v%d' % (self.vXb, sT0, t0))
        A('v_xor_b32 v%d, 64, v%d' % (self.vXb + 1, self.vXb))
        A('v_lshrrev_b32 v%d, 2, v%d' % (t0, C))
        A('v_and_b32 v%d, 1, v%d' % (t1, G))
        A('v_lshl_add_u32 v%d, v%d, 2, v%d' % (t1, t1, t0))
        A('v_lshl_add_u32 v%d, v%d, 3, v%d' % (t0, G, t0))
        A('v_lshlrev_b32 v%d, 8, v%d' % (t0, t0))
        A('v_and_b32 v%d, 3, v%d' % (t2, C))
        A('v_lshl_add_u32 v%d, v%d, 3, v%d' % (t0, t2, t0))
        A('v_add_u32 v%d, %d, v%d' % (t0, self.XSZ, t0))
        A('s_lshl_b32 s%d, s%d, 2' % (sT0, sWn))
        for tn in range(4):
            A('s_add_u32 s%d, s%d, %d' % (sT1, sT0, tn))
            A('v_xor_b32 v%d, s%d, v%d' % (t2, sT1, t1))
            A('v_lshl_add_u32 v%d, v%d, 5, v%d' % (self.vWb + tn, t2, t0))
        for i in range(2): A('v_mov_b32 v%d, v%d' % (self.vXr + i, self.vXb + i))
        for i in range(4): A('v_mov_b32 v%d, v%d' % (self.vWr + i, self.vWb + i))
        A('s_lshl_b32 s%d, s%d, 5' % (sA2, sLda))
        A('s_mov_b32 s%d, 0' % sKi)
        A('s_mov_b32 s%d, 0' % sStW)
        A('s_mov_b32 s%d, 0' % sStR)

    def dma_list(self):
        TM = self.TM; out = []
        ngr = (TM + 3) // 4
        for gr in range(ngr):
            n = min(4, TM - 4 * gr)
            pre = ['s_mul_i32 s%d, s%d, %d' % (sT0, sW, TM * 1024),
                   's_add_u32 s%d, s%d, s%d' % (sT0, sT0, sStW),
                   's_add_u32 m0, s%d, %d' % (sT0, gr * 4096)]
            if gr == 0:
                so = sAoff; pre.append('s_nop 0')
            else:
                pre.append('s_add_u32 s%d, s%d, s%d' % (sT1, sAoff, sA2)); so = sT1
            for jj in range(n):
                ins = 'buffer_load_dwordx4 v%d, %s, s%d offen offset:%d %s lds' % (self.vXd + jj, srd(SRD_A), so, 1024 * jj, self.afl)
                out.append((pre if jj == 0 else []) + [ins.replace('  ', ' ')])
        pre = ['s_lshl_b32 s%d, s%d, 12' % (sT0, sW),
               's_add_u32 s%d, s%d, s%d' % (sT0, sT0, sStW),
               's_add_u32 m0, s%d, %d' % (sT0, self.XSZ)]
        for jj in range(4):
            ins = 'buffer_load_dwordx4 v%d, %s, s%d offen offset:%d %s lds' % (self.vWd + jj, srd(SRD_B), sBoff, 1024 * jj, self.bfl)
            out.append((pre + ['s_nop 0'] if jj == 0 else []) + [ins.replace('  ', ' ')])
        return out
    def dma_advance(self):
        o = ['s_add_u32 s%d, s%d, 128' % (sAoff, sAoff),
             's_lshl_b32 s%d, s%d, 6' % (sT0, sLdb),
             's_add_u32 s%d, s%d, s%d' % (sBoff, sBoff, sT0),
             's_add_u32 s%d, s%d, 1' % (sKi, sKi),
             's_add_u32 s%d, s%d, %d' % (sStW, sStW, self.STAGE),
             's_cmp_ge_u32 s%d, %d' % (sStW, 3 * self.STAGE),
             's_cselect_b32 s%d, 0, s%d' % (sStW, sStW)]
        return o
    def shift_fix(self):
        A = self.A
        L = A.uid('sh')
        A('s_cmp_eq_u32 s%d, 0' % sShift)
        A('s_cbranch_scc1 %s' % L)
        A('s_mov_b32 s%d, 0' % sT0)
        A('s_cmp_eq_u32 s%d, 4' % sKi); A('s_cselect_b32 s%d, 2, s%d' % (sT0, sT0))
        A('s_cmp_eq_u32 s%d, 8' % sKi); A('s_cselect_b32 s%d, -3, s%d' % (sT0, sT0))
        A('s_cmp_eq_u32 s%d, 12' % sKi); A('s_cselect_b32 s%d, 4, s%d' % (sT0, sT0))
        A('s_mul_i32 s%d, s%d, s%d' % (sT0, sT0, sLda))
        A('s_add_u32 s%d, s%d, s%d' % (sAoff, sAoff, sT0))
        A.label(L)
    def ndma(self): return self.TM + 4

    def reads(self, st, kk):
        base = self.set[st]; out = []
        for tn in range(4):
            for h in range(2):
                out.append('ds_read_b64_tr_b16 v[%d:%d], v%d offset:%d' % (base + 4 * tn + 2 * h, base + 4 * tn + 2 * h + 1, self.vWr + tn, kk * 8192 + h * 1024))
        for tm in range(self.TM):
            out.append('ds_read_b128 v[%d:%d], v%d offset:%d' % (base + 16 + 4 * tm, base + 16 + 4 * tm + 3, self.vXr + kk, tm * 2048))
        return out
    def mfmas(self, st):
        base = self.set[st]; out = []
        for tm in range(self.TM):
            for tn in range(4):
                ac = self.acc(tm, tn)
                out.append('v_mfma_f32_16x16x32_bf16 a[%d:%d], v[%d:%d], v[%d:%d], a[%d:%d]' % (ac, ac + 3, base + 4 * tn, base + 4 * tn + 3, base + 16 + 4 * tm, base + 16 + 4 * tm + 3, ac, ac + 3))
        return out
    def interleave(self, mf, fill):
        A = self.A
        fi = 0
        for i, m in enumerate(mf):
            A(m)
            if fi < len(fill):
                for x in fill[fi]: A(x)
                fi += 1
        while fi < len(fill):
            for x in fill[fi]: A(x)
            fi += 1

    def mainloop(self):
        A = self.A
        nd = self.ndma()
        A.c('gemm: prologue DMA (3 stages)')
        for st in range(3):
            Ls = A.uid('pd')
            if st > 0:
                A('s_cmp_ge_u32 s%d, s%d' % (sKi, sNk))
                A('s_cbranch_scc1 %s' % Ls)
            for grp in self.dma_list():
                for x in grp: A(x)
            for x in self.dma_advance(): A(x)
            self.shift_fix()
            if st > 0: A.label(Ls)
        for i in range(self.TM * self.TN * 4): A('v_accvgpr_write_b32 a%d, 0' % i)
        A('s_waitcnt vmcnt(%d)' % (2 * nd))
        A('s_barrier')
        for x in self.reads(0, 0): A(x)
        A('s_mov_b32 s%d, 0' % sT5)
        Lloop = A.uid('gl');
        A.label(Lloop)
        A('s_waitcnt lgkmcnt(0)')
        self.interleave(self.mfmas(0), [[x] for x in self.reads(1, 1)])
        Lz = A.uid('wz'); Lw = A.uid('ww')
        A('s_add_u32 s%d, s%d, 2' % (sT4, sT5))
        A('s_cmp_lt_u32 s%d, s%d' % (sT4, sNk))
        A('s_cbranch_scc0 %s' % Lz)
        A('s_waitcnt vmcnt(%d) lgkmcnt(0)' % nd)
        A('s_branch %s' % Lw)
        A.label(Lz)
        A('s_waitcnt vmcnt(0) lgkmcnt(0)')
        A.label(Lw)
        A('s_barrier')
        A('s_add_u32 s%d, s%d, %d' % (sStR, sStR, self.STAGE))
        A('s_cmp_ge_u32 s%d, %d' % (sStR, 3 * self.STAGE))
        A('s_cselect_b32 s%d, 0, s%d' % (sStR, sStR))
        for i in range(2): A('v_add_u32 v%d, s%d, v%d' % (self.vXr + i, sStR, self.vXb + i))
        for i in range(4): A('v_add_u32 v%d, s%d, v%d' % (self.vWr + i, sStR, self.vWb + i))
        La = A.uid('ga'); Lb = A.uid('gb'); Le = A.uid('ge')
        A('s_cmp_ge_u32 s%d, s%d' % (sKi, sNk))
        A('s_cbranch_scc1 %s' % La)
        fill = [[x] for x in self.reads(0, 0)] + self.dma_list()
        self.interleave(self.mfmas(1), fill)
        for x in self.dma_advance(): A(x)
        self.shift_fix()
        A('s_branch %s' % Le)
        A.label(La)
        A('s_add_u32 s%d, s%d, 1' % (sT4, sT5))
        A('s_cmp_ge_u32 s%d, s%d' % (sT4, sNk))
        A('s_cbranch_scc1 %s' % Lb)
        self.interleave(self.mfmas(1), [[x] for x in self.reads(0, 0)])
        A('s_branch %s' % Le)
        A.label(Lb)
        self.interleave(self.mfmas(1), [])
        A.label(Le)
        A('s_add_u32 s%d, s%d, 1' % (sT5, sT5))
        A('s_cmp_lt_u32 s%d, s%d' % (sT5, sNk))
        A('s_cbranch_scc1 %s' % Lloop)
        A.nop(10)
        A('s_barrier')

    def gelu_consts(self):
        import struct, math
        f = lambda x: '0x%08x' % struct.unpack('<I', struct.pack('<f', x))[0]
        c1 = -2.0 * math.sqrt(2.0 / math.pi) * math.log2(math.e)
        self.A('s_mov_b32 s%d, %s' % (sK1, f(c1)))
        self.A('s_mov_b32 s%d, %s' % (sK2, f(c1 * 0.044715)))
    def gelu4(self, r0, t):
        A = self.A
        for i in range(4): A('v_mul_f32 v%d, v%d, v%d' % (t + i, r0 + i, r0 + i))
        for i in range(4): A('v_fma_f32 v%d, v%d, s%d, v%d' % (t + i, t + i, sK2, self.vK1))
        for i in range(4): A('v_mul_f32 v%d, v%d, v%d' % (t + i, t + i, r0 + i))
        for i in range(4): A('v_exp_f32 v%d, v%d' % (t + i, t + i))
        for i in range(4): A('v_add_f32 v%d, 1.0, v%d' % (t + i, t + i))
        for i in range(4): A('v_rcp_f32 v%d, v%d' % (t + i, t + i))
        A('s_nop 0')
        for i in range(4): A('v_mul_f32 v%d, v%d, v%d' % (r0 + i, r0 + i, t + i))

    def epi_bf16(self, gelu=False, resid=None, cfl='sc1'):
        A = self.A; TM = self.TM
        RS = 144
        vSw, vSr, vCo = self.vT, self.vT + 1, self.vT + 2
        t0 = self.vT + 3
        D = 32
        self.vK1 = self.vT + 4
        if gelu:
            self.gelu_consts()
            A('v_mov_b32 v%d, s%d' % (self.vK1, sK1))
        A('s_mul_i32 s%d, s%d, %d' % (sT0, sW, TM * 16 * RS))
        A('v_mul_u32_u24 v%d, %d, v%d' % (vSw, RS, self.vC))
        A('v_lshl_add_u32 v%d, v%d, 3, v%d' % (vSw, self.vG, vSw))
        A('v_add_u32 v%d, s%d, v%d' % (vSw, sT0, vSw))
        A('v_lshrrev_b32 v%d, 3, v%d' % (t0, self.vLane))
        A('v_mul_u32_u24 v%d, %d, v%d' % (vSr, RS, t0))
        A('v_and_b32 v%d, 7, v%d' % (vCo, self.vLane))
        A('v_lshlrev_b32 v%d, 4, v%d' % (vCo, vCo))
        A('v_add_u32 v%d, v%d, v%d' % (vSr, vSr, vCo))
        A('v_add_u32 v%d, s%d, v%d' % (vSr, sT0, vSr))
        A('s_mul_i32 s%d, s%d, %d' % (sT1, sWm, self.BM // 2))
        A('v_add_u32 v%d, s%d, v%d' % (t0, sT1, t0))
        A('v_mul_lo_u32 v%d, v%d, s%d' % (t0, t0, sLdc))
        A('v_add_u32 v%d, v%d, v%d' % (vCo, vCo, t0))
        A('s_lshl_b32 s%d, s%d, 7' % (sT1, sWn))
        A('v_add_u32 v%d, s%d, v%d' % (vCo, sT1, vCo))
        for tm in range(TM):
            for tn in range(4):
                ac = self.acc(tm, tn)
                r0 = D + 8 * (tn & 1)
                for i in range(4): A('v_accvgpr_read_b32 v%d, a%d' % (r0 + i, ac + i))
                if gelu: self.gelu4(r0, r0 + 4)
                A('v_cvt_pk_bf16_f32 v%d, v%d, v%d' % (r0, r0, r0 + 1))
                A('v_cvt_pk_bf16_f32 v%d, v%d, v%d' % (r0 + 1, r0 + 2, r0 + 3))
                A('ds_write_b64 v%d, v[%d:%d] offset:%d' % (vSw, r0, r0 + 1, tm * 16 * RS + tn * 32))
        A('s_waitcnt lgkmcnt(0)')
        A('s_lshl_b32 s%d, s%d, 3' % (sT2, sLdc))
        nrd = TM * 2
        if resid:
            pass
        R = 48
        for b0 in range(0, nrd, 4):
            for b in range(b0, b0 + 4):
                A('ds_read_b128 v[%d:%d], v%d offset:%d' % (R + 4 * (b - b0), R + 4 * (b - b0) + 3, vSr, b * 8 * RS))
            if resid:
                for b in range(b0, b0 + 4):
                    A('s_mul_i32 s%d, s%d, %d' % (sT3, sT2, b))
                    A('s_add_u32 s%d, s%d, s%d' % (sT3, sT3, sRoff))
                    A('buffer_load_dwordx4 v[%d:%d], v%d, %s, s%d offen sc1' % (R + 16 + 4 * (b - b0), R + 16 + 4 * (b - b0) + 3, vCo, srd(SRD_R), sT3))
                A('s_waitcnt vmcnt(0) lgkmcnt(0)')
                for b in range(b0, b0 + 4):
                    x = R + 4 * (b - b0); y = x + 16
                    for i in range(4):
                        A('v_lshlrev_b32 v%d, 16, v%d' % (D, x + i))
                        A('v_and_b32 v%d, 0xffff0000, v%d' % (D + 1, x + i))
                        A('v_lshlrev_b32 v%d, 16, v%d' % (D + 2, y + i))
                        A('v_and_b32 v%d, 0xffff0000, v%d' % (D + 3, y + i))
                        A('v_add_f32 v%d, v%d, v%d' % (D, D, D + 2))
                        A('v_add_f32 v%d, v%d, v%d' % (D + 1, D + 1, D + 3))
                        A('v_cvt_pk_bf16_f32 v%d, v%d, v%d' % (x + i, D, D + 1))
            else:
                A('s_waitcnt lgkmcnt(0)')
            for b in range(b0, b0 + 4):
                A('s_mul_i32 s%d, s%d, %d' % (sT3, sT2, b))
                A('s_add_u32 s%d, s%d, s%d' % (sT3, sT3, sCoff))
                A('buffer_store_dwordx4 v[%d:%d], v%d, %s, s%d offen %s' % (R + 4 * (b - b0), R + 4 * (b - b0) + 3, vCo, srd(SRD_C), sT3, cfl))
            A('s_nop 1')

    def epi_f32(self, cfl='sc1'):
        A = self.A; TM = self.TM
        vCo, t0 = self.vT, self.vT + 1
        A('s_mul_i32 s%d, s%d, %d' % (sT1, sWm, self.BM // 2))
        A('v_add_u32 v%d, s%d, v%d' % (t0, sT1, self.vC))
        A('v_mul_lo_u32 v%d, v%d, s%d' % (vCo, t0, sLdc))
        A('v_lshl_add_u32 v%d, v%d, 4, v%d' % (vCo, self.vG, vCo))
        A('s_lshl_b32 s%d, s%d, 8' % (sT1, sWn))
        A('v_add_u32 v%d, s%d, v%d' % (vCo, sT1, vCo))
        A('s_lshl_b32 s%d, s%d, 4' % (sT2, sLdc))
        for tm in range(TM):
            A('s_mul_i32 s%d, s%d, %d' % (sT3, sT2, tm))
            A('s_add_u32 s%d, s%d, s%d' % (sT3, sT3, sCoff))
            for tn in range(4):
                ac = self.acc(tm, tn)
                A('buffer_store_dwordx4 a[%d:%d], v%d, %s, s%d offen offset:%d %s' % (ac, ac + 3, vCo, srd(SRD_C), sT3, tn * 64, cfl))
```

```python
MB = 1 << 20
KB = 1 << 10
WS_SIZE = 256 * MB
XLN  = 0 * MB
QX   = 4 * MB
KX   = 20 * MB
VX   = 36 * MB
KM   = 52 * MB
VMF  = 56 * MB
OX   = 60 * MB
CH   = 76 * MB
MEMB = CH
QKB  = CH + 128 * KB
OB   = CH + 1 * MB
PART = CH + 2 * MB
CNT  = 80 * MB
FLG_SEG = CNT + 128 * KB
A_X, A_MEM0, A_WQ, A_WK, A_WV, A_WO, A_SEG, B_X, B_W1, B_W2, B_W3, B_W4, D_OUT, D_DBG, D_WS = [8 * i for i in range(15)]

HB   = 84 * MB
YB   = 88 * MB
ZB   = 92 * MB
GB0  = 96 * MB
GB   = GB0 + 2 * 2048
X1B  = 102 * MB
Z2B  = 106 * MB
UB   = 110 * MB
PO   = 128 * MB
P4   = 160 * MB
```

```python
from asmlib import *
from layout import *
from gemm import *
import struct, math
def fhex(x): return '0x%08x' % struct.unpack('<I', struct.pack('<f', x))[0]

def wave_allreduce(A, op, x, t):
    for rot in (8, 4, 2, 1):
        A('s_nop 1')
        A('v_%s_dpp v%d, v%d, v%d row_ror:%d row_mask:0xf bank_mask:0xf' % (op, x, x, x, rot))
    A('v_mov_b32 v%d, v%d' % (t, x))
    A('s_nop 1')
    A('v_permlane16_swap_b32 v%d, v%d' % (x, t))
    A('s_nop 0')
    A('v_%s v%d, v%d, v%d' % (op, x, x, t))
    A('v_mov_b32 v%d, v%d' % (t, x))
    A('s_nop 1')
    A('v_permlane32_swap_b32 v%d, v%d' % (x, t))
    A('s_nop 0')
    A('v_%s v%d, v%d, v%d' % (op, x, x, t))

def unpack8(A, src, dst):
    for i in range(4):
        A('v_lshlrev_b32 v%d, 16, v%d' % (dst + 2 * i, src + i))
        A('v_and_b32 v%d, 0xffff0000, v%d' % (dst + 2 * i + 1, src + i))
def pack8(A, src, dst):
    for i in range(4):
        A('v_cvt_pk_bf16_f32 v%d, v%d, v%d' % (dst + i, src + 2 * i, src + 2 * i + 1))
def round_bf16(A, regs, tmp):
    for i in range(0, len(regs), 2):
        A('v_cvt_pk_bf16_f32 v%d, v%d, v%d' % (tmp, regs[i], regs[i + 1]))
        A('v_lshlrev_b32 v%d, 16, v%d' % (regs[i], tmp))
        A('v_and_b32 v%d, 0xffff0000, v%d' % (regs[i + 1], tmp))

def layernorm16(A, X, t):
    m, u, w = t, t + 1, t + 2
    A('v_add_f32 v%d, v%d, v%d' % (m, X, X + 1))
    for i in range(2, 16): A('v_add_f32 v%d, v%d, v%d' % (m, m, X + i))
    wave_allreduce(A, 'add_f32', m, u)
    A('v_mul_f32 v%d, %s, v%d' % (m, fhex(1.0 / 1024), m))
    for i in range(16): A('v_sub_f32 v%d, v%d, v%d' % (X + i, X + i, m))
    A('v_mul_f32 v%d, v%d, v%d' % (w, X, X))
    for i in range(1, 16): A('v_fmac_f32 v%d, v%d, v%d' % (w, X + i, X + i))
    wave_allreduce(A, 'add_f32', w, u)
    A('v_mov_b32 v%d, %s' % (u, fhex(1e-5)))
    A('v_fmac_f32 v%d, %s, v%d' % (u, fhex(1.0 / 1024), w))
    A('v_rsq_f32 v%d, v%d' % (u, u))
    A('s_nop 0')
    for i in range(16): A('v_mul_f32 v%d, v%d, v%d' % (X + i, X + i, u))

def lane_setup(A):
    A('v_and_b32 v1, 63, v0')
    A('v_lshrrev_b32 v2, 6, v0')
    A('s_nop 0')
    A('v_readfirstlane_b32 s%d, v2' % sW)
    A('v_lshlrev_b32 v3, 4, v1')
    A('v_lshlrev_b32 v4, 5, v1')
    A('s_nop 1')

def load_row_bf16(A, dst, srdn, soff, fl):
    A('buffer_load_dwordx4 v[%d:%d], v3, %s, s%d offen %s' % (dst, dst + 3, srd(srdn), soff, fl))
    A('buffer_load_dwordx4 v[%d:%d], v3, %s, s%d offen offset:1024 %s' % (dst + 4, dst + 7, srd(srdn), soff, fl))
def store_row_bf16(A, src, srdn, soff, fl):
    A('buffer_store_dwordx4 v[%d:%d], v3, %s, s%d offen %s' % (src, src + 3, srd(srdn), soff, fl))
    A('buffer_store_dwordx4 v[%d:%d], v3, %s, s%d offen offset:1024 %s' % (src + 4, src + 7, srd(srdn), soff, fl))
def load_row_f32(A, dst, srdn, soff, fl):
    A('buffer_load_dwordx4 v[%d:%d], v4, %s, s%d offen %s' % (dst, dst + 3, srd(srdn), soff, fl))
    A('buffer_load_dwordx4 v[%d:%d], v4, %s, s%d offen offset:16 %s' % (dst + 4, dst + 7, srd(srdn), soff, fl))
    A('buffer_load_dwordx4 v[%d:%d], v4, %s, s%d offen offset:2048 %s' % (dst + 8, dst + 11, srd(srdn), soff, fl))
    A('buffer_load_dwordx4 v[%d:%d], v4, %s, s%d offen offset:2064 %s' % (dst + 12, dst + 15, srd(srdn), soff, fl))

sRow = 55
def unit_ln1(A, rows_per_wave=2):
    lane_setup(A)
    A('s_mul_i32 s%d, s%d, %d' % (sT0, sW, rows_per_wave))
    A('s_add_u32 s%d, s%d, s%d' % (sT0, sT0, sRow))
    A('s_lshl_b32 s%d, s%d, 11' % (sT1, sT0))
    for r_ in range(rows_per_wave):
        A('s_add_u32 s%d, s%d, %d' % (sT2, sT1, 2048 * r_))
        load_row_bf16(A, 16 + 8 * r_, SRD_R, sT2, '')
    A('s_waitcnt vmcnt(0)')
    for r_ in range(rows_per_wave):
        X = 64
        unpack8(A, 16 + 8 * r_, X); unpack8(A, 20 + 8 * r_, X + 8)
        layernorm16(A, X, 8)
        pack8(A, X, 48); pack8(A, X + 8, 52)
        A('s_add_u32 s%d, s%d, %d' % (sT2, sT1, XLN + 2048 * r_))
        store_row_bf16(A, 48, SRD_WS, sT2, 'sc1')
        A('s_nop 1')

def sum_partials(A, P, X, tmp):
    for i in range(16):
        A('v_add_f32 v%d, v%d, v%d' % (X + i, P + i, P + 16 + i))
        A('v_add_f32 v%d, v%d, v%d' % (X + i, X + i, P + 32 + i))
        A('v_add_f32 v%d, v%d, v%d' % (X + i, X + i, P + 48 + i))
    round_bf16(A, list(range(X, X + 16)), tmp)

def unit_r1(A, rpw=2):
    lane_setup(A)
    A('s_mul_i32 s%d, s%d, %d' % (sT0, sW, rpw))
    A('s_add_u32 s%d, s%d, s%d' % (sT0, sT0, sRow))
    A('s_lshl_b32 s%d, s%d, 11' % (sT1, sT0))
    A('s_lshl_b32 s%d, s%d, 12' % (sT3, sT0))
    for r_ in range(rpw):
        B = 16 + 80 * r_
        for p in range(4):
            A('s_add_u32 s%d, s%d, %d' % (sT2, sT3, PO + p * 8 * MB + 4096 * r_))
            load_row_f32(A, B + 16 * p, SRD_WS, sT2, 'sc1')
        A('s_add_u32 s%d, s%d, %d' % (sT2, sT1, 2048 * r_))
        load_row_bf16(A, B + 64, SRD_R, sT2, '')
    for r_ in range(rpw):
        B = 16 + 80 * r_
        A('s_waitcnt vmcnt(%d)' % (18 * (rpw - 1 - r_) + 6 * r_))
        X, Y = 192, 208
        sum_partials(A, B, X, 8)
        unpack8(A, B + 64, Y); unpack8(A, B + 68, Y + 8)
        for i in range(16): A('v_add_f32 v%d, v%d, v%d' % (X + i, X + i, Y + i))
        pack8(A, X, 224); pack8(A, X + 8, 228)
        A('s_add_u32 s%d, s%d, %d' % (sT2, sT1, HB + 2048 * r_))
        store_row_bf16(A, 224, SRD_WS, sT2, 'sc1')
        unpack8(A, 224, X); unpack8(A, 228, X + 8)
        layernorm16(A, X, 8)
        pack8(A, X, 232); pack8(A, X + 8, 236)
        A('s_add_u32 s%d, s%d, %d' % (sT2, sT1, YB + 2048 * r_))
        store_row_bf16(A, 232, SRD_WS, sT2, 'sc1')
        unpack8(A, 232, X); unpack8(A, 236, X + 8)
        layernorm16(A, X, 8)
        pack8(A, X, 240); pack8(A, X + 8, 244)
        A('s_add_u32 s%d, s%d, %d' % (sT2, sT1, ZB + 2048 * r_))
        store_row_bf16(A, 240, SRD_WS, sT2, 'sc1')
        A('s_nop 1')

def unit_r2(A, rpw=2):
    lane_setup(A)
    A('s_mul_i32 s%d, s%d, %d' % (sT0, sW, rpw))
    A('s_add_u32 s%d, s%d, s%d' % (sT0, sT0, sRow))
    A('s_lshl_b32 s%d, s%d, 11' % (sT1, sT0))
    for r_ in range(rpw):
        A('s_add_u32 s%d, s%d, %d' % (sT2, sT1, X1B + 2048 * r_))
        load_row_bf16(A, 16 + 8 * r_, SRD_WS, sT2, 'sc1')
    A('s_waitcnt vmcnt(0)')
    for r_ in range(rpw):
        X = 64
        unpack8(A, 16 + 8 * r_, X); unpack8(A, 20 + 8 * r_, X + 8)
        layernorm16(A, X, 8)
        pack8(A, X, 48 + 8 * r_); pack8(A, X + 8, 52 + 8 * r_)
        A('s_add_u32 s%d, s%d, %d' % (sT2, sT1, Z2B + 2048 * r_))
        store_row_bf16(A, 48 + 8 * r_, SRD_WS, sT2, 'sc1')

def unit_r3(A, rpw=2):
    lane_setup(A)
    A('s_mul_i32 s%d, s%d, %d' % (sT0, sW, rpw))
    A('s_add_u32 s%d, s%d, s%d' % (sT0, sT0, sRow))
    A('s_lshl_b32 s%d, s%d, 11' % (sT1, sT0))
    A('s_lshl_b32 s%d, s%d, 12' % (sT3, sT0))
    for r_ in range(rpw):
        B = 16 + 80 * r_
        for p in range(4):
            A('s_add_u32 s%d, s%d, %d' % (sT2, sT3, P4 + p * 8 * MB + 4096 * r_))
            load_row_f32(A, B + 16 * p, SRD_WS, sT2, 'sc1')
        A('s_add_u32 s%d, s%d, %d' % (sT2, sT1, X1B + 2048 * r_))
        load_row_bf16(A, B + 64, SRD_WS, sT2, 'sc1')
        A('s_add_u32 s%d, s%d, %d' % (sT2, sT1, HB + 2048 * r_))
        load_row_bf16(A, B + 72, SRD_WS, sT2, 'sc1')
    for r_ in range(rpw):
        B = 16 + 80 * r_
        A('s_waitcnt vmcnt(%d)' % (20 * (rpw - 1 - r_) + 2 * r_))
        X, Y = 192, 208
        sum_partials(A, B, X, 8)
        unpack8(A, B + 64, Y); unpack8(A, B + 68, Y + 8)
        for i in range(16): A('v_add_f32 v%d, v%d, v%d' % (X + i, X + i, Y + i))
        round_bf16(A, list(range(X, X + 16)), 8)
        unpack8(A, B + 72, Y); unpack8(A, B + 76, Y + 8)
        for i in range(16): A('v_add_f32 v%d, v%d, v%d' % (X + i, X + i, Y + i))
        pack8(A, X, 224 + 8 * r_); pack8(A, X + 8, 228 + 8 * r_)
        A('s_add_u32 s%d, s%d, %d' % (sT2, sT1, 2048 * r_))
        store_row_bf16(A, 224 + 8 * r_, SRD_C, sT2, '')

sSeg, sHead = 56, 57
def unit_att(A):
    WSTR = 27648
    L, G, N = 1, 2, 3
    t0, t1, t2, t3 = 4, 5, 6, 7
    A('v_and_b32 v%d, 63, v0' % L)
    A('v_lshrrev_b32 v%d, 6, v0' % t0)
    A('s_nop 0')
    A('v_readfirstlane_b32 s%d, v%d' % (sW, t0))
    A('v_lshrrev_b32 v%d, 4, v%d' % (G, L))
    A('v_and_b32 v%d, 15, v%d' % (N, L))
    A('s_nop 1')
    A('s_add_u32 s%d, s%d, s%d' % (sT5, sHead, sW))
    A('s_mul_i32 s%d, s%d, %d' % (sT4, sW, WSTR))
    A('s_lshl_b32 s%d, s%d, 18' % (sT0, sSeg))
    A('s_lshl_b32 s%d, s%d, 8' % (sT1, sT5))
    A('s_add_u32 s%d, s%d, s%d' % (sT0, sT0, sT1))
    vDq, vDv = 8, 16
    for i in range(4):
        A('v_add_u32 v%d, %d, v%d' % (t0, 4 * i, G))
        A('v_xor_b32 v%d, v%d, v%d' % (t1, t0, N))
        A('v_lshlrev_b32 v%d, 4, v%d' % (t1, t1))
        A('v_lshl_add_u32 v%d, v%d, 13, v%d' % (t1, t0, t1))
        A('v_subrev_u32 v%d, %d, v%d' % (vDq + i, 1024 * i, t1))
        A('v_and_b32 v%d, 7, v%d' % (t2, t0))
        A('v_lshrrev_b32 v%d, 1, v%d' % (t3, N))
        A('v_xor_b32 v%d, v%d, v%d' % (t2, t2, t3))
        A('v_lshlrev_b32 v%d, 5, v%d' % (t2, t2))
        A('v_and_b32 v%d, 1, v%d' % (t3, N))
        A('v_lshl_add_u32 v%d, v%d, 4, v%d' % (t2, t3, t2))
        A('v_lshl_add_u32 v%d, v%d, 13, v%d' % (t2, t0, t2))
        A('v_subrev_u32 v%d, %d, v%d' % (vDv + i, 1024 * i, t2))
    def dma_tile(gbase, ldsoff, vD):
        for hf in range(2):
            A('s_add_u32 m0, s%d, %d' % (sT4, ldsoff + hf * 4096))
            A('s_add_u32 s%d, s%d, %d' % (sT2, sT0, gbase + hf * 16 * 8192))
            for i in range(4):
                A('buffer_load_dwordx4 v%d, %s, s%d offen offset:%d sc1 lds' % (vD + i, srd(SRD_WS), sT2, 1024 * i))
    dma_tile(QX, 0, vDq); dma_tile(KX, 8192, vDq); dma_tile(VX, 16384, vDv)
    A('s_lshl_b32 s%d, s%d, 16' % (sT2, sSeg))
    A('s_add_u32 s%d, s%d, s%d' % (sT2, sT2, sT1))
    A('s_add_u32 s%d, s%d, %d' % (sT2, sT2, KM))
    A('s_add_u32 m0, s%d, %d' % (sT4, 24576))
    A('s_nop 0')
    for i in range(2):
        A('buffer_load_dwordx4 v%d, %s, s%d offen offset:%d sc1 lds' % (vDq + i, srd(SRD_WS), sT2, 1024 * i))
    vVM = 96
    A('s_lshl_b32 s%d, s%d, 5' % (sT2, sSeg))
    A('s_add_u32 s%d, s%d, s%d' % (sT2, sT2, sT5))
    A('s_lshl_b32 s%d, s%d, 11' % (sT2, sT2))
    A('s_add_u32 s%d, s%d, %d' % (sT2, sT2, VMF))
    A('v_and_b32 v%d, 31, v%d' % (t0, L))
    A('v_lshlrev_b32 v%d, 3, v%d' % (t0, t0))
    for te in range(8):
        A('buffer_load_dwordx2 v[%d:%d], v%d, %s, s%d offen offset:%d sc1' % (vVM + 2 * te, vVM + 2 * te + 1, t0, srd(SRD_WS), sT2, 256 * te))
    vFr = 20
    A('v_xor_b32 v%d, v%d, v%d' % (t0, G, N))
    A('v_lshlrev_b32 v%d, 4, v%d' % (t0, t0))
    A('v_lshl_add_u32 v%d, v%d, 8, v%d' % (t0, N, t0))
    A('v_add_u32 v%d, s%d, v%d' % (vFr, sT4, t0))
    for k in range(1, 4): A('v_xor_b32 v%d, %d, v%d' % (vFr + k, k * 64, vFr))
    vKmA = 24
    A('v_and_b32 v%d, 7, v%d' % (t1, N))
    A('v_xor_b32 v%d, v%d, v%d' % (t0, G, t1))
    A('v_lshlrev_b32 v%d, 4, v%d' % (t0, t0))
    A('v_lshl_add_u32 v%d, v%d, 8, v%d' % (t0, t1, t0))
    A('v_add_u32 v%d, s%d, v%d' % (vKmA, sT4, t0))
    A('v_add_u32 v%d, 24576, v%d' % (vKmA, vKmA))
    for k in range(1, 4): A('v_xor_b32 v%d, %d, v%d' % (vKmA + k, k * 64, vKmA))
    vVt = 28
    A('v_lshrrev_b32 v%d, 2, v%d' % (t0, N))
    A('v_lshl_add_u32 v%d, v%d, 2, v%d' % (t0, G, t0))
    A('v_and_b32 v%d, 7, v%d' % (t1, t0))
    A('v_lshlrev_b32 v%d, 5, v%d' % (t1, t1))
    A('v_lshl_add_u32 v%d, v%d, 8, v%d' % (t1, t0, t1))
    A('v_and_b32 v%d, 3, v%d' % (t2, N))
    A('v_lshl_add_u32 v%d, v%d, 3, v%d' % (t1, t2, t1))
    A('v_add_u32 v%d, s%d, v%d' % (vVt, sT4, t1))
    A('v_add_u32 v%d, 16384, v%d' % (vVt, vVt))
    A('s_waitcnt vmcnt(0)')
    vQf = 32
    vKf = 64
    vMf = 112
    for qt in range(2):
        for k in range(4):
            A('ds_read_b128 v[%d:%d], v%d offset:%d' % (vQf + (qt * 4 + k) * 4, vQf + (qt * 4 + k) * 4 + 3, vFr + k, qt * 4096))
    for tt in range(2):
        for k in range(4):
            A('ds_read_b128 v[%d:%d], v%d offset:%d' % (vKf + (tt * 4 + k) * 4, vKf + (tt * 4 + k) * 4 + 3, vFr + k, 8192 + tt * 4096))
        A('s_waitcnt lgkmcnt(8)')
    for k in range(4):
        A('ds_read_b128 v[%d:%d], v%d' % (vMf + 4 * k, vMf + 4 * k + 3, vKmA + k))
    A('s_waitcnt lgkmcnt(0)')
    S = {(0, 'm'): 128, (0, 0): 132, (1, 'm'): 136, (1, 0): 140, (1, 1): 144}
    for k in range(4):
        for (qt, kt), R in S.items():
            a_ = vMf + 4 * k if kt == 'm' else vKf + (kt * 4 + k) * 4
            b_ = vQf + (qt * 4 + k) * 4
            c_ = '0' if k == 0 else 'v[%d:%d]' % (R, R + 3)
            A('v_mfma_f32_16x16x32_bf16 v[%d:%d], v[%d:%d], v[%d:%d], %s' % (R, R + 3, a_, a_ + 3, b_, b_ + 3, c_))
    vVf = 148
    for te in range(8):
        A('v_xor_b32 v%d, %d, v%d' % (t0 + (te & 1), te * 32, vVt))
        for tt in range(2):
            A('ds_read_b64_tr_b16 v[%d:%d], v%d offset:%d' % (vVf + (te * 2 + tt) * 2, vVf + (te * 2 + tt) * 2 + 1, t0 + (te & 1), tt * 4096))
    A('v_lshlrev_b32 v%d, 2, v%d' % (t2, G))
    NEG = 30
    A('v_mov_b32 v%d, 0xff7fffff' % NEG)
    for i in range(4):
        A('v_add_u32 v%d, %d, v%d' % (t3, i, t2))
        A('v_cmp_gt_u32 vcc, v%d, v%d' % (t3, N))
        A('s_nop 1')
        A('v_cndmask_b32 v%d, v%d, v%d, vcc' % (S[(0, 0)] + i, S[(0, 0)] + i, NEG))
        A('v_cndmask_b32 v%d, v%d, v%d, vcc' % (S[(1, 1)] + i, S[(1, 1)] + i, NEG))
    A('v_cmp_le_u32 vcc, 2, v%d' % G)
    A('s_nop 1')
    for qt in range(2):
        for i in range(4):
            A('v_cndmask_b32 v%d, v%d, v%d, vcc' % (S[(qt, 'm')] + i, S[(qt, 'm')] + i, NEG))
    A('s_mov_b32 s%d, %s' % (sT3, fhex((128 ** -0.5) * math.log2(math.e))))
    vP = 180
    vInv = [190, 191]
    Ppk = {}
    pi = vP
    for qt in range(2):
        tiles = [S[(qt, 'm')], S[(qt, 0)]] + ([S[(1, 1)]] if qt else [])
        regs = [R + i for R in tiles for i in range(4)]
        m, t = 192, 193
        A('v_max3_f32 v%d, v%d, v%d, v%d' % (m, regs[0], regs[1], regs[2]))
        rs = regs[3:]
        while len(rs) >= 2:
            A('v_max3_f32 v%d, v%d, v%d, v%d' % (m, m, rs[0], rs[1])); rs = rs[2:]
        if rs: A('v_max_f32 v%d, v%d, v%d' % (m, m, rs[0]))
        for sw in ('v_permlane32_swap_b32', 'v_permlane16_swap_b32'):
            A('v_mov_b32 v%d, v%d' % (t, m)); A('s_nop 1')
            A('%s v%d, v%d' % (sw, m, t)); A('s_nop 0')
            A('v_max_f32 v%d, v%d, v%d' % (m, m, t))
        A('v_mul_f32 v%d, s%d, v%d' % (m, sT3, m))
        for x in regs: A('v_fma_f32 v%d, v%d, s%d, -v%d' % (x, x, sT3, m))
        for x in regs: A('v_exp_f32 v%d, v%d' % (x, x))
        A('s_nop 0')
        for ti, R in enumerate(tiles):
            key = 'm' if ti == 0 else ti - 1
            Ppk[(qt, key)] = pi
            A('v_cvt_pk_bf16_f32 v%d, v%d, v%d' % (pi, R, R + 1))
            A('v_cvt_pk_bf16_f32 v%d, v%d, v%d' % (pi + 1, R + 2, R + 3))
            pi += 2
        A('v_add_f32 v%d, v%d, v%d' % (m, regs[0], regs[1]))
        for x in regs[2:]: A('v_add_f32 v%d, v%d, v%d' % (m, m, x))
        for sw in ('v_permlane32_swap_b32', 'v_permlane16_swap_b32'):
            A('v_mov_b32 v%d, v%d' % (t, m)); A('s_nop 1')
            A('%s v%d, v%d' % (sw, m, t)); A('s_nop 0')
            A('v_add_f32 v%d, v%d, v%d' % (m, m, t))
        A('v_rcp_f32 v%d, v%d' % (vInv[qt], m))
    A('s_waitcnt lgkmcnt(0)')
    vO = 32
    for qt in range(2):
        for te in range(8):
            R = vO + (qt * 8 + te) * 4
            A('v_mfma_f32_16x16x16_bf16 v[%d:%d], v[%d:%d], v[%d:%d], 0' % (R, R + 3, vVM + 2 * te, vVM + 2 * te + 1, Ppk[(qt, 'm')], Ppk[(qt, 'm')] + 1))
    for qt in range(2):
        for tt in range(2 if qt else 1):
            for te in range(8):
                R = vO + (qt * 8 + te) * 4
                a_ = vVf + (te * 2 + tt) * 2
                A('v_mfma_f32_16x16x16_bf16 v[%d:%d], v[%d:%d], v[%d:%d], v[%d:%d]' % (R, R + 3, a_, a_ + 1, Ppk[(qt, tt)], Ppk[(qt, tt)] + 1, R, R + 3))
    A.nop(10)
    RS = 272
    vSw, vSr, vGo = 4, 5, 6
    A('v_mul_u32_u24 v%d, %d, v%d' % (vSw, RS, N))
    A('v_lshl_add_u32 v%d, v%d, 3, v%d' % (vSw, G, vSw))
    A('v_add_u32 v%d, s%d, v%d' % (vSw, sT4, vSw))
    for qt in range(2):
        for te in range(8):
            R = vO + (qt * 8 + te) * 4
            for i in range(4): A('v_mul_f32 v%d, v%d, v%d' % (R + i, R + i, vInv[qt]))
            A('v_cvt_pk_bf16_f32 v%d, v%d, v%d' % (R, R, R + 1))
            A('v_cvt_pk_bf16_f32 v%d, v%d, v%d' % (R + 1, R + 2, R + 3))
            A('ds_write_b64 v%d, v[%d:%d] offset:%d' % (vSw, R, R + 1, qt * 16 * RS + te * 32))
    A('v_mul_u32_u24 v%d, %d, v%d' % (vSr, RS, G))
    A('v_lshl_add_u32 v%d, v%d, 4, v%d' % (vSr, N, vSr))
    A('v_add_u32 v%d, s%d, v%d' % (vSr, sT4, vSr))
    A('v_lshlrev_b32 v%d, 13, v%d' % (vGo, G))
    A('v_lshl_add_u32 v%d, v%d, 4, v%d' % (vGo, N, vGo))
    A('s_waitcnt lgkmcnt(0)')
    for b in range(8):
        A('ds_read_b128 v[%d:%d], v%d offset:%d' % (96 + 4 * b, 96 + 4 * b + 3, vSr, b * 4 * RS))
    A('s_waitcnt lgkmcnt(0)')
    for b in range(8):
        A('s_add_u32 s%d, s%d, %d' % (sT2, sT0, OX + b * 4 * 8192))
        A('buffer_store_dwordx4 v[%d:%d], v%d, %s, s%d offen sc1' % (96 + 4 * b, 96 + 4 * b + 3, vGo, srd(SRD_WS), sT2))
```

```python
import sys
from asmlib import *
from layout import *
import chain
from gemm import *
from units import *

NAME = 'sequential_preLN__memory_aug_recurrent_mem_tr__mixer_s_mlp__prompt'

def common_entry(A, n):
    A('s_cmp_ge_u32 s2, %d' % n)
    A('s_cbranch_scc1 L_exit_%s' % A.cur)
    A('s_load_dwordx2 s[4:5], s[0:1], %d' % D_WS)
    A('s_load_dwordx2 s[6:7], s[0:1], %d' % D_DBG)
    A('s_waitcnt lgkmcnt(0)')
    A('s_mov_b32 s8, s4'); A('s_mov_b32 s9, s5'); A('s_mov_b32 s10, %d' % WS_SIZE); A('s_mov_b32 s11, 0x00020000')
def mk_srd(A, n, karg, size):
    A('s_load_dwordx2 s[%d:%d], s[0:1], %d' % (n, n + 1, karg))
    A('s_mov_b32 s%d, %d' % (n + 2, size))
    A('s_mov_b32 s%d, 0x00020000' % (n + 3))
    A('s_waitcnt lgkmcnt(0)')
def ws_srd(A, n):
    for i in range(4): A('s_mov_b32 s%d, s%d' % (n + i, 8 + i))
def fin(A):
    A.label('L_exit_%s' % A.cur)
    A('s_endpgm')

def k_begin(A, name):
    A.cur = name
    kernel_header(A, name)

def gemm_params(A, lda, ldb, ldc, nk, shift=0):
    A('s_mov_b32 s%d, %d' % (sLda, lda)); A('s_mov_b32 s%d, %d' % (sLdb, ldb)); A('s_mov_b32 s%d, %d' % (sLdc, ldc))
    A('s_mov_b32 s%d, %d' % (sNk, nk)); A('s_mov_b32 s%d, %d' % (sShift, shift))

def gen(BM=256):
    A = Asm()
    G = Gemm(A, BM)
    lds_gemm = 3 * G.STAGE
    nrb = 2048 // BM
    launches = [
        ('prep_kernel', 256, 0), ('qkv_kernel', nrb * 96, lds_gemm), ('chain_kernel', 256, chain.LDS_CHAIN_END), ('att_kernel', 512, 110592),
        ('o_kernel', nrb * 32, lds_gemm), ('r1_kernel', 256, 0), ('w1_kernel', nrb * 8, lds_gemm), ('w2_kernel', nrb * 8, lds_gemm),
        ('r2_kernel', 256, 0), ('w3_kernel', nrb * 28, lds_gemm), ('w4_kernel', nrb * 32, lds_gemm), ('r3_kernel', 256, 0)]
    for n, g, l in launches:
        A.raw('; @launch kernel=%s grid=(%d,1,1) block=(256,1,1) lds=%d' % (n, g, l))
    A.raw('.amdgcn_target "amdgcn-amd-amdhsa--gfx950"')
    A.raw('.text')
    k_begin(A, 'prep_kernel'); common_entry(A, 256)
    mk_srd(A, SRD_R, A_X, 4 * MB)
    A('s_lshl_b32 s%d, s2, 3' % sRow)
    unit_ln1(A)
    A('v_mov_b32 v8, 0'); A('v_mov_b32 v9, 0'); A('v_mov_b32 v10, 0'); A('v_mov_b32 v11, 0')
    A('v_lshlrev_b32 v12, 4, v0')
    L1 = A.uid('z')
    A('s_cmp_ge_u32 s2, 16')
    A('s_cbranch_scc1 %s' % L1)
    A('s_lshl_b32 s%d, s2, 12' % sT0)
    A('s_add_u32 s%d, s%d, %d' % (sT0, sT0, FLG_SEG))
    A('buffer_store_dwordx4 v[8:11], v12, s[8:11], s%d offen' % sT0)
    A.label(L1)
    L2 = A.uid('z')
    A('s_cmp_lg_u32 s2, 16')
    A('s_cbranch_scc1 %s' % L2)
    A('s_mov_b32 s%d, %d' % (sT0, GB0))
    A('buffer_store_dwordx4 v[8:11], v12, s[8:11], s%d offen' % sT0)
    A('s_mov_b32 s%d, %d' % (sT0, GB + 2048 * 2048))
    A('buffer_store_dwordx4 v[8:11], v12, s[8:11], s%d offen' % sT0)
    A.label(L2)
    fin(A)
    k_begin(A, 'qkv_kernel'); common_entry(A, nrb * 96)
    A('s_mul_hi_u32 s%d, s2, %d' % (sT2, (2 ** 32 + 95) // 96))
    A('s_mul_i32 s%d, s%d, 96' % (sT3, sT2))
    A('s_sub_u32 s%d, s2, s%d' % (sT3, sT3))
    A('s_lshr_b32 s%d, s%d, 5' % (sT4, sT3))
    A('s_and_b32 s%d, s%d, 31' % (sT3, sT3))
    A('s_lshl_b32 s%d, s%d, 3' % (sT0, sT4))
    A('s_add_u32 s%d, s%d, %d' % (sT0, sT0, A_WQ))
    A('s_load_dwordx2 s[%d:%d], s[0:1], s%d' % (SRD_B, SRD_B + 1, sT0))
    A('s_mov_b32 s%d, %d' % (SRD_B + 2, 8 * MB)); A('s_mov_b32 s%d, 0x00020000' % (SRD_B + 3))
    ws_srd(A, SRD_A); ws_srd(A, SRD_C)
    gemm_params(A, 2048, 8192, 8192, 16)
    A('s_mul_i32 s%d, s%d, %d' % (sAoff, sT2, BM * 2048))
    A('s_add_u32 s%d, s%d, %d' % (sAoff, sAoff, XLN))
    A('s_lshl_b32 s%d, s%d, 8' % (sBoff, sT3))
    A('s_mul_i32 s%d, s%d, %d' % (sCoff, sT2, BM * 8192))
    A('s_add_u32 s%d, s%d, s%d' % (sCoff, sCoff, sBoff))
    A('s_lshl_b32 s%d, s%d, 24' % (sT0, sT4))
    A('s_add_u32 s%d, s%d, s%d' % (sCoff, sCoff, sT0))
    A('s_add_u32 s%d, s%d, %d' % (sCoff, sCoff, QX))
    A('s_waitcnt lgkmcnt(0)')
    G.setup_lane(); G.prologue(); G.mainloop(); G.epi_bf16()
    fin(A)
    k_begin(A, 'chain_kernel'); common_entry(A, 256)
    A('s_getreg_b32 s16, hwreg(HW_REG_XCC_ID)')
    A('s_and_b32 s16, s16, 15')
    A('v_cmp_eq_u32 vcc, 0, v0')
    A('s_and_saveexec_b64 s[20:21], vcc')
    A('s_cbranch_execz L_nt')
    A('s_lshl_b32 s17, s16, 2')
    A('v_mov_b32 v1, s17'); A('v_mov_b32 v2, 1')
    A('global_atomic_add v3, v1, v2, s[6:7] sc0 sc1')
    A('s_waitcnt vmcnt(0)')
    A('v_mov_b32 v1, 0'); A('ds_write_b32 v1, v3'); A('s_waitcnt lgkmcnt(0)')
    A.label('L_nt')
    A('s_mov_b64 exec, s[20:21]')
    A('s_barrier')
    A('v_mov_b32 v1, 0'); A('ds_read_b32 v3, v1'); A('s_waitcnt lgkmcnt(0)')
    A('v_readfirstlane_b32 s17, v3')
    A('s_barrier')
    A('s_cmp_ge_u32 s16, 2'); A('s_cbranch_scc1 L_exit_chain_kernel')
    A('s_cmp_ge_u32 s17, 32'); A('s_cbranch_scc1 L_exit_chain_kernel')
    chain.gen_chain(A)
    fin(A)
    k_begin(A, 'att_kernel'); common_entry(A, 512)
    A('s_lshr_b32 s%d, s2, 3' % sSeg)
    A('s_and_b32 s%d, s2, 7' % sHead); A('s_lshl_b32 s%d, s%d, 2' % (sHead, sHead))
    unit_att(A)
    fin(A)
    def splitk(name, abuf, lda, kper, bkarg, bsize, ldb, pbuf):
        k_begin(A, name); common_entry(A, nrb * 32)
        mk_srd(A, SRD_B, bkarg, bsize); ws_srd(A, SRD_A); ws_srd(A, SRD_C)
        A('s_and_b32 s%d, s2, 3' % sT4)
        A('s_lshr_b32 s%d, s2, 2' % sT3); A('s_and_b32 s%d, s%d, 7' % (sT3, sT3))
        A('s_lshr_b32 s%d, s2, 5' % sT2)
        gemm_params(A, lda, ldb, 4096, kper // 64)
        A('s_mul_i32 s%d, s%d, %d' % (sAoff, sT2, BM * lda))
        A('s_mul_i32 s%d, s%d, %d' % (sT0, sT4, kper * 2))
        A('s_add_u32 s%d, s%d, s%d' % (sAoff, sAoff, sT0))
        A('s_add_u32 s%d, s%d, %d' % (sAoff, sAoff, abuf))
        A('s_mul_i32 s%d, s%d, %d' % (sBoff, sT4, kper * ldb))
        A('s_lshl_b32 s%d, s%d, 8' % (sT0, sT3))
        A('s_add_u32 s%d, s%d, s%d' % (sBoff, sBoff, sT0))
        A('s_mul_i32 s%d, s%d, %d' % (sCoff, sT2, BM * 4096))
        A('s_lshl_b32 s%d, s%d, 9' % (sT0, sT3))
        A('s_add_u32 s%d, s%d, s%d' % (sCoff, sCoff, sT0))
        A('s_lshl_b32 s%d, s%d, 23' % (sT0, sT4))
        A('s_add_u32 s%d, s%d, s%d' % (sCoff, sCoff, sT0))
        A('s_add_u32 s%d, s%d, %d' % (sCoff, sCoff, pbuf))
        G.setup_lane(); G.prologue(); G.mainloop(); G.epi_f32()
        fin(A)
    splitk('o_kernel', OX, 8192, 1024, A_WO, 8 * MB, 2048, PO)
    def rowk(name, fn, pre=None):
        k_begin(A, name); common_entry(A, 256)
        if pre: pre()
        A('s_lshl_b32 s%d, s2, 3' % sRow)
        fn(A); fin(A)
    rowk('r1_kernel', unit_r1, lambda: mk_srd(A, SRD_R, A_X, 4 * MB))
    def plain(name, nnt, abuf, bkarg, bsize, ldb, cbuf, ldc, gelu, shift=0, resid=None):
        k_begin(A, name); common_entry(A, nrb * nnt)
        mk_srd(A, SRD_B, bkarg, bsize); ws_srd(A, SRD_A); ws_srd(A, SRD_C); ws_srd(A, SRD_R)
        A('s_mul_hi_u32 s%d, s2, %d' % (sT2, (2 ** 32 + nnt - 1) // nnt))
        A('s_mul_i32 s%d, s%d, %d' % (sT3, sT2, nnt))
        A('s_sub_u32 s%d, s2, s%d' % (sT3, sT3))
        gemm_params(A, 2048, ldb, ldc, 16, shift)
        A('s_mul_i32 s%d, s%d, %d' % (sAoff, sT2, BM * 2048))
        A('s_add_u32 s%d, s%d, %d' % (sAoff, sAoff, abuf))
        A('s_lshl_b32 s%d, s%d, 8' % (sBoff, sT3))
        A('s_mul_i32 s%d, s%d, %d' % (sCoff, sT2, BM * ldc))
        A('s_add_u32 s%d, s%d, s%d' % (sCoff, sCoff, sBoff))
        if resid is not None: A('s_add_u32 s%d, s%d, %d' % (sRoff, sCoff, resid))
        A('s_add_u32 s%d, s%d, %d' % (sCoff, sCoff, cbuf))
        G.setup_lane(); G.prologue(); G.mainloop(); G.epi_bf16(gelu=gelu, resid=resid is not None)
        fin(A)
    plain('w1_kernel', 8, ZB, B_W1, 2 * MB, 2048, GB, 2048, True)
    plain('w2_kernel', 8, GB - 2048, B_W2, 2 * MB, 2048, X1B, 2048, False, shift=1, resid=YB)
    rowk('r2_kernel', unit_r2)
    plain('w3_kernel', 28, Z2B, B_W3, 7 * MB, 7168, UB, 7168, True)
    splitk('w4_kernel', UB, 7168, 896, B_W4, 7 * MB, 2048, P4)
    rowk('r3_kernel', unit_r3, lambda: mk_srd(A, SRD_C, D_OUT, 4 * MB))
    A.raw('.section .rodata,"a"')
    for n, g, l in launches:
        A.raw('.p2align 6')
        kernel_desc(A, n)
    return A.text()
if __name__ == '__main__':
    open(sys.argv[1], 'w').write(gen())
```

```python
from asmlib import *
from layout import *
import struct, math

SRD_WS = 8
SRD_A = 12
SRD_B = 16
SRD_C = 20
SRD_R = 24
sAoff, sBoff, sCoff, sLda, sLdb, sLdc, sNk, sKi, sStR, sStW, sRoff, sB64, sMode = range(28, 41)
sW, sWm, sWn = 41, 42, 43
sT0, sT1, sT2, sT3, sT4, sT5 = 44, 45, 46, 47, 48, 49
sA2 = 50
sShift = 51
sK1, sK2 = 52, 53
sMX, sMW = 54, 55
def srd(n): return 's[%d:%d]' % (n, n + 3)
def fhex(x): return '0x%08x' % struct.unpack('<I', struct.pack('<f', x))[0]

class Gemm:
    def __init__(self, A, BM, NS, afl='sc1', bfl='', stamps=False):
        self.A = A; self.BM = BM; self.NS = NS; self.stamps = stamps
        self.TM = BM // 32; self.TN = 4
        self.XSZ = BM * 128
        self.STAGE = self.XSZ + 16384
        self.afl = afl; self.bfl = bfl
        self.vLane, self.vG, self.vC = 1, 2, 3
        self.vXd = 4; self.vWd = 8; self.vXb = 12; self.vWb = 14; self.vXr = 18; self.vWr = 20
        self.vT = 24
        self.set = [32, 32 + 16 + 4 * self.TM]
        self.ACC = 128
    def lds(self): return self.NS * self.STAGE
    def acc(self, tm, tn): return self.ACC + (tm * self.TN + tn) * 4
    def stamp(self, i):
        if self.stamps: self.A('s_memtime s[%d:%d]' % (60 + 2 * i, 61 + 2 * i))
    def stamp_out(self):
        if self.stamps:
            A = self.A
            self.stamp(3)
            A('s_waitcnt vmcnt(0) lgkmcnt(0)')
            self.stamp(4)
            A('s_waitcnt lgkmcnt(0)')
            for i in range(4): A('s_sub_u32 s%d, s%d, s%d' % (72 + i, 62 + 2 * i, 60 + 2 * i))
            A('s_cmp_lg_u32 s2, 5')
            L = A.uid('so')
            A('s_cbranch_scc1 %s' % L)
            for i in range(4): A('v_mov_b32 v%d, s%d' % (40 + i, 72 + i))
            A('s_lshl_b32 s%d, s%d, 4' % (sT0, sW))
            A('v_mov_b32 v44, s%d' % sT0)
            A('global_store_dwordx4 v44, v[40:43], s[6:7]')
            A.label(L)

    def setup_lane(self):
        A = self.A
        A('v_and_b32 v%d, 63, v0' % self.vLane)
        A('v_lshrrev_b32 v%d, 6, v0' % self.vT)
        A('s_nop 0')
        A('v_readfirstlane_b32 s%d, v%d' % (sW, self.vT))
        A('v_lshrrev_b32 v%d, 4, v%d' % (self.vG, self.vLane))
        A('v_and_b32 v%d, 15, v%d' % (self.vC, self.vLane))
        A('s_nop 1')
        A('s_lshr_b32 s%d, s%d, 1' % (sWm, sW))
        A('s_and_b32 s%d, s%d, 1' % (sWn, sW))
        A('s_mul_i32 s%d, s%d, %d' % (sMX, sW, self.TM * 1024))
        A('s_lshl_b32 s%d, s%d, 12' % (sMW, sW))
        A('s_add_u32 s%d, s%d, %d' % (sMW, sMW, self.XSZ))
        t0, t1, t2 = self.vT, self.vT + 1, self.vT + 2
        G, C = self.vG, self.vC
        A('v_and_b32 v%d, 7, v%d' % (t0, C))
        A('v_xor_b32 v%d, v%d, v%d' % (t0, t0, G))
        A('v_lshlrev_b32 v%d, 4, v%d' % (t0, t0))
        A('v_lshl_add_u32 v%d, v%d, 7, v%d' % (t0, C, t0))
        A('s_mul_i32 s%d, s%d, %d' % (sT0, sWm, (self.BM // 2) * 128))
        A('v_add_u32 v%d, s%d, v%d' % (self.vXb, sT0, t0))
        A('v_xor_b32 v%d, 64, v%d' % (self.vXb + 1, self.vXb))
        A('v_lshrrev_b32 v%d, 2, v%d' % (t0, C))
        A('v_and_b32 v%d, 1, v%d' % (t1, G))
        A('v_lshl_add_u32 v%d, v%d, 2, v%d' % (t1, t1, t0))
        A('v_lshl_add_u32 v%d, v%d, 3, v%d' % (t0, G, t0))
        A('v_lshlrev_b32 v%d, 8, v%d' % (t0, t0))
        A('v_and_b32 v%d, 3, v%d' % (t2, C))
        A('v_lshl_add_u32 v%d, v%d, 3, v%d' % (t0, t2, t0))
        A('v_add_u32 v%d, %d, v%d' % (t0, self.XSZ, t0))
        A('s_lshl_b32 s%d, s%d, 2' % (sT0, sWn))
        for tn in range(4):
            A('s_add_u32 s%d, s%d, %d' % (sT1, sT0, tn))
            A('v_xor_b32 v%d, s%d, v%d' % (t2, sT1, t1))
            A('v_lshl_add_u32 v%d, v%d, 5, v%d' % (self.vWb + tn, t2, t0))

    def prologue(self):
        A = self.A; TM = self.TM
        t0, t1, t2, t3 = self.vT, self.vT + 1, self.vT + 2, self.vT + 3
        L, G, C = self.vLane, self.vG, self.vC
        A('v_lshrrev_b32 v%d, 3, v%d' % (t0, L))
        A('v_and_b32 v%d, 7, v%d' % (t1, L))
        A('v_xor_b32 v%d, v%d, v%d' % (t1, t1, t0))
        A('v_lshlrev_b32 v%d, 4, v%d' % (t1, t1))
        A('s_mul_i32 s%d, s%d, %d' % (sT0, sW, 8 * TM))
        for jj in range(4):
            A('s_add_u32 s%d, s%d, %d' % (sT1, sT0, 8 * jj))
            A('v_add_u32 v%d, s%d, v%d' % (t2, sT1, t0))
            A('v_mul_lo_u32 v%d, v%d, s%d' % (t2, t2, sLda))
            A('v_add_u32 v%d, v%d, v%d' % (t2, t2, t1))
            A('v_subrev_u32 v%d, %d, v%d' % (self.vXd + jj, 1024 * jj, t2))
        A('v_lshrrev_b32 v%d, 1, v%d' % (t0, C))
        A('v_and_b32 v%d, 1, v%d' % (t3, C))
        A('s_lshl_b32 s%d, s%d, 4' % (sT0, sW))
        for jj in range(4):
            A('v_xor_b32 v%d, v%d, v%d' % (t1, t0, G))
            if (jj >> 1) & 1: A('v_xor_b32 v%d, 4, v%d' % (t1, t1))
            A('v_lshlrev_b32 v%d, 5, v%d' % (t1, t1))
            A('v_lshl_add_u32 v%d, v%d, 4, v%d' % (t1, t3, t1))
            A('s_add_u32 s%d, s%d, %d' % (sT1, sT0, 4 * jj))
            A('v_add_u32 v%d, s%d, v%d' % (t2, sT1, G))
            A('v_mul_lo_u32 v%d, v%d, s%d' % (t2, t2, sLdb))
            A('v_add_u32 v%d, v%d, v%d' % (t2, t2, t1))
            A('v_subrev_u32 v%d, %d, v%d' % (self.vWd + jj, 1024 * jj, t2))
        for i in range(2): A('v_mov_b32 v%d, v%d' % (self.vXr + i, self.vXb + i))
        for i in range(4): A('v_mov_b32 v%d, v%d' % (self.vWr + i, self.vWb + i))
        A('s_lshl_b32 s%d, s%d, 5' % (sA2, sLda))
        A('s_lshl_b32 s%d, s%d, 6' % (sB64, sLdb))
        A('s_mov_b32 s%d, 0' % sKi); A('s_mov_b32 s%d, 0' % sStW); A('s_mov_b32 s%d, 0' % sStR)

    def dma_list(self):
        TM = self.TM; out = []
        ngr = (TM + 3) // 4
        for gr in range(ngr):
            n = min(4, TM - 4 * gr)
            pre = ['s_add_u32 s%d, s%d, s%d' % (sT0, sMX, sStW)] if gr == 0 else []
            pre += ['s_add_u32 m0, s%d, %d' % (sT0, gr * 4096)]
            if gr == 0: so = sAoff; pre.append('s_nop 0')
            else: pre.append('s_add_u32 s%d, s%d, s%d' % (sT1, sAoff, sA2)); so = sT1
            for jj in range(n):
                ins = 'buffer_load_dwordx4 v%d, %s, s%d offen offset:%d %s lds' % (self.vXd + jj, srd(SRD_A), so, 1024 * jj, self.afl)
                out.append((pre if jj == 0 else []) + [' '.join(ins.split())])
        pre = ['s_add_u32 m0, s%d, s%d' % (sMW, sStW), 's_nop 0']
        for jj in range(4):
            ins = 'buffer_load_dwordx4 v%d, %s, s%d offen offset:%d %s lds' % (self.vWd + jj, srd(SRD_B), sBoff, 1024 * jj, self.bfl)
            out.append((pre if jj == 0 else []) + [' '.join(ins.split())])
        return out
    def dma_advance(self):
        return ['s_add_u32 s%d, s%d, 128' % (sAoff, sAoff),
                's_add_u32 s%d, s%d, s%d' % (sBoff, sBoff, sB64),
                's_add_u32 s%d, s%d, 1' % (sKi, sKi),
                's_add_u32 s%d, s%d, %d' % (sStW, sStW, self.STAGE),
                's_cmp_ge_u32 s%d, %d' % (sStW, self.NS * self.STAGE),
                's_cselect_b32 s%d, 0, s%d' % (sStW, sStW)]
    def shift_fix(self):
        A = self.A
        L = A.uid('sh')
        A('s_cmp_eq_u32 s%d, 0' % sShift)
        A('s_cbranch_scc1 %s' % L)
        A('s_mov_b32 s%d, 0' % sT0)
        A('s_cmp_eq_u32 s%d, 4' % sKi); A('s_cselect_b32 s%d, 2, s%d' % (sT0, sT0))
        A('s_cmp_eq_u32 s%d, 8' % sKi); A('s_cselect_b32 s%d, -3, s%d' % (sT0, sT0))
        A('s_cmp_eq_u32 s%d, 12' % sKi); A('s_cselect_b32 s%d, 4, s%d' % (sT0, sT0))
        A('s_mul_i32 s%d, s%d, s%d' % (sT0, sT0, sLda))
        A('s_add_u32 s%d, s%d, s%d' % (sAoff, sAoff, sT0))
        A.label(L)
    def ndma(self): return self.TM + 4
    def reads(self, st, kk):
        base = self.set[st]; w = []; x = []
        for tn in range(4):
            for h in range(2):
                w.append('ds_read_b64_tr_b16 v[%d:%d], v%d offset:%d' % (base + 4 * tn + 2 * h, base + 4 * tn + 2 * h + 1, self.vWr + tn, kk * 8192 + h * 1024))
        for tm in range(self.TM):
            x.append('ds_read_b128 v[%d:%d], v%d offset:%d' % (base + 16 + 4 * tm, base + 16 + 4 * tm + 3, self.vXr + kk, tm * 2048))
        return w + x
    def mfmas(self, st, first=False):
        base = self.set[st]; out = []
        for tm in range(self.TM):
            for tn in range(4):
                ac = self.acc(tm, tn)
                c = '0' if first else 'v[%d:%d]' % (ac, ac + 3)
                out.append('v_mfma_f32_16x16x32_bf16 v[%d:%d], v[%d:%d], v[%d:%d], %s' % (ac, ac + 3, base + 4 * tn, base + 4 * tn + 3, base + 16 + 4 * tm, base + 16 + 4 * tm + 3, c))
        return out
    def emit_stage(self, first, rd_next, dma):
        A = self.A; n = 4 * self.TM; nd = self.ndma()
        mf0 = self.mfmas(0, first); mf1 = self.mfmas(1)
        slots = [[] for _ in range(2 * n)]
        r1 = self.reads(1, 1)
        for i, x in enumerate(r1): slots[i].append(x)
        bar = min(n - 1, len(r1) + 7)
        full = self.NS >= 4
        dl = self.dma_list() if dma else []
        if dma:
            lo = 0 if full else bar + 1
            span = 2 * n - lo
            pos = [lo + int((i + 0.5) * span / len(dl)) for i in range(len(dl))]
            for p_, grp in zip(pos, dl): slots[p_] += grp
            nbefore = sum(1 for p_ in pos if p_ <= bar)
        else: nbefore = 0
        upd = ['s_add_u32 s%d, s%d, %d' % (sStR, sStR, self.STAGE), 's_cmp_ge_u32 s%d, %d' % (sStR, self.NS * self.STAGE), 's_cselect_b32 s%d, 0, s%d' % (sStR, sStR)]
        upd += ['v_add_u32 v%d, s%d, v%d' % (self.vXr + i, sStR, self.vXb + i) for i in range(2)]
        upd += ['v_add_u32 v%d, s%d, v%d' % (self.vWr + i, sStR, self.vWb + i) for i in range(4)]
        return mf0, mf1, slots, bar, nbefore, upd

    def stage(self, first, rd_next, dma, younger):
        A = self.A; n = 4 * self.TM; nd = self.ndma()
        mf0, mf1, slots, bar, nbefore, upd = self.emit_stage(first, rd_next, dma)
        if rd_next:
            r0 = self.reads(0, 0)
            for i, x in enumerate(r0): slots[n + i].insert(0, x)
        A('s_waitcnt lgkmcnt(0)')
        for i in range(2 * n):
            A(mf0[i] if i < n else mf1[i - n])
            for x in slots[i]: A(x)
            if i == bar:
                A('s_waitcnt vmcnt(%d) lgkmcnt(0)' % (younger * nd + nbefore))
                A('s_barrier')
            if bar < i <= bar + len(upd) // 3 + 1 or i == bar:
                pass
            if i == bar:
                for x in upd[:3]: A(x)
            if bar < i <= bar + 6 and i - bar - 1 < 6 and i < n:
                A(upd[3 + i - bar - 1])
        return

    def mainloop(self):
        A = self.A; nd = self.ndma(); NS = self.NS
        ahead = NS - 1 if NS >= 4 else NS
        look = NS - 1 if NS >= 4 else NS
        self.stamp(0)
        for st in range(look):
            for grp in self.dma_list():
                for x in grp: A(x)
            for x in self.dma_advance(): A(x)
            self.shift_fix()
        A('s_waitcnt vmcnt(%d)' % ((look - 1) * nd))
        A('s_barrier')
        for x in self.reads(0, 0): A(x)
        self.stamp(1)
        young = (look - 2) if NS >= 4 else 1
        def one(first, rd_next, dma, younger):
            n = 4 * self.TM
            mf0, mf1, slots, bar, nbefore, upd = self.emit_stage(first, rd_next, dma)
            if rd_next:
                for i, x in enumerate(self.reads(0, 0)): slots[n + i].insert(0, x)
            A('s_waitcnt lgkmcnt(0)')
            pend = []
            for i in range(2 * n):
                A(mf0[i] if i < n else mf1[i - n])
                if i == n - 1 + 0 and pend:
                    for x in pend: A(x)
                    pend = []
                for x in slots[i]: A(x)
                if pend and i < n - 1:
                    A(pend.pop(0))
                if i == bar:
                    A('s_waitcnt vmcnt(%d) lgkmcnt(0)' % (younger * nd + nbefore))
                    A('s_barrier')
                    for x in upd[:3]: A(x)
                    pend = list(upd[3:])
                    if i == n - 1:
                        for x in pend: A(x)
                        pend = []
            if dma:
                for x in self.dma_advance(): A(x)
                self.shift_fix()
        one(True, True, True, young)
        A('s_mov_b32 s%d, 1' % sT5)
        Lloop = A.uid('gl')
        A.label(Lloop)
        one(False, True, True, young)
        A('s_add_u32 s%d, s%d, 1' % (sT5, sT5))
        A('s_cmp_lt_u32 s%d, s%d' % (sKi, sNk))
        A('s_cbranch_scc1 %s' % Lloop)
        for t in range(look):
            rem_young = max(0, (look - 1 - t) - 1)
            last = (t == look - 1)
            one(False, not last, False, rem_young)
        A.nop(10)
        self.stamp(2)

    def gelu_setup(self):
        c1 = -2.0 * math.sqrt(2.0 / math.pi) * math.log2(math.e)
        self.A('s_mov_b32 s%d, %s' % (sK1, fhex(c1)))
        self.A('s_mov_b32 s%d, %s' % (sK2, fhex(c1 * 0.044715)))
        self.vK1 = self.vT + 4
        self.A('v_mov_b32 v%d, s%d' % (self.vK1, sK1))
    def gelu(self, regs, t, rnd=True):
        A = self.A; n = len(regs)
        if rnd:
            for i in range(0, n, 2):
                A('v_cvt_pk_bf16_f32 v%d, v%d, v%d' % (t, regs[i], regs[i + 1]))
                A('v_lshlrev_b32 v%d, 16, v%d' % (regs[i], t))
                A('v_and_b32 v%d, 0xffff0000, v%d' % (regs[i + 1], t))
        for i in range(n): A('v_mul_f32 v%d, v%d, v%d' % (t + i, regs[i], regs[i]))
        for i in range(n): A('v_fma_f32 v%d, v%d, s%d, v%d' % (t + i, t + i, sK2, self.vK1))
        for i in range(n): A('v_mul_f32 v%d, v%d, v%d' % (t + i, t + i, regs[i]))
        for i in range(n): A('v_exp_f32 v%d, v%d' % (t + i, t + i))
        for i in range(n): A('v_add_f32 v%d, 1.0, v%d' % (t + i, t + i))
        for i in range(n): A('v_rcp_f32 v%d, v%d' % (t + i, t + i))
        A('s_nop 0')
        for i in range(n): A('v_mul_f32 v%d, v%d, v%d' % (regs[i], regs[i], t + i))

    def epi_addr(self, bytes_per_col):
        A = self.A
        vCo, t0 = self.vT, self.vT + 1
        A('s_mul_i32 s%d, s%d, %d' % (sT1, sWm, self.BM // 2))
        A('v_add_u32 v%d, s%d, v%d' % (t0, sT1, self.vC))
        A('v_mul_lo_u32 v%d, v%d, s%d' % (vCo, t0, sLdc))
        if bytes_per_col == 2:
            A('v_and_b32 v%d, 1, v%d' % (t0, self.vG))
            A('v_lshl_add_u32 v%d, v%d, 5, v%d' % (vCo, t0, vCo))
            A('v_lshrrev_b32 v%d, 1, v%d' % (t0, self.vG))
            A('v_lshl_add_u32 v%d, v%d, 4, v%d' % (vCo, t0, vCo))
            A('s_lshl_b32 s%d, s%d, 7' % (sT1, sWn))
        else:
            A('v_lshl_add_u32 v%d, v%d, 4, v%d' % (vCo, self.vG, vCo))
            A('s_lshl_b32 s%d, s%d, 8' % (sT1, sWn))
        A('v_add_u32 v%d, s%d, v%d' % (vCo, sT1, vCo))
        A('s_lshl_b32 s%d, s%d, 4' % (sT2, sLdc))
        return vCo
    def epi_bf16(self, gelu=False, resid=False, cfl='sc1'):
        A = self.A; TM = self.TM
        if gelu: self.gelu_setup()
        vCo = self.epi_addr(2)
        D = 32; RR = 64
        if resid:
            for tm in range(TM):
                A('s_mul_i32 s%d, s%d, %d' % (sT3, sT2, tm))
                A('s_add_u32 s%d, s%d, s%d' % (sT3, sT3, sRoff))
                for pr in range(2):
                    R = RR + (tm * 2 + pr) * 4
                    assert R + 3 < self.ACC
                    A('buffer_load_dwordx4 v[%d:%d], v%d, %s, s%d offen offset:%d sc1' % (R, R + 3, vCo, srd(SRD_R), sT3, pr * 64))
        for tm in range(TM):
            A('s_mul_i32 s%d, s%d, %d' % (sT3, sT2, tm))
            A('s_add_u32 s%d, s%d, s%d' % (sT3, sT3, sCoff))
            for pr in range(2):
                a0 = self.acc(tm, 2 * pr); a1 = self.acc(tm, 2 * pr + 1)
                if gelu: self.gelu(list(range(a0, a0 + 8)), D + 8)
                P = D + 4 * ((tm * 2 + pr) & 1)
                A('v_cvt_pk_bf16_f32 v%d, v%d, v%d' % (P, a0, a0 + 1))
                A('v_cvt_pk_bf16_f32 v%d, v%d, v%d' % (P + 1, a0 + 2, a0 + 3))
                A('v_cvt_pk_bf16_f32 v%d, v%d, v%d' % (P + 2, a1, a1 + 1))
                A('v_cvt_pk_bf16_f32 v%d, v%d, v%d' % (P + 3, a1 + 2, a1 + 3))
                A('s_nop 1')
                A('v_permlane16_swap_b32 v%d, v%d' % (P, P + 2))
                A('v_permlane16_swap_b32 v%d, v%d' % (P + 1, P + 3))
                if resid:
                    R = RR + (tm * 2 + pr) * 4
                    if tm == 0 and pr == 0: A('s_waitcnt vmcnt(0)')
                    for i in range(4):
                        t = D + 8
                        A('v_lshlrev_b32 v%d, 16, v%d' % (t, P + i))
                        A('v_and_b32 v%d, 0xffff0000, v%d' % (t + 1, P + i))
                        A('v_lshlrev_b32 v%d, 16, v%d' % (t + 2, R + i))
                        A('v_and_b32 v%d, 0xffff0000, v%d' % (t + 3, R + i))
                        A('v_add_f32 v%d, v%d, v%d' % (t, t, t + 2))
                        A('v_add_f32 v%d, v%d, v%d' % (t + 1, t + 1, t + 3))
                        A('v_cvt_pk_bf16_f32 v%d, v%d, v%d' % (P + i, t, t + 1))
                else:
                    A('s_nop 0')
                A('buffer_store_dwordx4 v[%d:%d], v%d, %s, s%d offen offset:%d %s' % (P, P + 3, vCo, srd(SRD_C), sT3, pr * 64, cfl))
    def epi_f32(self, cfl='sc1'):
        A = self.A; TM = self.TM
        vCo = self.epi_addr(4)
        for tm in range(TM):
            A('s_mul_i32 s%d, s%d, %d' % (sT3, sT2, tm))
            A('s_add_u32 s%d, s%d, s%d' % (sT3, sT3, sCoff))
            for tn in range(4):
                ac = self.acc(tm, tn)
                A('buffer_store_dwordx4 v[%d:%d], v%d, %s, s%d offen offset:%d %s' % (ac, ac + 3, vCo, srd(SRD_C), sT3, tn * 64, cfl))
```

```python
MB = 1 << 20
KB = 1 << 10
WS_SIZE = 256 * MB
XLN  = 0 * MB
QX   = 4 * MB
KX   = 20 * MB
VX   = 36 * MB
KM   = 52 * MB
VMF  = 56 * MB
OX   = 60 * MB
CH   = 76 * MB
MEMB = CH
QKB  = CH + 128 * KB
OB   = CH + 1 * MB
PART = CH + 2 * MB
CNT  = 80 * MB
FLG_SEG = CNT + 128 * KB
A_X, A_MEM0, A_WQ, A_WK, A_WV, A_WO, A_SEG, B_X, B_W1, B_W2, B_W3, B_W4, D_OUT, D_DBG, D_WS = [8 * i for i in range(15)]

HB   = 84 * MB
YB   = 88 * MB
ZB   = 92 * MB
GB0  = 96 * MB
GB   = GB0 + 2 * 2048
X1B  = 102 * MB
Z2B  = 106 * MB
UB   = 110 * MB
PO   = 128 * MB
P4   = 160 * MB

FL2  = CNT + 192 * KB
FQKV = FL2
FATT = FQKV + 1536 * 4
FO   = FATT + 512 * 4
FR1  = FO + 512 * 4
FW1  = FR1 + 256 * 4
FW2  = FW1 + 128 * 4
FR2  = FW2 + 128 * 4
FW3  = FR2 + 256 * 4
FW4  = FW3 + 512 * 4
QCTR = FW4 + 512 * 4
FL_END = QCTR + 256
assert FL_END <= CNT + 256 * KB
```

```python
from asmlib import *
from layout import *
from gemm2 import *
import struct, math
def fhex(x): return '0x%08x' % struct.unpack('<I', struct.pack('<f', x))[0]

def wave_allreduce(A, op, x, t):
    for rot in (8, 4, 2, 1):
        A('s_nop 1')
        A('v_%s_dpp v%d, v%d, v%d row_ror:%d row_mask:0xf bank_mask:0xf' % (op, x, x, x, rot))
    A('v_mov_b32 v%d, v%d' % (t, x))
    A('s_nop 1')
    A('v_permlane16_swap_b32 v%d, v%d' % (x, t))
    A('s_nop 0')
    A('v_%s v%d, v%d, v%d' % (op, x, x, t))
    A('v_mov_b32 v%d, v%d' % (t, x))
    A('s_nop 1')
    A('v_permlane32_swap_b32 v%d, v%d' % (x, t))
    A('s_nop 0')
    A('v_%s v%d, v%d, v%d' % (op, x, x, t))

def unpack8(A, src, dst):
    for i in range(4):
        A('v_lshlrev_b32 v%d, 16, v%d' % (dst + 2 * i, src + i))
        A('v_and_b32 v%d, 0xffff0000, v%d' % (dst + 2 * i + 1, src + i))
def pack8(A, src, dst):
    for i in range(4):
        A('v_cvt_pk_bf16_f32 v%d, v%d, v%d' % (dst + i, src + 2 * i, src + 2 * i + 1))
def round_bf16(A, regs, tmp):
    for i in range(0, len(regs), 2):
        A('v_cvt_pk_bf16_f32 v%d, v%d, v%d' % (tmp, regs[i], regs[i + 1]))
        A('v_lshlrev_b32 v%d, 16, v%d' % (regs[i], tmp))
        A('v_and_b32 v%d, 0xffff0000, v%d' % (regs[i + 1], tmp))

def rnd1(A, x, tmp):
    A('v_cvt_pk_bf16_f32 v%d, v%d, v%d' % (tmp, x, x))
    A('v_lshlrev_b32 v%d, 16, v%d' % (x, tmp))
def layernorm16(A, X, t):
    m, u, w, q = t, t + 1, t + 2, t + 3
    A('v_add_f32 v%d, v%d, v%d' % (m, X, X + 1))
    for i in range(2, 16): A('v_add_f32 v%d, v%d, v%d' % (m, m, X + i))
    wave_allreduce(A, 'add_f32', m, u)
    A('v_mul_f32 v%d, %s, v%d' % (m, fhex(1.0 / 1024), m))
    A('v_sub_f32 v%d, v%d, v%d' % (q, X, m))
    A('v_mul_f32 v%d, v%d, v%d' % (w, q, q))
    for i in range(1, 16):
        A('v_sub_f32 v%d, v%d, v%d' % (q, X + i, m))
        A('v_fmac_f32 v%d, v%d, v%d' % (w, q, q))
    wave_allreduce(A, 'add_f32', w, u)
    A('v_mul_f32 v%d, %s, v%d' % (w, fhex(1.0 / 1024), w))
    rnd1(A, w, u); rnd1(A, m, u)
    A('v_add_f32 v%d, %s, v%d' % (w, fhex(1e-5), w))
    rnd1(A, w, u)
    A('v_sqrt_f32 v%d, v%d' % (w, w))
    A('s_nop 0')
    rnd1(A, w, u)
    A('v_rcp_f32 v%d, v%d' % (w, w))
    for i in range(16): A('v_sub_f32 v%d, v%d, v%d' % (X + i, X + i, m))
    round_bf16(A, list(range(X, X + 16)), u)
    for i in range(16): A('v_mul_f32 v%d, v%d, v%d' % (X + i, X + i, w))

def lane_setup(A):
    A('v_and_b32 v1, 63, v0')
    A('v_lshrrev_b32 v2, 6, v0')
    A('s_nop 0')
    A('v_readfirstlane_b32 s%d, v2' % sW)
    A('v_lshlrev_b32 v3, 4, v1')
    A('v_lshlrev_b32 v4, 5, v1')
    A('s_nop 1')

def load_row_bf16(A, dst, srdn, soff, fl):
    A('buffer_load_dwordx4 v[%d:%d], v3, %s, s%d offen %s' % (dst, dst + 3, srd(srdn), soff, fl))
    A('buffer_load_dwordx4 v[%d:%d], v3, %s, s%d offen offset:1024 %s' % (dst + 4, dst + 7, srd(srdn), soff, fl))
def store_row_bf16(A, src, srdn, soff, fl):
    A('buffer_store_dwordx4 v[%d:%d], v3, %s, s%d offen %s' % (src, src + 3, srd(srdn), soff, fl))
    A('buffer_store_dwordx4 v[%d:%d], v3, %s, s%d offen offset:1024 %s' % (src + 4, src + 7, srd(srdn), soff, fl))
def load_row_f32(A, dst, srdn, soff, fl):
    A('buffer_load_dwordx4 v[%d:%d], v4, %s, s%d offen %s' % (dst, dst + 3, srd(srdn), soff, fl))
    A('buffer_load_dwordx4 v[%d:%d], v4, %s, s%d offen offset:16 %s' % (dst + 4, dst + 7, srd(srdn), soff, fl))
    A('buffer_load_dwordx4 v[%d:%d], v4, %s, s%d offen offset:2048 %s' % (dst + 8, dst + 11, srd(srdn), soff, fl))
    A('buffer_load_dwordx4 v[%d:%d], v4, %s, s%d offen offset:2064 %s' % (dst + 12, dst + 15, srd(srdn), soff, fl))

sRow = 55
def unit_ln1(A, rows_per_wave=2):
    lane_setup(A)
    A('s_mul_i32 s%d, s%d, %d' % (sT0, sW, rows_per_wave))
    A('s_add_u32 s%d, s%d, s%d' % (sT0, sT0, sRow))
    A('s_lshl_b32 s%d, s%d, 11' % (sT1, sT0))
    for r_ in range(rows_per_wave):
        A('s_add_u32 s%d, s%d, %d' % (sT2, sT1, 2048 * r_))
        load_row_bf16(A, 16 + 8 * r_, SRD_R, sT2, '')
    A('s_waitcnt vmcnt(0)')
    for r_ in range(rows_per_wave):
        X = 64
        unpack8(A, 16 + 8 * r_, X); unpack8(A, 20 + 8 * r_, X + 8)
        layernorm16(A, X, 8)
        pack8(A, X, 48); pack8(A, X + 8, 52)
        A('s_add_u32 s%d, s%d, %d' % (sT2, sT1, XLN + 2048 * r_))
        store_row_bf16(A, 48, SRD_WS, sT2, 'sc1')
        A('s_nop 1')

def sum_partials(A, P, X, tmp):
    for i in range(16):
        A('v_add_f32 v%d, v%d, v%d' % (X + i, P + i, P + 16 + i))
        A('v_add_f32 v%d, v%d, v%d' % (X + i, X + i, P + 32 + i))
        A('v_add_f32 v%d, v%d, v%d' % (X + i, X + i, P + 48 + i))
    round_bf16(A, list(range(X, X + 16)), tmp)

def unit_r1(A, rpw=2):
    lane_setup(A)
    A('s_mul_i32 s%d, s%d, %d' % (sT0, sW, rpw))
    A('s_add_u32 s%d, s%d, s%d' % (sT0, sT0, sRow))
    A('s_lshl_b32 s%d, s%d, 11' % (sT1, sT0))
    A('s_lshl_b32 s%d, s%d, 12' % (sT3, sT0))
    for r_ in range(rpw):
        B = 16 + 80 * r_
        for p in range(4):
            A('s_add_u32 s%d, s%d, %d' % (sT2, sT3, PO + p * 8 * MB + 4096 * r_))
            load_row_f32(A, B + 16 * p, SRD_WS, sT2, 'sc1')
        A('s_add_u32 s%d, s%d, %d' % (sT2, sT1, 2048 * r_))
        load_row_bf16(A, B + 64, SRD_R, sT2, '')
    for r_ in range(rpw):
        B = 16 + 80 * r_
        A('s_waitcnt vmcnt(%d)' % (18 * (rpw - 1 - r_) + 6 * r_))
        X, Y = 192, 208
        sum_partials(A, B, X, 8)
        unpack8(A, B + 64, Y); unpack8(A, B + 68, Y + 8)
        for i in range(16): A('v_add_f32 v%d, v%d, v%d' % (X + i, X + i, Y + i))
        pack8(A, X, 224); pack8(A, X + 8, 228)
        A('s_add_u32 s%d, s%d, %d' % (sT2, sT1, HB + 2048 * r_))
        store_row_bf16(A, 224, SRD_WS, sT2, 'sc1')
        unpack8(A, 224, X); unpack8(A, 228, X + 8)
        layernorm16(A, X, 8)
        pack8(A, X, 232); pack8(A, X + 8, 236)
        A('s_add_u32 s%d, s%d, %d' % (sT2, sT1, YB + 2048 * r_))
        store_row_bf16(A, 232, SRD_WS, sT2, 'sc1')
        unpack8(A, 232, X); unpack8(A, 236, X + 8)
        layernorm16(A, X, 8)
        pack8(A, X, 240); pack8(A, X + 8, 244)
        A('s_add_u32 s%d, s%d, %d' % (sT2, sT1, ZB + 2048 * r_))
        store_row_bf16(A, 240, SRD_WS, sT2, 'sc1')
        A('s_nop 1')

def unit_r2(A, rpw=2):
    lane_setup(A)
    A('s_mul_i32 s%d, s%d, %d' % (sT0, sW, rpw))
    A('s_add_u32 s%d, s%d, s%d' % (sT0, sT0, sRow))
    A('s_lshl_b32 s%d, s%d, 11' % (sT1, sT0))
    for r_ in range(rpw):
        A('s_add_u32 s%d, s%d, %d' % (sT2, sT1, X1B + 2048 * r_))
        load_row_bf16(A, 16 + 8 * r_, SRD_WS, sT2, 'sc1')
    A('s_waitcnt vmcnt(0)')
    for r_ in range(rpw):
        X = 64
        unpack8(A, 16 + 8 * r_, X); unpack8(A, 20 + 8 * r_, X + 8)
        layernorm16(A, X, 8)
        pack8(A, X, 48 + 8 * r_); pack8(A, X + 8, 52 + 8 * r_)
        A('s_add_u32 s%d, s%d, %d' % (sT2, sT1, Z2B + 2048 * r_))
        store_row_bf16(A, 48 + 8 * r_, SRD_WS, sT2, 'sc1')

def unit_r3(A, rpw=2):
    lane_setup(A)
    A('s_mul_i32 s%d, s%d, %d' % (sT0, sW, rpw))
    A('s_add_u32 s%d, s%d, s%d' % (sT0, sT0, sRow))
    A('s_lshl_b32 s%d, s%d, 11' % (sT1, sT0))
    A('s_lshl_b32 s%d, s%d, 12' % (sT3, sT0))
    for r_ in range(rpw):
        B = 16 + 80 * r_
        for p in range(4):
            A('s_add_u32 s%d, s%d, %d' % (sT2, sT3, P4 + p * 8 * MB + 4096 * r_))
            load_row_f32(A, B + 16 * p, SRD_WS, sT2, 'sc1')
        A('s_add_u32 s%d, s%d, %d' % (sT2, sT1, X1B + 2048 * r_))
        load_row_bf16(A, B + 64, SRD_WS, sT2, 'sc1')
        A('s_add_u32 s%d, s%d, %d' % (sT2, sT1, HB + 2048 * r_))
        load_row_bf16(A, B + 72, SRD_WS, sT2, 'sc1')
    for r_ in range(rpw):
        B = 16 + 80 * r_
        A('s_waitcnt vmcnt(%d)' % (20 * (rpw - 1 - r_) + 2 * r_))
        X, Y = 192, 208
        sum_partials(A, B, X, 8)
        unpack8(A, B + 64, Y); unpack8(A, B + 68, Y + 8)
        for i in range(16): A('v_add_f32 v%d, v%d, v%d' % (X + i, X + i, Y + i))
        round_bf16(A, list(range(X, X + 16)), 8)
        unpack8(A, B + 72, Y); unpack8(A, B + 76, Y + 8)
        for i in range(16): A('v_add_f32 v%d, v%d, v%d' % (X + i, X + i, Y + i))
        pack8(A, X, 224 + 8 * r_); pack8(A, X + 8, 228 + 8 * r_)
        A('s_add_u32 s%d, s%d, %d' % (sT2, sT1, 2048 * r_))
        store_row_bf16(A, 224 + 8 * r_, SRD_C, sT2, '')

sSeg, sHead = 56, 57
def unit_att(A):
    WSTR = 27648
    L, G, N = 1, 2, 3
    t0, t1, t2, t3 = 4, 5, 6, 7
    A('v_and_b32 v%d, 63, v0' % L)
    A('v_lshrrev_b32 v%d, 6, v0' % t0)
    A('s_nop 0')
    A('v_readfirstlane_b32 s%d, v%d' % (sW, t0))
    A('v_lshrrev_b32 v%d, 4, v%d' % (G, L))
    A('v_and_b32 v%d, 15, v%d' % (N, L))
    A('s_nop 1')
    A('s_add_u32 s%d, s%d, s%d' % (sT5, sHead, sW))
    A('s_mul_i32 s%d, s%d, %d' % (sT4, sW, WSTR))
    A('s_lshl_b32 s%d, s%d, 18' % (sT0, sSeg))
    A('s_lshl_b32 s%d, s%d, 8' % (sT1, sT5))
    A('s_add_u32 s%d, s%d, s%d' % (sT0, sT0, sT1))
    vDq, vDv = 8, 16
    for i in range(4):
        A('v_add_u32 v%d, %d, v%d' % (t0, 4 * i, G))
        A('v_xor_b32 v%d, v%d, v%d' % (t1, t0, N))
        A('v_lshlrev_b32 v%d, 4, v%d' % (t1, t1))
        A('v_lshl_add_u32 v%d, v%d, 13, v%d' % (t1, t0, t1))
        A('v_subrev_u32 v%d, %d, v%d' % (vDq + i, 1024 * i, t1))
        A('v_and_b32 v%d, 7, v%d' % (t2, t0))
        A('v_lshrrev_b32 v%d, 1, v%d' % (t3, N))
        A('v_xor_b32 v%d, v%d, v%d' % (t2, t2, t3))
        A('v_lshlrev_b32 v%d, 5, v%d' % (t2, t2))
        A('v_and_b32 v%d, 1, v%d' % (t3, N))
        A('v_lshl_add_u32 v%d, v%d, 4, v%d' % (t2, t3, t2))
        A('v_lshl_add_u32 v%d, v%d, 13, v%d' % (t2, t0, t2))
        A('v_subrev_u32 v%d, %d, v%d' % (vDv + i, 1024 * i, t2))
    def dma_tile(gbase, ldsoff, vD):
        for hf in range(2):
            A('s_add_u32 m0, s%d, %d' % (sT4, ldsoff + hf * 4096))
            A('s_add_u32 s%d, s%d, %d' % (sT2, sT0, gbase + hf * 16 * 8192))
            for i in range(4):
                A('buffer_load_dwordx4 v%d, %s, s%d offen offset:%d sc1 lds' % (vD + i, srd(SRD_WS), sT2, 1024 * i))
    dma_tile(QX, 0, vDq); dma_tile(KX, 8192, vDq); dma_tile(VX, 16384, vDv)
    A('s_lshl_b32 s%d, s%d, 16' % (sT2, sSeg))
    A('s_add_u32 s%d, s%d, s%d' % (sT2, sT2, sT1))
    A('s_add_u32 s%d, s%d, %d' % (sT2, sT2, KM))
    A('s_add_u32 m0, s%d, %d' % (sT4, 24576))
    A('s_nop 0')
    for i in range(2):
        A('buffer_load_dwordx4 v%d, %s, s%d offen offset:%d sc1 lds' % (vDq + i, srd(SRD_WS), sT2, 1024 * i))
    vVM = 96
    A('s_lshl_b32 s%d, s%d, 5' % (sT2, sSeg))
    A('s_add_u32 s%d, s%d, s%d' % (sT2, sT2, sT5))
    A('s_lshl_b32 s%d, s%d, 11' % (sT2, sT2))
    A('s_add_u32 s%d, s%d, %d' % (sT2, sT2, VMF))
    A('v_and_b32 v%d, 31, v%d' % (t0, L))
    A('v_lshlrev_b32 v%d, 3, v%d' % (t0, t0))
    for te in range(8):
        A('buffer_load_dwordx2 v[%d:%d], v%d, %s, s%d offen offset:%d sc1' % (vVM + 2 * te, vVM + 2 * te + 1, t0, srd(SRD_WS), sT2, 256 * te))
    vFr = 20
    A('v_xor_b32 v%d, v%d, v%d' % (t0, G, N))
    A('v_lshlrev_b32 v%d, 4, v%d' % (t0, t0))
    A('v_lshl_add_u32 v%d, v%d, 8, v%d' % (t0, N, t0))
    A('v_add_u32 v%d, s%d, v%d' % (vFr, sT4, t0))
    for k in range(1, 4): A('v_xor_b32 v%d, %d, v%d' % (vFr + k, k * 64, vFr))
    vKmA = 24
    A('v_and_b32 v%d, 7, v%d' % (t1, N))
    A('v_xor_b32 v%d, v%d, v%d' % (t0, G, t1))
    A('v_lshlrev_b32 v%d, 4, v%d' % (t0, t0))
    A('v_lshl_add_u32 v%d, v%d, 8, v%d' % (t0, t1, t0))
    A('v_add_u32 v%d, s%d, v%d' % (vKmA, sT4, t0))
    A('v_add_u32 v%d, 24576, v%d' % (vKmA, vKmA))
    for k in range(1, 4): A('v_xor_b32 v%d, %d, v%d' % (vKmA + k, k * 64, vKmA))
    vVt = 28
    A('v_lshrrev_b32 v%d, 2, v%d' % (t0, N))
    A('v_lshl_add_u32 v%d, v%d, 2, v%d' % (t0, G, t0))
    A('v_and_b32 v%d, 7, v%d' % (t1, t0))
    A('v_lshlrev_b32 v%d, 5, v%d' % (t1, t1))
    A('v_lshl_add_u32 v%d, v%d, 8, v%d' % (t1, t0, t1))
    A('v_and_b32 v%d, 3, v%d' % (t2, N))
    A('v_lshl_add_u32 v%d, v%d, 3, v%d' % (t1, t2, t1))
    A('v_add_u32 v%d, s%d, v%d' % (vVt, sT4, t1))
    A('v_add_u32 v%d, 16384, v%d' % (vVt, vVt))
    A('s_waitcnt vmcnt(0)')
    vQf = 32
    vKf = 64
    vMf = 112
    for qt in range(2):
        for k in range(4):
            A('ds_read_b128 v[%d:%d], v%d offset:%d' % (vQf + (qt * 4 + k) * 4, vQf + (qt * 4 + k) * 4 + 3, vFr + k, qt * 4096))
    for tt in range(2):
        for k in range(4):
            A('ds_read_b128 v[%d:%d], v%d offset:%d' % (vKf + (tt * 4 + k) * 4, vKf + (tt * 4 + k) * 4 + 3, vFr + k, 8192 + tt * 4096))
        A('s_waitcnt lgkmcnt(8)')
    for k in range(4):
        A('ds_read_b128 v[%d:%d], v%d' % (vMf + 4 * k, vMf + 4 * k + 3, vKmA + k))
    A('s_waitcnt lgkmcnt(0)')
    S = {(0, 'm'): 128, (0, 0): 132, (1, 'm'): 136, (1, 0): 140, (1, 1): 144}
    for k in range(4):
        for (qt, kt), R in S.items():
            a_ = vMf + 4 * k if kt == 'm' else vKf + (kt * 4 + k) * 4
            b_ = vQf + (qt * 4 + k) * 4
            c_ = '0' if k == 0 else 'v[%d:%d]' % (R, R + 3)
            A('v_mfma_f32_16x16x32_bf16 v[%d:%d], v[%d:%d], v[%d:%d], %s' % (R, R + 3, a_, a_ + 3, b_, b_ + 3, c_))
    vVf = 148
    for te in range(8):
        A('v_xor_b32 v%d, %d, v%d' % (t0 + (te & 1), te * 32, vVt))
        for tt in range(2):
            A('ds_read_b64_tr_b16 v[%d:%d], v%d offset:%d' % (vVf + (te * 2 + tt) * 2, vVf + (te * 2 + tt) * 2 + 1, t0 + (te & 1), tt * 4096))
    A('v_lshlrev_b32 v%d, 2, v%d' % (t2, G))
    NEG = 30
    A('v_mov_b32 v%d, 0xf149f2ca' % NEG)
    for i in range(4):
        A('v_add_u32 v%d, %d, v%d' % (t3, i, t2))
        A('v_cmp_gt_u32 vcc, v%d, v%d' % (t3, N))
        A('s_nop 1')
        A('v_cndmask_b32 v%d, v%d, v%d, vcc' % (S[(0, 0)] + i, S[(0, 0)] + i, NEG))
        A('v_cndmask_b32 v%d, v%d, v%d, vcc' % (S[(1, 1)] + i, S[(1, 1)] + i, NEG))
    A('v_cmp_le_u32 vcc, 2, v%d' % G)
    A('s_nop 1')
    for qt in range(2):
        for i in range(4):
            A('v_cndmask_b32 v%d, v%d, v%d, vcc' % (S[(qt, 'm')] + i, S[(qt, 'm')] + i, NEG))
    A('s_mov_b32 s%d, %s' % (sT3, fhex(math.log2(math.e))))
    A('s_mov_b32 s%d, %s' % (sT2, fhex(128 ** -0.5)))
    vP = 180
    Ppk = {}
    pi = vP
    for qt in range(2):
        tiles = [S[(qt, 'm')], S[(qt, 0)]] + ([S[(1, 1)]] if qt else [])
        regs = [R + i for R in tiles for i in range(4)]
        m, t = 192, 193
        round_bf16(A, regs, t)
        for x in regs: A('v_mul_f32 v%d, s%d, v%d' % (x, sT2, x))
        round_bf16(A, regs, t)
        A('v_max3_f32 v%d, v%d, v%d, v%d' % (m, regs[0], regs[1], regs[2]))
        rs = regs[3:]
        while len(rs) >= 2:
            A('v_max3_f32 v%d, v%d, v%d, v%d' % (m, m, rs[0], rs[1])); rs = rs[2:]
        if rs: A('v_max_f32 v%d, v%d, v%d' % (m, m, rs[0]))
        for sw in ('v_permlane32_swap_b32', 'v_permlane16_swap_b32'):
            A('v_mov_b32 v%d, v%d' % (t, m)); A('s_nop 1')
            A('%s v%d, v%d' % (sw, m, t)); A('s_nop 0')
            A('v_max_f32 v%d, v%d, v%d' % (m, m, t))
        for x in regs: A('v_sub_f32 v%d, v%d, v%d' % (x, x, m))
        for x in regs: A('v_mul_f32 v%d, s%d, v%d' % (x, sT3, x))
        for x in regs: A('v_exp_f32 v%d, v%d' % (x, x))
        A('s_nop 0')
        A('v_add_f32 v%d, v%d, v%d' % (m, regs[0], regs[1]))
        for x in regs[2:]: A('v_add_f32 v%d, v%d, v%d' % (m, m, x))
        for sw in ('v_permlane32_swap_b32', 'v_permlane16_swap_b32'):
            A('v_mov_b32 v%d, v%d' % (t, m)); A('s_nop 1')
            A('%s v%d, v%d' % (sw, m, t)); A('s_nop 0')
            A('v_add_f32 v%d, v%d, v%d' % (m, m, t))
        A('v_rcp_f32 v%d, v%d' % (m, m))
        A('s_nop 0')
        for x in regs: A('v_mul_f32 v%d, v%d, v%d' % (x, x, m))
        for ti, R in enumerate(tiles):
            key = 'm' if ti == 0 else ti - 1
            Ppk[(qt, key)] = pi
            A('v_cvt_pk_bf16_f32 v%d, v%d, v%d' % (pi, R, R + 1))
            A('v_cvt_pk_bf16_f32 v%d, v%d, v%d' % (pi + 1, R + 2, R + 3))
            pi += 2
    A('s_waitcnt lgkmcnt(0)')
    vO = 32
    for qt in range(2):
        for te in range(8):
            R = vO + (qt * 8 + te) * 4
            A('v_mfma_f32_16x16x16_bf16 v[%d:%d], v[%d:%d], v[%d:%d], 0' % (R, R + 3, vVM + 2 * te, vVM + 2 * te + 1, Ppk[(qt, 'm')], Ppk[(qt, 'm')] + 1))
    for qt in range(2):
        for tt in range(2 if qt else 1):
            for te in range(8):
                R = vO + (qt * 8 + te) * 4
                a_ = vVf + (te * 2 + tt) * 2
                A('v_mfma_f32_16x16x16_bf16 v[%d:%d], v[%d:%d], v[%d:%d], v[%d:%d]' % (R, R + 3, a_, a_ + 1, Ppk[(qt, tt)], Ppk[(qt, tt)] + 1, R, R + 3))
    A.nop(10)
    RS = 272
    vSw, vSr, vGo = 4, 5, 6
    A('v_mul_u32_u24 v%d, %d, v%d' % (vSw, RS, N))
    A('v_lshl_add_u32 v%d, v%d, 3, v%d' % (vSw, G, vSw))
    A('v_add_u32 v%d, s%d, v%d' % (vSw, sT4, vSw))
    for qt in range(2):
        for te in range(8):
            R = vO + (qt * 8 + te) * 4
            A('v_cvt_pk_bf16_f32 v%d, v%d, v%d' % (R, R, R + 1))
            A('v_cvt_pk_bf16_f32 v%d, v%d, v%d' % (R + 1, R + 2, R + 3))
            A('ds_write_b64 v%d, v[%d:%d] offset:%d' % (vSw, R, R + 1, qt * 16 * RS + te * 32))
    A('v_mul_u32_u24 v%d, %d, v%d' % (vSr, RS, G))
    A('v_lshl_add_u32 v%d, v%d, 4, v%d' % (vSr, N, vSr))
    A('v_add_u32 v%d, s%d, v%d' % (vSr, sT4, vSr))
    A('v_lshlrev_b32 v%d, 13, v%d' % (vGo, G))
    A('v_lshl_add_u32 v%d, v%d, 4, v%d' % (vGo, N, vGo))
    A('s_waitcnt lgkmcnt(0)')
    for b in range(8):
        A('ds_read_b128 v[%d:%d], v%d offset:%d' % (96 + 4 * b, 96 + 4 * b + 3, vSr, b * 4 * RS))
    A('s_waitcnt lgkmcnt(0)')
    for b in range(8):
        A('s_add_u32 s%d, s%d, %d' % (sT2, sT0, OX + b * 4 * 8192))
        A('buffer_store_dwordx4 v[%d:%d], v%d, %s, s%d offen sc1' % (96 + 4 * b, 96 + 4 * b + 3, vGo, srd(SRD_WS), sT2))
```

```python
import sys
from asmlib import *
from layout import *
import chain
from gemm2 import *
from units2 import *

NAME = 'sequential_preLN__memory_aug_recurrent_mem_tr__mixer_s_mlp__prompt'
BM = 128
NRB = 2048 // BM
sXW, sTK, sIt, sFlag, sItem, sQi, sTab, sDep, sCnt, sSp = 80, 81, 82, 83, 84, 85, 86, 88, 89, 90
sMsk = 92
sRB, sNT, sKS = 94, 95, 96
T_ATT, T_O, T_R1, T_W1, T_W2, T_R2, T_W3, T_W4, T_R3 = range(1, 10)
SPIN = 1 << 22

def build_queue(step=3.0, t0=25.0):
    d = dict(att=4.0, o=7.0, r=3.0, w=7.0)
    items = []
    def word(t, a, b=0, c=0): return (t << 28) | (a << 20) | (b << 12) | (c << 4)
    fin = {}
    for rb in range(NRB):
        nseg = 64 // NRB
        ta = 0
        for s in range(rb * nseg, (rb + 1) * nseg):
            rdy = t0 + (s + 2) * step
            for hg in range(8): items.append((rdy, 0, word(T_ATT, s, hg)))
            ta = max(ta, rdy + d['att'])
        for nt in range(8):
            for ks in range(4): items.append((ta, 1, word(T_O, rb, nt, ks)))
        t = ta + d['o']
        for c in range(BM // 8): items.append((t, 2, word(T_R1, rb, c)))
        t += d['r']
        for nt in range(8): items.append((t, 3, word(T_W1, rb, nt)))
        fin[('w1', rb)] = t + d['w']
    for rb in range(NRB):
        t = max(fin[('w1', r_)] for r_ in (rb - 1, rb, rb + 1) if 0 <= r_ < NRB)
        for nt in range(8): items.append((t, 4, word(T_W2, rb, nt)))
        t += d['w']
        for c in range(BM // 8): items.append((t, 5, word(T_R2, rb, c)))
        t += d['r']
        for nt in range(28): items.append((t, 6, word(T_W3, rb, nt)))
        t += d['w']
        for nt in range(8):
            for ks in range(4): items.append((t, 7, word(T_W4, rb, nt, ks)))
        t += d['w']
        for c in range(BM // 8): items.append((t, 8, word(T_R3, rb, c)))
    items.sort(key=lambda x: (x[0], -x[1]))
    return [w for _, _, w in items]

def mk_srd(A, n, karg, size):
    A('s_load_dwordx2 s[%d:%d], s[0:1], %d' % (n, n + 1, karg))
    A('s_mov_b32 s%d, %d' % (n + 2, size))
    A('s_mov_b32 s%d, 0x00020000' % (n + 3))
    A('s_waitcnt lgkmcnt(0)')
def ws_srd(A, n):
    for i in range(4): A('s_mov_b32 s%d, s%d' % (n + i, 8 + i))
def gemm_params(A, lda, ldb, ldc, nk, mode, shift=0):
    A('s_mov_b32 s%d, %d' % (sLda, lda)); A('s_mov_b32 s%d, %d' % (sLdb, ldb)); A('s_mov_b32 s%d, %d' % (sLdc, ldc))
    A('s_mov_b32 s%d, %d' % (sNk, nk)); A('s_mov_b32 s%d, %d' % (sShift, shift)); A('s_mov_b32 s%d, %d' % (sMode, mode))

def wait_flags(A, masklo=None):
    Ld = A.uid('wf'); Ll = A.uid('wl')
    A('v_lshrrev_b32 v250, 6, v0')
    A('s_nop 0')
    A('v_readfirstlane_b32 s%d, v250' % sSp)
    A('s_nop 3')
    A('s_cmp_lg_u32 s%d, 0' % sSp)
    A('s_cbranch_scc1 %s' % Ld)
    A('v_cmp_gt_u32 vcc, s%d, v0' % sCnt)
    A('s_mov_b64 s[%d:%d], vcc' % (sMsk, sMsk + 1))
    if masklo is not None:
        A('s_and_b32 s%d, s%d, 0x%x' % (sMsk, sMsk, masklo))
    A('v_lshlrev_b32 v250, 2, v0')
    A('s_mov_b32 s%d, 0' % sSp)
    A('s_mov_b64 exec, s[%d:%d]' % (sMsk, sMsk + 1))
    A.label(Ll)
    A('buffer_load_dword v251, v250, s[8:11], s%d offen sc1' % sDep)
    A('s_add_u32 s%d, s%d, 1' % (sSp, sSp))
    A('s_cmp_gt_u32 s%d, %d' % (sSp, SPIN))
    A('s_cbranch_scc1 worker_abort')
    A('s_waitcnt vmcnt(0)')
    A('v_cmp_eq_u32 vcc, 0, v251')
    A('s_cbranch_vccz %s_ok' % Ll)
    A('s_sleep 4')
    A('s_branch %s' % Ll)
    A.label(Ll + '_ok')
    A('s_mov_b64 exec, -1')
    A.label(Ld)
    A('s_barrier')

def signal_flag(A):
    A('s_waitcnt vmcnt(0)')
    A('s_barrier')
    L = A.uid('sf')
    A('v_cmp_eq_u32 vcc, 0, v0')
    A('s_and_saveexec_b64 s[%d:%d], vcc' % (sMsk, sMsk + 1))
    A('s_cbranch_execz %s' % L)
    A('v_mov_b32 v250, 0'); A('v_mov_b32 v251, 1')
    A('buffer_store_dword v251, v250, s[8:11], s%d offen sc1' % sFlag)
    A.label(L)
    A('s_mov_b64 exec, s[%d:%d]' % (sMsk, sMsk + 1))

def kvwait(A, seg_sreg):
    c = chain
    L = A.uid('kv')
    A('s_lshr_b32 s%d, s%d, 2' % (c.sT0, seg_sreg))
    A('s_mul_i32 s%d, s%d, 384' % (c.sT0, c.sT0))
    A('s_lshl_b32 s%d, s%d, 2' % (c.sT1, c.sH))
    A('s_add_u32 s%d, s%d, s%d' % (c.sT0, c.sT0, c.sT1))
    A('s_add_u32 s%d, s%d, %d' % (c.sT0, c.sT0, FQKV + 128))
    A('s_mov_b32 s%d, 0' % c.sSPIN)
    A('v_mov_b32 v34, 0')
    A.label(L)
    A('buffer_load_dword v32, v34, s[8:11], s%d offen sc1' % c.sT0)
    A('buffer_load_dword v33, v34, s[8:11], s%d offen offset:128 sc1' % c.sT0)
    A('s_add_u32 s%d, s%d, 1' % (c.sSPIN, c.sSPIN))
    A('s_cmp_gt_u32 s%d, %d' % (c.sSPIN, SPIN))
    A('s_cbranch_scc1 chain_abort')
    A('s_waitcnt vmcnt(0)')
    A('v_and_b32 v32, v32, v33')
    A('v_cmp_eq_u32 vcc, 0, v32')
    A('s_cbranch_vccnz %s' % L)

def gen(step=3.0, intra='', chain_kw=None):
    A = Asm()
    G = Gemm(A, BM, 4)
    A.raw('; @launch kernel=prep_kernel grid=(256,1,1) block=(256,1,1) lds=0')
    A.raw('; @launch kernel=main_kernel grid=(256,1,1) block=(256,1,1) lds=163840')
    A.raw('.amdgcn_target "amdgcn-amd-amdhsa--gfx950"')
    A.raw('.text')
    kernel_header(A, 'prep_kernel')
    A('s_cmp_ge_u32 s2, 256'); A('s_cbranch_scc1 L_exit_prep')
    A('s_load_dwordx2 s[4:5], s[0:1], %d' % D_WS)
    A('s_waitcnt lgkmcnt(0)')
    A('s_mov_b32 s8, s4'); A('s_mov_b32 s9, s5'); A('s_mov_b32 s10, %d' % WS_SIZE); A('s_mov_b32 s11, 0x00020000')
    mk_srd(A, SRD_R, A_X, 4 * MB)
    A('s_lshl_b32 s%d, s2, 3' % sRow)
    unit_ln1(A)
    A('v_mov_b32 v8, 0'); A('v_mov_b32 v9, 0'); A('v_mov_b32 v10, 0'); A('v_mov_b32 v11, 0')
    A('v_lshlrev_b32 v12, 4, v0')
    A('s_cmp_ge_u32 s2, 32'); A('s_cbranch_scc1 L_z1')
    A('s_lshl_b32 s%d, s2, 12' % sT0)
    A('s_add_u32 s%d, s%d, %d' % (sT0, sT0, FLG_SEG))
    A('buffer_store_dwordx4 v[8:11], v12, s[8:11], s%d offen' % sT0)
    A.label('L_z1')
    A('s_cmp_lg_u32 s2, 32'); A('s_cbranch_scc1 L_z2')
    A('s_mov_b32 s%d, %d' % (sT0, GB0))
    A('buffer_store_dwordx4 v[8:11], v12, s[8:11], s%d offen' % sT0)
    A('s_mov_b32 s%d, %d' % (sT0, GB + 2048 * 2048))
    A('buffer_store_dwordx4 v[8:11], v12, s[8:11], s%d offen' % sT0)
    A.label('L_z2')
    A.label('L_exit_prep')
    A('s_endpgm')
    kernel_header(A, 'main_kernel')
    A('s_cmp_ge_u32 s2, 256'); A('s_cbranch_scc1 L_exit_main')
    A('s_load_dwordx2 s[4:5], s[0:1], %d' % D_WS)
    A('s_load_dwordx2 s[6:7], s[0:1], %d' % D_DBG)
    A('s_getreg_b32 s16, hwreg(HW_REG_XCC_ID)')
    A('s_and_b32 s16, s16, 15')
    A('s_waitcnt lgkmcnt(0)')
    A('s_mov_b32 s8, s4'); A('s_mov_b32 s9, s5'); A('s_mov_b32 s10, %d' % WS_SIZE); A('s_mov_b32 s11, 0x00020000')
    A('v_cmp_eq_u32 vcc, 0, v0')
    A('s_and_saveexec_b64 s[20:21], vcc')
    A('s_cbranch_execz L_nt')
    A('s_lshl_b32 s17, s16, 2')
    A('v_mov_b32 v1, s17'); A('v_mov_b32 v2, 1')
    A('global_atomic_add v3, v1, v2, s[6:7] sc0 sc1')
    A('s_waitcnt vmcnt(0)')
    A('v_mov_b32 v1, 0'); A('ds_write_b32 v1, v3'); A('s_waitcnt lgkmcnt(0)')
    A.label('L_nt')
    A('s_mov_b64 exec, s[20:21]')
    A('s_barrier')
    A('v_mov_b32 v1, 0'); A('ds_read_b32 v3, v1'); A('s_waitcnt lgkmcnt(0)')
    A('v_readfirstlane_b32 s17, v3')
    A('s_barrier')
    A('s_cmp_ge_u32 s17, 32'); A('s_cbranch_scc1 L_exit_main')
    A('s_cmp_ge_u32 s16, 2'); A('s_cbranch_scc1 worker')
    chain.gen_chain(A, intra=intra, kvwait=kvwait, **(chain_kw or {}))
    A.label('worker')
    A('s_sub_u32 s%d, s16, 2' % sXW)
    A('s_mov_b32 s%d, s17' % sTK)
    A('s_cmp_ge_u32 s%d, 6' % sXW); A('s_cbranch_scc1 L_exit_main')
    A('s_mov_b32 s%d, 0' % sIt)
    for n in (SRD_A, SRD_B, SRD_C, SRD_R): ws_srd(A, n)
    A.label('qkv_next')
    A('s_cmp_ge_u32 s%d, %d' % (sIt, (NRB * 96) // 192)); A('s_cbranch_scc1 queue')
    A('s_lshr_b32 s%d, s%d, 4' % (sRB, sTK))
    A('s_lshl_b32 s%d, s%d, 1' % (sT0, sIt))
    A('s_add_u32 s%d, s%d, s%d' % (sRB, sRB, sT0))
    A('s_and_b32 s%d, s%d, 15' % (sT1, sTK))
    A('s_cmp_lt_u32 s%d, 4' % sXW); A('s_cselect_b32 s%d, 11, 10' % sT2)
    A('s_cmp_lt_u32 s%d, s%d' % (sT1, sT2))
    A('s_cbranch_scc0 qkv_q')
    A('s_mul_i32 s%d, s%d, 6' % (sT3, sT1))
    A('s_add_u32 s%d, s%d, s%d' % (sT3, sT3, sXW))
    A('s_lshr_b32 s%d, s%d, 5' % (sKS, sT3))
    A('s_add_u32 s%d, s%d, 1' % (sKS, sKS))
    A('s_and_b32 s%d, s%d, 31' % (sNT, sT3))
    A('s_branch qkv_go')
    A.label('qkv_q')
    A('s_sub_u32 s%d, s%d, s%d' % (sT3, sT1, sT2))
    A('s_mul_i32 s%d, s%d, 5' % (sT4, sXW))
    A('s_sub_u32 s%d, s%d, 4' % (sT5, sXW))
    A('s_mul_i32 s%d, s%d, 6' % (sT5, sT5))
    A('s_add_u32 s%d, s%d, 20' % (sT5, sT5))
    A('s_cmp_lt_u32 s%d, 4' % sXW); A('s_cselect_b32 s%d, s%d, s%d' % (sT4, sT4, sT5))
    A('s_add_u32 s%d, s%d, s%d' % (sNT, sT3, sT4))
    A('s_mov_b32 s%d, 0' % sKS)
    A.label('qkv_go')
    A('s_add_u32 s%d, s%d, 1' % (sIt, sIt))
    A('s_lshl_b32 s%d, s%d, 3' % (sT0, sKS))
    A('s_add_u32 s%d, s%d, %d' % (sT0, sT0, A_WQ))
    A('s_load_dwordx2 s[%d:%d], s[0:1], s%d' % (SRD_B, SRD_B + 1, sT0))
    A('s_mov_b32 s%d, %d' % (SRD_B + 2, 8 * MB)); A('s_mov_b32 s%d, 0x00020000' % (SRD_B + 3))
    ws_srd(A, SRD_A); ws_srd(A, SRD_C)
    gemm_params(A, 2048, 8192, 8192, 16, 0)
    A('s_mul_i32 s%d, s%d, %d' % (sAoff, sRB, BM * 2048))
    A('s_add_u32 s%d, s%d, %d' % (sAoff, sAoff, XLN))
    A('s_lshl_b32 s%d, s%d, 8' % (sBoff, sNT))
    A('s_mul_i32 s%d, s%d, %d' % (sCoff, sRB, BM * 8192))
    A('s_add_u32 s%d, s%d, s%d' % (sCoff, sCoff, sBoff))
    A('s_lshl_b32 s%d, s%d, 24' % (sT0, sKS))
    A('s_add_u32 s%d, s%d, s%d' % (sCoff, sCoff, sT0))
    A('s_add_u32 s%d, s%d, %d' % (sCoff, sCoff, QX))
    A('s_mul_i32 s%d, s%d, 3' % (sT0, sRB)); A('s_add_u32 s%d, s%d, s%d' % (sT0, sT0, sKS))
    A('s_lshl_b32 s%d, s%d, 5' % (sT0, sT0)); A('s_add_u32 s%d, s%d, s%d' % (sT0, sT0, sNT))
    A('s_lshl_b32 s%d, s%d, 2' % (sT0, sT0)); A('s_add_u32 s%d, s%d, %d' % (sFlag, sT0, FQKV))
    A('s_mov_b32 s%d, 1' % sItem)
    A('s_waitcnt lgkmcnt(0)')
    A('s_branch gemm_run')
    A.label('queue')
    A('v_cmp_eq_u32 vcc, 0, v0')
    A('s_and_saveexec_b64 s[%d:%d], vcc' % (sMsk, sMsk + 1))
    A('s_cbranch_execz q_nt')
    A('v_mov_b32 v250, 0'); A('v_mov_b32 v251, 1')
    A('s_mov_b32 s%d, %d' % (sT0, QCTR))
    A('buffer_atomic_add v251, v250, s[8:11], s%d offen sc0 sc1' % sT0)
    A('s_waitcnt vmcnt(0)')
    A('v_mov_b32 v250, 163836'); A('ds_write_b32 v250, v251'); A('s_waitcnt lgkmcnt(0)')
    A.label('q_nt')
    A('s_mov_b64 exec, s[%d:%d]' % (sMsk, sMsk + 1))
    A('s_barrier')
    A('v_mov_b32 v250, 163836'); A('ds_read_b32 v251, v250'); A('s_waitcnt lgkmcnt(0)')
    A('v_readfirstlane_b32 s%d, v251' % sQi)
    A('s_barrier')
    Q = build_queue(step)
    A('s_cmp_ge_u32 s%d, %d' % (sQi, len(Q))); A('s_cbranch_scc1 L_exit_main')
    A('s_getpc_b64 s[%d:%d]' % (sTab, sTab + 1))
    A.label('q_pc')
    A('s_add_u32 s%d, s%d, qtable-q_pc' % (sTab, sTab))
    A('s_addc_u32 s%d, s%d, 0' % (sTab + 1, sTab + 1))
    A('s_lshl_b32 s%d, s%d, 2' % (sT0, sQi))
    A('s_load_dword s%d, s[%d:%d], s%d' % (sT1, sTab, sTab + 1, sT0))
    A('s_waitcnt lgkmcnt(0)')
    A('s_lshr_b32 s%d, s%d, 28' % (sT2, sT1))
    A('s_bfe_u32 s%d, s%d, 0x80014' % (sRB, sT1))
    A('s_bfe_u32 s%d, s%d, 0x8000c' % (sNT, sT1))
    A('s_bfe_u32 s%d, s%d, 0x80004' % (sKS, sT1))
    A('s_mov_b32 s%d, 0' % sItem)
    for t, lab in ((T_ATT, 'u_att'), (T_O, 'u_o'), (T_R1, 'u_r1'), (T_W1, 'u_w1'), (T_W2, 'u_w2'), (T_R2, 'u_r2'), (T_W3, 'u_w3'), (T_W4, 'u_w4'), (T_R3, 'u_r3')):
        A('s_cmp_eq_u32 s%d, %d' % (sT2, t)); A('s_cbranch_scc1 %s' % lab)
    A('s_branch L_exit_main')
    def dep(base, idx_expr_code, count):
        idx_expr_code()
        A('s_lshl_b32 s%d, s%d, 2' % (sT0, sT0)); A('s_add_u32 s%d, s%d, %d' % (sDep, sT0, base))
        A('s_mov_b32 s%d, %d' % (sCnt, count))
    def own(base, code):
        code()
        A('s_lshl_b32 s%d, s%d, 2' % (sT0, sT0)); A('s_add_u32 s%d, s%d, %d' % (sFlag, sT0, base))
    def mul_add(dst, a_, mul, b_):
        A('s_mul_i32 s%d, s%d, %d' % (dst, a_, mul))
        if b_ is not None: A('s_add_u32 s%d, s%d, s%d' % (dst, dst, b_))
    A.label('u_att')
    A('s_lshr_b32 s%d, s%d, 2' % (sT5, sRB))
    for mat in range(3):
        def code(mat=mat):
            A('s_mul_i32 s%d, s%d, 96' % (sT0, sT5)); A('s_lshl_b32 s%d, s%d, 2' % (sT1, sNT)); A('s_add_u32 s%d, s%d, s%d' % (sT0, sT0, sT1))
            A('s_add_u32 s%d, s%d, %d' % (sT0, sT0, mat * 32))
        dep(FQKV, code, 4); wait_flags(A)
    def code():
        A('s_lshl_b32 s%d, s%d, 8' % (sT0, sRB)); A('s_lshl_b32 s%d, s%d, 5' % (sT1, sNT)); A('s_add_u32 s%d, s%d, s%d' % (sT0, sT0, sT1))
    dep(FLG_SEG, code, 32); wait_flags(A, masklo=0xEEEEEEEE)
    def code():
        A('s_lshr_b32 s%d, s%d, 2' % (sT0, sRB)); A('s_lshl_b32 s%d, s%d, 5' % (sT0, sT0))
        A('s_lshr_b32 s%d, s%d, 1' % (sT1, sNT)); A('s_lshl_b32 s%d, s%d, 3' % (sT1, sT1)); A('s_add_u32 s%d, s%d, s%d' % (sT0, sT0, sT1))
        A('s_and_b32 s%d, s%d, 3' % (sT1, sRB)); A('s_lshl_b32 s%d, s%d, 1' % (sT1, sT1)); A('s_add_u32 s%d, s%d, s%d' % (sT0, sT0, sT1))
        A('s_and_b32 s%d, s%d, 1' % (sT1, sNT)); A('s_add_u32 s%d, s%d, s%d' % (sT0, sT0, sT1))
    own(FATT, code)
    A('s_mov_b32 s%d, s%d' % (sSeg, sRB)); A('s_lshl_b32 s%d, s%d, 2' % (sHead, sNT))
    unit_att(A)
    A('s_branch unit_done')
    def splitk(lab, depbase, depcode, depcnt, ownbase, abuf, lda, kper, bkarg, bsize, ldb, pbuf):
        A.label(lab)
        dep(depbase, depcode, depcnt); wait_flags(A)
        own(ownbase, lambda: (A('s_lshl_b32 s%d, s%d, 5' % (sT0, sRB)), A('s_lshl_b32 s%d, s%d, 2' % (sT1, sNT)), A('s_add_u32 s%d, s%d, s%d' % (sT0, sT0, sT1)), A('s_add_u32 s%d, s%d, s%d' % (sT0, sT0, sKS))))
        mk_srd(A, SRD_B, bkarg, bsize); ws_srd(A, SRD_A); ws_srd(A, SRD_C)
        gemm_params(A, lda, ldb, 4096, kper // 64, 3)
        A('s_mul_i32 s%d, s%d, %d' % (sAoff, sRB, BM * lda))
        A('s_mul_i32 s%d, s%d, %d' % (sT0, sKS, kper * 2)); A('s_add_u32 s%d, s%d, s%d' % (sAoff, sAoff, sT0))
        A('s_add_u32 s%d, s%d, %d' % (sAoff, sAoff, abuf))
        A('s_mul_i32 s%d, s%d, %d' % (sBoff, sKS, kper * ldb))
        A('s_lshl_b32 s%d, s%d, 8' % (sT0, sNT)); A('s_add_u32 s%d, s%d, s%d' % (sBoff, sBoff, sT0))
        A('s_mul_i32 s%d, s%d, %d' % (sCoff, sRB, BM * 4096))
        A('s_lshl_b32 s%d, s%d, 9' % (sT0, sNT)); A('s_add_u32 s%d, s%d, s%d' % (sCoff, sCoff, sT0))
        A('s_lshl_b32 s%d, s%d, 23' % (sT0, sKS)); A('s_add_u32 s%d, s%d, s%d' % (sCoff, sCoff, sT0))
        A('s_add_u32 s%d, s%d, %d' % (sCoff, sCoff, pbuf))
        A('s_branch gemm_run')
    splitk('u_o', FATT, lambda: (A('s_lshl_b32 s%d, s%d, 5' % (sT0, sRB)), A('s_lshl_b32 s%d, s%d, 3' % (sT1, sKS)), A('s_add_u32 s%d, s%d, s%d' % (sT0, sT0, sT1))), 8,
           FO, OX, 8192, 1024, A_WO, 8 * MB, 2048, PO)
    splitk('u_w4', FW3, lambda: (A('s_lshl_b32 s%d, s%d, 5' % (sT0, sRB)), A('s_mul_i32 s%d, s%d, 7' % (sT1, sKS)), A('s_add_u32 s%d, s%d, s%d' % (sT0, sT0, sT1))), 7,
           FW4, UB, 7168, 896, B_W4, 7 * MB, 2048, P4)
    def rowu(lab, depbase, depstride, depcnt, ownbase, fn, pre=None):
        A.label(lab)
        dep(depbase, lambda: A('s_mul_i32 s%d, s%d, %d' % (sT0, sRB, depstride)), depcnt); wait_flags(A)
        if ownbase is not None:
            own(ownbase, lambda: (A('s_lshl_b32 s%d, s%d, 4' % (sT0, sRB)), A('s_add_u32 s%d, s%d, s%d' % (sT0, sT0, sNT))))
        if pre: pre()
        A('s_mul_i32 s%d, s%d, %d' % (sRow, sRB, BM)); A('s_lshl_b32 s%d, s%d, 3' % (sT0, sNT)); A('s_add_u32 s%d, s%d, s%d' % (sRow, sRow, sT0))
        fn(A)
        A('s_branch %s' % ('unit_done' if ownbase is not None else 'queue_nosig'))
    rowu('u_r1', FO, 32, 32, FR1, unit_r1, lambda: mk_srd(A, SRD_R, A_X, 4 * MB))
    rowu('u_r2', FW2, 8, 8, FR2, unit_r2)
    rowu('u_r3', FW4, 32, 32, None, unit_r3, lambda: mk_srd(A, SRD_C, D_OUT, 4 * MB))
    def plain(lab, depfn, ownbase, ownstride, abuf, bkarg, bsize, ldb, cbuf, ldc, mode, shift=0, resid=None):
        A.label(lab)
        depfn()
        own(ownbase, lambda: (A('s_mul_i32 s%d, s%d, %d' % (sT0, sRB, ownstride)), A('s_add_u32 s%d, s%d, s%d' % (sT0, sT0, sNT))))
        mk_srd(A, SRD_B, bkarg, bsize); ws_srd(A, SRD_A); ws_srd(A, SRD_C); ws_srd(A, SRD_R)
        gemm_params(A, 2048, ldb, ldc, 16, mode, shift)
        A('s_mul_i32 s%d, s%d, %d' % (sAoff, sRB, BM * 2048)); A('s_add_u32 s%d, s%d, %d' % (sAoff, sAoff, abuf))
        A('s_lshl_b32 s%d, s%d, 8' % (sBoff, sNT))
        A('s_mul_i32 s%d, s%d, %d' % (sCoff, sRB, BM * ldc)); A('s_add_u32 s%d, s%d, s%d' % (sCoff, sCoff, sBoff))
        if resid is not None: A('s_add_u32 s%d, s%d, %d' % (sRoff, sCoff, resid))
        A('s_add_u32 s%d, s%d, %d' % (sCoff, sCoff, cbuf))
        A('s_branch gemm_run')
    def d_simple(base, stride, cnt):
        def f():
            dep(base, lambda: A('s_mul_i32 s%d, s%d, %d' % (sT0, sRB, stride)), cnt); wait_flags(A)
        return f
    def d_w2():
        A('s_sub_u32 s%d, s%d, 1' % (sT1, sRB)); A('s_cmp_eq_u32 s%d, 0' % sRB); A('s_cselect_b32 s%d, 0, s%d' % (sT1, sT1))
        A('s_add_u32 s%d, s%d, 1' % (sT2, sRB)); A('s_cmp_eq_u32 s%d, %d' % (sRB, NRB - 1)); A('s_cselect_b32 s%d, s%d, s%d' % (sT2, sRB, sT2))
        A('s_sub_u32 s%d, s%d, s%d' % (sT2, sT2, sT1)); A('s_add_u32 s%d, s%d, 1' % (sT2, sT2)); A('s_lshl_b32 s%d, s%d, 3' % (sCnt, sT2))
        A('s_lshl_b32 s%d, s%d, 5' % (sT0, sT1)); A('s_add_u32 s%d, s%d, %d' % (sDep, sT0, FW1))
        wait_flags(A)
    plain('u_w1', d_simple(FR1, 16, 16), FW1, 8, ZB, B_W1, 2 * MB, 2048, GB, 2048, 1)
    plain('u_w2', d_w2, FW2, 8, GB - 2048, B_W2, 2 * MB, 2048, X1B, 2048, 2, shift=1, resid=YB)
    plain('u_w3', d_simple(FR2, 16, 16), FW3, 32, Z2B, B_W3, 7 * MB, 7168, UB, 7168, 1)
    A.label('gemm_run')
    G.setup_lane(); G.prologue(); G.mainloop()
    A('s_cmp_eq_u32 s%d, 1' % sMode); A('s_cbranch_scc1 epi1')
    A('s_cmp_eq_u32 s%d, 2' % sMode); A('s_cbranch_scc1 epi2')
    A('s_cmp_eq_u32 s%d, 3' % sMode); A('s_cbranch_scc1 epi3')
    G.epi_bf16(); A('s_branch unit_done')
    A.label('epi1'); G.epi_bf16(gelu=True); A('s_branch unit_done')
    A.label('epi2'); G.epi_bf16(resid=True); A('s_branch unit_done')
    A.label('epi3'); G.epi_f32()
    A.label('unit_done')
    signal_flag(A)
    A('s_cmp_eq_u32 s%d, 1' % sItem); A('s_cbranch_scc1 qkv_next')
    A('s_branch queue')
    A.label('queue_nosig')
    A('s_waitcnt vmcnt(0)')
    A('s_barrier')
    A('s_branch queue')
    A.label('worker_abort')
    A('s_mov_b64 exec, 1')
    A('v_mov_b32 v250, 1'); A('v_mov_b32 v251, 132')
    A('global_atomic_add v251, v250, s[6:7] sc1')
    A('s_waitcnt vmcnt(0)')
    A.label('L_exit_main')
    A('s_endpgm')
    A.raw('.p2align 2')
    A.raw('.type qtable,@object')
    A.label('qtable')
    for i in range(0, len(Q), 8):
        A.raw('    .long ' + ', '.join('0x%08x' % w for w in Q[i:i + 8]))
    A.raw('.section .rodata,"a"')
    A.raw('.p2align 6'); kernel_desc(A, 'prep_kernel', vgpr=128, accum=128)
    A.raw('.p2align 6'); kernel_desc(A, 'main_kernel')
    return A.text()
if __name__ == '__main__':
    kw = {}
    for x in sys.argv[2:]:
        k, v = x.split('=')
        kw[k] = float(v) if k == 'step' else v
    open(sys.argv[1], 'w').write(gen(**kw))
```

```python
from asmlib import *
from layout import *
import struct, math

LDS_WO = 0
LDS_XB = 131072
LDS_XV = LDS_XB + 12288
LDS_RED = LDS_XB + 16384
LDS_KX = 151552
LDS_VX = 159744
LDS_CHAIN_END = 163840
SPIN_LIMIT = 1 << 22
RDELTA = PART - MEMB

SRD_WS = 8
SRD_T = 12
S_DBG = 6
sX, sC, sW, sH, sJ, sS = 16, 17, 18, 19, 20, 21
sMEMc, sMEMn, sMEMp, sQKc, sQKp, sOBc, sOBp, sMRc, sQKv, sKMs, sVMs, sFLo, sDMo, sMRp, sOBc2 = range(22, 37)
sT0, sT1, sT2, sT3 = 37, 38, 39, 40
sSPIN = 41
sHI, sN8 = 42, 44
sC_, sFE = 46, 47
sTM = 48
sLO32 = 54
sKMM = 58
sACC = 60
sRT = 80
sKMb, sVMb, sFLb, sQKb, sMEMb, sMRb, sOBb, sKXb, sVXb = range(86, 95)
OOBS = 0x70000000
OOBV = 0x7ff00000

def wreg(kl, mu, t):
    idx = kl * 12 + mu * 4 + t
    return 256 + idx * 8 if idx < 32 else 128 + (idx - 32) * 8

def gen_chain(A, intra='', timing=False, nsteps=64, d4=0, d6=0, d1=0, kvwait=None, looptime=False, steptrace=False, rpos=0, dbgwait=0, noflag=0, nokm=0, finish=None):
    I = intra
    def st(x): return (x + ' ' + I).rstrip()
    WS = 's[%d:%d]' % (SRD_WS, SRD_WS + 3)
    (vL16, vXq0, vXq1, vXq2, vXq3, vXqR, vXvW, vXvR, vQkSt, vQkLd, vQkL, vOSt, vIdx, vBias, vKx0, vKx1, vKx2, vKx3, vVx, vWoR,
     vKmSt, vVmSt, vD0, vD1, vD2, vD3, vPq, vPo, vPm, vRedW, vRedR, vFlg, vVM, vVM1, vOnes, vOnes1) = range(36)
    vXq = [vXq0, vXq1, vXq2, vXq3]; vKxD4 = [vD0, vD1, vD2, vD3]
    vT = 36
    W0 = 40
    vLane, vG, vN = 120, 121, 122
    t0, t1, t2, t3 = 123, 124, 125, 126
    A.c('=== chain v4 ===')
    A('v_and_b32 v%d, 63, v0' % vLane)
    A('v_lshrrev_b32 v%d, 6, v0' % t0)
    A('s_nop 0')
    A('v_readfirstlane_b32 s%d, v%d' % (sW, t0))
    A('v_lshrrev_b32 v%d, 4, v%d' % (vG, vLane))
    A('v_and_b32 v%d, 15, v%d' % (vN, vLane))
    A('s_lshr_b32 s%d, s%d, 1' % (sT0, sC))
    A('s_and_b32 s%d, s%d, 1' % (sJ, sC))
    A('s_lshl_b32 s%d, s%d, 4' % (sH, sX))
    A('s_add_u32 s%d, s%d, s%d' % (sH, sH, sT0))
    A('v_cmp_le_u32 s[%d:%d], 32, v%d' % (sHI, sHI + 1, vLane))
    A('v_cmp_gt_u32 s[%d:%d], 8, v%d' % (sN8, sN8 + 1, vN))
    cval = struct.unpack('<I', struct.pack('<f', (128 ** -0.5) * math.log2(math.e)))[0]
    A('s_mov_b32 s%d, 0x%08x' % (sC_, cval))
    A('s_mov_b32 s%d, 0xfffefffe' % sFE)
    A('s_mov_b32 s%d, -1' % sLO32); A('s_mov_b32 s%d, 0' % (sLO32 + 1))
    A('v_lshlrev_b32 v%d, 4, v%d' % (vL16, vLane))
    for t in range(4):
        A('s_sub_u32 s%d, s%d, %d' % (sT0, sW, t + 1)); A('s_and_b32 s%d, s%d, 3' % (sT0, sT0)); A('s_lshl_b32 s%d, s%d, 10' % (sT0, sT0))
        A('s_add_u32 s%d, s%d, %d' % (sT0, sT0, LDS_XB + t * 3072))
        A('v_add_u32 v%d, s%d, v%d' % (vXq[t], sT0, vL16))
    A('s_mul_i32 s%d, s%d, 3072' % (sT0, sW)); A('s_add_u32 s%d, s%d, %d' % (sT0, sT0, LDS_XB))
    A('v_add_u32 v%d, s%d, v%d' % (vXqR, sT0, vL16))
    A('s_lshl_b32 s%d, s%d, 11' % (sT0, sW)); A('s_add_u32 s%d, s%d, %d' % (sT0, sT0, LDS_XV))
    A('v_add_u32 v%d, s%d, v%d' % (vXvW, sT0, vL16))
    A('v_and_b32 v%d, 31, v%d' % (t0, vLane)); A('v_lshlrev_b32 v%d, 4, v%d' % (t0, t0))
    A('s_lshr_b32 s%d, s%d, 1' % (sT0, sW)); A('s_lshl_b32 s%d, s%d, 10' % (sT0, sT0))
    A('s_and_b32 s%d, s%d, 1' % (sT1, sW)); A('s_lshl_b32 s%d, s%d, 9' % (sT1, sT1))
    A('s_add_u32 s%d, s%d, s%d' % (sT0, sT0, sT1)); A('s_add_u32 s%d, s%d, %d' % (sT0, sT0, LDS_XV))
    A('v_add_u32 v%d, s%d, v%d' % (vXvR, sT0, t0))
    A('s_lshl_b32 s%d, s%d, 15' % (sT0, sW))
    A('v_add_u32 v%d, s%d, v%d' % (vWoR, sT0, vL16))
    A('s_lshl_b32 s%d, s%d, 10' % (sT0, sW)); A('s_add_u32 s%d, s%d, %d' % (sT0, sT0, LDS_RED))
    A('v_bfe_u32 v%d, v%d, 4, 1' % (t0, vLane))
    A('v_lshlrev_b32 v%d, 9, v%d' % (vRedW, t0))
    A('v_lshrrev_b32 v%d, 5, v%d' % (t0, vLane))
    A('v_lshl_add_u32 v%d, v%d, 6, v%d' % (vRedW, t0, vRedW))
    A('v_lshl_add_u32 v%d, v%d, 2, v%d' % (vRedW, vN, vRedW))
    A('v_add_u32 v%d, s%d, v%d' % (vRedW, sT0, vRedW))
    A('v_and_b32 v%d, 7, v%d' % (t0, vLane))
    A('v_lshlrev_b32 v%d, 7, v%d' % (vRedR, t0))
    A('v_bfe_u32 v%d, v%d, 3, 2' % (t0, vLane))
    A('v_lshl_add_u32 v%d, v%d, 5, v%d' % (vRedR, t0, vRedR))
    A('v_add_u32 v%d, %d, v%d' % (vRedR, LDS_RED, vRedR))
    A('v_and_b32 v%d, 7, v%d' % (t0, vN))
    A('v_lshrrev_b32 v%d, 3, v%d' % (t1, vN))
    A('v_lshrrev_b32 v%d, 5, v%d' % (t3, vLane))
    A('v_lshlrev_b32 v%d, 11, v%d' % (vQkSt, t3))
    A('v_lshl_add_u32 v%d, v%d, 7, v%d' % (vQkSt, t1, vQkSt))
    A('v_and_b32 v%d, 1, v%d' % (t2, vG))
    A('v_lshl_add_u32 v%d, v%d, 6, v%d' % (vQkSt, t2, vQkSt))
    A('v_lshl_add_u32 v%d, v%d, 1, v%d' % (vQkSt, t0, vQkSt))
    A('s_lshl_b32 s%d, s%d, 10' % (sT0, sJ)); A('s_lshl_b32 s%d, s%d, 8' % (sT1, sW)); A('s_add_u32 s%d, s%d, s%d' % (sT0, sT0, sT1))
    A('v_add_u32 v%d, s%d, v%d' % (vQkSt, sT0, vQkSt))
    A('v_lshlrev_b32 v%d, 7, v%d' % (vQkLd, vG))
    A('v_lshl_add_u32 v%d, v%d, 4, v%d' % (vQkLd, t0, vQkLd))
    A('v_add_u32 v%d, %d, v%d' % (vQkL, LDS_XB, vQkLd))
    A('v_lshlrev_b32 v%d, 4, v%d' % (vOSt, vN))
    A('v_lshrrev_b32 v%d, 1, v%d' % (t3, vG))
    A('v_lshl_add_u32 v%d, v%d, 7, v%d' % (vOSt, t3, vOSt))
    A('v_lshl_add_u32 v%d, v%d, 3, v%d' % (vOSt, t2, vOSt))
    A('s_lshl_b32 s%d, s%d, 10' % (sT1, sC)); A('s_lshl_b32 s%d, s%d, 8' % (sT2, sW)); A('s_add_u32 s%d, s%d, s%d' % (sT1, sT1, sT2))
    A('v_add_u32 v%d, s%d, v%d' % (vOSt, sT1, vOSt))
    A('v_mov_b32 v%d, 0x%x' % (t3, OOBV))
    A('v_cndmask_b32 v%d, v%d, v%d, s[%d:%d]' % (vOSt, t3, vOSt, sN8, sN8 + 1))
    A('v_mov_b32 v%d, 0x4444' % vIdx); A('v_mov_b32 v%d, 0xeeee' % t2)
    A('v_cndmask_b32 v%d, v%d, v%d, s[%d:%d]' % (vIdx, t2, vIdx, sN8, sN8 + 1))
    A('v_mov_b32 v%d, 0' % vBias); A('v_mov_b32 v%d, 0x7149f2ca' % t2)
    A('v_cndmask_b32 v%d, v%d, v%d, s[%d:%d]' % (vBias, vBias, t2, sHI, sHI + 1))
    A('v_mov_b32 v%d, 0x3f803f80' % vOnes); A('v_mov_b32 v%d, 0x3f803f80' % vOnes1)
    A('v_xor_b32 v%d, v%d, v%d' % (t2, vG, vN)); A('v_lshlrev_b32 v%d, 4, v%d' % (t2, t2)); A('v_lshl_add_u32 v%d, v%d, 8, v%d' % (t2, vN, t2))
    A('v_add_u32 v%d, %d, v%d' % (vKx0, LDS_KX, t2))
    for k in range(1, 4): A('v_xor_b32 v%d, %d, v%d' % (vKx0 + k, k * 64, vKx0))
    A('v_lshrrev_b32 v%d, 2, v%d' % (t2, vN)); A('v_lshl_add_u32 v%d, v%d, 2, v%d' % (t2, vG, t2))
    A('v_lshrrev_b32 v%d, 1, v%d' % (t3, t2)); A('v_and_b32 v%d, 3, v%d' % (t3, t3)); A('v_xor_b32 v%d, s%d, v%d' % (t3, sW, t3))
    A('v_lshlrev_b32 v%d, 5, v%d' % (t3, t3)); A('v_lshl_add_u32 v%d, v%d, 7, v%d' % (t3, t2, t3))
    A('v_and_b32 v%d, 3, v%d' % (t2, vN)); A('v_lshl_add_u32 v%d, v%d, 3, v%d' % (t3, t2, t3))
    A('v_add_u32 v%d, %d, v%d' % (vVx, LDS_VX, t3))
    A('v_lshlrev_b32 v%d, 4, v%d' % (vKmSt, vG)); A('v_lshl_add_u32 v%d, v%d, 13, v%d' % (vKmSt, vN, vKmSt))
    A('v_lshrrev_b32 v%d, 2, v%d' % (t2, vN))
    A('v_cmp_eq_u32 s[%d:%d], s%d, v%d' % (sKMM, sKMM + 1, sJ, t2))
    A('v_mov_b32 v%d, 0x%x' % (t3, OOBV))
    A('v_lshlrev_b32 v%d, 3, v%d' % (vVmSt, vLane))
    A('v_cndmask_b32 v%d, v%d, v%d, s[%d:%d]' % (vKmSt, t3, vKmSt, sKMM, sKMM + 1))
    A('v_cndmask_b32 v%d, v%d, v%d, s[%d:%d]' % (vVmSt, vVmSt, t3, sHI, sHI + 1))
    A('v_cmp_eq_u32 vcc, 0, v%d' % vLane); A('s_nop 1'); A('v_cndmask_b32 v%d, v%d, 0, vcc' % (vFlg, t3))
    for i in range(4):
        A('v_add_u32 v%d, %d, v%d' % (t2, 4 * i, vG)); A('v_xor_b32 v%d, v%d, v%d' % (t3, t2, vN)); A('v_lshlrev_b32 v%d, 4, v%d' % (t3, t3))
        A('v_lshl_add_u32 v%d, v%d, 13, v%d' % (t3, t2, t3)); A('v_subrev_u32 v%d, %d, v%d' % (vKxD4[i], 1024 * i, t3))
    Lw3 = A.uid('w3')
    A('s_cmp_lg_u32 s%d, 3' % sW); A('s_cbranch_scc1 %s' % Lw3)
    for i in range(4):
        A('v_lshrrev_b32 v%d, 3, v%d' % (t2, vLane)); A('v_add_u32 v%d, %d, v%d' % (t2, 8 * i, t2))
        A('v_lshrrev_b32 v%d, 1, v%d' % (t3, t2)); A('v_and_b32 v%d, 3, v%d' % (t3, t3))
        A('v_bfe_u32 v%d, v%d, 1, 2' % (t1, vLane)); A('v_xor_b32 v%d, v%d, v%d' % (t3, t3, t1)); A('v_lshlrev_b32 v%d, 5, v%d' % (t3, t3))
        A('v_and_b32 v%d, 1, v%d' % (t1, vLane)); A('v_lshl_add_u32 v%d, v%d, 4, v%d' % (t3, t1, t3))
        A('v_lshl_add_u32 v%d, v%d, 13, v%d' % (t3, t2, t3)); A('v_subrev_u32 v%d, %d, v%d' % (vKxD4[i], 1024 * i, t3))
    A.label(Lw3)
    A('v_bfe_u32 v%d, v%d, 4, 1' % (t2, vLane)); A('v_lshlrev_b32 v%d, 11, v%d' % (vPq, t2)); A('v_lshl_add_u32 v%d, v%d, 4, v%d' % (vPq, vN, vPq))
    A('s_lshl_b32 s%d, s%d, 10' % (sT0, sJ)); A('s_lshl_b32 s%d, s%d, 8' % (sT1, sW)); A('s_add_u32 s%d, s%d, s%d' % (sT0, sT0, sT1))
    A('v_add_u32 v%d, s%d, v%d' % (vPq, sT0, vPq))
    A('s_lshl_b32 s%d, s%d, 10' % (sT0, sC)); A('s_add_u32 s%d, s%d, s%d' % (sT0, sT0, sT1))
    A('v_add_u32 v%d, s%d, v%d' % (vPo, sT0, vL16))
    A('s_lshl_b32 s%d, s%d, 9' % (sT0, sC)); A('v_add_u32 v%d, s%d, v%d' % (vPm, sT0, vL16))
    A('v_mov_b32 v%d, 0x%x' % (t3, OOBV))
    A('v_cndmask_b32 v%d, v%d, v%d, s[%d:%d]' % (vPq, vPq, t3, sHI, sHI + 1))
    A('v_cndmask_b32 v%d, v%d, v%d, s[%d:%d]' % (vPm, vPm, t3, sHI, sHI + 1))
    A('v_cmp_le_u32 vcc, 16, v%d' % vLane); A('s_nop 1'); A('v_cndmask_b32 v%d, v%d, v%d, vcc' % (vPo, vPo, t3))
    A('s_lshl_b32 s%d, s%d, 8' % (sT0, sH)); A('s_lshl_b32 s%d, s%d, 6' % (sT1, sW))
    A('s_add_u32 s%d, s%d, s%d' % (sKMb, sT0, sT1)); A('s_add_u32 s%d, s%d, %d' % (sKMb, sKMb, KM))
    A('s_lshl_b32 s%d, s%d, 3' % (sT0, sH)); A('s_lshl_b32 s%d, s%d, 2' % (sT1, sJ))
    A('s_add_u32 s%d, s%d, s%d' % (sT0, sT0, sT1)); A('s_add_u32 s%d, s%d, s%d' % (sT0, sT0, sW))
    A('s_lshl_b32 s%d, s%d, 8' % (sVMb, sT0)); A('s_add_u32 s%d, s%d, %d' % (sVMb, sVMb, VMF))
    A('s_lshl_b32 s%d, s%d, 2' % (sFLb, sT0)); A('s_add_u32 s%d, s%d, %d' % (sFLb, sFLb, FLG_SEG))
    A('s_lshl_b32 s%d, s%d, 14' % (sQKb, sH)); A('s_add_u32 s%d, s%d, %d' % (sQKb, sQKb, QKB))
    A('s_lshl_b32 s%d, s%d, 16' % (sMEMb, sX)); A('s_add_u32 s%d, s%d, %d' % (sMEMb, sMEMb, MEMB))
    A('s_xor_b32 s%d, s%d, 1' % (sT0, sX)); A('s_lshl_b32 s%d, s%d, 16' % (sMRb, sT0)); A('s_add_u32 s%d, s%d, %d' % (sMRb, sMRb, MEMB + RDELTA))
    A('s_lshl_b32 s%d, s%d, 17' % (sOBb, sX)); A('s_add_u32 s%d, s%d, %d' % (sOBb, sOBb, OB))
    A('s_lshl_b32 s%d, s%d, 8' % (sT0, sH))
    A('s_sub_u32 s%d, s%d, 1' % (sT1, sW)); A('s_lshl_b32 s%d, s%d, 17' % (sT2, sT1)); A('s_add_u32 s%d, s%d, s%d' % (sKXb, sT0, sT2)); A('s_add_u32 s%d, s%d, %d' % (sKXb, sKXb, KX))
    A('s_lshl_b32 s%d, s%d, 12' % (sVXb, sT1)); A('s_add_u32 s%d, s%d, %d' % (sVXb, sVXb, LDS_KX))
    A('s_lshl_b32 s%d, s%d, 7' % (sT1, sJ)); A('s_add_u32 s%d, s%d, s%d' % (sT0, sT0, sT1)); A('s_add_u32 s%d, s%d, %d' % (sT0, sT0, VX))
    A('s_cmp_eq_u32 s%d, 3' % sW); A('s_cselect_b32 s%d, s%d, s%d' % (sKXb, sT0, sKXb)); A('s_cselect_b32 s%d, %d, s%d' % (sVXb, LDS_VX, sVXb))
    def calc(n):
        A('s_and_b32 s%d, s%d, 3' % (sT0, n))
        A('s_lshl_b32 s%d, s%d, 14' % (sT1, sT0)); A('s_lshl_b32 s%d, s%d, 12' % (sT2, sW)); A('s_add_u32 s%d, s%d, s%d' % (sT1, sT1, sT2))
        A('s_add_u32 s%d, s%d, s%d' % (sMEMc, sMEMb, sT1)); A('s_add_u32 s%d, s%d, s%d' % (sMRc, sMRb, sT1))
        A('s_lshl_b32 s%d, s%d, 12' % (sT1, sT0)); A('s_add_u32 s%d, s%d, s%d' % (sQKc, sQKb, sT1))
        A('s_add_u32 s%d, s%d, 3' % (sT0, n)); A('s_and_b32 s%d, s%d, 3' % (sT0, sT0))
        A('s_lshl_b32 s%d, s%d, 12' % (sT1, sT0)); A('s_add_u32 s%d, s%d, s%d' % (sQKv, sQKb, sT1))
        A('s_lshl_b32 s%d, s%d, 9' % (sT1, sW)); A('s_add_u32 s%d, s%d, s%d' % (sQKv, sQKv, sT1))
        A('s_add_u32 s%d, s%d, 2' % (sT0, n)); A('s_and_b32 s%d, s%d, 3' % (sT0, sT0))
        A('s_lshl_b32 s%d, s%d, 12' % (sT1, sT0)); A('s_add_u32 s%d, s%d, s%d' % (sQKp, sQKb, sT1))
        A('s_lshl_b32 s%d, s%d, 14' % (sT1, sT0)); A('s_add_u32 s%d, s%d, s%d' % (sMEMp, sMEMb, sT1)); A('s_add_u32 s%d, s%d, %d' % (sMRp, sMEMp, RDELTA))
        A('s_lshl_b32 s%d, s%d, 15' % (sT1, sT0)); A('s_add_u32 s%d, s%d, s%d' % (sOBp, sOBb, sT1))
        A('s_sub_u32 s%d, s%d, 1' % (sT0, n))
        A('s_lshl_b32 s%d, s%d, 16' % (sT1, sT0)); A('s_add_u32 s%d, s%d, s%d' % (sKMs, sKMb, sT1)); A('s_add_u32 s%d, s%d, s%d' % (sVMs, sVMb, sT1))
        A('s_sub_u32 s%d, s%d, 2' % (sT0, n)); A('s_lshl_b32 s%d, s%d, 10' % (sT1, sT0)); A('s_add_u32 s%d, s%d, s%d' % (sFLo, sFLb, sT1))
        A('s_cmp_lt_u32 s%d, 2' % n); A('s_cselect_b32 s%d, 0x%x, s%d' % (sFLo, OOBS, sFLo))
        A('s_cmp_lt_u32 s%d, 1' % n); A('s_cselect_b32 s%d, 0x%x, s%d' % (sKMs, OOBS, sKMs)); A('s_cselect_b32 s%d, 0x%x, s%d' % (sVMs, OOBS, sVMs))
        A('s_lshl_b32 s%d, s%d, 18' % (sDMo, n)); A('s_add_u32 s%d, s%d, s%d' % (sDMo, sDMo, sKXb))
    def calc_ob_memn(n):
        A('s_and_b32 s%d, s%d, 3' % (sT0, n))
        A('s_lshl_b32 s%d, s%d, 15' % (sT1, sT0)); A('s_add_u32 s%d, s%d, s%d' % (sOBc, sOBb, sT1))
        A('s_lshl_b32 s%d, s%d, 13' % (sT1, sW)); A('s_add_u32 s%d, s%d, s%d' % (sOBc2, sOBc, sT1))
        A('s_add_u32 s%d, s%d, 1' % (sT0, n)); A('s_and_b32 s%d, s%d, 3' % (sT0, sT0))
        A('s_lshl_b32 s%d, s%d, 14' % (sT1, sT0)); A('s_add_u32 s%d, s%d, s%d' % (sMEMn, sMEMb, sT1))

    for i in range(4): A('v_mov_b32 v%d, -1' % (W0 + i))
    for sl in range(4):
        A('s_add_u32 s%d, s%d, %d' % (sT0, sQKb, sl * 4096))
        A(st('buffer_store_dwordx4 v[%d:%d], v%d, %s, s%d offen' % (W0, W0 + 3, vPq, WS, sT0)))
        A('s_add_u32 s%d, s%d, %d' % (sT0, sOBb, sl * 32768))
        A(st('buffer_store_dwordx4 v[%d:%d], v%d, %s, s%d offen' % (W0, W0 + 3, vPo, WS, sT0)))
        Lq = A.uid('pp')
        A('s_cmp_lg_u32 s%d, 0' % sW); A('s_cbranch_scc1 %s' % Lq)
        A('s_add_u32 s%d, s%d, %d' % (sT0, sMEMb, sl * 16384))
        A(st('buffer_store_dwordx4 v[%d:%d], v%d, %s, s%d offen' % (W0, W0 + 3, vPm, WS, sT0)))
        A('s_add_u32 s%d, s%d, %d' % (sT0, sT0, RDELTA))
        A('buffer_store_dwordx4 v[%d:%d], v%d, %s, s%d offen sc1' % (W0, W0 + 3, vPm, WS, sT0))
        A.label(Lq)
    A('s_waitcnt vmcnt(0)')
    Lm = A.uid('m0')
    A('s_cmp_lg_u32 s%d, 0' % sW); A('s_cbranch_scc1 %s' % Lm)
    A('s_load_dwordx2 s[%d:%d], s[0:1], %d' % (SRD_T, SRD_T + 1, A_MEM0))
    A('s_mov_b32 s%d, 16384' % (SRD_T + 2)); A('s_mov_b32 s%d, 0x00020000' % (SRD_T + 3))
    A('s_waitcnt lgkmcnt(0)')
    A('v_and_b32 v%d, 7, v%d' % (t2, vLane)); A('v_lshlrev_b32 v%d, 11, v%d' % (t2, t2))
    A('v_bfe_u32 v%d, v%d, 3, 2' % (t3, vLane)); A('v_lshl_add_u32 v%d, v%d, 4, v%d' % (t2, t3, t2))
    A('s_lshl_b32 s%d, s%d, 6' % (sT1, sC)); A('v_add_u32 v%d, s%d, v%d' % (t2, sT1, t2))
    A('buffer_load_dwordx4 v[%d:%d], v%d, s[%d:%d], 0 offen' % (W0, W0 + 3, t2, SRD_T, SRD_T + 3))
    A('s_waitcnt vmcnt(0)')
    for i in range(4): A('v_pk_min_u16 v%d, v%d, s%d' % (W0 + i, W0 + i, sFE))
    Lz0 = A.uid('mz')
    A('s_cmp_eq_u32 s%d, 0' % sX); A('s_cbranch_scc1 %s' % Lz0)
    for i in range(4): A('v_mov_b32 v%d, 0' % (W0 + i))
    A.label(Lz0)
    A(st('buffer_store_dwordx4 v[%d:%d], v%d, %s, s%d offen' % (W0, W0 + 3, vPm, WS, sMEMb)))
    A('s_add_u32 s%d, s%d, %d' % (sT2, sMEMb, RDELTA))
    A('buffer_store_dwordx4 v[%d:%d], v%d, %s, s%d offen sc1' % (W0, W0 + 3, vPm, WS, sT2))
    A('s_waitcnt vmcnt(0)')
    A.label(Lm)
    A('s_mov_b64 exec, 1')
    A('v_mov_b32 v%d, 1' % t2); A('v_mov_b32 v%d, 64' % t3)
    A('global_atomic_add v%d, v%d, s[%d:%d] sc1' % (t3, t2, S_DBG, S_DBG + 1))
    A('s_mov_b64 exec, -1')

    vDq, vTr, vDo, vWt0, vWt1 = W0, W0 + 1, W0 + 3, W0 + 4, W0 + 5
    A('v_lshrrev_b32 v%d, 3, v%d' % (t2, vLane)); A('v_lshlrev_b32 v%d, 13, v%d' % (vDq, t2))
    A('v_and_b32 v%d, 7, v%d' % (t3, vLane)); A('v_lshl_add_u32 v%d, v%d, 4, v%d' % (vDq, t3, vDq))
    A('v_bfe_u32 v%d, v%d, 2, 1' % (t2, vN)); A('v_and_b32 v%d, 1, v%d' % (t3, vG)); A('v_lshl_add_u32 v%d, v%d, 2, v%d' % (t2, t3, t2))
    A('v_lshrrev_b32 v%d, 3, v%d' % (t3, vN)); A('v_lshl_add_u32 v%d, v%d, 3, v%d' % (t2, t3, t2))
    A('v_lshrrev_b32 v%d, 1, v%d' % (t3, vG)); A('v_lshl_add_u32 v%d, v%d, 4, v%d' % (t2, t3, t2))
    A('v_lshlrev_b32 v%d, 7, v%d' % (t2, t2)); A('v_and_b32 v%d, 3, v%d' % (t3, vN)); A('v_lshl_add_u32 v%d, v%d, 3, v%d' % (t2, t3, t2))
    A('s_and_b32 s%d, s%d, 1' % (sT0, sW)); A('s_lshl_b32 s%d, s%d, 15' % (sT0, sT0))
    A('v_add_u32 v%d, s%d, v%d' % (vTr, sT0, t2))
    A('v_add_u32 v%d, 65536, v%d' % (vTr + 1, vTr))
    A('v_lshrrev_b32 v%d, 2, v%d' % (t2, vLane)); A('v_and_b32 v%d, 9, v%d' % (t3, t2))
    A('v_bfe_u32 v%d, v%d, 1, 1' % (t1, t2)); A('v_lshl_add_u32 v%d, v%d, 2, v%d' % (t3, t1, t3))
    A('v_bfe_u32 v%d, v%d, 2, 1' % (t1, t2)); A('v_lshl_add_u32 v%d, v%d, 1, v%d' % (t3, t1, t3))
    A('v_lshlrev_b32 v%d, 11, v%d' % (vDo, t3))
    A('v_bfe_u32 v%d, v%d, 1, 1' % (t1, vLane)); A('v_lshrrev_b32 v%d, 5, v%d' % (t0, vLane)); A('v_xor_b32 v%d, v%d, v%d' % (t1, t1, t0))
    A('v_lshl_add_u32 v%d, v%d, 5, v%d' % (vDo, t1, vDo)); A('v_and_b32 v%d, 1, v%d' % (t1, vLane)); A('v_lshl_add_u32 v%d, v%d, 4, v%d' % (vDo, t1, vDo))
    A('v_bfe_u32 v%d, v%d, 2, 1' % (t2, vN)); A('v_and_b32 v%d, 1, v%d' % (t3, vG)); A('v_lshl_add_u32 v%d, v%d, 1, v%d' % (t2, t3, t2))
    A('v_lshrrev_b32 v%d, 3, v%d' % (t3, vN)); A('v_lshl_add_u32 v%d, v%d, 3, v%d' % (t2, t3, t2))
    A('v_lshrrev_b32 v%d, 1, v%d' % (t1, vG)); A('v_lshl_add_u32 v%d, v%d, 4, v%d' % (t2, t1, t2))
    A('v_lshlrev_b32 v%d, 6, v%d' % (t2, t2)); A('v_lshl_add_u32 v%d, v%d, 5, v%d' % (t2, t3, t2))
    A('v_and_b32 v%d, 3, v%d' % (t1, vN)); A('v_lshl_add_u32 v%d, v%d, 3, v%d' % (t2, t1, t2))
    A('s_lshl_b32 s%d, s%d, 15' % (sT0, sW)); A('v_add_u32 v%d, s%d, v%d' % (vWt0, sT0, t2)); A('v_xor_b32 v%d, 32, v%d' % (vWt1, vWt0))
    wptr = [A_WQ, A_WK, A_WV]
    def issue_chunk(cidx):
        half = cidx & 1
        if cidx < 6:
            A('s_load_dwordx2 s[%d:%d], s[0:1], %d' % (SRD_T, SRD_T + 1, wptr[cidx >> 1]))
            A('s_mov_b32 s%d, %d' % (SRD_T + 2, 8 * MB)); A('s_mov_b32 s%d, 0x00020000' % (SRD_T + 3))
            A('s_lshl_b32 s%d, s%d, 8' % (sT0, sH)); A('s_lshl_b32 s%d, s%d, 7' % (sT1, sJ)); A('s_add_u32 s%d, s%d, s%d' % (sT0, sT0, sT1))
            A('s_lshl_b32 s%d, s%d, 20' % (sT1, sW)); A('s_add_u32 s%d, s%d, s%d' % (sT0, sT0, sT1))
            A('s_add_u32 s%d, s%d, %d' % (sT0, sT0, half * 512 * 8192))
            step_g, vd = 65536, vDq
        else:
            A('s_load_dwordx2 s[%d:%d], s[0:1], %d' % (SRD_T, SRD_T + 1, A_WO))
            A('s_mov_b32 s%d, %d' % (SRD_T + 2, 8 * MB)); A('s_mov_b32 s%d, 0x00020000' % (SRD_T + 3))
            A('s_lshl_b32 s%d, s%d, 22' % (sT0, sX)); A('s_lshl_b32 s%d, s%d, 6' % (sT1, sC)); A('s_add_u32 s%d, s%d, s%d' % (sT0, sT0, sT1))
            A('s_lshl_b32 s%d, s%d, 19' % (sT1, sW)); A('s_add_u32 s%d, s%d, s%d' % (sT0, sT0, sT1))
            A('s_add_u32 s%d, s%d, %d' % (sT0, sT0, half * 1024 * 2048))
            step_g, vd = 32768, vDo
        A('s_lshl_b32 s%d, s%d, 14' % (sT1, sW)); A('s_add_u32 s%d, s%d, %d' % (sT1, sT1, half * 65536))
        A('s_waitcnt lgkmcnt(0)')
        for i in range(16):
            A('s_add_u32 m0, s%d, %d' % (sT1, i * 1024))
            A('s_add_u32 s%d, s%d, %d' % (sT2, sT0, i * step_g))
            A('buffer_load_dwordx4 v%d, s[%d:%d], s%d offen lds' % (vd, SRD_T, SRD_T + 3, sT2))
    def read_chunk(cidx):
        half = cidx & 1; mu = cidx >> 1
        Le = A.uid('rce')
        A('s_lshr_b32 s%d, s%d, 1' % (sT0, sW)); A('s_cmp_lg_u32 s%d, %d' % (sT0, half)); A('s_cbranch_scc1 %s' % Le)
        for kl in range(4):
            for t in range(4):
                Rg = wreg(kl, mu, t)
                for sg in range(4):
                    off = kl * 8192 + t * 32 + (sg & 1) * 256 + (sg >> 1) * 4096
                    A('ds_read_b64_tr_b16 %s, v%d offset:%d' % (r(Rg + 2 * sg, 2), vTr + half, off))
                if t % 2 == 1: A('s_waitcnt lgkmcnt(0)')
        A.label(Le)
    issue_chunk(0)
    for cidx in range(6):
        issue_chunk(cidx + 1)
        A('s_waitcnt vmcnt(16)'); A('s_barrier')
        read_chunk(cidx)
        A('s_waitcnt lgkmcnt(0)'); A('s_barrier')
    issue_chunk(7)
    A('s_mov_b32 s%d, 0' % sS)
    if kvwait: kvwait(A, sS)
    A('s_waitcnt vmcnt(0)'); A('s_barrier')
    CV = W0 + 8
    for hf in range(2):
        for kl in range(4):
            kap = 4 * hf + kl
            for tt in range(2):
                Rg = CV + (kl * 2 + tt) * 8
                for sg in range(4):
                    off = kap * 4096 + (sg & 1) * 256 + (sg >> 1) * 2048
                    A('ds_read_b64_tr_b16 v[%d:%d], v%d offset:%d' % (Rg + 2 * sg, Rg + 2 * sg + 1, vWt1 if tt else vWt0, off))
            A('s_waitcnt lgkmcnt(0)')
        for kl in range(4):
            kap = 4 * hf + kl
            for tt in range(2):
                Rg = CV + (kl * 2 + tt) * 8; off = (kap * 2 + tt) * 2048
                A('ds_write_b128 v%d, v[%d:%d] offset:%d' % (vWoR, Rg, Rg + 3, off))
                A('ds_write_b128 v%d, v[%d:%d] offset:%d' % (vWoR, Rg + 4, Rg + 7, off + 1024))
        A('s_waitcnt lgkmcnt(0)')
    Lw = A.uid('pw')
    A('s_mov_b32 s%d, 0' % sSPIN); A('v_mov_b32 v%d, 64' % (vT + 1))
    A.label(Lw)
    A('global_load_dword v%d, v%d, s[%d:%d] sc1' % (vT, vT + 1, S_DBG, S_DBG + 1))
    A('s_waitcnt vmcnt(0)')
    A('v_readfirstlane_b32 s%d, v%d' % (sT0, vT))
    A('s_add_u32 s%d, s%d, 1' % (sSPIN, sSPIN)); A('s_cmp_gt_u32 s%d, %d' % (sSPIN, SPIN_LIMIT)); A('s_cbranch_scc1 chain_abort')
    A('s_cmp_lt_u32 s%d, 256' % sT0); A('s_cbranch_scc1 %s' % Lw)
    A('s_barrier')
    if timing or looptime:
        for i in range(16): A('s_mov_b32 s%d, 0' % (sACC + i))
    def stamp(i):
        if timing:
            A('s_memtime s[%d:%d]' % (sTM + 2, sTM + 3)); A('s_waitcnt lgkmcnt(0)')
            A('s_sub_u32 s%d, s%d, s%d' % (sTM + 4, sTM + 2, sTM)); A('s_add_u32 s%d, s%d, s%d' % (sACC + i, sACC + i, sTM + 4))
            A('s_mov_b32 s%d, s%d' % (sTM, sTM + 2))
    if timing:
        A('s_memtime s[%d:%d]' % (sTM, sTM + 1)); A('s_waitcnt lgkmcnt(0)')
    def check(regs):
        m = vT; rs = list(regs)
        if len(rs) == 1: A('v_cmp_eq_u32 vcc, -1, v%d' % rs[0]); return
        if len(rs) == 2: A('v_max_u32 v%d, v%d, v%d' % (m, rs[0], rs[1])); rs = []
        else: A('v_max3_u32 v%d, v%d, v%d, v%d' % (m, rs[0], rs[1], rs[2])); rs = rs[3:]
        while len(rs) >= 2:
            A('v_max3_u32 v%d, v%d, v%d, v%d' % (m, m, rs[0], rs[1])); rs = rs[2:]
        if rs: A('v_max_u32 v%d, v%d, v%d' % (m, m, rs[0]))
        A('v_cmp_eq_u32 vcc, -1, v%d' % m)
    def poll(loads, regs, site=None):
        L = A.uid('poll')
        A('s_mov_b32 s%d, 0' % sSPIN)
        A.label(L)
        for x in loads: A(x)
        A('s_add_u32 s%d, s%d, 1' % (sSPIN, sSPIN)); A('s_cmp_gt_u32 s%d, %d' % (sSPIN, SPIN_LIMIT)); A('s_cbranch_scc1 chain_abort')
        A('s_waitcnt vmcnt(0)')
        check(regs)
        A('s_cbranch_vccnz %s' % L)
        if timing and site is not None: A('s_add_u32 s%d, s%d, s%d' % (sACC + 10 + site, sACC + 10 + site, sSPIN))

    calc(sS); calc_ob_memn(sS)
    vLD = W0
    vRQ = W0 + 16
    vAcc = W0 + 32
    vKR = 120
    vKX = 96; vVXF = 92
    def acc(mu, t): return vAcc + (mu * 4 + t) * 4
    def kpass(areg, fill=None):
        fill = list(fill or [])
        n = 0
        for kl in range(4):
            for mu in range(3):
                for t in range(4):
                    a_ = acc(mu, t)
                    A('v_smfmac_f32_16x16x64_bf16 v[%d:%d], v[%d:%d], %s, v%d' % (a_, a_ + 3, areg + 4 * kl, areg + 4 * kl + 3, r(wreg(kl, mu, t), 8), vIdx))
                    n += 1
                    if fill and n % 3 == 0:
                        for x in fill.pop(0): A(x)
        for g_ in fill:
            for x in g_: A(x)

    if looptime:
        A('s_memrealtime s[%d:%d]' % (sRT, sRT + 1)); A('s_waitcnt lgkmcnt(0)')
    A.label('chain_step')
    if steptrace:
        Lst = A.uid('st')
        A('s_cmp_lg_u32 s%d, 0' % sW); A('s_cbranch_scc1 %s' % Lst)
        A('s_memrealtime s[84:85]')
        A('s_lshl_b32 s%d, s%d, 5' % (sT0, sX)); A('s_add_u32 s%d, s%d, s%d' % (sT0, sT0, sC)); A('s_lshl_b32 s%d, s%d, 7' % (sT0, sT0))
        A('s_add_u32 s%d, s%d, s%d' % (sT0, sT0, sS)); A('s_lshl_b32 s%d, s%d, 2' % (sT0, sT0)); A('s_add_u32 s%d, s%d, %d' % (sT0, sT0, TRC_CH))
        A('s_waitcnt lgkmcnt(0)')
        A('v_mov_b32 v%d, s84' % vT); A('v_mov_b32 v%d, 0' % (vT + 1)); A('s_mov_b64 exec, 1')
        A('buffer_store_dword v%d, v%d, %s, s%d offen' % (vT, vT + 1, WS, sT0)); A('s_mov_b64 exec, -1')
        A.label(Lst)
    A.c('P1a')
    for i in range(48): A('v_mov_b32 v%d, 0' % (vAcc + i))
    if d1: A('s_sleep %d' % d1)
    A('buffer_load_dwordx4 v[%d:%d], v%d, %s, s%d offen offset:2048 sc1' % (vKR, vKR + 3, vQkLd, WS, sQKv))
    if kvwait: kvwait(A, sS, issue_only=True)
    loads = ['buffer_load_dwordx4 v[%d:%d], v%d, %s, s%d offen offset:%d sc1' % (vLD + 4 * k, vLD + 4 * k + 3, vL16, WS, sMEMc, 1024 * k) for k in range(4)]
    poll(loads, [vLD + 4 * k for k in range(4)], site=0)
    if kvwait: kvwait(A, sS, check_only=True)
    stamp(0)
    rloads = ['buffer_load_dwordx4 v[%d:%d], v%d, %s, s%d offen offset:%d sc1' % (vRQ + 4 * k, vRQ + 4 * k + 3, vL16, WS, sMRc, 1024 * k) for k in range(4)]
    P4r = 124
    common = [['buffer_store_dwordx4 v[%d:%d], v%d, %s, s%d offen %s' % (vKR, vKR + 3, vKmSt, WS, sKMs, '' if nokm else 'sc1')],
              ['buffer_store_dwordx2 v[%d:%d], v%d, %s, s%d offen %s' % (vVM, vVM + 1, vVmSt, WS, sVMs, '' if nokm else 'sc1')],
              ['buffer_store_dword v%d, v%d, %s, s%d offen %s' % (vOnes, vFlg, WS, sFLo, '' if noflag else 'sc1')],
              ['v_mov_b32 v%d, -1' % (P4r + i) for i in range(2)], ['v_mov_b32 v%d, -1' % (P4r + i) for i in range(2, 4)],
              [st('buffer_store_dwordx4 v[%d:%d], v%d, %s, s%d offen' % (P4r, P4r + 3, vPq, WS, sQKp))],
              [st('buffer_store_dwordx4 v[%d:%d], v%d, %s, s%d offen' % (P4r, P4r + 3, vPo, WS, sOBp))]]
    Lw0 = A.uid('w0p'); Lj = A.uid('w0j')
    def with_r(groups):
        g = list(groups)
        g.insert(min(rpos, len(g)), rloads)
        idx = min(rpos, len(groups))
        younger = sum(1 for grp in g[idx + 1:] for x in grp if x.startswith('buffer_'))
        return g, younger
    A('s_cmp_eq_u32 s%d, 0' % sW); A('s_cbranch_scc1 %s' % Lw0)
    fill = [['s_mov_b32 m0, s%d' % sVXb, 'buffer_load_dwordx4 v%d, %s, s%d offen sc1 lds' % (vKxD4[0], WS, sDMo)]]
    fill[0].insert(1, 's_nop 0')
    for i in range(1, 4): fill.append(['buffer_load_dwordx4 v%d, %s, s%d offen offset:%d sc1 lds' % (vKxD4[i], WS, sDMo, 1024 * i)])
    g, y = with_r(fill + common)
    kpass(vLD, g)
    A('s_waitcnt vmcnt(%d)' % y)
    A('s_branch %s' % Lj)
    A.label(Lw0)
    g, y0 = with_r(common + [[st('buffer_store_dwordx4 v[%d:%d], v%d, %s, s%d offen' % (P4r, P4r + 3, vPm, WS, sMEMp))],
                             ['buffer_store_dwordx4 v[%d:%d], v%d, %s, s%d offen sc1' % (P4r, P4r + 3, vPm, WS, sMRp)]])
    kpass(vLD, g)
    A('s_waitcnt vmcnt(%d)' % y0)
    A.label(Lj)
    stamp(1)
    A.c('P1b')
    Lrk = A.uid('rk')
    check([vRQ + 4 * k for k in range(4)])
    A('s_cbranch_vccz %s' % Lrk)
    poll(rloads, [vRQ + 4 * k for k in range(4)], site=3)
    A.label(Lrk)
    kpass(vRQ)
    A('s_waitcnt vmcnt(5)')
    A.nop(6)
    stamp(2)
    if dbgwait == 1:
        A('s_waitcnt vmcnt(0)')
        stamp(7)
    A.c('P3: cross-wave reduce')
    for t in range(4):
        for i in range(4): A('v_permlane32_swap_b32 v%d, v%d' % (acc(0, t) + i, acc(1, t) + i))
    for t in (0, 2):
        for i in range(4): A('v_permlane32_swap_b32 v%d, v%d' % (acc(2, t) + i, acc(2, t + 1) + i))
    for t in (0, 2):
        for i in range(4): A('v_add_f32 v%d, v%d, v%d' % (acc(2, t) + i, acc(2, t) + i, acc(2, t + 1) + i))
        A('ds_write_b128 v%d, v[%d:%d] offset:%d' % (vXvW, acc(2, t), acc(2, t) + 3, (t >> 1) * 1024))
    own = W0
    for t in range(4):
        for i in range(4): A('v_add_f32 v%d, v%d, v%d' % (acc(0, t) + i, acc(0, t) + i, acc(1, t) + i))
        Ls = A.uid('xs'); Le = A.uid('xe')
        A('s_cmp_eq_u32 s%d, %d' % (sW, t)); A('s_cbranch_scc1 %s' % Ls)
        A('ds_write_b128 v%d, v[%d:%d]' % (vXq[t], acc(0, t), acc(0, t) + 3))
        A('s_branch %s' % Le)
        A.label(Ls)
        for i in range(4): A('v_mov_b32 v%d, v%d' % (own + i, acc(0, t) + i))
        A.label(Le)
    if dbgwait == 2: stamp(7)
    A('s_waitcnt lgkmcnt(0)')
    A('s_barrier')
    if dbgwait == 2: stamp(9)
    X1 = W0 + 4
    for i in range(3): A('ds_read_b128 v[%d:%d], v%d offset:%d' % (X1 + 4 * i, X1 + 4 * i + 3, vXqR, 1024 * i))
    Vp = W0 + 16
    for i in range(4): A('ds_read_b128 v[%d:%d], v%d offset:%d' % (Vp + 4 * i, Vp + 4 * i + 3, vXvR, 2048 * i))
    for tt in range(2):
        for k in range(4):
            Rg = vKX + (tt * 4 + k) * 4
            A('ds_read_b128 v[%d:%d], v%d offset:%d' % (Rg, Rg + 3, vKx0 + k, tt * 4096))
    A('s_waitcnt lgkmcnt(12)')
    for i in range(4): A('v_add_f32 v%d, v%d, v%d' % (own + i, own + i, X1 + i))
    for i in range(4): A('v_add_f32 v%d, v%d, v%d' % (X1 + 4 + i, X1 + 4 + i, X1 + 8 + i))
    for i in range(4): A('v_add_f32 v%d, v%d, v%d' % (own + i, own + i, X1 + 4 + i))
    kk_ = X1
    A('v_cvt_pk_bf16_f32 v%d, v%d, v%d' % (kk_, own, own + 1))
    A('v_cvt_pk_bf16_f32 v%d, v%d, v%d' % (kk_ + 1, own + 2, own + 3))
    A('v_pk_min_u16 v%d, v%d, s%d' % (kk_, kk_, sFE)); A('v_pk_min_u16 v%d, v%d, s%d' % (kk_ + 1, kk_ + 1, sFE))
    A('ds_read_b64_tr_b16 v[%d:%d], v%d' % (vVXF, vVXF + 1, vVx))
    A('ds_read_b64_tr_b16 v[%d:%d], v%d offset:2048' % (vVXF + 2, vVXF + 3, vVx))
    A('s_waitcnt lgkmcnt(0)')
    A(st('buffer_store_short v%d, v%d, %s, s%d offen' % (kk_, vQkSt, WS, sQKc)))
    A(st('buffer_store_short_d16_hi v%d, v%d, %s, s%d offen offset:16' % (kk_, vQkSt, WS, sQKc)))
    A(st('buffer_store_short v%d, v%d, %s, s%d offen offset:32' % (kk_ + 1, vQkSt, WS, sQKc)))
    A(st('buffer_store_short_d16_hi v%d, v%d, %s, s%d offen offset:48' % (kk_ + 1, vQkSt, WS, sQKc)))
    for i in range(4): A('v_add_f32 v%d, v%d, v%d' % (Vp + i, Vp + i, Vp + 4 + i))
    for i in range(4): A('v_add_f32 v%d, v%d, v%d' % (Vp + 8 + i, Vp + 8 + i, Vp + 12 + i))
    for i in range(4): A('v_add_f32 v%d, v%d, v%d' % (Vp + i, Vp + i, Vp + 8 + i))
    A('v_cvt_pk_bf16_f32 v%d, v%d, v%d' % (vVM, Vp, Vp + 1))
    A('v_cvt_pk_bf16_f32 v%d, v%d, v%d' % (vVM + 1, Vp + 2, Vp + 3))
    if dbgwait == 2: stamp(14)
    A.c('P4')
    vQ, vKM = W0, W0 + 16
    A('s_lshl_b32 s%d, s%d, 10' % (sT1, sW))
    A('v_add_u32 v%d, s%d, v%d' % (vT + 2, sT1, vL16))
    A('v_add_u32 v%d, %d, v%d' % (vT + 3, LDS_XB, vT + 2))
    if d4: A('s_sleep %d' % d4)
    loads = ['buffer_load_dwordx4 v[%d:%d], v%d, %s, s%d offen sc1' % (vQ, vQ + 3, vT + 2, WS, sQKc)]
    poll(loads, [vQ], site=1)
    if dbgwait == 2: stamp(15)
    A('ds_write_b128 v%d, v[%d:%d]' % (vT + 3, vQ, vQ + 3))
    A('s_waitcnt lgkmcnt(0)')
    A('s_barrier')
    for k in range(4):
        A('ds_read_b128 v[%d:%d], v%d offset:%d' % (vQ + 4 * k, vQ + 4 * k + 3, vQkL, 512 * k))
        A('ds_read_b128 v[%d:%d], v%d offset:%d' % (vKM + 4 * k, vKM + 4 * k + 3, vQkL, 2048 + 512 * k))
    stamp(3)
    T0, T1, T2 = 72, 76, 80
    for k in range(4):
        A('s_waitcnt lgkmcnt(%d)' % (6 - 2 * k))
        c1 = '0' if k == 0 else 'v[%d:%d]' % (T1, T1 + 3); c2 = '0' if k == 0 else 'v[%d:%d]' % (T2, T2 + 3); c0 = '0' if k == 0 else 'v[%d:%d]' % (T0, T0 + 3)
        A('v_mfma_f32_16x16x32_bf16 v[%d:%d], v[%d:%d], v[%d:%d], %s' % (T1, T1 + 3, vKX + 4 * k, vKX + 4 * k + 3, vQ + 4 * k, vQ + 4 * k + 3, c1))
        A('v_mfma_f32_16x16x32_bf16 v[%d:%d], v[%d:%d], v[%d:%d], %s' % (T2, T2 + 3, vKX + 16 + 4 * k, vKX + 16 + 4 * k + 3, vQ + 4 * k, vQ + 4 * k + 3, c2))
        A('v_mfma_f32_16x16x32_bf16 v[%d:%d], v[%d:%d], v[%d:%d], %s' % (T0, T0 + 3, vKM + 4 * k, vKM + 4 * k + 3, vQ + 4 * k, vQ + 4 * k + 3, c0))
    A.nop(7)
    A.c('P5')
    m, t = vT, vT + 1
    A('v_max3_f32 v%d, v%d, v%d, v%d' % (m, T1, T1 + 1, T1 + 2)); A('v_max3_f32 v%d, v%d, v%d, v%d' % (t, T1 + 3, T2, T2 + 1))
    A('v_max3_f32 v%d, v%d, v%d, v%d' % (m, m, T2 + 2, T2 + 3)); A('v_max3_f32 v%d, v%d, v%d, v%d' % (t, t, T0, T0 + 1))
    A('v_max3_f32 v%d, v%d, v%d, v%d' % (m, m, T0 + 2, T0 + 3)); A('v_max_f32 v%d, v%d, v%d' % (m, m, t))
    for sw in ('v_permlane32_swap_b32', 'v_permlane16_swap_b32'):
        A('v_mov_b32 v%d, v%d' % (t, m)); A('s_nop 1'); A('%s v%d, v%d' % (sw, m, t)); A('s_nop 0'); A('v_max_f32 v%d, v%d, v%d' % (m, m, t))
    A('v_mul_f32 v%d, s%d, v%d' % (m, sC_, m))
    A('v_add_f32 v%d, v%d, v%d' % (t, m, vBias))
    for x in range(T1, T1 + 8): A('v_fma_f32 v%d, v%d, s%d, -v%d' % (x, x, sC_, m))
    for x in range(T0, T0 + 4): A('v_fma_f32 v%d, v%d, s%d, -v%d' % (x, x, sC_, t))
    for x in list(range(T1, T1 + 8)) + list(range(T0, T0 + 4)): A('v_exp_f32 v%d, v%d' % (x, x))
    vPx, vPm2 = 56, 60; vO, vO2, vSm, vSm2 = 64, 68, 84, 88
    A('v_cvt_pk_bf16_f32 v%d, v%d, v%d' % (vPx, T1, T1 + 1)); A('v_cvt_pk_bf16_f32 v%d, v%d, v%d' % (vPx + 1, T1 + 2, T1 + 3))
    A('v_cvt_pk_bf16_f32 v%d, v%d, v%d' % (vPx + 2, T2, T2 + 1)); A('v_cvt_pk_bf16_f32 v%d, v%d, v%d' % (vPx + 3, T2 + 2, T2 + 3))
    A('v_cvt_pk_bf16_f32 v%d, v%d, v%d' % (vPm2, T0, T0 + 1)); A('v_cvt_pk_bf16_f32 v%d, v%d, v%d' % (vPm2 + 1, T0 + 2, T0 + 3))
    A('s_nop 0')
    A('v_mfma_f32_16x16x32_bf16 v[%d:%d], v[%d:%d], v[%d:%d], 0' % (vO, vO + 3, vVXF, vVXF + 3, vPx, vPx + 3))
    A('v_mfma_f32_16x16x16_bf16 v[%d:%d], v[%d:%d], v[%d:%d], 0' % (vO2, vO2 + 3, vVM, vVM + 1, vPm2, vPm2 + 1))
    A('v_mfma_f32_16x16x16_bf16 v[%d:%d], v[%d:%d], v[%d:%d], 0' % (vSm, vSm + 3, vOnes, vOnes1, vPx, vPx + 1))
    A('v_mfma_f32_16x16x16_bf16 v[%d:%d], v[%d:%d], v[%d:%d], v[%d:%d]' % (vSm, vSm + 3, vOnes, vOnes1, vPx + 2, vPx + 3, vSm, vSm + 3))
    A('v_mfma_f32_16x16x16_bf16 v[%d:%d], v[%d:%d], v[%d:%d], v[%d:%d]' % (vSm, vSm + 3, vOnes, vOnes1, vPm2, vPm2 + 1, vSm, vSm + 3))
    ops = [(kap, tt) for kap in range(8) for tt in range(2)]
    breg = [96, 104, 112, 120, 40, 48]
    def wo_read(n, Rg):
        off = n * 2048
        A('ds_read_b128 v[%d:%d], v%d offset:%d' % (Rg, Rg + 3, vWoR, off))
        A('ds_read_b128 v[%d:%d], v%d offset:%d' % (Rg + 4, Rg + 7, vWoR, off + 1024))
    for n in range(2): wo_read(n, breg[n])
    A.nop(4)
    A('v_rcp_f32 v%d, v%d' % (m, vSm))
    for i in range(4): A('v_add_f32 v%d, v%d, v%d' % (vO + i, vO + i, vO2 + i))
    for i in range(4): A('v_mul_f32 v%d, v%d, v%d' % (vO + i, vO + i, m))
    A('v_cvt_pk_bf16_f32 v%d, v%d, v%d' % (vO, vO, vO + 1)); A('v_cvt_pk_bf16_f32 v%d, v%d, v%d' % (vO + 1, vO + 2, vO + 3))
    A('v_pk_min_u16 v%d, v%d, s%d' % (vO, vO, sFE)); A('v_pk_min_u16 v%d, v%d, s%d' % (vO + 1, vO + 1, sFE))
    A(st('buffer_store_dwordx2 v[%d:%d], v%d, %s, s%d offen' % (vO, vO + 1, vOSt, WS, sOBc)))
    for n in range(2, 6): wo_read(n, breg[n])
    stamp(4)
    A.c('P6')
    vOA = 60; acc0 = vT; acc1 = 92
    A('s_add_u32 s%d, s%d, 1' % (sT3, sS))
    calc(sT3)
    if d6: A('s_sleep %d' % d6)
    A('s_add_u32 s%d, s%d, 4096' % (sT2, sOBc2))
    loads = ['buffer_load_dwordx4 v[%d:%d], v%d, %s, s%d offen offset:%d sc1' % (vOA + 4 * k, vOA + 4 * k + 3, vL16, WS, sOBc2 if k < 4 else sT2, 1024 * (k & 3)) for k in range(8)]
    chk = []
    for k in range(8): chk += [vOA + 4 * k, vOA + 4 * k + 2]
    poll(loads, chk, site=2)
    stamp(5)
    for i in range(4):
        A('v_mov_b32 v%d, 0' % (acc0 + i)); A('v_mov_b32 v%d, 0' % (acc1 + i))
    A('s_waitcnt lgkmcnt(0)')
    nb = len(breg); issued = nb
    for n, (kap, tt) in enumerate(ops):
        ac = acc1 if tt else acc0
        Rg = breg[n % nb]
        if n >= nb: A('s_waitcnt lgkmcnt(%d)' % min((min(issued, 16) - (n + 1)) * 2, 15))
        A('v_smfmac_f32_16x16x64_bf16 v[%d:%d], v[%d:%d], v[%d:%d], v%d' % (ac, ac + 3, vOA + 4 * kap, vOA + 4 * kap + 3, Rg, Rg + 7, vIdx))
        if issued < 16: wo_read(issued, Rg); issued += 1
    A.nop(9)
    for i in range(4): A('v_permlane32_swap_b32 v%d, v%d' % (acc0 + i, acc1 + i))
    A('s_nop 0')
    for i in range(4): A('v_add_f32 v%d, v%d, v%d' % (acc0 + i, acc0 + i, acc1 + i))
    for i in range(4): A('ds_write_b32 v%d, v%d offset:%d' % (vRedW, acc0 + i, 128 * i))
    A('s_waitcnt lgkmcnt(0)')
    A('s_barrier')
    Lw1b = A.uid('rw1')
    A('s_cmp_lg_u32 s%d, 0' % sW); A('s_cbranch_scc1 %s' % Lw1b)
    S = W0
    for k in range(4):
        A('ds_read_b128 v[%d:%d], v%d offset:%d' % (S + 8 * k, S + 8 * k + 3, vRedR, 1024 * k))
        A('ds_read_b128 v[%d:%d], v%d offset:%d' % (S + 8 * k + 4, S + 8 * k + 7, vRedR, 1024 * k + 16))
    for k in range(1, 4):
        A('s_waitcnt lgkmcnt(%d)' % (6 - 2 * k))
        for i in range(8): A('v_add_f32 v%d, v%d, v%d' % (S + i, S + i, S + 8 * k + i))
    for i in range(4): A('v_cvt_pk_bf16_f32 v%d, v%d, v%d' % (S + 8 + i, S + 2 * i, S + 2 * i + 1))
    for i in range(4): A('v_pk_min_u16 v%d, v%d, s%d' % (S + 8 + i, S + 8 + i, sFE))
    A('s_add_u32 s%d, s%d, %d' % (sT2, sMEMn, RDELTA))
    A(st('buffer_store_dwordx4 v[%d:%d], v%d, %s, s%d offen' % (S + 8, S + 11, vPm, WS, sMEMn)))
    A('buffer_store_dwordx4 v[%d:%d], v%d, %s, s%d offen sc1' % (S + 8, S + 11, vPm, WS, sT2))
    A.label(Lw1b)
    A('s_add_u32 s%d, s%d, 1' % (sT3, sS))
    calc_ob_memn(sT3)
    A('s_barrier')
    stamp(6)
    A('s_add_u32 s%d, s%d, 1' % (sS, sS)); A('s_cmp_lt_u32 s%d, %d' % (sS, nsteps)); A('s_cbranch_scc1 chain_step')
    if looptime:
        A('s_memrealtime s[%d:%d]' % (sRT + 2, sRT + 3)); A('s_waitcnt lgkmcnt(0)')
        A('s_sub_u32 s%d, s%d, s%d' % (sACC + 8, sRT + 2, sRT))
    A('buffer_load_dwordx4 v[%d:%d], v%d, %s, s%d offen offset:2048 sc1' % (vKR, vKR + 3, vQkLd, WS, sQKv))
    A('s_waitcnt vmcnt(0)')
    A('buffer_store_dwordx4 v[%d:%d], v%d, %s, s%d offen sc1' % (vKR, vKR + 3, vKmSt, WS, sKMs))
    A('buffer_store_dwordx2 v[%d:%d], v%d, %s, s%d offen sc1' % (vVM, vVM + 1, vVmSt, WS, sVMs))
    A('buffer_store_dword v%d, v%d, %s, s%d offen sc1' % (vOnes, vFlg, WS, sFLo))
    A('s_waitcnt vmcnt(0)')
    A('s_add_u32 s%d, s%d, 1024' % (sT1, sFLo))
    A('buffer_store_dword v%d, v%d, %s, s%d offen sc1' % (vOnes, vFlg, WS, sT1))
    if timing or looptime:
        A('s_lshl_b32 s%d, s%d, 5' % (sT0, sX)); A('s_add_u32 s%d, s%d, s%d' % (sT0, sT0, sC)); A('s_lshl_b32 s%d, s%d, 2' % (sT0, sT0))
        A('s_add_u32 s%d, s%d, s%d' % (sT0, sT0, sW)); A('s_lshl_b32 s%d, s%d, 6' % (sT0, sT0)); A('s_add_u32 s%d, s%d, %d' % (sT0, sT0, CNT + 65536))
        for i in range(16): A('v_mov_b32 v%d, s%d' % (W0 + i, sACC + i))
        A('v_mov_b32 v%d, 0' % vT); A('s_mov_b64 exec, 1')
        for q in range(4): A('buffer_store_dwordx4 v[%d:%d], v%d, %s, s%d offen offset:%d' % (W0 + 4 * q, W0 + 4 * q + 3, vT, WS, sT0, 16 * q))
    A('s_waitcnt vmcnt(0)')
    if finish:
        A('s_mov_b64 exec, -1')
        A('s_branch %s' % finish)
    else:
        A('s_endpgm')
    A.label('chain_abort')
    A('s_mov_b64 exec, 1')
    A('v_mov_b32 v%d, 1' % vT); A('v_mov_b32 v%d, 128' % (vT + 1))
    A('global_atomic_add v%d, v%d, s[%d:%d] sc1' % (vT + 1, vT, S_DBG, S_DBG + 1))
    A('s_waitcnt vmcnt(0)')
    A('s_endpgm')
```

```python
from asmlib import *
from layout import *
import struct, math

SRD_WS = 8
SRD_A = 12
SRD_B = 16
SRD_C = 20
SRD_R = 24
sAoff, sBoff, sCoff, sLda, sLdb, sLdc, sNk, sKi, sStR, sStW, sRoff, sB64, sMode = range(28, 41)
sW, sWm, sWn = 41, 42, 43
sT0, sT1, sT2, sT3, sT4, sT5 = 44, 45, 46, 47, 48, 49
sA2 = 50
sShift = 51
sK1, sK2 = 52, 53
sMX, sMW = 54, 55
def srd(n): return 's[%d:%d]' % (n, n + 3)
def fhex(x): return '0x%08x' % struct.unpack('<I', struct.pack('<f', x))[0]

class Gemm:
    def __init__(self, A, BM, NS, afl='sc1', bfl='', stamps=False):
        self.A = A; self.BM = BM; self.NS = NS; self.stamps = stamps
        self.TM = BM // 32; self.TN = 4
        self.XSZ = BM * 128
        self.STAGE = self.XSZ + 16384
        self.afl = afl; self.bfl = bfl
        self.vLane, self.vG, self.vC = 1, 2, 3
        self.vXd = 4; self.vWd = 8; self.vXb = 12; self.vWb = 14; self.vXr = 18; self.vWr = 20
        self.vT = 24
        self.set = [32, 32 + 16 + 4 * self.TM]
        self.ACC = 128
    def lds(self): return self.NS * self.STAGE
    def acc(self, tm, tn): return self.ACC + (tm * self.TN + tn) * 4
    def stamp(self, i):
        if self.stamps: self.A('s_memtime s[%d:%d]' % (60 + 2 * i, 61 + 2 * i))
    def stamp_out(self):
        if self.stamps:
            A = self.A
            self.stamp(3)
            A('s_waitcnt vmcnt(0) lgkmcnt(0)')
            self.stamp(4)
            A('s_waitcnt lgkmcnt(0)')
            for i in range(4): A('s_sub_u32 s%d, s%d, s%d' % (72 + i, 62 + 2 * i, 60 + 2 * i))
            A('s_cmp_lg_u32 s2, 5')
            L = A.uid('so')
            A('s_cbranch_scc1 %s' % L)
            for i in range(4): A('v_mov_b32 v%d, s%d' % (40 + i, 72 + i))
            A('s_lshl_b32 s%d, s%d, 4' % (sT0, sW))
            A('v_mov_b32 v44, s%d' % sT0)
            A('global_store_dwordx4 v44, v[40:43], s[6:7]')
            A.label(L)

    def setup_lane(self):
        A = self.A
        A('v_and_b32 v%d, 63, v0' % self.vLane)
        A('v_lshrrev_b32 v%d, 6, v0' % self.vT)
        A('s_nop 0')
        A('v_readfirstlane_b32 s%d, v%d' % (sW, self.vT))
        A('v_lshrrev_b32 v%d, 4, v%d' % (self.vG, self.vLane))
        A('v_and_b32 v%d, 15, v%d' % (self.vC, self.vLane))
        A('s_nop 1')
        A('s_lshr_b32 s%d, s%d, 1' % (sWm, sW))
        A('s_and_b32 s%d, s%d, 1' % (sWn, sW))
        A('s_mul_i32 s%d, s%d, %d' % (sMX, sW, self.TM * 1024))
        A('s_lshl_b32 s%d, s%d, 12' % (sMW, sW))
        A('s_add_u32 s%d, s%d, %d' % (sMW, sMW, self.XSZ))
        t0, t1, t2 = self.vT, self.vT + 1, self.vT + 2
        G, C = self.vG, self.vC
        A('v_and_b32 v%d, 7, v%d' % (t0, C))
        A('v_xor_b32 v%d, v%d, v%d' % (t0, t0, G))
        A('v_lshlrev_b32 v%d, 4, v%d' % (t0, t0))
        A('v_lshl_add_u32 v%d, v%d, 7, v%d' % (t0, C, t0))
        A('s_mul_i32 s%d, s%d, %d' % (sT0, sWm, (self.BM // 2) * 128))
        A('v_add_u32 v%d, s%d, v%d' % (self.vXb, sT0, t0))
        A('v_xor_b32 v%d, 64, v%d' % (self.vXb + 1, self.vXb))
        A('v_lshrrev_b32 v%d, 2, v%d' % (t0, C))
        A('v_and_b32 v%d, 1, v%d' % (t1, G))
        A('v_lshl_add_u32 v%d, v%d, 2, v%d' % (t1, t1, t0))
        A('v_lshl_add_u32 v%d, v%d, 3, v%d' % (t0, G, t0))
        A('v_lshlrev_b32 v%d, 8, v%d' % (t0, t0))
        A('v_and_b32 v%d, 3, v%d' % (t2, C))
        A('v_lshl_add_u32 v%d, v%d, 3, v%d' % (t0, t2, t0))
        A('v_add_u32 v%d, %d, v%d' % (t0, self.XSZ, t0))
        A('s_lshl_b32 s%d, s%d, 2' % (sT0, sWn))
        for tn in range(4):
            A('s_add_u32 s%d, s%d, %d' % (sT1, sT0, tn))
            A('v_xor_b32 v%d, s%d, v%d' % (t2, sT1, t1))
            A('v_lshl_add_u32 v%d, v%d, 5, v%d' % (self.vWb + tn, t2, t0))

    def prologue(self):
        A = self.A; TM = self.TM
        t0, t1, t2, t3 = self.vT, self.vT + 1, self.vT + 2, self.vT + 3
        L, G, C = self.vLane, self.vG, self.vC
        A('v_lshrrev_b32 v%d, 3, v%d' % (t0, L))
        A('v_and_b32 v%d, 7, v%d' % (t1, L))
        A('v_xor_b32 v%d, v%d, v%d' % (t1, t1, t0))
        A('v_lshlrev_b32 v%d, 4, v%d' % (t1, t1))
        A('s_mul_i32 s%d, s%d, %d' % (sT0, sW, 8 * TM))
        for jj in range(4):
            A('s_add_u32 s%d, s%d, %d' % (sT1, sT0, 8 * jj))
            A('v_add_u32 v%d, s%d, v%d' % (t2, sT1, t0))
            A('v_mul_lo_u32 v%d, v%d, s%d' % (t2, t2, sLda))
            A('v_add_u32 v%d, v%d, v%d' % (t2, t2, t1))
            A('v_subrev_u32 v%d, %d, v%d' % (self.vXd + jj, 1024 * jj, t2))
        A('v_lshrrev_b32 v%d, 1, v%d' % (t0, C))
        A('v_and_b32 v%d, 1, v%d' % (t3, C))
        A('s_lshl_b32 s%d, s%d, 4' % (sT0, sW))
        for jj in range(4):
            A('v_xor_b32 v%d, v%d, v%d' % (t1, t0, G))
            if (jj >> 1) & 1: A('v_xor_b32 v%d, 4, v%d' % (t1, t1))
            A('v_lshlrev_b32 v%d, 5, v%d' % (t1, t1))
            A('v_lshl_add_u32 v%d, v%d, 4, v%d' % (t1, t3, t1))
            A('s_add_u32 s%d, s%d, %d' % (sT1, sT0, 4 * jj))
            A('v_add_u32 v%d, s%d, v%d' % (t2, sT1, G))
            A('v_mul_lo_u32 v%d, v%d, s%d' % (t2, t2, sLdb))
            A('v_add_u32 v%d, v%d, v%d' % (t2, t2, t1))
            A('v_subrev_u32 v%d, %d, v%d' % (self.vWd + jj, 1024 * jj, t2))
        for i in range(2): A('v_mov_b32 v%d, v%d' % (self.vXr + i, self.vXb + i))
        for i in range(4): A('v_mov_b32 v%d, v%d' % (self.vWr + i, self.vWb + i))
        A('s_lshl_b32 s%d, s%d, 5' % (sA2, sLda))
        A('s_lshl_b32 s%d, s%d, 6' % (sB64, sLdb))
        A('s_mov_b32 s%d, 0' % sKi); A('s_mov_b32 s%d, 0' % sStW); A('s_mov_b32 s%d, 0' % sStR)

    def dma_list(self):
        TM = self.TM; out = []
        ngr = (TM + 3) // 4
        for gr in range(ngr):
            n = min(4, TM - 4 * gr)
            pre = ['s_add_u32 s%d, s%d, s%d' % (sT0, sMX, sStW)] if gr == 0 else []
            pre += ['s_add_u32 m0, s%d, %d' % (sT0, gr * 4096)]
            if gr == 0: so = sAoff; pre.append('s_nop 0')
            else: pre.append('s_add_u32 s%d, s%d, s%d' % (sT1, sAoff, sA2)); so = sT1
            for jj in range(n):
                ins = 'buffer_load_dwordx4 v%d, %s, s%d offen offset:%d %s lds' % (self.vXd + jj, srd(SRD_A), so, 1024 * jj, self.afl)
                out.append((pre if jj == 0 else []) + [' '.join(ins.split())])
        pre = ['s_add_u32 m0, s%d, s%d' % (sMW, sStW), 's_nop 0']
        for jj in range(4):
            ins = 'buffer_load_dwordx4 v%d, %s, s%d offen offset:%d %s lds' % (self.vWd + jj, srd(SRD_B), sBoff, 1024 * jj, self.bfl)
            out.append((pre if jj == 0 else []) + [' '.join(ins.split())])
        return out
    def dma_advance(self):
        return ['s_add_u32 s%d, s%d, 128' % (sAoff, sAoff),
                's_add_u32 s%d, s%d, s%d' % (sBoff, sBoff, sB64),
                's_add_u32 s%d, s%d, 1' % (sKi, sKi),
                's_add_u32 s%d, s%d, %d' % (sStW, sStW, self.STAGE),
                's_cmp_ge_u32 s%d, %d' % (sStW, self.NS * self.STAGE),
                's_cselect_b32 s%d, 0, s%d' % (sStW, sStW)]
    def shift_fix(self):
        A = self.A
        L = A.uid('sh')
        A('s_cmp_eq_u32 s%d, 0' % sShift)
        A('s_cbranch_scc1 %s' % L)
        A('s_mov_b32 s%d, 0' % sT0)
        A('s_cmp_eq_u32 s%d, 4' % sKi); A('s_cselect_b32 s%d, 2, s%d' % (sT0, sT0))
        A('s_cmp_eq_u32 s%d, 8' % sKi); A('s_cselect_b32 s%d, -3, s%d' % (sT0, sT0))
        A('s_cmp_eq_u32 s%d, 12' % sKi); A('s_cselect_b32 s%d, 4, s%d' % (sT0, sT0))
        A('s_mul_i32 s%d, s%d, s%d' % (sT0, sT0, sLda))
        A('s_add_u32 s%d, s%d, s%d' % (sAoff, sAoff, sT0))
        A.label(L)
    def ndma(self): return self.TM + 4
    def reads(self, st, kk):
        base = self.set[st]; w = []; x = []
        for tn in range(4):
            for h in range(2):
                w.append('ds_read_b64_tr_b16 v[%d:%d], v%d offset:%d' % (base + 4 * tn + 2 * h, base + 4 * tn + 2 * h + 1, self.vWr + tn, kk * 8192 + h * 1024))
        for tm in range(self.TM):
            x.append('ds_read_b128 v[%d:%d], v%d offset:%d' % (base + 16 + 4 * tm, base + 16 + 4 * tm + 3, self.vXr + kk, tm * 2048))
        return w + x
    def mfmas(self, st, first=False):
        base = self.set[st]; out = []
        for tm in range(self.TM):
            for tn in range(4):
                ac = self.acc(tm, tn)
                c = '0' if first else 'v[%d:%d]' % (ac, ac + 3)
                out.append('v_mfma_f32_16x16x32_bf16 v[%d:%d], v[%d:%d], v[%d:%d], %s' % (ac, ac + 3, base + 4 * tn, base + 4 * tn + 3, base + 16 + 4 * tm, base + 16 + 4 * tm + 3, c))
        return out
    def emit_stage(self, first, rd_next, dma):
        A = self.A; n = 4 * self.TM; nd = self.ndma()
        mf0 = self.mfmas(0, first); mf1 = self.mfmas(1)
        slots = [[] for _ in range(2 * n)]
        r1 = self.reads(1, 1)
        span1 = min(len(r1), n)
        for i, x in enumerate(r1): slots[i * span1 // len(r1)].append(x)
        bar = min(n - 1, len(r1) + 7)
        full = self.NS >= 4
        dl = self.dma_list() if dma else []
        if dma:
            lo = 0 if full else bar + 1
            span = 2 * n - lo
            pos = [lo + int((i + 0.5) * span / len(dl)) for i in range(len(dl))]
            for p_, grp in zip(pos, dl): slots[p_] += grp
            nbefore = sum(1 for p_ in pos if p_ <= bar)
        else: nbefore = 0
        upd = ['s_add_u32 s%d, s%d, %d' % (sStR, sStR, self.STAGE), 's_cmp_ge_u32 s%d, %d' % (sStR, self.NS * self.STAGE), 's_cselect_b32 s%d, 0, s%d' % (sStR, sStR)]
        upd += ['v_add_u32 v%d, s%d, v%d' % (self.vXr + i, sStR, self.vXb + i) for i in range(2)]
        upd += ['v_add_u32 v%d, s%d, v%d' % (self.vWr + i, sStR, self.vWb + i) for i in range(4)]
        return mf0, mf1, slots, bar, nbefore, upd

    def stage(self, first, rd_next, dma, younger):
        A = self.A; n = 4 * self.TM; nd = self.ndma()
        mf0, mf1, slots, bar, nbefore, upd = self.emit_stage(first, rd_next, dma)
        if rd_next:
            r0 = self.reads(0, 0)
            for i, x in enumerate(r0): slots[n + i].insert(0, x)
        A('s_waitcnt lgkmcnt(0)')
        for i in range(2 * n):
            A(mf0[i] if i < n else mf1[i - n])
            for x in slots[i]: A(x)
            if i == bar:
                A('s_waitcnt vmcnt(%d) lgkmcnt(0)' % (younger * nd + nbefore))
                A('s_barrier')
            if bar < i <= bar + len(upd) // 3 + 1 or i == bar:
                pass
            if i == bar:
                for x in upd[:3]: A(x)
            if bar < i <= bar + 6 and i - bar - 1 < 6 and i < n:
                A(upd[3 + i - bar - 1])
        return

    def mainloop(self):
        A = self.A; nd = self.ndma(); NS = self.NS
        ahead = NS - 1 if NS >= 4 else NS
        look = NS - 1 if NS >= 4 else NS
        self.stamp(0)
        for st in range(look):
            for grp in self.dma_list():
                for x in grp: A(x)
            for x in self.dma_advance(): A(x)
            self.shift_fix()
        A('s_waitcnt vmcnt(%d)' % ((look - 1) * nd))
        A('s_barrier')
        for x in self.reads(0, 0): A(x)
        self.stamp(1)
        young = (look - 2) if NS >= 4 else 1
        def one(first, rd_next, dma, younger):
            n = 4 * self.TM
            mf0, mf1, slots, bar, nbefore, upd = self.emit_stage(first, rd_next, dma)
            if rd_next:
                r0 = self.reads(0, 0); sp = min(len(r0), n)
                ins = {}
                for i, x in enumerate(r0): ins.setdefault(n + i * sp // len(r0), []).append(x)
                for k_, v_ in ins.items(): slots[k_] = v_ + slots[k_]
            A('s_waitcnt lgkmcnt(0)')
            pend = []
            for i in range(2 * n):
                A(mf0[i] if i < n else mf1[i - n])
                if i == n - 1 + 0 and pend:
                    for x in pend: A(x)
                    pend = []
                for x in slots[i]: A(x)
                if pend and i < n - 1:
                    A(pend.pop(0))
                if i == bar:
                    A('s_waitcnt vmcnt(%d) lgkmcnt(0)' % (younger * nd + nbefore))
                    A('s_barrier')
                    for x in upd[:3]: A(x)
                    pend = list(upd[3:])
                    if i == n - 1:
                        for x in pend: A(x)
                        pend = []
            if dma:
                for x in self.dma_advance(): A(x)
                self.shift_fix()
        one(True, True, True, young)
        A('s_mov_b32 s%d, 1' % sT5)
        Lloop = A.uid('gl')
        A.label(Lloop)
        one(False, True, True, young)
        A('s_add_u32 s%d, s%d, 1' % (sT5, sT5))
        A('s_cmp_lt_u32 s%d, s%d' % (sKi, sNk))
        A('s_cbranch_scc1 %s' % Lloop)
        for t in range(look):
            rem_young = max(0, (look - 1 - t) - 1)
            last = (t == look - 1)
            one(False, not last, False, rem_young)
        A.nop(10)
        self.stamp(2)

    def gelu_setup(self):
        c1 = -2.0 * math.sqrt(2.0 / math.pi) * math.log2(math.e)
        self.A('s_mov_b32 s%d, %s' % (sK1, fhex(c1)))
        self.A('s_mov_b32 s%d, %s' % (sK2, fhex(c1 * 0.044715)))
        self.vK1 = self.vT + 4
        self.A('v_mov_b32 v%d, s%d' % (self.vK1, sK1))
    def gelu(self, regs, t, rnd=True):
        A = self.A; n = len(regs)
        if rnd:
            for i in range(0, n, 2):
                A('v_cvt_pk_bf16_f32 v%d, v%d, v%d' % (t, regs[i], regs[i + 1]))
                A('v_lshlrev_b32 v%d, 16, v%d' % (regs[i], t))
                A('v_and_b32 v%d, 0xffff0000, v%d' % (regs[i + 1], t))
        for i in range(n): A('v_mul_f32 v%d, v%d, v%d' % (t + i, regs[i], regs[i]))
        for i in range(n): A('v_fma_f32 v%d, v%d, s%d, v%d' % (t + i, t + i, sK2, self.vK1))
        for i in range(n): A('v_mul_f32 v%d, v%d, v%d' % (t + i, t + i, regs[i]))
        for i in range(n): A('v_exp_f32 v%d, v%d' % (t + i, t + i))
        for i in range(n): A('v_add_f32 v%d, 1.0, v%d' % (t + i, t + i))
        for i in range(n): A('v_rcp_f32 v%d, v%d' % (t + i, t + i))
        A('s_nop 0')
        for i in range(n): A('v_mul_f32 v%d, v%d, v%d' % (regs[i], regs[i], t + i))

    def epi_addr(self, bytes_per_col):
        A = self.A
        vCo, t0 = self.vT, self.vT + 1
        A('s_mul_i32 s%d, s%d, %d' % (sT1, sWm, self.BM // 2))
        A('v_add_u32 v%d, s%d, v%d' % (t0, sT1, self.vC))
        A('v_mul_lo_u32 v%d, v%d, s%d' % (vCo, t0, sLdc))
        if bytes_per_col == 2:
            A('v_and_b32 v%d, 1, v%d' % (t0, self.vG))
            A('v_lshl_add_u32 v%d, v%d, 5, v%d' % (vCo, t0, vCo))
            A('v_lshrrev_b32 v%d, 1, v%d' % (t0, self.vG))
            A('v_lshl_add_u32 v%d, v%d, 4, v%d' % (vCo, t0, vCo))
            A('s_lshl_b32 s%d, s%d, 7' % (sT1, sWn))
        else:
            A('v_lshl_add_u32 v%d, v%d, 4, v%d' % (vCo, self.vG, vCo))
            A('s_lshl_b32 s%d, s%d, 8' % (sT1, sWn))
        A('v_add_u32 v%d, s%d, v%d' % (vCo, sT1, vCo))
        A('s_lshl_b32 s%d, s%d, 4' % (sT2, sLdc))
        return vCo
    def epi_bf16(self, gelu=False, resid=False, cfl='sc1'):
        A = self.A; TM = self.TM
        if gelu: self.gelu_setup()
        vCo = self.epi_addr(2)
        D = 32; RR = 64
        if resid:
            for tm in range(TM):
                A('s_mul_i32 s%d, s%d, %d' % (sT3, sT2, tm))
                A('s_add_u32 s%d, s%d, s%d' % (sT3, sT3, sRoff))
                for pr in range(2):
                    R = RR + (tm * 2 + pr) * 4
                    assert R + 3 < self.ACC
                    A('buffer_load_dwordx4 v[%d:%d], v%d, %s, s%d offen offset:%d sc1' % (R, R + 3, vCo, srd(SRD_R), sT3, pr * 64))
        for tm in range(TM):
            A('s_mul_i32 s%d, s%d, %d' % (sT3, sT2, tm))
            A('s_add_u32 s%d, s%d, s%d' % (sT3, sT3, sCoff))
            for pr in range(2):
                a0 = self.acc(tm, 2 * pr); a1 = self.acc(tm, 2 * pr + 1)
                if gelu: self.gelu(list(range(a0, a0 + 8)), D + 8)
                P = D + 4 * ((tm * 2 + pr) & 1)
                A('v_cvt_pk_bf16_f32 v%d, v%d, v%d' % (P, a0, a0 + 1))
                A('v_cvt_pk_bf16_f32 v%d, v%d, v%d' % (P + 1, a0 + 2, a0 + 3))
                A('v_cvt_pk_bf16_f32 v%d, v%d, v%d' % (P + 2, a1, a1 + 1))
                A('v_cvt_pk_bf16_f32 v%d, v%d, v%d' % (P + 3, a1 + 2, a1 + 3))
                A('s_nop 1')
                A('v_permlane16_swap_b32 v%d, v%d' % (P, P + 2))
                A('v_permlane16_swap_b32 v%d, v%d' % (P + 1, P + 3))
                if resid:
                    R = RR + (tm * 2 + pr) * 4
                    if tm == 0 and pr == 0: A('s_waitcnt vmcnt(0)')
                    for i in range(4):
                        t = D + 8
                        A('v_lshlrev_b32 v%d, 16, v%d' % (t, P + i))
                        A('v_and_b32 v%d, 0xffff0000, v%d' % (t + 1, P + i))
                        A('v_lshlrev_b32 v%d, 16, v%d' % (t + 2, R + i))
                        A('v_and_b32 v%d, 0xffff0000, v%d' % (t + 3, R + i))
                        A('v_add_f32 v%d, v%d, v%d' % (t, t, t + 2))
                        A('v_add_f32 v%d, v%d, v%d' % (t + 1, t + 1, t + 3))
                        A('v_cvt_pk_bf16_f32 v%d, v%d, v%d' % (P + i, t, t + 1))
                else:
                    A('s_nop 0')
                A('buffer_store_dwordx4 v[%d:%d], v%d, %s, s%d offen offset:%d %s' % (P, P + 3, vCo, srd(SRD_C), sT3, pr * 64, cfl))
    def epi_f32(self, cfl='sc1'):
        A = self.A; TM = self.TM
        vCo = self.epi_addr(4)
        for tm in range(TM):
            A('s_mul_i32 s%d, s%d, %d' % (sT3, sT2, tm))
            A('s_add_u32 s%d, s%d, s%d' % (sT3, sT3, sCoff))
            for tn in range(4):
                ac = self.acc(tm, tn)
                A('buffer_store_dwordx4 v[%d:%d], v%d, %s, s%d offen offset:%d %s' % (ac, ac + 3, vCo, srd(SRD_C), sT3, tn * 64, cfl))
```

```python
MB = 1 << 20
KB = 1 << 10
WS_SIZE = 256 * MB
XLN  = 0 * MB
QX   = 4 * MB
KX   = 20 * MB
VX   = 36 * MB
KM   = 52 * MB
VMF  = 56 * MB
OX   = 60 * MB
CH   = 76 * MB
MEMB = CH
QKB  = CH + 128 * KB
OB   = CH + 1 * MB
PART = CH + 2 * MB
CNT  = 80 * MB
FLG_SEG = CNT + 128 * KB
A_X, A_MEM0, A_WQ, A_WK, A_WV, A_WO, A_SEG, B_X, B_W1, B_W2, B_W3, B_W4, D_OUT, D_DBG, D_WS = [8 * i for i in range(15)]

HB   = 84 * MB
YB   = 88 * MB
ZB   = 92 * MB
GB0  = 96 * MB
GB   = GB0 + 2 * 2048
X1B  = 102 * MB
Z2B  = 106 * MB
UB   = 110 * MB
PO   = 128 * MB
P4   = 160 * MB

FL2  = CNT + 192 * KB
FQKV = FL2
NBLK = 17
FATT = FQKV + 1536 * 4
FO   = FATT + 640 * 4
FR1  = FO + 1280 * 4
FW1  = FR1 + 640 * 4
FW2  = FW1 + 160 * 4
FR2  = FW2 + 160 * 4
FW3  = FR2 + 640 * 4
FW4  = FW3 + 640 * 4
QCTR = FW4 + 1280 * 4
FL_END = QCTR + 1024
assert FL_END <= CNT + 256 * KB

TRC = 240 * MB
TRC_CH = TRC + 2 * MB
```

```python
from asmlib import *
from layout import *
from gemm2 import *
import struct, math
def fhex(x): return '0x%08x' % struct.unpack('<I', struct.pack('<f', x))[0]

def wave_allreduce(A, op, x, t):
    for rot in (8, 4, 2, 1):
        A('s_nop 1')
        A('v_%s_dpp v%d, v%d, v%d row_ror:%d row_mask:0xf bank_mask:0xf' % (op, x, x, x, rot))
    A('v_mov_b32 v%d, v%d' % (t, x))
    A('s_nop 1')
    A('v_permlane16_swap_b32 v%d, v%d' % (x, t))
    A('s_nop 0')
    A('v_%s v%d, v%d, v%d' % (op, x, x, t))
    A('v_mov_b32 v%d, v%d' % (t, x))
    A('s_nop 1')
    A('v_permlane32_swap_b32 v%d, v%d' % (x, t))
    A('s_nop 0')
    A('v_%s v%d, v%d, v%d' % (op, x, x, t))

def unpack8(A, src, dst):
    for i in range(4):
        A('v_lshlrev_b32 v%d, 16, v%d' % (dst + 2 * i, src + i))
        A('v_and_b32 v%d, 0xffff0000, v%d' % (dst + 2 * i + 1, src + i))
def pack8(A, src, dst):
    for i in range(4):
        A('v_cvt_pk_bf16_f32 v%d, v%d, v%d' % (dst + i, src + 2 * i, src + 2 * i + 1))
def round_bf16(A, regs, tmp):
    for i in range(0, len(regs), 2):
        A('v_cvt_pk_bf16_f32 v%d, v%d, v%d' % (tmp, regs[i], regs[i + 1]))
        A('v_lshlrev_b32 v%d, 16, v%d' % (regs[i], tmp))
        A('v_and_b32 v%d, 0xffff0000, v%d' % (regs[i + 1], tmp))

def rnd1(A, x, tmp):
    A('v_cvt_pk_bf16_f32 v%d, v%d, v%d' % (tmp, x, x))
    A('v_lshlrev_b32 v%d, 16, v%d' % (x, tmp))
def layernorm16(A, X, t):
    m, u, w, q = t, t + 1, t + 2, t + 3
    A('v_add_f32 v%d, v%d, v%d' % (m, X, X + 1))
    for i in range(2, 16): A('v_add_f32 v%d, v%d, v%d' % (m, m, X + i))
    wave_allreduce(A, 'add_f32', m, u)
    A('v_mul_f32 v%d, %s, v%d' % (m, fhex(1.0 / 1024), m))
    A('v_sub_f32 v%d, v%d, v%d' % (q, X, m))
    A('v_mul_f32 v%d, v%d, v%d' % (w, q, q))
    for i in range(1, 16):
        A('v_sub_f32 v%d, v%d, v%d' % (q, X + i, m))
        A('v_fmac_f32 v%d, v%d, v%d' % (w, q, q))
    wave_allreduce(A, 'add_f32', w, u)
    A('v_mul_f32 v%d, %s, v%d' % (w, fhex(1.0 / 1024), w))
    rnd1(A, w, u); rnd1(A, m, u)
    A('v_add_f32 v%d, %s, v%d' % (w, fhex(1e-5), w))
    rnd1(A, w, u)
    A('v_sqrt_f32 v%d, v%d' % (w, w))
    A('s_nop 0')
    rnd1(A, w, u)
    A('v_rcp_f32 v%d, v%d' % (w, w))
    for i in range(16): A('v_sub_f32 v%d, v%d, v%d' % (X + i, X + i, m))
    round_bf16(A, list(range(X, X + 16)), u)
    for i in range(16): A('v_mul_f32 v%d, v%d, v%d' % (X + i, X + i, w))

def lane_setup(A):
    A('v_and_b32 v1, 63, v0')
    A('v_lshrrev_b32 v2, 6, v0')
    A('s_nop 0')
    A('v_readfirstlane_b32 s%d, v2' % sW)
    A('v_lshlrev_b32 v3, 4, v1')
    A('v_lshlrev_b32 v4, 5, v1')
    A('s_nop 1')

def load_row_bf16(A, dst, srdn, soff, fl):
    A('buffer_load_dwordx4 v[%d:%d], v3, %s, s%d offen %s' % (dst, dst + 3, srd(srdn), soff, fl))
    A('buffer_load_dwordx4 v[%d:%d], v3, %s, s%d offen offset:1024 %s' % (dst + 4, dst + 7, srd(srdn), soff, fl))
def store_row_bf16(A, src, srdn, soff, fl):
    A('buffer_store_dwordx4 v[%d:%d], v3, %s, s%d offen %s' % (src, src + 3, srd(srdn), soff, fl))
    A('buffer_store_dwordx4 v[%d:%d], v3, %s, s%d offen offset:1024 %s' % (src + 4, src + 7, srd(srdn), soff, fl))
def load_row_f32(A, dst, srdn, soff, fl):
    A('buffer_load_dwordx4 v[%d:%d], v4, %s, s%d offen %s' % (dst, dst + 3, srd(srdn), soff, fl))
    A('buffer_load_dwordx4 v[%d:%d], v4, %s, s%d offen offset:16 %s' % (dst + 4, dst + 7, srd(srdn), soff, fl))
    A('buffer_load_dwordx4 v[%d:%d], v4, %s, s%d offen offset:2048 %s' % (dst + 8, dst + 11, srd(srdn), soff, fl))
    A('buffer_load_dwordx4 v[%d:%d], v4, %s, s%d offen offset:2064 %s' % (dst + 12, dst + 15, srd(srdn), soff, fl))

sRow = 55
def unit_ln1(A, rows_per_wave=2):
    lane_setup(A)
    A('s_mul_i32 s%d, s%d, %d' % (sT0, sW, rows_per_wave))
    A('s_add_u32 s%d, s%d, s%d' % (sT0, sT0, sRow))
    A('s_lshl_b32 s%d, s%d, 11' % (sT1, sT0))
    for r_ in range(rows_per_wave):
        A('s_add_u32 s%d, s%d, %d' % (sT2, sT1, 2048 * r_))
        load_row_bf16(A, 16 + 8 * r_, SRD_R, sT2, '')
    A('s_waitcnt vmcnt(0)')
    for r_ in range(rows_per_wave):
        X = 64
        unpack8(A, 16 + 8 * r_, X); unpack8(A, 20 + 8 * r_, X + 8)
        layernorm16(A, X, 8)
        pack8(A, X, 48); pack8(A, X + 8, 52)
        A('s_add_u32 s%d, s%d, %d' % (sT2, sT1, XLN + 2048 * r_))
        store_row_bf16(A, 48, SRD_WS, sT2, 'sc1')
        A('s_nop 1')

NPART = 6
def sum_partials(A, P, X, tmp):
    Y = X + 16
    unpack8(A, P, X); unpack8(A, P + 4, X + 8)
    for p in range(1, NPART):
        unpack8(A, P + 8 * p, Y); unpack8(A, P + 8 * p + 4, Y + 8)
        for i in range(0, 16, 2):
            A('v_pk_add_f32 v[%d:%d], v[%d:%d], v[%d:%d]' % (X + i, X + i + 1, X + i, X + i + 1, Y + i, Y + i + 1))
    round_bf16(A, list(range(X, X + 16)), tmp)

def row_setup(A):
    lane_setup(A)
    A('s_add_u32 s%d, s%d, s%d' % (sT0, sW, sRow))
    A('s_lshl_b32 s%d, s%d, 11' % (sT1, sT0))
    A('s_lshl_b32 s%d, s%d, 12' % (sT3, sT0))

def unit_r1(A):
    row_setup(A)
    B = 16
    for p in range(NPART):
        A('s_add_u32 s%d, s%d, %d' % (sT2, sT1, PO + p * 4 * MB))
        load_row_bf16(A, B + 8 * p, SRD_WS, sT2, 'sc1')
    load_row_bf16(A, B + 16 * NPART, SRD_R, sT1, '')
    A('s_waitcnt vmcnt(0)')
    X, Y = 160, 176
    sum_partials(A, B, X, 8)
    unpack8(A, B + 16 * NPART, Y); unpack8(A, B + 16 * NPART + 4, Y + 8)
    for i in range(16): A('v_add_f32 v%d, v%d, v%d' % (X + i, X + i, Y + i))
    pack8(A, X, 192); pack8(A, X + 8, 196)
    A('s_add_u32 s%d, s%d, %d' % (sT2, sT1, HB))
    store_row_bf16(A, 192, SRD_WS, sT2, 'sc1')
    unpack8(A, 192, X); unpack8(A, 196, X + 8)
    layernorm16(A, X, 8)
    pack8(A, X, 200); pack8(A, X + 8, 204)
    A('s_add_u32 s%d, s%d, %d' % (sT2, sT1, YB))
    store_row_bf16(A, 200, SRD_WS, sT2, 'sc1')
    unpack8(A, 200, X); unpack8(A, 204, X + 8)
    layernorm16(A, X, 8)
    pack8(A, X, 208); pack8(A, X + 8, 212)
    A('s_add_u32 s%d, s%d, %d' % (sT2, sT1, ZB))
    store_row_bf16(A, 208, SRD_WS, sT2, 'sc1')

def unit_r2(A):
    row_setup(A)
    A('s_add_u32 s%d, s%d, %d' % (sT2, sT1, X1B))
    load_row_bf16(A, 16, SRD_WS, sT2, 'sc1')
    A('s_waitcnt vmcnt(0)')
    X = 64
    unpack8(A, 16, X); unpack8(A, 20, X + 8)
    layernorm16(A, X, 8)
    pack8(A, X, 48); pack8(A, X + 8, 52)
    A('s_add_u32 s%d, s%d, %d' % (sT2, sT1, Z2B))
    store_row_bf16(A, 48, SRD_WS, sT2, 'sc1')

def unit_r3(A):
    row_setup(A)
    B = 16
    for p in range(NPART):
        A('s_add_u32 s%d, s%d, %d' % (sT2, sT1, P4 + p * 4 * MB))
        load_row_bf16(A, B + 8 * p, SRD_WS, sT2, 'sc1')
    A('s_add_u32 s%d, s%d, %d' % (sT2, sT1, X1B))
    load_row_bf16(A, B + 16 * NPART, SRD_WS, sT2, 'sc1')
    A('s_add_u32 s%d, s%d, %d' % (sT2, sT1, HB))
    load_row_bf16(A, B + 16 * NPART + 8, SRD_WS, sT2, 'sc1')
    A('s_waitcnt vmcnt(0)')
    X, Y = 160, 176
    sum_partials(A, B, X, 8)
    unpack8(A, B + 16 * NPART, Y); unpack8(A, B + 16 * NPART + 4, Y + 8)
    for i in range(16): A('v_add_f32 v%d, v%d, v%d' % (X + i, X + i, Y + i))
    round_bf16(A, list(range(X, X + 16)), 8)
    unpack8(A, B + 16 * NPART + 8, Y); unpack8(A, B + 16 * NPART + 12, Y + 8)
    for i in range(16): A('v_add_f32 v%d, v%d, v%d' % (X + i, X + i, Y + i))
    pack8(A, X, 192); pack8(A, X + 8, 196)
    store_row_bf16(A, 192, SRD_C, sT1, '')

sSeg, sHead = 56, 57
def unit_att(A):
    WSTR = 27648
    L, G, N = 1, 2, 3
    t0, t1, t2, t3 = 4, 5, 6, 7
    A('v_and_b32 v%d, 63, v0' % L)
    A('v_lshrrev_b32 v%d, 6, v0' % t0)
    A('s_nop 0')
    A('v_readfirstlane_b32 s%d, v%d' % (sW, t0))
    A('v_lshrrev_b32 v%d, 4, v%d' % (G, L))
    A('v_and_b32 v%d, 15, v%d' % (N, L))
    A('s_nop 1')
    A('s_add_u32 s%d, s%d, s%d' % (sT5, sHead, sW))
    A('s_mul_i32 s%d, s%d, %d' % (sT4, sW, WSTR))
    A('s_lshl_b32 s%d, s%d, 18' % (sT0, sSeg))
    A('s_lshl_b32 s%d, s%d, 8' % (sT1, sT5))
    A('s_add_u32 s%d, s%d, s%d' % (sT0, sT0, sT1))
    vDq, vDv = 8, 16
    for i in range(4):
        A('v_add_u32 v%d, %d, v%d' % (t0, 4 * i, G))
        A('v_xor_b32 v%d, v%d, v%d' % (t1, t0, N))
        A('v_lshlrev_b32 v%d, 4, v%d' % (t1, t1))
        A('v_lshl_add_u32 v%d, v%d, 13, v%d' % (t1, t0, t1))
        A('v_subrev_u32 v%d, %d, v%d' % (vDq + i, 1024 * i, t1))
        A('v_and_b32 v%d, 7, v%d' % (t2, t0))
        A('v_lshrrev_b32 v%d, 1, v%d' % (t3, N))
        A('v_xor_b32 v%d, v%d, v%d' % (t2, t2, t3))
        A('v_lshlrev_b32 v%d, 5, v%d' % (t2, t2))
        A('v_and_b32 v%d, 1, v%d' % (t3, N))
        A('v_lshl_add_u32 v%d, v%d, 4, v%d' % (t2, t3, t2))
        A('v_lshl_add_u32 v%d, v%d, 13, v%d' % (t2, t0, t2))
        A('v_subrev_u32 v%d, %d, v%d' % (vDv + i, 1024 * i, t2))
    def dma_tile(gbase, ldsoff, vD):
        for hf in range(2):
            A('s_add_u32 m0, s%d, %d' % (sT4, ldsoff + hf * 4096))
            A('s_add_u32 s%d, s%d, %d' % (sT2, sT0, gbase + hf * 16 * 8192))
            for i in range(4):
                A('buffer_load_dwordx4 v%d, %s, s%d offen offset:%d sc1 lds' % (vD + i, srd(SRD_WS), sT2, 1024 * i))
    dma_tile(QX, 0, vDq); dma_tile(KX, 8192, vDq); dma_tile(VX, 16384, vDv)
    A('s_lshl_b32 s%d, s%d, 16' % (sT2, sSeg))
    A('s_add_u32 s%d, s%d, s%d' % (sT2, sT2, sT1))
    A('s_add_u32 s%d, s%d, %d' % (sT2, sT2, KM))
    A('s_add_u32 m0, s%d, %d' % (sT4, 24576))
    A('s_nop 0')
    for i in range(2):
        A('buffer_load_dwordx4 v%d, %s, s%d offen offset:%d sc1 lds' % (vDq + i, srd(SRD_WS), sT2, 1024 * i))
    vVM = 96
    A('s_lshl_b32 s%d, s%d, 5' % (sT2, sSeg))
    A('s_add_u32 s%d, s%d, s%d' % (sT2, sT2, sT5))
    A('s_lshl_b32 s%d, s%d, 11' % (sT2, sT2))
    A('s_add_u32 s%d, s%d, %d' % (sT2, sT2, VMF))
    A('v_and_b32 v%d, 31, v%d' % (t0, L))
    A('v_lshlrev_b32 v%d, 3, v%d' % (t0, t0))
    for te in range(8):
        A('buffer_load_dwordx2 v[%d:%d], v%d, %s, s%d offen offset:%d sc1' % (vVM + 2 * te, vVM + 2 * te + 1, t0, srd(SRD_WS), sT2, 256 * te))
    vFr = 20
    A('v_xor_b32 v%d, v%d, v%d' % (t0, G, N))
    A('v_lshlrev_b32 v%d, 4, v%d' % (t0, t0))
    A('v_lshl_add_u32 v%d, v%d, 8, v%d' % (t0, N, t0))
    A('v_add_u32 v%d, s%d, v%d' % (vFr, sT4, t0))
    for k in range(1, 4): A('v_xor_b32 v%d, %d, v%d' % (vFr + k, k * 64, vFr))
    vKmA = 24
    A('v_and_b32 v%d, 7, v%d' % (t1, N))
    A('v_xor_b32 v%d, v%d, v%d' % (t0, G, t1))
    A('v_lshlrev_b32 v%d, 4, v%d' % (t0, t0))
    A('v_lshl_add_u32 v%d, v%d, 8, v%d' % (t0, t1, t0))
    A('v_add_u32 v%d, s%d, v%d' % (vKmA, sT4, t0))
    A('v_add_u32 v%d, 24576, v%d' % (vKmA, vKmA))
    for k in range(1, 4): A('v_xor_b32 v%d, %d, v%d' % (vKmA + k, k * 64, vKmA))
    vVt = 28
    A('v_lshrrev_b32 v%d, 2, v%d' % (t0, N))
    A('v_lshl_add_u32 v%d, v%d, 2, v%d' % (t0, G, t0))
    A('v_and_b32 v%d, 7, v%d' % (t1, t0))
    A('v_lshlrev_b32 v%d, 5, v%d' % (t1, t1))
    A('v_lshl_add_u32 v%d, v%d, 8, v%d' % (t1, t0, t1))
    A('v_and_b32 v%d, 3, v%d' % (t2, N))
    A('v_lshl_add_u32 v%d, v%d, 3, v%d' % (t1, t2, t1))
    A('v_add_u32 v%d, s%d, v%d' % (vVt, sT4, t1))
    A('v_add_u32 v%d, 16384, v%d' % (vVt, vVt))
    A('s_waitcnt vmcnt(0)')
    vQf = 32
    vKf = 64
    vMf = 112
    for qt in range(2):
        for k in range(4):
            A('ds_read_b128 v[%d:%d], v%d offset:%d' % (vQf + (qt * 4 + k) * 4, vQf + (qt * 4 + k) * 4 + 3, vFr + k, qt * 4096))
    for tt in range(2):
        for k in range(4):
            A('ds_read_b128 v[%d:%d], v%d offset:%d' % (vKf + (tt * 4 + k) * 4, vKf + (tt * 4 + k) * 4 + 3, vFr + k, 8192 + tt * 4096))
        A('s_waitcnt lgkmcnt(8)')
    for k in range(4):
        A('ds_read_b128 v[%d:%d], v%d' % (vMf + 4 * k, vMf + 4 * k + 3, vKmA + k))
    A('s_waitcnt lgkmcnt(0)')
    S = {(0, 'm'): 128, (0, 0): 132, (1, 'm'): 136, (1, 0): 140, (1, 1): 144}
    for k in range(4):
        for (qt, kt), R in S.items():
            a_ = vMf + 4 * k if kt == 'm' else vKf + (kt * 4 + k) * 4
            b_ = vQf + (qt * 4 + k) * 4
            c_ = '0' if k == 0 else 'v[%d:%d]' % (R, R + 3)
            A('v_mfma_f32_16x16x32_bf16 v[%d:%d], v[%d:%d], v[%d:%d], %s' % (R, R + 3, a_, a_ + 3, b_, b_ + 3, c_))
    vVf = 148
    for te in range(8):
        A('v_xor_b32 v%d, %d, v%d' % (t0 + (te & 1), te * 32, vVt))
        for tt in range(2):
            A('ds_read_b64_tr_b16 v[%d:%d], v%d offset:%d' % (vVf + (te * 2 + tt) * 2, vVf + (te * 2 + tt) * 2 + 1, t0 + (te & 1), tt * 4096))
    A('v_lshlrev_b32 v%d, 2, v%d' % (t2, G))
    NEG = 30
    A('v_mov_b32 v%d, 0xf149f2ca' % NEG)
    for i in range(4):
        A('v_add_u32 v%d, %d, v%d' % (t3, i, t2))
        A('v_cmp_gt_u32 vcc, v%d, v%d' % (t3, N))
        A('s_nop 1')
        A('v_cndmask_b32 v%d, v%d, v%d, vcc' % (S[(0, 0)] + i, S[(0, 0)] + i, NEG))
        A('v_cndmask_b32 v%d, v%d, v%d, vcc' % (S[(1, 1)] + i, S[(1, 1)] + i, NEG))
    A('v_cmp_le_u32 vcc, 2, v%d' % G)
    A('s_nop 1')
    for qt in range(2):
        for i in range(4):
            A('v_cndmask_b32 v%d, v%d, v%d, vcc' % (S[(qt, 'm')] + i, S[(qt, 'm')] + i, NEG))
    A('s_mov_b32 s%d, %s' % (sT3, fhex(math.log2(math.e))))
    A('s_mov_b32 s%d, %s' % (sT2, fhex(128 ** -0.5)))
    vP = 180
    Ppk = {}
    pi = vP
    for qt in range(2):
        tiles = [S[(qt, 'm')], S[(qt, 0)]] + ([S[(1, 1)]] if qt else [])
        regs = [R + i for R in tiles for i in range(4)]
        m, t = 192, 193
        round_bf16(A, regs, t)
        for x in regs: A('v_mul_f32 v%d, s%d, v%d' % (x, sT2, x))
        round_bf16(A, regs, t)
        A('v_max3_f32 v%d, v%d, v%d, v%d' % (m, regs[0], regs[1], regs[2]))
        rs = regs[3:]
        while len(rs) >= 2:
            A('v_max3_f32 v%d, v%d, v%d, v%d' % (m, m, rs[0], rs[1])); rs = rs[2:]
        if rs: A('v_max_f32 v%d, v%d, v%d' % (m, m, rs[0]))
        for sw in ('v_permlane32_swap_b32', 'v_permlane16_swap_b32'):
            A('v_mov_b32 v%d, v%d' % (t, m)); A('s_nop 1')
            A('%s v%d, v%d' % (sw, m, t)); A('s_nop 0')
            A('v_max_f32 v%d, v%d, v%d' % (m, m, t))
        for x in regs: A('v_sub_f32 v%d, v%d, v%d' % (x, x, m))
        for x in regs: A('v_mul_f32 v%d, s%d, v%d' % (x, sT3, x))
        for x in regs: A('v_exp_f32 v%d, v%d' % (x, x))
        A('s_nop 0')
        A('v_add_f32 v%d, v%d, v%d' % (m, regs[0], regs[1]))
        for x in regs[2:]: A('v_add_f32 v%d, v%d, v%d' % (m, m, x))
        for sw in ('v_permlane32_swap_b32', 'v_permlane16_swap_b32'):
            A('v_mov_b32 v%d, v%d' % (t, m)); A('s_nop 1')
            A('%s v%d, v%d' % (sw, m, t)); A('s_nop 0')
            A('v_add_f32 v%d, v%d, v%d' % (m, m, t))
        A('v_rcp_f32 v%d, v%d' % (m, m))
        A('s_nop 0')
        for x in regs: A('v_mul_f32 v%d, v%d, v%d' % (x, x, m))
        for ti, R in enumerate(tiles):
            key = 'm' if ti == 0 else ti - 1
            Ppk[(qt, key)] = pi
            A('v_cvt_pk_bf16_f32 v%d, v%d, v%d' % (pi, R, R + 1))
            A('v_cvt_pk_bf16_f32 v%d, v%d, v%d' % (pi + 1, R + 2, R + 3))
            pi += 2
    A('s_waitcnt lgkmcnt(0)')
    vO = 32
    for qt in range(2):
        for te in range(8):
            R = vO + (qt * 8 + te) * 4
            A('v_mfma_f32_16x16x16_bf16 v[%d:%d], v[%d:%d], v[%d:%d], 0' % (R, R + 3, vVM + 2 * te, vVM + 2 * te + 1, Ppk[(qt, 'm')], Ppk[(qt, 'm')] + 1))
    for qt in range(2):
        for tt in range(2 if qt else 1):
            for te in range(8):
                R = vO + (qt * 8 + te) * 4
                a_ = vVf + (te * 2 + tt) * 2
                A('v_mfma_f32_16x16x16_bf16 v[%d:%d], v[%d:%d], v[%d:%d], v[%d:%d]' % (R, R + 3, a_, a_ + 1, Ppk[(qt, tt)], Ppk[(qt, tt)] + 1, R, R + 3))
    A.nop(10)
    RS = 272
    vSw, vSr, vGo = 4, 5, 6
    A('v_mul_u32_u24 v%d, %d, v%d' % (vSw, RS, N))
    A('v_lshl_add_u32 v%d, v%d, 3, v%d' % (vSw, G, vSw))
    A('v_add_u32 v%d, s%d, v%d' % (vSw, sT4, vSw))
    for qt in range(2):
        for te in range(8):
            R = vO + (qt * 8 + te) * 4
            A('v_cvt_pk_bf16_f32 v%d, v%d, v%d' % (R, R, R + 1))
            A('v_cvt_pk_bf16_f32 v%d, v%d, v%d' % (R + 1, R + 2, R + 3))
            A('ds_write_b64 v%d, v[%d:%d] offset:%d' % (vSw, R, R + 1, qt * 16 * RS + te * 32))
    A('v_mul_u32_u24 v%d, %d, v%d' % (vSr, RS, G))
    A('v_lshl_add_u32 v%d, v%d, 4, v%d' % (vSr, N, vSr))
    A('v_add_u32 v%d, s%d, v%d' % (vSr, sT4, vSr))
    A('v_lshlrev_b32 v%d, 13, v%d' % (vGo, G))
    A('v_lshl_add_u32 v%d, v%d, 4, v%d' % (vGo, N, vGo))
    A('s_waitcnt lgkmcnt(0)')
    for b in range(8):
        A('ds_read_b128 v[%d:%d], v%d offset:%d' % (96 + 4 * b, 96 + 4 * b + 3, vSr, b * 4 * RS))
    A('s_waitcnt lgkmcnt(0)')
    for b in range(8):
        A('s_add_u32 s%d, s%d, %d' % (sT2, sT0, OX + b * 4 * 8192))
        A('buffer_store_dwordx4 v[%d:%d], v%d, %s, s%d offen sc1' % (96 + 4 * b, 96 + 4 * b + 3, vGo, srd(SRD_WS), sT2))
```

```python
import sys
from asmlib import *
from layout import *
import chain4 as chain
from gemm2 import *
from units2 import *

BM = 128
SBM = 64
NBIG = 15
NB = NBLK
SPIN = 1 << 22
sXW, sTK, sIt, sFlag, sItem, sQi, sTab, sDep, sCnt, sSp = 80, 81, 82, 83, 84, 85, 86, 88, 89, 90
sMsk = 92
sRB, sNT, sKS = 94, 95, 96
sK0, sNKi = 78, 79
sRow0, sBig = 70, 71
sShI, sShR = 75, 76
sS0, sS1, sS2 = 58, 59, 91
sChunk = 97
sD0, sD1, sD2 = 72, 73, 74
sC3 = 77
T_ATT, T_O, T_R1, T_W1, T_W2, T_R2, T_W3, T_W4, T_R3, T_ROWLOOP = range(1, 11)
O_SPLIT = [(0, 11), (11, 11), (22, 11), (33, 11), (44, 10), (54, 10)]
W4_SPLIT = [(0, 10), (10, 10), (20, 9), (29, 9), (38, 9), (47, 9)]
def word(t, a, b=0, c=0, k0=0, nk=0, end=0):
    assert a < 64 and b < 32 and c < 8 and k0 < 64 and nk < 32
    return (t << 28) | (a << 22) | (b << 17) | (c << 14) | (k0 << 8) | (nk << 3) | end

def build_table():
    T = {(x, t): [0, 0, 0] for x in range(8) for t in range(32)}
    slot = [0] * 6
    def take(x):
        w = (x, slot[x]); slot[x] += 1; assert slot[x] <= 32; return w
    for x in range(6):
        for nt in range(8): T[take(x)] = [word(T_O, 0, nt, x, *O_SPLIT[x]), 0, 0]
    for nt in range(8): T[take(0)] = [0, word(T_W1, 0, nt, 0, nt, 8), 0]
    for nt in range(8): T[take(1)] = [0, word(T_W2, 0, nt, 0, nt, 8), 0]
    for nt in range(28): T[take(2 + nt // 7)] = [0, word(T_W3, 0, nt, 0, nt % 7, 7), 0]
    misc = [(T_W1, nt) for nt in range(8)] + [(T_W2, nt) for nt in range(8)] + [(T_W3, nt) for nt in range(28)]
    mi = 0
    for x in range(6):
        for nt in range(8):
            m = 0
            if mi < len(misc):
                ty, n2 = misc[mi]; m = word(ty, NBIG, n2, 0, 0, 1, end=1); mi += 1
            T[take(x)] = [word(T_O, NBIG, nt, x, *O_SPLIT[x], end=1), m, word(T_W4, 0, nt, x, *W4_SPLIT[x], end=1)]
    free = [(x, t) for x in range(6) for t in range(slot[x], 32)]
    assert len(free) >= 48, len(free)
    for i in range(16): T[free[i]] = [word(T_ATT, 0, i), 0, 0]
    for c in range(32): T[free[16 + c]] = [word(T_ROWLOOP, 0, c), 0, 0]
    for m in range(64):
        w = [0, 0, 0]
        if m < 48:
            ks, nt = m // 8, m % 8
            w[0] = word(T_O, NBIG + 1, nt, ks, *O_SPLIT[ks], end=2); w[2] = word(T_W4, NBIG + 1, nt, ks, *W4_SPLIT[ks], end=2)
        j = m - 20
        if j >= 0:
            ty, n2 = misc[j]; w[1] = word(ty, NBIG + 1, n2, 0, 0, 1, end=2)
        T[6 + m // 32, m % 32] = w
    return T

TRACE = [0]
def mk_srd(A, n, karg, size):
    A('s_load_dwordx2 s[%d:%d], s[0:1], %d' % (n, n + 1, karg))
    A('s_mov_b32 s%d, %d' % (n + 2, size))
    A('s_mov_b32 s%d, 0x00020000' % (n + 3))
    A('s_waitcnt lgkmcnt(0)')
def ws_srd(A, n):
    for i in range(4): A('s_mov_b32 s%d, s%d' % (n + i, 8 + i))
def gemm_params(A, lda, ldb, ldc, nk, mode, shift=0):
    A('s_mov_b32 s%d, %d' % (sLda, lda)); A('s_mov_b32 s%d, %d' % (sLdb, ldb)); A('s_mov_b32 s%d, %d' % (sLdc, ldc))
    A('s_mov_b32 s%d, %d' % (sNk, nk)); A('s_mov_b32 s%d, %d' % (sShift, shift)); A('s_mov_b32 s%d, %d' % (sMode, mode))

def wave_id(A, dst):
    A('v_lshrrev_b32 v250, 6, v0'); A('s_nop 0'); A('v_readfirstlane_b32 s%d, v250' % dst); A('s_nop 3')

def wait_flags(A):
    Ld = A.uid('wf'); Ll = A.uid('wl')
    wave_id(A, sSp)
    A('s_cmp_lg_u32 s%d, 0' % sSp); A('s_cbranch_scc1 %s' % Ld)
    A('v_cmp_gt_u32 vcc, s%d, v0' % sCnt)
    A('s_mov_b64 s[%d:%d], vcc' % (sMsk, sMsk + 1))
    A('v_lshlrev_b32 v250, 2, v0')
    A('s_mov_b32 s%d, 0' % sSp)
    A('s_mov_b64 exec, s[%d:%d]' % (sMsk, sMsk + 1))
    A.label(Ll)
    A('buffer_load_dword v251, v250, s[8:11], s%d offen sc1' % sDep)
    A('s_add_u32 s%d, s%d, 1' % (sSp, sSp)); A('s_cmp_gt_u32 s%d, %d' % (sSp, SPIN)); A('s_cbranch_scc1 worker_abort')
    A('s_waitcnt vmcnt(0)')
    A('v_cmp_eq_u32 vcc, 0, v251')
    A('s_cbranch_vccz %s_ok' % Ll)
    A('s_sleep 4'); A('s_branch %s' % Ll)
    A.label(Ll + '_ok')
    A('s_mov_b64 exec, -1')
    A.label(Ld)
    A('s_barrier')
    if TRACE[0]: A('s_memrealtime s[100:101]')

def signal_flag(A):
    A('s_waitcnt vmcnt(0)')
    A('s_barrier')
    L = A.uid('sf')
    A('v_cmp_eq_u32 vcc, 0, v0')
    A('s_and_saveexec_b64 s[%d:%d], vcc' % (sMsk, sMsk + 1))
    A('s_cbranch_execz %s' % L)
    A('v_mov_b32 v250, 0'); A('v_mov_b32 v251, 1')
    A('buffer_store_dword v251, v250, s[8:11], s%d offen sc1' % sFlag)
    A.label(L)
    A('s_mov_b64 exec, s[%d:%d]' % (sMsk, sMsk + 1))

def kvwait(A, seg_sreg, issue_only=False, check_only=False):
    c = chain
    def addr():
        A('s_lshr_b32 s%d, s%d, 2' % (c.sT0, seg_sreg)); A('s_mul_i32 s%d, s%d, 384' % (c.sT0, c.sT0))
        A('s_lshl_b32 s%d, s%d, 2' % (c.sT1, c.sH)); A('s_add_u32 s%d, s%d, s%d' % (c.sT0, c.sT0, c.sT1))
        A('s_add_u32 s%d, s%d, %d' % (c.sT0, c.sT0, FQKV + 128)); A('v_mov_b32 v125, 0')
    def loads():
        A('buffer_load_dword v126, v125, s[8:11], s%d offen sc1' % c.sT0)
        A('buffer_load_dword v127, v125, s[8:11], s%d offen offset:128 sc1' % c.sT0)
    if issue_only:
        addr(); loads(); return
    L = A.uid('kv'); Lok = A.uid('kvok')
    if check_only:
        A('v_and_b32 v126, v126, v127'); A('v_cmp_eq_u32 vcc, 0, v126'); A('s_cbranch_vccz %s' % Lok)
    addr()
    A('s_mov_b32 s%d, 0' % c.sSPIN)
    A.label(L)
    loads()
    A('s_add_u32 s%d, s%d, 1' % (c.sSPIN, c.sSPIN)); A('s_cmp_gt_u32 s%d, %d' % (c.sSPIN, SPIN)); A('s_cbranch_scc1 chain_abort')
    A('s_waitcnt vmcnt(0)')
    A('v_and_b32 v126, v126, v127'); A('v_cmp_eq_u32 vcc, 0, v126'); A('s_cbranch_vccnz %s' % L)
    A.label(Lok)

def gen(intra='', chain_kw=None, trace=0, coop=1, wake=56):
    coop = int(coop); trace = int(trace); TRACE[0] = trace; wake = int(wake)
    A = Asm()
    G = Gemm(A, BM, 4, stamps=bool(trace))
    GS = Gemm(A, SBM, 6, stamps=bool(trace))
    A.raw('; @launch kernel=prep_kernel grid=(256,1,1) block=(256,1,1) lds=0')
    A.raw('; @launch kernel=main_kernel grid=(256,1,1) block=(256,1,1) lds=163840')
    A.raw('.amdgcn_target "amdgcn-amd-amdhsa--gfx950"')
    A.raw('.text')
    kernel_header(A, 'prep_kernel')
    A('s_cmp_ge_u32 s2, 256'); A('s_cbranch_scc1 L_exit_prep')
    A('s_load_dwordx2 s[4:5], s[0:1], %d' % D_WS)
    A('s_waitcnt lgkmcnt(0)')
    A('s_mov_b32 s8, s4'); A('s_mov_b32 s9, s5'); A('s_mov_b32 s10, %d' % WS_SIZE); A('s_mov_b32 s11, 0x00020000')
    mk_srd(A, SRD_R, A_X, 4 * MB)
    A('s_lshl_b32 s%d, s2, 3' % sRow)
    unit_ln1(A)
    A('v_mov_b32 v8, 0'); A('v_mov_b32 v9, 0'); A('v_mov_b32 v10, 0'); A('v_mov_b32 v11, 0')
    A('v_lshlrev_b32 v12, 4, v0')
    A('s_cmp_ge_u32 s2, 32'); A('s_cbranch_scc1 L_z1')
    A('s_lshl_b32 s%d, s2, 12' % sT0); A('s_add_u32 s%d, s%d, %d' % (sT0, sT0, FLG_SEG))
    A('buffer_store_dwordx4 v[8:11], v12, s[8:11], s%d offen' % sT0)
    A.label('L_z1')
    A('s_cmp_lg_u32 s2, 32'); A('s_cbranch_scc1 L_z2')
    A('s_mov_b32 s%d, %d' % (sT0, GB0)); A('buffer_store_dwordx4 v[8:11], v12, s[8:11], s%d offen' % sT0)
    A('s_mov_b32 s%d, %d' % (sT0, GB + 2048 * 2048)); A('buffer_store_dwordx4 v[8:11], v12, s[8:11], s%d offen' % sT0)
    A.label('L_z2')
    A.label('L_exit_prep')
    A('s_endpgm')
    kernel_header(A, 'main_kernel')
    A('s_cmp_ge_u32 s2, 256'); A('s_cbranch_scc1 L_exit_main')
    A('s_load_dwordx2 s[4:5], s[0:1], %d' % D_WS)
    A('s_load_dwordx2 s[6:7], s[0:1], %d' % D_DBG)
    A('s_getreg_b32 s16, hwreg(HW_REG_XCC_ID)')
    A('s_and_b32 s16, s16, 15')
    A('s_waitcnt lgkmcnt(0)')
    A('s_mov_b32 s8, s4'); A('s_mov_b32 s9, s5'); A('s_mov_b32 s10, %d' % WS_SIZE); A('s_mov_b32 s11, 0x00020000')
    A('v_cmp_eq_u32 vcc, 0, v0'); A('s_and_saveexec_b64 s[20:21], vcc'); A('s_cbranch_execz L_nt')
    A('s_lshl_b32 s17, s16, 2'); A('v_mov_b32 v1, s17'); A('v_mov_b32 v2, 1')
    A('global_atomic_add v3, v1, v2, s[6:7] sc0 sc1'); A('s_waitcnt vmcnt(0)')
    A('v_mov_b32 v1, 0'); A('ds_write_b32 v1, v3'); A('s_waitcnt lgkmcnt(0)')
    A.label('L_nt')
    A('s_mov_b64 exec, s[20:21]'); A('s_barrier')
    A('v_mov_b32 v1, 0'); A('ds_read_b32 v3, v1'); A('s_waitcnt lgkmcnt(0)'); A('v_readfirstlane_b32 s17, v3'); A('s_barrier')
    A('s_cmp_ge_u32 s17, 32'); A('s_cbranch_scc1 L_exit_main')
    A('s_cmp_ge_u32 s16, 2'); A('s_cbranch_scc1 worker')
    chain.gen_chain(A, intra=intra, kvwait=kvwait, finish='chain_to_worker', **(chain_kw or {}))
    A.label('chain_to_worker')
    A('v_mbcnt_lo_u32_b32 v0, -1, 0'); A('v_mbcnt_hi_u32_b32 v0, -1, v0')
    A('s_lshl_b32 s%d, s%d, 6' % (44, chain.sW)); A('v_add_u32 v0, s44, v0')
    A('s_add_u32 s%d, s%d, 6' % (sXW, chain.sX)); A('s_mov_b32 s%d, s%d' % (sTK, chain.sC))
    A('s_mov_b32 s%d, 8' % sIt)
    for n in (SRD_A, SRD_B, SRD_C, SRD_R): ws_srd(A, n)
    A('s_mov_b32 s%d, 0' % sChunk)
    A('s_barrier')
    A('s_branch streams')
    A.label('worker')
    A('s_sub_u32 s%d, s16, 2' % sXW); A('s_mov_b32 s%d, s17' % sTK)
    A('s_cmp_ge_u32 s%d, 6' % sXW); A('s_cbranch_scc1 L_exit_main')
    A('s_mov_b32 s%d, 0' % sIt)
    for n in (SRD_A, SRD_B, SRD_C, SRD_R): ws_srd(A, n)
    A('s_mov_b32 s%d, 0' % sS0); A('s_mov_b32 s%d, 0' % sS1); A('s_mov_b32 s%d, 0' % sS2); A('s_mov_b32 s%d, 0' % sChunk)
    A.label('qkv_next')
    A('s_cmp_ge_u32 s%d, 8' % sIt); A('s_cbranch_scc1 streams')
    A('s_lshr_b32 s%d, s%d, 4' % (sRB, sTK)); A('s_lshl_b32 s%d, s%d, 1' % (sT0, sIt)); A('s_add_u32 s%d, s%d, s%d' % (sRB, sRB, sT0))
    A('s_and_b32 s%d, s%d, 15' % (sT1, sTK))
    A('s_cmp_lt_u32 s%d, 4' % sXW); A('s_cselect_b32 s%d, 11, 10' % sT2)
    A('s_cmp_lt_u32 s%d, s%d' % (sT1, sT2)); A('s_cbranch_scc0 qkv_q')
    A('s_mul_i32 s%d, s%d, 6' % (sT3, sT1)); A('s_add_u32 s%d, s%d, s%d' % (sT3, sT3, sXW))
    A('s_lshr_b32 s%d, s%d, 5' % (sKS, sT3)); A('s_add_u32 s%d, s%d, 1' % (sKS, sKS)); A('s_and_b32 s%d, s%d, 31' % (sNT, sT3))
    A('s_branch qkv_go')
    A.label('qkv_q')
    A('s_sub_u32 s%d, s%d, s%d' % (sT3, sT1, sT2)); A('s_mul_i32 s%d, s%d, 5' % (sT4, sXW))
    A('s_sub_u32 s%d, s%d, 4' % (sT5, sXW)); A('s_mul_i32 s%d, s%d, 6' % (sT5, sT5)); A('s_add_u32 s%d, s%d, 20' % (sT5, sT5))
    A('s_cmp_lt_u32 s%d, 4' % sXW); A('s_cselect_b32 s%d, s%d, s%d' % (sT4, sT4, sT5))
    A('s_add_u32 s%d, s%d, s%d' % (sNT, sT3, sT4)); A('s_mov_b32 s%d, 0' % sKS)
    A.label('qkv_go')
    A('s_add_u32 s%d, s%d, 1' % (sIt, sIt))
    A('s_lshl_b32 s%d, s%d, 3' % (sT0, sKS)); A('s_add_u32 s%d, s%d, %d' % (sT0, sT0, A_WQ))
    A('s_load_dwordx2 s[%d:%d], s[0:1], s%d' % (SRD_B, SRD_B + 1, sT0))
    A('s_mov_b32 s%d, %d' % (SRD_B + 2, 8 * MB)); A('s_mov_b32 s%d, 0x00020000' % (SRD_B + 3))
    ws_srd(A, SRD_A); ws_srd(A, SRD_C)
    gemm_params(A, 2048, 8192, 8192, 16, 0)
    A('s_mul_i32 s%d, s%d, %d' % (sAoff, sRB, BM * 2048)); A('s_add_u32 s%d, s%d, %d' % (sAoff, sAoff, XLN))
    A('s_lshl_b32 s%d, s%d, 8' % (sBoff, sNT))
    A('s_mul_i32 s%d, s%d, %d' % (sCoff, sRB, BM * 8192)); A('s_add_u32 s%d, s%d, s%d' % (sCoff, sCoff, sBoff))
    A('s_lshl_b32 s%d, s%d, 24' % (sT0, sKS)); A('s_add_u32 s%d, s%d, s%d' % (sCoff, sCoff, sT0)); A('s_add_u32 s%d, s%d, %d' % (sCoff, sCoff, QX))
    A('s_mul_i32 s%d, s%d, 3' % (sT0, sRB)); A('s_add_u32 s%d, s%d, s%d' % (sT0, sT0, sKS))
    A('s_lshl_b32 s%d, s%d, 5' % (sT0, sT0)); A('s_add_u32 s%d, s%d, s%d' % (sT0, sT0, sNT))
    A('s_lshl_b32 s%d, s%d, 2' % (sT0, sT0)); A('s_add_u32 s%d, s%d, %d' % (sFlag, sT0, FQKV))
    A('s_mov_b32 s%d, 1' % sItem)
    A('s_and_b32 s%d, s%d, 15' % (sShI, sTK)); A('s_mov_b32 s%d, 8' % sShR)
    if trace:
        A('s_lshl_b32 s%d, s%d, 5' % (sQi, sXW)); A('s_add_u32 s%d, s%d, s%d' % (sQi, sQi, sTK)); A('s_lshl_b32 s%d, s%d, 3' % (sQi, sQi))
        A('s_add_u32 s%d, s%d, s%d' % (sQi, sQi, sIt)); A('s_add_u32 s%d, s%d, 10239' % (sQi, sQi))
        A('s_memrealtime s[98:99]'); A('s_memrealtime s[100:101]')
    A('s_waitcnt lgkmcnt(0)')
    A('s_branch gemm_run')

    def decode(src):
        A('s_bfe_u32 s%d, s%d, 0x60016' % (sRB, src)); A('s_bfe_u32 s%d, s%d, 0x50011' % (sNT, src)); A('s_bfe_u32 s%d, s%d, 0x3000e' % (sKS, src))
        A('s_bfe_u32 s%d, s%d, 0x60008' % (sK0, src)); A('s_bfe_u32 s%d, s%d, 0x50003' % (sNKi, src))
    def blk_rows():
        A('s_lshl_b32 s%d, s%d, 7' % (sRow0, sRB)); A('s_sub_u32 s%d, s%d, %d' % (sT0, sRB, NBIG)); A('s_mul_i32 s%d, s%d, %d' % (sT0, sT0, SBM)); A('s_add_u32 s%d, s%d, %d' % (sT0, sT0, NBIG * 128))
        A('s_cmp_lt_u32 s%d, %d' % (sRB, NBIG)); A('s_cselect_b32 s%d, s%d, s%d' % (sRow0, sRow0, sT0)); A('s_cselect_b32 s%d, 1, 0' % sBig)
    def own(base, code):
        code(); A('s_lshl_b32 s%d, s%d, 2' % (sT0, sT0)); A('s_add_u32 s%d, s%d, %d' % (sFlag, sT0, base))
    def btouch():
        A('v_and_b32 v200, 63, v0'); A('v_lshrrev_b32 v201, 6, v0')
        A('v_lshrrev_b32 v202, 1, v200'); A('v_lshl_add_u32 v202, v201, 8, v202')
        A('v_and_b32 v203, 1, v200'); A('v_lshlrev_b32 v203, 7, v203')
        A('s_lshl_b32 s%d, s%d, 6' % (sT4, sNk)); A('v_mov_b32 v206, 0x7ff00000')
        for j in range(8):
            A('v_add_u32 v204, %d, v202' % (32 * j)); A('v_mul_lo_u32 v205, v204, s%d' % sLdb); A('v_add_u32 v205, v205, v203')
            A('v_cmp_gt_u32 vcc, s%d, v204' % sT4); A('s_nop 1'); A('v_cndmask_b32 v205, v206, v205, vcc')
            A('buffer_load_dword v%d, v205, %s, s%d offen' % (208 + j, srd(SRD_B), sBoff))
    types = {
        T_O: dict(split=True, ownbase=FO, abuf=OX, lda=8192, bk=A_WO, bs=8 * MB, ldb=2048, p=PO),
        T_W4: dict(split=True, ownbase=FW4, abuf=UB, lda=7168, bk=B_W4, bs=7 * MB, ldb=2048, p=P4),
        T_W1: dict(split=False, ownbase=FW1, ostr=8, abuf=ZB, bk=B_W1, bs=2 * MB, ldb=2048, c=GB, ldc=2048, mode=1),
        T_W2: dict(split=False, ownbase=FW2, ostr=8, abuf=GB - 2048, bk=B_W2, bs=2 * MB, ldb=2048, c=X1B, ldc=2048, mode=2, shift=1, resid=YB),
        T_W3: dict(split=False, ownbase=FW3, ostr=32, abuf=Z2B, bk=B_W3, bs=7 * MB, ldb=7168, c=UB, ldc=7168, mode=1),
    }
    def gemm_setup(ty):
        d = types[ty]
        mk_srd(A, SRD_B, d['bk'], d['bs']); ws_srd(A, SRD_A); ws_srd(A, SRD_C); ws_srd(A, SRD_R)
        if d['split']:
            own(d['ownbase'], lambda: (A('s_lshl_b32 s%d, s%d, 6' % (sT0, sRB)), A('s_lshl_b32 s%d, s%d, 3' % (sT1, sKS)), A('s_add_u32 s%d, s%d, s%d' % (sT0, sT0, sT1)), A('s_add_u32 s%d, s%d, s%d' % (sT0, sT0, sNT))))
            gemm_params(A, d['lda'], d['ldb'], 2048, 0, 0)
            A('s_mov_b32 s%d, s%d' % (sNk, sNKi)); A('s_mov_b32 s%d, s%d' % (sShI, sNT)); A('s_mov_b32 s%d, 16' % sShR)
            A('s_mul_i32 s%d, s%d, %d' % (sAoff, sRow0, d['lda'])); A('s_lshl_b32 s%d, s%d, 7' % (sT0, sK0)); A('s_add_u32 s%d, s%d, s%d' % (sAoff, sAoff, sT0))
            A('s_add_u32 s%d, s%d, %d' % (sAoff, sAoff, d['abuf']))
            A('s_mul_i32 s%d, s%d, %d' % (sBoff, sK0, 64 * d['ldb'])); A('s_lshl_b32 s%d, s%d, 8' % (sT0, sNT)); A('s_add_u32 s%d, s%d, s%d' % (sBoff, sBoff, sT0))
            A('s_lshl_b32 s%d, s%d, 11' % (sCoff, sRow0)); A('s_add_u32 s%d, s%d, s%d' % (sCoff, sCoff, sT0))
            A('s_lshl_b32 s%d, s%d, 22' % (sT0, sKS)); A('s_add_u32 s%d, s%d, s%d' % (sCoff, sCoff, sT0)); A('s_add_u32 s%d, s%d, %d' % (sCoff, sCoff, d['p']))
        else:
            own(d['ownbase'], lambda: (A('s_mul_i32 s%d, s%d, %d' % (sT0, sRB, d['ostr'])), A('s_add_u32 s%d, s%d, s%d' % (sT0, sT0, sNT))))
            gemm_params(A, 2048, d['ldb'], d['ldc'], 16, d['mode'], d.get('shift', 0))
            A('s_mov_b32 s%d, s%d' % (sShI, sK0)); A('s_cmp_eq_u32 s%d, 7' % sNKi); A('s_cselect_b32 s%d, 19, 16' % sShR)
            A('s_lshl_b32 s%d, s%d, 11' % (sAoff, sRow0)); A('s_add_u32 s%d, s%d, %d' % (sAoff, sAoff, d['abuf']))
            A('s_lshl_b32 s%d, s%d, 8' % (sBoff, sNT))
            A('s_mul_i32 s%d, s%d, %d' % (sCoff, sRow0, d['ldc'])); A('s_add_u32 s%d, s%d, s%d' % (sCoff, sCoff, sBoff))
            if 'resid' in d: A('s_add_u32 s%d, s%d, %d' % (sRoff, sCoff, d['resid']))
            A('s_add_u32 s%d, s%d, %d' % (sCoff, sCoff, d['c']))

    TB = build_table()
    A.label('streams')
    A('s_getpc_b64 s[%d:%d]' % (sTab, sTab + 1))
    A.label('q_pc')
    A('s_add_u32 s%d, s%d, qtable-q_pc' % (sTab, sTab)); A('s_addc_u32 s%d, s%d, 0' % (sTab + 1, sTab + 1))
    A('s_lshl_b32 s%d, s%d, 5' % (sT0, sXW)); A('s_add_u32 s%d, s%d, s%d' % (sT0, sT0, sTK)); A('s_lshl_b32 s%d, s%d, 4' % (sT0, sT0))
    A('s_load_dword s%d, s[%d:%d], s%d' % (sS0, sTab, sTab + 1, sT0))
    A('s_add_u32 s%d, s%d, 4' % (sT1, sT0)); A('s_load_dword s%d, s[%d:%d], s%d' % (sS1, sTab, sTab + 1, sT1))
    A('s_add_u32 s%d, s%d, 8' % (sT2, sT0)); A('s_load_dword s%d, s[%d:%d], s%d' % (sS2, sTab, sTab + 1, sT2))
    A('s_waitcnt lgkmcnt(0)')
    A('s_lshr_b32 s%d, s%d, 28' % (sT2, sS0))
    A('s_cmp_eq_u32 s%d, %d' % (sT2, T_ATT)); A('s_cbranch_scc1 att_loop')
    A('s_cmp_eq_u32 s%d, %d' % (sT2, T_ROWLOOP)); A('s_cbranch_scc1 u_rowloop')
    def warm(cond_small):
        for sreg in (sS0, sS1, sS2):
            Ln = A.uid('mw')
            A('s_cmp_eq_u32 s%d, 0' % sreg); A('s_cbranch_scc1 %s' % Ln)
            A('s_bfe_u32 s%d, s%d, 0x60016' % (sT3, sreg))
            if cond_small == 'big': A('s_cmp_ge_u32 s%d, %d' % (sT3, NBIG)); A('s_cbranch_scc1 %s' % Ln)
            if cond_small == 'small': A('s_cmp_lt_u32 s%d, %d' % (sT3, NBIG)); A('s_cbranch_scc1 %s' % Ln)
            decode(sreg); blk_rows()
            A('s_lshr_b32 s%d, s%d, 28' % (sT5, sreg))
            for ty in types:
                Lt = A.uid('mt')
                A('s_cmp_lg_u32 s%d, %d' % (sT5, ty)); A('s_cbranch_scc1 %s' % Lt)
                gemm_setup(ty); btouch()
                A.label(Lt)
            A('s_waitcnt vmcnt(0)')
            A.label(Ln)
    warm('big')
    A('s_branch ms_top')
    A.label('ms_warm_small')
    A('s_mov_b32 s%d, 9' % sIt)
    warm('small')
    A.label('ms_top')
    Lnw = A.uid('nw')
    A('s_cmp_eq_u32 s%d, 9' % sIt); A('s_cbranch_scc1 %s' % Lnw)
    A('s_cmp_eq_u32 s%d, 0' % sS2); A('s_cbranch_scc1 ms_warm_small')
    A('s_bfe_u32 s%d, s%d, 0x60016' % (sT0, sS2)); A('s_cmp_ge_u32 s%d, 12' % sT0); A('s_cbranch_scc1 ms_warm_small')
    A.label(Lnw)
    A('s_mov_b32 s%d, 0' % sC3)
    for i, (sreg, dreg) in enumerate(((sS0, sD0), (sS1, sD1), (sS2, sD2))):
        Ln = A.uid('md')
        A('s_mov_b32 s%d, %d' % (dreg, FO))
        A('s_cmp_eq_u32 s%d, 0' % sreg); A('s_cbranch_scc1 %s' % Ln)
        A('s_bfe_u32 s%d, s%d, 0x60016' % (sT0, sreg))
        A('s_lshr_b32 s%d, s%d, 28' % (sT5, sreg))
        A('s_cmp_lt_u32 s%d, %d' % (sT0, NBIG)); A('s_cselect_b32 s%d, 32, %d' % (sT1, SBM // 4))
        A('s_lshl_b32 s%d, s%d, 7' % (sT2, sT0))
        A('s_add_u32 s%d, s%d, %d' % (dreg, sT2, FATT))
        A('s_add_u32 s%d, s%d, %d' % (sT3, sT2, FR1)); A('s_cmp_eq_u32 s%d, %d' % (sT5, T_W1)); A('s_cselect_b32 s%d, s%d, s%d' % (dreg, sT3, dreg))
        A('s_add_u32 s%d, s%d, %d' % (sT3, sT2, FR2)); A('s_cmp_eq_u32 s%d, %d' % (sT5, T_W3)); A('s_cselect_b32 s%d, s%d, s%d' % (dreg, sT3, dreg))
        A('s_add_u32 s%d, s%d, %d' % (sT3, sT2, FW3)); A('s_cmp_eq_u32 s%d, %d' % (sT5, T_W4)); A('s_cselect_b32 s%d, s%d, s%d' % (dreg, sT3, dreg)); A('s_cselect_b32 s%d, 28, s%d' % (sT1, sT1))
        Lw2 = A.uid('m2')
        A('s_cmp_lg_u32 s%d, %d' % (sT5, T_W2)); A('s_cbranch_scc1 %s' % Lw2)
        A('s_sub_u32 s%d, s%d, 1' % (sT2, sT0)); A('s_cmp_eq_u32 s%d, 0' % sT0); A('s_cselect_b32 s%d, 0, s%d' % (sT2, sT2))
        A('s_add_u32 s%d, s%d, 1' % (sT3, sT0)); A('s_cmp_eq_u32 s%d, %d' % (sT0, NB - 1)); A('s_cselect_b32 s%d, s%d, s%d' % (sT3, sT0, sT3))
        A('s_sub_u32 s%d, s%d, s%d' % (sT3, sT3, sT2)); A('s_add_u32 s%d, s%d, 1' % (sT3, sT3)); A('s_lshl_b32 s%d, s%d, 3' % (sT1, sT3))
        A('s_lshl_b32 s%d, s%d, 5' % (sT2, sT2)); A('s_add_u32 s%d, s%d, %d' % (dreg, sT2, FW1))
        A.label(Lw2)
        A('s_lshl_b32 s%d, s%d, %d' % (sT1, sT1, 8 * i)); A('s_or_b32 s%d, s%d, s%d' % (sC3, sC3, sT1))
        A('s_or_b32 s%d, s%d, %d' % (sC3, sC3, 1 << (24 + i)))
        A.label(Ln)
    A('s_lshr_b32 s%d, s%d, 24' % (sT0, sC3)); A('s_cmp_eq_u32 s%d, 0' % sT0); A('s_cbranch_scc1 L_exit_main')
    wave_id(A, sSp)
    A('s_cmp_lg_u32 s%d, 0' % sSp); A('s_cbranch_scc1 ms_wait')
    A('v_lshlrev_b32 v250, 2, v0'); A('s_mov_b32 s%d, 0' % sSp)
    A.label('ms_poll')
    for i, dreg in enumerate((sD0, sD1, sD2)):
        A('buffer_load_dword v%d, v250, s[8:11], s%d offen sc1' % (247 + i, dreg))
    A('s_add_u32 s%d, s%d, 1' % (sSp, sSp)); A('s_cmp_gt_u32 s%d, %d' % (sSp, SPIN)); A('s_cbranch_scc1 worker_abort')
    A('s_waitcnt vmcnt(0)')
    A('s_mov_b32 s%d, 0' % sT5)
    for i in range(3):
        Ln = A.uid('mc')
        A('s_cmp_lg_u32 s%d, 0' % sT5); A('s_cbranch_scc1 %s' % Ln)
        A('s_bitcmp1_b32 s%d, %d' % (sC3, 24 + i)); A('s_cbranch_scc0 %s' % Ln)
        A('s_bfe_u32 s%d, s%d, 0x%x' % (sT0, sC3, (8 << 16) | (8 * i)))
        A('v_cmp_eq_u32 vcc, 0, v%d' % (247 + i))
        A('v_cmp_gt_u32 s[%d:%d], s%d, v0' % (sMsk, sMsk + 1, sT0))
        A('s_nop 0')
        A('s_and_b64 vcc, vcc, s[%d:%d]' % (sMsk, sMsk + 1))
        A('s_cmp_lg_u64 vcc, 0'); A('s_cbranch_scc1 %s' % Ln)
        A('s_mov_b32 s%d, %d' % (sT5, i + 1))
        A.label(Ln)
    A('s_cmp_lg_u32 s%d, 0' % sT5); A('s_cbranch_scc1 ms_got')
    A('s_sleep 2'); A('s_branch ms_poll')
    A.label('ms_got')
    A('v_mov_b32 v250, 163832'); A('v_mov_b32 v251, s%d' % sT5); A('s_mov_b64 exec, 1'); A('ds_write_b32 v250, v251'); A('s_mov_b64 exec, -1'); A('s_waitcnt lgkmcnt(0)')
    A.label('ms_wait')
    A('s_barrier')
    A('v_mov_b32 v250, 163832'); A('ds_read_b32 v251, v250'); A('s_waitcnt lgkmcnt(0)'); A('v_readfirstlane_b32 s%d, v251' % sT5)
    A('s_barrier')
    if trace: A('s_memrealtime s[98:99]'); A('s_memrealtime s[100:101]')
    for i, sreg in enumerate((sS0, sS1, sS2)):
        Ln = A.uid('mp')
        A('s_cmp_lg_u32 s%d, %d' % (sT5, i + 1)); A('s_cbranch_scc1 %s' % Ln)
        A('s_mov_b32 s%d, s%d' % (sItem, sreg))
        A('s_add_u32 s%d, s%d, %d' % (sreg, sreg, 1 << 22))
        A('s_bfe_u32 s%d, s%d, 0x60016' % (sT0, sreg))
        A('s_and_b32 s%d, s%d, 7' % (sT1, sreg)); A('s_add_u32 s%d, s%d, %d' % (sT1, sT1, NBIG))
        A('s_cmp_eq_u32 s%d, s%d' % (sT0, sT1)); A('s_cselect_b32 s%d, 0, s%d' % (sreg, sreg))
        A.label(Ln)
    decode(sItem); blk_rows()
    A('s_lshr_b32 s%d, s%d, 28' % (sT5, sItem))
    if trace:
        A('s_lshl_b32 s%d, s%d, 10' % (sQi, sT5)); A('s_mul_i32 s%d, s%d, 48' % (sT0, sRB)); A('s_add_u32 s%d, s%d, s%d' % (sQi, sQi, sT0))
        A('s_lshl_b32 s%d, s%d, 3' % (sT0, sKS)); A('s_add_u32 s%d, s%d, s%d' % (sQi, sQi, sT0)); A('s_add_u32 s%d, s%d, s%d' % (sQi, sQi, sNT))
    A('s_mov_b32 s%d, 0' % sItem)
    for ty in types:
        Lt = A.uid('mr')
        A('s_cmp_lg_u32 s%d, %d' % (sT5, ty)); A('s_cbranch_scc1 %s' % Lt)
        gemm_setup(ty)
        A('s_branch ms_run')
        A.label(Lt)
    A('s_branch L_exit_main')
    A.label('ms_run')
    A('s_cmp_eq_u32 s%d, 1' % sBig); A('s_cbranch_scc1 gemm_run'); A('s_branch gemm_run_s')

    A.label('att_loop')
    A('s_bfe_u32 s%d, s%d, 0x50011' % (sChunk, sS0))
    A('s_lshr_b32 s%d, s%d, 3' % (sS1, sChunk))
    A.label('att_next')
    A('s_cmp_ge_u32 s%d, 64' % sS1); A('s_cbranch_scc1 L_exit_main')
    A('s_mov_b32 s%d, s%d' % (sRB, sS1)); A('s_and_b32 s%d, s%d, 7' % (sNT, sChunk)); A('s_add_u32 s%d, s%d, 2' % (sS1, sS1))
    if trace:
        A('s_lshl_b32 s%d, s%d, 3' % (sQi, sRB)); A('s_add_u32 s%d, s%d, s%d' % (sQi, sQi, sNT)); A('s_add_u32 s%d, s%d, 1024' % (sQi, sQi))
        A('s_memrealtime s[98:99]')
    A('s_lshr_b32 s%d, s%d, 2' % (sT5, sRB))
    for mat in range(3):
        A('s_mul_i32 s%d, s%d, 96' % (sT0, sT5)); A('s_lshl_b32 s%d, s%d, 2' % (sT1, sNT)); A('s_add_u32 s%d, s%d, s%d' % (sT0, sT0, sT1))
        A('s_add_u32 s%d, s%d, %d' % (sT0, sT0, mat * 32)); A('s_lshl_b32 s%d, s%d, 2' % (sT0, sT0)); A('s_add_u32 s%d, s%d, %d' % (sDep, sT0, FQKV)); A('s_mov_b32 s%d, 4' % sCnt)
        Lsk = A.uid('ak')
        wait_flags(A)
    A('s_lshl_b32 s%d, s%d, 8' % (sT0, sRB)); A('s_lshl_b32 s%d, s%d, 5' % (sT1, sNT)); A('s_add_u32 s%d, s%d, s%d' % (sT0, sT0, sT1))
    A('s_lshl_b32 s%d, s%d, 2' % (sT0, sT0)); A('s_add_u32 s%d, s%d, %d' % (sDep, sT0, FLG_SEG)); A('s_mov_b32 s%d, 32' % sCnt)
    wait_flags(A)
    def code():
        A('s_lshr_b32 s%d, s%d, 2' % (sT0, sRB)); A('s_lshl_b32 s%d, s%d, 5' % (sT0, sT0))
        A('s_and_b32 s%d, s%d, 3' % (sT1, sRB)); A('s_lshl_b32 s%d, s%d, 3' % (sT1, sT1)); A('s_add_u32 s%d, s%d, s%d' % (sT0, sT0, sT1))
        A('s_sub_u32 s%d, s%d, 60' % (sT1, sRB)); A('s_lshr_b32 s%d, s%d, 1' % (sT1, sT1)); A('s_add_u32 s%d, s%d, 15' % (sT1, sT1)); A('s_lshl_b32 s%d, s%d, 5' % (sT1, sT1))
        A('s_and_b32 s%d, s%d, 1' % (sT2, sRB)); A('s_lshl_b32 s%d, s%d, 3' % (sT2, sT2)); A('s_add_u32 s%d, s%d, s%d' % (sT1, sT1, sT2))
        A('s_cmp_lt_u32 s%d, 60' % sRB); A('s_cselect_b32 s%d, s%d, s%d' % (sT0, sT0, sT1))
        A('s_add_u32 s%d, s%d, s%d' % (sT0, sT0, sNT))
    own(FATT, code)
    A('s_mov_b32 s%d, s%d' % (sSeg, sRB)); A('s_lshl_b32 s%d, s%d, 2' % (sHead, sNT))
    A('s_mov_b32 s%d, 3' % sItem)
    unit_att(A)
    A('s_branch unit_done')

    sN1, sN2, sN3 = sS0, sS1, sS2
    A.label('u_rowloop')
    A('s_bfe_u32 s%d, s%d, 0x50011' % (sChunk, sS0))
    A('s_mov_b32 s%d, 0' % sN1); A('s_mov_b32 s%d, 0' % sN2); A('s_mov_b32 s%d, 0' % sN3)
    A.label('rl_top')
    A('s_cmp_ge_u32 s%d, 16' % sN3); A('s_cbranch_scc1 L_exit_main')
    wave_id(A, sSp)
    A('s_cmp_lg_u32 s%d, 0' % sSp); A('s_cbranch_scc1 rl_wait')
    A('v_lshlrev_b32 v250, 2, v0'); A('s_mov_b32 s%d, 0' % sSp)
    CSH = 4 if SBM == 64 else 3
    A.label('rl_poll')
    for reg, base, sh, n_ in ((247, FO, 8, sN1), (248, FW2, 5, sN2), (249, FW4, 8, sN3)):
        A('s_min_u32 s%d, s%d, 15' % (sT0, n_)); A('s_lshr_b32 s%d, s%d, %d' % (sT1, sChunk, CSH)); A('s_add_u32 s%d, s%d, 15' % (sT1, sT1))
        A('s_cmp_lt_u32 s%d, 15' % sT0); A('s_cselect_b32 s%d, s%d, s%d' % (sT0, sT0, sT1))
        A('s_lshl_b32 s%d, s%d, %d' % (sT0, sT0, sh)); A('s_add_u32 s%d, s%d, %d' % (sT0, sT0, base))
        A('buffer_load_dword v%d, v250, s[8:11], s%d offen sc1' % (reg, sT0))
    A('s_add_u32 s%d, s%d, 1' % (sSp, sSp)); A('s_cmp_gt_u32 s%d, %d' % (sSp, SPIN)); A('s_cbranch_scc1 worker_abort')
    A('s_waitcnt vmcnt(0)')
    A('s_mov_b32 s%d, 0' % sT5)
    for ty, reg, cnt, n_ in ((1, 247, 48, sN1), (2, 248, 8, sN2), (3, 249, 48, sN3)):
        Ln = A.uid('rn')
        A('s_cmp_lg_u32 s%d, 0' % sT5); A('s_cbranch_scc1 %s' % Ln)
        A('s_cmp_ge_u32 s%d, 16' % n_); A('s_cbranch_scc1 %s' % Ln)
        A('v_cmp_eq_u32 vcc, 0, v%d' % reg)
        if cnt == 48: A('s_and_b32 vcc_hi, vcc_hi, 0xffff')
        else: A('s_and_b32 vcc_lo, vcc_lo, 0xff'); A('s_mov_b32 vcc_hi, 0')
        A('s_cmp_lg_u64 vcc, 0'); A('s_cbranch_scc1 %s' % Ln)
        A('s_mov_b32 s%d, %d' % (sT5, ty))
        A.label(Ln)
    A('s_cmp_lg_u32 s%d, 0' % sT5); A('s_cbranch_scc1 rl_got')
    A('s_sleep 2'); A('s_branch rl_poll')
    A.label('rl_got')
    A('v_mov_b32 v250, 163832'); A('v_mov_b32 v251, s%d' % sT5); A('s_mov_b64 exec, 1'); A('ds_write_b32 v250, v251'); A('s_mov_b64 exec, -1'); A('s_waitcnt lgkmcnt(0)')
    A.label('rl_wait')
    A('s_barrier')
    A('v_mov_b32 v250, 163832'); A('ds_read_b32 v251, v250'); A('s_waitcnt lgkmcnt(0)'); A('v_readfirstlane_b32 s%d, v251' % sT5)
    A('s_barrier')
    if trace: A('s_memrealtime s[98:99]'); A('s_memrealtime s[100:101]')
    A('s_mov_b32 s%d, 2' % sItem)
    A('s_cmp_eq_u32 s%d, 3' % sT5); A('s_cbranch_scc1 rl_3')
    A('s_cmp_eq_u32 s%d, 2' % sT5); A('s_cbranch_scc1 rl_2')
    def pick(n_, T_, lab):
        A('s_lshr_b32 s%d, s%d, %d' % (sT1, sChunk, CSH)); A('s_add_u32 s%d, s%d, 15' % (sT1, sT1)); A('s_and_b32 s%d, s%d, %d' % (sT2, sChunk, (1 << CSH) - 1))
        A('s_cmp_lt_u32 s%d, 15' % n_); A('s_cselect_b32 s%d, s%d, s%d' % (sRB, n_, sT1)); A('s_cselect_b32 s%d, s%d, s%d' % (sNT, sChunk, sT2))
        if trace:
            A('s_mul_i32 s%d, s%d, 48' % (sQi, sRB)); A('s_add_u32 s%d, s%d, s%d' % (sQi, sQi, sNT)); A('s_add_u32 s%d, s%d, %d' % (sQi, sQi, T_ * 1024))
        A('s_add_u32 s%d, s%d, 1' % (n_, n_)); blk_rows(); A('s_branch %s' % lab)
    pick(sN1, T_R1, 'u_r1')
    A.label('rl_2'); pick(sN2, T_R2, 'u_r2')
    A.label('rl_3'); pick(sN3, T_R3, 'u_r3')
    def rowu(lab, ownbase, fn, pre=None):
        A.label(lab)
        if ownbase is not None:
            own(ownbase, lambda: (A('s_lshl_b32 s%d, s%d, 5' % (sT0, sRB)), A('s_add_u32 s%d, s%d, s%d' % (sT0, sT0, sNT))))
        if pre: pre()
        A('s_lshl_b32 s%d, s%d, 2' % (sT0, sNT)); A('s_add_u32 s%d, s%d, s%d' % (sRow, sRow0, sT0))
        fn(A)
        A('s_branch %s' % ('unit_done' if ownbase is not None else 'unit_nosig'))
    rowu('u_r1', FR1, unit_r1, lambda: mk_srd(A, SRD_R, A_X, 4 * MB))
    rowu('u_r2', FR2, unit_r2)
    rowu('u_r3', None, unit_r3, lambda: mk_srd(A, SRD_C, D_OUT, 4 * MB))

    def epis(G_, sfx):
        A('s_cmp_eq_u32 s%d, 1' % sMode); A('s_cbranch_scc1 epi1%s' % sfx)
        A('s_cmp_eq_u32 s%d, 2' % sMode); A('s_cbranch_scc1 epi2%s' % sfx)
        G_.epi_bf16(); A('s_branch unit_done')
        A.label('epi1' + sfx); G_.epi_bf16(gelu=True); A('s_branch unit_done')
        A.label('epi2' + sfx); G_.epi_bf16(resid=True); A('s_branch unit_done')
    A.label('gemm_run')
    G.setup_lane(); G.prologue(); G.mainloop()
    epis(G, '')
    A.label('gemm_run_s')
    GS.setup_lane(); GS.prologue(); GS.mainloop()
    epis(GS, 's')
    def trace_out():
        if trace:
            A('s_memrealtime s[68:69]'); A('s_waitcnt lgkmcnt(0)')
            Lt = A.uid('tr')
            A('v_cmp_eq_u32 vcc, 0, v0'); A('s_and_saveexec_b64 s[%d:%d], vcc' % (sMsk, sMsk + 1)); A('s_cbranch_execz %s' % Lt)
            A('v_mov_b32 v240, s98'); A('v_mov_b32 v241, s100'); A('v_mov_b32 v242, s66'); A('v_mov_b32 v243, s68')
            A('s_sub_u32 s%d, s62, s60' % sT1); A('s_sub_u32 s%d, s64, s62' % sT2)
            A('v_mov_b32 v244, s%d' % sT1); A('v_mov_b32 v245, s%d' % sT2); A('v_mov_b32 v246, 0'); A('v_mov_b32 v247, 0')
            A('s_lshl_b32 s%d, s%d, 5' % (sT0, sQi)); A('s_add_u32 s%d, s%d, %d' % (sT0, sT0, TRC)); A('v_mov_b32 v250, 0')
            A('buffer_store_dwordx4 v[240:243], v250, s[8:11], s%d offen' % sT0)
            A('buffer_store_dwordx4 v[244:247], v250, s[8:11], s%d offen offset:16' % sT0)
            A.label(Lt)
            A('s_mov_b64 exec, s[%d:%d]' % (sMsk, sMsk + 1))
    A.label('unit_done')
    if trace: A('s_memrealtime s[66:67]')
    signal_flag(A)
    trace_out()
    A('s_cmp_eq_u32 s%d, 1' % sItem); A('s_cbranch_scc1 qkv_next')
    A('s_cmp_eq_u32 s%d, 2' % sItem); A('s_cbranch_scc1 rl_top')
    A('s_cmp_eq_u32 s%d, 3' % sItem); A('s_cbranch_scc1 att_next')
    A('s_branch ms_top')
    A.label('unit_nosig')
    if trace: A('s_memrealtime s[66:67]')
    A('s_waitcnt vmcnt(0)'); A('s_barrier')
    trace_out()
    A('s_branch rl_top')
    A.label('worker_abort')
    A('s_mov_b64 exec, 1')
    A('v_mov_b32 v250, 1'); A('v_mov_b32 v251, 132')
    A('global_atomic_add v251, v250, s[6:7] sc1'); A('s_waitcnt vmcnt(0)')
    A.label('L_exit_main')
    A('s_endpgm')
    A.raw('.p2align 2')
    A.raw('.type qtable,@object')
    A.label('qtable')
    for x in range(8):
        for t in range(32):
            A.raw('    .long ' + ', '.join('0x%08x' % w for w in TB[x, t] + [0]))
    A.raw('.section .rodata,"a"')
    A.raw('.p2align 6'); kernel_desc(A, 'prep_kernel', vgpr=128, accum=128)
    A.raw('.p2align 6'); kernel_desc(A, 'main_kernel')
    return A.text()
if __name__ == '__main__':
    kw = {}
    for x in sys.argv[2:]:
        k, v = x.split('=')
        kw[k] = v
    if kw.get('trace'): kw['chain_kw'] = dict(steptrace=True)
    open(sys.argv[1], 'w').write(gen(**kw))
```

```python
from asmlib import *
from layout import *
import struct, math

LDS_WO = 0
LDS_XB = 131072
LDS_XV = LDS_XB + 12288
LDS_RED = LDS_XB + 16384
LDS_KX = 151552
LDS_VX = 159744
LDS_CHAIN_END = 163840
SPIN_LIMIT = 1 << 22
RDELTA = PART - MEMB

SRD_WS = 8
SRD_T = 12
S_DBG = 6
sX, sC, sW, sH, sJ, sS = 16, 17, 18, 19, 20, 21
sMEMc, sMEMn, sMEMp, sQKc, sQKp, sOBc, sOBp, sMRc, sQKv, sKMs, sVMs, sFLo, sDMo, sMRp, sOBc2 = range(22, 37)
sT0, sT1, sT2, sT3 = 37, 38, 39, 40
sSPIN = 41
sHI, sN8 = 42, 44
sC_, sFE = 46, 47
sTM = 48
sLO32 = 54
sKMM = 58
sACC = 60
sRT = 80
sKMb, sVMb, sFLb, sQKb, sMEMb, sMRb, sOBb, sKXb, sVXb = range(86, 95)
OOBS = 0x70000000
OOBV = 0x7ff00000

def wreg(kl, mu, t):
    idx = kl * 12 + mu * 4 + t
    return 256 + idx * 8 if idx < 32 else 128 + (idx - 32) * 8

def gen_chain(A, intra='', timing=False, nsteps=64, d4=0, d6=0, d1=0, kvwait=None, looptime=False, steptrace=False, rpos=0, dbgwait=0, noflag=0, nokm=0, finish=None, rt=0, rearly=0, vdefer=1):
    I = intra
    def st(x): return (x + ' ' + I).rstrip()
    WS = 's[%d:%d]' % (SRD_WS, SRD_WS + 3)
    (vL16, vXq0, vXq1, vXq2, vXq3, vXqR, vXvW, vXvR, vQkSt, vQkLd, vQkL, vOSt, vIdx, vBias, vKx0, vKx1, vKx2, vKx3, vVx, vWoR,
     vKmSt, vVmSt, vD0, vD1, vD2, vD3, vPq, vPo, vPm, vRedW, vRedR, vFlg, vVM, vVM1, vOnes, vOnes1) = range(36)
    vXq = [vXq0, vXq1, vXq2, vXq3]; vKxD4 = [vD0, vD1, vD2, vD3]
    vT = 36
    W0 = 40
    vLane, vG, vN = 120, 121, 122
    t0, t1, t2, t3 = 123, 124, 125, 126
    A.c('=== chain v4 ===')
    A('v_and_b32 v%d, 63, v0' % vLane)
    A('v_lshrrev_b32 v%d, 6, v0' % t0)
    A('s_nop 0')
    A('v_readfirstlane_b32 s%d, v%d' % (sW, t0))
    A('v_lshrrev_b32 v%d, 4, v%d' % (vG, vLane))
    A('v_and_b32 v%d, 15, v%d' % (vN, vLane))
    A('s_lshr_b32 s%d, s%d, 1' % (sT0, sC))
    A('s_and_b32 s%d, s%d, 1' % (sJ, sC))
    A('s_lshl_b32 s%d, s%d, 4' % (sH, sX))
    A('s_add_u32 s%d, s%d, s%d' % (sH, sH, sT0))
    A('v_cmp_le_u32 s[%d:%d], 32, v%d' % (sHI, sHI + 1, vLane))
    A('v_cmp_gt_u32 s[%d:%d], 8, v%d' % (sN8, sN8 + 1, vN))
    cval = struct.unpack('<I', struct.pack('<f', (128 ** -0.5) * math.log2(math.e)))[0]
    A('s_mov_b32 s%d, 0x%08x' % (sC_, cval))
    A('s_mov_b32 s%d, 0xfffefffe' % sFE)
    A('s_mov_b32 s56, 0x%08x' % cval); A('s_mov_b32 s57, 0x%08x' % cval)
    A('s_mov_b32 s%d, -1' % sLO32); A('s_mov_b32 s%d, 0' % (sLO32 + 1))
    A('v_lshlrev_b32 v%d, 4, v%d' % (vL16, vLane))
    for t in range(4):
        A('s_sub_u32 s%d, s%d, %d' % (sT0, sW, t + 1)); A('s_and_b32 s%d, s%d, 3' % (sT0, sT0)); A('s_lshl_b32 s%d, s%d, 10' % (sT0, sT0))
        A('s_add_u32 s%d, s%d, %d' % (sT0, sT0, LDS_XB + t * 3072))
        A('v_add_u32 v%d, s%d, v%d' % (vXq[t], sT0, vL16))
    A('s_mul_i32 s%d, s%d, 3072' % (sT0, sW)); A('s_add_u32 s%d, s%d, %d' % (sT0, sT0, LDS_XB))
    A('v_add_u32 v%d, s%d, v%d' % (vXqR, sT0, vL16))
    A('s_lshl_b32 s%d, s%d, 11' % (sT0, sW)); A('s_add_u32 s%d, s%d, %d' % (sT0, sT0, LDS_XV))
    A('v_add_u32 v%d, s%d, v%d' % (vXvW, sT0, vL16))
    A('s_lshr_b32 s%d, s%d, 1' % (sT0, sW)); A('s_lshl_b32 s%d, s%d, 10' % (sT0, sT0))
    A('s_and_b32 s%d, s%d, 1' % (sT1, sW)); A('s_lshl_b32 s%d, s%d, 3' % (sT1, sT1))
    A('s_add_u32 s%d, s%d, s%d' % (sT0, sT0, sT1)); A('s_add_u32 s%d, s%d, %d' % (sT0, sT0, LDS_XV))
    A('v_add_u32 v%d, s%d, v%d' % (vXvR, sT0, vL16))
    A('s_lshl_b32 s%d, s%d, 15' % (sT0, sW))
    A('v_add_u32 v%d, s%d, v%d' % (vWoR, sT0, vL16))
    A('s_lshl_b32 s%d, s%d, 10' % (sT0, sW)); A('s_add_u32 s%d, s%d, %d' % (sT0, sT0, LDS_RED))
    A('v_lshlrev_b32 v%d, 8, v%d' % (vRedW, vG))
    A('v_lshl_add_u32 v%d, v%d, 2, v%d' % (vRedW, vN, vRedW))
    A('v_add_u32 v%d, s%d, v%d' % (vRedW, sT0, vRedW))
    A('v_lshrrev_b32 v%d, 2, v%d' % (t0, vN)); A('v_lshlrev_b32 v%d, 1, v%d' % (t0, t0)); A('v_and_b32 v%d, 1, v%d' % (t1, vN)); A('v_add_u32 v%d, v%d, v%d' % (t0, t0, t1))
    A('v_lshlrev_b32 v%d, 7, v%d' % (vRedR, t0))
    A('v_bfe_u32 v%d, v%d, 1, 1' % (t1, vN)); A('v_lshl_add_u32 v%d, v%d, 5, v%d' % (vRedR, t1, vRedR))
    A('v_bfe_u32 v%d, v%d, 4, 1' % (t1, vLane)); A('v_lshl_add_u32 v%d, v%d, 6, v%d' % (vRedR, t1, vRedR))
    A('v_add_u32 v%d, %d, v%d' % (vRedR, LDS_RED, vRedR))
    vRr = 119
    A('v_mov_b32 v%d, v%d' % (vRr, t0))
    A('v_and_b32 v%d, 7, v%d' % (t0, vN))
    A('v_lshrrev_b32 v%d, 3, v%d' % (t1, vN))
    A('v_lshlrev_b32 v%d, 7, v%d' % (vQkSt, t1))
    A('v_lshl_add_u32 v%d, v%d, 5, v%d' % (vQkSt, vG, vQkSt))
    A('v_lshl_add_u32 v%d, v%d, 1, v%d' % (vQkSt, t0, vQkSt))
    A('s_lshl_b32 s%d, s%d, 10' % (sT0, sJ)); A('s_lshl_b32 s%d, s%d, 8' % (sT1, sW)); A('s_add_u32 s%d, s%d, s%d' % (sT0, sT0, sT1))
    A('v_add_u32 v%d, s%d, v%d' % (vQkSt, sT0, vQkSt))
    A('v_lshlrev_b32 v%d, 7, v%d' % (vQkLd, vG))
    A('v_lshl_add_u32 v%d, v%d, 4, v%d' % (vQkLd, t0, vQkLd))
    A('v_add_u32 v%d, %d, v%d' % (vQkL, LDS_XB, vQkLd))
    A('v_lshlrev_b32 v%d, 7, v%d' % (vBias, vG)); A('v_lshl_add_u32 v%d, v%d, 4, v%d' % (vBias, vRr, vBias)); A('v_add_u32 v%d, %d, v%d' % (vBias, LDS_XB + 2048, vBias))
    A('v_and_b32 v%d, 1, v%d' % (t2, vG))
    A('v_lshrrev_b32 v%d, 1, v%d' % (t3, vN)); A('v_lshlrev_b32 v%d, 2, v%d' % (vOSt, t3))
    A('v_and_b32 v%d, 1, v%d' % (t3, vN)); A('v_add_u32 v%d, v%d, v%d' % (vOSt, vOSt, t3))
    A('v_lshrrev_b32 v%d, 1, v%d' % (t3, vG)); A('v_lshl_add_u32 v%d, v%d, 1, v%d' % (vOSt, t3, vOSt))
    A('v_lshlrev_b32 v%d, 4, v%d' % (vOSt, vOSt))
    A('v_lshl_add_u32 v%d, v%d, 3, v%d' % (vOSt, t2, vOSt))
    A('s_lshl_b32 s%d, s%d, 10' % (sT1, sC)); A('s_lshl_b32 s%d, s%d, 8' % (sT2, sW)); A('s_add_u32 s%d, s%d, s%d' % (sT1, sT1, sT2))
    A('v_add_u32 v%d, s%d, v%d' % (vOSt, sT1, vOSt))
    A('v_mov_b32 v%d, 0x%x' % (t3, OOBV))
    A('v_cndmask_b32 v%d, v%d, v%d, s[%d:%d]' % (vOSt, t3, vOSt, sN8, sN8 + 1))
    A('v_mov_b32 v%d, 0x4444' % vIdx); A('v_mov_b32 v%d, 0xeeee' % t2)
    A('v_and_b32 v%d, 2, v%d' % (t3, vN)); A('v_cmp_ne_u32 vcc, 0, v%d' % t3); A('s_nop 1')
    A('v_cndmask_b32 v%d, v%d, v%d, vcc' % (vIdx, vIdx, t2))
    A('v_mov_b32 v%d, 0x3f803f80' % vOnes); A('v_mov_b32 v%d, 0x3f803f80' % vOnes1)
    A('v_xor_b32 v%d, v%d, v%d' % (t2, vG, vN)); A('v_lshlrev_b32 v%d, 4, v%d' % (t2, t2)); A('v_lshl_add_u32 v%d, v%d, 8, v%d' % (t2, vN, t2))
    A('v_add_u32 v%d, %d, v%d' % (vKx0, LDS_KX, t2))
    for k in range(1, 4): A('v_xor_b32 v%d, %d, v%d' % (vKx0 + k, k * 64, vKx0))
    A('v_lshrrev_b32 v%d, 2, v%d' % (t2, vN)); A('v_lshl_add_u32 v%d, v%d, 2, v%d' % (t2, vG, t2))
    A('v_lshrrev_b32 v%d, 1, v%d' % (t3, t2)); A('v_and_b32 v%d, 3, v%d' % (t3, t3)); A('v_xor_b32 v%d, s%d, v%d' % (t3, sW, t3))
    A('v_lshlrev_b32 v%d, 5, v%d' % (t3, t3)); A('v_lshl_add_u32 v%d, v%d, 7, v%d' % (t3, t2, t3))
    A('v_and_b32 v%d, 3, v%d' % (t2, vN)); A('v_lshl_add_u32 v%d, v%d, 3, v%d' % (t3, t2, t3))
    A('v_add_u32 v%d, %d, v%d' % (vVx, LDS_VX, t3))
    A('v_lshlrev_b32 v%d, 4, v%d' % (vKmSt, vG)); A('v_lshl_add_u32 v%d, v%d, 13, v%d' % (vKmSt, vN, vKmSt))
    A('v_lshrrev_b32 v%d, 2, v%d' % (t2, vN))
    A('v_cmp_eq_u32 s[%d:%d], s%d, v%d' % (sKMM, sKMM + 1, sJ, t2))
    A('v_mov_b32 v%d, 0x%x' % (t3, OOBV))
    A('v_lshlrev_b32 v%d, 2, v%d' % (vVmSt, vLane))
    A('v_mov_b32 v%d, 0' % vVM1)
    A('v_cndmask_b32 v%d, v%d, v%d, s[%d:%d]' % (vKmSt, t3, vKmSt, sKMM, sKMM + 1))
    A('v_cmp_eq_u32 vcc, 0, v%d' % vLane); A('s_nop 1'); A('v_cndmask_b32 v%d, v%d, 0, vcc' % (vFlg, t3))
    for i in range(4):
        A('v_add_u32 v%d, %d, v%d' % (t2, 4 * i, vG)); A('v_xor_b32 v%d, v%d, v%d' % (t3, t2, vN)); A('v_lshlrev_b32 v%d, 4, v%d' % (t3, t3))
        A('v_lshl_add_u32 v%d, v%d, 13, v%d' % (t3, t2, t3)); A('v_subrev_u32 v%d, %d, v%d' % (vKxD4[i], 1024 * i, t3))
    Lw3 = A.uid('w3')
    A('s_cmp_lg_u32 s%d, 3' % sW); A('s_cbranch_scc1 %s' % Lw3)
    for i in range(4):
        A('v_lshrrev_b32 v%d, 3, v%d' % (t2, vLane)); A('v_add_u32 v%d, %d, v%d' % (t2, 8 * i, t2))
        A('v_lshrrev_b32 v%d, 1, v%d' % (t3, t2)); A('v_and_b32 v%d, 3, v%d' % (t3, t3))
        A('v_bfe_u32 v%d, v%d, 1, 2' % (t1, vLane)); A('v_xor_b32 v%d, v%d, v%d' % (t3, t3, t1)); A('v_lshlrev_b32 v%d, 5, v%d' % (t3, t3))
        A('v_and_b32 v%d, 1, v%d' % (t1, vLane)); A('v_lshl_add_u32 v%d, v%d, 4, v%d' % (t3, t1, t3))
        A('v_lshl_add_u32 v%d, v%d, 13, v%d' % (t3, t2, t3)); A('v_subrev_u32 v%d, %d, v%d' % (vKxD4[i], 1024 * i, t3))
    A.label(Lw3)
    A('v_bfe_u32 v%d, v%d, 4, 1' % (t2, vLane)); A('v_lshlrev_b32 v%d, 11, v%d' % (vPq, t2)); A('v_lshl_add_u32 v%d, v%d, 4, v%d' % (vPq, vN, vPq))
    A('s_lshl_b32 s%d, s%d, 10' % (sT0, sJ)); A('s_lshl_b32 s%d, s%d, 8' % (sT1, sW)); A('s_add_u32 s%d, s%d, s%d' % (sT0, sT0, sT1))
    A('v_add_u32 v%d, s%d, v%d' % (vPq, sT0, vPq))
    A('s_lshl_b32 s%d, s%d, 10' % (sT0, sC)); A('s_add_u32 s%d, s%d, s%d' % (sT0, sT0, sT1))
    A('v_add_u32 v%d, s%d, v%d' % (vPo, sT0, vL16))
    A('s_lshl_b32 s%d, s%d, 9' % (sT0, sC)); A('v_add_u32 v%d, s%d, v%d' % (vPm, sT0, vL16))
    A('v_mov_b32 v%d, 0x%x' % (t3, OOBV))
    A('v_cndmask_b32 v%d, v%d, v%d, s[%d:%d]' % (vPq, vPq, t3, sHI, sHI + 1))
    A('v_cndmask_b32 v%d, v%d, v%d, s[%d:%d]' % (vPm, vPm, t3, sHI, sHI + 1))
    A('v_cmp_le_u32 vcc, 16, v%d' % vLane); A('s_nop 1'); A('v_cndmask_b32 v%d, v%d, v%d, vcc' % (vPo, vPo, t3))
    A('s_lshl_b32 s%d, s%d, 8' % (sT0, sH)); A('s_lshl_b32 s%d, s%d, 6' % (sT1, sW))
    A('s_add_u32 s%d, s%d, s%d' % (sKMb, sT0, sT1)); A('s_add_u32 s%d, s%d, %d' % (sKMb, sKMb, KM))
    A('s_lshl_b32 s%d, s%d, 3' % (sT0, sH)); A('s_lshl_b32 s%d, s%d, 2' % (sT1, sJ))
    A('s_add_u32 s%d, s%d, s%d' % (sT0, sT0, sT1)); A('s_add_u32 s%d, s%d, s%d' % (sT0, sT0, sW))
    A('s_lshl_b32 s%d, s%d, 8' % (sVMb, sT0)); A('s_add_u32 s%d, s%d, %d' % (sVMb, sVMb, VMF))
    A('s_lshl_b32 s%d, s%d, 2' % (sFLb, sT0)); A('s_add_u32 s%d, s%d, %d' % (sFLb, sFLb, FLG_SEG))
    A('s_lshl_b32 s%d, s%d, 14' % (sQKb, sH)); A('s_add_u32 s%d, s%d, %d' % (sQKb, sQKb, QKB))
    A('s_lshl_b32 s%d, s%d, 16' % (sMEMb, sX)); A('s_add_u32 s%d, s%d, %d' % (sMEMb, sMEMb, MEMB))
    A('s_xor_b32 s%d, s%d, 1' % (sT0, sX)); A('s_lshl_b32 s%d, s%d, 16' % (sMRb, sT0)); A('s_add_u32 s%d, s%d, %d' % (sMRb, sMRb, MEMB + RDELTA))
    A('s_lshl_b32 s%d, s%d, 17' % (sOBb, sX)); A('s_add_u32 s%d, s%d, %d' % (sOBb, sOBb, OB))
    A('s_lshl_b32 s%d, s%d, 8' % (sT0, sH))
    A('s_sub_u32 s%d, s%d, 1' % (sT1, sW)); A('s_lshl_b32 s%d, s%d, 17' % (sT2, sT1)); A('s_add_u32 s%d, s%d, s%d' % (sKXb, sT0, sT2)); A('s_add_u32 s%d, s%d, %d' % (sKXb, sKXb, KX))
    A('s_lshl_b32 s%d, s%d, 12' % (sVXb, sT1)); A('s_add_u32 s%d, s%d, %d' % (sVXb, sVXb, LDS_KX))
    A('s_lshl_b32 s%d, s%d, 7' % (sT1, sJ)); A('s_add_u32 s%d, s%d, s%d' % (sT0, sT0, sT1)); A('s_add_u32 s%d, s%d, %d' % (sT0, sT0, VX))
    A('s_cmp_eq_u32 s%d, 3' % sW); A('s_cselect_b32 s%d, s%d, s%d' % (sKXb, sT0, sKXb)); A('s_cselect_b32 s%d, %d, s%d' % (sVXb, LDS_VX, sVXb))
    def calc(n):
        A('s_and_b32 s%d, s%d, 3' % (sT0, n))
        A('s_lshl_b32 s%d, s%d, 14' % (sT1, sT0)); A('s_lshl_b32 s%d, s%d, 12' % (sT2, sW)); A('s_add_u32 s%d, s%d, s%d' % (sT1, sT1, sT2))
        A('s_add_u32 s%d, s%d, s%d' % (sMEMc, sMEMb, sT1)); A('s_add_u32 s%d, s%d, s%d' % (sMRc, sMRb, sT1))
        A('s_lshl_b32 s%d, s%d, 12' % (sT1, sT0)); A('s_add_u32 s%d, s%d, s%d' % (sQKc, sQKb, sT1))
        A('s_add_u32 s%d, s%d, 3' % (sT0, n)); A('s_and_b32 s%d, s%d, 3' % (sT0, sT0))
        A('s_lshl_b32 s%d, s%d, 12' % (sT1, sT0)); A('s_add_u32 s%d, s%d, s%d' % (sQKv, sQKb, sT1))
        A('s_lshl_b32 s%d, s%d, 9' % (sT1, sW)); A('s_add_u32 s%d, s%d, s%d' % (sQKv, sQKv, sT1))
        A('s_add_u32 s%d, s%d, 2' % (sT0, n)); A('s_and_b32 s%d, s%d, 3' % (sT0, sT0))
        A('s_lshl_b32 s%d, s%d, 12' % (sT1, sT0)); A('s_add_u32 s%d, s%d, s%d' % (sQKp, sQKb, sT1))
        A('s_lshl_b32 s%d, s%d, 14' % (sT1, sT0)); A('s_add_u32 s%d, s%d, s%d' % (sMEMp, sMEMb, sT1)); A('s_add_u32 s%d, s%d, %d' % (sMRp, sMEMp, RDELTA))
        A('s_lshl_b32 s%d, s%d, 15' % (sT1, sT0)); A('s_add_u32 s%d, s%d, s%d' % (sOBp, sOBb, sT1))
        A('s_sub_u32 s%d, s%d, 1' % (sT0, n))
        A('s_lshl_b32 s%d, s%d, 16' % (sT1, sT0)); A('s_add_u32 s%d, s%d, s%d' % (sKMs, sKMb, sT1)); A('s_add_u32 s%d, s%d, s%d' % (sVMs, sVMb, sT1))
        A('s_sub_u32 s%d, s%d, 2' % (sT0, n)); A('s_lshl_b32 s%d, s%d, 10' % (sT1, sT0)); A('s_add_u32 s%d, s%d, s%d' % (sFLo, sFLb, sT1))
        A('s_cmp_lt_u32 s%d, 2' % n); A('s_cselect_b32 s%d, 0x%x, s%d' % (sFLo, OOBS, sFLo))
        A('s_cmp_lt_u32 s%d, 1' % n); A('s_cselect_b32 s%d, 0x%x, s%d' % (sKMs, OOBS, sKMs)); A('s_cselect_b32 s%d, 0x%x, s%d' % (sVMs, OOBS, sVMs))
        A('s_lshl_b32 s%d, s%d, 18' % (sDMo, n)); A('s_add_u32 s%d, s%d, s%d' % (sDMo, sDMo, sKXb))
    def calc_ob_memn(n):
        A('s_and_b32 s%d, s%d, 3' % (sT0, n))
        A('s_lshl_b32 s%d, s%d, 15' % (sT1, sT0)); A('s_add_u32 s%d, s%d, s%d' % (sOBc, sOBb, sT1))
        A('s_lshl_b32 s%d, s%d, 13' % (sT1, sW)); A('s_add_u32 s%d, s%d, s%d' % (sOBc2, sOBc, sT1))
        A('s_add_u32 s%d, s%d, 1' % (sT0, n)); A('s_and_b32 s%d, s%d, 3' % (sT0, sT0))
        A('s_lshl_b32 s%d, s%d, 14' % (sT1, sT0)); A('s_add_u32 s%d, s%d, s%d' % (sMEMn, sMEMb, sT1))

    for i in range(4): A('v_mov_b32 v%d, -1' % (W0 + i))
    for sl in range(4):
        A('s_add_u32 s%d, s%d, %d' % (sT0, sQKb, sl * 4096))
        A(st('buffer_store_dwordx4 v[%d:%d], v%d, %s, s%d offen' % (W0, W0 + 3, vPq, WS, sT0)))
        A('s_add_u32 s%d, s%d, %d' % (sT0, sOBb, sl * 32768))
        A(st('buffer_store_dwordx4 v[%d:%d], v%d, %s, s%d offen' % (W0, W0 + 3, vPo, WS, sT0)))
        Lq = A.uid('pp')
        A('s_cmp_lg_u32 s%d, 0' % sW); A('s_cbranch_scc1 %s' % Lq)
        A('s_add_u32 s%d, s%d, %d' % (sT0, sMEMb, sl * 16384))
        A(st('buffer_store_dwordx4 v[%d:%d], v%d, %s, s%d offen' % (W0, W0 + 3, vPm, WS, sT0)))
        A('s_add_u32 s%d, s%d, %d' % (sT0, sT0, RDELTA))
        A('buffer_store_dwordx4 v[%d:%d], v%d, %s, s%d offen sc1' % (W0, W0 + 3, vPm, WS, sT0))
        A.label(Lq)
    A('s_waitcnt vmcnt(0)')
    Lm = A.uid('m0')
    A('s_cmp_lg_u32 s%d, 0' % sW); A('s_cbranch_scc1 %s' % Lm)
    A('s_load_dwordx2 s[%d:%d], s[0:1], %d' % (SRD_T, SRD_T + 1, A_MEM0))
    A('s_mov_b32 s%d, 16384' % (SRD_T + 2)); A('s_mov_b32 s%d, 0x00020000' % (SRD_T + 3))
    A('s_waitcnt lgkmcnt(0)')
    A('v_lshlrev_b32 v%d, 11, v%d' % (t2, vRr))
    A('v_bfe_u32 v%d, v%d, 1, 1' % (t3, vN)); A('v_lshl_add_u32 v%d, v%d, 4, v%d' % (t2, t3, t2))
    A('v_bfe_u32 v%d, v%d, 4, 1' % (t3, vLane)); A('v_lshl_add_u32 v%d, v%d, 5, v%d' % (t2, t3, t2))
    A('s_lshl_b32 s%d, s%d, 6' % (sT1, sC)); A('v_add_u32 v%d, s%d, v%d' % (t2, sT1, t2))
    A('buffer_load_dwordx4 v[%d:%d], v%d, s[%d:%d], 0 offen' % (W0, W0 + 3, t2, SRD_T, SRD_T + 3))
    A('s_waitcnt vmcnt(0)')
    for i in range(4): A('v_pk_min_u16 v%d, v%d, s%d' % (W0 + i, W0 + i, sFE))
    Lz0 = A.uid('mz')
    A('s_cmp_eq_u32 s%d, 0' % sX); A('s_cbranch_scc1 %s' % Lz0)
    for i in range(4): A('v_mov_b32 v%d, 0' % (W0 + i))
    A.label(Lz0)
    A(st('buffer_store_dwordx4 v[%d:%d], v%d, %s, s%d offen' % (W0, W0 + 3, vPm, WS, sMEMb)))
    A('s_add_u32 s%d, s%d, %d' % (sT2, sMEMb, RDELTA))
    A('buffer_store_dwordx4 v[%d:%d], v%d, %s, s%d offen sc1' % (W0, W0 + 3, vPm, WS, sT2))
    A('s_waitcnt vmcnt(0)')
    A.label(Lm)
    A('s_mov_b64 exec, 1')
    A('v_mov_b32 v%d, 1' % t2); A('v_mov_b32 v%d, 64' % t3)
    A('global_atomic_add v%d, v%d, s[%d:%d] sc1' % (t3, t2, S_DBG, S_DBG + 1))
    A('s_mov_b64 exec, -1')

    vDq, vTr, vDo, vWt0, vWt1 = W0, W0 + 1, W0 + 3, W0 + 4, W0 + 5
    A('v_lshrrev_b32 v%d, 3, v%d' % (t2, vLane)); A('v_lshlrev_b32 v%d, 13, v%d' % (vDq, t2))
    A('v_and_b32 v%d, 7, v%d' % (t3, vLane)); A('v_lshl_add_u32 v%d, v%d, 4, v%d' % (vDq, t3, vDq))
    A('v_bfe_u32 v%d, v%d, 2, 1' % (t2, vN)); A('v_and_b32 v%d, 1, v%d' % (t3, vG)); A('v_lshl_add_u32 v%d, v%d, 2, v%d' % (t2, t3, t2))
    A('v_lshrrev_b32 v%d, 3, v%d' % (t3, vN)); A('v_lshl_add_u32 v%d, v%d, 3, v%d' % (t2, t3, t2))
    A('v_lshrrev_b32 v%d, 1, v%d' % (t3, vG)); A('v_lshl_add_u32 v%d, v%d, 4, v%d' % (t2, t3, t2))
    A('v_lshlrev_b32 v%d, 7, v%d' % (t2, t2)); A('v_and_b32 v%d, 3, v%d' % (t3, vN)); A('v_lshl_add_u32 v%d, v%d, 3, v%d' % (t2, t3, t2))
    A('s_and_b32 s%d, s%d, 1' % (sT0, sW)); A('s_lshl_b32 s%d, s%d, 15' % (sT0, sT0))
    A('v_add_u32 v%d, s%d, v%d' % (vTr, sT0, t2))
    A('v_add_u32 v%d, 65536, v%d' % (vTr + 1, vTr))
    A('v_lshrrev_b32 v%d, 2, v%d' % (t2, vLane)); A('v_and_b32 v%d, 9, v%d' % (t3, t2))
    A('v_bfe_u32 v%d, v%d, 1, 1' % (t1, t2)); A('v_lshl_add_u32 v%d, v%d, 2, v%d' % (t3, t1, t3))
    A('v_bfe_u32 v%d, v%d, 2, 1' % (t1, t2)); A('v_lshl_add_u32 v%d, v%d, 1, v%d' % (t3, t1, t3))
    A('v_lshlrev_b32 v%d, 11, v%d' % (vDo, t3))
    A('v_bfe_u32 v%d, v%d, 1, 1' % (t1, vLane)); A('v_lshrrev_b32 v%d, 5, v%d' % (t0, vLane)); A('v_xor_b32 v%d, v%d, v%d' % (t1, t1, t0))
    A('v_lshl_add_u32 v%d, v%d, 5, v%d' % (vDo, t1, vDo)); A('v_and_b32 v%d, 1, v%d' % (t1, vLane)); A('v_lshl_add_u32 v%d, v%d, 4, v%d' % (vDo, t1, vDo))
    A('v_bfe_u32 v%d, v%d, 2, 1' % (t2, vN)); A('v_and_b32 v%d, 1, v%d' % (t3, vG)); A('v_lshl_add_u32 v%d, v%d, 1, v%d' % (t2, t3, t2))
    A('v_lshrrev_b32 v%d, 3, v%d' % (t3, vN)); A('v_lshl_add_u32 v%d, v%d, 3, v%d' % (t2, t3, t2))
    A('v_lshrrev_b32 v%d, 1, v%d' % (t1, vG)); A('v_lshl_add_u32 v%d, v%d, 4, v%d' % (t2, t1, t2))
    A('v_lshlrev_b32 v%d, 6, v%d' % (t2, t2)); A('v_lshl_add_u32 v%d, v%d, 5, v%d' % (t2, t3, t2))
    A('v_and_b32 v%d, 3, v%d' % (t1, vN)); A('v_lshl_add_u32 v%d, v%d, 3, v%d' % (t2, t1, t2))
    A('s_lshl_b32 s%d, s%d, 15' % (sT0, sW)); A('v_add_u32 v%d, s%d, v%d' % (vWt0, sT0, t2)); A('v_xor_b32 v%d, 32, v%d' % (vWt1, vWt0))
    wptr = [A_WQ, A_WK, A_WV]
    def issue_chunk(cidx):
        half = cidx & 1
        if cidx < 6:
            A('s_load_dwordx2 s[%d:%d], s[0:1], %d' % (SRD_T, SRD_T + 1, wptr[cidx >> 1]))
            A('s_mov_b32 s%d, %d' % (SRD_T + 2, 8 * MB)); A('s_mov_b32 s%d, 0x00020000' % (SRD_T + 3))
            A('s_lshl_b32 s%d, s%d, 8' % (sT0, sH)); A('s_lshl_b32 s%d, s%d, 7' % (sT1, sJ)); A('s_add_u32 s%d, s%d, s%d' % (sT0, sT0, sT1))
            A('s_lshl_b32 s%d, s%d, 20' % (sT1, sW)); A('s_add_u32 s%d, s%d, s%d' % (sT0, sT0, sT1))
            A('s_add_u32 s%d, s%d, %d' % (sT0, sT0, half * 512 * 8192))
            step_g, vd = 65536, vDq
        else:
            A('s_load_dwordx2 s[%d:%d], s[0:1], %d' % (SRD_T, SRD_T + 1, A_WO))
            A('s_mov_b32 s%d, %d' % (SRD_T + 2, 8 * MB)); A('s_mov_b32 s%d, 0x00020000' % (SRD_T + 3))
            A('s_lshl_b32 s%d, s%d, 22' % (sT0, sX)); A('s_lshl_b32 s%d, s%d, 6' % (sT1, sC)); A('s_add_u32 s%d, s%d, s%d' % (sT0, sT0, sT1))
            A('s_lshl_b32 s%d, s%d, 19' % (sT1, sW)); A('s_add_u32 s%d, s%d, s%d' % (sT0, sT0, sT1))
            A('s_add_u32 s%d, s%d, %d' % (sT0, sT0, half * 1024 * 2048))
            step_g, vd = 32768, vDo
        A('s_lshl_b32 s%d, s%d, 14' % (sT1, sW)); A('s_add_u32 s%d, s%d, %d' % (sT1, sT1, half * 65536))
        A('s_waitcnt lgkmcnt(0)')
        for i in range(16):
            A('s_add_u32 m0, s%d, %d' % (sT1, i * 1024))
            A('s_add_u32 s%d, s%d, %d' % (sT2, sT0, i * step_g))
            A('buffer_load_dwordx4 v%d, s[%d:%d], s%d offen lds' % (vd, SRD_T, SRD_T + 3, sT2))
    def read_chunk(cidx):
        half = cidx & 1; mu = cidx >> 1
        Le = A.uid('rce')
        A('s_lshr_b32 s%d, s%d, 1' % (sT0, sW)); A('s_cmp_lg_u32 s%d, %d' % (sT0, half)); A('s_cbranch_scc1 %s' % Le)
        for kl in range(4):
            for t in range(4):
                Rg = wreg(kl, mu, t)
                for sg in range(4):
                    off = kl * 8192 + t * 32 + (sg & 1) * 256 + (sg >> 1) * 4096
                    A('ds_read_b64_tr_b16 %s, v%d offset:%d' % (r(Rg + 2 * sg, 2), vTr + half, off))
                if t % 2 == 1: A('s_waitcnt lgkmcnt(0)')
        A.label(Le)
    issue_chunk(0)
    for cidx in range(6):
        issue_chunk(cidx + 1)
        A('s_waitcnt vmcnt(16)'); A('s_barrier')
        read_chunk(cidx)
        A('s_waitcnt lgkmcnt(0)'); A('s_barrier')
    issue_chunk(7)
    A('s_mov_b32 s%d, 0' % sS)
    if kvwait: kvwait(A, sS)
    A('s_waitcnt vmcnt(0)'); A('s_barrier')
    CV = W0 + 8
    for hf in range(2):
        for kl in range(4):
            kap = 4 * hf + kl
            for tt in range(2):
                Rg = CV + (kl * 2 + tt) * 8
                for sg in range(4):
                    off = kap * 4096 + (sg & 1) * 256 + (sg >> 1) * 2048
                    A('ds_read_b64_tr_b16 v[%d:%d], v%d offset:%d' % (Rg + 2 * sg, Rg + 2 * sg + 1, vWt1 if tt else vWt0, off))
            A('s_waitcnt lgkmcnt(0)')
        for kl in range(4):
            kap = 4 * hf + kl
            for tt in range(2):
                Rg = CV + (kl * 2 + tt) * 8; off = (kap * 2 + tt) * 2048
                A('ds_write_b128 v%d, v[%d:%d] offset:%d' % (vWoR, Rg, Rg + 3, off))
                A('ds_write_b128 v%d, v[%d:%d] offset:%d' % (vWoR, Rg + 4, Rg + 7, off + 1024))
        A('s_waitcnt lgkmcnt(0)')
    Lw = A.uid('pw')
    A('s_mov_b32 s%d, 0' % sSPIN); A('v_mov_b32 v%d, 64' % (vT + 1))
    A.label(Lw)
    A('global_load_dword v%d, v%d, s[%d:%d] sc1' % (vT, vT + 1, S_DBG, S_DBG + 1))
    A('s_waitcnt vmcnt(0)')
    A('v_readfirstlane_b32 s%d, v%d' % (sT0, vT))
    A('s_add_u32 s%d, s%d, 1' % (sSPIN, sSPIN)); A('s_cmp_gt_u32 s%d, %d' % (sSPIN, SPIN_LIMIT)); A('s_cbranch_scc1 chain_abort')
    A('s_cmp_lt_u32 s%d, 256' % sT0); A('s_cbranch_scc1 %s' % Lw)
    A('s_barrier')
    if timing or looptime:
        for i in range(16): A('s_mov_b32 s%d, 0' % (sACC + i))
    def stamp(i):
        if timing:
            A('s_memtime s[%d:%d]' % (sTM + 2, sTM + 3)); A('s_waitcnt lgkmcnt(0)')
            A('s_sub_u32 s%d, s%d, s%d' % (sTM + 4, sTM + 2, sTM)); A('s_add_u32 s%d, s%d, s%d' % (sACC + i, sACC + i, sTM + 4))
            A('s_mov_b32 s%d, s%d' % (sTM, sTM + 2))
    if timing:
        A('s_memtime s[%d:%d]' % (sTM, sTM + 1)); A('s_waitcnt lgkmcnt(0)')
    def rts(p):
        if rt:
            L = A.uid('rt')
            A('s_sub_u32 s77, s%d, 20' % sS); A('s_cmp_ge_u32 s77, 8'); A('s_cbranch_scc1 %s' % L)
            A('s_memrealtime s[78:79]')
            A('s_lshl_b32 s76, s%d, 5' % sX); A('s_add_u32 s76, s76, s%d' % sC); A('s_lshl_b32 s76, s76, 2'); A('s_add_u32 s76, s76, s%d' % sW)
            A('s_lshl_b32 s76, s76, 3'); A('s_add_u32 s76, s76, s77'); A('s_lshl_b32 s76, s76, 6'); A('s_add_u32 s76, s76, %d' % (TRC + 4 * MB + p * 4))
            A('s_waitcnt lgkmcnt(0)')
            A('v_mov_b32 v%d, s78' % (vRT)); A('buffer_store_dword v%d, v%d, %s, s76 offen' % (vRT, vFlg, WS))
            A.label(L)
    vRT = 36
    def check(regs):
        m = vT; rs = list(regs)
        if len(rs) == 1: A('v_cmp_eq_u32 vcc, -1, v%d' % rs[0]); return
        if len(rs) == 2: A('v_max_u32 v%d, v%d, v%d' % (m, rs[0], rs[1])); rs = []
        else: A('v_max3_u32 v%d, v%d, v%d, v%d' % (m, rs[0], rs[1], rs[2])); rs = rs[3:]
        while len(rs) >= 2:
            A('v_max3_u32 v%d, v%d, v%d, v%d' % (m, m, rs[0], rs[1])); rs = rs[2:]
        if rs: A('v_max_u32 v%d, v%d, v%d' % (m, m, rs[0]))
        A('v_cmp_eq_u32 vcc, -1, v%d' % m)
    def poll(loads, regs, site=None):
        L = A.uid('poll')
        A('s_mov_b32 s%d, 0' % sSPIN)
        A.label(L)
        for x in loads: A(x)
        A('s_add_u32 s%d, s%d, 1' % (sSPIN, sSPIN)); A('s_cmp_gt_u32 s%d, %d' % (sSPIN, SPIN_LIMIT)); A('s_cbranch_scc1 chain_abort')
        A('s_waitcnt vmcnt(0)')
        check(regs)
        A('s_cbranch_vccnz %s' % L)
        if timing and site is not None: A('s_add_u32 s%d, s%d, s%d' % (sACC + 10 + site, sACC + 10 + site, sSPIN))

    calc(sS); calc_ob_memn(sS)
    vLD = W0
    vRQ = W0 + 16
    vAcc = W0 + 32
    vKR = 120
    vKX = 72; vVXF = 116
    def acc(mu, t): return vAcc + (mu * 4 + t) * 4
    def kpass(areg, fill=None):
        fill = list(fill or [])
        n = 0
        mus = (0, 1) if vdefer else (0, 1, 2)
        per = 2 if vdefer else 3
        for kl in range(4):
            for mu in mus:
                for t in range(4):
                    a_ = acc(mu, t)
                    A('v_smfmac_f32_16x16x64_bf16 v[%d:%d], v[%d:%d], %s, v%d' % (a_, a_ + 3, areg + 4 * kl, areg + 4 * kl + 3, r(wreg(kl, mu, t), 8), vIdx))
                    n += 1
                    if fill and n % per == 0:
                        for x in fill.pop(0): A(x)
        for g_ in fill:
            for x in g_: A(x)

    if looptime:
        A('s_memrealtime s[%d:%d]' % (sRT, sRT + 1)); A('s_waitcnt lgkmcnt(0)')
    A.label('chain_step')
    if steptrace:
        Lst = A.uid('st')
        A('s_cmp_lg_u32 s%d, 0' % sW); A('s_cbranch_scc1 %s' % Lst)
        A('s_memrealtime s[84:85]')
        A('s_lshl_b32 s%d, s%d, 5' % (sT0, sX)); A('s_add_u32 s%d, s%d, s%d' % (sT0, sT0, sC)); A('s_lshl_b32 s%d, s%d, 7' % (sT0, sT0))
        A('s_add_u32 s%d, s%d, s%d' % (sT0, sT0, sS)); A('s_lshl_b32 s%d, s%d, 2' % (sT0, sT0)); A('s_add_u32 s%d, s%d, %d' % (sT0, sT0, TRC_CH))
        A('s_waitcnt lgkmcnt(0)')
        A('v_mov_b32 v%d, s84' % vT); A('v_mov_b32 v%d, 0' % (vT + 1)); A('s_mov_b64 exec, 1')
        A('buffer_store_dword v%d, v%d, %s, s%d offen' % (vT, vT + 1, WS, sT0)); A('s_mov_b64 exec, -1')
        A.label(Lst)
    A.c('P1a')
    rts(0)
    for i in range(48): A('v_mov_b32 v%d, 0' % (vAcc + i))
    if d1: A('s_sleep %d' % d1)
    A('buffer_load_dwordx4 v[%d:%d], v%d, %s, s%d offen offset:2048 sc1' % (vKR, vKR + 3, vQkLd, WS, sQKv))
    if kvwait: kvwait(A, sS, issue_only=True)
    loads = ['buffer_load_dwordx4 v[%d:%d], v%d, %s, s%d offen offset:%d sc1' % (vLD + 4 * k, vLD + 4 * k + 3, vL16, WS, sMEMc, 1024 * k) for k in range(4)]
    rloads = ['buffer_load_dwordx4 v[%d:%d], v%d, %s, s%d offen offset:%d sc1' % (vRQ + 4 * k, vRQ + 4 * k + 3, vL16, WS, sMRc, 1024 * k) for k in range(4)]
    if rearly:
        Lp1 = A.uid('p1e')
        for x in loads: A(x)
        A('s_sleep %d' % rearly)
        for x in rloads: A(x)
        A('s_waitcnt vmcnt(4)')
        check([vLD + 4 * k for k in range(4)])
        A('s_cbranch_vccz %s' % Lp1)
        poll(loads, [vLD + 4 * k for k in range(4)], site=0)
        A.label(Lp1)
    else:
        poll(loads, [vLD + 4 * k for k in range(4)], site=0)
    if kvwait: kvwait(A, sS, check_only=True)
    stamp(0)
    rts(1)
    rloads = ['buffer_load_dwordx4 v[%d:%d], v%d, %s, s%d offen offset:%d sc1' % (vRQ + 4 * k, vRQ + 4 * k + 3, vL16, WS, sMRc, 1024 * k) for k in range(4)]
    P4r = 124
    common = [['buffer_store_dwordx4 v[%d:%d], v%d, %s, s%d offen %s' % (vKR, vKR + 3, vKmSt, WS, sKMs, '' if nokm else 'sc1')],
              ['buffer_store_dword v%d, v%d, %s, s%d offen %s' % (vVM, vVmSt, WS, sVMs, '' if nokm else 'sc1')],
              ['buffer_store_dword v%d, v%d, %s, s%d offen %s' % (vOnes, vFlg, WS, sFLo, '' if noflag else 'sc1')],
              ['v_mov_b32 v%d, -1' % (P4r + i) for i in range(2)], ['v_mov_b32 v%d, -1' % (P4r + i) for i in range(2, 4)],
              [st('buffer_store_dwordx4 v[%d:%d], v%d, %s, s%d offen' % (P4r, P4r + 3, vPq, WS, sQKp))],
              [st('buffer_store_dwordx4 v[%d:%d], v%d, %s, s%d offen' % (P4r, P4r + 3, vPo, WS, sOBp))]]
    Lw0 = A.uid('w0p'); Lj = A.uid('w0j')
    def with_r(groups):
        g = list(groups)
        if rearly:
            younger = sum(1 for grp in g for x in grp if x.startswith('buffer_'))
            return g, younger
        g.insert(min(rpos, len(g)), rloads)
        idx = min(rpos, len(groups))
        younger = sum(1 for grp in g[idx + 1:] for x in grp if x.startswith('buffer_'))
        return g, younger
    A('s_cmp_eq_u32 s%d, 0' % sW); A('s_cbranch_scc1 %s' % Lw0)
    fill = [['s_mov_b32 m0, s%d' % sVXb, 'buffer_load_dwordx4 v%d, %s, s%d offen sc1 lds' % (vKxD4[0], WS, sDMo)]]
    fill[0].insert(1, 's_nop 0')
    for i in range(1, 4): fill.append(['buffer_load_dwordx4 v%d, %s, s%d offen offset:%d sc1 lds' % (vKxD4[i], WS, sDMo, 1024 * i)])
    g, y = with_r(fill + common)
    kpass(vLD, g)
    A('s_waitcnt vmcnt(%d)' % y)
    A('s_branch %s' % Lj)
    A.label(Lw0)
    g, y0 = with_r(common + [[st('buffer_store_dwordx4 v[%d:%d], v%d, %s, s%d offen' % (P4r, P4r + 3, vPm, WS, sMEMp))],
                             ['buffer_store_dwordx4 v[%d:%d], v%d, %s, s%d offen sc1' % (P4r, P4r + 3, vPm, WS, sMRp)]])
    kpass(vLD, g)
    A('s_waitcnt vmcnt(%d)' % y0)
    A.label(Lj)
    stamp(1)
    A.c('P1b')
    rts(2)
    Lrk = A.uid('rk')
    check([vRQ + 4 * k for k in range(4)])
    A('s_cbranch_vccz %s' % Lrk)
    poll(rloads, [vRQ + 4 * k for k in range(4)], site=3)
    A.label(Lrk)
    def smf1(kl, mu, t, areg):
        a_ = acc(mu, t)
        return 'v_smfmac_f32_16x16x64_bf16 v[%d:%d], v[%d:%d], %s, v%d' % (a_, a_ + 3, areg + 4 * kl, areg + 4 * kl + 3, r(wreg(kl, mu, t), 8), vIdx)
    def pkadd(d, a_, b_): return 'v_pk_add_f32 v[%d:%d], v[%d:%d], v[%d:%d]' % (d, d + 1, a_, a_ + 1, b_, b_ + 1)
    def comb(ra, rb_):
        return [pkadd(ra, ra, ra + 2), pkadd(ra + 2, rb_, rb_ + 2)]
    own = 88
    seq = []
    for t in range(4): seq += [smf1(kl, mu, t, vRQ) for kl in range(4) for mu in (0, 1)]
    fl = {}
    def put(start, instrs, per=2):
        i = start
        for j in range(0, len(instrs), per):
            fl.setdefault(i, []).extend(instrs[j:j + per]); i += 1
        return i
    def qk_out(t):
        Ls = A.uid('xs'); Le = A.uid('xe')
        return ['s_cmp_eq_u32 s%d, %d' % (sW, t), 's_cbranch_scc1 %s' % Ls, 'ds_write_b128 v%d, v[%d:%d]' % (vXq[t], acc(0, t), acc(0, t) + 3), 's_branch %s' % Le, Ls + ':'] + \
               ['v_mov_b32 v%d, v%d' % (own + i, acc(0, t) + i) for i in range(4)] + [Le + ':']
    nx = 0
    for t in range(3):
        st_ = max(nx, 8 * t + 15)
        nx = put(st_, comb(acc(0, t), acc(1, t)))
        fl.setdefault(nx, []).extend(qk_out(t)); nx += 1
    for i, m_ in enumerate(seq):
        A(m_)
        for x in fl.pop(i, []): A(x)
    for k_ in sorted(fl):
        for x in fl[k_]: A(x)
    A.nop(7)
    for x in comb(acc(0, 3), acc(1, 3)) + qk_out(3): A(x)
    stamp(2)
    A('s_waitcnt vmcnt(5)')
    A.c('P3: cross-wave reduce')
    rts(3)
    A('s_waitcnt lgkmcnt(0)')
    A('s_barrier')
    X1 = 92
    for i in range(3): A('ds_read_b128 v[%d:%d], v%d offset:%d' % (X1 + 4 * i, X1 + 4 * i + 3, vXqR, 1024 * i))
    A('s_lshl_b32 s%d, s%d, 10' % (sT1, sW))
    A('v_add_u32 v%d, s%d, v%d' % (vT + 2, sT1, vL16))
    A('v_add_u32 v%d, %d, v%d' % (vT + 3, LDS_XB, vT + 2))
    A('s_waitcnt lgkmcnt(0)')
    A(pkadd(own, own, X1)); A(pkadd(own + 2, own + 2, X1 + 2)); A(pkadd(X1 + 4, X1 + 4, X1 + 8)); A(pkadd(X1 + 6, X1 + 6, X1 + 10))
    A(pkadd(own, own, X1 + 4)); A(pkadd(own + 2, own + 2, X1 + 6))
    kk_ = X1
    A('v_cvt_pk_bf16_f32 v%d, v%d, v%d' % (kk_, own, own + 1))
    A('v_cvt_pk_bf16_f32 v%d, v%d, v%d' % (kk_ + 1, own + 2, own + 3))
    A('v_pk_min_u16 v%d, v%d, s%d' % (kk_, kk_, sFE)); A('v_pk_min_u16 v%d, v%d, s%d' % (kk_ + 1, kk_ + 1, sFE))
    A(st('buffer_store_short v%d, v%d, %s, s%d offen' % (kk_, vQkSt, WS, sQKc)))
    A(st('buffer_store_short_d16_hi v%d, v%d, %s, s%d offen offset:16' % (kk_, vQkSt, WS, sQKc)))
    A(st('buffer_store_short v%d, v%d, %s, s%d offen offset:2048' % (kk_ + 1, vQkSt, WS, sQKc)))
    A(st('buffer_store_short_d16_hi v%d, v%d, %s, s%d offen offset:2064' % (kk_ + 1, vQkSt, WS, sQKc)))
    rts(4)
    for tt in range(2):
        for k in range(4):
            Rg = vKX + (tt * 4 + k) * 4
            A('ds_read_b128 v[%d:%d], v%d offset:%d' % (Rg, Rg + 3, vKx0 + k, tt * 4096))
    A.c('pass 2b: V tiles while the q/k exchange is in flight')
    PQ = 120
    qload = 'buffer_load_dwordx4 v[%d:%d], v%d, %s, s%d offen sc1' % (PQ, PQ + 3, vT + 2, WS, sQKc)
    if vdefer:
        for kl in range(4):
            for t in range(4): A(smf1(kl, 2, t, vLD))
        A(qload)
    for kl in range(4):
        for t in range(4): A(smf1(kl, 2, t, vRQ))
    if not vdefer: A(qload)
    A.nop(8)
    for x in comb(acc(2, 0), acc(2, 1)): A(x)
    A('ds_write_b128 v%d, v[%d:%d]' % (vXvW, acc(2, 0), acc(2, 0) + 3))
    for x in comb(acc(2, 2), acc(2, 3)): A(x)
    A('ds_write_b128 v%d, v[%d:%d] offset:1024' % (vXvW, acc(2, 2), acc(2, 2) + 3))
    A('ds_read_b64_tr_b16 v[%d:%d], v%d' % (vVXF, vVXF + 1, vVx))
    A('ds_read_b64_tr_b16 v[%d:%d], v%d offset:2048' % (vVXF + 2, vVXF + 3, vVx))
    A.c('P4')
    Lq = A.uid('q4')
    A('s_waitcnt vmcnt(0)')
    check([PQ])
    A('s_cbranch_vccz %s' % Lq)
    poll([qload], [PQ], site=1)
    A.label(Lq)
    rts(5)
    A('ds_write_b128 v%d, v[%d:%d]' % (vT + 3, PQ, PQ + 3))
    A('s_waitcnt lgkmcnt(0)')
    A('s_barrier')
    vQ, vKM = W0, W0 + 16
    for k in range(4):
        A('ds_read_b128 v[%d:%d], v%d offset:%d' % (vQ + 4 * k, vQ + 4 * k + 3, vQkL, 512 * k))
        A('ds_read_b128 v[%d:%d], v%d offset:%d' % (vKM + 4 * k, vKM + 4 * k + 3, vBias, 512 * k))
    stamp(3)
    T0, T1, T2 = 104, 108, 112
    for k in range(4):
        A('s_waitcnt lgkmcnt(%d)' % (6 - 2 * k))
        c1 = '0' if k == 0 else 'v[%d:%d]' % (T1, T1 + 3); c2 = '0' if k == 0 else 'v[%d:%d]' % (T2, T2 + 3); c0 = '0' if k == 0 else 'v[%d:%d]' % (T0, T0 + 3)
        A('v_mfma_f32_16x16x32_bf16 v[%d:%d], v[%d:%d], v[%d:%d], %s' % (T1, T1 + 3, vKX + 4 * k, vKX + 4 * k + 3, vQ + 4 * k, vQ + 4 * k + 3, c1))
        A('v_mfma_f32_16x16x32_bf16 v[%d:%d], v[%d:%d], v[%d:%d], %s' % (T2, T2 + 3, vKX + 16 + 4 * k, vKX + 16 + 4 * k + 3, vQ + 4 * k, vQ + 4 * k + 3, c2))
        A('v_mfma_f32_16x16x32_bf16 v[%d:%d], v[%d:%d], v[%d:%d], %s' % (T0, T0 + 3, vKM + 4 * k, vKM + 4 * k + 3, vQ + 4 * k, vQ + 4 * k + 3, c0))
    Vp = 72
    for i in range(4): A('ds_read_b64 v[%d:%d], v%d offset:%d' % (Vp + 2 * i, Vp + 2 * i + 1, vXvR, 2048 * i))
    A.nop(3)
    A.c('P5')
    m, t = vT, vT + 1
    A('v_max3_f32 v%d, v%d, v%d, v%d' % (m, T1, T1 + 1, T1 + 2)); A('v_max3_f32 v%d, v%d, v%d, v%d' % (t, T1 + 3, T2, T2 + 1))
    A('v_max3_f32 v%d, v%d, v%d, v%d' % (m, m, T2 + 2, T2 + 3)); A('v_max3_f32 v%d, v%d, v%d, v%d' % (t, t, T0, T0 + 1))
    A('v_max_f32 v%d, v%d, v%d' % (m, m, t))
    for sw in ('v_permlane32_swap_b32', 'v_permlane16_swap_b32'):
        A('v_mov_b32 v%d, v%d' % (t, m)); A('s_nop 1'); A('%s v%d, v%d' % (sw, m, t)); A('s_nop 0'); A('v_max_f32 v%d, v%d, v%d' % (m, m, t))
    A('v_mul_f32 v%d, s%d, v%d' % (m, sC_, m))
    A('s_waitcnt lgkmcnt(0)')
    A(pkadd(Vp, Vp, Vp + 2)); A(pkadd(Vp + 4, Vp + 4, Vp + 6)); A(pkadd(Vp, Vp, Vp + 4))
    A('v_cvt_pk_bf16_f32 v%d, v%d, v%d' % (vVM, Vp, Vp + 1))
    A('v_mov_b32 v%d, v%d' % (t, m))
    for x in list(range(T1, T1 + 8, 2)) + [T0]:
        A('v_pk_fma_f32 v[%d:%d], v[%d:%d], s[56:57], v[%d:%d] neg_lo:[0,0,1] neg_hi:[0,0,1]' % (x, x + 1, x, x + 1, m, m + 1))
    for x in list(range(T1, T1 + 8)) + [T0, T0 + 1]: A('v_exp_f32 v%d, v%d' % (x, x))
    vPx, vPm2 = 56, 60; vO, vO2, vSm, vSm2 = 64, 68, 120, 88
    A('v_cvt_pk_bf16_f32 v%d, v%d, v%d' % (vPx, T1, T1 + 1)); A('v_cvt_pk_bf16_f32 v%d, v%d, v%d' % (vPx + 1, T1 + 2, T1 + 3))
    A('v_cvt_pk_bf16_f32 v%d, v%d, v%d' % (vPx + 2, T2, T2 + 1)); A('v_cvt_pk_bf16_f32 v%d, v%d, v%d' % (vPx + 3, T2 + 2, T2 + 3))
    A('v_cvt_pk_bf16_f32 v%d, v%d, v%d' % (vPm2, T0, T0 + 1)); A('v_mov_b32 v%d, 0' % (vPm2 + 1))
    A('s_nop 0')
    A('v_mfma_f32_16x16x32_bf16 v[%d:%d], v[%d:%d], v[%d:%d], 0' % (vO, vO + 3, vVXF, vVXF + 3, vPx, vPx + 3))
    A('v_mfma_f32_16x16x16_bf16 v[%d:%d], v[%d:%d], v[%d:%d], 0' % (vO2, vO2 + 3, vVM, vVM + 1, vPm2, vPm2 + 1))
    A('v_mfma_f32_16x16x16_bf16 v[%d:%d], v[%d:%d], v[%d:%d], 0' % (vSm, vSm + 3, vOnes, vOnes1, vPx, vPx + 1))
    A('v_mfma_f32_16x16x16_bf16 v[%d:%d], v[%d:%d], v[%d:%d], v[%d:%d]' % (vSm, vSm + 3, vOnes, vOnes1, vPx + 2, vPx + 3, vSm, vSm + 3))
    A('v_mfma_f32_16x16x16_bf16 v[%d:%d], v[%d:%d], v[%d:%d], v[%d:%d]' % (vSm, vSm + 3, vOnes, vOnes1, vPm2, vPm2 + 1, vSm, vSm + 3))
    ops = [(kap, tt) for kap in range(8) for tt in range(2)]
    breg = [96, 104, 112, 120, 40, 48]
    def wo_read(n, Rg):
        off = n * 2048
        A('ds_read_b128 v[%d:%d], v%d offset:%d' % (Rg, Rg + 3, vWoR, off))
        A('ds_read_b128 v[%d:%d], v%d offset:%d' % (Rg + 4, Rg + 7, vWoR, off + 1024))
    for n in range(2): wo_read(n, breg[n])
    A.nop(4)
    A('v_rcp_f32 v%d, v%d' % (m, vSm))
    A(pkadd(vO, vO, vO2)); A(pkadd(vO + 2, vO + 2, vO2 + 2))
    for i in range(4): A('v_mul_f32 v%d, v%d, v%d' % (vO + i, vO + i, m))
    A('v_cvt_pk_bf16_f32 v%d, v%d, v%d' % (vO, vO, vO + 1)); A('v_cvt_pk_bf16_f32 v%d, v%d, v%d' % (vO + 1, vO + 2, vO + 3))
    A('v_pk_min_u16 v%d, v%d, s%d' % (vO, vO, sFE)); A('v_pk_min_u16 v%d, v%d, s%d' % (vO + 1, vO + 1, sFE))
    A(st('buffer_store_dwordx2 v[%d:%d], v%d, %s, s%d offen' % (vO, vO + 1, vOSt, WS, sOBc)))
    rts(6)
    for n in range(2, 6): wo_read(n, breg[n])
    stamp(4)
    A.c('P6')
    vOA = 60; acc0 = vT; acc1 = 92
    A('s_add_u32 s%d, s%d, 1' % (sT3, sS))
    calc(sT3)
    if d6: A('s_sleep %d' % d6)
    A('s_add_u32 s%d, s%d, 4096' % (sT2, sOBc2))
    loads = ['buffer_load_dwordx4 v[%d:%d], v%d, %s, s%d offen offset:%d sc1' % (vOA + 4 * k, vOA + 4 * k + 3, vL16, WS, sOBc2 if k < 4 else sT2, 1024 * (k & 3)) for k in range(8)]
    chk = []
    for k in range(8): chk += [vOA + 4 * k, vOA + 4 * k + 2]
    poll(loads, chk, site=2)
    rts(7)
    stamp(5)
    for i in range(4):
        A('v_mov_b32 v%d, 0' % (acc0 + i)); A('v_mov_b32 v%d, 0' % (acc1 + i))
    A('s_waitcnt lgkmcnt(0)')
    nb = len(breg); issued = nb
    for n, (kap, tt) in enumerate(ops):
        ac = acc1 if tt else acc0
        Rg = breg[n % nb]
        if n >= nb: A('s_waitcnt lgkmcnt(%d)' % min((min(issued, 16) - (n + 1)) * 2, 15))
        A('v_smfmac_f32_16x16x64_bf16 v[%d:%d], v[%d:%d], v[%d:%d], v%d' % (ac, ac + 3, vOA + 4 * kap, vOA + 4 * kap + 3, Rg, Rg + 7, vIdx))
        if issued < 16: wo_read(issued, Rg); issued += 1
    A.nop(9)
    A(pkadd(acc0, acc0, acc0 + 2)); A(pkadd(acc1, acc1, acc1 + 2))
    A('ds_write_b32 v%d, v%d' % (vRedW, acc0)); A('ds_write_b32 v%d, v%d offset:128' % (vRedW, acc0 + 1))
    A('ds_write_b32 v%d, v%d offset:64' % (vRedW, acc1)); A('ds_write_b32 v%d, v%d offset:192' % (vRedW, acc1 + 1))
    A('s_waitcnt lgkmcnt(0)')
    A('s_barrier')
    rts(8)
    Lw1b = A.uid('rw1')
    A('s_cmp_lg_u32 s%d, 0' % sW); A('s_cbranch_scc1 %s' % Lw1b)
    S = W0
    for k in range(4):
        A('ds_read_b128 v[%d:%d], v%d offset:%d' % (S + 8 * k, S + 8 * k + 3, vRedR, 1024 * k))
        A('ds_read_b128 v[%d:%d], v%d offset:%d' % (S + 8 * k + 4, S + 8 * k + 7, vRedR, 1024 * k + 16))
    for k in range(1, 4):
        A('s_waitcnt lgkmcnt(%d)' % (6 - 2 * k))
        for i in range(0, 8, 2): A(pkadd(S + i, S + i, S + 8 * k + i))
    for i in range(4): A('v_cvt_pk_bf16_f32 v%d, v%d, v%d' % (S + 8 + i, S + 2 * i, S + 2 * i + 1))
    for i in range(4): A('v_pk_min_u16 v%d, v%d, s%d' % (S + 8 + i, S + 8 + i, sFE))
    A('s_add_u32 s%d, s%d, %d' % (sT2, sMEMn, RDELTA))
    A(st('buffer_store_dwordx4 v[%d:%d], v%d, %s, s%d offen' % (S + 8, S + 11, vPm, WS, sMEMn)))
    A('buffer_store_dwordx4 v[%d:%d], v%d, %s, s%d offen sc1' % (S + 8, S + 11, vPm, WS, sT2))
    rts(9)
    A.label(Lw1b)
    A('s_add_u32 s%d, s%d, 1' % (sT3, sS))
    calc_ob_memn(sT3)
    A('s_barrier')
    stamp(6)
    A('s_add_u32 s%d, s%d, 1' % (sS, sS)); A('s_cmp_lt_u32 s%d, %d' % (sS, nsteps)); A('s_cbranch_scc1 chain_step')
    if looptime:
        A('s_memrealtime s[%d:%d]' % (sRT + 2, sRT + 3)); A('s_waitcnt lgkmcnt(0)')
        A('s_sub_u32 s%d, s%d, s%d' % (sACC + 8, sRT + 2, sRT))
    A('buffer_load_dwordx4 v[%d:%d], v%d, %s, s%d offen offset:2048 sc1' % (vKR, vKR + 3, vQkLd, WS, sQKv))
    A('s_waitcnt vmcnt(0)')
    A('buffer_store_dwordx4 v[%d:%d], v%d, %s, s%d offen sc1' % (vKR, vKR + 3, vKmSt, WS, sKMs))
    A('buffer_store_dword v%d, v%d, %s, s%d offen sc1' % (vVM, vVmSt, WS, sVMs))
    A('buffer_store_dword v%d, v%d, %s, s%d offen sc1' % (vOnes, vFlg, WS, sFLo))
    A('s_waitcnt vmcnt(0)')
    A('s_add_u32 s%d, s%d, 1024' % (sT1, sFLo))
    A('buffer_store_dword v%d, v%d, %s, s%d offen sc1' % (vOnes, vFlg, WS, sT1))
    if timing or looptime:
        A('s_lshl_b32 s%d, s%d, 5' % (sT0, sX)); A('s_add_u32 s%d, s%d, s%d' % (sT0, sT0, sC)); A('s_lshl_b32 s%d, s%d, 2' % (sT0, sT0))
        A('s_add_u32 s%d, s%d, s%d' % (sT0, sT0, sW)); A('s_lshl_b32 s%d, s%d, 6' % (sT0, sT0)); A('s_add_u32 s%d, s%d, %d' % (sT0, sT0, CNT + 65536))
        for i in range(16): A('v_mov_b32 v%d, s%d' % (W0 + i, sACC + i))
        A('v_mov_b32 v%d, 0' % vT); A('s_mov_b64 exec, 1')
        for q in range(4): A('buffer_store_dwordx4 v[%d:%d], v%d, %s, s%d offen offset:%d' % (W0 + 4 * q, W0 + 4 * q + 3, vT, WS, sT0, 16 * q))
    A('s_waitcnt vmcnt(0)')
    if finish:
        A('s_mov_b64 exec, -1')
        A('s_branch %s' % finish)
    else:
        A('s_endpgm')
    A.label('chain_abort')
    A('s_mov_b64 exec, 1')
    A('v_mov_b32 v%d, 1' % vT); A('v_mov_b32 v%d, 128' % (vT + 1))
    A('global_atomic_add v%d, v%d, s[%d:%d] sc1' % (vT + 1, vT, S_DBG, S_DBG + 1))
    A('s_waitcnt vmcnt(0)')
    A('s_endpgm')
```

```python
from asmlib import *
from layout import *
from gemm2 import *
import struct, math
def fhex(x): return '0x%08x' % struct.unpack('<I', struct.pack('<f', x))[0]

def wave_allreduce(A, op, x, t):
    for rot in (8, 4, 2, 1):
        A('s_nop 1')
        A('v_%s_dpp v%d, v%d, v%d row_ror:%d row_mask:0xf bank_mask:0xf' % (op, x, x, x, rot))
    A('v_mov_b32 v%d, v%d' % (t, x))
    A('s_nop 1')
    A('v_permlane16_swap_b32 v%d, v%d' % (x, t))
    A('s_nop 0')
    A('v_%s v%d, v%d, v%d' % (op, x, x, t))
    A('v_mov_b32 v%d, v%d' % (t, x))
    A('s_nop 1')
    A('v_permlane32_swap_b32 v%d, v%d' % (x, t))
    A('s_nop 0')
    A('v_%s v%d, v%d, v%d' % (op, x, x, t))

def unpack8(A, src, dst):
    for i in range(4):
        A('v_lshlrev_b32 v%d, 16, v%d' % (dst + 2 * i, src + i))
        A('v_and_b32 v%d, 0xffff0000, v%d' % (dst + 2 * i + 1, src + i))
def pack8(A, src, dst):
    for i in range(4):
        A('v_cvt_pk_bf16_f32 v%d, v%d, v%d' % (dst + i, src + 2 * i, src + 2 * i + 1))
def round_bf16(A, regs, tmp):
    for i in range(0, len(regs), 2):
        A('v_cvt_pk_bf16_f32 v%d, v%d, v%d' % (tmp, regs[i], regs[i + 1]))
        A('v_lshlrev_b32 v%d, 16, v%d' % (regs[i], tmp))
        A('v_and_b32 v%d, 0xffff0000, v%d' % (regs[i + 1], tmp))

def rnd1(A, x, tmp):
    A('v_cvt_pk_bf16_f32 v%d, v%d, v%d' % (tmp, x, x))
    A('v_lshlrev_b32 v%d, 16, v%d' % (x, tmp))
def layernorm16(A, X, t):
    m, u, w, q = t, t + 1, t + 2, t + 3
    A('v_add_f32 v%d, v%d, v%d' % (m, X, X + 1))
    for i in range(2, 16): A('v_add_f32 v%d, v%d, v%d' % (m, m, X + i))
    wave_allreduce(A, 'add_f32', m, u)
    A('v_mul_f32 v%d, %s, v%d' % (m, fhex(1.0 / 1024), m))
    A('v_sub_f32 v%d, v%d, v%d' % (q, X, m))
    A('v_mul_f32 v%d, v%d, v%d' % (w, q, q))
    for i in range(1, 16):
        A('v_sub_f32 v%d, v%d, v%d' % (q, X + i, m))
        A('v_fmac_f32 v%d, v%d, v%d' % (w, q, q))
    wave_allreduce(A, 'add_f32', w, u)
    A('v_mul_f32 v%d, %s, v%d' % (w, fhex(1.0 / 1024), w))
    rnd1(A, w, u); rnd1(A, m, u)
    A('v_add_f32 v%d, %s, v%d' % (w, fhex(1e-5), w))
    rnd1(A, w, u)
    A('v_sqrt_f32 v%d, v%d' % (w, w))
    A('s_nop 0')
    rnd1(A, w, u)
    A('v_rcp_f32 v%d, v%d' % (w, w))
    for i in range(16): A('v_sub_f32 v%d, v%d, v%d' % (X + i, X + i, m))
    round_bf16(A, list(range(X, X + 16)), u)
    for i in range(16): A('v_mul_f32 v%d, v%d, v%d' % (X + i, X + i, w))

def lane_setup(A):
    A('v_and_b32 v1, 63, v0')
    A('v_lshrrev_b32 v2, 6, v0')
    A('s_nop 0')
    A('v_readfirstlane_b32 s%d, v2' % sW)
    A('v_lshlrev_b32 v3, 4, v1')
    A('v_lshlrev_b32 v4, 5, v1')
    A('s_nop 1')

def load_row_bf16(A, dst, srdn, soff, fl):
    A('buffer_load_dwordx4 v[%d:%d], v3, %s, s%d offen %s' % (dst, dst + 3, srd(srdn), soff, fl))
    A('buffer_load_dwordx4 v[%d:%d], v3, %s, s%d offen offset:1024 %s' % (dst + 4, dst + 7, srd(srdn), soff, fl))
def store_row_bf16(A, src, srdn, soff, fl):
    A('buffer_store_dwordx4 v[%d:%d], v3, %s, s%d offen %s' % (src, src + 3, srd(srdn), soff, fl))
    A('buffer_store_dwordx4 v[%d:%d], v3, %s, s%d offen offset:1024 %s' % (src + 4, src + 7, srd(srdn), soff, fl))
def load_row_f32(A, dst, srdn, soff, fl):
    A('buffer_load_dwordx4 v[%d:%d], v4, %s, s%d offen %s' % (dst, dst + 3, srd(srdn), soff, fl))
    A('buffer_load_dwordx4 v[%d:%d], v4, %s, s%d offen offset:16 %s' % (dst + 4, dst + 7, srd(srdn), soff, fl))
    A('buffer_load_dwordx4 v[%d:%d], v4, %s, s%d offen offset:2048 %s' % (dst + 8, dst + 11, srd(srdn), soff, fl))
    A('buffer_load_dwordx4 v[%d:%d], v4, %s, s%d offen offset:2064 %s' % (dst + 12, dst + 15, srd(srdn), soff, fl))

sRow = 55
def unit_ln1(A, rows_per_wave=2):
    lane_setup(A)
    A('s_mul_i32 s%d, s%d, %d' % (sT0, sW, rows_per_wave))
    A('s_add_u32 s%d, s%d, s%d' % (sT0, sT0, sRow))
    A('s_lshl_b32 s%d, s%d, 11' % (sT1, sT0))
    for r_ in range(rows_per_wave):
        A('s_add_u32 s%d, s%d, %d' % (sT2, sT1, 2048 * r_))
        load_row_bf16(A, 16 + 8 * r_, SRD_R, sT2, '')
    A('s_waitcnt vmcnt(0)')
    for r_ in range(rows_per_wave):
        X = 64
        unpack8(A, 16 + 8 * r_, X); unpack8(A, 20 + 8 * r_, X + 8)
        layernorm16(A, X, 8)
        pack8(A, X, 48); pack8(A, X + 8, 52)
        A('s_add_u32 s%d, s%d, %d' % (sT2, sT1, XLN + 2048 * r_))
        store_row_bf16(A, 48, SRD_WS, sT2, 'sc1')
        A('s_nop 1')

NPART = 6
OUTFL = ''
def sum_partials(A, P, X, tmp):
    Y = X + 16
    unpack8(A, P, X); unpack8(A, P + 4, X + 8)
    for p in range(1, NPART):
        unpack8(A, P + 8 * p, Y); unpack8(A, P + 8 * p + 4, Y + 8)
        for i in range(0, 16, 2):
            A('v_pk_add_f32 v[%d:%d], v[%d:%d], v[%d:%d]' % (X + i, X + i + 1, X + i, X + i + 1, Y + i, Y + i + 1))
    round_bf16(A, list(range(X, X + 16)), tmp)

def row_setup(A):
    lane_setup(A)
    A('s_add_u32 s%d, s%d, s%d' % (sT0, sW, sRow))
    A('s_lshl_b32 s%d, s%d, 11' % (sT1, sT0))
    A('s_lshl_b32 s%d, s%d, 12' % (sT3, sT0))

def unit_r1(A):
    row_setup(A)
    B = 16
    for p in range(NPART):
        A('s_add_u32 s%d, s%d, %d' % (sT2, sT1, PO + p * 4 * MB))
        load_row_bf16(A, B + 8 * p, SRD_WS, sT2, 'sc1')
    load_row_bf16(A, B + 16 * NPART, SRD_R, sT1, '')
    A('s_waitcnt vmcnt(0)')
    X, Y = 160, 176
    sum_partials(A, B, X, 8)
    unpack8(A, B + 16 * NPART, Y); unpack8(A, B + 16 * NPART + 4, Y + 8)
    for i in range(16): A('v_add_f32 v%d, v%d, v%d' % (X + i, X + i, Y + i))
    pack8(A, X, 192); pack8(A, X + 8, 196)
    A('s_add_u32 s%d, s%d, %d' % (sT2, sT1, HB))
    store_row_bf16(A, 192, SRD_WS, sT2, 'sc1')
    unpack8(A, 192, X); unpack8(A, 196, X + 8)
    layernorm16(A, X, 8)
    pack8(A, X, 200); pack8(A, X + 8, 204)
    A('s_add_u32 s%d, s%d, %d' % (sT2, sT1, YB))
    store_row_bf16(A, 200, SRD_WS, sT2, 'sc1')
    unpack8(A, 200, X); unpack8(A, 204, X + 8)
    layernorm16(A, X, 8)
    pack8(A, X, 208); pack8(A, X + 8, 212)
    A('s_add_u32 s%d, s%d, %d' % (sT2, sT1, ZB))
    store_row_bf16(A, 208, SRD_WS, sT2, 'sc1')

def unit_r2(A):
    row_setup(A)
    A('s_add_u32 s%d, s%d, %d' % (sT2, sT1, X1B))
    load_row_bf16(A, 16, SRD_WS, sT2, 'sc1')
    A('s_waitcnt vmcnt(0)')
    X = 64
    unpack8(A, 16, X); unpack8(A, 20, X + 8)
    layernorm16(A, X, 8)
    pack8(A, X, 48); pack8(A, X + 8, 52)
    A('s_add_u32 s%d, s%d, %d' % (sT2, sT1, Z2B))
    store_row_bf16(A, 48, SRD_WS, sT2, 'sc1')

def unit_r3(A):
    row_setup(A)
    B = 16
    for p in range(NPART):
        A('s_add_u32 s%d, s%d, %d' % (sT2, sT1, P4 + p * 4 * MB))
        load_row_bf16(A, B + 8 * p, SRD_WS, sT2, 'sc1')
    A('s_add_u32 s%d, s%d, %d' % (sT2, sT1, X1B))
    load_row_bf16(A, B + 16 * NPART, SRD_WS, sT2, 'sc1')
    A('s_add_u32 s%d, s%d, %d' % (sT2, sT1, HB))
    load_row_bf16(A, B + 16 * NPART + 8, SRD_WS, sT2, 'sc1')
    A('s_waitcnt vmcnt(0)')
    X, Y = 160, 176
    sum_partials(A, B, X, 8)
    unpack8(A, B + 16 * NPART, Y); unpack8(A, B + 16 * NPART + 4, Y + 8)
    for i in range(16): A('v_add_f32 v%d, v%d, v%d' % (X + i, X + i, Y + i))
    round_bf16(A, list(range(X, X + 16)), 8)
    unpack8(A, B + 16 * NPART + 8, Y); unpack8(A, B + 16 * NPART + 12, Y + 8)
    for i in range(16): A('v_add_f32 v%d, v%d, v%d' % (X + i, X + i, Y + i))
    pack8(A, X, 192); pack8(A, X + 8, 196)
    store_row_bf16(A, 192, SRD_C, sT1, OUTFL)

sSeg, sHead = 56, 57
def unit_att(A):
    WSTR = 27648
    L, G, N = 1, 2, 3
    t0, t1, t2, t3 = 4, 5, 6, 7
    A('v_and_b32 v%d, 63, v0' % L)
    A('v_lshrrev_b32 v%d, 6, v0' % t0)
    A('s_nop 0')
    A('v_readfirstlane_b32 s%d, v%d' % (sW, t0))
    A('v_lshrrev_b32 v%d, 4, v%d' % (G, L))
    A('v_and_b32 v%d, 15, v%d' % (N, L))
    A('s_nop 1')
    A('s_add_u32 s%d, s%d, s%d' % (sT5, sHead, sW))
    A('s_mul_i32 s%d, s%d, %d' % (sT4, sW, WSTR))
    A('s_lshl_b32 s%d, s%d, 18' % (sT0, sSeg))
    A('s_lshl_b32 s%d, s%d, 8' % (sT1, sT5))
    A('s_add_u32 s%d, s%d, s%d' % (sT0, sT0, sT1))
    vDq, vDv = 8, 16
    for i in range(4):
        A('v_add_u32 v%d, %d, v%d' % (t0, 4 * i, G))
        A('v_xor_b32 v%d, v%d, v%d' % (t1, t0, N))
        A('v_lshlrev_b32 v%d, 4, v%d' % (t1, t1))
        A('v_lshl_add_u32 v%d, v%d, 13, v%d' % (t1, t0, t1))
        A('v_subrev_u32 v%d, %d, v%d' % (vDq + i, 1024 * i, t1))
        A('v_and_b32 v%d, 7, v%d' % (t2, t0))
        A('v_lshrrev_b32 v%d, 1, v%d' % (t3, N))
        A('v_xor_b32 v%d, v%d, v%d' % (t2, t2, t3))
        A('v_lshlrev_b32 v%d, 5, v%d' % (t2, t2))
        A('v_and_b32 v%d, 1, v%d' % (t3, N))
        A('v_lshl_add_u32 v%d, v%d, 4, v%d' % (t2, t3, t2))
        A('v_lshl_add_u32 v%d, v%d, 13, v%d' % (t2, t0, t2))
        A('v_subrev_u32 v%d, %d, v%d' % (vDv + i, 1024 * i, t2))
    def dma_tile(gbase, ldsoff, vD):
        for hf in range(2):
            A('s_add_u32 m0, s%d, %d' % (sT4, ldsoff + hf * 4096))
            A('s_add_u32 s%d, s%d, %d' % (sT2, sT0, gbase + hf * 16 * 8192))
            for i in range(4):
                A('buffer_load_dwordx4 v%d, %s, s%d offen offset:%d sc1 lds' % (vD + i, srd(SRD_WS), sT2, 1024 * i))
    dma_tile(QX, 0, vDq); dma_tile(KX, 8192, vDq); dma_tile(VX, 16384, vDv)
    A('s_lshl_b32 s%d, s%d, 16' % (sT2, sSeg))
    A('s_add_u32 s%d, s%d, s%d' % (sT2, sT2, sT1))
    A('s_add_u32 s%d, s%d, %d' % (sT2, sT2, KM))
    A('s_add_u32 m0, s%d, %d' % (sT4, 24576))
    A('s_nop 0')
    for i in range(2):
        A('buffer_load_dwordx4 v%d, %s, s%d offen offset:%d sc1 lds' % (vDq + i, srd(SRD_WS), sT2, 1024 * i))
    vVM = 96
    A('s_lshl_b32 s%d, s%d, 5' % (sT2, sSeg))
    A('s_add_u32 s%d, s%d, s%d' % (sT2, sT2, sT5))
    A('s_lshl_b32 s%d, s%d, 11' % (sT2, sT2))
    A('s_add_u32 s%d, s%d, %d' % (sT2, sT2, VMF))
    A('v_lshlrev_b32 v%d, 2, v%d' % (t0, L))
    for te in range(8):
        A('buffer_load_dword v%d, v%d, %s, s%d offen offset:%d sc1' % (vVM + 2 * te, t0, srd(SRD_WS), sT2, 256 * te))
        A('v_mov_b32 v%d, 0' % (vVM + 2 * te + 1))
    vFr = 20
    A('v_xor_b32 v%d, v%d, v%d' % (t0, G, N))
    A('v_lshlrev_b32 v%d, 4, v%d' % (t0, t0))
    A('v_lshl_add_u32 v%d, v%d, 8, v%d' % (t0, N, t0))
    A('v_add_u32 v%d, s%d, v%d' % (vFr, sT4, t0))
    for k in range(1, 4): A('v_xor_b32 v%d, %d, v%d' % (vFr + k, k * 64, vFr))
    vKmA = 24
    A('v_lshrrev_b32 v%d, 2, v%d' % (t1, N)); A('v_lshlrev_b32 v%d, 1, v%d' % (t1, t1)); A('v_and_b32 v%d, 1, v%d' % (t0, N)); A('v_add_u32 v%d, v%d, v%d' % (t1, t1, t0))
    A('v_xor_b32 v%d, v%d, v%d' % (t0, G, t1))
    A('v_lshlrev_b32 v%d, 4, v%d' % (t0, t0))
    A('v_lshl_add_u32 v%d, v%d, 8, v%d' % (t0, t1, t0))
    A('v_add_u32 v%d, s%d, v%d' % (vKmA, sT4, t0))
    A('v_add_u32 v%d, 24576, v%d' % (vKmA, vKmA))
    for k in range(1, 4): A('v_xor_b32 v%d, %d, v%d' % (vKmA + k, k * 64, vKmA))
    vVt = 28
    A('v_lshrrev_b32 v%d, 2, v%d' % (t0, N))
    A('v_lshl_add_u32 v%d, v%d, 2, v%d' % (t0, G, t0))
    A('v_and_b32 v%d, 7, v%d' % (t1, t0))
    A('v_lshlrev_b32 v%d, 5, v%d' % (t1, t1))
    A('v_lshl_add_u32 v%d, v%d, 8, v%d' % (t1, t0, t1))
    A('v_and_b32 v%d, 3, v%d' % (t2, N))
    A('v_lshl_add_u32 v%d, v%d, 3, v%d' % (t1, t2, t1))
    A('v_add_u32 v%d, s%d, v%d' % (vVt, sT4, t1))
    A('v_add_u32 v%d, 16384, v%d' % (vVt, vVt))
    A('s_waitcnt vmcnt(0)')
    vQf = 32
    vKf = 64
    vMf = 112
    for qt in range(2):
        for k in range(4):
            A('ds_read_b128 v[%d:%d], v%d offset:%d' % (vQf + (qt * 4 + k) * 4, vQf + (qt * 4 + k) * 4 + 3, vFr + k, qt * 4096))
    for tt in range(2):
        for k in range(4):
            A('ds_read_b128 v[%d:%d], v%d offset:%d' % (vKf + (tt * 4 + k) * 4, vKf + (tt * 4 + k) * 4 + 3, vFr + k, 8192 + tt * 4096))
        A('s_waitcnt lgkmcnt(8)')
    for k in range(4):
        A('ds_read_b128 v[%d:%d], v%d' % (vMf + 4 * k, vMf + 4 * k + 3, vKmA + k))
    A('s_waitcnt lgkmcnt(0)')
    S = {(0, 'm'): 128, (0, 0): 132, (1, 'm'): 136, (1, 0): 140, (1, 1): 144}
    for k in range(4):
        for (qt, kt), R in S.items():
            a_ = vMf + 4 * k if kt == 'm' else vKf + (kt * 4 + k) * 4
            b_ = vQf + (qt * 4 + k) * 4
            c_ = '0' if k == 0 else 'v[%d:%d]' % (R, R + 3)
            A('v_mfma_f32_16x16x32_bf16 v[%d:%d], v[%d:%d], v[%d:%d], %s' % (R, R + 3, a_, a_ + 3, b_, b_ + 3, c_))
    vVf = 148
    for te in range(8):
        A('v_xor_b32 v%d, %d, v%d' % (t0 + (te & 1), te * 32, vVt))
        for tt in range(2):
            A('ds_read_b64_tr_b16 v[%d:%d], v%d offset:%d' % (vVf + (te * 2 + tt) * 2, vVf + (te * 2 + tt) * 2 + 1, t0 + (te & 1), tt * 4096))
    A('v_lshlrev_b32 v%d, 2, v%d' % (t2, G))
    NEG = 30
    A('v_mov_b32 v%d, 0xf149f2ca' % NEG)
    for i in range(4):
        A('v_add_u32 v%d, %d, v%d' % (t3, i, t2))
        A('v_cmp_gt_u32 vcc, v%d, v%d' % (t3, N))
        A('s_nop 1')
        A('v_cndmask_b32 v%d, v%d, v%d, vcc' % (S[(0, 0)] + i, S[(0, 0)] + i, NEG))
        A('v_cndmask_b32 v%d, v%d, v%d, vcc' % (S[(1, 1)] + i, S[(1, 1)] + i, NEG))
    for qt in range(2):
        for i in (2, 3): A('v_mov_b32 v%d, v%d' % (S[(qt, 'm')] + i, NEG))
    A('s_mov_b32 s%d, %s' % (sT3, fhex(math.log2(math.e))))
    A('s_mov_b32 s%d, %s' % (sT2, fhex(128 ** -0.5)))
    vP = 180
    Ppk = {}
    pi = vP
    for qt in range(2):
        tiles = [S[(qt, 'm')], S[(qt, 0)]] + ([S[(1, 1)]] if qt else [])
        regs = [R + i for R in tiles for i in range(4)]
        m, t = 192, 193
        round_bf16(A, regs, t)
        for x in regs: A('v_mul_f32 v%d, s%d, v%d' % (x, sT2, x))
        round_bf16(A, regs, t)
        A('v_max3_f32 v%d, v%d, v%d, v%d' % (m, regs[0], regs[1], regs[2]))
        rs = regs[3:]
        while len(rs) >= 2:
            A('v_max3_f32 v%d, v%d, v%d, v%d' % (m, m, rs[0], rs[1])); rs = rs[2:]
        if rs: A('v_max_f32 v%d, v%d, v%d' % (m, m, rs[0]))
        for sw in ('v_permlane32_swap_b32', 'v_permlane16_swap_b32'):
            A('v_mov_b32 v%d, v%d' % (t, m)); A('s_nop 1')
            A('%s v%d, v%d' % (sw, m, t)); A('s_nop 0')
            A('v_max_f32 v%d, v%d, v%d' % (m, m, t))
        for x in regs: A('v_sub_f32 v%d, v%d, v%d' % (x, x, m))
        for x in regs: A('v_mul_f32 v%d, s%d, v%d' % (x, sT3, x))
        for x in regs: A('v_exp_f32 v%d, v%d' % (x, x))
        A('s_nop 0')
        A('v_add_f32 v%d, v%d, v%d' % (m, regs[0], regs[1]))
        for x in regs[2:]: A('v_add_f32 v%d, v%d, v%d' % (m, m, x))
        for sw in ('v_permlane32_swap_b32', 'v_permlane16_swap_b32'):
            A('v_mov_b32 v%d, v%d' % (t, m)); A('s_nop 1')
            A('%s v%d, v%d' % (sw, m, t)); A('s_nop 0')
            A('v_add_f32 v%d, v%d, v%d' % (m, m, t))
        A('v_rcp_f32 v%d, v%d' % (m, m))
        A('s_nop 0')
        for x in regs: A('v_mul_f32 v%d, v%d, v%d' % (x, x, m))
        for ti, R in enumerate(tiles):
            key = 'm' if ti == 0 else ti - 1
            Ppk[(qt, key)] = pi
            A('v_cvt_pk_bf16_f32 v%d, v%d, v%d' % (pi, R, R + 1))
            A('v_cvt_pk_bf16_f32 v%d, v%d, v%d' % (pi + 1, R + 2, R + 3))
            pi += 2
    A('s_waitcnt lgkmcnt(0)')
    vO = 32
    for qt in range(2):
        for te in range(8):
            R = vO + (qt * 8 + te) * 4
            A('v_mfma_f32_16x16x16_bf16 v[%d:%d], v[%d:%d], v[%d:%d], 0' % (R, R + 3, vVM + 2 * te, vVM + 2 * te + 1, Ppk[(qt, 'm')], Ppk[(qt, 'm')] + 1))
    for qt in range(2):
        for tt in range(2 if qt else 1):
            for te in range(8):
                R = vO + (qt * 8 + te) * 4
                a_ = vVf + (te * 2 + tt) * 2
                A('v_mfma_f32_16x16x16_bf16 v[%d:%d], v[%d:%d], v[%d:%d], v[%d:%d]' % (R, R + 3, a_, a_ + 1, Ppk[(qt, tt)], Ppk[(qt, tt)] + 1, R, R + 3))
    A.nop(10)
    RS = 272
    vSw, vSr, vGo = 4, 5, 6
    A('v_mul_u32_u24 v%d, %d, v%d' % (vSw, RS, N))
    A('v_lshl_add_u32 v%d, v%d, 3, v%d' % (vSw, G, vSw))
    A('v_add_u32 v%d, s%d, v%d' % (vSw, sT4, vSw))
    for qt in range(2):
        for te in range(8):
            R = vO + (qt * 8 + te) * 4
            A('v_cvt_pk_bf16_f32 v%d, v%d, v%d' % (R, R, R + 1))
            A('v_cvt_pk_bf16_f32 v%d, v%d, v%d' % (R + 1, R + 2, R + 3))
            A('ds_write_b64 v%d, v[%d:%d] offset:%d' % (vSw, R, R + 1, qt * 16 * RS + te * 32))
    A('v_mul_u32_u24 v%d, %d, v%d' % (vSr, RS, G))
    A('v_lshl_add_u32 v%d, v%d, 4, v%d' % (vSr, N, vSr))
    A('v_add_u32 v%d, s%d, v%d' % (vSr, sT4, vSr))
    A('v_lshlrev_b32 v%d, 13, v%d' % (vGo, G))
    A('v_lshl_add_u32 v%d, v%d, 4, v%d' % (vGo, N, vGo))
    A('s_waitcnt lgkmcnt(0)')
    for b in range(8):
        A('ds_read_b128 v[%d:%d], v%d offset:%d' % (96 + 4 * b, 96 + 4 * b + 3, vSr, b * 4 * RS))
    A('s_waitcnt lgkmcnt(0)')
    for b in range(8):
        A('s_add_u32 s%d, s%d, %d' % (sT2, sT0, OX + b * 4 * 8192))
        A('buffer_store_dwordx4 v[%d:%d], v%d, %s, s%d offen sc1' % (96 + 4 * b, 96 + 4 * b + 3, vGo, srd(SRD_WS), sT2))
```

```python
import sys
from asmlib import *
from layout import *
import chain7 as chain
from gemm2 import *
from units3 import *

BM = 128
SBM = 64
NBIG = 15
NB = NBLK
SPIN = 1 << 22
sXW, sTK, sIt, sFlag, sItem, sQi, sTab, sDep, sCnt, sSp = 80, 81, 82, 83, 84, 85, 86, 88, 89, 90
sMsk = 92
sRB, sNT, sKS = 94, 95, 96
sK0, sNKi = 78, 79
sRow0, sBig = 70, 71
sShI, sShR = 75, 76
sS0, sS1, sS2 = 58, 59, 91
sChunk = 97
sD0, sD1, sD2 = 72, 73, 74
sC3 = 77
T_ATT, T_O, T_R1, T_W1, T_W2, T_R2, T_W3, T_W4, T_R3, T_ROWLOOP = range(1, 11)
O_SPLIT = [(0, 11), (11, 11), (22, 11), (33, 11), (44, 10), (54, 10)]
W4_SPLIT = [(0, 10), (10, 10), (20, 9), (29, 9), (38, 9), (47, 9)]
def word(t, a, b=0, c=0, k0=0, nk=0, end=0):
    assert a < 64 and b < 32 and c < 8 and k0 < 64 and nk < 32
    return (t << 28) | (a << 22) | (b << 17) | (c << 14) | (k0 << 8) | (nk << 3) | end

def build_table():
    T = {(x, t): [0, 0, 0] for x in range(8) for t in range(32)}
    slot = [0] * 6
    def take(x):
        w = (x, slot[x]); slot[x] += 1; assert slot[x] <= 32; return w
    for x in range(6):
        for nt in range(8): T[take(x)] = [word(T_O, 0, nt, x, *O_SPLIT[x]), 0, 0]
    for nt in range(8): T[take(0)] = [0, word(T_W1, 0, nt, 0, nt, 8), 0]
    for nt in range(8): T[take(1)] = [0, word(T_W2, 0, nt, 0, nt, 8), 0]
    for nt in range(28): T[take(2 + nt // 7)] = [0, word(T_W3, 0, nt, 0, nt % 7, 7), 0]
    misc = [(T_W1, nt) for nt in range(8)] + [(T_W2, nt) for nt in range(8)] + [(T_W3, nt) for nt in range(28)]
    mi = 0
    for x in range(6):
        for nt in range(8):
            m = 0
            if mi < len(misc):
                ty, n2 = misc[mi]; m = word(ty, NBIG, n2, 0, 0, 1, end=1); mi += 1
            T[take(x)] = [word(T_O, NBIG, nt, x, *O_SPLIT[x], end=1), m, word(T_W4, 0, nt, x, *W4_SPLIT[x], end=1)]
    free = [(x, t) for x in range(6) for t in range(slot[x], 32)]
    assert len(free) >= 48, len(free)
    for i in range(16): T[free[i]] = [word(T_ATT, 0, i), 0, 0]
    for c in range(32): T[free[16 + c]] = [word(T_ROWLOOP, 0, c), 0, 0]
    for m in range(64):
        w = [0, 0, 0]
        if m < 48:
            ks, nt = m // 8, m % 8
            w[0] = word(T_O, NBIG + 1, nt, ks, *O_SPLIT[ks], end=2); w[2] = word(T_W4, NBIG + 1, nt, ks, *W4_SPLIT[ks], end=2)
        j = m - 20
        if j >= 0:
            ty, n2 = misc[j]; w[1] = word(ty, NBIG + 1, n2, 0, 0, 1, end=2)
        T[6 + m // 32, m % 32] = w
    return T

TRACE = [0]
def mk_srd(A, n, karg, size):
    A('s_load_dwordx2 s[%d:%d], s[0:1], %d' % (n, n + 1, karg))
    A('s_mov_b32 s%d, %d' % (n + 2, size))
    A('s_mov_b32 s%d, 0x00020000' % (n + 3))
    A('s_waitcnt lgkmcnt(0)')
def ws_srd(A, n):
    for i in range(4): A('s_mov_b32 s%d, s%d' % (n + i, 8 + i))
def gemm_params(A, lda, ldb, ldc, nk, mode, shift=0):
    A('s_mov_b32 s%d, %d' % (sLda, lda)); A('s_mov_b32 s%d, %d' % (sLdb, ldb)); A('s_mov_b32 s%d, %d' % (sLdc, ldc))
    A('s_mov_b32 s%d, %d' % (sNk, nk)); A('s_mov_b32 s%d, %d' % (sShift, shift)); A('s_mov_b32 s%d, %d' % (sMode, mode))

def wave_id(A, dst):
    A('v_lshrrev_b32 v250, 6, v0'); A('s_nop 0'); A('v_readfirstlane_b32 s%d, v250' % dst); A('s_nop 3')

def wait_flags(A):
    Ld = A.uid('wf'); Ll = A.uid('wl')
    wave_id(A, sSp)
    A('s_cmp_lg_u32 s%d, 0' % sSp); A('s_cbranch_scc1 %s' % Ld)
    A('v_cmp_gt_u32 vcc, s%d, v0' % sCnt)
    A('s_mov_b64 s[%d:%d], vcc' % (sMsk, sMsk + 1))
    A('v_lshlrev_b32 v250, 2, v0')
    A('s_mov_b32 s%d, 0' % sSp)
    A('s_mov_b64 exec, s[%d:%d]' % (sMsk, sMsk + 1))
    A.label(Ll)
    A('buffer_load_dword v251, v250, s[8:11], s%d offen sc1' % sDep)
    A('s_add_u32 s%d, s%d, 1' % (sSp, sSp)); A('s_cmp_gt_u32 s%d, %d' % (sSp, SPIN)); A('s_cbranch_scc1 worker_abort')
    A('s_waitcnt vmcnt(0)')
    A('v_cmp_eq_u32 vcc, 0, v251')
    A('s_cbranch_vccz %s_ok' % Ll)
    A('s_sleep 4'); A('s_branch %s' % Ll)
    A.label(Ll + '_ok')
    A('s_mov_b64 exec, -1')
    A.label(Ld)
    A('s_barrier')
    if TRACE[0]: A('s_memrealtime s[100:101]')

def signal_flag(A):
    A('s_waitcnt vmcnt(0)')
    A('s_barrier')
    L = A.uid('sf')
    A('v_cmp_eq_u32 vcc, 0, v0')
    A('s_and_saveexec_b64 s[%d:%d], vcc' % (sMsk, sMsk + 1))
    A('s_cbranch_execz %s' % L)
    A('v_mov_b32 v250, 0'); A('v_mov_b32 v251, 1')
    A('buffer_store_dword v251, v250, s[8:11], s%d offen sc1' % sFlag)
    A.label(L)
    A('s_mov_b64 exec, s[%d:%d]' % (sMsk, sMsk + 1))

def kvwait(A, seg_sreg, issue_only=False, check_only=False):
    c = chain
    def addr():
        A('s_lshr_b32 s%d, s%d, 2' % (c.sT0, seg_sreg)); A('s_mul_i32 s%d, s%d, 384' % (c.sT0, c.sT0))
        A('s_lshl_b32 s%d, s%d, 2' % (c.sT1, c.sH)); A('s_add_u32 s%d, s%d, s%d' % (c.sT0, c.sT0, c.sT1))
        A('s_add_u32 s%d, s%d, %d' % (c.sT0, c.sT0, FQKV + 128)); A('v_mov_b32 v125, 0')
    def loads():
        A('buffer_load_dword v126, v125, s[8:11], s%d offen sc1' % c.sT0)
        A('buffer_load_dword v127, v125, s[8:11], s%d offen offset:128 sc1' % c.sT0)
    if issue_only:
        addr(); loads(); return
    L = A.uid('kv'); Lok = A.uid('kvok')
    if check_only:
        A('v_and_b32 v126, v126, v127'); A('v_cmp_eq_u32 vcc, 0, v126'); A('s_cbranch_vccz %s' % Lok)
    addr()
    A('s_mov_b32 s%d, 0' % c.sSPIN)
    A.label(L)
    loads()
    A('s_add_u32 s%d, s%d, 1' % (c.sSPIN, c.sSPIN)); A('s_cmp_gt_u32 s%d, %d' % (c.sSPIN, SPIN)); A('s_cbranch_scc1 chain_abort')
    A('s_waitcnt vmcnt(0)')
    A('v_and_b32 v126, v126, v127'); A('v_cmp_eq_u32 vcc, 0, v126'); A('s_cbranch_vccnz %s' % L)
    A.label(Lok)

def gen(intra='', chain_kw=None, trace=0, coop=1, wake=56):
    coop = int(coop); trace = int(trace); TRACE[0] = trace; wake = int(wake)
    A = Asm()
    G = Gemm(A, BM, 4, stamps=bool(trace))
    GS = Gemm(A, SBM, 6, stamps=bool(trace))
    A.raw('; @launch kernel=prep_kernel grid=(256,1,1) block=(256,1,1) lds=0')
    A.raw('; @launch kernel=main_kernel grid=(256,1,1) block=(256,1,1) lds=163840')
    A.raw('.amdgcn_target "amdgcn-amd-amdhsa--gfx950"')
    A.raw('.text')
    kernel_header(A, 'prep_kernel')
    A('s_cmp_ge_u32 s2, 256'); A('s_cbranch_scc1 L_exit_prep')
    A('s_load_dwordx2 s[4:5], s[0:1], %d' % D_WS)
    A('s_waitcnt lgkmcnt(0)')
    A('s_mov_b32 s8, s4'); A('s_mov_b32 s9, s5'); A('s_mov_b32 s10, %d' % WS_SIZE); A('s_mov_b32 s11, 0x00020000')
    mk_srd(A, SRD_R, A_X, 4 * MB)
    A('s_lshl_b32 s%d, s2, 3' % sRow)
    unit_ln1(A)
    A('v_mov_b32 v8, 0'); A('v_mov_b32 v9, 0'); A('v_mov_b32 v10, 0'); A('v_mov_b32 v11, 0')
    A('v_lshlrev_b32 v12, 4, v0')
    A('s_cmp_ge_u32 s2, 32'); A('s_cbranch_scc1 L_z1')
    A('s_lshl_b32 s%d, s2, 12' % sT0); A('s_add_u32 s%d, s%d, %d' % (sT0, sT0, FLG_SEG))
    A('buffer_store_dwordx4 v[8:11], v12, s[8:11], s%d offen' % sT0)
    A.label('L_z1')
    A('s_cmp_lg_u32 s2, 32'); A('s_cbranch_scc1 L_z2')
    A('s_mov_b32 s%d, %d' % (sT0, GB0)); A('buffer_store_dwordx4 v[8:11], v12, s[8:11], s%d offen' % sT0)
    A('s_mov_b32 s%d, %d' % (sT0, GB + 2048 * 2048)); A('buffer_store_dwordx4 v[8:11], v12, s[8:11], s%d offen' % sT0)
    A.label('L_z2')
    A.label('L_exit_prep')
    A('s_endpgm')
    kernel_header(A, 'main_kernel')
    A('s_cmp_ge_u32 s2, 256'); A('s_cbranch_scc1 L_exit_main')
    A('s_load_dwordx2 s[4:5], s[0:1], %d' % D_WS)
    A('s_load_dwordx2 s[6:7], s[0:1], %d' % D_DBG)
    A('s_getreg_b32 s16, hwreg(HW_REG_XCC_ID)')
    A('s_and_b32 s16, s16, 15')
    A('s_waitcnt lgkmcnt(0)')
    A('s_mov_b32 s8, s4'); A('s_mov_b32 s9, s5'); A('s_mov_b32 s10, %d' % WS_SIZE); A('s_mov_b32 s11, 0x00020000')
    A('v_cmp_eq_u32 vcc, 0, v0'); A('s_and_saveexec_b64 s[20:21], vcc'); A('s_cbranch_execz L_nt')
    A('s_lshl_b32 s17, s16, 2'); A('v_mov_b32 v1, s17'); A('v_mov_b32 v2, 1')
    A('global_atomic_add v3, v1, v2, s[6:7] sc0 sc1'); A('s_waitcnt vmcnt(0)')
    A('v_mov_b32 v1, 0'); A('ds_write_b32 v1, v3'); A('s_waitcnt lgkmcnt(0)')
    A.label('L_nt')
    A('s_mov_b64 exec, s[20:21]'); A('s_barrier')
    A('v_mov_b32 v1, 0'); A('ds_read_b32 v3, v1'); A('s_waitcnt lgkmcnt(0)'); A('v_readfirstlane_b32 s17, v3'); A('s_barrier')
    A('s_cmp_ge_u32 s17, 32'); A('s_cbranch_scc1 L_exit_main')
    A('s_cmp_ge_u32 s16, 2'); A('s_cbranch_scc1 worker')
    chain.gen_chain(A, intra=intra, kvwait=kvwait, finish='chain_to_worker', **(chain_kw or {}))
    A.label('chain_to_worker')
    A('v_mbcnt_lo_u32_b32 v0, -1, 0'); A('v_mbcnt_hi_u32_b32 v0, -1, v0')
    A('s_lshl_b32 s%d, s%d, 6' % (44, chain.sW)); A('v_add_u32 v0, s44, v0')
    A('s_add_u32 s%d, s%d, 6' % (sXW, chain.sX)); A('s_mov_b32 s%d, s%d' % (sTK, chain.sC))
    A('s_mov_b32 s%d, 8' % sIt)
    for n in (SRD_A, SRD_B, SRD_C, SRD_R): ws_srd(A, n)
    A('s_mov_b32 s%d, 0' % sChunk)
    A('s_barrier')
    A('s_branch streams')
    A.label('worker')
    A('s_sub_u32 s%d, s16, 2' % sXW); A('s_mov_b32 s%d, s17' % sTK)
    A('s_cmp_ge_u32 s%d, 6' % sXW); A('s_cbranch_scc1 L_exit_main')
    A('s_mov_b32 s%d, 0' % sIt)
    for n in (SRD_A, SRD_B, SRD_C, SRD_R): ws_srd(A, n)
    A('s_mov_b32 s%d, 0' % sS0); A('s_mov_b32 s%d, 0' % sS1); A('s_mov_b32 s%d, 0' % sS2); A('s_mov_b32 s%d, 0' % sChunk)
    A.label('qkv_next')
    A('s_cmp_ge_u32 s%d, 8' % sIt); A('s_cbranch_scc1 streams')
    A('s_lshr_b32 s%d, s%d, 4' % (sRB, sTK)); A('s_lshl_b32 s%d, s%d, 1' % (sT0, sIt)); A('s_add_u32 s%d, s%d, s%d' % (sRB, sRB, sT0))
    A('s_and_b32 s%d, s%d, 15' % (sT1, sTK))
    A('s_cmp_lt_u32 s%d, 4' % sXW); A('s_cselect_b32 s%d, 11, 10' % sT2)
    A('s_cmp_lt_u32 s%d, s%d' % (sT1, sT2)); A('s_cbranch_scc0 qkv_q')
    A('s_mul_i32 s%d, s%d, 6' % (sT3, sT1)); A('s_add_u32 s%d, s%d, s%d' % (sT3, sT3, sXW))
    A('s_lshr_b32 s%d, s%d, 5' % (sKS, sT3)); A('s_add_u32 s%d, s%d, 1' % (sKS, sKS)); A('s_and_b32 s%d, s%d, 31' % (sNT, sT3))
    A('s_branch qkv_go')
    A.label('qkv_q')
    A('s_sub_u32 s%d, s%d, s%d' % (sT3, sT1, sT2)); A('s_mul_i32 s%d, s%d, 5' % (sT4, sXW))
    A('s_sub_u32 s%d, s%d, 4' % (sT5, sXW)); A('s_mul_i32 s%d, s%d, 6' % (sT5, sT5)); A('s_add_u32 s%d, s%d, 20' % (sT5, sT5))
    A('s_cmp_lt_u32 s%d, 4' % sXW); A('s_cselect_b32 s%d, s%d, s%d' % (sT4, sT4, sT5))
    A('s_add_u32 s%d, s%d, s%d' % (sNT, sT3, sT4)); A('s_mov_b32 s%d, 0' % sKS)
    A.label('qkv_go')
    A('s_add_u32 s%d, s%d, 1' % (sIt, sIt))
    A('s_lshl_b32 s%d, s%d, 3' % (sT0, sKS)); A('s_add_u32 s%d, s%d, %d' % (sT0, sT0, A_WQ))
    A('s_load_dwordx2 s[%d:%d], s[0:1], s%d' % (SRD_B, SRD_B + 1, sT0))
    A('s_mov_b32 s%d, %d' % (SRD_B + 2, 8 * MB)); A('s_mov_b32 s%d, 0x00020000' % (SRD_B + 3))
    ws_srd(A, SRD_A); ws_srd(A, SRD_C)
    gemm_params(A, 2048, 8192, 8192, 16, 0)
    A('s_mul_i32 s%d, s%d, %d' % (sAoff, sRB, BM * 2048)); A('s_add_u32 s%d, s%d, %d' % (sAoff, sAoff, XLN))
    A('s_lshl_b32 s%d, s%d, 8' % (sBoff, sNT))
    A('s_mul_i32 s%d, s%d, %d' % (sCoff, sRB, BM * 8192)); A('s_add_u32 s%d, s%d, s%d' % (sCoff, sCoff, sBoff))
    A('s_lshl_b32 s%d, s%d, 24' % (sT0, sKS)); A('s_add_u32 s%d, s%d, s%d' % (sCoff, sCoff, sT0)); A('s_add_u32 s%d, s%d, %d' % (sCoff, sCoff, QX))
    A('s_mul_i32 s%d, s%d, 3' % (sT0, sRB)); A('s_add_u32 s%d, s%d, s%d' % (sT0, sT0, sKS))
    A('s_lshl_b32 s%d, s%d, 5' % (sT0, sT0)); A('s_add_u32 s%d, s%d, s%d' % (sT0, sT0, sNT))
    A('s_lshl_b32 s%d, s%d, 2' % (sT0, sT0)); A('s_add_u32 s%d, s%d, %d' % (sFlag, sT0, FQKV))
    A('s_mov_b32 s%d, 1' % sItem)
    A('s_and_b32 s%d, s%d, 15' % (sShI, sTK)); A('s_mov_b32 s%d, 8' % sShR)
    if trace:
        A('s_lshl_b32 s%d, s%d, 5' % (sQi, sXW)); A('s_add_u32 s%d, s%d, s%d' % (sQi, sQi, sTK)); A('s_lshl_b32 s%d, s%d, 3' % (sQi, sQi))
        A('s_add_u32 s%d, s%d, s%d' % (sQi, sQi, sIt)); A('s_add_u32 s%d, s%d, 10239' % (sQi, sQi))
        A('s_memrealtime s[98:99]'); A('s_memrealtime s[100:101]')
    A('s_waitcnt lgkmcnt(0)')
    A('s_branch gemm_run')

    def decode(src):
        A('s_bfe_u32 s%d, s%d, 0x60016' % (sRB, src)); A('s_bfe_u32 s%d, s%d, 0x50011' % (sNT, src)); A('s_bfe_u32 s%d, s%d, 0x3000e' % (sKS, src))
        A('s_bfe_u32 s%d, s%d, 0x60008' % (sK0, src)); A('s_bfe_u32 s%d, s%d, 0x50003' % (sNKi, src))
    def blk_rows():
        A('s_lshl_b32 s%d, s%d, 7' % (sRow0, sRB)); A('s_sub_u32 s%d, s%d, %d' % (sT0, sRB, NBIG)); A('s_mul_i32 s%d, s%d, %d' % (sT0, sT0, SBM)); A('s_add_u32 s%d, s%d, %d' % (sT0, sT0, NBIG * 128))
        A('s_cmp_lt_u32 s%d, %d' % (sRB, NBIG)); A('s_cselect_b32 s%d, s%d, s%d' % (sRow0, sRow0, sT0)); A('s_cselect_b32 s%d, 1, 0' % sBig)
    def own(base, code):
        code(); A('s_lshl_b32 s%d, s%d, 2' % (sT0, sT0)); A('s_add_u32 s%d, s%d, %d' % (sFlag, sT0, base))
    def btouch():
        A('v_and_b32 v200, 63, v0'); A('v_lshrrev_b32 v201, 6, v0')
        A('v_lshrrev_b32 v202, 1, v200'); A('v_lshl_add_u32 v202, v201, 8, v202')
        A('v_and_b32 v203, 1, v200'); A('v_lshlrev_b32 v203, 7, v203')
        A('s_lshl_b32 s%d, s%d, 6' % (sT4, sNk)); A('v_mov_b32 v206, 0x7ff00000')
        for j in range(8):
            A('v_add_u32 v204, %d, v202' % (32 * j)); A('v_mul_lo_u32 v205, v204, s%d' % sLdb); A('v_add_u32 v205, v205, v203')
            A('v_cmp_gt_u32 vcc, s%d, v204' % sT4); A('s_nop 1'); A('v_cndmask_b32 v205, v206, v205, vcc')
            A('buffer_load_dword v%d, v205, %s, s%d offen' % (208 + j, srd(SRD_B), sBoff))
    types = {
        T_O: dict(split=True, ownbase=FO, abuf=OX, lda=8192, bk=A_WO, bs=8 * MB, ldb=2048, p=PO),
        T_W4: dict(split=True, ownbase=FW4, abuf=UB, lda=7168, bk=B_W4, bs=7 * MB, ldb=2048, p=P4),
        T_W1: dict(split=False, ownbase=FW1, ostr=8, abuf=ZB, bk=B_W1, bs=2 * MB, ldb=2048, c=GB, ldc=2048, mode=1),
        T_W2: dict(split=False, ownbase=FW2, ostr=8, abuf=GB - 2048, bk=B_W2, bs=2 * MB, ldb=2048, c=X1B, ldc=2048, mode=2, shift=1, resid=YB),
        T_W3: dict(split=False, ownbase=FW3, ostr=32, abuf=Z2B, bk=B_W3, bs=7 * MB, ldb=7168, c=UB, ldc=7168, mode=1),
    }
    def gemm_setup(ty):
        d = types[ty]
        mk_srd(A, SRD_B, d['bk'], d['bs']); ws_srd(A, SRD_A); ws_srd(A, SRD_C); ws_srd(A, SRD_R)
        if d['split']:
            own(d['ownbase'], lambda: (A('s_lshl_b32 s%d, s%d, 6' % (sT0, sRB)), A('s_lshl_b32 s%d, s%d, 3' % (sT1, sKS)), A('s_add_u32 s%d, s%d, s%d' % (sT0, sT0, sT1)), A('s_add_u32 s%d, s%d, s%d' % (sT0, sT0, sNT))))
            gemm_params(A, d['lda'], d['ldb'], 2048, 0, 0)
            A('s_mov_b32 s%d, s%d' % (sNk, sNKi)); A('s_mov_b32 s%d, s%d' % (sShI, sNT)); A('s_mov_b32 s%d, 16' % sShR)
            A('s_mul_i32 s%d, s%d, %d' % (sAoff, sRow0, d['lda'])); A('s_lshl_b32 s%d, s%d, 7' % (sT0, sK0)); A('s_add_u32 s%d, s%d, s%d' % (sAoff, sAoff, sT0))
            A('s_add_u32 s%d, s%d, %d' % (sAoff, sAoff, d['abuf']))
            A('s_mul_i32 s%d, s%d, %d' % (sBoff, sK0, 64 * d['ldb'])); A('s_lshl_b32 s%d, s%d, 8' % (sT0, sNT)); A('s_add_u32 s%d, s%d, s%d' % (sBoff, sBoff, sT0))
            A('s_lshl_b32 s%d, s%d, 11' % (sCoff, sRow0)); A('s_add_u32 s%d, s%d, s%d' % (sCoff, sCoff, sT0))
            A('s_lshl_b32 s%d, s%d, 22' % (sT0, sKS)); A('s_add_u32 s%d, s%d, s%d' % (sCoff, sCoff, sT0)); A('s_add_u32 s%d, s%d, %d' % (sCoff, sCoff, d['p']))
        else:
            own(d['ownbase'], lambda: (A('s_mul_i32 s%d, s%d, %d' % (sT0, sRB, d['ostr'])), A('s_add_u32 s%d, s%d, s%d' % (sT0, sT0, sNT))))
            gemm_params(A, 2048, d['ldb'], d['ldc'], 16, d['mode'], d.get('shift', 0))
            A('s_mov_b32 s%d, s%d' % (sShI, sK0)); A('s_cmp_eq_u32 s%d, 7' % sNKi); A('s_cselect_b32 s%d, 19, 16' % sShR)
            A('s_lshl_b32 s%d, s%d, 11' % (sAoff, sRow0)); A('s_add_u32 s%d, s%d, %d' % (sAoff, sAoff, d['abuf']))
            A('s_lshl_b32 s%d, s%d, 8' % (sBoff, sNT))
            A('s_mul_i32 s%d, s%d, %d' % (sCoff, sRow0, d['ldc'])); A('s_add_u32 s%d, s%d, s%d' % (sCoff, sCoff, sBoff))
            if 'resid' in d: A('s_add_u32 s%d, s%d, %d' % (sRoff, sCoff, d['resid']))
            A('s_add_u32 s%d, s%d, %d' % (sCoff, sCoff, d['c']))

    TB = build_table()
    A.label('streams')
    A('s_getpc_b64 s[%d:%d]' % (sTab, sTab + 1))
    A.label('q_pc')
    A('s_add_u32 s%d, s%d, qtable-q_pc' % (sTab, sTab)); A('s_addc_u32 s%d, s%d, 0' % (sTab + 1, sTab + 1))
    A('s_lshl_b32 s%d, s%d, 5' % (sT0, sXW)); A('s_add_u32 s%d, s%d, s%d' % (sT0, sT0, sTK)); A('s_lshl_b32 s%d, s%d, 4' % (sT0, sT0))
    A('s_load_dword s%d, s[%d:%d], s%d' % (sS0, sTab, sTab + 1, sT0))
    A('s_add_u32 s%d, s%d, 4' % (sT1, sT0)); A('s_load_dword s%d, s[%d:%d], s%d' % (sS1, sTab, sTab + 1, sT1))
    A('s_add_u32 s%d, s%d, 8' % (sT2, sT0)); A('s_load_dword s%d, s[%d:%d], s%d' % (sS2, sTab, sTab + 1, sT2))
    A('s_waitcnt lgkmcnt(0)')
    A('s_lshr_b32 s%d, s%d, 28' % (sT2, sS0))
    A('s_cmp_eq_u32 s%d, %d' % (sT2, T_ATT)); A('s_cbranch_scc1 att_loop')
    A('s_cmp_eq_u32 s%d, %d' % (sT2, T_ROWLOOP)); A('s_cbranch_scc1 u_rowloop')
    def warm(cond_small):
        for sreg in (sS0, sS1, sS2):
            Ln = A.uid('mw')
            A('s_cmp_eq_u32 s%d, 0' % sreg); A('s_cbranch_scc1 %s' % Ln)
            A('s_bfe_u32 s%d, s%d, 0x60016' % (sT3, sreg))
            if cond_small == 'big': A('s_cmp_ge_u32 s%d, %d' % (sT3, NBIG)); A('s_cbranch_scc1 %s' % Ln)
            if cond_small == 'small': A('s_cmp_lt_u32 s%d, %d' % (sT3, NBIG)); A('s_cbranch_scc1 %s' % Ln)
            decode(sreg); blk_rows()
            A('s_lshr_b32 s%d, s%d, 28' % (sT5, sreg))
            for ty in types:
                Lt = A.uid('mt')
                A('s_cmp_lg_u32 s%d, %d' % (sT5, ty)); A('s_cbranch_scc1 %s' % Lt)
                gemm_setup(ty); btouch()
                A.label(Lt)
            A('s_waitcnt vmcnt(0)')
            A.label(Ln)
    warm('big')
    A('s_branch ms_top')
    A.label('ms_warm_small')
    A('s_mov_b32 s%d, 9' % sIt)
    warm('small')
    A.label('ms_top')
    Lnw = A.uid('nw')
    A('s_cmp_eq_u32 s%d, 9' % sIt); A('s_cbranch_scc1 %s' % Lnw)
    A('s_cmp_eq_u32 s%d, 0' % sS2); A('s_cbranch_scc1 ms_warm_small')
    A('s_bfe_u32 s%d, s%d, 0x60016' % (sT0, sS2)); A('s_cmp_ge_u32 s%d, 12' % sT0); A('s_cbranch_scc1 ms_warm_small')
    A.label(Lnw)
    A('s_mov_b32 s%d, 0' % sC3)
    for i, (sreg, dreg) in enumerate(((sS0, sD0), (sS1, sD1), (sS2, sD2))):
        Ln = A.uid('md')
        A('s_mov_b32 s%d, %d' % (dreg, FO))
        A('s_cmp_eq_u32 s%d, 0' % sreg); A('s_cbranch_scc1 %s' % Ln)
        A('s_bfe_u32 s%d, s%d, 0x60016' % (sT0, sreg))
        A('s_lshr_b32 s%d, s%d, 28' % (sT5, sreg))
        A('s_cmp_lt_u32 s%d, %d' % (sT0, NBIG)); A('s_cselect_b32 s%d, 32, %d' % (sT1, SBM // 4))
        A('s_lshl_b32 s%d, s%d, 7' % (sT2, sT0))
        A('s_add_u32 s%d, s%d, %d' % (dreg, sT2, FATT))
        A('s_add_u32 s%d, s%d, %d' % (sT3, sT2, FR1)); A('s_cmp_eq_u32 s%d, %d' % (sT5, T_W1)); A('s_cselect_b32 s%d, s%d, s%d' % (dreg, sT3, dreg))
        A('s_add_u32 s%d, s%d, %d' % (sT3, sT2, FR2)); A('s_cmp_eq_u32 s%d, %d' % (sT5, T_W3)); A('s_cselect_b32 s%d, s%d, s%d' % (dreg, sT3, dreg))
        A('s_add_u32 s%d, s%d, %d' % (sT3, sT2, FW3)); A('s_cmp_eq_u32 s%d, %d' % (sT5, T_W4)); A('s_cselect_b32 s%d, s%d, s%d' % (dreg, sT3, dreg)); A('s_cselect_b32 s%d, 28, s%d' % (sT1, sT1))
        Lw2 = A.uid('m2')
        A('s_cmp_lg_u32 s%d, %d' % (sT5, T_W2)); A('s_cbranch_scc1 %s' % Lw2)
        A('s_sub_u32 s%d, s%d, 1' % (sT2, sT0)); A('s_cmp_eq_u32 s%d, 0' % sT0); A('s_cselect_b32 s%d, 0, s%d' % (sT2, sT2))
        A('s_add_u32 s%d, s%d, 1' % (sT3, sT0)); A('s_cmp_eq_u32 s%d, %d' % (sT0, NB - 1)); A('s_cselect_b32 s%d, s%d, s%d' % (sT3, sT0, sT3))
        A('s_sub_u32 s%d, s%d, s%d' % (sT3, sT3, sT2)); A('s_add_u32 s%d, s%d, 1' % (sT3, sT3)); A('s_lshl_b32 s%d, s%d, 3' % (sT1, sT3))
        A('s_lshl_b32 s%d, s%d, 5' % (sT2, sT2)); A('s_add_u32 s%d, s%d, %d' % (dreg, sT2, FW1))
        A.label(Lw2)
        A('s_lshl_b32 s%d, s%d, %d' % (sT1, sT1, 8 * i)); A('s_or_b32 s%d, s%d, s%d' % (sC3, sC3, sT1))
        A('s_or_b32 s%d, s%d, %d' % (sC3, sC3, 1 << (24 + i)))
        A.label(Ln)
    A('s_lshr_b32 s%d, s%d, 24' % (sT0, sC3)); A('s_cmp_eq_u32 s%d, 0' % sT0); A('s_cbranch_scc1 L_exit_main')
    wave_id(A, sSp)
    A('s_cmp_lg_u32 s%d, 0' % sSp); A('s_cbranch_scc1 ms_wait')
    A('v_lshlrev_b32 v250, 2, v0'); A('s_mov_b32 s%d, 0' % sSp)
    A.label('ms_poll')
    for i, dreg in enumerate((sD0, sD1, sD2)):
        A('buffer_load_dword v%d, v250, s[8:11], s%d offen sc1' % (247 + i, dreg))
    A('s_add_u32 s%d, s%d, 1' % (sSp, sSp)); A('s_cmp_gt_u32 s%d, %d' % (sSp, SPIN)); A('s_cbranch_scc1 worker_abort')
    A('s_waitcnt vmcnt(0)')
    A('s_mov_b32 s%d, 0' % sT5)
    for i in range(3):
        Ln = A.uid('mc')
        A('s_cmp_lg_u32 s%d, 0' % sT5); A('s_cbranch_scc1 %s' % Ln)
        A('s_bitcmp1_b32 s%d, %d' % (sC3, 24 + i)); A('s_cbranch_scc0 %s' % Ln)
        A('s_bfe_u32 s%d, s%d, 0x%x' % (sT0, sC3, (8 << 16) | (8 * i)))
        A('v_cmp_eq_u32 vcc, 0, v%d' % (247 + i))
        A('v_cmp_gt_u32 s[%d:%d], s%d, v0' % (sMsk, sMsk + 1, sT0))
        A('s_nop 0')
        A('s_and_b64 vcc, vcc, s[%d:%d]' % (sMsk, sMsk + 1))
        A('s_cmp_lg_u64 vcc, 0'); A('s_cbranch_scc1 %s' % Ln)
        A('s_mov_b32 s%d, %d' % (sT5, i + 1))
        A.label(Ln)
    A('s_cmp_lg_u32 s%d, 0' % sT5); A('s_cbranch_scc1 ms_got')
    A('s_sleep 2'); A('s_branch ms_poll')
    A.label('ms_got')
    A('v_mov_b32 v250, 163832'); A('v_mov_b32 v251, s%d' % sT5); A('s_mov_b64 exec, 1'); A('ds_write_b32 v250, v251'); A('s_mov_b64 exec, -1'); A('s_waitcnt lgkmcnt(0)')
    A.label('ms_wait')
    A('s_barrier')
    A('v_mov_b32 v250, 163832'); A('ds_read_b32 v251, v250'); A('s_waitcnt lgkmcnt(0)'); A('v_readfirstlane_b32 s%d, v251' % sT5)
    A('s_barrier')
    if trace: A('s_memrealtime s[98:99]'); A('s_memrealtime s[100:101]')
    for i, sreg in enumerate((sS0, sS1, sS2)):
        Ln = A.uid('mp')
        A('s_cmp_lg_u32 s%d, %d' % (sT5, i + 1)); A('s_cbranch_scc1 %s' % Ln)
        A('s_mov_b32 s%d, s%d' % (sItem, sreg))
        A('s_add_u32 s%d, s%d, %d' % (sreg, sreg, 1 << 22))
        A('s_bfe_u32 s%d, s%d, 0x60016' % (sT0, sreg))
        A('s_and_b32 s%d, s%d, 7' % (sT1, sreg)); A('s_add_u32 s%d, s%d, %d' % (sT1, sT1, NBIG))
        A('s_cmp_eq_u32 s%d, s%d' % (sT0, sT1)); A('s_cselect_b32 s%d, 0, s%d' % (sreg, sreg))
        A.label(Ln)
    decode(sItem); blk_rows()
    A('s_lshr_b32 s%d, s%d, 28' % (sT5, sItem))
    if trace:
        A('s_lshl_b32 s%d, s%d, 10' % (sQi, sT5)); A('s_mul_i32 s%d, s%d, 48' % (sT0, sRB)); A('s_add_u32 s%d, s%d, s%d' % (sQi, sQi, sT0))
        A('s_lshl_b32 s%d, s%d, 3' % (sT0, sKS)); A('s_add_u32 s%d, s%d, s%d' % (sQi, sQi, sT0)); A('s_add_u32 s%d, s%d, s%d' % (sQi, sQi, sNT))
    A('s_mov_b32 s%d, 0' % sItem)
    for ty in types:
        Lt = A.uid('mr')
        A('s_cmp_lg_u32 s%d, %d' % (sT5, ty)); A('s_cbranch_scc1 %s' % Lt)
        gemm_setup(ty)
        A('s_branch ms_run')
        A.label(Lt)
    A('s_branch L_exit_main')
    A.label('ms_run')
    A('s_cmp_eq_u32 s%d, 1' % sBig); A('s_cbranch_scc1 gemm_run'); A('s_branch gemm_run_s')

    A.label('att_loop')
    A('s_bfe_u32 s%d, s%d, 0x50011' % (sChunk, sS0))
    A('s_lshr_b32 s%d, s%d, 3' % (sS1, sChunk))
    A.label('att_next')
    A('s_cmp_ge_u32 s%d, 64' % sS1); A('s_cbranch_scc1 L_exit_main')
    A('s_mov_b32 s%d, s%d' % (sRB, sS1)); A('s_and_b32 s%d, s%d, 7' % (sNT, sChunk)); A('s_add_u32 s%d, s%d, 2' % (sS1, sS1))
    if trace:
        A('s_lshl_b32 s%d, s%d, 3' % (sQi, sRB)); A('s_add_u32 s%d, s%d, s%d' % (sQi, sQi, sNT)); A('s_add_u32 s%d, s%d, 1024' % (sQi, sQi))
        A('s_memrealtime s[98:99]')
    A('s_lshr_b32 s%d, s%d, 2' % (sT5, sRB))
    for mat in range(3):
        A('s_mul_i32 s%d, s%d, 96' % (sT0, sT5)); A('s_lshl_b32 s%d, s%d, 2' % (sT1, sNT)); A('s_add_u32 s%d, s%d, s%d' % (sT0, sT0, sT1))
        A('s_add_u32 s%d, s%d, %d' % (sT0, sT0, mat * 32)); A('s_lshl_b32 s%d, s%d, 2' % (sT0, sT0)); A('s_add_u32 s%d, s%d, %d' % (sDep, sT0, FQKV)); A('s_mov_b32 s%d, 4' % sCnt)
        Lsk = A.uid('ak')
        wait_flags(A)
    A('s_lshl_b32 s%d, s%d, 8' % (sT0, sRB)); A('s_lshl_b32 s%d, s%d, 5' % (sT1, sNT)); A('s_add_u32 s%d, s%d, s%d' % (sT0, sT0, sT1))
    A('s_lshl_b32 s%d, s%d, 2' % (sT0, sT0)); A('s_add_u32 s%d, s%d, %d' % (sDep, sT0, FLG_SEG)); A('s_mov_b32 s%d, 32' % sCnt)
    wait_flags(A)
    def code():
        A('s_lshr_b32 s%d, s%d, 2' % (sT0, sRB)); A('s_lshl_b32 s%d, s%d, 5' % (sT0, sT0))
        A('s_and_b32 s%d, s%d, 3' % (sT1, sRB)); A('s_lshl_b32 s%d, s%d, 3' % (sT1, sT1)); A('s_add_u32 s%d, s%d, s%d' % (sT0, sT0, sT1))
        A('s_sub_u32 s%d, s%d, 60' % (sT1, sRB)); A('s_lshr_b32 s%d, s%d, 1' % (sT1, sT1)); A('s_add_u32 s%d, s%d, 15' % (sT1, sT1)); A('s_lshl_b32 s%d, s%d, 5' % (sT1, sT1))
        A('s_and_b32 s%d, s%d, 1' % (sT2, sRB)); A('s_lshl_b32 s%d, s%d, 3' % (sT2, sT2)); A('s_add_u32 s%d, s%d, s%d' % (sT1, sT1, sT2))
        A('s_cmp_lt_u32 s%d, 60' % sRB); A('s_cselect_b32 s%d, s%d, s%d' % (sT0, sT0, sT1))
        A('s_add_u32 s%d, s%d, s%d' % (sT0, sT0, sNT))
    own(FATT, code)
    A('s_mov_b32 s%d, s%d' % (sSeg, sRB)); A('s_lshl_b32 s%d, s%d, 2' % (sHead, sNT))
    A('s_mov_b32 s%d, 3' % sItem)
    unit_att(A)
    A('s_branch unit_done')

    sN1, sN2, sN3 = sS0, sS1, sS2
    A.label('u_rowloop')
    A('s_bfe_u32 s%d, s%d, 0x50011' % (sChunk, sS0))
    A('s_mov_b32 s%d, 0' % sN1); A('s_mov_b32 s%d, 0' % sN2); A('s_mov_b32 s%d, 0' % sN3)
    A.label('rl_top')
    A('s_cmp_ge_u32 s%d, 16' % sN3); A('s_cbranch_scc1 L_exit_main')
    wave_id(A, sSp)
    A('s_cmp_lg_u32 s%d, 0' % sSp); A('s_cbranch_scc1 rl_wait')
    A('v_lshlrev_b32 v250, 2, v0'); A('s_mov_b32 s%d, 0' % sSp)
    CSH = 4 if SBM == 64 else 3
    A.label('rl_poll')
    for reg, base, sh, n_ in ((247, FO, 8, sN1), (248, FW2, 5, sN2), (249, FW4, 8, sN3)):
        A('s_min_u32 s%d, s%d, 15' % (sT0, n_)); A('s_lshr_b32 s%d, s%d, %d' % (sT1, sChunk, CSH)); A('s_add_u32 s%d, s%d, 15' % (sT1, sT1))
        A('s_cmp_lt_u32 s%d, 15' % sT0); A('s_cselect_b32 s%d, s%d, s%d' % (sT0, sT0, sT1))
        A('s_lshl_b32 s%d, s%d, %d' % (sT0, sT0, sh)); A('s_add_u32 s%d, s%d, %d' % (sT0, sT0, base))
        A('buffer_load_dword v%d, v250, s[8:11], s%d offen sc1' % (reg, sT0))
    A('s_add_u32 s%d, s%d, 1' % (sSp, sSp)); A('s_cmp_gt_u32 s%d, %d' % (sSp, SPIN)); A('s_cbranch_scc1 worker_abort')
    A('s_waitcnt vmcnt(0)')
    A('s_mov_b32 s%d, 0' % sT5)
    for ty, reg, cnt, n_ in ((1, 247, 48, sN1), (2, 248, 8, sN2), (3, 249, 48, sN3)):
        Ln = A.uid('rn')
        A('s_cmp_lg_u32 s%d, 0' % sT5); A('s_cbranch_scc1 %s' % Ln)
        A('s_cmp_ge_u32 s%d, 16' % n_); A('s_cbranch_scc1 %s' % Ln)
        A('v_cmp_eq_u32 vcc, 0, v%d' % reg)
        if cnt == 48: A('s_and_b32 vcc_hi, vcc_hi, 0xffff')
        else: A('s_and_b32 vcc_lo, vcc_lo, 0xff'); A('s_mov_b32 vcc_hi, 0')
        A('s_cmp_lg_u64 vcc, 0'); A('s_cbranch_scc1 %s' % Ln)
        A('s_mov_b32 s%d, %d' % (sT5, ty))
        A.label(Ln)
    A('s_cmp_lg_u32 s%d, 0' % sT5); A('s_cbranch_scc1 rl_got')
    A('s_sleep 2'); A('s_branch rl_poll')
    A.label('rl_got')
    A('v_mov_b32 v250, 163832'); A('v_mov_b32 v251, s%d' % sT5); A('s_mov_b64 exec, 1'); A('ds_write_b32 v250, v251'); A('s_mov_b64 exec, -1'); A('s_waitcnt lgkmcnt(0)')
    A.label('rl_wait')
    A('s_barrier')
    A('v_mov_b32 v250, 163832'); A('ds_read_b32 v251, v250'); A('s_waitcnt lgkmcnt(0)'); A('v_readfirstlane_b32 s%d, v251' % sT5)
    A('s_barrier')
    if trace: A('s_memrealtime s[98:99]'); A('s_memrealtime s[100:101]')
    A('s_mov_b32 s%d, 2' % sItem)
    A('s_cmp_eq_u32 s%d, 3' % sT5); A('s_cbranch_scc1 rl_3')
    A('s_cmp_eq_u32 s%d, 2' % sT5); A('s_cbranch_scc1 rl_2')
    def pick(n_, T_, lab):
        A('s_lshr_b32 s%d, s%d, %d' % (sT1, sChunk, CSH)); A('s_add_u32 s%d, s%d, 15' % (sT1, sT1)); A('s_and_b32 s%d, s%d, %d' % (sT2, sChunk, (1 << CSH) - 1))
        A('s_cmp_lt_u32 s%d, 15' % n_); A('s_cselect_b32 s%d, s%d, s%d' % (sRB, n_, sT1)); A('s_cselect_b32 s%d, s%d, s%d' % (sNT, sChunk, sT2))
        if trace:
            A('s_mul_i32 s%d, s%d, 48' % (sQi, sRB)); A('s_add_u32 s%d, s%d, s%d' % (sQi, sQi, sNT)); A('s_add_u32 s%d, s%d, %d' % (sQi, sQi, T_ * 1024))
        A('s_add_u32 s%d, s%d, 1' % (n_, n_)); blk_rows(); A('s_branch %s' % lab)
    pick(sN1, T_R1, 'u_r1')
    A.label('rl_2'); pick(sN2, T_R2, 'u_r2')
    A.label('rl_3'); pick(sN3, T_R3, 'u_r3')
    def rowu(lab, ownbase, fn, pre=None):
        A.label(lab)
        if ownbase is not None:
            own(ownbase, lambda: (A('s_lshl_b32 s%d, s%d, 5' % (sT0, sRB)), A('s_add_u32 s%d, s%d, s%d' % (sT0, sT0, sNT))))
        if pre: pre()
        A('s_lshl_b32 s%d, s%d, 2' % (sT0, sNT)); A('s_add_u32 s%d, s%d, s%d' % (sRow, sRow0, sT0))
        fn(A)
        A('s_branch %s' % ('unit_done' if ownbase is not None else 'unit_nosig'))
    rowu('u_r1', FR1, unit_r1, lambda: mk_srd(A, SRD_R, A_X, 4 * MB))
    rowu('u_r2', FR2, unit_r2)
    rowu('u_r3', None, unit_r3, lambda: mk_srd(A, SRD_C, D_OUT, 4 * MB))

    def epis(G_, sfx):
        A('s_cmp_eq_u32 s%d, 1' % sMode); A('s_cbranch_scc1 epi1%s' % sfx)
        A('s_cmp_eq_u32 s%d, 2' % sMode); A('s_cbranch_scc1 epi2%s' % sfx)
        G_.epi_bf16(); A('s_branch unit_done')
        A.label('epi1' + sfx); G_.epi_bf16(gelu=True); A('s_branch unit_done')
        A.label('epi2' + sfx); G_.epi_bf16(resid=True); A('s_branch unit_done')
    A.label('gemm_run')
    G.setup_lane(); G.prologue(); G.mainloop()
    epis(G, '')
    A.label('gemm_run_s')
    GS.setup_lane(); GS.prologue(); GS.mainloop()
    epis(GS, 's')
    def trace_out():
        if trace:
            A('s_memrealtime s[68:69]'); A('s_waitcnt lgkmcnt(0)')
            Lt = A.uid('tr')
            A('v_cmp_eq_u32 vcc, 0, v0'); A('s_and_saveexec_b64 s[%d:%d], vcc' % (sMsk, sMsk + 1)); A('s_cbranch_execz %s' % Lt)
            A('v_mov_b32 v240, s98'); A('v_mov_b32 v241, s100'); A('v_mov_b32 v242, s66'); A('v_mov_b32 v243, s68')
            A('s_sub_u32 s%d, s62, s60' % sT1); A('s_sub_u32 s%d, s64, s62' % sT2)
            A('v_mov_b32 v244, s%d' % sT1); A('v_mov_b32 v245, s%d' % sT2); A('v_mov_b32 v246, 0'); A('v_mov_b32 v247, 0')
            A('s_lshl_b32 s%d, s%d, 5' % (sT0, sQi)); A('s_add_u32 s%d, s%d, %d' % (sT0, sT0, TRC)); A('v_mov_b32 v250, 0')
            A('buffer_store_dwordx4 v[240:243], v250, s[8:11], s%d offen' % sT0)
            A('buffer_store_dwordx4 v[244:247], v250, s[8:11], s%d offen offset:16' % sT0)
            A.label(Lt)
            A('s_mov_b64 exec, s[%d:%d]' % (sMsk, sMsk + 1))
    A.label('unit_done')
    if trace: A('s_memrealtime s[66:67]')
    signal_flag(A)
    trace_out()
    A('s_cmp_eq_u32 s%d, 1' % sItem); A('s_cbranch_scc1 qkv_next')
    A('s_cmp_eq_u32 s%d, 2' % sItem); A('s_cbranch_scc1 rl_top')
    A('s_cmp_eq_u32 s%d, 3' % sItem); A('s_cbranch_scc1 att_next')
    A('s_branch ms_top')
    A.label('unit_nosig')
    if trace: A('s_memrealtime s[66:67]')
    A('s_waitcnt vmcnt(0)'); A('s_barrier')
    trace_out()
    A('s_branch rl_top')
    A.label('worker_abort')
    A('s_mov_b64 exec, 1')
    A('v_mov_b32 v250, 1'); A('v_mov_b32 v251, 132')
    A('global_atomic_add v251, v250, s[6:7] sc1'); A('s_waitcnt vmcnt(0)')
    A.label('L_exit_main')
    A('s_endpgm')
    A.raw('.p2align 2')
    A.raw('.type qtable,@object')
    A.label('qtable')
    for x in range(8):
        for t in range(32):
            A.raw('    .long ' + ', '.join('0x%08x' % w for w in TB[x, t] + [0]))
    A.raw('.section .rodata,"a"')
    A.raw('.p2align 6'); kernel_desc(A, 'prep_kernel', vgpr=128, accum=128)
    A.raw('.p2align 6'); kernel_desc(A, 'main_kernel')
    return A.text()
if __name__ == '__main__':
    kw = {}
    for x in sys.argv[2:]:
        k, v = x.split('=')
        kw[k] = v
    ck = dict(rearly=int(kw.pop('rearly', 4)), vdefer=int(kw.pop('vdefer', 0)))
    if kw.get('trace'): ck['steptrace'] = True
    kw['chain_kw'] = ck
    open(sys.argv[1], 'w').write(gen(**kw))
```

```python
from asmlib import *
from layout import *
import struct, math
from gemm2 import SRD_WS, SRD_A, SRD_B, SRD_C, SRD_R, sAoff, sBoff, sCoff, sLda, sLdb, sLdc, sNk, sKi, sStR, sStW, sRoff, sB64, sMode, sW, sWm, sWn, sT0, sT1, sT2, sT3, sT4, sT5, sA2, sShift, sK1, sK2, sMX, sMW, srd, fhex
import gemm2

class Gemm(gemm2.Gemm):
    def __init__(self, A, BM, NS, afl='sc1', bfl='', stamps=False):
        super().__init__(A, BM, NS, afl, bfl, stamps)
        self.win = []
        wb = []
        for s_ in range(NS):
            off = s_ * self.STAGE
            mi = max((self.TM - 1) * 2048, 9216 + 0)
            placed = False
            for i, b in enumerate(wb):
                if off - b + mi <= 65535: self.win.append((i, off - b)); placed = True; break
            if not placed: wb.append(off); self.win.append((len(wb) - 1, 0))
        self.wb = wb
        self.vAdr = 200
        assert self.vAdr + 6 * len(wb) <= 232
    def setup_lane(self):
        super().setup_lane()
        A = self.A
        for i, b in enumerate(self.wb):
            for k in range(2): A('v_add_u32 v%d, %d, v%d' % (self.vAdr + 6 * i + k, b, self.vXb + k))
            for k in range(4): A('v_add_u32 v%d, %d, v%d' % (self.vAdr + 6 * i + 2 + k, b, self.vWb + k))
    def reads(self, st, kk, slot=0):
        base = self.set[st]; w = []; x = []
        wi, off = self.win[slot]
        for tn in range(4):
            for h in range(2):
                w.append('ds_read_b64_tr_b16 v[%d:%d], v%d offset:%d' % (base + 4 * tn + 2 * h, base + 4 * tn + 2 * h + 1, self.vAdr + 6 * wi + 2 + tn, off + kk * 8192 + h * 1024))
        for tm in range(self.TM):
            x.append('ds_read_b128 v[%d:%d], v%d offset:%d' % (base + 16 + 4 * tm, base + 16 + 4 * tm + 3, self.vAdr + 6 * wi + kk, off + tm * 2048))
        return w + x
    def dma_list(self, slot=0):
        TM = self.TM; out = []
        so_ = slot * self.STAGE
        ngr = (TM + 3) // 4
        for gr in range(ngr):
            n = min(4, TM - 4 * gr)
            pre = ['s_add_u32 m0, s%d, %d' % (sMX, so_ + gr * 4096)]
            if gr == 0: so = sAoff; pre.append('s_add_u32 s%d, s%d, 1' % (sKi, sKi))
            else: pre.append('s_add_u32 s%d, s%d, s%d' % (sT1, sAoff, sA2)); so = sT1
            for jj in range(n):
                ins = 'buffer_load_dwordx4 v%d, %s, s%d offen offset:%d %s lds' % (self.vXd + jj, srd(SRD_A), so, 1024 * jj, self.afl)
                out.append((pre if jj == 0 else []) + [' '.join(ins.split())])
        pre = ['s_add_u32 m0, s%d, %d' % (sMW, so_), 's_add_u32 s%d, s%d, 128' % (sAoff, sAoff)]
        for jj in range(4):
            ins = 'buffer_load_dwordx4 v%d, %s, s%d offen offset:%d %s lds' % (self.vWd + jj, srd(SRD_B), sBoff, 1024 * jj, self.bfl)
            out.append((pre if jj == 0 else []) + [' '.join(ins.split())] + (['s_add_u32 s%d, s%d, s%d' % (sBoff, sBoff, sB64)] if jj == 3 else []))
        return out
    def mainloop(self):
        A = self.A; nd = self.ndma(); NS = self.NS; look = NS - 1; n = 4 * self.TM
        self.stamp(0)
        A('s_mov_b32 s%d, 0' % sKi)
        for st in range(look):
            for grp in self.dma_list(st):
                for x in grp: A(x)
            self.shift_fix()
        A('s_waitcnt vmcnt(%d)' % ((look - 1) * nd))
        A('s_barrier')
        for x in self.reads(0, 0, 0): A(x)
        self.stamp(1)
        young = look - 2
        def one(slot, first, rd_next, dma, younger):
            mf0 = self.mfmas(0, first); mf1 = self.mfmas(1)
            slots = [[] for _ in range(2 * n)]
            r1 = self.reads(1, 1, slot)
            sp = min(len(r1), n)
            for i, x in enumerate(r1): slots[i * sp // len(r1)].append(x)
            bar = min(n - 1, len(r1) + 7)
            nbefore = 0
            if dma:
                dl = self.dma_list((slot + look) % NS)
                pos = [int((i + 0.5) * 2 * n / len(dl)) for i in range(len(dl))]
                for p_, grp in zip(pos, dl): slots[p_] += grp
                nbefore = sum(1 for p_ in pos if p_ <= bar)
            if rd_next:
                r0 = self.reads(0, 0, (slot + 1) % NS); sp0 = min(len(r0), n); ins = {}
                for i, x in enumerate(r0): ins.setdefault(n + i * sp0 // len(r0), []).append(x)
                for k_, v_ in ins.items(): slots[k_] = v_ + slots[k_]
            A('s_waitcnt lgkmcnt(0)')
            for i in range(2 * n):
                A(mf0[i] if i < n else mf1[i - n])
                for x in slots[i]: A(x)
                if i == bar:
                    A('s_waitcnt vmcnt(%d) lgkmcnt(0)' % (younger * nd + nbefore))
                    A('s_barrier')
            if dma: self.shift_fix()
        tails = [A.uid('gt') for _ in range(NS)]
        one(0, True, True, True, young)
        A('s_cmp_ge_u32 s%d, s%d' % (sKi, sNk)); A('s_cbranch_scc1 %s' % tails[1 % NS])
        Lloop = A.uid('gl')
        A.label(Lloop)
        for k in range(NS):
            slot = (1 + k) % NS
            one(slot, False, True, True, young)
            nxt = (slot + 1) % NS
            A('s_cmp_ge_u32 s%d, s%d' % (sKi, sNk))
            if k < NS - 1: A('s_cbranch_scc1 %s' % tails[nxt])
            else:
                A('s_cbranch_scc0 %s' % Lloop)
                A('s_branch %s' % tails[nxt])
        Lend = A.uid('ge')
        for s0 in range(NS):
            A.label(tails[s0])
            for t in range(look):
                rem_young = max(0, (look - 1 - t) - 1)
                one((s0 + t) % NS, False, t != look - 1, False, rem_young)
            A('s_branch %s' % Lend)
        A.label(Lend)
        A.nop(10)
        self.stamp(2)
    def prologue(self):
        super().prologue()
    def gelu(self, regs, t, rnd=True):
        A = self.A; n = len(regs); r0 = regs[0]
        pr = lambda x: 'v[%d:%d]' % (x, x + 1)
        if rnd:
            for i in range(0, n, 2):
                A('v_cvt_pk_bf16_f32 v%d, v%d, v%d' % (t, regs[i], regs[i + 1]))
                A('v_lshlrev_b32 v%d, 16, v%d' % (regs[i], t))
                A('v_and_b32 v%d, 0xffff0000, v%d' % (regs[i + 1], t))
        for i in range(0, n, 2): A('v_pk_mul_f32 %s, %s, %s' % (pr(t + i), pr(r0 + i), pr(r0 + i)))
        for i in range(0, n, 2): A('v_pk_fma_f32 %s, %s, s[%d:%d], %s' % (pr(t + i), pr(t + i), self.sKp, self.sKp + 1, pr(self.vK1)))
        for i in range(0, n, 2): A('v_pk_mul_f32 %s, %s, %s' % (pr(t + i), pr(t + i), pr(r0 + i)))
        for i in range(n): A('v_exp_f32 v%d, v%d' % (t + i, t + i))
        for i in range(0, n, 2): A('v_pk_add_f32 %s, %s, %s' % (pr(t + i), pr(t + i), pr(self.vOne)))
        for i in range(n): A('v_rcp_f32 v%d, v%d' % (t + i, t + i))
        A('s_nop 0')
        for i in range(0, n, 2): A('v_pk_mul_f32 %s, %s, %s' % (pr(r0 + i), pr(r0 + i), pr(t + i)))
    def gelu_setup(self):
        c1 = -2.0 * math.sqrt(2.0 / math.pi) * math.log2(math.e)
        self.sKp = sK1
        self.A('s_mov_b32 s%d, %s' % (sK1, fhex(c1 * 0.044715)))
        self.A('s_mov_b32 s%d, %s' % (sK1 + 1, fhex(c1 * 0.044715)))
        self.vK1 = self.vT + 4; self.vOne = self.vT + 6
        self.A('v_mov_b32 v%d, %s' % (self.vK1, fhex(c1))); self.A('v_mov_b32 v%d, %s' % (self.vK1 + 1, fhex(c1)))
        self.A('v_mov_b32 v%d, 1.0' % self.vOne); self.A('v_mov_b32 v%d, 1.0' % (self.vOne + 1))
```

```python
from asmlib import *
from layout import *
import struct, math
from gemm2 import SRD_WS, SRD_A, SRD_B, SRD_C, SRD_R, sAoff, sBoff, sCoff, sLda, sLdb, sLdc, sNk, sKi, sStR, sStW, sRoff, sB64, sMode, sW, sWm, sWn, sT0, sT1, sT2, sT3, sT4, sT5, sA2, sShift, sK1, sK2, sMX, sMW, srd, fhex
import gemm3

class GemmBS(gemm3.Gemm):
    NSL = 8
    def __init__(self, A, BM=128, stamps=False):
        self.A = A; self.stamps = stamps
        self.BM = BM; self.TM = BM // 16; self.TN = 2
        self.SLOT = BM * 128; self.ND = BM // 32
        self.vLane, self.vG, self.vC = 1, 2, 3
        self.vXd = 4
        self.vXa = 8
        self.vT = 24
        self.set = [32, 64]
        self.ACC = 128
        self.look = self.NSL - 1
    def acc(self, tm, tn): return self.ACC + (tm * 2 + tn) * 4
    def lanes(self):
        A = self.A
        A('v_and_b32 v%d, 63, v0' % self.vLane); A('v_lshrrev_b32 v%d, 6, v0' % self.vT); A('s_nop 0')
        A('v_readfirstlane_b32 s%d, v%d' % (sW, self.vT))
        A('v_lshrrev_b32 v%d, 4, v%d' % (self.vG, self.vLane)); A('v_and_b32 v%d, 15, v%d' % (self.vC, self.vLane)); A('s_nop 1')
    def load_b(self):
        A = self.A
        self.lanes()
        t0, t1, t2, t3 = self.vT, self.vT + 1, self.vT + 2, self.vT + 3
        G, C = self.vG, self.vC
        vWd, vWr = 12, 16
        A('v_lshrrev_b32 v%d, 1, v%d' % (t0, C)); A('v_and_b32 v%d, 1, v%d' % (t3, C)); A('s_lshl_b32 s%d, s%d, 4' % (sT0, sW))
        for jj in range(4):
            A('v_xor_b32 v%d, v%d, v%d' % (t1, t0, G))
            if (jj >> 1) & 1: A('v_xor_b32 v%d, 4, v%d' % (t1, t1))
            A('v_lshlrev_b32 v%d, 5, v%d' % (t1, t1)); A('v_lshl_add_u32 v%d, v%d, 4, v%d' % (t1, t3, t1))
            A('s_add_u32 s%d, s%d, %d' % (sT1, sT0, 4 * jj)); A('v_add_u32 v%d, s%d, v%d' % (t2, sT1, G))
            A('v_mul_lo_u32 v%d, v%d, s%d' % (t2, t2, sLdb)); A('v_add_u32 v%d, v%d, v%d' % (t2, t2, t1))
            A('v_subrev_u32 v%d, %d, v%d' % (vWd + jj, 1024 * jj, t2))
        A('v_lshrrev_b32 v%d, 2, v%d' % (t0, C)); A('v_and_b32 v%d, 1, v%d' % (t1, G)); A('v_lshl_add_u32 v%d, v%d, 2, v%d' % (t1, t1, t0))
        A('v_lshl_add_u32 v%d, v%d, 3, v%d' % (t0, G, t0)); A('v_lshlrev_b32 v%d, 8, v%d' % (t0, t0))
        A('v_and_b32 v%d, 3, v%d' % (t2, C)); A('v_lshl_add_u32 v%d, v%d, 3, v%d' % (t0, t2, t0))
        A('s_lshl_b32 s%d, s%d, 1' % (sT0, sW))
        for tn in range(2):
            A('s_add_u32 s%d, s%d, %d' % (sT1, sT0, tn)); A('v_xor_b32 v%d, s%d, v%d' % (t2, sT1, t1)); A('v_lshl_add_u32 v%d, v%d, 5, v%d' % (vWr + tn, t2, t0))
        A('s_lshl_b32 s%d, s%d, 6' % (sB64, sLdb))
        A('s_lshl_b32 s%d, s%d, 12' % (sMW, sW))
        A('s_mov_b32 s%d, s%d' % (sT4, sBoff))
        for g0 in range(0, 16, 4):
            Lsk = A.uid('lb')
            A('s_cmp_le_u32 s%d, %d' % (sNk, g0)); A('s_cbranch_scc1 %s' % Lsk)
            for s_ in range(4):
                A('s_add_u32 m0, s%d, %d' % (sMW, s_ * 16384)); A('s_nop 0')
                for jj in range(4):
                    A('buffer_load_dwordx4 v%d, %s, s%d offen offset:%d lds' % (vWd + jj, srd(SRD_B), sT4, 1024 * jj))
                A('s_add_u32 s%d, s%d, s%d' % (sT4, sT4, sB64))
            A('s_waitcnt vmcnt(0)'); A('s_barrier')
            for s_ in range(4):
                st = g0 + s_
                for kk in range(2):
                    for tn in range(2):
                        for h in range(2):
                            Rg = 16 * st + 8 * kk + 4 * tn + 2 * h
                            A('ds_read_b64_tr_b16 a[%d:%d], v%d offset:%d' % (Rg, Rg + 1, vWr + tn, s_ * 16384 + kk * 8192 + h * 1024))
                A('s_waitcnt lgkmcnt(0)')
            A('s_barrier')
            A.label(Lsk)
    def setup(self):
        A = self.A
        self.lanes()
        t0, t1, t2 = self.vT, self.vT + 1, self.vT + 2
        L, G, C = self.vLane, self.vG, self.vC
        A('v_lshrrev_b32 v%d, 3, v%d' % (t0, L)); A('v_and_b32 v%d, 7, v%d' % (t1, L)); A('v_xor_b32 v%d, v%d, v%d' % (t1, t1, t0)); A('v_lshlrev_b32 v%d, 4, v%d' % (t1, t1))
        A('s_mul_i32 s%d, s%d, %d' % (sT0, sW, self.BM // 4))
        for jj in range(self.ND):
            A('s_add_u32 s%d, s%d, %d' % (sT1, sT0, 8 * jj)); A('v_add_u32 v%d, s%d, v%d' % (t2, sT1, t0))
            A('v_mul_lo_u32 v%d, v%d, s%d' % (t2, t2, sLda)); A('v_add_u32 v%d, v%d, v%d' % (t2, t2, t1))
            A('v_subrev_u32 v%d, %d, v%d' % (self.vXd + jj, 1024 * jj, t2))
        A('s_mul_i32 s%d, s%d, %d' % (sMX, sW, self.ND * 1024))
        A('v_and_b32 v%d, 7, v%d' % (t0, C)); A('v_xor_b32 v%d, v%d, v%d' % (t0, t0, G)); A('v_lshlrev_b32 v%d, 4, v%d' % (t0, t0)); A('v_lshl_add_u32 v%d, v%d, 7, v%d' % (self.vXa, C, t0))
        A('v_xor_b32 v%d, 64, v%d' % (self.vXa + 1, self.vXa))
        A('v_add_u32 v%d, 65536, v%d' % (self.vXa + 2, self.vXa)); A('v_add_u32 v%d, 65536, v%d' % (self.vXa + 3, self.vXa + 1))
    def xreads(self, st, kk, slot):
        base = self.set[st]; off = slot * self.SLOT; wi = off // 65536; off -= wi * 65536
        return ['ds_read_b128 v[%d:%d], v%d offset:%d' % (base + 4 * tm, base + 4 * tm + 3, self.vXa + 2 * wi + kk, off + tm * 2048) for tm in range(self.TM)]
    def xdma(self, slot):
        out = []
        pre = ['s_cmp_lt_u32 s%d, s%d' % (sKi, sNk), 's_cselect_b32 s%d, s%d, 0x70000000' % (sA2, sAoff), 's_add_u32 m0, s%d, %d' % (sMX, slot * self.SLOT), 's_add_u32 s%d, s%d, 1' % (sKi, sKi)]
        for jj in range(self.ND):
            post = ['s_add_u32 s%d, s%d, 128' % (sAoff, sAoff)] + self.shift_list() if jj == self.ND - 1 else []
            out.append((pre if jj == 0 else []) + ['buffer_load_dwordx4 v%d, %s, s%d offen offset:%d sc1 lds' % (self.vXd + jj, srd(SRD_A), sA2, 1024 * jj)] + post)
        return out
    def shift_list(self):
        return []
    def mf(self, st, stage, kk, first):
        base = self.set[st]; out = []
        for tm in range(self.TM):
            for tn in range(2):
                ac = self.acc(tm, tn); b_ = 16 * stage + 8 * kk + 4 * tn
                c = '0' if first else 'v[%d:%d]' % (ac, ac + 3)
                out.append('v_mfma_f32_16x16x32_bf16 v[%d:%d], a[%d:%d], v[%d:%d], %s' % (ac, ac + 3, b_, b_ + 3, base + 4 * tm, base + 4 * tm + 3, c))
        return out
    def mainloop(self):
        A = self.A; NS = self.NSL; ND = self.ND; n = 2 * self.TM
        self.stamp(0)
        A('s_mov_b32 s%d, 0' % sKi)
        plan = {}; nxt = 3
        for s_ in range(16):
            lst = []
            while nxt < 16 and nxt <= s_ + NS - 1 and len(lst) < 2:
                lst.append(nxt); nxt += 1
            plan[s_] = lst
        issued = []
        def static_shift(j):
            d = {4: 2, 8: -3, 12: 4}.get(j + 1)
            if d is None: return []
            return ['s_mul_i32 s%d, s%d, %d' % (sT0, sShift, d), 's_add_u32 s%d, s%d, s%d' % (sAoff, sAoff, sT0)]
        for st in range(3):
            g = self.xdma(st % NS); g[-1] += static_shift(st)
            for grp in g:
                for x in grp: A(x)
            issued += [st] * ND
        A('s_waitcnt vmcnt(%d)' % (2 * ND)); A('s_barrier')
        for x in self.xreads(0, 0, 0): A(x)
        self.stamp(1)
        Lend = A.uid('be')
        for s_ in range(16):
            slot = s_ % NS
            mf0 = self.mf(0, s_, 0, s_ == 0); mf1 = self.mf(1, s_, 1, False)
            slots = [[] for _ in range(2 * n)]
            for i, x in enumerate(self.xreads(1, 1, slot)): slots[i].append(x)
            bar = n - 3
            groups = []
            for j in plan[s_]:
                g = self.xdma(j % NS); g[-1] += static_shift(j)
                groups += [(j, grp) for grp in g]
            pos = [int((i + 0.5) * 2 * n / len(groups)) for i in range(len(groups))] if groups else []
            before = [j for (j, _), p_ in zip(groups, pos) if p_ <= bar]
            for (j, grp), p_ in zip(groups, pos): slots[p_] += grp
            if s_ < 15:
                for i, x in enumerate(self.xreads(0, 0, (s_ + 1) % NS)): slots[n + i].insert(0, x)
            A('s_waitcnt lgkmcnt(0)')
            for i in range(2 * n):
                A(mf0[i] if i < n else mf1[i - n])
                for x in slots[i]: A(x)
                if i == bar:
                    seq = issued + before
                    younger = sum(1 for j in seq if j > s_ + 1)
                    A('s_waitcnt vmcnt(%d) lgkmcnt(0)' % younger)
                    A('s_barrier')
            issued += [j for j, _ in groups]
            if s_ < 15:
                A('s_cmp_le_u32 s%d, %d' % (sNk, s_ + 1)); A('s_cbranch_scc1 %s' % Lend)
        A.label(Lend)
        A('s_waitcnt lgkmcnt(0)')
        A.nop(10)
        self.stamp(2)
    def epi_addr(self, bytes_per_col):
        A = self.A
        vCo, t0 = self.vT, self.vT + 1
        A('v_mul_lo_u32 v%d, v%d, s%d' % (vCo, self.vC, sLdc))
        A('v_and_b32 v%d, 1, v%d' % (t0, self.vG)); A('v_lshl_add_u32 v%d, v%d, 5, v%d' % (vCo, t0, vCo))
        A('v_lshrrev_b32 v%d, 1, v%d' % (t0, self.vG)); A('v_lshl_add_u32 v%d, v%d, 4, v%d' % (vCo, t0, vCo))
        A('s_lshl_b32 s%d, s%d, 6' % (sT1, sW)); A('v_add_u32 v%d, s%d, v%d' % (vCo, sT1, vCo))
        A('s_lshl_b32 s%d, s%d, 4' % (sT2, sLdc))
        return vCo
    def epi_bf16(self, gelu=False, resid=False, cfl='sc1'):
        A = self.A
        if gelu: self.gelu_setup()
        vCo = self.epi_addr(2)
        D = 32; RR = 64
        if resid:
            for tm in range(self.TM):
                A('s_mul_i32 s%d, s%d, %d' % (sT3, sT2, tm)); A('s_add_u32 s%d, s%d, s%d' % (sT3, sT3, sRoff))
                A('buffer_load_dwordx4 v[%d:%d], v%d, %s, s%d offen sc1' % (RR + 4 * tm, RR + 4 * tm + 3, vCo, srd(SRD_R), sT3))
        for tm in range(self.TM):
            A('s_mul_i32 s%d, s%d, %d' % (sT3, sT2, tm)); A('s_add_u32 s%d, s%d, s%d' % (sT3, sT3, sCoff))
            a0 = self.acc(tm, 0); a1 = self.acc(tm, 1)
            if gelu: self.gelu(list(range(a0, a0 + 8)), D + 8)
            P = D + 4 * (tm & 1)
            A('v_cvt_pk_bf16_f32 v%d, v%d, v%d' % (P, a0, a0 + 1)); A('v_cvt_pk_bf16_f32 v%d, v%d, v%d' % (P + 1, a0 + 2, a0 + 3))
            A('v_cvt_pk_bf16_f32 v%d, v%d, v%d' % (P + 2, a1, a1 + 1)); A('v_cvt_pk_bf16_f32 v%d, v%d, v%d' % (P + 3, a1 + 2, a1 + 3))
            A('s_nop 1')
            A('v_permlane16_swap_b32 v%d, v%d' % (P, P + 2)); A('v_permlane16_swap_b32 v%d, v%d' % (P + 1, P + 3))
            if resid:
                R = RR + 4 * tm
                if tm == 0: A('s_waitcnt vmcnt(0)')
                for i in range(4):
                    t = D + 8
                    A('v_lshlrev_b32 v%d, 16, v%d' % (t, P + i)); A('v_and_b32 v%d, 0xffff0000, v%d' % (t + 1, P + i))
                    A('v_lshlrev_b32 v%d, 16, v%d' % (t + 2, R + i)); A('v_and_b32 v%d, 0xffff0000, v%d' % (t + 3, R + i))
                    A('v_pk_add_f32 v[%d:%d], v[%d:%d], v[%d:%d]' % (t, t + 1, t, t + 1, t + 2, t + 3))
                    A('v_cvt_pk_bf16_f32 v%d, v%d, v%d' % (P + i, t, t + 1))
            else:
                A('s_nop 0')
            A('buffer_store_dwordx4 v[%d:%d], v%d, %s, s%d offen %s' % (P, P + 3, vCo, srd(SRD_C), sT3, cfl))
```

```python
MB = 1 << 20
KB = 1 << 10
WS_SIZE = 256 * MB
XLN  = 0 * MB
QX   = 4 * MB
KX   = 20 * MB
VX   = 36 * MB
KM   = 52 * MB
VMF  = 56 * MB
OX   = 60 * MB
CH   = 76 * MB
MEMB = CH
QKB  = CH + 128 * KB
OB   = CH + 1 * MB
PART = CH + 2 * MB
CNT  = 80 * MB
FLG_SEG = CNT + 128 * KB
A_X, A_MEM0, A_WQ, A_WK, A_WV, A_WO, A_SEG, B_X, B_W1, B_W2, B_W3, B_W4, D_OUT, D_DBG, D_WS = [8 * i for i in range(15)]

HB   = 84 * MB
YB   = 88 * MB
ZB   = 92 * MB
GB0  = 96 * MB
GB   = GB0 + 2 * 2048
X1B  = 102 * MB
Z2B  = 106 * MB
UB   = 110 * MB
PO   = 128 * MB
P4   = 160 * MB

FL2  = CNT + 192 * KB
FQKV = FL2
NBLK = 32
FATT = FQKV + 1536 * 4
FO   = FATT + 34 * 128
FR1  = FO + 34 * 256
FW1  = FR1 + 34 * 128
FW2  = FW1 + 34 * 32
FR2  = FW2 + 34 * 32
FW3  = FR2 + 34 * 128
FW4  = FW3 + 34 * 128
FXL  = FW4 + 34 * 256
QCTR = FXL + 1024
FL_END = QCTR + 1024
assert FL_END <= CNT + 256 * KB

TRC = 240 * MB
TRC_CH = TRC + 2 * MB
```

```python
import sys
from asmlib import *
from layout import *
import chain7 as chain
from gemm2 import *
from gemm3 import Gemm
from gemmbs import GemmBS
from units3 import *

BM = 128
SBM = 64
NBIG = 31
NB = NBLK
SPIN = 1 << 22
sXW, sTK, sIt, sFlag, sItem, sQi, sTab, sDep, sCnt, sSp = 80, 81, 82, 83, 84, 85, 86, 88, 89, 90
sMsk = 92
sRB, sNT, sKS = 94, 95, 96
sK0, sNKi = 78, 79
sRow0, sBig = 70, 71
sShI, sShR = 75, 76
sS0, sS1, sS2 = 58, 59, 91
sChunk = 97
sD0, sD1, sD2 = 72, 73, 74
sC3 = 77
T_ATT, T_O, T_R1, T_W1, T_W2, T_R2, T_W3, T_W4, T_R3, T_ROWLOOP = range(1, 11)
O_SPLIT = [(0, 11), (11, 11), (22, 11), (33, 11), (44, 10), (54, 10)]
W4_SPLIT = [(0, 10), (10, 10), (20, 9), (29, 9), (38, 9), (47, 9)]
def word(t, a, b=0, c=0, k0=0, nk=0, end=0):
    assert a < 64 and b < 32 and c < 8 and k0 < 64 and nk < 32
    return (t << 28) | (a << 22) | (b << 17) | (c << 14) | (k0 << 8) | (nk << 3) | end

def build_table():
    T = {(x, t): [0, 0, 0] for x in range(8) for t in range(32)}
    slot = [0] * 6
    def take(x):
        w = (x, slot[x]); slot[x] += 1; assert slot[x] <= 32; return w
    for x in range(6):
        for nt in range(8): T[take(x)] = [word(T_O, 0, nt, x, *O_SPLIT[x]), 0, 0]
    for nt in range(8): T[take(0)] = [word(T_W1, 0, nt), 0, 0]
    for nt in range(8): T[take(1)] = [word(T_W2, 0, nt), 0, 0]
    for nt in range(28): T[take(2 + nt // 7)] = [word(T_W3, 0, nt), 0, 0]
    for x in range(6):
        for nt in range(8): T[take(x)] = [word(T_W4, 0, nt, x, *W4_SPLIT[x]), 0, 0]
    free = [(x, t) for x in range(6) for t in range(slot[x], 32)]
    assert len(free) >= 48, len(free)
    LB = NBIG
    w4 = lambda i: word(T_W4, LB, i % 8, i // 8, *W4_SPLIT[i // 8], end=1)
    for i in range(16): T[free[i]] = [word(T_ATT, 0, i), w4(36 + i) if i < 12 else 0, 0]
    for c in range(32): T[free[16 + c]] = [word(T_ROWLOOP, 0, c), 0, 0]
    for m in range(64):
        w = []
        if m < 48: w.append(word(T_O, LB, m % 8, m // 8, *O_SPLIT[m // 8], end=1))
        if m < 28: w.append(word(T_W3, LB, m, end=1))
        elif m < 48: w.append(w4(m - 28))
        elif m < 56: w += [word(T_W1, LB, m - 48, end=1), w4(20 + m - 48)]
        else: w += [word(T_W2, LB, m - 56, end=1), w4(28 + m - 56)]
        T[6 + m // 32, m % 32] = (w + [0, 0, 0])[:3]
    return T

TRACE = [0]
def mk_srd(A, n, karg, size):
    A('s_load_dwordx2 s[%d:%d], s[0:1], %d' % (n, n + 1, karg))
    A('s_mov_b32 s%d, %d' % (n + 2, size))
    A('s_mov_b32 s%d, 0x00020000' % (n + 3))
    A('s_waitcnt lgkmcnt(0)')
def ws_srd(A, n):
    for i in range(4): A('s_mov_b32 s%d, s%d' % (n + i, 8 + i))
def gemm_params(A, lda, ldb, ldc, nk, mode, shift=0):
    A('s_mov_b32 s%d, %d' % (sLda, lda)); A('s_mov_b32 s%d, %d' % (sLdb, ldb)); A('s_mov_b32 s%d, %d' % (sLdc, ldc))
    A('s_mov_b32 s%d, %d' % (sNk, nk)); A('s_mov_b32 s%d, %d' % (sShift, lda if shift else 0)); A('s_mov_b32 s%d, %d' % (sMode, mode))

def wave_id(A, dst):
    A('v_lshrrev_b32 v250, 6, v0'); A('s_nop 0'); A('v_readfirstlane_b32 s%d, v250' % dst); A('s_nop 3')

def wait_flags(A):
    Ld = A.uid('wf'); Ll = A.uid('wl')
    wave_id(A, sSp)
    A('s_cmp_lg_u32 s%d, 0' % sSp); A('s_cbranch_scc1 %s' % Ld)
    A('v_cmp_gt_u32 vcc, s%d, v0' % sCnt)
    A('s_mov_b64 s[%d:%d], vcc' % (sMsk, sMsk + 1))
    A('v_lshlrev_b32 v250, 2, v0')
    A('s_mov_b32 s%d, 0' % sSp)
    A('s_mov_b64 exec, s[%d:%d]' % (sMsk, sMsk + 1))
    A.label(Ll)
    A('buffer_load_dword v251, v250, s[8:11], s%d offen sc1' % sDep)
    A('s_add_u32 s%d, s%d, 1' % (sSp, sSp)); A('s_cmp_gt_u32 s%d, %d' % (sSp, SPIN)); A('s_cbranch_scc1 worker_abort')
    A('s_waitcnt vmcnt(0)')
    A('v_cmp_eq_u32 vcc, 0, v251')
    A('s_cbranch_vccz %s_ok' % Ll)
    A('s_sleep 4'); A('s_branch %s' % Ll)
    A.label(Ll + '_ok')
    A('s_mov_b64 exec, -1')
    A.label(Ld)
    A('s_barrier')
    if TRACE[0]: A('s_memrealtime s[100:101]')

def signal_flag(A):
    A('s_waitcnt vmcnt(0)')
    A('s_barrier')
    L = A.uid('sf')
    A('v_cmp_eq_u32 vcc, 0, v0')
    A('s_and_saveexec_b64 s[%d:%d], vcc' % (sMsk, sMsk + 1))
    A('s_cbranch_execz %s' % L)
    A('v_mov_b32 v250, 0'); A('v_mov_b32 v251, 1')
    A('buffer_store_dword v251, v250, s[8:11], s%d offen sc1' % sFlag)
    A.label(L)
    A('s_mov_b64 exec, s[%d:%d]' % (sMsk, sMsk + 1))

def kvwait(A, seg_sreg, issue_only=False, check_only=False):
    c = chain
    def addr():
        A('s_lshr_b32 s%d, s%d, 2' % (c.sT0, seg_sreg)); A('s_mul_i32 s%d, s%d, 384' % (c.sT0, c.sT0))
        A('s_lshl_b32 s%d, s%d, 2' % (c.sT1, c.sH)); A('s_add_u32 s%d, s%d, s%d' % (c.sT0, c.sT0, c.sT1))
        A('s_add_u32 s%d, s%d, %d' % (c.sT0, c.sT0, FQKV + 128)); A('v_mov_b32 v125, 0')
    def loads():
        A('buffer_load_dword v126, v125, s[8:11], s%d offen sc1' % c.sT0)
        A('buffer_load_dword v127, v125, s[8:11], s%d offen offset:128 sc1' % c.sT0)
    if issue_only:
        addr(); loads(); return
    L = A.uid('kv'); Lok = A.uid('kvok')
    if check_only:
        A('v_and_b32 v126, v126, v127'); A('v_cmp_eq_u32 vcc, 0, v126'); A('s_cbranch_vccz %s' % Lok)
    addr()
    A('s_mov_b32 s%d, 0' % c.sSPIN)
    A.label(L)
    loads()
    A('s_add_u32 s%d, s%d, 1' % (c.sSPIN, c.sSPIN)); A('s_cmp_gt_u32 s%d, %d' % (c.sSPIN, SPIN)); A('s_cbranch_scc1 chain_abort')
    A('s_waitcnt vmcnt(0)')
    A('v_and_b32 v126, v126, v127'); A('v_cmp_eq_u32 vcc, 0, v126'); A('s_cbranch_vccnz %s' % L)
    A.label(Lok)

def gen(intra='', chain_kw=None, trace=0, coop=1, wake=56):
    coop = int(coop); trace = int(trace); TRACE[0] = trace; wake = int(wake)
    A = Asm()
    G = GemmBS(A, 128, stamps=bool(trace))
    GS = GemmBS(A, SBM, stamps=bool(trace))
    A.raw('; @launch kernel=prep_kernel grid=(256,1,1) block=(256,1,1) lds=0')
    A.raw('; @launch kernel=main_kernel grid=(256,1,1) block=(256,1,1) lds=163840')
    A.raw('.amdgcn_target "amdgcn-amd-amdhsa--gfx950"')
    A.raw('.text')
    kernel_header(A, 'prep_kernel')
    A('s_cmp_ge_u32 s2, 256'); A('s_cbranch_scc1 L_exit_prep')
    A('s_load_dwordx2 s[4:5], s[0:1], %d' % D_WS)
    A('s_waitcnt lgkmcnt(0)')
    A('s_mov_b32 s8, s4'); A('s_mov_b32 s9, s5'); A('s_mov_b32 s10, %d' % WS_SIZE); A('s_mov_b32 s11, 0x00020000')
    mk_srd(A, SRD_R, A_X, 4 * MB)
    A('s_lshl_b32 s%d, s2, 3' % sRow)
    unit_ln1(A)
    A('v_mov_b32 v8, 0'); A('v_mov_b32 v9, 0'); A('v_mov_b32 v10, 0'); A('v_mov_b32 v11, 0')
    A('v_lshlrev_b32 v12, 4, v0')
    A('s_cmp_ge_u32 s2, 32'); A('s_cbranch_scc1 L_z1')
    A('s_lshl_b32 s%d, s2, 12' % sT0); A('s_add_u32 s%d, s%d, %d' % (sT0, sT0, FLG_SEG))
    A('buffer_store_dwordx4 v[8:11], v12, s[8:11], s%d offen' % sT0)
    A.label('L_z1')
    A('s_cmp_lg_u32 s2, 32'); A('s_cbranch_scc1 L_z2')
    A('s_mov_b32 s%d, %d' % (sT0, GB0)); A('buffer_store_dwordx4 v[8:11], v12, s[8:11], s%d offen' % sT0)
    A('s_mov_b32 s%d, %d' % (sT0, GB + 2048 * 2048)); A('buffer_store_dwordx4 v[8:11], v12, s[8:11], s%d offen' % sT0)
    A.label('L_z2')
    A.label('L_exit_prep')
    A('s_endpgm')
    kernel_header(A, 'main_kernel')
    A('s_cmp_ge_u32 s2, 256'); A('s_cbranch_scc1 L_exit_main')
    A('s_load_dwordx2 s[4:5], s[0:1], %d' % D_WS)
    A('s_load_dwordx2 s[6:7], s[0:1], %d' % D_DBG)
    A('s_getreg_b32 s16, hwreg(HW_REG_XCC_ID)')
    A('s_and_b32 s16, s16, 15')
    A('s_waitcnt lgkmcnt(0)')
    A('s_mov_b32 s8, s4'); A('s_mov_b32 s9, s5'); A('s_mov_b32 s10, %d' % WS_SIZE); A('s_mov_b32 s11, 0x00020000')
    A('v_cmp_eq_u32 vcc, 0, v0'); A('s_and_saveexec_b64 s[20:21], vcc'); A('s_cbranch_execz L_nt')
    A('s_lshl_b32 s17, s16, 2'); A('v_mov_b32 v1, s17'); A('v_mov_b32 v2, 1')
    A('global_atomic_add v3, v1, v2, s[6:7] sc0 sc1'); A('s_waitcnt vmcnt(0)')
    A('v_mov_b32 v1, 0'); A('ds_write_b32 v1, v3'); A('s_waitcnt lgkmcnt(0)')
    A.label('L_nt')
    A('s_mov_b64 exec, s[20:21]'); A('s_barrier')
    A('v_mov_b32 v1, 0'); A('ds_read_b32 v3, v1'); A('s_waitcnt lgkmcnt(0)'); A('v_readfirstlane_b32 s17, v3'); A('s_barrier')
    A('s_cmp_ge_u32 s17, 32'); A('s_cbranch_scc1 L_exit_main')
    A('s_cmp_ge_u32 s16, 2'); A('s_cbranch_scc1 worker')
    chain.gen_chain(A, intra=intra, kvwait=kvwait, finish='chain_to_worker', **(chain_kw or {}))
    A.label('chain_to_worker')
    A('v_mbcnt_lo_u32_b32 v0, -1, 0'); A('v_mbcnt_hi_u32_b32 v0, -1, v0')
    A('s_lshl_b32 s%d, s%d, 6' % (44, chain.sW)); A('v_add_u32 v0, s44, v0')
    A('s_add_u32 s%d, s%d, 6' % (sXW, chain.sX)); A('s_mov_b32 s%d, s%d' % (sTK, chain.sC))
    A('s_mov_b32 s%d, 8' % sIt)
    for n in (SRD_A, SRD_B, SRD_C, SRD_R): ws_srd(A, n)
    A('s_mov_b32 s%d, 0' % sChunk)
    A('s_barrier')
    A('s_branch streams')
    A.label('worker')
    A('s_sub_u32 s%d, s16, 2' % sXW); A('s_mov_b32 s%d, s17' % sTK)
    A('s_cmp_ge_u32 s%d, 6' % sXW); A('s_cbranch_scc1 L_exit_main')
    A('s_mov_b32 s%d, 0' % sIt)
    for n in (SRD_A, SRD_B, SRD_C, SRD_R): ws_srd(A, n)
    A('s_mov_b32 s%d, 0' % sS0); A('s_mov_b32 s%d, 0' % sS1); A('s_mov_b32 s%d, 0' % sS2); A('s_mov_b32 s%d, 0' % sChunk)
    A.label('qkv_next')
    A('s_cmp_ge_u32 s%d, 8' % sIt); A('s_cbranch_scc1 streams')
    A('s_lshr_b32 s%d, s%d, 4' % (sRB, sTK)); A('s_lshl_b32 s%d, s%d, 1' % (sT0, sIt)); A('s_add_u32 s%d, s%d, s%d' % (sRB, sRB, sT0))
    A('s_and_b32 s%d, s%d, 15' % (sT1, sTK))
    A('s_cmp_lt_u32 s%d, 4' % sXW); A('s_cselect_b32 s%d, 11, 10' % sT2)
    A('s_cmp_lt_u32 s%d, s%d' % (sT1, sT2)); A('s_cbranch_scc0 qkv_q')
    A('s_mul_i32 s%d, s%d, 6' % (sT3, sT1)); A('s_add_u32 s%d, s%d, s%d' % (sT3, sT3, sXW))
    A('s_lshr_b32 s%d, s%d, 5' % (sKS, sT3)); A('s_add_u32 s%d, s%d, 1' % (sKS, sKS)); A('s_and_b32 s%d, s%d, 31' % (sNT, sT3))
    A('s_branch qkv_go')
    A.label('qkv_q')
    A('s_sub_u32 s%d, s%d, s%d' % (sT3, sT1, sT2)); A('s_mul_i32 s%d, s%d, 5' % (sT4, sXW))
    A('s_sub_u32 s%d, s%d, 4' % (sT5, sXW)); A('s_mul_i32 s%d, s%d, 6' % (sT5, sT5)); A('s_add_u32 s%d, s%d, 20' % (sT5, sT5))
    A('s_cmp_lt_u32 s%d, 4' % sXW); A('s_cselect_b32 s%d, s%d, s%d' % (sT4, sT4, sT5))
    A('s_add_u32 s%d, s%d, s%d' % (sNT, sT3, sT4)); A('s_mov_b32 s%d, 0' % sKS)
    A.label('qkv_go')
    A('s_add_u32 s%d, s%d, 1' % (sIt, sIt))
    A('s_lshl_b32 s%d, s%d, 3' % (sT0, sKS)); A('s_add_u32 s%d, s%d, %d' % (sT0, sT0, A_WQ))
    A('s_load_dwordx2 s[%d:%d], s[0:1], s%d' % (SRD_B, SRD_B + 1, sT0))
    A('s_mov_b32 s%d, %d' % (SRD_B + 2, 8 * MB)); A('s_mov_b32 s%d, 0x00020000' % (SRD_B + 3))
    ws_srd(A, SRD_A); ws_srd(A, SRD_C)
    gemm_params(A, 2048, 8192, 8192, 16, 0)
    A('s_mul_i32 s%d, s%d, %d' % (sAoff, sRB, BM * 2048)); A('s_add_u32 s%d, s%d, %d' % (sAoff, sAoff, XLN))
    A('s_lshl_b32 s%d, s%d, 8' % (sBoff, sNT))
    A('s_mul_i32 s%d, s%d, %d' % (sCoff, sRB, BM * 8192)); A('s_add_u32 s%d, s%d, s%d' % (sCoff, sCoff, sBoff))
    A('s_lshl_b32 s%d, s%d, 24' % (sT0, sKS)); A('s_add_u32 s%d, s%d, s%d' % (sCoff, sCoff, sT0)); A('s_add_u32 s%d, s%d, %d' % (sCoff, sCoff, QX))
    A('s_mul_i32 s%d, s%d, 3' % (sT0, sRB)); A('s_add_u32 s%d, s%d, s%d' % (sT0, sT0, sKS))
    A('s_lshl_b32 s%d, s%d, 5' % (sT0, sT0)); A('s_add_u32 s%d, s%d, s%d' % (sT0, sT0, sNT))
    A('s_lshl_b32 s%d, s%d, 2' % (sT0, sT0)); A('s_add_u32 s%d, s%d, %d' % (sFlag, sT0, FQKV))
    A('s_mov_b32 s%d, 1' % sItem)
    A('s_and_b32 s%d, s%d, 15' % (sShI, sTK)); A('s_mov_b32 s%d, 8' % sShR)
    if trace:
        A('s_lshl_b32 s%d, s%d, 5' % (sQi, sXW)); A('s_add_u32 s%d, s%d, s%d' % (sQi, sQi, sTK)); A('s_lshl_b32 s%d, s%d, 3' % (sQi, sQi))
        A('s_add_u32 s%d, s%d, s%d' % (sQi, sQi, sIt)); A('s_add_u32 s%d, s%d, 22527' % (sQi, sQi))
        A('s_memrealtime s[98:99]'); A('s_memrealtime s[100:101]')
    A('s_waitcnt lgkmcnt(0)')
    A('s_cmp_lg_u32 s%d, 1' % sIt); A('s_cbranch_scc1 gemm_run')
    G.load_b()
    A('s_branch gemm_run')

    def decode(src):
        A('s_bfe_u32 s%d, s%d, 0x60016' % (sRB, src)); A('s_bfe_u32 s%d, s%d, 0x50011' % (sNT, src)); A('s_bfe_u32 s%d, s%d, 0x3000e' % (sKS, src))
        A('s_bfe_u32 s%d, s%d, 0x60008' % (sK0, src)); A('s_bfe_u32 s%d, s%d, 0x50003' % (sNKi, src))
    def blk_rows():
        A('s_lshl_b32 s%d, s%d, 6' % (sRow0, sRB)); A('s_mov_b32 s%d, 0' % sBig)
    def own(base, code):
        code(); A('s_lshl_b32 s%d, s%d, 2' % (sT0, sT0)); A('s_add_u32 s%d, s%d, %d' % (sFlag, sT0, base))
    def btouch():
        A('v_and_b32 v200, 63, v0'); A('v_lshrrev_b32 v201, 6, v0')
        A('v_lshrrev_b32 v202, 1, v200'); A('v_lshl_add_u32 v202, v201, 8, v202')
        A('v_and_b32 v203, 1, v200'); A('v_lshlrev_b32 v203, 7, v203')
        A('s_lshl_b32 s%d, s%d, 6' % (sT4, sNk)); A('v_mov_b32 v206, 0x7ff00000')
        for j in range(8):
            A('v_add_u32 v204, %d, v202' % (32 * j)); A('v_mul_lo_u32 v205, v204, s%d' % sLdb); A('v_add_u32 v205, v205, v203')
            A('v_cmp_gt_u32 vcc, s%d, v204' % sT4); A('s_nop 1'); A('v_cndmask_b32 v205, v206, v205, vcc')
            A('buffer_load_dword v%d, v205, %s, s%d offen' % (208 + j, srd(SRD_B), sBoff))
    types = {
        T_O: dict(split=True, ownbase=FO, abuf=OX, lda=8192, bk=A_WO, bs=8 * MB, ldb=2048, p=PO),
        T_W4: dict(split=True, ownbase=FW4, abuf=UB, lda=7168, bk=B_W4, bs=7 * MB, ldb=2048, p=P4),
        T_W1: dict(split=False, ownbase=FW1, ostr=8, abuf=ZB, bk=B_W1, bs=2 * MB, ldb=2048, c=GB, ldc=2048, mode=1),
        T_W2: dict(split=False, ownbase=FW2, ostr=8, abuf=GB - 2048, bk=B_W2, bs=2 * MB, ldb=2048, c=X1B, ldc=2048, mode=2, shift=1, resid=YB),
        T_W3: dict(split=False, ownbase=FW3, ostr=32, abuf=Z2B, bk=B_W3, bs=7 * MB, ldb=7168, c=UB, ldc=7168, mode=1),
    }
    def gemm_setup(ty):
        d = types[ty]
        mk_srd(A, SRD_B, d['bk'], d['bs']); ws_srd(A, SRD_A); ws_srd(A, SRD_C); ws_srd(A, SRD_R)
        if d['split']:
            own(d['ownbase'], lambda: (A('s_lshl_b32 s%d, s%d, 6' % (sT0, sRB)), A('s_lshl_b32 s%d, s%d, 3' % (sT1, sKS)), A('s_add_u32 s%d, s%d, s%d' % (sT0, sT0, sT1)), A('s_add_u32 s%d, s%d, s%d' % (sT0, sT0, sNT))))
            gemm_params(A, d['lda'], d['ldb'], 2048, 0, 0)
            A('s_mov_b32 s%d, s%d' % (sNk, sNKi)); A('s_mov_b32 s%d, s%d' % (sShI, sNT)); A('s_mov_b32 s%d, 16' % sShR)
            A('s_mul_i32 s%d, s%d, %d' % (sAoff, sRow0, d['lda'])); A('s_lshl_b32 s%d, s%d, 7' % (sT0, sK0)); A('s_add_u32 s%d, s%d, s%d' % (sAoff, sAoff, sT0))
            A('s_add_u32 s%d, s%d, %d' % (sAoff, sAoff, d['abuf']))
            A('s_mul_i32 s%d, s%d, %d' % (sBoff, sK0, 64 * d['ldb'])); A('s_lshl_b32 s%d, s%d, 8' % (sT0, sNT)); A('s_add_u32 s%d, s%d, s%d' % (sBoff, sBoff, sT0))
            A('s_lshl_b32 s%d, s%d, 11' % (sCoff, sRow0)); A('s_add_u32 s%d, s%d, s%d' % (sCoff, sCoff, sT0))
            A('s_lshl_b32 s%d, s%d, 22' % (sT0, sKS)); A('s_add_u32 s%d, s%d, s%d' % (sCoff, sCoff, sT0)); A('s_add_u32 s%d, s%d, %d' % (sCoff, sCoff, d['p']))
        else:
            own(d['ownbase'], lambda: (A('s_mul_i32 s%d, s%d, %d' % (sT0, sRB, d['ostr'])), A('s_add_u32 s%d, s%d, s%d' % (sT0, sT0, sNT))))
            gemm_params(A, 2048, d['ldb'], d['ldc'], 16, d['mode'], d.get('shift', 0))
            A('s_mov_b32 s%d, s%d' % (sShI, sK0)); A('s_cmp_eq_u32 s%d, 7' % sNKi); A('s_cselect_b32 s%d, 19, 16' % sShR)
            A('s_lshl_b32 s%d, s%d, 11' % (sAoff, sRow0)); A('s_add_u32 s%d, s%d, %d' % (sAoff, sAoff, d['abuf']))
            A('s_lshl_b32 s%d, s%d, 8' % (sBoff, sNT))
            A('s_mul_i32 s%d, s%d, %d' % (sCoff, sRow0, d['ldc'])); A('s_add_u32 s%d, s%d, s%d' % (sCoff, sCoff, sBoff))
            if 'resid' in d: A('s_add_u32 s%d, s%d, %d' % (sRoff, sCoff, d['resid']))
            A('s_add_u32 s%d, s%d, %d' % (sCoff, sCoff, d['c']))

    TB = build_table()
    A.label('streams')
    A('s_getpc_b64 s[%d:%d]' % (sTab, sTab + 1))
    A.label('q_pc')
    A('s_add_u32 s%d, s%d, qtable-q_pc' % (sTab, sTab)); A('s_addc_u32 s%d, s%d, 0' % (sTab + 1, sTab + 1))
    A('s_lshl_b32 s%d, s%d, 5' % (sT0, sXW)); A('s_add_u32 s%d, s%d, s%d' % (sT0, sT0, sTK)); A('s_lshl_b32 s%d, s%d, 4' % (sT0, sT0))
    A('s_load_dword s%d, s[%d:%d], s%d' % (sS0, sTab, sTab + 1, sT0))
    A('s_add_u32 s%d, s%d, 4' % (sT1, sT0)); A('s_load_dword s%d, s[%d:%d], s%d' % (sS1, sTab, sTab + 1, sT1))
    A('s_add_u32 s%d, s%d, 8' % (sT2, sT0)); A('s_load_dword s%d, s[%d:%d], s%d' % (sS2, sTab, sTab + 1, sT2))
    A('s_waitcnt lgkmcnt(0)')
    A('s_lshr_b32 s%d, s%d, 28' % (sT2, sS0))
    A('s_cmp_eq_u32 s%d, %d' % (sT2, T_ATT)); A('s_cbranch_scc1 att_loop')
    A('s_cmp_eq_u32 s%d, %d' % (sT2, T_ROWLOOP)); A('s_cbranch_scc1 u_rowloop')
    A.label('ms_next')
    A('s_cmp_lg_u32 s%d, 0' % sS0); A('s_cbranch_scc1 ms_have')
    A('s_mov_b32 s%d, s%d' % (sS0, sS1)); A('s_mov_b32 s%d, s%d' % (sS1, sS2)); A('s_mov_b32 s%d, 0' % sS2)
    A('s_or_b32 s%d, s%d, s%d' % (sT0, sS0, sS1)); A('s_cmp_eq_u32 s%d, 0' % sT0); A('s_cbranch_scc1 L_exit_main')
    A('s_branch ms_next')
    A.label('ms_have')
    decode(sS0); blk_rows()
    A('s_lshr_b32 s%d, s%d, 28' % (sT5, sS0))
    for ty in types:
        Lt = A.uid('mt')
        A('s_cmp_lg_u32 s%d, %d' % (sT5, ty)); A('s_cbranch_scc1 %s' % Lt)
        gemm_setup(ty)
        A.label(Lt)
    G.load_b()
    A.label('ms_top')
    A('s_cmp_eq_u32 s%d, 0' % sS0); A('s_cbranch_scc1 ms_next')
    A('s_bfe_u32 s%d, s%d, 0x60016' % (sT0, sS0)); A('s_lshr_b32 s%d, s%d, 28' % (sT5, sS0))
    A('s_mov_b32 s%d, 16' % sCnt)
    A('s_lshl_b32 s%d, s%d, 7' % (sT2, sT0))
    A('s_add_u32 s%d, s%d, %d' % (sDep, sT2, FATT))
    A('s_add_u32 s%d, s%d, %d' % (sT3, sT2, FR1)); A('s_cmp_eq_u32 s%d, %d' % (sT5, T_W1)); A('s_cselect_b32 s%d, s%d, s%d' % (sDep, sT3, sDep))
    A('s_add_u32 s%d, s%d, %d' % (sT3, sT2, FR2)); A('s_cmp_eq_u32 s%d, %d' % (sT5, T_W3)); A('s_cselect_b32 s%d, s%d, s%d' % (sDep, sT3, sDep))
    A('s_add_u32 s%d, s%d, %d' % (sT3, sT2, FW3)); A('s_cmp_eq_u32 s%d, %d' % (sT5, T_W4)); A('s_cselect_b32 s%d, s%d, s%d' % (sDep, sT3, sDep)); A('s_cselect_b32 s%d, 28, s%d' % (sCnt, sCnt))
    Lw2 = A.uid('m2')
    A('s_cmp_lg_u32 s%d, %d' % (sT5, T_W2)); A('s_cbranch_scc1 %s' % Lw2)
    A('s_sub_u32 s%d, s%d, 1' % (sT2, sT0)); A('s_cmp_eq_u32 s%d, 0' % sT0); A('s_cselect_b32 s%d, 0, s%d' % (sT2, sT2))
    A('s_add_u32 s%d, s%d, 1' % (sT3, sT0)); A('s_cmp_eq_u32 s%d, %d' % (sT0, NB - 1)); A('s_cselect_b32 s%d, s%d, s%d' % (sT3, sT0, sT3))
    A('s_sub_u32 s%d, s%d, s%d' % (sT3, sT3, sT2)); A('s_add_u32 s%d, s%d, 1' % (sT3, sT3)); A('s_lshl_b32 s%d, s%d, 3' % (sCnt, sT3))
    A('s_lshl_b32 s%d, s%d, 5' % (sT2, sT2)); A('s_add_u32 s%d, s%d, %d' % (sDep, sT2, FW1))
    A.label(Lw2)
    A('s_mov_b32 s%d, s%d' % (sItem, sS0))
    A('s_add_u32 s%d, s%d, %d' % (sS0, sS0, 1 << 22)); A('s_bfe_u32 s%d, s%d, 0x60016' % (sT0, sS0))
    A('s_and_b32 s%d, s%d, 7' % (sT1, sS0)); A('s_add_u32 s%d, s%d, %d' % (sT1, sT1, NBIG))
    A('s_cmp_eq_u32 s%d, s%d' % (sT0, sT1)); A('s_cselect_b32 s%d, 0, s%d' % (sS0, sS0))
    decode(sItem); blk_rows()
    A('s_lshr_b32 s%d, s%d, 28' % (sT5, sItem))
    if trace:
        A('s_lshl_b32 s%d, s%d, 11' % (sQi, sT5)); A('s_mul_i32 s%d, s%d, 48' % (sT0, sRB)); A('s_add_u32 s%d, s%d, s%d' % (sQi, sQi, sT0))
        A('s_lshl_b32 s%d, s%d, 3' % (sT0, sKS)); A('s_add_u32 s%d, s%d, s%d' % (sQi, sQi, sT0)); A('s_add_u32 s%d, s%d, s%d' % (sQi, sQi, sNT))
        A('s_memrealtime s[98:99]')
    A('s_mov_b32 s%d, 0' % sItem)
    for ty in types:
        Lt = A.uid('mr')
        A('s_cmp_lg_u32 s%d, %d' % (sT5, ty)); A('s_cbranch_scc1 %s' % Lt)
        gemm_setup(ty)
        A.label(Lt)
    GS.setup(); wait_flags(A); A('s_branch gemm_main_s')

    A.label('att_loop')
    A('s_bfe_u32 s%d, s%d, 0x50011' % (sChunk, sS0))
    sAS = sD1
    A('s_lshr_b32 s%d, s%d, 3' % (sAS, sChunk))
    A.label('att_next')
    A('s_cmp_ge_u32 s%d, 64' % sAS); A('s_cbranch_scc1 att_fin')
    A('s_mov_b32 s%d, s%d' % (sRB, sAS)); A('s_and_b32 s%d, s%d, 7' % (sNT, sChunk)); A('s_add_u32 s%d, s%d, 2' % (sAS, sAS))
    if trace:
        A('s_lshl_b32 s%d, s%d, 3' % (sQi, sRB)); A('s_add_u32 s%d, s%d, s%d' % (sQi, sQi, sNT)); A('s_add_u32 s%d, s%d, 2048' % (sQi, sQi))
        A('s_memrealtime s[98:99]')
    wave_id(A, sSp)
    Lad = A.uid('ad'); Lap = A.uid('ap')
    A('s_cmp_lg_u32 s%d, 0' % sSp); A('s_cbranch_scc1 %s' % Lad)
    A('s_lshr_b32 s%d, s%d, 2' % (sT5, sRB)); A('s_mul_i32 s%d, s%d, 384' % (sT0, sT5)); A('s_lshl_b32 s%d, s%d, 4' % (sT1, sNT)); A('s_add_u32 s%d, s%d, s%d' % (sT0, sT0, sT1))
    A('s_add_u32 s%d, s%d, %d' % (sT0, sT0, FQKV))
    A('v_lshrrev_b32 v248, 2, v0'); A('v_lshlrev_b32 v248, 7, v248'); A('v_and_b32 v249, 3, v0'); A('v_lshl_add_u32 v248, v249, 2, v248'); A('v_add_u32 v248, s%d, v248' % sT0)
    A('s_lshl_b32 s%d, s%d, 10' % (sT0, sRB)); A('s_lshl_b32 s%d, s%d, 7' % (sT1, sNT)); A('s_add_u32 s%d, s%d, s%d' % (sT0, sT0, sT1)); A('s_add_u32 s%d, s%d, %d' % (sT0, sT0, FLG_SEG - 128))
    A('v_lshlrev_b32 v249, 2, v0'); A('v_add_u32 v249, s%d, v249' % sT0)
    A('v_cmp_gt_u32 vcc, 32, v0'); A('s_nop 1'); A('v_cndmask_b32 v250, v249, v248, vcc')
    A('s_mov_b32 s%d, 0xfff' % sMsk); A('s_mov_b32 s%d, -1' % (sMsk + 1)); A('s_mov_b64 exec, s[%d:%d]' % (sMsk, sMsk + 1))
    A('s_mov_b32 s%d, 0' % sSp)
    A.label(Lap)
    A('buffer_load_dword v251, v250, s[8:11], 0 offen sc1')
    A('s_add_u32 s%d, s%d, 1' % (sSp, sSp)); A('s_cmp_gt_u32 s%d, %d' % (sSp, SPIN)); A('s_cbranch_scc1 worker_abort')
    A('s_waitcnt vmcnt(0)')
    A('v_cmp_eq_u32 vcc, 0, v251'); A('s_cbranch_vccz %s_ok' % Lap)
    A('s_sleep 2'); A('s_branch %s' % Lap)
    A.label(Lap + '_ok')
    A('s_mov_b64 exec, -1')
    A.label(Lad)
    A('s_barrier')
    if trace: A('s_memrealtime s[100:101]')
    def code():
        A('s_lshr_b32 s%d, s%d, 1' % (sT0, sRB)); A('s_lshl_b32 s%d, s%d, 5' % (sT0, sT0))
        A('s_and_b32 s%d, s%d, 1' % (sT1, sRB)); A('s_lshl_b32 s%d, s%d, 3' % (sT1, sT1)); A('s_add_u32 s%d, s%d, s%d' % (sT0, sT0, sT1))
        A('s_add_u32 s%d, s%d, s%d' % (sT0, sT0, sNT))
    own(FATT, code)
    A('s_mov_b32 s%d, s%d' % (sSeg, sRB)); A('s_lshl_b32 s%d, s%d, 2' % (sHead, sNT))
    A('s_mov_b32 s%d, 3' % sItem)
    unit_att(A)
    A('s_branch unit_done')

    A.label('att_fin')
    A('s_mov_b32 s%d, 0' % sS0)
    A('s_branch ms_next')
    sN1, sN2, sN3 = sS0, sS1, sS2
    A.label('u_rowloop')
    A('s_bfe_u32 s%d, s%d, 0x50011' % (sChunk, sS0))
    A('s_mov_b32 s%d, 0' % sN1); A('s_mov_b32 s%d, 0' % sN2); A('s_mov_b32 s%d, 0' % sN3)
    A.label('rl_top')
    A('s_cmp_ge_u32 s%d, 16' % sN3); A('s_cbranch_scc1 L_exit_main')
    wave_id(A, sSp)
    A('s_cmp_lg_u32 s%d, 0' % sSp); A('s_cbranch_scc1 rl_wait')
    A('v_lshlrev_b32 v250, 2, v0'); A('s_mov_b32 s%d, 0' % sSp)
    A.label('rl_poll')
    A('s_lshr_b32 s%d, s%d, 4' % (sT1, sChunk))
    for reg, base, sh, n_ in ((247, FO, 8, sN1), (248, FW2, 5, sN2), (249, FW4, 8, sN3)):
        A('s_min_u32 s%d, s%d, 15' % (sT0, n_)); A('s_lshl_b32 s%d, s%d, 1' % (sT0, sT0)); A('s_add_u32 s%d, s%d, s%d' % (sT0, sT0, sT1))
        A('s_lshl_b32 s%d, s%d, %d' % (sT0, sT0, sh)); A('s_add_u32 s%d, s%d, %d' % (sT0, sT0, base))
        A('buffer_load_dword v%d, v250, s[8:11], s%d offen sc1' % (reg, sT0))
    A('s_add_u32 s%d, s%d, 1' % (sSp, sSp)); A('s_cmp_gt_u32 s%d, %d' % (sSp, SPIN)); A('s_cbranch_scc1 worker_abort')
    A('s_waitcnt vmcnt(0)')
    A('s_mov_b32 s%d, 0' % sT5)
    for code_, reg, cnt, n_ in ((1, 247, 48, sN1), (2, 248, 8, sN2), (3, 249, 48, sN3)):
        Ln = A.uid('rn')
        A('s_cmp_lg_u32 s%d, 0' % sT5); A('s_cbranch_scc1 %s' % Ln)
        A('s_cmp_ge_u32 s%d, 16' % n_); A('s_cbranch_scc1 %s' % Ln)
        A('v_cmp_eq_u32 vcc, 0, v%d' % reg)
        if cnt == 48: A('s_and_b32 vcc_hi, vcc_hi, 0xffff')
        else: A('s_and_b32 vcc_lo, vcc_lo, 0xff'); A('s_mov_b32 vcc_hi, 0')
        A('s_cmp_lg_u64 vcc, 0'); A('s_cbranch_scc1 %s' % Ln)
        A('s_mov_b32 s%d, %d' % (sT5, code_))
        A.label(Ln)
    A('s_cmp_lg_u32 s%d, 0' % sT5); A('s_cbranch_scc1 rl_got')
    A('s_sleep 2'); A('s_branch rl_poll')
    A.label('rl_got')
    A('v_mov_b32 v250, 163832'); A('v_mov_b32 v251, s%d' % sT5); A('s_mov_b64 exec, 1'); A('ds_write_b32 v250, v251'); A('s_mov_b64 exec, -1'); A('s_waitcnt lgkmcnt(0)')
    A.label('rl_wait')
    A('s_barrier')
    A('v_mov_b32 v250, 163832'); A('ds_read_b32 v251, v250'); A('s_waitcnt lgkmcnt(0)'); A('v_readfirstlane_b32 s%d, v251' % sT5)
    A('s_barrier')
    if trace: A('s_memrealtime s[98:99]'); A('s_memrealtime s[100:101]')
    A('s_mov_b32 s%d, 2' % sItem)
    for c_ in (2, 3):
        A('s_cmp_eq_u32 s%d, %d' % (sT5, c_)); A('s_cbranch_scc1 rl_%d' % c_)
    def pick(n_, T_, lab):
        A('s_lshl_b32 s%d, s%d, 1' % (sRB, n_)); A('s_lshr_b32 s%d, s%d, 4' % (sT1, sChunk)); A('s_add_u32 s%d, s%d, s%d' % (sRB, sRB, sT1)); A('s_and_b32 s%d, s%d, 15' % (sNT, sChunk))
        if trace:
            A('s_mul_i32 s%d, s%d, 48' % (sQi, sRB)); A('s_add_u32 s%d, s%d, s%d' % (sQi, sQi, sNT)); A('s_add_u32 s%d, s%d, %d' % (sQi, sQi, T_ * 2048))
        A('s_add_u32 s%d, s%d, 1' % (n_, n_)); blk_rows(); A('s_branch %s' % lab)
    pick(sN1, T_R1, 'u_r1')
    A.label('rl_2'); pick(sN2, T_R2, 'u_r2')
    A.label('rl_3'); pick(sN3, T_R3, 'u_r3')
    def rowu(lab, ownbase, fn, pre=None):
        A.label(lab)
        if ownbase is not None:
            own(ownbase, lambda: (A('s_lshl_b32 s%d, s%d, 5' % (sT0, sRB)), A('s_add_u32 s%d, s%d, s%d' % (sT0, sT0, sNT))))
        if pre: pre()
        A('s_lshl_b32 s%d, s%d, 2' % (sT0, sNT)); A('s_add_u32 s%d, s%d, s%d' % (sRow, sRow0, sT0))
        fn(A)
        A('s_branch %s' % ('unit_done' if ownbase is not None else 'unit_nosig'))
    rowu('u_r1', FR1, unit_r1, lambda: mk_srd(A, SRD_R, A_X, 4 * MB))
    rowu('u_r2', FR2, unit_r2)
    rowu('u_r3', None, unit_r3, lambda: mk_srd(A, SRD_C, D_OUT, 4 * MB))

    def epis(G_, sfx):
        A('s_cmp_eq_u32 s%d, 1' % sMode); A('s_cbranch_scc1 epi1%s' % sfx)
        A('s_cmp_eq_u32 s%d, 2' % sMode); A('s_cbranch_scc1 epi2%s' % sfx)
        G_.epi_bf16(); A('s_branch unit_done')
        A.label('epi1' + sfx); G_.epi_bf16(gelu=True); A('s_branch unit_done')
        A.label('epi2' + sfx); G_.epi_bf16(resid=True); A('s_branch unit_done')
    A.label('gemm_run')
    G.setup()
    A.label('gemm_main')
    G.mainloop()
    G.epi_bf16(); A('s_branch unit_done')
    A.label('gemm_main_s')
    GS.mainloop()
    epis(GS, 's')
    def trace_out():
        if trace:
            A('s_memrealtime s[68:69]'); A('s_waitcnt lgkmcnt(0)')
            Lt = A.uid('tr')
            A('v_cmp_eq_u32 vcc, 0, v0'); A('s_and_saveexec_b64 s[%d:%d], vcc' % (sMsk, sMsk + 1)); A('s_cbranch_execz %s' % Lt)
            A('v_mov_b32 v240, s98'); A('v_mov_b32 v241, s100'); A('v_mov_b32 v242, s66'); A('v_mov_b32 v243, s68')
            A('s_sub_u32 s%d, s62, s60' % sT1); A('s_sub_u32 s%d, s64, s62' % sT2)
            A('v_mov_b32 v244, s%d' % sT1); A('v_mov_b32 v245, s%d' % sT2); A('v_mov_b32 v246, 0'); A('v_mov_b32 v247, 0')
            A('s_lshl_b32 s%d, s%d, 5' % (sT0, sQi)); A('s_add_u32 s%d, s%d, %d' % (sT0, sT0, TRC)); A('v_mov_b32 v250, 0')
            A('buffer_store_dwordx4 v[240:243], v250, s[8:11], s%d offen' % sT0)
            A('buffer_store_dwordx4 v[244:247], v250, s[8:11], s%d offen offset:16' % sT0)
            A.label(Lt)
            A('s_mov_b64 exec, s[%d:%d]' % (sMsk, sMsk + 1))
    A.label('unit_done')
    if trace: A('s_memrealtime s[66:67]')
    signal_flag(A)
    trace_out()
    A('s_cmp_eq_u32 s%d, 1' % sItem); A('s_cbranch_scc1 qkv_next')
    A('s_cmp_eq_u32 s%d, 2' % sItem); A('s_cbranch_scc1 rl_top')
    A('s_cmp_eq_u32 s%d, 3' % sItem); A('s_cbranch_scc1 att_next')
    A('s_branch ms_top')
    A.label('unit_nosig')
    if trace: A('s_memrealtime s[66:67]')
    A('s_waitcnt vmcnt(0)'); A('s_barrier')
    trace_out()
    A('s_branch rl_top')
    A.label('worker_abort')
    A('s_mov_b64 exec, 1')
    A('v_mov_b32 v250, 1'); A('v_mov_b32 v251, 132')
    A('global_atomic_add v251, v250, s[6:7] sc1'); A('s_waitcnt vmcnt(0)')
    A.label('L_exit_main')
    A('s_endpgm')
    A.raw('.p2align 2')
    A.raw('.type qtable,@object')
    A.label('qtable')
    for x in range(8):
        for t in range(32):
            A.raw('    .long ' + ', '.join('0x%08x' % w for w in TB[x, t] + [0]))
    A.raw('.section .rodata,"a"')
    A.raw('.p2align 6'); kernel_desc(A, 'prep_kernel', vgpr=128, accum=128)
    A.raw('.p2align 6'); kernel_desc(A, 'main_kernel')
    return A.text()
if __name__ == '__main__':
    kw = {}
    for x in sys.argv[2:]:
        k, v = x.split('=')
        kw[k] = v
    ck = dict(rearly=int(kw.pop('rearly', 4)), vdefer=int(kw.pop('vdefer', 0)))
    if kw.get('trace'): ck['steptrace'] = True
    kw['chain_kw'] = ck
    open(sys.argv[1], 'w').write(gen(**kw))
```

```python
from asmlib import *
from layout import *
import struct, math

LDS_WO = 0
LDS_XB = 131072
LDS_XV = LDS_XB + 12288
LDS_RED = LDS_XB + 16384
LDS_KX = 151552
LDS_VX = 159744
LDS_CHAIN_END = 163840
SPIN_LIMIT = 1 << 22
RDELTA = PART - MEMB

SRD_WS = 8
SRD_T = 12
S_DBG = 6
sX, sC, sW, sH, sJ, sS = 16, 17, 18, 19, 20, 21
sMEMc, sMEMn, sMEMp, sQKc, sQKp, sOBc, sOBp, sMRc, sQKv, sKMs, sVMs, sFLo, sDMo, sMRp, sOBc2 = range(22, 37)
sT0, sT1, sT2, sT3 = 37, 38, 39, 40
sSPIN = 41
sHI, sN8 = 42, 44
sC_, sFE = 46, 47
sTM = 48
sLO32 = 54
sKMM = 58
sACC = 60
sRT = 80
sKMb, sVMb, sFLb, sQKb, sMEMb, sMRb, sOBb, sKXb, sVXb = range(86, 95)
OOBS = 0x70000000
OOBV = 0x7ff00000

def wreg(kl, mu, t):
    idx = kl * 12 + mu * 4 + t
    return 256 + idx * 8 if idx < 32 else 128 + (idx - 32) * 8

def gen_chain(A, intra='', timing=False, nsteps=64, d4=0, d6=0, d1=0, kvwait=None, looptime=False, steptrace=False, rpos=0, dbgwait=0, noflag=0, nokm=0, finish=None, rt=0, rearly=0, vdefer=1):
    I = intra
    def st(x): return (x + ' ' + I).rstrip()
    WS = 's[%d:%d]' % (SRD_WS, SRD_WS + 3)
    (vL16, vXq0, vXq1, vXq2, vXq3, vXqR, vXvW, vXvR, vQkSt, vQkLd, vQkL, vOSt, vIdx, vBias, vKx0, vKx1, vKx2, vKx3, vVx, vWoR,
     vKmSt, vVmSt, vD0, vD1, vD2, vD3, vPq, vPo, vPm, vRedW, vRedR, vFlg, vVM, vVM1, vOnes, vOnes1) = range(36)
    vXq = [vXq0, vXq1, vXq2, vXq3]; vKxD4 = [vD0, vD1, vD2, vD3]
    vT = 36
    W0 = 40
    vLane, vG, vN = 120, 121, 122
    t0, t1, t2, t3 = 123, 124, 125, 126
    A.c('=== chain v4 ===')
    A('v_and_b32 v%d, 63, v0' % vLane)
    A('v_lshrrev_b32 v%d, 6, v0' % t0)
    A('s_nop 0')
    A('v_readfirstlane_b32 s%d, v%d' % (sW, t0))
    A('v_lshrrev_b32 v%d, 4, v%d' % (vG, vLane))
    A('v_and_b32 v%d, 15, v%d' % (vN, vLane))
    A('s_lshr_b32 s%d, s%d, 1' % (sT0, sC))
    A('s_and_b32 s%d, s%d, 1' % (sJ, sC))
    A('s_lshl_b32 s%d, s%d, 4' % (sH, sX))
    A('s_add_u32 s%d, s%d, s%d' % (sH, sH, sT0))
    A('v_cmp_le_u32 s[%d:%d], 32, v%d' % (sHI, sHI + 1, vLane))
    A('v_cmp_gt_u32 s[%d:%d], 8, v%d' % (sN8, sN8 + 1, vN))
    cval = struct.unpack('<I', struct.pack('<f', (128 ** -0.5) * math.log2(math.e)))[0]
    A('s_mov_b32 s%d, 0x%08x' % (sC_, cval))
    A('s_mov_b32 s%d, 0xfffefffe' % sFE)
    A('s_mov_b32 s56, 0x%08x' % cval); A('s_mov_b32 s57, 0x%08x' % cval)
    A('s_mov_b32 s%d, -1' % sLO32); A('s_mov_b32 s%d, 0' % (sLO32 + 1))
    A('v_lshlrev_b32 v%d, 4, v%d' % (vL16, vLane))
    for t in range(4):
        A('s_sub_u32 s%d, s%d, %d' % (sT0, sW, t + 1)); A('s_and_b32 s%d, s%d, 3' % (sT0, sT0)); A('s_lshl_b32 s%d, s%d, 10' % (sT0, sT0))
        A('s_add_u32 s%d, s%d, %d' % (sT0, sT0, LDS_XB + t * 3072))
        A('v_add_u32 v%d, s%d, v%d' % (vXq[t], sT0, vL16))
    A('s_mul_i32 s%d, s%d, 3072' % (sT0, sW)); A('s_add_u32 s%d, s%d, %d' % (sT0, sT0, LDS_XB))
    A('v_add_u32 v%d, s%d, v%d' % (vXqR, sT0, vL16))
    A('s_lshl_b32 s%d, s%d, 11' % (sT0, sW)); A('s_add_u32 s%d, s%d, %d' % (sT0, sT0, LDS_XV))
    A('v_add_u32 v%d, s%d, v%d' % (vXvW, sT0, vL16))
    A('s_lshr_b32 s%d, s%d, 1' % (sT0, sW)); A('s_lshl_b32 s%d, s%d, 10' % (sT0, sT0))
    A('s_and_b32 s%d, s%d, 1' % (sT1, sW)); A('s_lshl_b32 s%d, s%d, 3' % (sT1, sT1))
    A('s_add_u32 s%d, s%d, s%d' % (sT0, sT0, sT1)); A('s_add_u32 s%d, s%d, %d' % (sT0, sT0, LDS_XV))
    A('v_add_u32 v%d, s%d, v%d' % (vXvR, sT0, vL16))
    A('s_lshl_b32 s%d, s%d, 15' % (sT0, sW))
    A('v_add_u32 v%d, s%d, v%d' % (vWoR, sT0, vL16))
    A('s_lshl_b32 s%d, s%d, 10' % (sT0, sW)); A('s_add_u32 s%d, s%d, %d' % (sT0, sT0, LDS_RED))
    A('v_lshlrev_b32 v%d, 8, v%d' % (vRedW, vG))
    A('v_lshl_add_u32 v%d, v%d, 2, v%d' % (vRedW, vN, vRedW))
    A('v_add_u32 v%d, s%d, v%d' % (vRedW, sT0, vRedW))
    A('v_lshrrev_b32 v%d, 2, v%d' % (t0, vN)); A('v_lshlrev_b32 v%d, 1, v%d' % (t0, t0)); A('v_and_b32 v%d, 1, v%d' % (t1, vN)); A('v_add_u32 v%d, v%d, v%d' % (t0, t0, t1))
    A('v_lshlrev_b32 v%d, 7, v%d' % (vRedR, t0))
    A('v_bfe_u32 v%d, v%d, 1, 1' % (t1, vN)); A('v_lshl_add_u32 v%d, v%d, 5, v%d' % (vRedR, t1, vRedR))
    A('v_bfe_u32 v%d, v%d, 4, 1' % (t1, vLane)); A('v_lshl_add_u32 v%d, v%d, 6, v%d' % (vRedR, t1, vRedR))
    A('v_add_u32 v%d, %d, v%d' % (vRedR, LDS_RED, vRedR))
    vRr = 119
    A('v_mov_b32 v%d, v%d' % (vRr, t0))
    A('v_and_b32 v%d, 7, v%d' % (t0, vN))
    A('v_lshrrev_b32 v%d, 3, v%d' % (t1, vN))
    A('v_lshlrev_b32 v%d, 7, v%d' % (vQkSt, t1))
    A('v_lshl_add_u32 v%d, v%d, 5, v%d' % (vQkSt, vG, vQkSt))
    A('v_lshl_add_u32 v%d, v%d, 1, v%d' % (vQkSt, t0, vQkSt))
    A('s_lshl_b32 s%d, s%d, 10' % (sT0, sJ)); A('s_lshl_b32 s%d, s%d, 8' % (sT1, sW)); A('s_add_u32 s%d, s%d, s%d' % (sT0, sT0, sT1))
    A('v_add_u32 v%d, s%d, v%d' % (vQkSt, sT0, vQkSt))
    A('v_lshlrev_b32 v%d, 7, v%d' % (vQkLd, vG))
    A('v_lshl_add_u32 v%d, v%d, 4, v%d' % (vQkLd, t0, vQkLd))
    A('v_add_u32 v%d, %d, v%d' % (vQkL, LDS_XB, vQkLd))
    A('v_lshlrev_b32 v%d, 7, v%d' % (vBias, vG)); A('v_lshl_add_u32 v%d, v%d, 4, v%d' % (vBias, vRr, vBias)); A('v_add_u32 v%d, %d, v%d' % (vBias, LDS_XB + 2048, vBias))
    A('v_and_b32 v%d, 1, v%d' % (t2, vG))
    A('v_lshrrev_b32 v%d, 1, v%d' % (t3, vN)); A('v_lshlrev_b32 v%d, 2, v%d' % (vOSt, t3))
    A('v_and_b32 v%d, 1, v%d' % (t3, vN)); A('v_add_u32 v%d, v%d, v%d' % (vOSt, vOSt, t3))
    A('v_lshrrev_b32 v%d, 1, v%d' % (t3, vG)); A('v_lshl_add_u32 v%d, v%d, 1, v%d' % (vOSt, t3, vOSt))
    A('v_lshlrev_b32 v%d, 4, v%d' % (vOSt, vOSt))
    A('v_lshl_add_u32 v%d, v%d, 3, v%d' % (vOSt, t2, vOSt))
    A('s_lshl_b32 s%d, s%d, 10' % (sT1, sC)); A('s_lshl_b32 s%d, s%d, 8' % (sT2, sW)); A('s_add_u32 s%d, s%d, s%d' % (sT1, sT1, sT2))
    A('v_add_u32 v%d, s%d, v%d' % (vOSt, sT1, vOSt))
    A('v_mov_b32 v%d, 0x%x' % (t3, OOBV))
    A('v_cndmask_b32 v%d, v%d, v%d, s[%d:%d]' % (vOSt, t3, vOSt, sN8, sN8 + 1))
    A('v_mov_b32 v%d, 0x4444' % vIdx); A('v_mov_b32 v%d, 0xeeee' % t2)
    A('v_and_b32 v%d, 2, v%d' % (t3, vN)); A('v_cmp_ne_u32 vcc, 0, v%d' % t3); A('s_nop 1')
    A('v_cndmask_b32 v%d, v%d, v%d, vcc' % (vIdx, vIdx, t2))
    A('v_mov_b32 v%d, 0x3f803f80' % vOnes); A('v_mov_b32 v%d, 0x3f803f80' % vOnes1)
    A('v_xor_b32 v%d, v%d, v%d' % (t2, vG, vN)); A('v_lshlrev_b32 v%d, 4, v%d' % (t2, t2)); A('v_lshl_add_u32 v%d, v%d, 8, v%d' % (t2, vN, t2))
    A('v_add_u32 v%d, %d, v%d' % (vKx0, LDS_KX, t2))
    for k in range(1, 4): A('v_xor_b32 v%d, %d, v%d' % (vKx0 + k, k * 64, vKx0))
    A('v_lshrrev_b32 v%d, 2, v%d' % (t2, vN)); A('v_lshl_add_u32 v%d, v%d, 2, v%d' % (t2, vG, t2))
    A('v_lshrrev_b32 v%d, 1, v%d' % (t3, t2)); A('v_and_b32 v%d, 3, v%d' % (t3, t3)); A('v_xor_b32 v%d, s%d, v%d' % (t3, sW, t3))
    A('v_lshlrev_b32 v%d, 5, v%d' % (t3, t3)); A('v_lshl_add_u32 v%d, v%d, 7, v%d' % (t3, t2, t3))
    A('v_and_b32 v%d, 3, v%d' % (t2, vN)); A('v_lshl_add_u32 v%d, v%d, 3, v%d' % (t3, t2, t3))
    A('v_add_u32 v%d, %d, v%d' % (vVx, LDS_VX, t3))
    A('v_lshlrev_b32 v%d, 4, v%d' % (vKmSt, vG)); A('v_lshl_add_u32 v%d, v%d, 13, v%d' % (vKmSt, vN, vKmSt))
    A('v_lshrrev_b32 v%d, 2, v%d' % (t2, vN))
    A('v_cmp_eq_u32 s[%d:%d], s%d, v%d' % (sKMM, sKMM + 1, sJ, t2))
    A('v_mov_b32 v%d, 0x%x' % (t3, OOBV))
    A('v_lshlrev_b32 v%d, 2, v%d' % (vVmSt, vLane))
    A('v_mov_b32 v%d, 0' % vVM1)
    A('v_cndmask_b32 v%d, v%d, v%d, s[%d:%d]' % (vKmSt, t3, vKmSt, sKMM, sKMM + 1))
    A('v_cmp_eq_u32 vcc, 0, v%d' % vLane); A('s_nop 1'); A('v_cndmask_b32 v%d, v%d, 0, vcc' % (vFlg, t3))
    for i in range(4):
        A('v_add_u32 v%d, %d, v%d' % (t2, 4 * i, vG)); A('v_xor_b32 v%d, v%d, v%d' % (t3, t2, vN)); A('v_lshlrev_b32 v%d, 4, v%d' % (t3, t3))
        A('v_lshl_add_u32 v%d, v%d, 13, v%d' % (t3, t2, t3)); A('v_subrev_u32 v%d, %d, v%d' % (vKxD4[i], 1024 * i, t3))
    Lw3 = A.uid('w3')
    A('s_cmp_lg_u32 s%d, 3' % sW); A('s_cbranch_scc1 %s' % Lw3)
    for i in range(4):
        A('v_lshrrev_b32 v%d, 3, v%d' % (t2, vLane)); A('v_add_u32 v%d, %d, v%d' % (t2, 8 * i, t2))
        A('v_lshrrev_b32 v%d, 1, v%d' % (t3, t2)); A('v_and_b32 v%d, 3, v%d' % (t3, t3))
        A('v_bfe_u32 v%d, v%d, 1, 2' % (t1, vLane)); A('v_xor_b32 v%d, v%d, v%d' % (t3, t3, t1)); A('v_lshlrev_b32 v%d, 5, v%d' % (t3, t3))
        A('v_and_b32 v%d, 1, v%d' % (t1, vLane)); A('v_lshl_add_u32 v%d, v%d, 4, v%d' % (t3, t1, t3))
        A('v_lshl_add_u32 v%d, v%d, 13, v%d' % (t3, t2, t3)); A('v_subrev_u32 v%d, %d, v%d' % (vKxD4[i], 1024 * i, t3))
    A.label(Lw3)
    A('v_bfe_u32 v%d, v%d, 4, 1' % (t2, vLane)); A('v_lshlrev_b32 v%d, 11, v%d' % (vPq, t2)); A('v_lshl_add_u32 v%d, v%d, 4, v%d' % (vPq, vN, vPq))
    A('s_lshl_b32 s%d, s%d, 10' % (sT0, sJ)); A('s_lshl_b32 s%d, s%d, 8' % (sT1, sW)); A('s_add_u32 s%d, s%d, s%d' % (sT0, sT0, sT1))
    A('v_add_u32 v%d, s%d, v%d' % (vPq, sT0, vPq))
    A('s_lshl_b32 s%d, s%d, 10' % (sT0, sC)); A('s_add_u32 s%d, s%d, s%d' % (sT0, sT0, sT1))
    A('v_add_u32 v%d, s%d, v%d' % (vPo, sT0, vL16))
    A('s_lshl_b32 s%d, s%d, 9' % (sT0, sC)); A('v_add_u32 v%d, s%d, v%d' % (vPm, sT0, vL16))
    A('v_mov_b32 v%d, 0x%x' % (t3, OOBV))
    A('v_cndmask_b32 v%d, v%d, v%d, s[%d:%d]' % (vPq, vPq, t3, sHI, sHI + 1))
    A('v_cndmask_b32 v%d, v%d, v%d, s[%d:%d]' % (vPm, vPm, t3, sHI, sHI + 1))
    A('v_cmp_le_u32 vcc, 16, v%d' % vLane); A('s_nop 1'); A('v_cndmask_b32 v%d, v%d, v%d, vcc' % (vPo, vPo, t3))
    A('s_lshl_b32 s%d, s%d, 8' % (sT0, sH)); A('s_lshl_b32 s%d, s%d, 6' % (sT1, sW))
    A('s_add_u32 s%d, s%d, s%d' % (sKMb, sT0, sT1)); A('s_add_u32 s%d, s%d, %d' % (sKMb, sKMb, KM))
    A('s_lshl_b32 s%d, s%d, 3' % (sT0, sH)); A('s_lshl_b32 s%d, s%d, 2' % (sT1, sJ))
    A('s_add_u32 s%d, s%d, s%d' % (sT0, sT0, sT1)); A('s_add_u32 s%d, s%d, s%d' % (sT0, sT0, sW))
    A('s_lshl_b32 s%d, s%d, 8' % (sVMb, sT0)); A('s_add_u32 s%d, s%d, %d' % (sVMb, sVMb, VMF))
    A('s_lshl_b32 s%d, s%d, 2' % (sFLb, sT0)); A('s_add_u32 s%d, s%d, %d' % (sFLb, sFLb, FLG_SEG))
    A('s_lshl_b32 s%d, s%d, 14' % (sQKb, sH)); A('s_add_u32 s%d, s%d, %d' % (sQKb, sQKb, QKB))
    A('s_lshl_b32 s%d, s%d, 16' % (sMEMb, sX)); A('s_add_u32 s%d, s%d, %d' % (sMEMb, sMEMb, MEMB))
    A('s_xor_b32 s%d, s%d, 1' % (sT0, sX)); A('s_lshl_b32 s%d, s%d, 16' % (sMRb, sT0)); A('s_add_u32 s%d, s%d, %d' % (sMRb, sMRb, MEMB + RDELTA))
    A('s_lshl_b32 s%d, s%d, 17' % (sOBb, sX)); A('s_add_u32 s%d, s%d, %d' % (sOBb, sOBb, OB))
    A('s_lshl_b32 s%d, s%d, 8' % (sT0, sH))
    A('s_sub_u32 s%d, s%d, 1' % (sT1, sW)); A('s_lshl_b32 s%d, s%d, 17' % (sT2, sT1)); A('s_add_u32 s%d, s%d, s%d' % (sKXb, sT0, sT2)); A('s_add_u32 s%d, s%d, %d' % (sKXb, sKXb, KX))
    A('s_lshl_b32 s%d, s%d, 12' % (sVXb, sT1)); A('s_add_u32 s%d, s%d, %d' % (sVXb, sVXb, LDS_KX))
    A('s_lshl_b32 s%d, s%d, 7' % (sT1, sJ)); A('s_add_u32 s%d, s%d, s%d' % (sT0, sT0, sT1)); A('s_add_u32 s%d, s%d, %d' % (sT0, sT0, VX))
    A('s_cmp_eq_u32 s%d, 3' % sW); A('s_cselect_b32 s%d, s%d, s%d' % (sKXb, sT0, sKXb)); A('s_cselect_b32 s%d, %d, s%d' % (sVXb, LDS_VX, sVXb))
    def calc(n):
        A('s_and_b32 s%d, s%d, 3' % (sT0, n))
        A('s_lshl_b32 s%d, s%d, 14' % (sT1, sT0)); A('s_lshl_b32 s%d, s%d, 12' % (sT2, sW)); A('s_add_u32 s%d, s%d, s%d' % (sT1, sT1, sT2))
        A('s_add_u32 s%d, s%d, s%d' % (sMEMc, sMEMb, sT1)); A('s_add_u32 s%d, s%d, s%d' % (sMRc, sMRb, sT1))
        A('s_lshl_b32 s%d, s%d, 12' % (sT1, sT0)); A('s_add_u32 s%d, s%d, s%d' % (sQKc, sQKb, sT1))
        A('s_add_u32 s%d, s%d, 3' % (sT0, n)); A('s_and_b32 s%d, s%d, 3' % (sT0, sT0))
        A('s_lshl_b32 s%d, s%d, 12' % (sT1, sT0)); A('s_add_u32 s%d, s%d, s%d' % (sQKv, sQKb, sT1))
        A('s_lshl_b32 s%d, s%d, 9' % (sT1, sW)); A('s_add_u32 s%d, s%d, s%d' % (sQKv, sQKv, sT1))
        A('s_add_u32 s%d, s%d, 2' % (sT0, n)); A('s_and_b32 s%d, s%d, 3' % (sT0, sT0))
        A('s_lshl_b32 s%d, s%d, 12' % (sT1, sT0)); A('s_add_u32 s%d, s%d, s%d' % (sQKp, sQKb, sT1))
        A('s_lshl_b32 s%d, s%d, 14' % (sT1, sT0)); A('s_add_u32 s%d, s%d, s%d' % (sMEMp, sMEMb, sT1)); A('s_add_u32 s%d, s%d, %d' % (sMRp, sMEMp, RDELTA))
        A('s_lshl_b32 s%d, s%d, 15' % (sT1, sT0)); A('s_add_u32 s%d, s%d, s%d' % (sOBp, sOBb, sT1))
        A('s_sub_u32 s%d, s%d, 1' % (sT0, n))
        A('s_lshl_b32 s%d, s%d, 16' % (sT1, sT0)); A('s_add_u32 s%d, s%d, s%d' % (sKMs, sKMb, sT1)); A('s_add_u32 s%d, s%d, s%d' % (sVMs, sVMb, sT1))
        A('s_sub_u32 s%d, s%d, 2' % (sT0, n)); A('s_lshl_b32 s%d, s%d, 10' % (sT1, sT0)); A('s_add_u32 s%d, s%d, s%d' % (sFLo, sFLb, sT1))
        A('s_cmp_lt_u32 s%d, 2' % n); A('s_cselect_b32 s%d, 0x%x, s%d' % (sFLo, OOBS, sFLo))
        A('s_cmp_lt_u32 s%d, 1' % n); A('s_cselect_b32 s%d, 0x%x, s%d' % (sKMs, OOBS, sKMs)); A('s_cselect_b32 s%d, 0x%x, s%d' % (sVMs, OOBS, sVMs))
        A('s_lshl_b32 s%d, s%d, 18' % (sDMo, n)); A('s_add_u32 s%d, s%d, s%d' % (sDMo, sDMo, sKXb))
    def calc_ob_memn(n):
        A('s_and_b32 s%d, s%d, 3' % (sT0, n))
        A('s_lshl_b32 s%d, s%d, 15' % (sT1, sT0)); A('s_add_u32 s%d, s%d, s%d' % (sOBc, sOBb, sT1))
        A('s_lshl_b32 s%d, s%d, 13' % (sT1, sW)); A('s_add_u32 s%d, s%d, s%d' % (sOBc2, sOBc, sT1))
        A('s_add_u32 s%d, s%d, 1' % (sT0, n)); A('s_and_b32 s%d, s%d, 3' % (sT0, sT0))
        A('s_lshl_b32 s%d, s%d, 14' % (sT1, sT0)); A('s_add_u32 s%d, s%d, s%d' % (sMEMn, sMEMb, sT1))

    for i in range(4): A('v_mov_b32 v%d, -1' % (W0 + i))
    for sl in range(4):
        A('s_add_u32 s%d, s%d, %d' % (sT0, sQKb, sl * 4096))
        A(st('buffer_store_dwordx4 v[%d:%d], v%d, %s, s%d offen' % (W0, W0 + 3, vPq, WS, sT0)))
        A('s_add_u32 s%d, s%d, %d' % (sT0, sOBb, sl * 32768))
        A(st('buffer_store_dwordx4 v[%d:%d], v%d, %s, s%d offen' % (W0, W0 + 3, vPo, WS, sT0)))
        Lq = A.uid('pp')
        A('s_cmp_lg_u32 s%d, 0' % sW); A('s_cbranch_scc1 %s' % Lq)
        A('s_add_u32 s%d, s%d, %d' % (sT0, sMEMb, sl * 16384))
        A(st('buffer_store_dwordx4 v[%d:%d], v%d, %s, s%d offen' % (W0, W0 + 3, vPm, WS, sT0)))
        A('s_add_u32 s%d, s%d, %d' % (sT0, sT0, RDELTA))
        A('buffer_store_dwordx4 v[%d:%d], v%d, %s, s%d offen sc1' % (W0, W0 + 3, vPm, WS, sT0))
        A.label(Lq)
    A('s_waitcnt vmcnt(0)')
    Lm = A.uid('m0')
    A('s_cmp_lg_u32 s%d, 0' % sW); A('s_cbranch_scc1 %s' % Lm)
    A('s_load_dwordx2 s[%d:%d], s[0:1], %d' % (SRD_T, SRD_T + 1, A_MEM0))
    A('s_mov_b32 s%d, 16384' % (SRD_T + 2)); A('s_mov_b32 s%d, 0x00020000' % (SRD_T + 3))
    A('s_waitcnt lgkmcnt(0)')
    A('v_lshlrev_b32 v%d, 11, v%d' % (t2, vRr))
    A('v_bfe_u32 v%d, v%d, 1, 1' % (t3, vN)); A('v_lshl_add_u32 v%d, v%d, 4, v%d' % (t2, t3, t2))
    A('v_bfe_u32 v%d, v%d, 4, 1' % (t3, vLane)); A('v_lshl_add_u32 v%d, v%d, 5, v%d' % (t2, t3, t2))
    A('s_lshl_b32 s%d, s%d, 6' % (sT1, sC)); A('v_add_u32 v%d, s%d, v%d' % (t2, sT1, t2))
    A('buffer_load_dwordx4 v[%d:%d], v%d, s[%d:%d], 0 offen' % (W0, W0 + 3, t2, SRD_T, SRD_T + 3))
    A('s_waitcnt vmcnt(0)')
    for i in range(4): A('v_pk_min_u16 v%d, v%d, s%d' % (W0 + i, W0 + i, sFE))
    Lz0 = A.uid('mz')
    A('s_cmp_eq_u32 s%d, 0' % sX); A('s_cbranch_scc1 %s' % Lz0)
    for i in range(4): A('v_mov_b32 v%d, 0' % (W0 + i))
    A.label(Lz0)
    A(st('buffer_store_dwordx4 v[%d:%d], v%d, %s, s%d offen' % (W0, W0 + 3, vPm, WS, sMEMb)))
    A('s_add_u32 s%d, s%d, %d' % (sT2, sMEMb, RDELTA))
    A('buffer_store_dwordx4 v[%d:%d], v%d, %s, s%d offen sc1' % (W0, W0 + 3, vPm, WS, sT2))
    A('s_waitcnt vmcnt(0)')
    A.label(Lm)
    A('s_mov_b64 exec, 1')
    A('v_mov_b32 v%d, 1' % t2); A('v_mov_b32 v%d, 64' % t3)
    A('global_atomic_add v%d, v%d, s[%d:%d] sc1' % (t3, t2, S_DBG, S_DBG + 1))
    A('s_mov_b64 exec, -1')

    vDq, vTr, vDo, vWt0, vWt1 = W0, W0 + 1, W0 + 3, W0 + 4, W0 + 5
    A('v_lshrrev_b32 v%d, 3, v%d' % (t2, vLane)); A('v_lshlrev_b32 v%d, 13, v%d' % (vDq, t2))
    A('v_and_b32 v%d, 7, v%d' % (t3, vLane)); A('v_lshl_add_u32 v%d, v%d, 4, v%d' % (vDq, t3, vDq))
    A('v_bfe_u32 v%d, v%d, 2, 1' % (t2, vN)); A('v_and_b32 v%d, 1, v%d' % (t3, vG)); A('v_lshl_add_u32 v%d, v%d, 2, v%d' % (t2, t3, t2))
    A('v_lshrrev_b32 v%d, 3, v%d' % (t3, vN)); A('v_lshl_add_u32 v%d, v%d, 3, v%d' % (t2, t3, t2))
    A('v_lshrrev_b32 v%d, 1, v%d' % (t3, vG)); A('v_lshl_add_u32 v%d, v%d, 4, v%d' % (t2, t3, t2))
    A('v_lshlrev_b32 v%d, 7, v%d' % (t2, t2)); A('v_and_b32 v%d, 3, v%d' % (t3, vN)); A('v_lshl_add_u32 v%d, v%d, 3, v%d' % (t2, t3, t2))
    A('s_and_b32 s%d, s%d, 1' % (sT0, sW)); A('s_lshl_b32 s%d, s%d, 15' % (sT0, sT0))
    A('v_add_u32 v%d, s%d, v%d' % (vTr, sT0, t2))
    A('v_add_u32 v%d, 65536, v%d' % (vTr + 1, vTr))
    A('v_lshrrev_b32 v%d, 2, v%d' % (t2, vLane)); A('v_and_b32 v%d, 9, v%d' % (t3, t2))
    A('v_bfe_u32 v%d, v%d, 1, 1' % (t1, t2)); A('v_lshl_add_u32 v%d, v%d, 2, v%d' % (t3, t1, t3))
    A('v_bfe_u32 v%d, v%d, 2, 1' % (t1, t2)); A('v_lshl_add_u32 v%d, v%d, 1, v%d' % (t3, t1, t3))
    A('v_lshlrev_b32 v%d, 11, v%d' % (vDo, t3))
    A('v_bfe_u32 v%d, v%d, 1, 1' % (t1, vLane)); A('v_lshrrev_b32 v%d, 5, v%d' % (t0, vLane)); A('v_xor_b32 v%d, v%d, v%d' % (t1, t1, t0))
    A('v_lshl_add_u32 v%d, v%d, 5, v%d' % (vDo, t1, vDo)); A('v_and_b32 v%d, 1, v%d' % (t1, vLane)); A('v_lshl_add_u32 v%d, v%d, 4, v%d' % (vDo, t1, vDo))
    A('v_bfe_u32 v%d, v%d, 2, 1' % (t2, vN)); A('v_and_b32 v%d, 1, v%d' % (t3, vG)); A('v_lshl_add_u32 v%d, v%d, 1, v%d' % (t2, t3, t2))
    A('v_lshrrev_b32 v%d, 3, v%d' % (t3, vN)); A('v_lshl_add_u32 v%d, v%d, 3, v%d' % (t2, t3, t2))
    A('v_lshrrev_b32 v%d, 1, v%d' % (t1, vG)); A('v_lshl_add_u32 v%d, v%d, 4, v%d' % (t2, t1, t2))
    A('v_lshlrev_b32 v%d, 6, v%d' % (t2, t2)); A('v_lshl_add_u32 v%d, v%d, 5, v%d' % (t2, t3, t2))
    A('v_and_b32 v%d, 3, v%d' % (t1, vN)); A('v_lshl_add_u32 v%d, v%d, 3, v%d' % (t2, t1, t2))
    A('s_lshl_b32 s%d, s%d, 15' % (sT0, sW)); A('v_add_u32 v%d, s%d, v%d' % (vWt0, sT0, t2)); A('v_xor_b32 v%d, 32, v%d' % (vWt1, vWt0))
    wptr = [A_WQ, A_WK, A_WV]
    def issue_chunk(cidx):
        half = cidx & 1
        if cidx < 6:
            A('s_load_dwordx2 s[%d:%d], s[0:1], %d' % (SRD_T, SRD_T + 1, wptr[cidx >> 1]))
            A('s_mov_b32 s%d, %d' % (SRD_T + 2, 8 * MB)); A('s_mov_b32 s%d, 0x00020000' % (SRD_T + 3))
            A('s_lshl_b32 s%d, s%d, 8' % (sT0, sH)); A('s_lshl_b32 s%d, s%d, 7' % (sT1, sJ)); A('s_add_u32 s%d, s%d, s%d' % (sT0, sT0, sT1))
            A('s_lshl_b32 s%d, s%d, 20' % (sT1, sW)); A('s_add_u32 s%d, s%d, s%d' % (sT0, sT0, sT1))
            A('s_add_u32 s%d, s%d, %d' % (sT0, sT0, half * 512 * 8192))
            step_g, vd = 65536, vDq
        else:
            A('s_load_dwordx2 s[%d:%d], s[0:1], %d' % (SRD_T, SRD_T + 1, A_WO))
            A('s_mov_b32 s%d, %d' % (SRD_T + 2, 8 * MB)); A('s_mov_b32 s%d, 0x00020000' % (SRD_T + 3))
            A('s_lshl_b32 s%d, s%d, 22' % (sT0, sX)); A('s_lshl_b32 s%d, s%d, 6' % (sT1, sC)); A('s_add_u32 s%d, s%d, s%d' % (sT0, sT0, sT1))
            A('s_lshl_b32 s%d, s%d, 19' % (sT1, sW)); A('s_add_u32 s%d, s%d, s%d' % (sT0, sT0, sT1))
            A('s_add_u32 s%d, s%d, %d' % (sT0, sT0, half * 1024 * 2048))
            step_g, vd = 32768, vDo
        A('s_lshl_b32 s%d, s%d, 14' % (sT1, sW)); A('s_add_u32 s%d, s%d, %d' % (sT1, sT1, half * 65536))
        A('s_waitcnt lgkmcnt(0)')
        for i in range(16):
            A('s_add_u32 m0, s%d, %d' % (sT1, i * 1024))
            A('s_add_u32 s%d, s%d, %d' % (sT2, sT0, i * step_g))
            A('buffer_load_dwordx4 v%d, s[%d:%d], s%d offen lds' % (vd, SRD_T, SRD_T + 3, sT2))
    def read_chunk(cidx):
        half = cidx & 1; mu = cidx >> 1
        Le = A.uid('rce')
        A('s_lshr_b32 s%d, s%d, 1' % (sT0, sW)); A('s_cmp_lg_u32 s%d, %d' % (sT0, half)); A('s_cbranch_scc1 %s' % Le)
        for kl in range(4):
            for t in range(4):
                Rg = wreg(kl, mu, t)
                for sg in range(4):
                    off = kl * 8192 + t * 32 + (sg & 1) * 256 + (sg >> 1) * 4096
                    A('ds_read_b64_tr_b16 %s, v%d offset:%d' % (r(Rg + 2 * sg, 2), vTr + half, off))
                if t % 2 == 1: A('s_waitcnt lgkmcnt(0)')
        A.label(Le)
    issue_chunk(0)
    for cidx in range(6):
        issue_chunk(cidx + 1)
        A('s_waitcnt vmcnt(16)'); A('s_barrier')
        read_chunk(cidx)
        A('s_waitcnt lgkmcnt(0)'); A('s_barrier')
    issue_chunk(7)
    A('s_mov_b32 s%d, 0' % sS)
    if kvwait:
        Lzw = A.uid('zw')
        A('s_mov_b32 s%d, 0' % sSPIN); A('v_mov_b32 v%d, 68' % (vT + 1))
        A.label(Lzw)
        A('global_load_dword v%d, v%d, s[%d:%d] sc1' % (vT, vT + 1, S_DBG, S_DBG + 1))
        A('s_add_u32 s%d, s%d, 1' % (sSPIN, sSPIN)); A('s_cmp_gt_u32 s%d, %d' % (sSPIN, SPIN_LIMIT)); A('s_cbranch_scc1 chain_abort')
        A('s_waitcnt vmcnt(0)')
        A('v_readfirstlane_b32 s%d, v%d' % (sT0, vT)); A('s_nop 3'); A('s_cmp_lt_u32 s%d, 192' % sT0); A('s_cbranch_scc1 %s' % Lzw)
        kvwait(A, sS)
    A('s_waitcnt vmcnt(0)'); A('s_barrier')
    CV = W0 + 8
    for hf in range(2):
        for kl in range(4):
            kap = 4 * hf + kl
            for tt in range(2):
                Rg = CV + (kl * 2 + tt) * 8
                for sg in range(4):
                    off = kap * 4096 + (sg & 1) * 256 + (sg >> 1) * 2048
                    A('ds_read_b64_tr_b16 v[%d:%d], v%d offset:%d' % (Rg + 2 * sg, Rg + 2 * sg + 1, vWt1 if tt else vWt0, off))
            A('s_waitcnt lgkmcnt(0)')
        for kl in range(4):
            kap = 4 * hf + kl
            for tt in range(2):
                Rg = CV + (kl * 2 + tt) * 8; off = (kap * 2 + tt) * 2048
                A('ds_write_b128 v%d, v[%d:%d] offset:%d' % (vWoR, Rg, Rg + 3, off))
                A('ds_write_b128 v%d, v[%d:%d] offset:%d' % (vWoR, Rg + 4, Rg + 7, off + 1024))
        A('s_waitcnt lgkmcnt(0)')
    Lw = A.uid('pw')
    A('s_mov_b32 s%d, 0' % sSPIN); A('v_mov_b32 v%d, 64' % (vT + 1))
    A.label(Lw)
    A('global_load_dword v%d, v%d, s[%d:%d] sc1' % (vT, vT + 1, S_DBG, S_DBG + 1))
    A('s_waitcnt vmcnt(0)')
    A('v_readfirstlane_b32 s%d, v%d' % (sT0, vT))
    A('s_add_u32 s%d, s%d, 1' % (sSPIN, sSPIN)); A('s_cmp_gt_u32 s%d, %d' % (sSPIN, SPIN_LIMIT)); A('s_cbranch_scc1 chain_abort')
    A('s_cmp_lt_u32 s%d, 256' % sT0); A('s_cbranch_scc1 %s' % Lw)
    A('s_barrier')
    if timing or looptime:
        for i in range(16): A('s_mov_b32 s%d, 0' % (sACC + i))
    def stamp(i):
        if timing:
            A('s_memtime s[%d:%d]' % (sTM + 2, sTM + 3)); A('s_waitcnt lgkmcnt(0)')
            A('s_sub_u32 s%d, s%d, s%d' % (sTM + 4, sTM + 2, sTM)); A('s_add_u32 s%d, s%d, s%d' % (sACC + i, sACC + i, sTM + 4))
            A('s_mov_b32 s%d, s%d' % (sTM, sTM + 2))
    if timing:
        A('s_memtime s[%d:%d]' % (sTM, sTM + 1)); A('s_waitcnt lgkmcnt(0)')
    def rts(p):
        if rt:
            L = A.uid('rt')
            A('s_sub_u32 s77, s%d, 20' % sS); A('s_cmp_ge_u32 s77, 8'); A('s_cbranch_scc1 %s' % L)
            A('s_memrealtime s[78:79]')
            A('s_lshl_b32 s76, s%d, 5' % sX); A('s_add_u32 s76, s76, s%d' % sC); A('s_lshl_b32 s76, s76, 2'); A('s_add_u32 s76, s76, s%d' % sW)
            A('s_lshl_b32 s76, s76, 3'); A('s_add_u32 s76, s76, s77'); A('s_lshl_b32 s76, s76, 6'); A('s_add_u32 s76, s76, %d' % (TRC + 4 * MB + p * 4))
            A('s_waitcnt lgkmcnt(0)')
            A('v_mov_b32 v%d, s78' % (vRT)); A('buffer_store_dword v%d, v%d, %s, s76 offen' % (vRT, vFlg, WS))
            A.label(L)
    vRT = 36
    def check(regs):
        m = vT; rs = list(regs)
        if len(rs) == 1: A('v_cmp_eq_u32 vcc, -1, v%d' % rs[0]); return
        if len(rs) == 2: A('v_max_u32 v%d, v%d, v%d' % (m, rs[0], rs[1])); rs = []
        else: A('v_max3_u32 v%d, v%d, v%d, v%d' % (m, rs[0], rs[1], rs[2])); rs = rs[3:]
        while len(rs) >= 2:
            A('v_max3_u32 v%d, v%d, v%d, v%d' % (m, m, rs[0], rs[1])); rs = rs[2:]
        if rs: A('v_max_u32 v%d, v%d, v%d' % (m, m, rs[0]))
        A('v_cmp_eq_u32 vcc, -1, v%d' % m)
    def poll(loads, regs, site=None):
        L = A.uid('poll')
        A('s_mov_b32 s%d, 0' % sSPIN)
        A.label(L)
        for x in loads: A(x)
        A('s_add_u32 s%d, s%d, 1' % (sSPIN, sSPIN)); A('s_cmp_gt_u32 s%d, %d' % (sSPIN, SPIN_LIMIT)); A('s_cbranch_scc1 chain_abort')
        A('s_waitcnt vmcnt(0)')
        check(regs)
        A('s_cbranch_vccnz %s' % L)
        if timing and site is not None: A('s_add_u32 s%d, s%d, s%d' % (sACC + 10 + site, sACC + 10 + site, sSPIN))

    calc(sS); calc_ob_memn(sS)
    vLD = W0
    vRQ = W0 + 16
    vAcc = W0 + 32
    vKR = 120
    vKX = 72; vVXF = 116
    def acc(mu, t): return vAcc + (mu * 4 + t) * 4
    def kpass(areg, fill=None):
        fill = list(fill or [])
        n = 0
        mus = (0, 1) if vdefer else (0, 1, 2)
        per = 2 if vdefer else 3
        for kl in range(4):
            for mu in mus:
                for t in range(4):
                    a_ = acc(mu, t)
                    A('v_smfmac_f32_16x16x64_bf16 v[%d:%d], v[%d:%d], %s, v%d' % (a_, a_ + 3, areg + 4 * kl, areg + 4 * kl + 3, r(wreg(kl, mu, t), 8), vIdx))
                    n += 1
                    if fill and n % per == 0:
                        for x in fill.pop(0): A(x)
        for g_ in fill:
            for x in g_: A(x)

    if looptime:
        A('s_memrealtime s[%d:%d]' % (sRT, sRT + 1)); A('s_waitcnt lgkmcnt(0)')
    A.label('chain_step')
    if steptrace:
        Lst = A.uid('st')
        A('s_cmp_lg_u32 s%d, 0' % sW); A('s_cbranch_scc1 %s' % Lst)
        A('s_memrealtime s[84:85]')
        A('s_lshl_b32 s%d, s%d, 5' % (sT0, sX)); A('s_add_u32 s%d, s%d, s%d' % (sT0, sT0, sC)); A('s_lshl_b32 s%d, s%d, 7' % (sT0, sT0))
        A('s_add_u32 s%d, s%d, s%d' % (sT0, sT0, sS)); A('s_lshl_b32 s%d, s%d, 2' % (sT0, sT0)); A('s_add_u32 s%d, s%d, %d' % (sT0, sT0, TRC_CH))
        A('s_waitcnt lgkmcnt(0)')
        A('v_mov_b32 v%d, s84' % vT); A('v_mov_b32 v%d, 0' % (vT + 1)); A('s_mov_b64 exec, 1')
        A('buffer_store_dword v%d, v%d, %s, s%d offen' % (vT, vT + 1, WS, sT0)); A('s_mov_b64 exec, -1')
        A.label(Lst)
    A.c('P1a')
    rts(0)
    for i in range(48): A('v_mov_b32 v%d, 0' % (vAcc + i))
    if d1: A('s_sleep %d' % d1)
    A('buffer_load_dwordx4 v[%d:%d], v%d, %s, s%d offen offset:2048 sc1' % (vKR, vKR + 3, vQkLd, WS, sQKv))
    if kvwait: kvwait(A, sS, issue_only=True)
    loads = ['buffer_load_dwordx4 v[%d:%d], v%d, %s, s%d offen offset:%d sc1' % (vLD + 4 * k, vLD + 4 * k + 3, vL16, WS, sMEMc, 1024 * k) for k in range(4)]
    rloads = ['buffer_load_dwordx4 v[%d:%d], v%d, %s, s%d offen offset:%d sc1' % (vRQ + 4 * k, vRQ + 4 * k + 3, vL16, WS, sMRc, 1024 * k) for k in range(4)]
    if rearly:
        Lp1 = A.uid('p1e')
        for x in loads: A(x)
        A('s_sleep %d' % rearly)
        for x in rloads: A(x)
        A('s_waitcnt vmcnt(4)')
        check([vLD + 4 * k for k in range(4)])
        A('s_cbranch_vccz %s' % Lp1)
        poll(loads, [vLD + 4 * k for k in range(4)], site=0)
        A.label(Lp1)
    else:
        poll(loads, [vLD + 4 * k for k in range(4)], site=0)
    if kvwait: kvwait(A, sS, check_only=True)
    stamp(0)
    rts(1)
    rloads = ['buffer_load_dwordx4 v[%d:%d], v%d, %s, s%d offen offset:%d sc1' % (vRQ + 4 * k, vRQ + 4 * k + 3, vL16, WS, sMRc, 1024 * k) for k in range(4)]
    P4r = 124
    common = [['buffer_store_dwordx4 v[%d:%d], v%d, %s, s%d offen %s' % (vKR, vKR + 3, vKmSt, WS, sKMs, '' if nokm else 'sc1')],
              ['buffer_store_dword v%d, v%d, %s, s%d offen %s' % (vVM, vVmSt, WS, sVMs, '' if nokm else 'sc1')],
              ['buffer_store_dword v%d, v%d, %s, s%d offen %s' % (vOnes, vFlg, WS, sFLo, '' if noflag else 'sc1')],
              ['v_mov_b32 v%d, -1' % (P4r + i) for i in range(2)], ['v_mov_b32 v%d, -1' % (P4r + i) for i in range(2, 4)],
              [st('buffer_store_dwordx4 v[%d:%d], v%d, %s, s%d offen' % (P4r, P4r + 3, vPq, WS, sQKp))],
              [st('buffer_store_dwordx4 v[%d:%d], v%d, %s, s%d offen' % (P4r, P4r + 3, vPo, WS, sOBp))]]
    Lw0 = A.uid('w0p'); Lj = A.uid('w0j')
    def with_r(groups):
        g = list(groups)
        if rearly:
            younger = sum(1 for grp in g for x in grp if x.startswith('buffer_'))
            return g, younger
        g.insert(min(rpos, len(g)), rloads)
        idx = min(rpos, len(groups))
        younger = sum(1 for grp in g[idx + 1:] for x in grp if x.startswith('buffer_'))
        return g, younger
    A('s_cmp_eq_u32 s%d, 0' % sW); A('s_cbranch_scc1 %s' % Lw0)
    fill = [['s_mov_b32 m0, s%d' % sVXb, 'buffer_load_dwordx4 v%d, %s, s%d offen sc1 lds' % (vKxD4[0], WS, sDMo)]]
    fill[0].insert(1, 's_nop 0')
    for i in range(1, 4): fill.append(['buffer_load_dwordx4 v%d, %s, s%d offen offset:%d sc1 lds' % (vKxD4[i], WS, sDMo, 1024 * i)])
    g, y = with_r(fill + common)
    kpass(vLD, g)
    A('s_waitcnt vmcnt(%d)' % y)
    A('s_branch %s' % Lj)
    A.label(Lw0)
    g, y0 = with_r(common + [[st('buffer_store_dwordx4 v[%d:%d], v%d, %s, s%d offen' % (P4r, P4r + 3, vPm, WS, sMEMp))],
                             ['buffer_store_dwordx4 v[%d:%d], v%d, %s, s%d offen sc1' % (P4r, P4r + 3, vPm, WS, sMRp)]])
    kpass(vLD, g)
    A('s_waitcnt vmcnt(%d)' % y0)
    A.label(Lj)
    stamp(1)
    A.c('P1b')
    rts(2)
    Lrk = A.uid('rk')
    check([vRQ + 4 * k for k in range(4)])
    A('s_cbranch_vccz %s' % Lrk)
    poll(rloads, [vRQ + 4 * k for k in range(4)], site=3)
    A.label(Lrk)
    def smf1(kl, mu, t, areg):
        a_ = acc(mu, t)
        return 'v_smfmac_f32_16x16x64_bf16 v[%d:%d], v[%d:%d], %s, v%d' % (a_, a_ + 3, areg + 4 * kl, areg + 4 * kl + 3, r(wreg(kl, mu, t), 8), vIdx)
    def pkadd(d, a_, b_): return 'v_pk_add_f32 v[%d:%d], v[%d:%d], v[%d:%d]' % (d, d + 1, a_, a_ + 1, b_, b_ + 1)
    def comb(ra, rb_):
        return [pkadd(ra, ra, ra + 2), pkadd(ra + 2, rb_, rb_ + 2)]
    own = 88
    seq = []
    for t in range(4): seq += [smf1(kl, mu, t, vRQ) for kl in range(4) for mu in (0, 1)]
    fl = {}
    def put(start, instrs, per=2):
        i = start
        for j in range(0, len(instrs), per):
            fl.setdefault(i, []).extend(instrs[j:j + per]); i += 1
        return i
    def qk_out(t):
        Ls = A.uid('xs'); Le = A.uid('xe')
        return ['s_cmp_eq_u32 s%d, %d' % (sW, t), 's_cbranch_scc1 %s' % Ls, 'ds_write_b128 v%d, v[%d:%d]' % (vXq[t], acc(0, t), acc(0, t) + 3), 's_branch %s' % Le, Ls + ':'] + \
               ['v_mov_b32 v%d, v%d' % (own + i, acc(0, t) + i) for i in range(4)] + [Le + ':']
    nx = 0
    for t in range(3):
        st_ = max(nx, 8 * t + 15)
        nx = put(st_, comb(acc(0, t), acc(1, t)))
        fl.setdefault(nx, []).extend(qk_out(t)); nx += 1
    for i, m_ in enumerate(seq):
        A(m_)
        for x in fl.pop(i, []): A(x)
    for k_ in sorted(fl):
        for x in fl[k_]: A(x)
    A.nop(7)
    for x in comb(acc(0, 3), acc(1, 3)) + qk_out(3): A(x)
    stamp(2)
    A('s_waitcnt vmcnt(5)')
    A.c('P3: cross-wave reduce')
    rts(3)
    A('s_waitcnt lgkmcnt(0)')
    A('s_barrier')
    X1 = 92
    for i in range(3): A('ds_read_b128 v[%d:%d], v%d offset:%d' % (X1 + 4 * i, X1 + 4 * i + 3, vXqR, 1024 * i))
    A('s_lshl_b32 s%d, s%d, 10' % (sT1, sW))
    A('v_add_u32 v%d, s%d, v%d' % (vT + 2, sT1, vL16))
    A('v_add_u32 v%d, %d, v%d' % (vT + 3, LDS_XB, vT + 2))
    A('s_waitcnt lgkmcnt(0)')
    A(pkadd(own, own, X1)); A(pkadd(own + 2, own + 2, X1 + 2)); A(pkadd(X1 + 4, X1 + 4, X1 + 8)); A(pkadd(X1 + 6, X1 + 6, X1 + 10))
    A(pkadd(own, own, X1 + 4)); A(pkadd(own + 2, own + 2, X1 + 6))
    kk_ = X1
    A('v_cvt_pk_bf16_f32 v%d, v%d, v%d' % (kk_, own, own + 1))
    A('v_cvt_pk_bf16_f32 v%d, v%d, v%d' % (kk_ + 1, own + 2, own + 3))
    A('v_pk_min_u16 v%d, v%d, s%d' % (kk_, kk_, sFE)); A('v_pk_min_u16 v%d, v%d, s%d' % (kk_ + 1, kk_ + 1, sFE))
    A(st('buffer_store_short v%d, v%d, %s, s%d offen' % (kk_, vQkSt, WS, sQKc)))
    A(st('buffer_store_short_d16_hi v%d, v%d, %s, s%d offen offset:16' % (kk_, vQkSt, WS, sQKc)))
    A(st('buffer_store_short v%d, v%d, %s, s%d offen offset:2048' % (kk_ + 1, vQkSt, WS, sQKc)))
    A(st('buffer_store_short_d16_hi v%d, v%d, %s, s%d offen offset:2064' % (kk_ + 1, vQkSt, WS, sQKc)))
    rts(4)
    for tt in range(2):
        for k in range(4):
            Rg = vKX + (tt * 4 + k) * 4
            A('ds_read_b128 v[%d:%d], v%d offset:%d' % (Rg, Rg + 3, vKx0 + k, tt * 4096))
    A.c('pass 2b: V tiles while the q/k exchange is in flight')
    PQ = 120
    qload = 'buffer_load_dwordx4 v[%d:%d], v%d, %s, s%d offen sc1' % (PQ, PQ + 3, vT + 2, WS, sQKc)
    if vdefer:
        for kl in range(4):
            for t in range(4): A(smf1(kl, 2, t, vLD))
        A(qload)
    for kl in range(4):
        for t in range(4): A(smf1(kl, 2, t, vRQ))
    if not vdefer: A(qload)
    A.nop(8)
    for x in comb(acc(2, 0), acc(2, 1)): A(x)
    A('ds_write_b128 v%d, v[%d:%d]' % (vXvW, acc(2, 0), acc(2, 0) + 3))
    for x in comb(acc(2, 2), acc(2, 3)): A(x)
    A('ds_write_b128 v%d, v[%d:%d] offset:1024' % (vXvW, acc(2, 2), acc(2, 2) + 3))
    A('ds_read_b64_tr_b16 v[%d:%d], v%d' % (vVXF, vVXF + 1, vVx))
    A('ds_read_b64_tr_b16 v[%d:%d], v%d offset:2048' % (vVXF + 2, vVXF + 3, vVx))
    A.c('P4')
    Lq = A.uid('q4')
    A('s_waitcnt vmcnt(0)')
    check([PQ])
    A('s_cbranch_vccz %s' % Lq)
    poll([qload], [PQ], site=1)
    A.label(Lq)
    rts(5)
    A('ds_write_b128 v%d, v[%d:%d]' % (vT + 3, PQ, PQ + 3))
    A('s_waitcnt lgkmcnt(0)')
    A('s_barrier')
    vQ, vKM = W0, W0 + 16
    for k in range(4):
        A('ds_read_b128 v[%d:%d], v%d offset:%d' % (vQ + 4 * k, vQ + 4 * k + 3, vQkL, 512 * k))
        A('ds_read_b128 v[%d:%d], v%d offset:%d' % (vKM + 4 * k, vKM + 4 * k + 3, vBias, 512 * k))
    stamp(3)
    T0, T1, T2 = 104, 108, 112
    for k in range(4):
        A('s_waitcnt lgkmcnt(%d)' % (6 - 2 * k))
        c1 = '0' if k == 0 else 'v[%d:%d]' % (T1, T1 + 3); c2 = '0' if k == 0 else 'v[%d:%d]' % (T2, T2 + 3); c0 = '0' if k == 0 else 'v[%d:%d]' % (T0, T0 + 3)
        A('v_mfma_f32_16x16x32_bf16 v[%d:%d], v[%d:%d], v[%d:%d], %s' % (T1, T1 + 3, vKX + 4 * k, vKX + 4 * k + 3, vQ + 4 * k, vQ + 4 * k + 3, c1))
        A('v_mfma_f32_16x16x32_bf16 v[%d:%d], v[%d:%d], v[%d:%d], %s' % (T2, T2 + 3, vKX + 16 + 4 * k, vKX + 16 + 4 * k + 3, vQ + 4 * k, vQ + 4 * k + 3, c2))
        A('v_mfma_f32_16x16x32_bf16 v[%d:%d], v[%d:%d], v[%d:%d], %s' % (T0, T0 + 3, vKM + 4 * k, vKM + 4 * k + 3, vQ + 4 * k, vQ + 4 * k + 3, c0))
    Vp = 72
    for i in range(4): A('ds_read_b64 v[%d:%d], v%d offset:%d' % (Vp + 2 * i, Vp + 2 * i + 1, vXvR, 2048 * i))
    A.nop(3)
    A.c('P5')
    m, t = vT, vT + 1
    A('v_max3_f32 v%d, v%d, v%d, v%d' % (m, T1, T1 + 1, T1 + 2)); A('v_max3_f32 v%d, v%d, v%d, v%d' % (t, T1 + 3, T2, T2 + 1))
    A('v_max3_f32 v%d, v%d, v%d, v%d' % (m, m, T2 + 2, T2 + 3)); A('v_max3_f32 v%d, v%d, v%d, v%d' % (t, t, T0, T0 + 1))
    A('v_max_f32 v%d, v%d, v%d' % (m, m, t))
    for sw in ('v_permlane32_swap_b32', 'v_permlane16_swap_b32'):
        A('v_mov_b32 v%d, v%d' % (t, m)); A('s_nop 1'); A('%s v%d, v%d' % (sw, m, t)); A('s_nop 0'); A('v_max_f32 v%d, v%d, v%d' % (m, m, t))
    A('v_mul_f32 v%d, s%d, v%d' % (m, sC_, m))
    A('s_waitcnt lgkmcnt(0)')
    A(pkadd(Vp, Vp, Vp + 2)); A(pkadd(Vp + 4, Vp + 4, Vp + 6)); A(pkadd(Vp, Vp, Vp + 4))
    A('v_cvt_pk_bf16_f32 v%d, v%d, v%d' % (vVM, Vp, Vp + 1))
    A('v_mov_b32 v%d, v%d' % (t, m))
    for x in list(range(T1, T1 + 8, 2)) + [T0]:
        A('v_pk_fma_f32 v[%d:%d], v[%d:%d], s[56:57], v[%d:%d] neg_lo:[0,0,1] neg_hi:[0,0,1]' % (x, x + 1, x, x + 1, m, m + 1))
    for x in list(range(T1, T1 + 8)) + [T0, T0 + 1]: A('v_exp_f32 v%d, v%d' % (x, x))
    vPx, vPm2 = 56, 60; vO, vO2, vSm, vSm2 = 64, 68, 120, 88
    A('v_cvt_pk_bf16_f32 v%d, v%d, v%d' % (vPx, T1, T1 + 1)); A('v_cvt_pk_bf16_f32 v%d, v%d, v%d' % (vPx + 1, T1 + 2, T1 + 3))
    A('v_cvt_pk_bf16_f32 v%d, v%d, v%d' % (vPx + 2, T2, T2 + 1)); A('v_cvt_pk_bf16_f32 v%d, v%d, v%d' % (vPx + 3, T2 + 2, T2 + 3))
    A('v_cvt_pk_bf16_f32 v%d, v%d, v%d' % (vPm2, T0, T0 + 1)); A('v_mov_b32 v%d, 0' % (vPm2 + 1))
    A('s_nop 0')
    A('v_mfma_f32_16x16x32_bf16 v[%d:%d], v[%d:%d], v[%d:%d], 0' % (vO, vO + 3, vVXF, vVXF + 3, vPx, vPx + 3))
    A('v_mfma_f32_16x16x16_bf16 v[%d:%d], v[%d:%d], v[%d:%d], 0' % (vO2, vO2 + 3, vVM, vVM + 1, vPm2, vPm2 + 1))
    A('v_mfma_f32_16x16x16_bf16 v[%d:%d], v[%d:%d], v[%d:%d], 0' % (vSm, vSm + 3, vOnes, vOnes1, vPx, vPx + 1))
    A('v_mfma_f32_16x16x16_bf16 v[%d:%d], v[%d:%d], v[%d:%d], v[%d:%d]' % (vSm, vSm + 3, vOnes, vOnes1, vPx + 2, vPx + 3, vSm, vSm + 3))
    A('v_mfma_f32_16x16x16_bf16 v[%d:%d], v[%d:%d], v[%d:%d], v[%d:%d]' % (vSm, vSm + 3, vOnes, vOnes1, vPm2, vPm2 + 1, vSm, vSm + 3))
    ops = [(kap, tt) for kap in range(8) for tt in range(2)]
    breg = [96, 104, 112, 120, 40, 48]
    def wo_read(n, Rg):
        off = n * 2048
        A('ds_read_b128 v[%d:%d], v%d offset:%d' % (Rg, Rg + 3, vWoR, off))
        A('ds_read_b128 v[%d:%d], v%d offset:%d' % (Rg + 4, Rg + 7, vWoR, off + 1024))
    for n in range(2): wo_read(n, breg[n])
    A.nop(4)
    A('v_rcp_f32 v%d, v%d' % (m, vSm))
    A(pkadd(vO, vO, vO2)); A(pkadd(vO + 2, vO + 2, vO2 + 2))
    for i in range(4): A('v_mul_f32 v%d, v%d, v%d' % (vO + i, vO + i, m))
    A('v_cvt_pk_bf16_f32 v%d, v%d, v%d' % (vO, vO, vO + 1)); A('v_cvt_pk_bf16_f32 v%d, v%d, v%d' % (vO + 1, vO + 2, vO + 3))
    A('v_pk_min_u16 v%d, v%d, s%d' % (vO, vO, sFE)); A('v_pk_min_u16 v%d, v%d, s%d' % (vO + 1, vO + 1, sFE))
    A(st('buffer_store_dwordx2 v[%d:%d], v%d, %s, s%d offen' % (vO, vO + 1, vOSt, WS, sOBc)))
    rts(6)
    for n in range(2, 6): wo_read(n, breg[n])
    stamp(4)
    A.c('P6')
    vOA = 60; acc0 = vT; acc1 = 92
    A('s_add_u32 s%d, s%d, 1' % (sT3, sS))
    calc(sT3)
    if d6: A('s_sleep %d' % d6)
    A('s_add_u32 s%d, s%d, 4096' % (sT2, sOBc2))
    loads = ['buffer_load_dwordx4 v[%d:%d], v%d, %s, s%d offen offset:%d sc1' % (vOA + 4 * k, vOA + 4 * k + 3, vL16, WS, sOBc2 if k < 4 else sT2, 1024 * (k & 3)) for k in range(8)]
    chk = []
    for k in range(8): chk += [vOA + 4 * k, vOA + 4 * k + 2]
    poll(loads, chk, site=2)
    rts(7)
    stamp(5)
    for i in range(4):
        A('v_mov_b32 v%d, 0' % (acc0 + i)); A('v_mov_b32 v%d, 0' % (acc1 + i))
    A('s_waitcnt lgkmcnt(0)')
    nb = len(breg); issued = nb
    for n, (kap, tt) in enumerate(ops):
        ac = acc1 if tt else acc0
        Rg = breg[n % nb]
        if n >= nb: A('s_waitcnt lgkmcnt(%d)' % min((min(issued, 16) - (n + 1)) * 2, 15))
        A('v_smfmac_f32_16x16x64_bf16 v[%d:%d], v[%d:%d], v[%d:%d], v%d' % (ac, ac + 3, vOA + 4 * kap, vOA + 4 * kap + 3, Rg, Rg + 7, vIdx))
        if issued < 16: wo_read(issued, Rg); issued += 1
    A.nop(9)
    A(pkadd(acc0, acc0, acc0 + 2)); A(pkadd(acc1, acc1, acc1 + 2))
    A('ds_write_b32 v%d, v%d' % (vRedW, acc0)); A('ds_write_b32 v%d, v%d offset:128' % (vRedW, acc0 + 1))
    A('ds_write_b32 v%d, v%d offset:64' % (vRedW, acc1)); A('ds_write_b32 v%d, v%d offset:192' % (vRedW, acc1 + 1))
    A('s_waitcnt lgkmcnt(0)')
    A('s_barrier')
    rts(8)
    Lw1b = A.uid('rw1')
    A('s_cmp_lg_u32 s%d, 0' % sW); A('s_cbranch_scc1 %s' % Lw1b)
    S = W0
    for k in range(4):
        A('ds_read_b128 v[%d:%d], v%d offset:%d' % (S + 8 * k, S + 8 * k + 3, vRedR, 1024 * k))
        A('ds_read_b128 v[%d:%d], v%d offset:%d' % (S + 8 * k + 4, S + 8 * k + 7, vRedR, 1024 * k + 16))
    for k in range(1, 4):
        A('s_waitcnt lgkmcnt(%d)' % (6 - 2 * k))
        for i in range(0, 8, 2): A(pkadd(S + i, S + i, S + 8 * k + i))
    for i in range(4): A('v_cvt_pk_bf16_f32 v%d, v%d, v%d' % (S + 8 + i, S + 2 * i, S + 2 * i + 1))
    for i in range(4): A('v_pk_min_u16 v%d, v%d, s%d' % (S + 8 + i, S + 8 + i, sFE))
    A('s_add_u32 s%d, s%d, %d' % (sT2, sMEMn, RDELTA))
    A(st('buffer_store_dwordx4 v[%d:%d], v%d, %s, s%d offen' % (S + 8, S + 11, vPm, WS, sMEMn)))
    A('buffer_store_dwordx4 v[%d:%d], v%d, %s, s%d offen sc1' % (S + 8, S + 11, vPm, WS, sT2))
    rts(9)
    A.label(Lw1b)
    A('s_add_u32 s%d, s%d, 1' % (sT3, sS))
    calc_ob_memn(sT3)
    A('s_barrier')
    stamp(6)
    A('s_add_u32 s%d, s%d, 1' % (sS, sS)); A('s_cmp_lt_u32 s%d, %d' % (sS, nsteps)); A('s_cbranch_scc1 chain_step')
    if looptime:
        A('s_memrealtime s[%d:%d]' % (sRT + 2, sRT + 3)); A('s_waitcnt lgkmcnt(0)')
        A('s_sub_u32 s%d, s%d, s%d' % (sACC + 8, sRT + 2, sRT))
    A('buffer_load_dwordx4 v[%d:%d], v%d, %s, s%d offen offset:2048 sc1' % (vKR, vKR + 3, vQkLd, WS, sQKv))
    A('s_waitcnt vmcnt(0)')
    A('buffer_store_dwordx4 v[%d:%d], v%d, %s, s%d offen sc1' % (vKR, vKR + 3, vKmSt, WS, sKMs))
    A('buffer_store_dword v%d, v%d, %s, s%d offen sc1' % (vVM, vVmSt, WS, sVMs))
    A('buffer_store_dword v%d, v%d, %s, s%d offen sc1' % (vOnes, vFlg, WS, sFLo))
    A('s_waitcnt vmcnt(0)')
    A('s_add_u32 s%d, s%d, 1024' % (sT1, sFLo))
    A('buffer_store_dword v%d, v%d, %s, s%d offen sc1' % (vOnes, vFlg, WS, sT1))
    if timing or looptime:
        A('s_lshl_b32 s%d, s%d, 5' % (sT0, sX)); A('s_add_u32 s%d, s%d, s%d' % (sT0, sT0, sC)); A('s_lshl_b32 s%d, s%d, 2' % (sT0, sT0))
        A('s_add_u32 s%d, s%d, s%d' % (sT0, sT0, sW)); A('s_lshl_b32 s%d, s%d, 6' % (sT0, sT0)); A('s_add_u32 s%d, s%d, %d' % (sT0, sT0, CNT + 65536))
        for i in range(16): A('v_mov_b32 v%d, s%d' % (W0 + i, sACC + i))
        A('v_mov_b32 v%d, 0' % vT); A('s_mov_b64 exec, 1')
        for q in range(4): A('buffer_store_dwordx4 v[%d:%d], v%d, %s, s%d offen offset:%d' % (W0 + 4 * q, W0 + 4 * q + 3, vT, WS, sT0, 16 * q))
    A('s_waitcnt vmcnt(0)')
    if finish:
        A('s_mov_b64 exec, -1')
        A('s_branch %s' % finish)
    else:
        A('s_endpgm')
    A.label('chain_abort')
    A('s_mov_b64 exec, 1')
    A('v_mov_b32 v%d, 1' % vT); A('v_mov_b32 v%d, 128' % (vT + 1))
    A('global_atomic_add v%d, v%d, s[%d:%d] sc1' % (vT + 1, vT, S_DBG, S_DBG + 1))
    A('s_waitcnt vmcnt(0)')
    A('s_endpgm')
```

```python
import sys
from asmlib import *
from layout import *
import chain7 as chain
from gemm2 import *
from gemm3 import Gemm
from gemmbs import GemmBS
from units3 import *

BM = 128
SBM = 64
NBIG = 31
NB = NBLK
KNAME = 'sequential_preLN__memory_aug_recurrent_mem_tr__mixer_s_mlp__prompt_kernel'
SPIN = 1 << 22
sXW, sTK, sIt, sFlag, sItem, sQi, sTab, sDep, sCnt, sSp = 80, 81, 82, 83, 84, 85, 86, 88, 89, 90
sMsk = 92
sRB, sNT, sKS = 94, 95, 96
sK0, sNKi = 78, 79
sRow0, sBig = 70, 71
sShI, sShR = 75, 76
sS0, sS1, sS2 = 58, 59, 91
sChunk = 97
sD0, sD1, sD2 = 72, 73, 74
sC3 = 77
T_ATT, T_O, T_R1, T_W1, T_W2, T_R2, T_W3, T_W4, T_R3, T_ROWLOOP = range(1, 11)
O_SPLIT = [(0, 11), (11, 11), (22, 11), (33, 11), (44, 10), (54, 10)]
W4_SPLIT = [(0, 10), (10, 10), (20, 9), (29, 9), (38, 9), (47, 9)]
def word(t, a, b=0, c=0, k0=0, nk=0, end=0):
    assert a < 64 and b < 32 and c < 8 and k0 < 64 and nk < 32
    return (t << 28) | (a << 22) | (b << 17) | (c << 14) | (k0 << 8) | (nk << 3) | end

def build_table():
    T = {(x, t): [0, 0, 0] for x in range(8) for t in range(32)}
    slot = [0] * 6
    def take(x):
        w = (x, slot[x]); slot[x] += 1; assert slot[x] <= 32; return w
    for x in range(6):
        for nt in range(8): T[take(x)] = [word(T_O, 0, nt, x, *O_SPLIT[x]), 0, 0]
    for nt in range(8): T[take(0)] = [word(T_W1, 0, nt), 0, 0]
    for nt in range(8): T[take(1)] = [word(T_W2, 0, nt), 0, 0]
    for nt in range(28): T[take(2 + nt // 7)] = [word(T_W3, 0, nt), 0, 0]
    for x in range(6):
        for nt in range(8): T[take(x)] = [word(T_W4, 0, nt, x, *W4_SPLIT[x]), 0, 0]
    free = [(x, t) for x in range(6) for t in range(slot[x], 32)]
    assert len(free) >= 48, len(free)
    LB = NBIG
    w4 = lambda i: word(T_W4, LB, i % 8, i // 8, *W4_SPLIT[i // 8], end=1)
    for i in range(16): T[free[i]] = [word(T_ATT, 0, i), w4(36 + i) if i < 12 else 0, 0]
    for c in range(32): T[free[16 + c]] = [word(T_ROWLOOP, 0, c), 0, 0]
    for m in range(64):
        w = []
        if m < 48: w.append(word(T_O, LB, m % 8, m // 8, *O_SPLIT[m // 8], end=1))
        if m < 28: w.append(word(T_W3, LB, m, end=1))
        elif m < 48: w.append(w4(m - 28))
        elif m < 56: w += [word(T_W1, LB, m - 48, end=1), w4(20 + m - 48)]
        else: w += [word(T_W2, LB, m - 56, end=1), w4(28 + m - 56)]
        T[6 + m // 32, m % 32] = (w + [0, 0, 0])[:3]
    return T

TRACE = [0]
def mk_srd(A, n, karg, size):
    A('s_load_dwordx2 s[%d:%d], s[0:1], %d' % (n, n + 1, karg))
    A('s_mov_b32 s%d, %d' % (n + 2, size))
    A('s_mov_b32 s%d, 0x00020000' % (n + 3))
    A('s_waitcnt lgkmcnt(0)')
def ws_srd(A, n):
    for i in range(4): A('s_mov_b32 s%d, s%d' % (n + i, 8 + i))
def gemm_params(A, lda, ldb, ldc, nk, mode, shift=0):
    A('s_mov_b32 s%d, %d' % (sLda, lda)); A('s_mov_b32 s%d, %d' % (sLdb, ldb)); A('s_mov_b32 s%d, %d' % (sLdc, ldc))
    A('s_mov_b32 s%d, %d' % (sNk, nk)); A('s_mov_b32 s%d, %d' % (sShift, lda if shift else 0)); A('s_mov_b32 s%d, %d' % (sMode, mode))

def wave_id(A, dst):
    A('v_lshrrev_b32 v250, 6, v0'); A('s_nop 0'); A('v_readfirstlane_b32 s%d, v250' % dst); A('s_nop 3')

def wait_flags(A):
    Ld = A.uid('wf'); Ll = A.uid('wl')
    wave_id(A, sSp)
    A('s_cmp_lg_u32 s%d, 0' % sSp); A('s_cbranch_scc1 %s' % Ld)
    A('v_cmp_gt_u32 vcc, s%d, v0' % sCnt)
    A('s_mov_b64 s[%d:%d], vcc' % (sMsk, sMsk + 1))
    A('v_lshlrev_b32 v250, 2, v0')
    A('s_mov_b32 s%d, 0' % sSp)
    A('s_mov_b64 exec, s[%d:%d]' % (sMsk, sMsk + 1))
    A.label(Ll)
    A('buffer_load_dword v251, v250, s[8:11], s%d offen sc1' % sDep)
    A('s_add_u32 s%d, s%d, 1' % (sSp, sSp)); A('s_cmp_gt_u32 s%d, %d' % (sSp, SPIN)); A('s_cbranch_scc1 worker_abort')
    A('s_waitcnt vmcnt(0)')
    A('v_cmp_eq_u32 vcc, 0, v251')
    A('s_cbranch_vccz %s_ok' % Ll)
    A('s_sleep 4'); A('s_branch %s' % Ll)
    A.label(Ll + '_ok')
    A('s_mov_b64 exec, -1')
    A.label(Ld)
    A('s_barrier')
    if TRACE[0]: A('s_memrealtime s[100:101]')

def signal_flag(A):
    A('s_waitcnt vmcnt(0)')
    A('s_barrier')
    L = A.uid('sf')
    A('v_cmp_eq_u32 vcc, 0, v0')
    A('s_and_saveexec_b64 s[%d:%d], vcc' % (sMsk, sMsk + 1))
    A('s_cbranch_execz %s' % L)
    A('v_mov_b32 v250, 0'); A('v_mov_b32 v251, 1')
    A('buffer_store_dword v251, v250, s[8:11], s%d offen sc1' % sFlag)
    A.label(L)
    A('s_mov_b64 exec, s[%d:%d]' % (sMsk, sMsk + 1))

def kvwait(A, seg_sreg, issue_only=False, check_only=False):
    c = chain
    def addr():
        A('s_lshr_b32 s%d, s%d, 2' % (c.sT0, seg_sreg)); A('s_mul_i32 s%d, s%d, 384' % (c.sT0, c.sT0))
        A('s_lshl_b32 s%d, s%d, 2' % (c.sT1, c.sH)); A('s_add_u32 s%d, s%d, s%d' % (c.sT0, c.sT0, c.sT1))
        A('s_add_u32 s%d, s%d, %d' % (c.sT0, c.sT0, FQKV + 128)); A('v_mov_b32 v125, 0')
    def loads():
        A('buffer_load_dword v126, v125, s[8:11], s%d offen sc1' % c.sT0)
        A('buffer_load_dword v127, v125, s[8:11], s%d offen offset:128 sc1' % c.sT0)
    if issue_only:
        addr(); loads(); return
    L = A.uid('kv'); Lok = A.uid('kvok')
    if check_only:
        A('v_and_b32 v126, v126, v127'); A('v_cmp_eq_u32 vcc, 0, v126'); A('s_cbranch_vccz %s' % Lok)
    addr()
    A('s_mov_b32 s%d, 0' % c.sSPIN)
    A.label(L)
    loads()
    A('s_add_u32 s%d, s%d, 1' % (c.sSPIN, c.sSPIN)); A('s_cmp_gt_u32 s%d, %d' % (c.sSPIN, SPIN)); A('s_cbranch_scc1 chain_abort')
    A('s_waitcnt vmcnt(0)')
    A('v_and_b32 v126, v126, v127'); A('v_cmp_eq_u32 vcc, 0, v126'); A('s_cbranch_vccnz %s' % L)
    A.label(Lok)

def gen(intra='', chain_kw=None, trace=0, coop=1, wake=56):
    coop = int(coop); trace = int(trace); TRACE[0] = trace; wake = int(wake)
    A = Asm()
    G = GemmBS(A, 128, stamps=bool(trace))
    GS = GemmBS(A, SBM, stamps=bool(trace))
    A.raw('; @launch grid=(256,1,1) block=(256,1,1) lds=163840')
    A.raw('.amdgcn_target "amdgcn-amd-amdhsa--gfx950"')
    A.raw('.text')
    kernel_header(A, KNAME)
    A('s_cmp_ge_u32 s2, 256'); A('s_cbranch_scc1 L_exit_main')
    A('s_load_dwordx2 s[4:5], s[0:1], %d' % D_WS)
    A('s_load_dwordx2 s[6:7], s[0:1], %d' % D_DBG)
    A('s_getreg_b32 s16, hwreg(HW_REG_XCC_ID)')
    A('s_and_b32 s16, s16, 15')
    A('s_waitcnt lgkmcnt(0)')
    A('s_mov_b32 s8, s4'); A('s_mov_b32 s9, s5'); A('s_mov_b32 s10, %d' % WS_SIZE); A('s_mov_b32 s11, 0x00020000')
    A('v_cmp_eq_u32 vcc, 0, v0'); A('s_and_saveexec_b64 s[20:21], vcc'); A('s_cbranch_execz L_nt')
    A('s_lshl_b32 s17, s16, 2'); A('v_mov_b32 v1, s17'); A('v_mov_b32 v2, 1')
    A('global_atomic_add v3, v1, v2, s[6:7] sc0 sc1'); A('s_waitcnt vmcnt(0)')
    A('v_mov_b32 v1, 0'); A('ds_write_b32 v1, v3'); A('s_waitcnt lgkmcnt(0)')
    A.label('L_nt')
    A('s_mov_b64 exec, s[20:21]'); A('s_barrier')
    A('v_mov_b32 v1, 0'); A('ds_read_b32 v3, v1'); A('s_waitcnt lgkmcnt(0)'); A('v_readfirstlane_b32 s17, v3'); A('s_barrier')
    A('s_cmp_ge_u32 s17, 32'); A('s_cbranch_scc1 L_exit_main')
    A('s_cmp_ge_u32 s16, 2'); A('s_cbranch_scc1 worker')
    chain.gen_chain(A, intra=intra, kvwait=kvwait, finish='chain_to_worker', **(chain_kw or {}))
    A.label('chain_to_worker')
    A('v_mbcnt_lo_u32_b32 v0, -1, 0'); A('v_mbcnt_hi_u32_b32 v0, -1, v0')
    A('s_lshl_b32 s%d, s%d, 6' % (44, chain.sW)); A('v_add_u32 v0, s44, v0')
    A('s_add_u32 s%d, s%d, 6' % (sXW, chain.sX)); A('s_mov_b32 s%d, s%d' % (sTK, chain.sC))
    A('s_mov_b32 s%d, 8' % sIt)
    for n in (SRD_A, SRD_B, SRD_C, SRD_R): ws_srd(A, n)
    A('s_mov_b32 s%d, 0' % sChunk)
    A('s_barrier')
    A('s_branch streams')
    A.label('worker')
    A('s_sub_u32 s%d, s16, 2' % sXW); A('s_mov_b32 s%d, s17' % sTK)
    A('s_cmp_ge_u32 s%d, 6' % sXW); A('s_cbranch_scc1 L_exit_main')
    A('s_mov_b32 s%d, 0' % sIt)
    for n in (SRD_A, SRD_B, SRD_C, SRD_R): ws_srd(A, n)
    A('s_mov_b32 s%d, 0' % sS0); A('s_mov_b32 s%d, 0' % sS1); A('s_mov_b32 s%d, 0' % sS2); A('s_mov_b32 s%d, 0' % sChunk)
    A('s_lshl_b32 s%d, s%d, 5' % (sQi, sXW)); A('s_add_u32 s%d, s%d, s%d' % (sQi, sQi, sTK))
    A('v_mov_b32 v8, 0'); A('v_mov_b32 v9, 0'); A('v_mov_b32 v10, 0'); A('v_mov_b32 v11, 0')
    A('v_lshlrev_b32 v12, 4, v0')
    Lz1 = A.uid('z'); Lz2 = A.uid('z')
    A('s_cmp_ge_u32 s%d, 32' % sQi); A('s_cbranch_scc1 %s' % Lz1)
    A('s_lshl_b32 s%d, s%d, 12' % (sT0, sQi)); A('s_add_u32 s%d, s%d, %d' % (sT0, sT0, FLG_SEG))
    A('buffer_store_dwordx4 v[8:11], v12, s[8:11], s%d offen sc1' % sT0)
    A.label(Lz1)
    A('s_cmp_lg_u32 s%d, 32' % sQi); A('s_cbranch_scc1 %s' % Lz2)
    A('s_mov_b32 s%d, %d' % (sT0, GB0)); A('buffer_store_dwordx4 v[8:11], v12, s[8:11], s%d offen sc1' % sT0)
    A('s_mov_b32 s%d, %d' % (sT0, GB + 2048 * 2048)); A('buffer_store_dwordx4 v[8:11], v12, s[8:11], s%d offen sc1' % sT0)
    A.label(Lz2)
    A('s_waitcnt vmcnt(0)'); A('s_barrier')
    Lz3 = A.uid('z')
    A('v_cmp_eq_u32 vcc, 0, v0'); A('s_and_saveexec_b64 s[%d:%d], vcc' % (sMsk, sMsk + 1)); A('s_cbranch_execz %s' % Lz3)
    A('v_mov_b32 v250, 68'); A('v_mov_b32 v251, 1'); A('global_atomic_add v250, v251, s[6:7] sc1')
    A.label(Lz3)
    A('s_mov_b64 exec, s[%d:%d]' % (sMsk, sMsk + 1))
    mk_srd(A, SRD_R, A_X, 4 * MB)
    A('s_mov_b32 s%d, s%d' % (sChunk, sQi))
    A.label('ln_item')
    A('s_lshl_b32 s%d, s%d, 3' % (sRow, sChunk))
    unit_ln1(A)
    Lzw = A.uid('zw')
    A('s_mov_b32 s%d, 0' % sSp); A('v_mov_b32 v250, 68')
    A.label(Lzw)
    A('global_load_dword v251, v250, s[6:7] sc1')
    A('s_add_u32 s%d, s%d, 1' % (sSp, sSp)); A('s_cmp_gt_u32 s%d, %d' % (sSp, SPIN)); A('s_cbranch_scc1 worker_abort')
    A('s_waitcnt vmcnt(0)')
    A('v_readfirstlane_b32 s%d, v251' % sT0); A('s_nop 3'); A('s_cmp_lt_u32 s%d, 192' % sT0); A('s_cbranch_scc1 %s' % Lzw)
    A('s_lshl_b32 s%d, s%d, 2' % (sT0, sChunk)); A('s_add_u32 s%d, s%d, %d' % (sFlag, sT0, FXL))
    signal_flag(A)
    A('s_add_u32 s%d, s%d, 192' % (sChunk, sChunk)); A('s_cmp_lt_u32 s%d, 256' % sChunk); A('s_cbranch_scc1 ln_item')
    A('s_mov_b32 s%d, 0' % sChunk)
    ws_srd(A, SRD_R)
    A.label('qkv_next')
    A('s_cmp_ge_u32 s%d, 8' % sIt); A('s_cbranch_scc1 streams')
    A('s_lshr_b32 s%d, s%d, 4' % (sRB, sTK)); A('s_lshl_b32 s%d, s%d, 1' % (sT0, sIt)); A('s_add_u32 s%d, s%d, s%d' % (sRB, sRB, sT0))
    A('s_and_b32 s%d, s%d, 15' % (sT1, sTK))
    A('s_cmp_lt_u32 s%d, 4' % sXW); A('s_cselect_b32 s%d, 11, 10' % sT2)
    A('s_cmp_lt_u32 s%d, s%d' % (sT1, sT2)); A('s_cbranch_scc0 qkv_q')
    A('s_mul_i32 s%d, s%d, 6' % (sT3, sT1)); A('s_add_u32 s%d, s%d, s%d' % (sT3, sT3, sXW))
    A('s_lshr_b32 s%d, s%d, 5' % (sKS, sT3)); A('s_add_u32 s%d, s%d, 1' % (sKS, sKS)); A('s_and_b32 s%d, s%d, 31' % (sNT, sT3))
    A('s_branch qkv_go')
    A.label('qkv_q')
    A('s_sub_u32 s%d, s%d, s%d' % (sT3, sT1, sT2)); A('s_mul_i32 s%d, s%d, 5' % (sT4, sXW))
    A('s_sub_u32 s%d, s%d, 4' % (sT5, sXW)); A('s_mul_i32 s%d, s%d, 6' % (sT5, sT5)); A('s_add_u32 s%d, s%d, 20' % (sT5, sT5))
    A('s_cmp_lt_u32 s%d, 4' % sXW); A('s_cselect_b32 s%d, s%d, s%d' % (sT4, sT4, sT5))
    A('s_add_u32 s%d, s%d, s%d' % (sNT, sT3, sT4)); A('s_mov_b32 s%d, 0' % sKS)
    A.label('qkv_go')
    A('s_add_u32 s%d, s%d, 1' % (sIt, sIt))
    A('s_lshl_b32 s%d, s%d, 3' % (sT0, sKS)); A('s_add_u32 s%d, s%d, %d' % (sT0, sT0, A_WQ))
    A('s_load_dwordx2 s[%d:%d], s[0:1], s%d' % (SRD_B, SRD_B + 1, sT0))
    A('s_mov_b32 s%d, %d' % (SRD_B + 2, 8 * MB)); A('s_mov_b32 s%d, 0x00020000' % (SRD_B + 3))
    ws_srd(A, SRD_A); ws_srd(A, SRD_C)
    gemm_params(A, 2048, 8192, 8192, 16, 0)
    A('s_mul_i32 s%d, s%d, %d' % (sAoff, sRB, BM * 2048)); A('s_add_u32 s%d, s%d, %d' % (sAoff, sAoff, XLN))
    A('s_lshl_b32 s%d, s%d, 8' % (sBoff, sNT))
    A('s_mul_i32 s%d, s%d, %d' % (sCoff, sRB, BM * 8192)); A('s_add_u32 s%d, s%d, s%d' % (sCoff, sCoff, sBoff))
    A('s_lshl_b32 s%d, s%d, 24' % (sT0, sKS)); A('s_add_u32 s%d, s%d, s%d' % (sCoff, sCoff, sT0)); A('s_add_u32 s%d, s%d, %d' % (sCoff, sCoff, QX))
    A('s_mul_i32 s%d, s%d, 3' % (sT0, sRB)); A('s_add_u32 s%d, s%d, s%d' % (sT0, sT0, sKS))
    A('s_lshl_b32 s%d, s%d, 5' % (sT0, sT0)); A('s_add_u32 s%d, s%d, s%d' % (sT0, sT0, sNT))
    A('s_lshl_b32 s%d, s%d, 2' % (sT0, sT0)); A('s_add_u32 s%d, s%d, %d' % (sFlag, sT0, FQKV))
    A('s_mov_b32 s%d, 1' % sItem)
    A('s_and_b32 s%d, s%d, 15' % (sShI, sTK)); A('s_mov_b32 s%d, 8' % sShR)
    if trace:
        A('s_lshl_b32 s%d, s%d, 5' % (sQi, sXW)); A('s_add_u32 s%d, s%d, s%d' % (sQi, sQi, sTK)); A('s_lshl_b32 s%d, s%d, 3' % (sQi, sQi))
        A('s_add_u32 s%d, s%d, s%d' % (sQi, sQi, sIt)); A('s_add_u32 s%d, s%d, 22527' % (sQi, sQi))
        A('s_memrealtime s[98:99]'); A('s_memrealtime s[100:101]')
    A('s_waitcnt lgkmcnt(0)')
    A('s_cmp_lg_u32 s%d, 1' % sIt); A('s_cbranch_scc1 qkv_dep')
    G.load_b()
    A.label('qkv_dep')
    A('s_lshl_b32 s%d, s%d, 6' % (sDep, sRB)); A('s_add_u32 s%d, s%d, %d' % (sDep, sDep, FXL)); A('s_mov_b32 s%d, 16' % sCnt)
    G.setup(); wait_flags(A)
    A('s_branch gemm_main')

    def decode(src):
        A('s_bfe_u32 s%d, s%d, 0x60016' % (sRB, src)); A('s_bfe_u32 s%d, s%d, 0x50011' % (sNT, src)); A('s_bfe_u32 s%d, s%d, 0x3000e' % (sKS, src))
        A('s_bfe_u32 s%d, s%d, 0x60008' % (sK0, src)); A('s_bfe_u32 s%d, s%d, 0x50003' % (sNKi, src))
    def blk_rows():
        A('s_lshl_b32 s%d, s%d, 6' % (sRow0, sRB)); A('s_mov_b32 s%d, 0' % sBig)
    def own(base, code):
        code(); A('s_lshl_b32 s%d, s%d, 2' % (sT0, sT0)); A('s_add_u32 s%d, s%d, %d' % (sFlag, sT0, base))
    def btouch():
        A('v_and_b32 v200, 63, v0'); A('v_lshrrev_b32 v201, 6, v0')
        A('v_lshrrev_b32 v202, 1, v200'); A('v_lshl_add_u32 v202, v201, 8, v202')
        A('v_and_b32 v203, 1, v200'); A('v_lshlrev_b32 v203, 7, v203')
        A('s_lshl_b32 s%d, s%d, 6' % (sT4, sNk)); A('v_mov_b32 v206, 0x7ff00000')
        for j in range(8):
            A('v_add_u32 v204, %d, v202' % (32 * j)); A('v_mul_lo_u32 v205, v204, s%d' % sLdb); A('v_add_u32 v205, v205, v203')
            A('v_cmp_gt_u32 vcc, s%d, v204' % sT4); A('s_nop 1'); A('v_cndmask_b32 v205, v206, v205, vcc')
            A('buffer_load_dword v%d, v205, %s, s%d offen' % (208 + j, srd(SRD_B), sBoff))
    types = {
        T_O: dict(split=True, ownbase=FO, abuf=OX, lda=8192, bk=A_WO, bs=8 * MB, ldb=2048, p=PO),
        T_W4: dict(split=True, ownbase=FW4, abuf=UB, lda=7168, bk=B_W4, bs=7 * MB, ldb=2048, p=P4),
        T_W1: dict(split=False, ownbase=FW1, ostr=8, abuf=ZB, bk=B_W1, bs=2 * MB, ldb=2048, c=GB, ldc=2048, mode=1),
        T_W2: dict(split=False, ownbase=FW2, ostr=8, abuf=GB - 2048, bk=B_W2, bs=2 * MB, ldb=2048, c=X1B, ldc=2048, mode=2, shift=1, resid=YB),
        T_W3: dict(split=False, ownbase=FW3, ostr=32, abuf=Z2B, bk=B_W3, bs=7 * MB, ldb=7168, c=UB, ldc=7168, mode=1),
    }
    def gemm_setup(ty):
        d = types[ty]
        mk_srd(A, SRD_B, d['bk'], d['bs']); ws_srd(A, SRD_A); ws_srd(A, SRD_C); ws_srd(A, SRD_R)
        if d['split']:
            own(d['ownbase'], lambda: (A('s_lshl_b32 s%d, s%d, 6' % (sT0, sRB)), A('s_lshl_b32 s%d, s%d, 3' % (sT1, sKS)), A('s_add_u32 s%d, s%d, s%d' % (sT0, sT0, sT1)), A('s_add_u32 s%d, s%d, s%d' % (sT0, sT0, sNT))))
            gemm_params(A, d['lda'], d['ldb'], 2048, 0, 0)
            A('s_mov_b32 s%d, s%d' % (sNk, sNKi)); A('s_mov_b32 s%d, s%d' % (sShI, sNT)); A('s_mov_b32 s%d, 16' % sShR)
            A('s_mul_i32 s%d, s%d, %d' % (sAoff, sRow0, d['lda'])); A('s_lshl_b32 s%d, s%d, 7' % (sT0, sK0)); A('s_add_u32 s%d, s%d, s%d' % (sAoff, sAoff, sT0))
            A('s_add_u32 s%d, s%d, %d' % (sAoff, sAoff, d['abuf']))
            A('s_mul_i32 s%d, s%d, %d' % (sBoff, sK0, 64 * d['ldb'])); A('s_lshl_b32 s%d, s%d, 8' % (sT0, sNT)); A('s_add_u32 s%d, s%d, s%d' % (sBoff, sBoff, sT0))
            A('s_lshl_b32 s%d, s%d, 11' % (sCoff, sRow0)); A('s_add_u32 s%d, s%d, s%d' % (sCoff, sCoff, sT0))
            A('s_lshl_b32 s%d, s%d, 22' % (sT0, sKS)); A('s_add_u32 s%d, s%d, s%d' % (sCoff, sCoff, sT0)); A('s_add_u32 s%d, s%d, %d' % (sCoff, sCoff, d['p']))
        else:
            own(d['ownbase'], lambda: (A('s_mul_i32 s%d, s%d, %d' % (sT0, sRB, d['ostr'])), A('s_add_u32 s%d, s%d, s%d' % (sT0, sT0, sNT))))
            gemm_params(A, 2048, d['ldb'], d['ldc'], 16, d['mode'], d.get('shift', 0))
            A('s_mov_b32 s%d, s%d' % (sShI, sK0)); A('s_cmp_eq_u32 s%d, 7' % sNKi); A('s_cselect_b32 s%d, 19, 16' % sShR)
            A('s_lshl_b32 s%d, s%d, 11' % (sAoff, sRow0)); A('s_add_u32 s%d, s%d, %d' % (sAoff, sAoff, d['abuf']))
            A('s_lshl_b32 s%d, s%d, 8' % (sBoff, sNT))
            A('s_mul_i32 s%d, s%d, %d' % (sCoff, sRow0, d['ldc'])); A('s_add_u32 s%d, s%d, s%d' % (sCoff, sCoff, sBoff))
            if 'resid' in d: A('s_add_u32 s%d, s%d, %d' % (sRoff, sCoff, d['resid']))
            A('s_add_u32 s%d, s%d, %d' % (sCoff, sCoff, d['c']))

    TB = build_table()
    A.label('streams')
    A('s_getpc_b64 s[%d:%d]' % (sTab, sTab + 1))
    A.label('q_pc')
    A('s_add_u32 s%d, s%d, qtable-q_pc' % (sTab, sTab)); A('s_addc_u32 s%d, s%d, 0' % (sTab + 1, sTab + 1))
    A('s_lshl_b32 s%d, s%d, 5' % (sT0, sXW)); A('s_add_u32 s%d, s%d, s%d' % (sT0, sT0, sTK)); A('s_lshl_b32 s%d, s%d, 4' % (sT0, sT0))
    A('s_load_dword s%d, s[%d:%d], s%d' % (sS0, sTab, sTab + 1, sT0))
    A('s_add_u32 s%d, s%d, 4' % (sT1, sT0)); A('s_load_dword s%d, s[%d:%d], s%d' % (sS1, sTab, sTab + 1, sT1))
    A('s_add_u32 s%d, s%d, 8' % (sT2, sT0)); A('s_load_dword s%d, s[%d:%d], s%d' % (sS2, sTab, sTab + 1, sT2))
    A('s_waitcnt lgkmcnt(0)')
    A('s_lshr_b32 s%d, s%d, 28' % (sT2, sS0))
    A('s_cmp_eq_u32 s%d, %d' % (sT2, T_ATT)); A('s_cbranch_scc1 att_loop')
    A('s_cmp_eq_u32 s%d, %d' % (sT2, T_ROWLOOP)); A('s_cbranch_scc1 u_rowloop')
    A.label('ms_next')
    A('s_cmp_lg_u32 s%d, 0' % sS0); A('s_cbranch_scc1 ms_have')
    A('s_mov_b32 s%d, s%d' % (sS0, sS1)); A('s_mov_b32 s%d, s%d' % (sS1, sS2)); A('s_mov_b32 s%d, 0' % sS2)
    A('s_or_b32 s%d, s%d, s%d' % (sT0, sS0, sS1)); A('s_cmp_eq_u32 s%d, 0' % sT0); A('s_cbranch_scc1 L_exit_main')
    A('s_branch ms_next')
    A.label('ms_have')
    decode(sS0); blk_rows()
    A('s_lshr_b32 s%d, s%d, 28' % (sT5, sS0))
    for ty in types:
        Lt = A.uid('mt')
        A('s_cmp_lg_u32 s%d, %d' % (sT5, ty)); A('s_cbranch_scc1 %s' % Lt)
        gemm_setup(ty)
        A.label(Lt)
    G.load_b()
    A.label('ms_top')
    A('s_cmp_eq_u32 s%d, 0' % sS0); A('s_cbranch_scc1 ms_next')
    A('s_bfe_u32 s%d, s%d, 0x60016' % (sT0, sS0)); A('s_lshr_b32 s%d, s%d, 28' % (sT5, sS0))
    A('s_mov_b32 s%d, 16' % sCnt)
    A('s_lshl_b32 s%d, s%d, 7' % (sT2, sT0))
    A('s_add_u32 s%d, s%d, %d' % (sDep, sT2, FATT))
    A('s_add_u32 s%d, s%d, %d' % (sT3, sT2, FR1)); A('s_cmp_eq_u32 s%d, %d' % (sT5, T_W1)); A('s_cselect_b32 s%d, s%d, s%d' % (sDep, sT3, sDep))
    A('s_add_u32 s%d, s%d, %d' % (sT3, sT2, FR2)); A('s_cmp_eq_u32 s%d, %d' % (sT5, T_W3)); A('s_cselect_b32 s%d, s%d, s%d' % (sDep, sT3, sDep))
    A('s_add_u32 s%d, s%d, %d' % (sT3, sT2, FW3)); A('s_cmp_eq_u32 s%d, %d' % (sT5, T_W4)); A('s_cselect_b32 s%d, s%d, s%d' % (sDep, sT3, sDep)); A('s_cselect_b32 s%d, 28, s%d' % (sCnt, sCnt))
    Lw2 = A.uid('m2')
    A('s_cmp_lg_u32 s%d, %d' % (sT5, T_W2)); A('s_cbranch_scc1 %s' % Lw2)
    A('s_sub_u32 s%d, s%d, 1' % (sT2, sT0)); A('s_cmp_eq_u32 s%d, 0' % sT0); A('s_cselect_b32 s%d, 0, s%d' % (sT2, sT2))
    A('s_add_u32 s%d, s%d, 1' % (sT3, sT0)); A('s_cmp_eq_u32 s%d, %d' % (sT0, NB - 1)); A('s_cselect_b32 s%d, s%d, s%d' % (sT3, sT0, sT3))
    A('s_sub_u32 s%d, s%d, s%d' % (sT3, sT3, sT2)); A('s_add_u32 s%d, s%d, 1' % (sT3, sT3)); A('s_lshl_b32 s%d, s%d, 3' % (sCnt, sT3))
    A('s_lshl_b32 s%d, s%d, 5' % (sT2, sT2)); A('s_add_u32 s%d, s%d, %d' % (sDep, sT2, FW1))
    A.label(Lw2)
    A('s_mov_b32 s%d, s%d' % (sItem, sS0))
    A('s_add_u32 s%d, s%d, %d' % (sS0, sS0, 1 << 22)); A('s_bfe_u32 s%d, s%d, 0x60016' % (sT0, sS0))
    A('s_and_b32 s%d, s%d, 7' % (sT1, sS0)); A('s_add_u32 s%d, s%d, %d' % (sT1, sT1, NBIG))
    A('s_cmp_eq_u32 s%d, s%d' % (sT0, sT1)); A('s_cselect_b32 s%d, 0, s%d' % (sS0, sS0))
    decode(sItem); blk_rows()
    A('s_lshr_b32 s%d, s%d, 28' % (sT5, sItem))
    if trace:
        A('s_lshl_b32 s%d, s%d, 11' % (sQi, sT5)); A('s_mul_i32 s%d, s%d, 48' % (sT0, sRB)); A('s_add_u32 s%d, s%d, s%d' % (sQi, sQi, sT0))
        A('s_lshl_b32 s%d, s%d, 3' % (sT0, sKS)); A('s_add_u32 s%d, s%d, s%d' % (sQi, sQi, sT0)); A('s_add_u32 s%d, s%d, s%d' % (sQi, sQi, sNT))
        A('s_memrealtime s[98:99]')
    A('s_mov_b32 s%d, 0' % sItem)
    for ty in types:
        Lt = A.uid('mr')
        A('s_cmp_lg_u32 s%d, %d' % (sT5, ty)); A('s_cbranch_scc1 %s' % Lt)
        gemm_setup(ty)
        A.label(Lt)
    GS.setup(); wait_flags(A); A('s_branch gemm_main_s')

    A.label('att_loop')
    A('s_bfe_u32 s%d, s%d, 0x50011' % (sChunk, sS0))
    sAS = sD1
    A('s_lshr_b32 s%d, s%d, 3' % (sAS, sChunk))
    A.label('att_next')
    A('s_cmp_ge_u32 s%d, 64' % sAS); A('s_cbranch_scc1 att_fin')
    A('s_mov_b32 s%d, s%d' % (sRB, sAS)); A('s_and_b32 s%d, s%d, 7' % (sNT, sChunk)); A('s_add_u32 s%d, s%d, 2' % (sAS, sAS))
    if trace:
        A('s_lshl_b32 s%d, s%d, 3' % (sQi, sRB)); A('s_add_u32 s%d, s%d, s%d' % (sQi, sQi, sNT)); A('s_add_u32 s%d, s%d, 2048' % (sQi, sQi))
        A('s_memrealtime s[98:99]')
    wave_id(A, sSp)
    Lad = A.uid('ad'); Lap = A.uid('ap')
    A('s_cmp_lg_u32 s%d, 0' % sSp); A('s_cbranch_scc1 %s' % Lad)
    A('s_lshr_b32 s%d, s%d, 2' % (sT5, sRB)); A('s_mul_i32 s%d, s%d, 384' % (sT0, sT5)); A('s_lshl_b32 s%d, s%d, 4' % (sT1, sNT)); A('s_add_u32 s%d, s%d, s%d' % (sT0, sT0, sT1))
    A('s_add_u32 s%d, s%d, %d' % (sT0, sT0, FQKV))
    A('v_lshrrev_b32 v248, 2, v0'); A('v_lshlrev_b32 v248, 7, v248'); A('v_and_b32 v249, 3, v0'); A('v_lshl_add_u32 v248, v249, 2, v248'); A('v_add_u32 v248, s%d, v248' % sT0)
    A('s_lshl_b32 s%d, s%d, 10' % (sT0, sRB)); A('s_lshl_b32 s%d, s%d, 7' % (sT1, sNT)); A('s_add_u32 s%d, s%d, s%d' % (sT0, sT0, sT1)); A('s_add_u32 s%d, s%d, %d' % (sT0, sT0, FLG_SEG - 128))
    A('v_lshlrev_b32 v249, 2, v0'); A('v_add_u32 v249, s%d, v249' % sT0)
    A('v_cmp_gt_u32 vcc, 32, v0'); A('s_nop 1'); A('v_cndmask_b32 v250, v249, v248, vcc')
    A('s_mov_b32 s%d, 0xfff' % sMsk); A('s_mov_b32 s%d, -1' % (sMsk + 1)); A('s_mov_b64 exec, s[%d:%d]' % (sMsk, sMsk + 1))
    A('s_mov_b32 s%d, 0' % sSp)
    A.label(Lap)
    A('buffer_load_dword v251, v250, s[8:11], 0 offen sc1')
    A('s_add_u32 s%d, s%d, 1' % (sSp, sSp)); A('s_cmp_gt_u32 s%d, %d' % (sSp, SPIN)); A('s_cbranch_scc1 worker_abort')
    A('s_waitcnt vmcnt(0)')
    A('v_cmp_eq_u32 vcc, 0, v251'); A('s_cbranch_vccz %s_ok' % Lap)
    A('s_sleep 2'); A('s_branch %s' % Lap)
    A.label(Lap + '_ok')
    A('s_mov_b64 exec, -1')
    A.label(Lad)
    A('s_barrier')
    if trace: A('s_memrealtime s[100:101]')
    def code():
        A('s_lshr_b32 s%d, s%d, 1' % (sT0, sRB)); A('s_lshl_b32 s%d, s%d, 5' % (sT0, sT0))
        A('s_and_b32 s%d, s%d, 1' % (sT1, sRB)); A('s_lshl_b32 s%d, s%d, 3' % (sT1, sT1)); A('s_add_u32 s%d, s%d, s%d' % (sT0, sT0, sT1))
        A('s_add_u32 s%d, s%d, s%d' % (sT0, sT0, sNT))
    own(FATT, code)
    A('s_mov_b32 s%d, s%d' % (sSeg, sRB)); A('s_lshl_b32 s%d, s%d, 2' % (sHead, sNT))
    A('s_mov_b32 s%d, 3' % sItem)
    unit_att(A)
    A('s_branch unit_done')

    A.label('att_fin')
    A('s_mov_b32 s%d, 0' % sS0)
    A('s_branch ms_next')
    sN1, sN2, sN3 = sS0, sS1, sS2
    A.label('u_rowloop')
    A('s_bfe_u32 s%d, s%d, 0x50011' % (sChunk, sS0))
    A('s_mov_b32 s%d, 0' % sN1); A('s_mov_b32 s%d, 0' % sN2); A('s_mov_b32 s%d, 0' % sN3)
    A.label('rl_top')
    A('s_cmp_ge_u32 s%d, 16' % sN3); A('s_cbranch_scc1 L_exit_main')
    wave_id(A, sSp)
    A('s_cmp_lg_u32 s%d, 0' % sSp); A('s_cbranch_scc1 rl_wait')
    A('v_lshlrev_b32 v250, 2, v0'); A('s_mov_b32 s%d, 0' % sSp)
    A.label('rl_poll')
    A('s_lshr_b32 s%d, s%d, 4' % (sT1, sChunk))
    for reg, base, sh, n_ in ((247, FO, 8, sN1), (248, FW2, 5, sN2), (249, FW4, 8, sN3)):
        A('s_min_u32 s%d, s%d, 15' % (sT0, n_)); A('s_lshl_b32 s%d, s%d, 1' % (sT0, sT0)); A('s_add_u32 s%d, s%d, s%d' % (sT0, sT0, sT1))
        A('s_lshl_b32 s%d, s%d, %d' % (sT0, sT0, sh)); A('s_add_u32 s%d, s%d, %d' % (sT0, sT0, base))
        A('buffer_load_dword v%d, v250, s[8:11], s%d offen sc1' % (reg, sT0))
    A('s_add_u32 s%d, s%d, 1' % (sSp, sSp)); A('s_cmp_gt_u32 s%d, %d' % (sSp, SPIN)); A('s_cbranch_scc1 worker_abort')
    A('s_waitcnt vmcnt(0)')
    A('s_mov_b32 s%d, 0' % sT5)
    for code_, reg, cnt, n_ in ((1, 247, 48, sN1), (2, 248, 8, sN2), (3, 249, 48, sN3)):
        Ln = A.uid('rn')
        A('s_cmp_lg_u32 s%d, 0' % sT5); A('s_cbranch_scc1 %s' % Ln)
        A('s_cmp_ge_u32 s%d, 16' % n_); A('s_cbranch_scc1 %s' % Ln)
        A('v_cmp_eq_u32 vcc, 0, v%d' % reg)
        if cnt == 48: A('s_and_b32 vcc_hi, vcc_hi, 0xffff')
        else: A('s_and_b32 vcc_lo, vcc_lo, 0xff'); A('s_mov_b32 vcc_hi, 0')
        A('s_cmp_lg_u64 vcc, 0'); A('s_cbranch_scc1 %s' % Ln)
        A('s_mov_b32 s%d, %d' % (sT5, code_))
        A.label(Ln)
    A('s_cmp_lg_u32 s%d, 0' % sT5); A('s_cbranch_scc1 rl_got')
    A('s_sleep 2'); A('s_branch rl_poll')
    A.label('rl_got')
    A('v_mov_b32 v250, 163832'); A('v_mov_b32 v251, s%d' % sT5); A('s_mov_b64 exec, 1'); A('ds_write_b32 v250, v251'); A('s_mov_b64 exec, -1'); A('s_waitcnt lgkmcnt(0)')
    A.label('rl_wait')
    A('s_barrier')
    A('v_mov_b32 v250, 163832'); A('ds_read_b32 v251, v250'); A('s_waitcnt lgkmcnt(0)'); A('v_readfirstlane_b32 s%d, v251' % sT5)
    A('s_barrier')
    if trace: A('s_memrealtime s[98:99]'); A('s_memrealtime s[100:101]')
    A('s_mov_b32 s%d, 2' % sItem)
    for c_ in (2, 3):
        A('s_cmp_eq_u32 s%d, %d' % (sT5, c_)); A('s_cbranch_scc1 rl_%d' % c_)
    def pick(n_, T_, lab):
        A('s_lshl_b32 s%d, s%d, 1' % (sRB, n_)); A('s_lshr_b32 s%d, s%d, 4' % (sT1, sChunk)); A('s_add_u32 s%d, s%d, s%d' % (sRB, sRB, sT1)); A('s_and_b32 s%d, s%d, 15' % (sNT, sChunk))
        if trace:
            A('s_mul_i32 s%d, s%d, 48' % (sQi, sRB)); A('s_add_u32 s%d, s%d, s%d' % (sQi, sQi, sNT)); A('s_add_u32 s%d, s%d, %d' % (sQi, sQi, T_ * 2048))
        A('s_add_u32 s%d, s%d, 1' % (n_, n_)); blk_rows(); A('s_branch %s' % lab)
    pick(sN1, T_R1, 'u_r1')
    A.label('rl_2'); pick(sN2, T_R2, 'u_r2')
    A.label('rl_3'); pick(sN3, T_R3, 'u_r3')
    def rowu(lab, ownbase, fn, pre=None):
        A.label(lab)
        if ownbase is not None:
            own(ownbase, lambda: (A('s_lshl_b32 s%d, s%d, 5' % (sT0, sRB)), A('s_add_u32 s%d, s%d, s%d' % (sT0, sT0, sNT))))
        if pre: pre()
        A('s_lshl_b32 s%d, s%d, 2' % (sT0, sNT)); A('s_add_u32 s%d, s%d, s%d' % (sRow, sRow0, sT0))
        fn(A)
        A('s_branch %s' % ('unit_done' if ownbase is not None else 'unit_nosig'))
    rowu('u_r1', FR1, unit_r1, lambda: mk_srd(A, SRD_R, A_X, 4 * MB))
    rowu('u_r2', FR2, unit_r2)
    rowu('u_r3', None, unit_r3, lambda: mk_srd(A, SRD_C, D_OUT, 4 * MB))

    def epis(G_, sfx):
        A('s_cmp_eq_u32 s%d, 1' % sMode); A('s_cbranch_scc1 epi1%s' % sfx)
        A('s_cmp_eq_u32 s%d, 2' % sMode); A('s_cbranch_scc1 epi2%s' % sfx)
        G_.epi_bf16(); A('s_branch unit_done')
        A.label('epi1' + sfx); G_.epi_bf16(gelu=True); A('s_branch unit_done')
        A.label('epi2' + sfx); G_.epi_bf16(resid=True); A('s_branch unit_done')
    A.label('gemm_main')
    G.mainloop()
    G.epi_bf16(); A('s_branch unit_done')
    A.label('gemm_main_s')
    GS.mainloop()
    epis(GS, 's')
    def trace_out():
        if trace:
            A('s_memrealtime s[68:69]'); A('s_waitcnt lgkmcnt(0)')
            Lt = A.uid('tr')
            A('v_cmp_eq_u32 vcc, 0, v0'); A('s_and_saveexec_b64 s[%d:%d], vcc' % (sMsk, sMsk + 1)); A('s_cbranch_execz %s' % Lt)
            A('v_mov_b32 v240, s98'); A('v_mov_b32 v241, s100'); A('v_mov_b32 v242, s66'); A('v_mov_b32 v243, s68')
            A('s_sub_u32 s%d, s62, s60' % sT1); A('s_sub_u32 s%d, s64, s62' % sT2)
            A('v_mov_b32 v244, s%d' % sT1); A('v_mov_b32 v245, s%d' % sT2); A('v_mov_b32 v246, 0'); A('v_mov_b32 v247, 0')
            A('s_lshl_b32 s%d, s%d, 5' % (sT0, sQi)); A('s_add_u32 s%d, s%d, %d' % (sT0, sT0, TRC)); A('v_mov_b32 v250, 0')
            A('buffer_store_dwordx4 v[240:243], v250, s[8:11], s%d offen' % sT0)
            A('buffer_store_dwordx4 v[244:247], v250, s[8:11], s%d offen offset:16' % sT0)
            A.label(Lt)
            A('s_mov_b64 exec, s[%d:%d]' % (sMsk, sMsk + 1))
    A.label('unit_done')
    if trace: A('s_memrealtime s[66:67]')
    signal_flag(A)
    trace_out()
    A('s_cmp_eq_u32 s%d, 1' % sItem); A('s_cbranch_scc1 qkv_next')
    A('s_cmp_eq_u32 s%d, 2' % sItem); A('s_cbranch_scc1 rl_top')
    A('s_cmp_eq_u32 s%d, 3' % sItem); A('s_cbranch_scc1 att_next')
    A('s_branch ms_top')
    A.label('unit_nosig')
    if trace: A('s_memrealtime s[66:67]')
    A('s_waitcnt vmcnt(0)'); A('s_barrier')
    trace_out()
    A('s_branch rl_top')
    A.label('worker_abort')
    A('s_mov_b64 exec, 1')
    A('v_mov_b32 v250, 1'); A('v_mov_b32 v251, 132')
    A('global_atomic_add v251, v250, s[6:7] sc1'); A('s_waitcnt vmcnt(0)')
    A.label('L_exit_main')
    A('s_endpgm')
    A.raw('.p2align 2')
    A.raw('.type qtable,@object')
    A.label('qtable')
    for x in range(8):
        for t in range(32):
            A.raw('    .long ' + ', '.join('0x%08x' % w for w in TB[x, t] + [0]))
    A.raw('.section .rodata,"a"')
    A.raw('.p2align 6'); kernel_desc(A, KNAME)
    return A.text()
if __name__ == '__main__':
    kw = {}
    for x in sys.argv[2:]:
        k, v = x.split('=')
        kw[k] = v
    ck = dict(rearly=int(kw.pop('rearly', 4)), vdefer=int(kw.pop('vdefer', 0)))
    if kw.get('trace'): ck['steptrace'] = True
    if kw.pop('rt', None): ck['rt'] = 1
    for k_ in ('touch', 'd1', 'd4', 'd6'):
        if k_ in kw: ck[k_] = int(kw.pop(k_))
    kw['chain_kw'] = ck
    open(sys.argv[1], 'w').write(gen(**kw))
```

```python
from asmlib import *
from layout import *
import struct, math

LDS_WO = 0
LDS_XB = 131072
LDS_XV = LDS_XB + 12288
LDS_RED = LDS_XB + 16384
LDS_KX = 151552
LDS_VX = 159744
LDS_CHAIN_END = 163840
SPIN_LIMIT = 1 << 22
RDELTA = PART - MEMB

SRD_WS = 8
SRD_T = 12
S_DBG = 6
sX, sC, sW, sH, sJ, sS = 16, 17, 18, 19, 20, 21
sMEMc, sMEMn, sMEMp, sQKc, sQKp, sOBc, sOBp, sMRc, sQKv, sKMs, sVMs, sFLo, sDMo, sMRp, sOBc2 = range(22, 37)
sT0, sT1, sT2, sT3 = 37, 38, 39, 40
sSPIN = 41
sHI, sN8 = 42, 44
sC_, sFE = 46, 47
sTM = 48
sLO32 = 54
sKMM = 58
sACC = 60
sRT = 80
sKMb, sVMb, sFLb, sQKb, sMEMb, sMRb, sOBb, sKXb, sVXb = range(86, 95)
OOBS = 0x70000000
OOBV = 0x7ff00000

def wreg(kl, mu, t):
    idx = kl * 12 + mu * 4 + t
    return 256 + idx * 8 if idx < 32 else 128 + (idx - 32) * 8

def gen_chain(A, intra='', timing=False, nsteps=64, d4=0, d6=0, d1=0, kvwait=None, looptime=False, steptrace=False, rpos=0, dbgwait=0, noflag=0, nokm=0, finish=None, rt=0, rearly=0, vdefer=0, touch=0, early_end=1):
    I = intra
    def st(x): return (x + ' ' + I).rstrip()
    WS = 's[%d:%d]' % (SRD_WS, SRD_WS + 3)
    (vL16, vXq0, vXq1, vXq2, vXq3, vXqR, vXvW, vXvR, vQkSt, vQkLd, vQkL, vOSt, vIdx, vBias, vKx0, vKx1, vKx2, vKx3, vVx, vWoR,
     vKmSt, vVmSt, vD0, vD1, vD2, vD3, vPq, vPo, vPm, vRedW, vRedR, vFlg, vVM, vVM1, vOnes, vOnes1) = range(36)
    vXq = [vXq0, vXq1, vXq2, vXq3]; vKxD4 = [vD0, vD1, vD2, vD3]
    vT = 36
    W0 = 40
    vLane, vG, vN = 120, 121, 122
    t0, t1, t2, t3 = 123, 124, 125, 126
    A.c('=== chain v4 ===')
    A('v_and_b32 v%d, 63, v0' % vLane)
    A('v_lshrrev_b32 v%d, 6, v0' % t0)
    A('s_nop 0')
    A('v_readfirstlane_b32 s%d, v%d' % (sW, t0))
    A('v_lshrrev_b32 v%d, 4, v%d' % (vG, vLane))
    A('v_and_b32 v%d, 15, v%d' % (vN, vLane))
    A('s_lshr_b32 s%d, s%d, 1' % (sT0, sC))
    A('s_and_b32 s%d, s%d, 1' % (sJ, sC))
    A('s_lshl_b32 s%d, s%d, 4' % (sH, sX))
    A('s_add_u32 s%d, s%d, s%d' % (sH, sH, sT0))
    A('v_cmp_le_u32 s[%d:%d], 32, v%d' % (sHI, sHI + 1, vLane))
    A('v_cmp_gt_u32 s[%d:%d], 8, v%d' % (sN8, sN8 + 1, vN))
    cval = struct.unpack('<I', struct.pack('<f', (128 ** -0.5) * math.log2(math.e)))[0]
    A('s_mov_b32 s%d, 0x%08x' % (sC_, cval))
    A('s_mov_b32 s%d, 0xfffefffe' % sFE)
    A('s_mov_b32 s56, 0x%08x' % cval); A('s_mov_b32 s57, 0x%08x' % cval)
    A('s_mov_b32 s%d, -1' % sLO32); A('s_mov_b32 s%d, 0' % (sLO32 + 1))
    A('v_lshlrev_b32 v%d, 4, v%d' % (vL16, vLane))
    for t in range(4):
        A('s_sub_u32 s%d, s%d, %d' % (sT0, sW, t + 1)); A('s_and_b32 s%d, s%d, 3' % (sT0, sT0)); A('s_lshl_b32 s%d, s%d, 10' % (sT0, sT0))
        A('s_add_u32 s%d, s%d, %d' % (sT0, sT0, LDS_XB + t * 3072))
        A('v_add_u32 v%d, s%d, v%d' % (vXq[t], sT0, vL16))
    A('s_mul_i32 s%d, s%d, 3072' % (sT0, sW)); A('s_add_u32 s%d, s%d, %d' % (sT0, sT0, LDS_XB))
    A('v_add_u32 v%d, s%d, v%d' % (vXqR, sT0, vL16))
    A('s_lshl_b32 s%d, s%d, 11' % (sT0, sW)); A('s_add_u32 s%d, s%d, %d' % (sT0, sT0, LDS_XV))
    A('v_add_u32 v%d, s%d, v%d' % (vXvW, sT0, vL16))
    A('s_lshr_b32 s%d, s%d, 1' % (sT0, sW)); A('s_lshl_b32 s%d, s%d, 10' % (sT0, sT0))
    A('s_and_b32 s%d, s%d, 1' % (sT1, sW)); A('s_lshl_b32 s%d, s%d, 3' % (sT1, sT1))
    A('s_add_u32 s%d, s%d, s%d' % (sT0, sT0, sT1)); A('s_add_u32 s%d, s%d, %d' % (sT0, sT0, LDS_XV))
    A('v_add_u32 v%d, s%d, v%d' % (vXvR, sT0, vL16))
    A('s_lshl_b32 s%d, s%d, 15' % (sT0, sW))
    A('v_add_u32 v%d, s%d, v%d' % (vWoR, sT0, vL16))
    A('s_lshl_b32 s%d, s%d, 10' % (sT0, sW)); A('s_add_u32 s%d, s%d, %d' % (sT0, sT0, LDS_RED))
    A('v_lshlrev_b32 v%d, 8, v%d' % (vRedW, vG))
    A('v_lshl_add_u32 v%d, v%d, 2, v%d' % (vRedW, vN, vRedW))
    A('v_add_u32 v%d, s%d, v%d' % (vRedW, sT0, vRedW))
    A('v_lshrrev_b32 v%d, 2, v%d' % (t0, vN)); A('v_lshlrev_b32 v%d, 1, v%d' % (t0, t0)); A('v_and_b32 v%d, 1, v%d' % (t1, vN)); A('v_add_u32 v%d, v%d, v%d' % (t0, t0, t1))
    A('v_lshlrev_b32 v%d, 7, v%d' % (vRedR, t0))
    A('v_bfe_u32 v%d, v%d, 1, 1' % (t1, vN)); A('v_lshl_add_u32 v%d, v%d, 5, v%d' % (vRedR, t1, vRedR))
    A('v_bfe_u32 v%d, v%d, 4, 1' % (t1, vLane)); A('v_lshl_add_u32 v%d, v%d, 6, v%d' % (vRedR, t1, vRedR))
    A('v_add_u32 v%d, %d, v%d' % (vRedR, LDS_RED, vRedR))
    vRr = 119
    A('v_mov_b32 v%d, v%d' % (vRr, t0))
    A('v_and_b32 v%d, 7, v%d' % (t0, vN))
    A('v_lshrrev_b32 v%d, 3, v%d' % (t1, vN))
    A('v_lshlrev_b32 v%d, 7, v%d' % (vQkSt, t1))
    A('v_lshl_add_u32 v%d, v%d, 5, v%d' % (vQkSt, vG, vQkSt))
    A('v_lshl_add_u32 v%d, v%d, 1, v%d' % (vQkSt, t0, vQkSt))
    A('s_lshl_b32 s%d, s%d, 10' % (sT0, sJ)); A('s_lshl_b32 s%d, s%d, 8' % (sT1, sW)); A('s_add_u32 s%d, s%d, s%d' % (sT0, sT0, sT1))
    A('v_add_u32 v%d, s%d, v%d' % (vQkSt, sT0, vQkSt))
    A('v_lshlrev_b32 v%d, 7, v%d' % (vQkLd, vG))
    A('v_lshl_add_u32 v%d, v%d, 4, v%d' % (vQkLd, t0, vQkLd))
    A('v_add_u32 v%d, %d, v%d' % (vQkL, LDS_XB, vQkLd))
    A('v_lshlrev_b32 v%d, 7, v%d' % (vBias, vG)); A('v_lshl_add_u32 v%d, v%d, 4, v%d' % (vBias, vRr, vBias)); A('v_add_u32 v%d, %d, v%d' % (vBias, LDS_XB + 2048, vBias))
    A('v_and_b32 v%d, 1, v%d' % (t2, vG))
    A('v_lshrrev_b32 v%d, 1, v%d' % (t3, vN)); A('v_lshlrev_b32 v%d, 2, v%d' % (vOSt, t3))
    A('v_and_b32 v%d, 1, v%d' % (t3, vN)); A('v_add_u32 v%d, v%d, v%d' % (vOSt, vOSt, t3))
    A('v_lshrrev_b32 v%d, 1, v%d' % (t3, vG)); A('v_lshl_add_u32 v%d, v%d, 1, v%d' % (vOSt, t3, vOSt))
    A('v_lshlrev_b32 v%d, 4, v%d' % (vOSt, vOSt))
    A('v_lshl_add_u32 v%d, v%d, 3, v%d' % (vOSt, t2, vOSt))
    A('s_lshl_b32 s%d, s%d, 10' % (sT1, sC)); A('s_lshl_b32 s%d, s%d, 8' % (sT2, sW)); A('s_add_u32 s%d, s%d, s%d' % (sT1, sT1, sT2))
    A('v_add_u32 v%d, s%d, v%d' % (vOSt, sT1, vOSt))
    A('v_mov_b32 v%d, 0x%x' % (t3, OOBV))
    A('v_cndmask_b32 v%d, v%d, v%d, s[%d:%d]' % (vOSt, t3, vOSt, sN8, sN8 + 1))
    A('v_mov_b32 v%d, 0x4444' % vIdx); A('v_mov_b32 v%d, 0xeeee' % t2)
    A('v_and_b32 v%d, 2, v%d' % (t3, vN)); A('v_cmp_ne_u32 vcc, 0, v%d' % t3); A('s_nop 1')
    A('v_cndmask_b32 v%d, v%d, v%d, vcc' % (vIdx, vIdx, t2))
    A('v_mov_b32 v%d, 0x3f803f80' % vOnes); A('v_mov_b32 v%d, 0x3f803f80' % vOnes1)
    A('v_xor_b32 v%d, v%d, v%d' % (t2, vG, vN)); A('v_lshlrev_b32 v%d, 4, v%d' % (t2, t2)); A('v_lshl_add_u32 v%d, v%d, 8, v%d' % (t2, vN, t2))
    A('v_add_u32 v%d, %d, v%d' % (vKx0, LDS_KX, t2))
    for k in range(1, 4): A('v_xor_b32 v%d, %d, v%d' % (vKx0 + k, k * 64, vKx0))
    A('v_lshrrev_b32 v%d, 2, v%d' % (t2, vN)); A('v_lshl_add_u32 v%d, v%d, 2, v%d' % (t2, vG, t2))
    A('v_lshrrev_b32 v%d, 1, v%d' % (t3, t2)); A('v_and_b32 v%d, 3, v%d' % (t3, t3)); A('v_xor_b32 v%d, s%d, v%d' % (t3, sW, t3))
    A('v_lshlrev_b32 v%d, 5, v%d' % (t3, t3)); A('v_lshl_add_u32 v%d, v%d, 7, v%d' % (t3, t2, t3))
    A('v_and_b32 v%d, 3, v%d' % (t2, vN)); A('v_lshl_add_u32 v%d, v%d, 3, v%d' % (t3, t2, t3))
    A('v_add_u32 v%d, %d, v%d' % (vVx, LDS_VX, t3))
    A('v_lshlrev_b32 v%d, 4, v%d' % (vKmSt, vG)); A('v_lshl_add_u32 v%d, v%d, 13, v%d' % (vKmSt, vN, vKmSt))
    A('v_lshrrev_b32 v%d, 2, v%d' % (t2, vN))
    A('v_cmp_eq_u32 s[%d:%d], s%d, v%d' % (sKMM, sKMM + 1, sJ, t2))
    A('v_mov_b32 v%d, 0x%x' % (t3, OOBV))
    A('v_lshlrev_b32 v%d, 2, v%d' % (vVmSt, vLane))
    A('v_mov_b32 v%d, 0' % vVM1)
    A('v_cndmask_b32 v%d, v%d, v%d, s[%d:%d]' % (vKmSt, t3, vKmSt, sKMM, sKMM + 1))
    A('v_cmp_eq_u32 vcc, 0, v%d' % vLane); A('s_nop 1'); A('v_cndmask_b32 v%d, v%d, 0, vcc' % (vFlg, t3))
    for i in range(4):
        A('v_add_u32 v%d, %d, v%d' % (t2, 4 * i, vG)); A('v_xor_b32 v%d, v%d, v%d' % (t3, t2, vN)); A('v_lshlrev_b32 v%d, 4, v%d' % (t3, t3))
        A('v_lshl_add_u32 v%d, v%d, 13, v%d' % (t3, t2, t3)); A('v_subrev_u32 v%d, %d, v%d' % (vKxD4[i], 1024 * i, t3))
    Lw3 = A.uid('w3')
    A('s_cmp_lg_u32 s%d, 3' % sW); A('s_cbranch_scc1 %s' % Lw3)
    for i in range(4):
        A('v_lshrrev_b32 v%d, 3, v%d' % (t2, vLane)); A('v_add_u32 v%d, %d, v%d' % (t2, 8 * i, t2))
        A('v_lshrrev_b32 v%d, 1, v%d' % (t3, t2)); A('v_and_b32 v%d, 3, v%d' % (t3, t3))
        A('v_bfe_u32 v%d, v%d, 1, 2' % (t1, vLane)); A('v_xor_b32 v%d, v%d, v%d' % (t3, t3, t1)); A('v_lshlrev_b32 v%d, 5, v%d' % (t3, t3))
        A('v_and_b32 v%d, 1, v%d' % (t1, vLane)); A('v_lshl_add_u32 v%d, v%d, 4, v%d' % (t3, t1, t3))
        A('v_lshl_add_u32 v%d, v%d, 13, v%d' % (t3, t2, t3)); A('v_subrev_u32 v%d, %d, v%d' % (vKxD4[i], 1024 * i, t3))
    A.label(Lw3)
    A('v_bfe_u32 v%d, v%d, 4, 1' % (t2, vLane)); A('v_lshlrev_b32 v%d, 11, v%d' % (vPq, t2)); A('v_lshl_add_u32 v%d, v%d, 4, v%d' % (vPq, vN, vPq))
    A('s_lshl_b32 s%d, s%d, 10' % (sT0, sJ)); A('s_lshl_b32 s%d, s%d, 8' % (sT1, sW)); A('s_add_u32 s%d, s%d, s%d' % (sT0, sT0, sT1))
    A('v_add_u32 v%d, s%d, v%d' % (vPq, sT0, vPq))
    A('s_lshl_b32 s%d, s%d, 10' % (sT0, sC)); A('s_add_u32 s%d, s%d, s%d' % (sT0, sT0, sT1))
    A('v_add_u32 v%d, s%d, v%d' % (vPo, sT0, vL16))
    A('s_lshl_b32 s%d, s%d, 9' % (sT0, sC)); A('v_add_u32 v%d, s%d, v%d' % (vPm, sT0, vL16))
    A('v_mov_b32 v%d, 0x%x' % (t3, OOBV))
    A('v_cndmask_b32 v%d, v%d, v%d, s[%d:%d]' % (vPq, vPq, t3, sHI, sHI + 1))
    A('v_cndmask_b32 v%d, v%d, v%d, s[%d:%d]' % (vPm, vPm, t3, sHI, sHI + 1))
    A('v_cmp_le_u32 vcc, 16, v%d' % vLane); A('s_nop 1'); A('v_cndmask_b32 v%d, v%d, v%d, vcc' % (vPo, vPo, t3))
    A('s_lshl_b32 s%d, s%d, 8' % (sT0, sH)); A('s_lshl_b32 s%d, s%d, 6' % (sT1, sW))
    A('s_add_u32 s%d, s%d, s%d' % (sKMb, sT0, sT1)); A('s_add_u32 s%d, s%d, %d' % (sKMb, sKMb, KM))
    A('s_lshl_b32 s%d, s%d, 3' % (sT0, sH)); A('s_lshl_b32 s%d, s%d, 2' % (sT1, sJ))
    A('s_add_u32 s%d, s%d, s%d' % (sT0, sT0, sT1)); A('s_add_u32 s%d, s%d, s%d' % (sT0, sT0, sW))
    A('s_lshl_b32 s%d, s%d, 8' % (sVMb, sT0)); A('s_add_u32 s%d, s%d, %d' % (sVMb, sVMb, VMF))
    A('s_lshl_b32 s%d, s%d, 2' % (sFLb, sT0)); A('s_add_u32 s%d, s%d, %d' % (sFLb, sFLb, FLG_SEG))
    A('s_lshl_b32 s%d, s%d, 14' % (sQKb, sH)); A('s_add_u32 s%d, s%d, %d' % (sQKb, sQKb, QKB))
    A('s_lshl_b32 s%d, s%d, 16' % (sMEMb, sX)); A('s_add_u32 s%d, s%d, %d' % (sMEMb, sMEMb, MEMB))
    A('s_xor_b32 s%d, s%d, 1' % (sT0, sX)); A('s_lshl_b32 s%d, s%d, 16' % (sMRb, sT0)); A('s_add_u32 s%d, s%d, %d' % (sMRb, sMRb, MEMB + RDELTA))
    A('s_lshl_b32 s%d, s%d, 17' % (sOBb, sX)); A('s_add_u32 s%d, s%d, %d' % (sOBb, sOBb, OB))
    A('s_lshl_b32 s%d, s%d, 8' % (sT0, sH))
    A('s_sub_u32 s%d, s%d, 1' % (sT1, sW)); A('s_lshl_b32 s%d, s%d, 17' % (sT2, sT1)); A('s_add_u32 s%d, s%d, s%d' % (sKXb, sT0, sT2)); A('s_add_u32 s%d, s%d, %d' % (sKXb, sKXb, KX))
    A('s_lshl_b32 s%d, s%d, 12' % (sVXb, sT1)); A('s_add_u32 s%d, s%d, %d' % (sVXb, sVXb, LDS_KX))
    A('s_lshl_b32 s%d, s%d, 7' % (sT1, sJ)); A('s_add_u32 s%d, s%d, s%d' % (sT0, sT0, sT1)); A('s_add_u32 s%d, s%d, %d' % (sT0, sT0, VX))
    A('s_cmp_eq_u32 s%d, 3' % sW); A('s_cselect_b32 s%d, s%d, s%d' % (sKXb, sT0, sKXb)); A('s_cselect_b32 s%d, %d, s%d' % (sVXb, LDS_VX, sVXb))
    def calc(n):
        A('s_and_b32 s%d, s%d, 3' % (sT0, n))
        A('s_lshl_b32 s%d, s%d, 14' % (sT1, sT0)); A('s_lshl_b32 s%d, s%d, 12' % (sT2, sW)); A('s_add_u32 s%d, s%d, s%d' % (sT1, sT1, sT2))
        A('s_add_u32 s%d, s%d, s%d' % (sMEMc, sMEMb, sT1)); A('s_add_u32 s%d, s%d, s%d' % (sMRc, sMRb, sT1))
        A('s_lshl_b32 s%d, s%d, 12' % (sT1, sT0)); A('s_add_u32 s%d, s%d, s%d' % (sQKc, sQKb, sT1))
        A('s_add_u32 s%d, s%d, 3' % (sT0, n)); A('s_and_b32 s%d, s%d, 3' % (sT0, sT0))
        A('s_lshl_b32 s%d, s%d, 12' % (sT1, sT0)); A('s_add_u32 s%d, s%d, s%d' % (sQKv, sQKb, sT1))
        A('s_lshl_b32 s%d, s%d, 9' % (sT1, sW)); A('s_add_u32 s%d, s%d, s%d' % (sQKv, sQKv, sT1))
        A('s_add_u32 s%d, s%d, 2' % (sT0, n)); A('s_and_b32 s%d, s%d, 3' % (sT0, sT0))
        A('s_lshl_b32 s%d, s%d, 12' % (sT1, sT0)); A('s_add_u32 s%d, s%d, s%d' % (sQKp, sQKb, sT1))
        A('s_lshl_b32 s%d, s%d, 14' % (sT1, sT0)); A('s_add_u32 s%d, s%d, s%d' % (sMEMp, sMEMb, sT1)); A('s_add_u32 s%d, s%d, %d' % (sMRp, sMEMp, RDELTA))
        A('s_lshl_b32 s%d, s%d, 15' % (sT1, sT0)); A('s_add_u32 s%d, s%d, s%d' % (sOBp, sOBb, sT1))
        A('s_sub_u32 s%d, s%d, 1' % (sT0, n))
        A('s_lshl_b32 s%d, s%d, 16' % (sT1, sT0)); A('s_add_u32 s%d, s%d, s%d' % (sKMs, sKMb, sT1)); A('s_add_u32 s%d, s%d, s%d' % (sVMs, sVMb, sT1))
        A('s_sub_u32 s%d, s%d, 1' % (sT0, n)); A('s_lshl_b32 s%d, s%d, 10' % (sT1, sT0)); A('s_add_u32 s%d, s%d, s%d' % (sFLo, sFLb, sT1))
        A('s_cmp_lt_u32 s%d, 1' % n); A('s_cselect_b32 s%d, 0x%x, s%d' % (sFLo, OOBS, sFLo))
        A('s_cmp_lt_u32 s%d, 1' % n); A('s_cselect_b32 s%d, 0x%x, s%d' % (sKMs, OOBS, sKMs)); A('s_cselect_b32 s%d, 0x%x, s%d' % (sVMs, OOBS, sVMs))
        A('s_lshl_b32 s%d, s%d, 18' % (sDMo, n)); A('s_add_u32 s%d, s%d, s%d' % (sDMo, sDMo, sKXb))
    def calc_ob_memn(n):
        A('s_and_b32 s%d, s%d, 3' % (sT0, n))
        A('s_lshl_b32 s%d, s%d, 15' % (sT1, sT0)); A('s_add_u32 s%d, s%d, s%d' % (sOBc, sOBb, sT1))
        A('s_lshl_b32 s%d, s%d, 13' % (sT1, sW)); A('s_add_u32 s%d, s%d, s%d' % (sOBc2, sOBc, sT1))
        A('s_add_u32 s%d, s%d, 1' % (sT0, n)); A('s_and_b32 s%d, s%d, 3' % (sT0, sT0))
        A('s_lshl_b32 s%d, s%d, 14' % (sT1, sT0)); A('s_add_u32 s%d, s%d, s%d' % (sMEMn, sMEMb, sT1))

    for i in range(4): A('v_mov_b32 v%d, -1' % (W0 + i))
    for sl in range(4):
        A('s_add_u32 s%d, s%d, %d' % (sT0, sQKb, sl * 4096))
        A(st('buffer_store_dwordx4 v[%d:%d], v%d, %s, s%d offen' % (W0, W0 + 3, vPq, WS, sT0)))
        A('s_add_u32 s%d, s%d, %d' % (sT0, sOBb, sl * 32768))
        A(st('buffer_store_dwordx4 v[%d:%d], v%d, %s, s%d offen' % (W0, W0 + 3, vPo, WS, sT0)))
        Lq = A.uid('pp')
        A('s_cmp_lg_u32 s%d, 0' % sW); A('s_cbranch_scc1 %s' % Lq)
        A('s_add_u32 s%d, s%d, %d' % (sT0, sMEMb, sl * 16384))
        A(st('buffer_store_dwordx4 v[%d:%d], v%d, %s, s%d offen' % (W0, W0 + 3, vPm, WS, sT0)))
        A('s_add_u32 s%d, s%d, %d' % (sT0, sT0, RDELTA))
        A('buffer_store_dwordx4 v[%d:%d], v%d, %s, s%d offen sc1' % (W0, W0 + 3, vPm, WS, sT0))
        A.label(Lq)
    A('s_waitcnt vmcnt(0)')
    Lm = A.uid('m0')
    A('s_cmp_lg_u32 s%d, 0' % sW); A('s_cbranch_scc1 %s' % Lm)
    A('s_load_dwordx2 s[%d:%d], s[0:1], %d' % (SRD_T, SRD_T + 1, A_MEM0))
    A('s_mov_b32 s%d, 16384' % (SRD_T + 2)); A('s_mov_b32 s%d, 0x00020000' % (SRD_T + 3))
    A('s_waitcnt lgkmcnt(0)')
    A('v_lshlrev_b32 v%d, 11, v%d' % (t2, vRr))
    A('v_bfe_u32 v%d, v%d, 1, 1' % (t3, vN)); A('v_lshl_add_u32 v%d, v%d, 4, v%d' % (t2, t3, t2))
    A('v_bfe_u32 v%d, v%d, 4, 1' % (t3, vLane)); A('v_lshl_add_u32 v%d, v%d, 5, v%d' % (t2, t3, t2))
    A('s_lshl_b32 s%d, s%d, 6' % (sT1, sC)); A('v_add_u32 v%d, s%d, v%d' % (t2, sT1, t2))
    A('buffer_load_dwordx4 v[%d:%d], v%d, s[%d:%d], 0 offen' % (W0, W0 + 3, t2, SRD_T, SRD_T + 3))
    A('s_waitcnt vmcnt(0)')
    for i in range(4): A('v_pk_min_u16 v%d, v%d, s%d' % (W0 + i, W0 + i, sFE))
    Lz0 = A.uid('mz')
    A('s_cmp_eq_u32 s%d, 0' % sX); A('s_cbranch_scc1 %s' % Lz0)
    for i in range(4): A('v_mov_b32 v%d, 0' % (W0 + i))
    A.label(Lz0)
    A(st('buffer_store_dwordx4 v[%d:%d], v%d, %s, s%d offen' % (W0, W0 + 3, vPm, WS, sMEMb)))
    A('s_add_u32 s%d, s%d, %d' % (sT2, sMEMb, RDELTA))
    A('buffer_store_dwordx4 v[%d:%d], v%d, %s, s%d offen sc1' % (W0, W0 + 3, vPm, WS, sT2))
    A('s_waitcnt vmcnt(0)')
    A.label(Lm)
    A('s_mov_b64 exec, 1')
    A('v_mov_b32 v%d, 1' % t2); A('v_mov_b32 v%d, 64' % t3)
    A('global_atomic_add v%d, v%d, s[%d:%d] sc1' % (t3, t2, S_DBG, S_DBG + 1))
    A('s_mov_b64 exec, -1')

    vDq, vTr, vDo, vWt0, vWt1 = W0, W0 + 1, W0 + 3, W0 + 4, W0 + 5
    A('v_lshrrev_b32 v%d, 3, v%d' % (t2, vLane)); A('v_lshlrev_b32 v%d, 13, v%d' % (vDq, t2))
    A('v_and_b32 v%d, 7, v%d' % (t3, vLane)); A('v_lshl_add_u32 v%d, v%d, 4, v%d' % (vDq, t3, vDq))
    A('v_bfe_u32 v%d, v%d, 2, 1' % (t2, vN)); A('v_and_b32 v%d, 1, v%d' % (t3, vG)); A('v_lshl_add_u32 v%d, v%d, 2, v%d' % (t2, t3, t2))
    A('v_lshrrev_b32 v%d, 3, v%d' % (t3, vN)); A('v_lshl_add_u32 v%d, v%d, 3, v%d' % (t2, t3, t2))
    A('v_lshrrev_b32 v%d, 1, v%d' % (t3, vG)); A('v_lshl_add_u32 v%d, v%d, 4, v%d' % (t2, t3, t2))
    A('v_lshlrev_b32 v%d, 7, v%d' % (t2, t2)); A('v_and_b32 v%d, 3, v%d' % (t3, vN)); A('v_lshl_add_u32 v%d, v%d, 3, v%d' % (t2, t3, t2))
    A('s_and_b32 s%d, s%d, 1' % (sT0, sW)); A('s_lshl_b32 s%d, s%d, 15' % (sT0, sT0))
    A('v_add_u32 v%d, s%d, v%d' % (vTr, sT0, t2))
    A('v_add_u32 v%d, 65536, v%d' % (vTr + 1, vTr))
    A('v_lshrrev_b32 v%d, 2, v%d' % (t2, vLane)); A('v_and_b32 v%d, 9, v%d' % (t3, t2))
    A('v_bfe_u32 v%d, v%d, 1, 1' % (t1, t2)); A('v_lshl_add_u32 v%d, v%d, 2, v%d' % (t3, t1, t3))
    A('v_bfe_u32 v%d, v%d, 2, 1' % (t1, t2)); A('v_lshl_add_u32 v%d, v%d, 1, v%d' % (t3, t1, t3))
    A('v_lshlrev_b32 v%d, 11, v%d' % (vDo, t3))
    A('v_bfe_u32 v%d, v%d, 1, 1' % (t1, vLane)); A('v_lshrrev_b32 v%d, 5, v%d' % (t0, vLane)); A('v_xor_b32 v%d, v%d, v%d' % (t1, t1, t0))
    A('v_lshl_add_u32 v%d, v%d, 5, v%d' % (vDo, t1, vDo)); A('v_and_b32 v%d, 1, v%d' % (t1, vLane)); A('v_lshl_add_u32 v%d, v%d, 4, v%d' % (vDo, t1, vDo))
    A('v_bfe_u32 v%d, v%d, 2, 1' % (t2, vN)); A('v_and_b32 v%d, 1, v%d' % (t3, vG)); A('v_lshl_add_u32 v%d, v%d, 1, v%d' % (t2, t3, t2))
    A('v_lshrrev_b32 v%d, 3, v%d' % (t3, vN)); A('v_lshl_add_u32 v%d, v%d, 3, v%d' % (t2, t3, t2))
    A('v_lshrrev_b32 v%d, 1, v%d' % (t1, vG)); A('v_lshl_add_u32 v%d, v%d, 4, v%d' % (t2, t1, t2))
    A('v_lshlrev_b32 v%d, 6, v%d' % (t2, t2)); A('v_lshl_add_u32 v%d, v%d, 5, v%d' % (t2, t3, t2))
    A('v_and_b32 v%d, 3, v%d' % (t1, vN)); A('v_lshl_add_u32 v%d, v%d, 3, v%d' % (t2, t1, t2))
    A('s_lshl_b32 s%d, s%d, 15' % (sT0, sW)); A('v_add_u32 v%d, s%d, v%d' % (vWt0, sT0, t2)); A('v_xor_b32 v%d, 32, v%d' % (vWt1, vWt0))
    wptr = [A_WQ, A_WK, A_WV]
    def issue_chunk(cidx):
        half = cidx & 1
        if cidx < 6:
            A('s_load_dwordx2 s[%d:%d], s[0:1], %d' % (SRD_T, SRD_T + 1, wptr[cidx >> 1]))
            A('s_mov_b32 s%d, %d' % (SRD_T + 2, 8 * MB)); A('s_mov_b32 s%d, 0x00020000' % (SRD_T + 3))
            A('s_lshl_b32 s%d, s%d, 8' % (sT0, sH)); A('s_lshl_b32 s%d, s%d, 7' % (sT1, sJ)); A('s_add_u32 s%d, s%d, s%d' % (sT0, sT0, sT1))
            A('s_lshl_b32 s%d, s%d, 20' % (sT1, sW)); A('s_add_u32 s%d, s%d, s%d' % (sT0, sT0, sT1))
            A('s_add_u32 s%d, s%d, %d' % (sT0, sT0, half * 512 * 8192))
            step_g, vd = 65536, vDq
        else:
            A('s_load_dwordx2 s[%d:%d], s[0:1], %d' % (SRD_T, SRD_T + 1, A_WO))
            A('s_mov_b32 s%d, %d' % (SRD_T + 2, 8 * MB)); A('s_mov_b32 s%d, 0x00020000' % (SRD_T + 3))
            A('s_lshl_b32 s%d, s%d, 22' % (sT0, sX)); A('s_lshl_b32 s%d, s%d, 6' % (sT1, sC)); A('s_add_u32 s%d, s%d, s%d' % (sT0, sT0, sT1))
            A('s_lshl_b32 s%d, s%d, 19' % (sT1, sW)); A('s_add_u32 s%d, s%d, s%d' % (sT0, sT0, sT1))
            A('s_add_u32 s%d, s%d, %d' % (sT0, sT0, half * 1024 * 2048))
            step_g, vd = 32768, vDo
        A('s_lshl_b32 s%d, s%d, 14' % (sT1, sW)); A('s_add_u32 s%d, s%d, %d' % (sT1, sT1, half * 65536))
        A('s_waitcnt lgkmcnt(0)')
        for i in range(16):
            A('s_add_u32 m0, s%d, %d' % (sT1, i * 1024))
            A('s_add_u32 s%d, s%d, %d' % (sT2, sT0, i * step_g))
            A('buffer_load_dwordx4 v%d, s[%d:%d], s%d offen lds' % (vd, SRD_T, SRD_T + 3, sT2))
    def read_chunk(cidx):
        half = cidx & 1; mu = cidx >> 1
        Le = A.uid('rce')
        A('s_lshr_b32 s%d, s%d, 1' % (sT0, sW)); A('s_cmp_lg_u32 s%d, %d' % (sT0, half)); A('s_cbranch_scc1 %s' % Le)
        for kl in range(4):
            for t in range(4):
                Rg = wreg(kl, mu, t)
                for sg in range(4):
                    off = kl * 8192 + t * 32 + (sg & 1) * 256 + (sg >> 1) * 4096
                    A('ds_read_b64_tr_b16 %s, v%d offset:%d' % (r(Rg + 2 * sg, 2), vTr + half, off))
                if t % 2 == 1: A('s_waitcnt lgkmcnt(0)')
        A.label(Le)
    issue_chunk(0)
    for cidx in range(6):
        issue_chunk(cidx + 1)
        A('s_waitcnt vmcnt(16)'); A('s_barrier')
        read_chunk(cidx)
        A('s_waitcnt lgkmcnt(0)'); A('s_barrier')
    issue_chunk(7)
    A('s_mov_b32 s%d, 0' % sS)
    if kvwait:
        Lzw = A.uid('zw')
        A('s_mov_b32 s%d, 0' % sSPIN); A('v_mov_b32 v%d, 68' % (vT + 1))
        A.label(Lzw)
        A('global_load_dword v%d, v%d, s[%d:%d] sc1' % (vT, vT + 1, S_DBG, S_DBG + 1))
        A('s_add_u32 s%d, s%d, 1' % (sSPIN, sSPIN)); A('s_cmp_gt_u32 s%d, %d' % (sSPIN, SPIN_LIMIT)); A('s_cbranch_scc1 chain_abort')
        A('s_waitcnt vmcnt(0)')
        A('v_readfirstlane_b32 s%d, v%d' % (sT0, vT)); A('s_nop 3'); A('s_cmp_lt_u32 s%d, 192' % sT0); A('s_cbranch_scc1 %s' % Lzw)
        kvwait(A, sS)
    A('s_waitcnt vmcnt(0)'); A('s_barrier')
    CV = W0 + 8
    for hf in range(2):
        for kl in range(4):
            kap = 4 * hf + kl
            for tt in range(2):
                Rg = CV + (kl * 2 + tt) * 8
                for sg in range(4):
                    off = kap * 4096 + (sg & 1) * 256 + (sg >> 1) * 2048
                    A('ds_read_b64_tr_b16 v[%d:%d], v%d offset:%d' % (Rg + 2 * sg, Rg + 2 * sg + 1, vWt1 if tt else vWt0, off))
            A('s_waitcnt lgkmcnt(0)')
        for kl in range(4):
            kap = 4 * hf + kl
            for tt in range(2):
                Rg = CV + (kl * 2 + tt) * 8; off = (kap * 2 + tt) * 2048
                A('ds_write_b128 v%d, v[%d:%d] offset:%d' % (vWoR, Rg, Rg + 3, off))
                A('ds_write_b128 v%d, v[%d:%d] offset:%d' % (vWoR, Rg + 4, Rg + 7, off + 1024))
        A('s_waitcnt lgkmcnt(0)')
    Lw = A.uid('pw')
    A('s_mov_b32 s%d, 0' % sSPIN); A('v_mov_b32 v%d, 64' % (vT + 1))
    A.label(Lw)
    A('global_load_dword v%d, v%d, s[%d:%d] sc1' % (vT, vT + 1, S_DBG, S_DBG + 1))
    A('s_waitcnt vmcnt(0)')
    A('v_readfirstlane_b32 s%d, v%d' % (sT0, vT))
    A('s_add_u32 s%d, s%d, 1' % (sSPIN, sSPIN)); A('s_cmp_gt_u32 s%d, %d' % (sSPIN, SPIN_LIMIT)); A('s_cbranch_scc1 chain_abort')
    A('s_cmp_lt_u32 s%d, 256' % sT0); A('s_cbranch_scc1 %s' % Lw)
    A('s_barrier')
    if timing or looptime:
        for i in range(16): A('s_mov_b32 s%d, 0' % (sACC + i))
    def stamp(i):
        if timing:
            A('s_memtime s[%d:%d]' % (sTM + 2, sTM + 3)); A('s_waitcnt lgkmcnt(0)')
            A('s_sub_u32 s%d, s%d, s%d' % (sTM + 4, sTM + 2, sTM)); A('s_add_u32 s%d, s%d, s%d' % (sACC + i, sACC + i, sTM + 4))
            A('s_mov_b32 s%d, s%d' % (sTM, sTM + 2))
    if timing:
        A('s_memtime s[%d:%d]' % (sTM, sTM + 1)); A('s_waitcnt lgkmcnt(0)')
    def rts(p):
        if rt:
            L = A.uid('rt')
            A('s_sub_u32 s77, s%d, 20' % sS); A('s_cmp_ge_u32 s77, 8'); A('s_cbranch_scc1 %s' % L)
            A('s_memrealtime s[78:79]')
            A('s_lshl_b32 s76, s%d, 5' % sX); A('s_add_u32 s76, s76, s%d' % sC); A('s_lshl_b32 s76, s76, 2'); A('s_add_u32 s76, s76, s%d' % sW)
            A('s_lshl_b32 s76, s76, 3'); A('s_add_u32 s76, s76, s77'); A('s_lshl_b32 s76, s76, 6'); A('s_add_u32 s76, s76, %d' % (TRC + 4 * MB + p * 4))
            A('s_waitcnt lgkmcnt(0)')
            A('v_mov_b32 v%d, s78' % (vRT)); A('buffer_store_dword v%d, v%d, %s, s76 offen' % (vRT, vFlg, WS))
            A.label(L)
    vRT = 36
    def check(regs):
        m = vT; rs = list(regs)
        if len(rs) == 1: A('v_cmp_eq_u32 vcc, -1, v%d' % rs[0]); return
        if len(rs) == 2: A('v_max_u32 v%d, v%d, v%d' % (m, rs[0], rs[1])); rs = []
        else: A('v_max3_u32 v%d, v%d, v%d, v%d' % (m, rs[0], rs[1], rs[2])); rs = rs[3:]
        while len(rs) >= 2:
            A('v_max3_u32 v%d, v%d, v%d, v%d' % (m, m, rs[0], rs[1])); rs = rs[2:]
        if rs: A('v_max_u32 v%d, v%d, v%d' % (m, m, rs[0]))
        A('v_cmp_eq_u32 vcc, -1, v%d' % m)
    def poll(loads, regs, site=None):
        L = A.uid('poll')
        A('s_mov_b32 s%d, 0' % sSPIN)
        A.label(L)
        for x in loads: A(x)
        A('s_add_u32 s%d, s%d, 1' % (sSPIN, sSPIN)); A('s_cmp_gt_u32 s%d, %d' % (sSPIN, SPIN_LIMIT)); A('s_cbranch_scc1 chain_abort')
        A('s_waitcnt vmcnt(0)')
        check(regs)
        A('s_cbranch_vccnz %s' % L)
        if timing and site is not None: A('s_add_u32 s%d, s%d, s%d' % (sACC + 10 + site, sACC + 10 + site, sSPIN))

    calc(sS); calc_ob_memn(sS)
    vLD = W0
    vRQ = W0 + 16
    vAcc = W0 + 32
    vKR = 120
    vKX = 72; vVXF = 116
    def acc(mu, t): return vAcc + (mu * 4 + t) * 4
    def kpass(areg, fill=None):
        fill = list(fill or [])
        n = 0
        mus = (0, 1) if vdefer else (0, 1, 2)
        per = 2 if vdefer else 3
        for kl in range(4):
            for mu in mus:
                for t in range(4):
                    a_ = acc(mu, t)
                    A('v_smfmac_f32_16x16x64_bf16 v[%d:%d], v[%d:%d], %s, v%d' % (a_, a_ + 3, areg + 4 * kl, areg + 4 * kl + 3, r(wreg(kl, mu, t), 8), vIdx))
                    n += 1
                    if fill and n % per == 0:
                        for x in fill.pop(0): A(x)
        for g_ in fill:
            for x in g_: A(x)

    if looptime:
        A('s_memrealtime s[%d:%d]' % (sRT, sRT + 1)); A('s_waitcnt lgkmcnt(0)')
    A.label('chain_step')
    if steptrace:
        Lst = A.uid('st')
        A('s_cmp_lg_u32 s%d, 0' % sW); A('s_cbranch_scc1 %s' % Lst)
        A('s_memrealtime s[84:85]')
        A('s_lshl_b32 s%d, s%d, 5' % (sT0, sX)); A('s_add_u32 s%d, s%d, s%d' % (sT0, sT0, sC)); A('s_lshl_b32 s%d, s%d, 7' % (sT0, sT0))
        A('s_add_u32 s%d, s%d, s%d' % (sT0, sT0, sS)); A('s_lshl_b32 s%d, s%d, 2' % (sT0, sT0)); A('s_add_u32 s%d, s%d, %d' % (sT0, sT0, TRC_CH))
        A('s_waitcnt lgkmcnt(0)')
        A('v_mov_b32 v%d, s84' % vT); A('v_mov_b32 v%d, 0' % (vT + 1)); A('s_mov_b64 exec, 1')
        A('buffer_store_dword v%d, v%d, %s, s%d offen' % (vT, vT + 1, WS, sT0)); A('s_mov_b64 exec, -1')
        A.label(Lst)
    A.c('P1a')
    rts(0)
    for i in range(48): A('v_mov_b32 v%d, 0' % (vAcc + i))
    if d1: A('s_sleep %d' % d1)
    A('buffer_load_dwordx4 v[%d:%d], v%d, %s, s%d offen offset:2048 sc1' % (vKR, vKR + 3, vQkLd, WS, sQKv))
    if kvwait:
        Lkq = A.uid('kq')
        A('v_mov_b32 v126, 1'); A('v_mov_b32 v127, 1')
        A('s_and_b32 s%d, s%d, 3' % (sT0, sS)); A('s_cmp_lg_u32 s%d, 0' % sT0); A('s_cbranch_scc1 %s' % Lkq)
        kvwait(A, sS, issue_only=True)
        A.label(Lkq)
    loads = ['buffer_load_dwordx4 v[%d:%d], v%d, %s, s%d offen offset:%d sc1' % (vLD + 4 * k, vLD + 4 * k + 3, vL16, WS, sMEMc, 1024 * k) for k in range(4)]
    rloads = ['buffer_load_dwordx4 v[%d:%d], v%d, %s, s%d offen offset:%d sc1' % (vRQ + 4 * k, vRQ + 4 * k + 3, vL16, WS, sMRc, 1024 * k) for k in range(4)]
    if rearly:
        Lp1 = A.uid('p1e')
        for x in loads: A(x)
        A('s_sleep %d' % rearly)
        for x in rloads: A(x)
        A('s_waitcnt vmcnt(4)')
        check([vLD + 4 * k for k in range(4)])
        A('s_cbranch_vccz %s' % Lp1)
        poll(loads, [vLD + 4 * k for k in range(4)], site=0)
        A.label(Lp1)
    else:
        poll(loads, [vLD + 4 * k for k in range(4)], site=0)
    if kvwait: kvwait(A, sS, check_only=True)
    stamp(0)
    rts(1)
    rloads = ['buffer_load_dwordx4 v[%d:%d], v%d, %s, s%d offen offset:%d sc1' % (vRQ + 4 * k, vRQ + 4 * k + 3, vL16, WS, sMRc, 1024 * k) for k in range(4)]
    P4r = 124
    common = [['buffer_store_dwordx4 v[%d:%d], v%d, %s, s%d offen %s' % (vKR, vKR + 3, vKmSt, WS, sKMs, '' if nokm else 'sc1')],
              ['buffer_store_dword v%d, v%d, %s, s%d offen %s' % (vVM, vVmSt, WS, sVMs, '' if nokm else 'sc1')],
              ['v_mov_b32 v%d, -1' % (P4r + i) for i in range(2)], ['v_mov_b32 v%d, -1' % (P4r + i) for i in range(2, 4)],
              [st('buffer_store_dwordx4 v[%d:%d], v%d, %s, s%d offen' % (P4r, P4r + 3, vPq, WS, sQKp))],
              [st('buffer_store_dwordx4 v[%d:%d], v%d, %s, s%d offen' % (P4r, P4r + 3, vPo, WS, sOBp))]]
    Lw0 = A.uid('w0p'); Lj = A.uid('w0j')
    def with_r(groups):
        g = list(groups)
        if rearly:
            younger = sum(1 for grp in g for x in grp if x.startswith('buffer_'))
            return g, younger
        g.insert(min(rpos, len(g)), rloads)
        idx = min(rpos, len(groups))
        younger = sum(1 for grp in g[idx + 1:] for x in grp if x.startswith('buffer_'))
        return g, younger
    A('s_cmp_eq_u32 s%d, 0' % sW); A('s_cbranch_scc1 %s' % Lw0)
    fill = [['s_mov_b32 m0, s%d' % sVXb, 'buffer_load_dwordx4 v%d, %s, s%d offen sc1 lds' % (vKxD4[0], WS, sDMo)]]
    fill[0].insert(1, 's_nop 0')
    for i in range(1, 4): fill.append(['buffer_load_dwordx4 v%d, %s, s%d offen offset:%d sc1 lds' % (vKxD4[i], WS, sDMo, 1024 * i)])
    if touch:
        fill.append(['s_add_u32 s%d, s%d, %d' % (sT1, sDMo, 1 << 18), 'buffer_load_dword v%d, v%d, %s, s%d offen sc1' % (vT + 1, vTch, WS, sT1)])
    g, y = with_r(fill + common)
    kpass(vLD, g)
    A('s_waitcnt vmcnt(%d)' % y)
    A('s_branch %s' % Lj)
    A.label(Lw0)
    g, y0 = with_r(common + [[st('buffer_store_dwordx4 v[%d:%d], v%d, %s, s%d offen' % (P4r, P4r + 3, vPm, WS, sMEMp))],
                             ['buffer_store_dwordx4 v[%d:%d], v%d, %s, s%d offen sc1' % (P4r, P4r + 3, vPm, WS, sMRp)]])
    kpass(vLD, g)
    A('s_waitcnt vmcnt(%d)' % y0)
    A.label(Lj)
    stamp(1)
    A.c('P1b')
    rts(2)
    Lrk = A.uid('rk')
    check([vRQ + 4 * k for k in range(4)])
    A('s_cbranch_vccz %s' % Lrk)
    poll(rloads, [vRQ + 4 * k for k in range(4)], site=3)
    A.label(Lrk)
    def smf1(kl, mu, t, areg):
        a_ = acc(mu, t)
        return 'v_smfmac_f32_16x16x64_bf16 v[%d:%d], v[%d:%d], %s, v%d' % (a_, a_ + 3, areg + 4 * kl, areg + 4 * kl + 3, r(wreg(kl, mu, t), 8), vIdx)
    def pkadd(d, a_, b_): return 'v_pk_add_f32 v[%d:%d], v[%d:%d], v[%d:%d]' % (d, d + 1, a_, a_ + 1, b_, b_ + 1)
    def comb(ra, rb_):
        return [pkadd(ra, ra, ra + 2), pkadd(ra + 2, rb_, rb_ + 2)]
    own = 88
    seq = []
    for t in range(4): seq += [smf1(kl, mu, t, vRQ) for kl in range(4) for mu in (0, 1)]
    fl = {}
    def put(start, instrs, per=2):
        i = start
        for j in range(0, len(instrs), per):
            fl.setdefault(i, []).extend(instrs[j:j + per]); i += 1
        return i
    def qk_out(t):
        Ls = A.uid('xs'); Le = A.uid('xe')
        return ['s_cmp_eq_u32 s%d, %d' % (sW, t), 's_cbranch_scc1 %s' % Ls, 'ds_write_b128 v%d, v[%d:%d]' % (vXq[t], acc(0, t), acc(0, t) + 3), 's_branch %s' % Le, Ls + ':'] + \
               ['v_mov_b32 v%d, v%d' % (own + i, acc(0, t) + i) for i in range(4)] + [Le + ':']
    nx = 0
    for t in range(3):
        st_ = max(nx, 8 * t + 15)
        nx = put(st_, comb(acc(0, t), acc(1, t)))
        fl.setdefault(nx, []).extend(qk_out(t)); nx += 1
    for i, m_ in enumerate(seq):
        A(m_)
        for x in fl.pop(i, []): A(x)
    for k_ in sorted(fl):
        for x in fl[k_]: A(x)
    A.nop(7)
    for x in comb(acc(0, 3), acc(1, 3)) + qk_out(3): A(x)
    stamp(2)
    A('s_waitcnt vmcnt(4)')
    A.c('P3: cross-wave reduce')
    rts(3)
    A('s_waitcnt lgkmcnt(0)')
    A('s_barrier')
    X1 = 92
    for i in range(3): A('ds_read_b128 v[%d:%d], v%d offset:%d' % (X1 + 4 * i, X1 + 4 * i + 3, vXqR, 1024 * i))
    A('s_lshl_b32 s%d, s%d, 10' % (sT1, sW))
    A('v_add_u32 v%d, s%d, v%d' % (vT + 2, sT1, vL16))
    A('v_add_u32 v%d, %d, v%d' % (vT + 3, LDS_XB, vT + 2))
    A('s_waitcnt lgkmcnt(0)')
    A(pkadd(own, own, X1)); A(pkadd(own + 2, own + 2, X1 + 2)); A(pkadd(X1 + 4, X1 + 4, X1 + 8)); A(pkadd(X1 + 6, X1 + 6, X1 + 10))
    A(pkadd(own, own, X1 + 4)); A(pkadd(own + 2, own + 2, X1 + 6))
    kk_ = X1
    A('v_cvt_pk_bf16_f32 v%d, v%d, v%d' % (kk_, own, own + 1))
    A('v_cvt_pk_bf16_f32 v%d, v%d, v%d' % (kk_ + 1, own + 2, own + 3))
    A('v_pk_min_u16 v%d, v%d, s%d' % (kk_, kk_, sFE)); A('v_pk_min_u16 v%d, v%d, s%d' % (kk_ + 1, kk_ + 1, sFE))
    A(st('buffer_store_short v%d, v%d, %s, s%d offen' % (kk_, vQkSt, WS, sQKc)))
    A(st('buffer_store_short_d16_hi v%d, v%d, %s, s%d offen offset:16' % (kk_, vQkSt, WS, sQKc)))
    A(st('buffer_store_short v%d, v%d, %s, s%d offen offset:2048' % (kk_ + 1, vQkSt, WS, sQKc)))
    A(st('buffer_store_short_d16_hi v%d, v%d, %s, s%d offen offset:2064' % (kk_ + 1, vQkSt, WS, sQKc)))
    rts(4)
    for tt in range(2):
        for k in range(4):
            Rg = vKX + (tt * 4 + k) * 4
            A('ds_read_b128 v[%d:%d], v%d offset:%d' % (Rg, Rg + 3, vKx0 + k, tt * 4096))
    A.c('pass 2b: V tiles while the q/k exchange is in flight')
    PQ = 120
    qload = 'buffer_load_dwordx4 v[%d:%d], v%d, %s, s%d offen sc1' % (PQ, PQ + 3, vT + 2, WS, sQKc)
    if vdefer:
        for kl in range(4):
            for t in range(4): A(smf1(kl, 2, t, vLD))
        A(qload)
    for kl in range(4):
        for t in range(4): A(smf1(kl, 2, t, vRQ))
    if not vdefer: A(qload)
    A.nop(8)
    for x in comb(acc(2, 0), acc(2, 1)): A(x)
    A('ds_write_b128 v%d, v[%d:%d]' % (vXvW, acc(2, 0), acc(2, 0) + 3))
    for x in comb(acc(2, 2), acc(2, 3)): A(x)
    A('ds_write_b128 v%d, v[%d:%d] offset:1024' % (vXvW, acc(2, 2), acc(2, 2) + 3))
    A('ds_read_b64_tr_b16 v[%d:%d], v%d' % (vVXF, vVXF + 1, vVx))
    A('ds_read_b64_tr_b16 v[%d:%d], v%d offset:2048' % (vVXF + 2, vVXF + 3, vVx))
    A.c('P4')
    Lq = A.uid('q4')
    A('s_waitcnt vmcnt(0)')
    check([PQ])
    A('s_cbranch_vccz %s' % Lq)
    poll([qload], [PQ], site=1)
    A.label(Lq)
    A('buffer_store_dword v%d, v%d, %s, s%d offen sc1' % (vOnes, vFlg, WS, sFLo))
    rts(5)
    A('ds_write_b128 v%d, v[%d:%d]' % (vT + 3, PQ, PQ + 3))
    A('s_waitcnt lgkmcnt(0)')
    A('s_barrier')
    vQ, vKM = W0, W0 + 16
    for k in range(4):
        A('ds_read_b128 v[%d:%d], v%d offset:%d' % (vQ + 4 * k, vQ + 4 * k + 3, vQkL, 512 * k))
        A('ds_read_b128 v[%d:%d], v%d offset:%d' % (vKM + 4 * k, vKM + 4 * k + 3, vBias, 512 * k))
    stamp(3)
    T0, T1, T2 = 104, 108, 112
    for k in range(4):
        A('s_waitcnt lgkmcnt(%d)' % (6 - 2 * k))
        c1 = '0' if k == 0 else 'v[%d:%d]' % (T1, T1 + 3); c2 = '0' if k == 0 else 'v[%d:%d]' % (T2, T2 + 3); c0 = '0' if k == 0 else 'v[%d:%d]' % (T0, T0 + 3)
        A('v_mfma_f32_16x16x32_bf16 v[%d:%d], v[%d:%d], v[%d:%d], %s' % (T1, T1 + 3, vKX + 4 * k, vKX + 4 * k + 3, vQ + 4 * k, vQ + 4 * k + 3, c1))
        A('v_mfma_f32_16x16x32_bf16 v[%d:%d], v[%d:%d], v[%d:%d], %s' % (T2, T2 + 3, vKX + 16 + 4 * k, vKX + 16 + 4 * k + 3, vQ + 4 * k, vQ + 4 * k + 3, c2))
        A('v_mfma_f32_16x16x32_bf16 v[%d:%d], v[%d:%d], v[%d:%d], %s' % (T0, T0 + 3, vKM + 4 * k, vKM + 4 * k + 3, vQ + 4 * k, vQ + 4 * k + 3, c0))
    Vp = 72
    for i in range(4): A('ds_read_b64 v[%d:%d], v%d offset:%d' % (Vp + 2 * i, Vp + 2 * i + 1, vXvR, 2048 * i))
    A.nop(3)
    A.c('P5')
    m, t = vT, vT + 1
    A('v_max3_f32 v%d, v%d, v%d, v%d' % (m, T1, T1 + 1, T1 + 2)); A('v_max3_f32 v%d, v%d, v%d, v%d' % (t, T1 + 3, T2, T2 + 1))
    A('v_max3_f32 v%d, v%d, v%d, v%d' % (m, m, T2 + 2, T2 + 3)); A('v_max3_f32 v%d, v%d, v%d, v%d' % (t, t, T0, T0 + 1))
    A('v_max_f32 v%d, v%d, v%d' % (m, m, t))
    for sw in ('v_permlane32_swap_b32', 'v_permlane16_swap_b32'):
        A('v_mov_b32 v%d, v%d' % (t, m)); A('s_nop 1'); A('%s v%d, v%d' % (sw, m, t)); A('s_nop 0'); A('v_max_f32 v%d, v%d, v%d' % (m, m, t))
    A('v_mul_f32 v%d, s%d, v%d' % (m, sC_, m))
    A('s_waitcnt lgkmcnt(0)')
    A(pkadd(Vp, Vp, Vp + 2)); A(pkadd(Vp + 4, Vp + 4, Vp + 6)); A(pkadd(Vp, Vp, Vp + 4))
    A('v_cvt_pk_bf16_f32 v%d, v%d, v%d' % (vVM, Vp, Vp + 1))
    if early_end:
        A('s_cmp_eq_u32 s%d, %d' % (sS, nsteps - 1)); A('s_cbranch_scc1 chain_last')
    A('v_mov_b32 v%d, v%d' % (t, m))
    for x in list(range(T1, T1 + 8, 2)) + [T0]:
        A('v_pk_fma_f32 v[%d:%d], v[%d:%d], s[56:57], v[%d:%d] neg_lo:[0,0,1] neg_hi:[0,0,1]' % (x, x + 1, x, x + 1, m, m + 1))
    for x in list(range(T1, T1 + 8)) + [T0, T0 + 1]: A('v_exp_f32 v%d, v%d' % (x, x))
    vPx, vPm2 = 56, 60; vO, vO2, vSm, vSm2 = 64, 68, 120, 88
    A('v_cvt_pk_bf16_f32 v%d, v%d, v%d' % (vPx, T1, T1 + 1)); A('v_cvt_pk_bf16_f32 v%d, v%d, v%d' % (vPx + 1, T1 + 2, T1 + 3))
    A('v_cvt_pk_bf16_f32 v%d, v%d, v%d' % (vPx + 2, T2, T2 + 1)); A('v_cvt_pk_bf16_f32 v%d, v%d, v%d' % (vPx + 3, T2 + 2, T2 + 3))
    A('v_cvt_pk_bf16_f32 v%d, v%d, v%d' % (vPm2, T0, T0 + 1)); A('v_mov_b32 v%d, 0' % (vPm2 + 1))
    A('s_nop 0')
    A('v_mfma_f32_16x16x32_bf16 v[%d:%d], v[%d:%d], v[%d:%d], 0' % (vO, vO + 3, vVXF, vVXF + 3, vPx, vPx + 3))
    A('v_mfma_f32_16x16x16_bf16 v[%d:%d], v[%d:%d], v[%d:%d], 0' % (vO2, vO2 + 3, vVM, vVM + 1, vPm2, vPm2 + 1))
    A('v_mfma_f32_16x16x16_bf16 v[%d:%d], v[%d:%d], v[%d:%d], 0' % (vSm, vSm + 3, vOnes, vOnes1, vPx, vPx + 1))
    A('v_mfma_f32_16x16x16_bf16 v[%d:%d], v[%d:%d], v[%d:%d], v[%d:%d]' % (vSm, vSm + 3, vOnes, vOnes1, vPx + 2, vPx + 3, vSm, vSm + 3))
    A('v_mfma_f32_16x16x16_bf16 v[%d:%d], v[%d:%d], v[%d:%d], v[%d:%d]' % (vSm, vSm + 3, vOnes, vOnes1, vPm2, vPm2 + 1, vSm, vSm + 3))
    ops = [(kap, tt) for kap in range(8) for tt in range(2)]
    breg = [96, 104, 112, 120, 40, 48]
    def wo_read(n, Rg):
        off = n * 2048
        A('ds_read_b128 v[%d:%d], v%d offset:%d' % (Rg, Rg + 3, vWoR, off))
        A('ds_read_b128 v[%d:%d], v%d offset:%d' % (Rg + 4, Rg + 7, vWoR, off + 1024))
    for n in range(2): wo_read(n, breg[n])
    A.nop(4)
    A('v_rcp_f32 v%d, v%d' % (m, vSm))
    A(pkadd(vO, vO, vO2)); A(pkadd(vO + 2, vO + 2, vO2 + 2))
    for i in range(4): A('v_mul_f32 v%d, v%d, v%d' % (vO + i, vO + i, m))
    A('v_cvt_pk_bf16_f32 v%d, v%d, v%d' % (vO, vO, vO + 1)); A('v_cvt_pk_bf16_f32 v%d, v%d, v%d' % (vO + 1, vO + 2, vO + 3))
    A('v_pk_min_u16 v%d, v%d, s%d' % (vO, vO, sFE)); A('v_pk_min_u16 v%d, v%d, s%d' % (vO + 1, vO + 1, sFE))
    A(st('buffer_store_dwordx2 v[%d:%d], v%d, %s, s%d offen' % (vO, vO + 1, vOSt, WS, sOBc)))
    rts(6)
    for n in range(2, 6): wo_read(n, breg[n])
    stamp(4)
    A.c('P6')
    vOA = 60; acc0 = vT; acc1 = 92
    A('s_add_u32 s%d, s%d, 1' % (sT3, sS))
    calc(sT3)
    if d6: A('s_sleep %d' % d6)
    A('s_add_u32 s%d, s%d, 4096' % (sT2, sOBc2))
    loads = ['buffer_load_dwordx4 v[%d:%d], v%d, %s, s%d offen offset:%d sc1' % (vOA + 4 * k, vOA + 4 * k + 3, vL16, WS, sOBc2 if k < 4 else sT2, 1024 * (k & 3)) for k in range(8)]
    chk = []
    for k in range(8): chk += [vOA + 4 * k, vOA + 4 * k + 2]
    poll(loads, chk, site=2)
    rts(7)
    stamp(5)
    for i in range(4):
        A('v_mov_b32 v%d, 0' % (acc0 + i)); A('v_mov_b32 v%d, 0' % (acc1 + i))
    A('s_waitcnt lgkmcnt(0)')
    nb = len(breg); issued = nb
    for n, (kap, tt) in enumerate(ops):
        ac = acc1 if tt else acc0
        Rg = breg[n % nb]
        if n >= nb: A('s_waitcnt lgkmcnt(%d)' % min((min(issued, 16) - (n + 1)) * 2, 15))
        A('v_smfmac_f32_16x16x64_bf16 v[%d:%d], v[%d:%d], v[%d:%d], v%d' % (ac, ac + 3, vOA + 4 * kap, vOA + 4 * kap + 3, Rg, Rg + 7, vIdx))
        if issued < 16: wo_read(issued, Rg); issued += 1
    A.nop(9)
    A(pkadd(acc0, acc0, acc0 + 2)); A(pkadd(acc1, acc1, acc1 + 2))
    A('ds_write_b32 v%d, v%d' % (vRedW, acc0)); A('ds_write_b32 v%d, v%d offset:128' % (vRedW, acc0 + 1))
    A('ds_write_b32 v%d, v%d offset:64' % (vRedW, acc1)); A('ds_write_b32 v%d, v%d offset:192' % (vRedW, acc1 + 1))
    A('s_waitcnt lgkmcnt(0)')
    A('s_barrier')
    rts(8)
    Lw1b = A.uid('rw1')
    A('s_cmp_lg_u32 s%d, 0' % sW); A('s_cbranch_scc1 %s' % Lw1b)
    S = W0
    for k in range(4):
        A('ds_read_b128 v[%d:%d], v%d offset:%d' % (S + 8 * k, S + 8 * k + 3, vRedR, 1024 * k))
        A('ds_read_b128 v[%d:%d], v%d offset:%d' % (S + 8 * k + 4, S + 8 * k + 7, vRedR, 1024 * k + 16))
    for k in range(1, 4):
        A('s_waitcnt lgkmcnt(%d)' % (6 - 2 * k))
        for i in range(0, 8, 2): A(pkadd(S + i, S + i, S + 8 * k + i))
    for i in range(4): A('v_cvt_pk_bf16_f32 v%d, v%d, v%d' % (S + 8 + i, S + 2 * i, S + 2 * i + 1))
    for i in range(4): A('v_pk_min_u16 v%d, v%d, s%d' % (S + 8 + i, S + 8 + i, sFE))
    A('s_add_u32 s%d, s%d, %d' % (sT2, sMEMn, RDELTA))
    A(st('buffer_store_dwordx4 v[%d:%d], v%d, %s, s%d offen' % (S + 8, S + 11, vPm, WS, sMEMn)))
    A('buffer_store_dwordx4 v[%d:%d], v%d, %s, s%d offen sc1' % (S + 8, S + 11, vPm, WS, sT2))
    rts(9)
    A.label(Lw1b)
    A('s_add_u32 s%d, s%d, 1' % (sT3, sS))
    calc_ob_memn(sT3)
    A('s_barrier')
    stamp(6)
    A('s_add_u32 s%d, s%d, 1' % (sS, sS)); A('s_cmp_lt_u32 s%d, %d' % (sS, nsteps)); A('s_cbranch_scc1 chain_step')
    if looptime:
        A('s_memrealtime s[%d:%d]' % (sRT + 2, sRT + 3)); A('s_waitcnt lgkmcnt(0)')
        A('s_sub_u32 s%d, s%d, s%d' % (sACC + 8, sRT + 2, sRT))
    if early_end:
        A('s_branch chain_fin')
        A.label('chain_last')
        A('s_mov_b32 s%d, %d' % (sT3, nsteps))
        calc(sT3)
        A.label('chain_fin')
    A('buffer_load_dwordx4 v[%d:%d], v%d, %s, s%d offen offset:2048 sc1' % (vKR, vKR + 3, vQkLd, WS, sQKv))
    A('s_waitcnt vmcnt(0)')
    A('buffer_store_dwordx4 v[%d:%d], v%d, %s, s%d offen sc1' % (vKR, vKR + 3, vKmSt, WS, sKMs))
    A('buffer_store_dword v%d, v%d, %s, s%d offen sc1' % (vVM, vVmSt, WS, sVMs))
    A('s_waitcnt vmcnt(0)')
    A('buffer_store_dword v%d, v%d, %s, s%d offen sc1' % (vOnes, vFlg, WS, sFLo))
    if timing or looptime:
        A('s_lshl_b32 s%d, s%d, 5' % (sT0, sX)); A('s_add_u32 s%d, s%d, s%d' % (sT0, sT0, sC)); A('s_lshl_b32 s%d, s%d, 2' % (sT0, sT0))
        A('s_add_u32 s%d, s%d, s%d' % (sT0, sT0, sW)); A('s_lshl_b32 s%d, s%d, 6' % (sT0, sT0)); A('s_add_u32 s%d, s%d, %d' % (sT0, sT0, CNT + 65536))
        for i in range(16): A('v_mov_b32 v%d, s%d' % (W0 + i, sACC + i))
        A('v_mov_b32 v%d, 0' % vT); A('s_mov_b64 exec, 1')
        for q in range(4): A('buffer_store_dwordx4 v[%d:%d], v%d, %s, s%d offen offset:%d' % (W0 + 4 * q, W0 + 4 * q + 3, vT, WS, sT0, 16 * q))
    A('s_waitcnt vmcnt(0)')
    if finish:
        A('s_mov_b64 exec, -1')
        A('s_branch %s' % finish)
    else:
        A('s_endpgm')
    A.label('chain_abort')
    A('s_mov_b64 exec, 1')
    A('v_mov_b32 v%d, 1' % vT); A('v_mov_b32 v%d, 128' % (vT + 1))
    A('global_atomic_add v%d, v%d, s[%d:%d] sc1' % (vT + 1, vT, S_DBG, S_DBG + 1))
    A('s_waitcnt vmcnt(0)')
    A('s_endpgm')
```

```python
from asmlib import *
from layout import *
import struct, math

LDS_WO = 0
LDS_XB = 131072
LDS_XV = LDS_XB + 12288
LDS_RED = LDS_XB + 16384
LDS_KX = 151552
LDS_VX = 159744
LDS_CHAIN_END = 163840
SPIN_LIMIT = 1 << 22
RDELTA = PART - MEMB

SRD_WS = 8
SRD_T = 12
S_DBG = 6
sX, sC, sW, sH, sJ, sS = 16, 17, 18, 19, 20, 21
sMEMc, sMEMn, sMEMp, sQKc, sQKp, sOBc, sOBp, sMRc, sQKv, sKMs, sVMs, sFLo, sDMo, sMRp, sOBc2 = range(22, 37)
sT0, sT1, sT2, sT3 = 37, 38, 39, 40
sSPIN = 41
sHI, sN8 = 42, 44
sC_, sFE = 46, 47
sTM = 48
sLO32 = 54
sKMM = 58
sACC = 60
sRT = 80
sKMb, sVMb, sFLb, sQKb, sMEMb, sMRb, sOBb, sKXb, sVXb = range(86, 95)
OOBS = 0x70000000
OOBV = 0x7ff00000

def wreg(kl, mu, t):
    idx = kl * 12 + mu * 4 + t
    return 256 + idx * 8 if idx < 32 else 128 + (idx - 32) * 8

def gen_chain(A, intra='', timing=False, nsteps=64, d4=0, d6=0, d1=0, kvwait=None, looptime=False, steptrace=False, rpos=0, dbgwait=0, noflag=0, nokm=0, finish=None, rt=0, rearly=0, vdefer=0, touch=0, early_end=1):
    I = intra
    def st(x): return (x + ' ' + I).rstrip()
    WS = 's[%d:%d]' % (SRD_WS, SRD_WS + 3)
    (vL16, vXq0, vXq1, vXq2, vXq3, vXqR, vXvW, vXvR, vQkSt, vQkLd, vQkL, vOSt, vIdx, vBias, vKx0, vKx1, vKx2, vKx3, vVx, vWoR,
     vKmSt, vVmSt, vD0, vD1, vD2, vD3, vPq, vPo, vPm, vRedW, vRedR, vFlg, vVM, vVM1, vOnes, vOnes1) = range(36)
    vXq = [vXq0, vXq1, vXq2, vXq3]; vKxD4 = [vD0, vD1, vD2, vD3]
    vT = 36
    W0 = 40
    vLane, vG, vN = 120, 121, 122
    t0, t1, t2, t3 = 123, 124, 125, 126
    A.c('=== chain v4 ===')
    A('v_and_b32 v%d, 63, v0' % vLane)
    A('v_lshrrev_b32 v%d, 6, v0' % t0)
    A('s_nop 0')
    A('v_readfirstlane_b32 s%d, v%d' % (sW, t0))
    A('v_lshrrev_b32 v%d, 4, v%d' % (vG, vLane))
    A('v_and_b32 v%d, 15, v%d' % (vN, vLane))
    A('s_lshr_b32 s%d, s%d, 1' % (sT0, sC))
    A('s_and_b32 s%d, s%d, 1' % (sJ, sC))
    A('s_lshl_b32 s%d, s%d, 4' % (sH, sX))
    A('s_add_u32 s%d, s%d, s%d' % (sH, sH, sT0))
    A('v_cmp_le_u32 s[%d:%d], 32, v%d' % (sHI, sHI + 1, vLane))
    A('v_cmp_gt_u32 s[%d:%d], 8, v%d' % (sN8, sN8 + 1, vN))
    cval = struct.unpack('<I', struct.pack('<f', (128 ** -0.5) * math.log2(math.e)))[0]
    A('s_mov_b32 s%d, 0x%08x' % (sC_, cval))
    A('s_mov_b32 s%d, 0xfffefffe' % sFE)
    A('s_mov_b32 s56, 0x%08x' % cval); A('s_mov_b32 s57, 0x%08x' % cval)
    A('s_mov_b32 s%d, -1' % sLO32); A('s_mov_b32 s%d, 0' % (sLO32 + 1))
    A('v_lshlrev_b32 v%d, 4, v%d' % (vL16, vLane))
    for t in range(4):
        A('s_sub_u32 s%d, s%d, %d' % (sT0, sW, t + 1)); A('s_and_b32 s%d, s%d, 3' % (sT0, sT0)); A('s_lshl_b32 s%d, s%d, 10' % (sT0, sT0))
        A('s_add_u32 s%d, s%d, %d' % (sT0, sT0, LDS_XB + t * 3072))
        A('v_add_u32 v%d, s%d, v%d' % (vXq[t], sT0, vL16))
    A('s_mul_i32 s%d, s%d, 3072' % (sT0, sW)); A('s_add_u32 s%d, s%d, %d' % (sT0, sT0, LDS_XB))
    A('v_add_u32 v%d, s%d, v%d' % (vXqR, sT0, vL16))
    A('s_lshl_b32 s%d, s%d, 11' % (sT0, sW)); A('s_add_u32 s%d, s%d, %d' % (sT0, sT0, LDS_XV))
    A('v_add_u32 v%d, s%d, v%d' % (vXvW, sT0, vL16))
    A('s_lshr_b32 s%d, s%d, 1' % (sT0, sW)); A('s_lshl_b32 s%d, s%d, 10' % (sT0, sT0))
    A('s_and_b32 s%d, s%d, 1' % (sT1, sW)); A('s_lshl_b32 s%d, s%d, 3' % (sT1, sT1))
    A('s_add_u32 s%d, s%d, s%d' % (sT0, sT0, sT1)); A('s_add_u32 s%d, s%d, %d' % (sT0, sT0, LDS_XV))
    A('v_add_u32 v%d, s%d, v%d' % (vXvR, sT0, vL16))
    A('s_lshl_b32 s%d, s%d, 15' % (sT0, sW))
    A('v_add_u32 v%d, s%d, v%d' % (vWoR, sT0, vL16))
    A('s_lshl_b32 s%d, s%d, 10' % (sT0, sW)); A('s_add_u32 s%d, s%d, %d' % (sT0, sT0, LDS_RED))
    A('v_lshlrev_b32 v%d, 8, v%d' % (vRedW, vG))
    A('v_lshl_add_u32 v%d, v%d, 2, v%d' % (vRedW, vN, vRedW))
    A('v_add_u32 v%d, s%d, v%d' % (vRedW, sT0, vRedW))
    A('v_lshrrev_b32 v%d, 2, v%d' % (t0, vN)); A('v_lshlrev_b32 v%d, 1, v%d' % (t0, t0)); A('v_and_b32 v%d, 1, v%d' % (t1, vN)); A('v_add_u32 v%d, v%d, v%d' % (t0, t0, t1))
    A('v_lshlrev_b32 v%d, 7, v%d' % (vRedR, t0))
    A('v_bfe_u32 v%d, v%d, 1, 1' % (t1, vN)); A('v_lshl_add_u32 v%d, v%d, 5, v%d' % (vRedR, t1, vRedR))
    A('v_bfe_u32 v%d, v%d, 4, 1' % (t1, vLane)); A('v_lshl_add_u32 v%d, v%d, 6, v%d' % (vRedR, t1, vRedR))
    A('v_add_u32 v%d, %d, v%d' % (vRedR, LDS_RED, vRedR))
    vRr = 119
    A('v_mov_b32 v%d, v%d' % (vRr, t0))
    A('v_and_b32 v%d, 7, v%d' % (t0, vN))
    A('v_lshrrev_b32 v%d, 3, v%d' % (t1, vN))
    A('v_lshlrev_b32 v%d, 7, v%d' % (vQkSt, t1))
    A('v_lshl_add_u32 v%d, v%d, 5, v%d' % (vQkSt, vG, vQkSt))
    A('v_lshl_add_u32 v%d, v%d, 1, v%d' % (vQkSt, t0, vQkSt))
    A('s_lshl_b32 s%d, s%d, 10' % (sT0, sJ)); A('s_lshl_b32 s%d, s%d, 8' % (sT1, sW)); A('s_add_u32 s%d, s%d, s%d' % (sT0, sT0, sT1))
    A('v_add_u32 v%d, s%d, v%d' % (vQkSt, sT0, vQkSt))
    A('v_lshlrev_b32 v%d, 7, v%d' % (vQkLd, vG))
    A('v_lshl_add_u32 v%d, v%d, 4, v%d' % (vQkLd, t0, vQkLd))
    A('v_add_u32 v%d, %d, v%d' % (vQkL, LDS_XB, vQkLd))
    A('v_lshlrev_b32 v%d, 7, v%d' % (vBias, vG)); A('v_lshl_add_u32 v%d, v%d, 4, v%d' % (vBias, vRr, vBias)); A('v_add_u32 v%d, %d, v%d' % (vBias, LDS_XB + 2048, vBias))
    A('v_and_b32 v%d, 1, v%d' % (t2, vG))
    A('v_lshrrev_b32 v%d, 1, v%d' % (t3, vN)); A('v_lshlrev_b32 v%d, 2, v%d' % (vOSt, t3))
    A('v_and_b32 v%d, 1, v%d' % (t3, vN)); A('v_add_u32 v%d, v%d, v%d' % (vOSt, vOSt, t3))
    A('v_lshrrev_b32 v%d, 1, v%d' % (t3, vG)); A('v_lshl_add_u32 v%d, v%d, 1, v%d' % (vOSt, t3, vOSt))
    A('v_lshlrev_b32 v%d, 4, v%d' % (vOSt, vOSt))
    A('v_lshl_add_u32 v%d, v%d, 3, v%d' % (vOSt, t2, vOSt))
    A('s_lshl_b32 s%d, s%d, 10' % (sT1, sC)); A('s_lshl_b32 s%d, s%d, 8' % (sT2, sW)); A('s_add_u32 s%d, s%d, s%d' % (sT1, sT1, sT2))
    A('v_add_u32 v%d, s%d, v%d' % (vOSt, sT1, vOSt))
    A('v_mov_b32 v%d, 0x%x' % (t3, OOBV))
    A('v_cndmask_b32 v%d, v%d, v%d, s[%d:%d]' % (vOSt, t3, vOSt, sN8, sN8 + 1))
    A('v_mov_b32 v%d, 0x4444' % vIdx); A('v_mov_b32 v%d, 0xeeee' % t2)
    A('v_and_b32 v%d, 2, v%d' % (t3, vN)); A('v_cmp_ne_u32 vcc, 0, v%d' % t3); A('s_nop 1')
    A('v_cndmask_b32 v%d, v%d, v%d, vcc' % (vIdx, vIdx, t2))
    A('v_mov_b32 v%d, 0x3f803f80' % vOnes); A('v_mov_b32 v%d, 0x3f803f80' % vOnes1)
    A('v_xor_b32 v%d, v%d, v%d' % (t2, vG, vN)); A('v_lshlrev_b32 v%d, 4, v%d' % (t2, t2)); A('v_lshl_add_u32 v%d, v%d, 8, v%d' % (t2, vN, t2))
    A('v_add_u32 v%d, %d, v%d' % (vKx0, LDS_KX, t2))
    for k in range(1, 4): A('v_xor_b32 v%d, %d, v%d' % (vKx0 + k, k * 64, vKx0))
    A('v_lshrrev_b32 v%d, 2, v%d' % (t2, vN)); A('v_lshl_add_u32 v%d, v%d, 2, v%d' % (t2, vG, t2))
    A('v_lshrrev_b32 v%d, 1, v%d' % (t3, t2)); A('v_and_b32 v%d, 3, v%d' % (t3, t3)); A('v_xor_b32 v%d, s%d, v%d' % (t3, sW, t3))
    A('v_lshlrev_b32 v%d, 5, v%d' % (t3, t3)); A('v_lshl_add_u32 v%d, v%d, 7, v%d' % (t3, t2, t3))
    A('v_and_b32 v%d, 3, v%d' % (t2, vN)); A('v_lshl_add_u32 v%d, v%d, 3, v%d' % (t3, t2, t3))
    A('v_add_u32 v%d, %d, v%d' % (vVx, LDS_VX, t3))
    A('v_lshlrev_b32 v%d, 4, v%d' % (vKmSt, vG)); A('v_lshl_add_u32 v%d, v%d, 13, v%d' % (vKmSt, vN, vKmSt))
    A('v_lshrrev_b32 v%d, 2, v%d' % (t2, vN))
    A('v_cmp_eq_u32 s[%d:%d], s%d, v%d' % (sKMM, sKMM + 1, sJ, t2))
    A('v_mov_b32 v%d, 0x%x' % (t3, OOBV))
    A('v_lshlrev_b32 v%d, 2, v%d' % (vVmSt, vLane))
    A('v_mov_b32 v%d, 0' % vVM1)
    A('v_cndmask_b32 v%d, v%d, v%d, s[%d:%d]' % (vKmSt, t3, vKmSt, sKMM, sKMM + 1))
    A('v_cmp_eq_u32 vcc, 0, v%d' % vLane); A('s_nop 1'); A('v_cndmask_b32 v%d, v%d, 0, vcc' % (vFlg, t3))
    for i in range(4):
        A('v_add_u32 v%d, %d, v%d' % (t2, 4 * i, vG)); A('v_xor_b32 v%d, v%d, v%d' % (t3, t2, vN)); A('v_lshlrev_b32 v%d, 4, v%d' % (t3, t3))
        A('v_lshl_add_u32 v%d, v%d, 13, v%d' % (t3, t2, t3)); A('v_subrev_u32 v%d, %d, v%d' % (vKxD4[i], 1024 * i, t3))
    Lw3 = A.uid('w3')
    A('s_cmp_lg_u32 s%d, 3' % sW); A('s_cbranch_scc1 %s' % Lw3)
    for i in range(4):
        A('v_lshrrev_b32 v%d, 3, v%d' % (t2, vLane)); A('v_add_u32 v%d, %d, v%d' % (t2, 8 * i, t2))
        A('v_lshrrev_b32 v%d, 1, v%d' % (t3, t2)); A('v_and_b32 v%d, 3, v%d' % (t3, t3))
        A('v_bfe_u32 v%d, v%d, 1, 2' % (t1, vLane)); A('v_xor_b32 v%d, v%d, v%d' % (t3, t3, t1)); A('v_lshlrev_b32 v%d, 5, v%d' % (t3, t3))
        A('v_and_b32 v%d, 1, v%d' % (t1, vLane)); A('v_lshl_add_u32 v%d, v%d, 4, v%d' % (t3, t1, t3))
        A('v_lshl_add_u32 v%d, v%d, 13, v%d' % (t3, t2, t3)); A('v_subrev_u32 v%d, %d, v%d' % (vKxD4[i], 1024 * i, t3))
    A.label(Lw3)
    A('v_bfe_u32 v%d, v%d, 4, 1' % (t2, vLane)); A('v_lshlrev_b32 v%d, 11, v%d' % (vPq, t2)); A('v_lshl_add_u32 v%d, v%d, 4, v%d' % (vPq, vN, vPq))
    A('s_lshl_b32 s%d, s%d, 10' % (sT0, sJ)); A('s_lshl_b32 s%d, s%d, 8' % (sT1, sW)); A('s_add_u32 s%d, s%d, s%d' % (sT0, sT0, sT1))
    A('v_add_u32 v%d, s%d, v%d' % (vPq, sT0, vPq))
    A('s_lshl_b32 s%d, s%d, 10' % (sT0, sC)); A('s_add_u32 s%d, s%d, s%d' % (sT0, sT0, sT1))
    A('v_add_u32 v%d, s%d, v%d' % (vPo, sT0, vL16))
    A('s_lshl_b32 s%d, s%d, 9' % (sT0, sC)); A('v_add_u32 v%d, s%d, v%d' % (vPm, sT0, vL16))
    A('v_mov_b32 v%d, 0x%x' % (t3, OOBV))
    A('v_cndmask_b32 v%d, v%d, v%d, s[%d:%d]' % (vPq, vPq, t3, sHI, sHI + 1))
    A('v_cndmask_b32 v%d, v%d, v%d, s[%d:%d]' % (vPm, vPm, t3, sHI, sHI + 1))
    A('v_cmp_le_u32 vcc, 16, v%d' % vLane); A('s_nop 1'); A('v_cndmask_b32 v%d, v%d, v%d, vcc' % (vPo, vPo, t3))
    A('s_lshl_b32 s%d, s%d, 8' % (sT0, sH)); A('s_lshl_b32 s%d, s%d, 6' % (sT1, sW))
    A('s_add_u32 s%d, s%d, s%d' % (sKMb, sT0, sT1)); A('s_add_u32 s%d, s%d, %d' % (sKMb, sKMb, KM))
    A('s_lshl_b32 s%d, s%d, 3' % (sT0, sH)); A('s_lshl_b32 s%d, s%d, 2' % (sT1, sJ))
    A('s_add_u32 s%d, s%d, s%d' % (sT0, sT0, sT1)); A('s_add_u32 s%d, s%d, s%d' % (sT0, sT0, sW))
    A('s_lshl_b32 s%d, s%d, 8' % (sVMb, sT0)); A('s_add_u32 s%d, s%d, %d' % (sVMb, sVMb, VMF))
    A('s_lshl_b32 s%d, s%d, 2' % (sFLb, sT0)); A('s_add_u32 s%d, s%d, %d' % (sFLb, sFLb, FLG_SEG))
    A('s_lshl_b32 s%d, s%d, 14' % (sQKb, sH)); A('s_add_u32 s%d, s%d, %d' % (sQKb, sQKb, QKB))
    A('s_lshl_b32 s%d, s%d, 16' % (sMEMb, sX)); A('s_add_u32 s%d, s%d, %d' % (sMEMb, sMEMb, MEMB))
    A('s_xor_b32 s%d, s%d, 1' % (sT0, sX)); A('s_lshl_b32 s%d, s%d, 16' % (sMRb, sT0)); A('s_add_u32 s%d, s%d, %d' % (sMRb, sMRb, MEMB + RDELTA))
    A('s_lshl_b32 s%d, s%d, 17' % (sOBb, sX)); A('s_add_u32 s%d, s%d, %d' % (sOBb, sOBb, OB))
    A('s_lshl_b32 s%d, s%d, 8' % (sT0, sH))
    A('s_sub_u32 s%d, s%d, 1' % (sT1, sW)); A('s_lshl_b32 s%d, s%d, 17' % (sT2, sT1)); A('s_add_u32 s%d, s%d, s%d' % (sKXb, sT0, sT2)); A('s_add_u32 s%d, s%d, %d' % (sKXb, sKXb, KX))
    A('s_lshl_b32 s%d, s%d, 12' % (sVXb, sT1)); A('s_add_u32 s%d, s%d, %d' % (sVXb, sVXb, LDS_KX))
    A('s_lshl_b32 s%d, s%d, 7' % (sT1, sJ)); A('s_add_u32 s%d, s%d, s%d' % (sT0, sT0, sT1)); A('s_add_u32 s%d, s%d, %d' % (sT0, sT0, VX))
    A('s_cmp_eq_u32 s%d, 3' % sW); A('s_cselect_b32 s%d, s%d, s%d' % (sKXb, sT0, sKXb)); A('s_cselect_b32 s%d, %d, s%d' % (sVXb, LDS_VX, sVXb))
    def calc(n):
        A('s_and_b32 s%d, s%d, 3' % (sT0, n))
        A('s_lshl_b32 s%d, s%d, 14' % (sT1, sT0)); A('s_lshl_b32 s%d, s%d, 12' % (sT2, sW)); A('s_add_u32 s%d, s%d, s%d' % (sT1, sT1, sT2))
        A('s_add_u32 s%d, s%d, s%d' % (sMEMc, sMEMb, sT1)); A('s_add_u32 s%d, s%d, s%d' % (sMRc, sMRb, sT1))
        A('s_lshl_b32 s%d, s%d, 12' % (sT1, sT0)); A('s_add_u32 s%d, s%d, s%d' % (sQKc, sQKb, sT1))
        A('s_add_u32 s%d, s%d, 3' % (sT0, n)); A('s_and_b32 s%d, s%d, 3' % (sT0, sT0))
        A('s_lshl_b32 s%d, s%d, 12' % (sT1, sT0)); A('s_add_u32 s%d, s%d, s%d' % (sQKv, sQKb, sT1))
        A('s_lshl_b32 s%d, s%d, 9' % (sT1, sW)); A('s_add_u32 s%d, s%d, s%d' % (sQKv, sQKv, sT1))
        A('s_add_u32 s%d, s%d, 2' % (sT0, n)); A('s_and_b32 s%d, s%d, 3' % (sT0, sT0))
        A('s_lshl_b32 s%d, s%d, 12' % (sT1, sT0)); A('s_add_u32 s%d, s%d, s%d' % (sQKp, sQKb, sT1))
        A('s_lshl_b32 s%d, s%d, 14' % (sT1, sT0)); A('s_add_u32 s%d, s%d, s%d' % (sMEMp, sMEMb, sT1)); A('s_add_u32 s%d, s%d, %d' % (sMRp, sMEMp, RDELTA))
        A('s_lshl_b32 s%d, s%d, 15' % (sT1, sT0)); A('s_add_u32 s%d, s%d, s%d' % (sOBp, sOBb, sT1))
        A('s_sub_u32 s%d, s%d, 1' % (sT0, n))
        A('s_lshl_b32 s%d, s%d, 16' % (sT1, sT0)); A('s_add_u32 s%d, s%d, s%d' % (sKMs, sKMb, sT1)); A('s_add_u32 s%d, s%d, s%d' % (sVMs, sVMb, sT1))
        A('s_sub_u32 s%d, s%d, 2' % (sT0, n)); A('s_lshl_b32 s%d, s%d, 10' % (sT1, sT0)); A('s_add_u32 s%d, s%d, s%d' % (sFLo, sFLb, sT1))
        A('s_cmp_lt_u32 s%d, 2' % n); A('s_cselect_b32 s%d, 0x%x, s%d' % (sFLo, OOBS, sFLo))
        A('s_cmp_lt_u32 s%d, 1' % n); A('s_cselect_b32 s%d, 0x%x, s%d' % (sKMs, OOBS, sKMs)); A('s_cselect_b32 s%d, 0x%x, s%d' % (sVMs, OOBS, sVMs))
        A('s_lshl_b32 s%d, s%d, 18' % (sDMo, n)); A('s_add_u32 s%d, s%d, s%d' % (sDMo, sDMo, sKXb))
    def calc_ob_memn(n):
        A('s_and_b32 s%d, s%d, 3' % (sT0, n))
        A('s_lshl_b32 s%d, s%d, 15' % (sT1, sT0)); A('s_add_u32 s%d, s%d, s%d' % (sOBc, sOBb, sT1))
        A('s_lshl_b32 s%d, s%d, 13' % (sT1, sW)); A('s_add_u32 s%d, s%d, s%d' % (sOBc2, sOBc, sT1))
        A('s_add_u32 s%d, s%d, 1' % (sT0, n)); A('s_and_b32 s%d, s%d, 3' % (sT0, sT0))
        A('s_lshl_b32 s%d, s%d, 14' % (sT1, sT0)); A('s_add_u32 s%d, s%d, s%d' % (sMEMn, sMEMb, sT1))

    for i in range(4): A('v_mov_b32 v%d, -1' % (W0 + i))
    for sl in range(4):
        A('s_add_u32 s%d, s%d, %d' % (sT0, sQKb, sl * 4096))
        A(st('buffer_store_dwordx4 v[%d:%d], v%d, %s, s%d offen' % (W0, W0 + 3, vPq, WS, sT0)))
        A('s_add_u32 s%d, s%d, %d' % (sT0, sOBb, sl * 32768))
        A(st('buffer_store_dwordx4 v[%d:%d], v%d, %s, s%d offen' % (W0, W0 + 3, vPo, WS, sT0)))
        Lq = A.uid('pp')
        A('s_cmp_lg_u32 s%d, 0' % sW); A('s_cbranch_scc1 %s' % Lq)
        A('s_add_u32 s%d, s%d, %d' % (sT0, sMEMb, sl * 16384))
        A(st('buffer_store_dwordx4 v[%d:%d], v%d, %s, s%d offen' % (W0, W0 + 3, vPm, WS, sT0)))
        A('s_add_u32 s%d, s%d, %d' % (sT0, sT0, RDELTA))
        A('buffer_store_dwordx4 v[%d:%d], v%d, %s, s%d offen sc1' % (W0, W0 + 3, vPm, WS, sT0))
        A.label(Lq)
    A('s_waitcnt vmcnt(0)')
    Lm = A.uid('m0')
    A('s_cmp_lg_u32 s%d, 0' % sW); A('s_cbranch_scc1 %s' % Lm)
    A('s_load_dwordx2 s[%d:%d], s[0:1], %d' % (SRD_T, SRD_T + 1, A_MEM0))
    A('s_mov_b32 s%d, 16384' % (SRD_T + 2)); A('s_mov_b32 s%d, 0x00020000' % (SRD_T + 3))
    A('s_waitcnt lgkmcnt(0)')
    A('v_lshlrev_b32 v%d, 11, v%d' % (t2, vRr))
    A('v_bfe_u32 v%d, v%d, 1, 1' % (t3, vN)); A('v_lshl_add_u32 v%d, v%d, 4, v%d' % (t2, t3, t2))
    A('v_bfe_u32 v%d, v%d, 4, 1' % (t3, vLane)); A('v_lshl_add_u32 v%d, v%d, 5, v%d' % (t2, t3, t2))
    A('s_lshl_b32 s%d, s%d, 6' % (sT1, sC)); A('v_add_u32 v%d, s%d, v%d' % (t2, sT1, t2))
    A('buffer_load_dwordx4 v[%d:%d], v%d, s[%d:%d], 0 offen' % (W0, W0 + 3, t2, SRD_T, SRD_T + 3))
    A('s_waitcnt vmcnt(0)')
    for i in range(4): A('v_pk_min_u16 v%d, v%d, s%d' % (W0 + i, W0 + i, sFE))
    Lz0 = A.uid('mz')
    A('s_cmp_eq_u32 s%d, 0' % sX); A('s_cbranch_scc1 %s' % Lz0)
    for i in range(4): A('v_mov_b32 v%d, 0' % (W0 + i))
    A.label(Lz0)
    A(st('buffer_store_dwordx4 v[%d:%d], v%d, %s, s%d offen' % (W0, W0 + 3, vPm, WS, sMEMb)))
    A('s_add_u32 s%d, s%d, %d' % (sT2, sMEMb, RDELTA))
    A('buffer_store_dwordx4 v[%d:%d], v%d, %s, s%d offen sc1' % (W0, W0 + 3, vPm, WS, sT2))
    A('s_waitcnt vmcnt(0)')
    A.label(Lm)
    A('s_mov_b64 exec, 1')
    A('v_mov_b32 v%d, 1' % t2); A('v_mov_b32 v%d, 64' % t3)
    A('global_atomic_add v%d, v%d, s[%d:%d] sc1' % (t3, t2, S_DBG, S_DBG + 1))
    A('s_mov_b64 exec, -1')

    vDq, vTr, vDo, vWt0, vWt1 = W0, W0 + 1, W0 + 3, W0 + 4, W0 + 5
    A('v_lshrrev_b32 v%d, 3, v%d' % (t2, vLane)); A('v_lshlrev_b32 v%d, 13, v%d' % (vDq, t2))
    A('v_and_b32 v%d, 7, v%d' % (t3, vLane)); A('v_lshl_add_u32 v%d, v%d, 4, v%d' % (vDq, t3, vDq))
    A('v_bfe_u32 v%d, v%d, 2, 1' % (t2, vN)); A('v_and_b32 v%d, 1, v%d' % (t3, vG)); A('v_lshl_add_u32 v%d, v%d, 2, v%d' % (t2, t3, t2))
    A('v_lshrrev_b32 v%d, 3, v%d' % (t3, vN)); A('v_lshl_add_u32 v%d, v%d, 3, v%d' % (t2, t3, t2))
    A('v_lshrrev_b32 v%d, 1, v%d' % (t3, vG)); A('v_lshl_add_u32 v%d, v%d, 4, v%d' % (t2, t3, t2))
    A('v_lshlrev_b32 v%d, 7, v%d' % (t2, t2)); A('v_and_b32 v%d, 3, v%d' % (t3, vN)); A('v_lshl_add_u32 v%d, v%d, 3, v%d' % (t2, t3, t2))
    A('s_and_b32 s%d, s%d, 1' % (sT0, sW)); A('s_lshl_b32 s%d, s%d, 15' % (sT0, sT0))
    A('v_add_u32 v%d, s%d, v%d' % (vTr, sT0, t2))
    A('v_add_u32 v%d, 65536, v%d' % (vTr + 1, vTr))
    A('v_lshrrev_b32 v%d, 2, v%d' % (t2, vLane)); A('v_and_b32 v%d, 9, v%d' % (t3, t2))
    A('v_bfe_u32 v%d, v%d, 1, 1' % (t1, t2)); A('v_lshl_add_u32 v%d, v%d, 2, v%d' % (t3, t1, t3))
    A('v_bfe_u32 v%d, v%d, 2, 1' % (t1, t2)); A('v_lshl_add_u32 v%d, v%d, 1, v%d' % (t3, t1, t3))
    A('v_lshlrev_b32 v%d, 11, v%d' % (vDo, t3))
    A('v_bfe_u32 v%d, v%d, 1, 1' % (t1, vLane)); A('v_lshrrev_b32 v%d, 5, v%d' % (t0, vLane)); A('v_xor_b32 v%d, v%d, v%d' % (t1, t1, t0))
    A('v_lshl_add_u32 v%d, v%d, 5, v%d' % (vDo, t1, vDo)); A('v_and_b32 v%d, 1, v%d' % (t1, vLane)); A('v_lshl_add_u32 v%d, v%d, 4, v%d' % (vDo, t1, vDo))
    A('v_bfe_u32 v%d, v%d, 2, 1' % (t2, vN)); A('v_and_b32 v%d, 1, v%d' % (t3, vG)); A('v_lshl_add_u32 v%d, v%d, 1, v%d' % (t2, t3, t2))
    A('v_lshrrev_b32 v%d, 3, v%d' % (t3, vN)); A('v_lshl_add_u32 v%d, v%d, 3, v%d' % (t2, t3, t2))
    A('v_lshrrev_b32 v%d, 1, v%d' % (t1, vG)); A('v_lshl_add_u32 v%d, v%d, 4, v%d' % (t2, t1, t2))
    A('v_lshlrev_b32 v%d, 6, v%d' % (t2, t2)); A('v_lshl_add_u32 v%d, v%d, 5, v%d' % (t2, t3, t2))
    A('v_and_b32 v%d, 3, v%d' % (t1, vN)); A('v_lshl_add_u32 v%d, v%d, 3, v%d' % (t2, t1, t2))
    A('s_lshl_b32 s%d, s%d, 15' % (sT0, sW)); A('v_add_u32 v%d, s%d, v%d' % (vWt0, sT0, t2)); A('v_xor_b32 v%d, 32, v%d' % (vWt1, vWt0))
    wptr = [A_WQ, A_WK, A_WV]
    def issue_chunk(cidx):
        half = cidx & 1
        if cidx < 6:
            A('s_load_dwordx2 s[%d:%d], s[0:1], %d' % (SRD_T, SRD_T + 1, wptr[cidx >> 1]))
            A('s_mov_b32 s%d, %d' % (SRD_T + 2, 8 * MB)); A('s_mov_b32 s%d, 0x00020000' % (SRD_T + 3))
            A('s_lshl_b32 s%d, s%d, 8' % (sT0, sH)); A('s_lshl_b32 s%d, s%d, 7' % (sT1, sJ)); A('s_add_u32 s%d, s%d, s%d' % (sT0, sT0, sT1))
            A('s_lshl_b32 s%d, s%d, 20' % (sT1, sW)); A('s_add_u32 s%d, s%d, s%d' % (sT0, sT0, sT1))
            A('s_add_u32 s%d, s%d, %d' % (sT0, sT0, half * 512 * 8192))
            step_g, vd = 65536, vDq
        else:
            A('s_load_dwordx2 s[%d:%d], s[0:1], %d' % (SRD_T, SRD_T + 1, A_WO))
            A('s_mov_b32 s%d, %d' % (SRD_T + 2, 8 * MB)); A('s_mov_b32 s%d, 0x00020000' % (SRD_T + 3))
            A('s_lshl_b32 s%d, s%d, 22' % (sT0, sX)); A('s_lshl_b32 s%d, s%d, 6' % (sT1, sC)); A('s_add_u32 s%d, s%d, s%d' % (sT0, sT0, sT1))
            A('s_lshl_b32 s%d, s%d, 19' % (sT1, sW)); A('s_add_u32 s%d, s%d, s%d' % (sT0, sT0, sT1))
            A('s_add_u32 s%d, s%d, %d' % (sT0, sT0, half * 1024 * 2048))
            step_g, vd = 32768, vDo
        A('s_lshl_b32 s%d, s%d, 14' % (sT1, sW)); A('s_add_u32 s%d, s%d, %d' % (sT1, sT1, half * 65536))
        A('s_waitcnt lgkmcnt(0)')
        for i in range(16):
            A('s_add_u32 m0, s%d, %d' % (sT1, i * 1024))
            A('s_add_u32 s%d, s%d, %d' % (sT2, sT0, i * step_g))
            A('buffer_load_dwordx4 v%d, s[%d:%d], s%d offen lds' % (vd, SRD_T, SRD_T + 3, sT2))
    def read_chunk(cidx):
        half = cidx & 1; mu = cidx >> 1
        Le = A.uid('rce')
        A('s_lshr_b32 s%d, s%d, 1' % (sT0, sW)); A('s_cmp_lg_u32 s%d, %d' % (sT0, half)); A('s_cbranch_scc1 %s' % Le)
        for kl in range(4):
            for t in range(4):
                Rg = wreg(kl, mu, t)
                for sg in range(4):
                    off = kl * 8192 + t * 32 + (sg & 1) * 256 + (sg >> 1) * 4096
                    A('ds_read_b64_tr_b16 %s, v%d offset:%d' % (r(Rg + 2 * sg, 2), vTr + half, off))
                if t % 2 == 1: A('s_waitcnt lgkmcnt(0)')
        A.label(Le)
    issue_chunk(0)
    for cidx in range(6):
        issue_chunk(cidx + 1)
        A('s_waitcnt vmcnt(16)'); A('s_barrier')
        read_chunk(cidx)
        A('s_waitcnt lgkmcnt(0)'); A('s_barrier')
    issue_chunk(7)
    A('s_mov_b32 s%d, 0' % sS)
    if kvwait:
        Lzw = A.uid('zw')
        A('s_mov_b32 s%d, 0' % sSPIN); A('v_mov_b32 v%d, 68' % (vT + 1))
        A.label(Lzw)
        A('global_load_dword v%d, v%d, s[%d:%d] sc1' % (vT, vT + 1, S_DBG, S_DBG + 1))
        A('s_add_u32 s%d, s%d, 1' % (sSPIN, sSPIN)); A('s_cmp_gt_u32 s%d, %d' % (sSPIN, SPIN_LIMIT)); A('s_cbranch_scc1 chain_abort')
        A('s_waitcnt vmcnt(0)')
        A('v_readfirstlane_b32 s%d, v%d' % (sT0, vT)); A('s_nop 3'); A('s_cmp_lt_u32 s%d, 192' % sT0); A('s_cbranch_scc1 %s' % Lzw)
        kvwait(A, sS)
    A('s_waitcnt vmcnt(0)'); A('s_barrier')
    CV = W0 + 8
    for hf in range(2):
        for kl in range(4):
            kap = 4 * hf + kl
            for tt in range(2):
                Rg = CV + (kl * 2 + tt) * 8
                for sg in range(4):
                    off = kap * 4096 + (sg & 1) * 256 + (sg >> 1) * 2048
                    A('ds_read_b64_tr_b16 v[%d:%d], v%d offset:%d' % (Rg + 2 * sg, Rg + 2 * sg + 1, vWt1 if tt else vWt0, off))
            A('s_waitcnt lgkmcnt(0)')
        for kl in range(4):
            kap = 4 * hf + kl
            for tt in range(2):
                Rg = CV + (kl * 2 + tt) * 8; off = (kap * 2 + tt) * 2048
                A('ds_write_b128 v%d, v[%d:%d] offset:%d' % (vWoR, Rg, Rg + 3, off))
                A('ds_write_b128 v%d, v[%d:%d] offset:%d' % (vWoR, Rg + 4, Rg + 7, off + 1024))
        A('s_waitcnt lgkmcnt(0)')
    Lw = A.uid('pw')
    A('s_mov_b32 s%d, 0' % sSPIN); A('v_mov_b32 v%d, 64' % (vT + 1))
    A.label(Lw)
    A('global_load_dword v%d, v%d, s[%d:%d] sc1' % (vT, vT + 1, S_DBG, S_DBG + 1))
    A('s_waitcnt vmcnt(0)')
    A('v_readfirstlane_b32 s%d, v%d' % (sT0, vT))
    A('s_add_u32 s%d, s%d, 1' % (sSPIN, sSPIN)); A('s_cmp_gt_u32 s%d, %d' % (sSPIN, SPIN_LIMIT)); A('s_cbranch_scc1 chain_abort')
    A('s_cmp_lt_u32 s%d, 256' % sT0); A('s_cbranch_scc1 %s' % Lw)
    A('s_barrier')
    if timing or looptime:
        for i in range(16): A('s_mov_b32 s%d, 0' % (sACC + i))
    def stamp(i):
        if timing:
            A('s_memtime s[%d:%d]' % (sTM + 2, sTM + 3)); A('s_waitcnt lgkmcnt(0)')
            A('s_sub_u32 s%d, s%d, s%d' % (sTM + 4, sTM + 2, sTM)); A('s_add_u32 s%d, s%d, s%d' % (sACC + i, sACC + i, sTM + 4))
            A('s_mov_b32 s%d, s%d' % (sTM, sTM + 2))
    if timing:
        A('s_memtime s[%d:%d]' % (sTM, sTM + 1)); A('s_waitcnt lgkmcnt(0)')
    def rts(p):
        if rt:
            L = A.uid('rt')
            A('s_sub_u32 s77, s%d, 20' % sS); A('s_cmp_ge_u32 s77, 8'); A('s_cbranch_scc1 %s' % L)
            A('s_memrealtime s[78:79]')
            A('s_lshl_b32 s76, s%d, 5' % sX); A('s_add_u32 s76, s76, s%d' % sC); A('s_lshl_b32 s76, s76, 2'); A('s_add_u32 s76, s76, s%d' % sW)
            A('s_lshl_b32 s76, s76, 3'); A('s_add_u32 s76, s76, s77'); A('s_lshl_b32 s76, s76, 6'); A('s_add_u32 s76, s76, %d' % (TRC + 4 * MB + p * 4))
            A('s_waitcnt lgkmcnt(0)')
            A('v_mov_b32 v%d, s78' % (vRT)); A('buffer_store_dword v%d, v%d, %s, s76 offen' % (vRT, vFlg, WS))
            A.label(L)
    vRT = 36
    def check(regs):
        m = vT; rs = list(regs)
        if len(rs) == 1: A('v_cmp_eq_u32 vcc, -1, v%d' % rs[0]); return
        if len(rs) == 2: A('v_max_u32 v%d, v%d, v%d' % (m, rs[0], rs[1])); rs = []
        else: A('v_max3_u32 v%d, v%d, v%d, v%d' % (m, rs[0], rs[1], rs[2])); rs = rs[3:]
        while len(rs) >= 2:
            A('v_max3_u32 v%d, v%d, v%d, v%d' % (m, m, rs[0], rs[1])); rs = rs[2:]
        if rs: A('v_max_u32 v%d, v%d, v%d' % (m, m, rs[0]))
        A('v_cmp_eq_u32 vcc, -1, v%d' % m)
    def poll(loads, regs, site=None):
        L = A.uid('poll')
        A('s_mov_b32 s%d, 0' % sSPIN)
        A.label(L)
        for x in loads: A(x)
        A('s_add_u32 s%d, s%d, 1' % (sSPIN, sSPIN)); A('s_cmp_gt_u32 s%d, %d' % (sSPIN, SPIN_LIMIT)); A('s_cbranch_scc1 chain_abort')
        A('s_waitcnt vmcnt(0)')
        check(regs)
        A('s_cbranch_vccnz %s' % L)
        if timing and site is not None: A('s_add_u32 s%d, s%d, s%d' % (sACC + 10 + site, sACC + 10 + site, sSPIN))

    calc(sS); calc_ob_memn(sS)
    vLD = W0
    vRQ = W0 + 16
    vAcc = W0 + 32
    vKR = 120
    vKX = 72; vVXF = 116
    def acc(mu, t): return vAcc + (mu * 4 + t) * 4
    def kpass(areg, fill=None):
        fill = list(fill or [])
        n = 0
        mus = (0, 1) if vdefer else (0, 1, 2)
        per = 2 if vdefer else 3
        for kl in range(4):
            for mu in mus:
                for t in range(4):
                    a_ = acc(mu, t)
                    A('v_smfmac_f32_16x16x64_bf16 v[%d:%d], v[%d:%d], %s, v%d' % (a_, a_ + 3, areg + 4 * kl, areg + 4 * kl + 3, r(wreg(kl, mu, t), 8), vIdx))
                    n += 1
                    if fill and n % per == 0:
                        for x in fill.pop(0): A(x)
        for g_ in fill:
            for x in g_: A(x)

    if looptime:
        A('s_memrealtime s[%d:%d]' % (sRT, sRT + 1)); A('s_waitcnt lgkmcnt(0)')
    A.label('chain_step')
    if steptrace:
        Lst = A.uid('st')
        A('s_cmp_lg_u32 s%d, 0' % sW); A('s_cbranch_scc1 %s' % Lst)
        A('s_memrealtime s[84:85]')
        A('s_lshl_b32 s%d, s%d, 5' % (sT0, sX)); A('s_add_u32 s%d, s%d, s%d' % (sT0, sT0, sC)); A('s_lshl_b32 s%d, s%d, 7' % (sT0, sT0))
        A('s_add_u32 s%d, s%d, s%d' % (sT0, sT0, sS)); A('s_lshl_b32 s%d, s%d, 2' % (sT0, sT0)); A('s_add_u32 s%d, s%d, %d' % (sT0, sT0, TRC_CH))
        A('s_waitcnt lgkmcnt(0)')
        A('v_mov_b32 v%d, s84' % vT); A('v_mov_b32 v%d, 0' % (vT + 1)); A('s_mov_b64 exec, 1')
        A('buffer_store_dword v%d, v%d, %s, s%d offen' % (vT, vT + 1, WS, sT0)); A('s_mov_b64 exec, -1')
        A.label(Lst)
    A.c('P1a')
    rts(0)
    for i in range(48): A('v_mov_b32 v%d, 0' % (vAcc + i))
    if d1: A('s_sleep %d' % d1)
    A('buffer_load_dwordx4 v[%d:%d], v%d, %s, s%d offen offset:2048 sc1' % (vKR, vKR + 3, vQkLd, WS, sQKv))
    if kvwait:
        Lkq = A.uid('kq')
        A('v_mov_b32 v126, 1'); A('v_mov_b32 v127, 1')
        A('s_and_b32 s%d, s%d, 3' % (sT0, sS)); A('s_cmp_lg_u32 s%d, 0' % sT0); A('s_cbranch_scc1 %s' % Lkq)
        kvwait(A, sS, issue_only=True)
        A.label(Lkq)
    loads = ['buffer_load_dwordx4 v[%d:%d], v%d, %s, s%d offen offset:%d sc1' % (vLD + 4 * k, vLD + 4 * k + 3, vL16, WS, sMEMc, 1024 * k) for k in range(4)]
    rloads = ['buffer_load_dwordx4 v[%d:%d], v%d, %s, s%d offen offset:%d sc1' % (vRQ + 4 * k, vRQ + 4 * k + 3, vL16, WS, sMRc, 1024 * k) for k in range(4)]
    if rearly:
        Lp1 = A.uid('p1e')
        for x in loads: A(x)
        A('s_sleep %d' % rearly)
        for x in rloads: A(x)
        A('s_waitcnt vmcnt(4)')
        check([vLD + 4 * k for k in range(4)])
        A('s_cbranch_vccz %s' % Lp1)
        poll(loads, [vLD + 4 * k for k in range(4)], site=0)
        A.label(Lp1)
    else:
        poll(loads, [vLD + 4 * k for k in range(4)], site=0)
    if kvwait: kvwait(A, sS, check_only=True)
    stamp(0)
    rts(1)
    rloads = ['buffer_load_dwordx4 v[%d:%d], v%d, %s, s%d offen offset:%d sc1' % (vRQ + 4 * k, vRQ + 4 * k + 3, vL16, WS, sMRc, 1024 * k) for k in range(4)]
    P4r = 124
    common = [['buffer_store_dwordx4 v[%d:%d], v%d, %s, s%d offen %s' % (vKR, vKR + 3, vKmSt, WS, sKMs, '' if nokm else 'sc1')],
              ['buffer_store_dword v%d, v%d, %s, s%d offen %s' % (vVM, vVmSt, WS, sVMs, '' if nokm else 'sc1')],
              ['buffer_store_dword v%d, v%d, %s, s%d offen sc1' % (vOnes, vFlg, WS, sFLo)],
              ['v_mov_b32 v%d, -1' % (P4r + i) for i in range(2)], ['v_mov_b32 v%d, -1' % (P4r + i) for i in range(2, 4)],
              [st('buffer_store_dwordx4 v[%d:%d], v%d, %s, s%d offen' % (P4r, P4r + 3, vPq, WS, sQKp))],
              [st('buffer_store_dwordx4 v[%d:%d], v%d, %s, s%d offen' % (P4r, P4r + 3, vPo, WS, sOBp))]]
    Lw0 = A.uid('w0p'); Lj = A.uid('w0j')
    def with_r(groups):
        g = list(groups)
        if rearly:
            younger = sum(1 for grp in g for x in grp if x.startswith('buffer_'))
            return g, younger
        g.insert(min(rpos, len(g)), rloads)
        idx = min(rpos, len(groups))
        younger = sum(1 for grp in g[idx + 1:] for x in grp if x.startswith('buffer_'))
        return g, younger
    A('s_cmp_eq_u32 s%d, 0' % sW); A('s_cbranch_scc1 %s' % Lw0)
    fill = [['s_mov_b32 m0, s%d' % sVXb, 'buffer_load_dwordx4 v%d, %s, s%d offen sc1 lds' % (vKxD4[0], WS, sDMo)]]
    fill[0].insert(1, 's_nop 0')
    for i in range(1, 4): fill.append(['buffer_load_dwordx4 v%d, %s, s%d offen offset:%d sc1 lds' % (vKxD4[i], WS, sDMo, 1024 * i)])
    if touch:
        fill.append(['s_add_u32 s%d, s%d, %d' % (sT1, sDMo, 1 << 18), 'buffer_load_dword v%d, v%d, %s, s%d offen sc1' % (vT + 1, vTch, WS, sT1)])
    g, y = with_r(fill + common)
    kpass(vLD, g)
    A('s_waitcnt vmcnt(%d)' % y)
    A('s_branch %s' % Lj)
    A.label(Lw0)
    g, y0 = with_r(common + [[st('buffer_store_dwordx4 v[%d:%d], v%d, %s, s%d offen' % (P4r, P4r + 3, vPm, WS, sMEMp))],
                             ['buffer_store_dwordx4 v[%d:%d], v%d, %s, s%d offen sc1' % (P4r, P4r + 3, vPm, WS, sMRp)]])
    kpass(vLD, g)
    A('s_waitcnt vmcnt(%d)' % y0)
    A.label(Lj)
    stamp(1)
    A.c('P1b')
    rts(2)
    Lrk = A.uid('rk')
    check([vRQ + 4 * k for k in range(4)])
    A('s_cbranch_vccz %s' % Lrk)
    poll(rloads, [vRQ + 4 * k for k in range(4)], site=3)
    A.label(Lrk)
    def smf1(kl, mu, t, areg):
        a_ = acc(mu, t)
        return 'v_smfmac_f32_16x16x64_bf16 v[%d:%d], v[%d:%d], %s, v%d' % (a_, a_ + 3, areg + 4 * kl, areg + 4 * kl + 3, r(wreg(kl, mu, t), 8), vIdx)
    def pkadd(d, a_, b_): return 'v_pk_add_f32 v[%d:%d], v[%d:%d], v[%d:%d]' % (d, d + 1, a_, a_ + 1, b_, b_ + 1)
    def comb(ra, rb_):
        return [pkadd(ra, ra, ra + 2), pkadd(ra + 2, rb_, rb_ + 2)]
    own = 88
    seq = []
    for t in range(4): seq += [smf1(kl, mu, t, vRQ) for kl in range(4) for mu in (0, 1)]
    fl = {}
    def put(start, instrs, per=2):
        i = start
        for j in range(0, len(instrs), per):
            fl.setdefault(i, []).extend(instrs[j:j + per]); i += 1
        return i
    def qk_out(t):
        Ls = A.uid('xs'); Le = A.uid('xe')
        return ['s_cmp_eq_u32 s%d, %d' % (sW, t), 's_cbranch_scc1 %s' % Ls, 'ds_write_b128 v%d, v[%d:%d]' % (vXq[t], acc(0, t), acc(0, t) + 3), 's_branch %s' % Le, Ls + ':'] + \
               ['v_mov_b32 v%d, v%d' % (own + i, acc(0, t) + i) for i in range(4)] + [Le + ':']
    nx = 0
    for t in range(3):
        st_ = max(nx, 8 * t + 15)
        nx = put(st_, comb(acc(0, t), acc(1, t)))
        fl.setdefault(nx, []).extend(qk_out(t)); nx += 1
    for i, m_ in enumerate(seq):
        A(m_)
        for x in fl.pop(i, []): A(x)
    for k_ in sorted(fl):
        for x in fl[k_]: A(x)
    A.nop(7)
    for x in comb(acc(0, 3), acc(1, 3)) + qk_out(3): A(x)
    stamp(2)
    A('s_waitcnt vmcnt(5)')
    A.c('P3: cross-wave reduce')
    rts(3)
    A('s_waitcnt lgkmcnt(0)')
    A('s_barrier')
    X1 = 92
    for i in range(3): A('ds_read_b128 v[%d:%d], v%d offset:%d' % (X1 + 4 * i, X1 + 4 * i + 3, vXqR, 1024 * i))
    A('s_lshl_b32 s%d, s%d, 10' % (sT1, sW))
    A('v_add_u32 v%d, s%d, v%d' % (vT + 2, sT1, vL16))
    A('v_add_u32 v%d, %d, v%d' % (vT + 3, LDS_XB, vT + 2))
    A('s_waitcnt lgkmcnt(0)')
    A(pkadd(own, own, X1)); A(pkadd(own + 2, own + 2, X1 + 2)); A(pkadd(X1 + 4, X1 + 4, X1 + 8)); A(pkadd(X1 + 6, X1 + 6, X1 + 10))
    A(pkadd(own, own, X1 + 4)); A(pkadd(own + 2, own + 2, X1 + 6))
    kk_ = X1
    A('v_cvt_pk_bf16_f32 v%d, v%d, v%d' % (kk_, own, own + 1))
    A('v_cvt_pk_bf16_f32 v%d, v%d, v%d' % (kk_ + 1, own + 2, own + 3))
    A('v_pk_min_u16 v%d, v%d, s%d' % (kk_, kk_, sFE)); A('v_pk_min_u16 v%d, v%d, s%d' % (kk_ + 1, kk_ + 1, sFE))
    A(st('buffer_store_short v%d, v%d, %s, s%d offen' % (kk_, vQkSt, WS, sQKc)))
    A(st('buffer_store_short_d16_hi v%d, v%d, %s, s%d offen offset:16' % (kk_, vQkSt, WS, sQKc)))
    A(st('buffer_store_short v%d, v%d, %s, s%d offen offset:2048' % (kk_ + 1, vQkSt, WS, sQKc)))
    A(st('buffer_store_short_d16_hi v%d, v%d, %s, s%d offen offset:2064' % (kk_ + 1, vQkSt, WS, sQKc)))
    rts(4)
    for tt in range(2):
        for k in range(4):
            Rg = vKX + (tt * 4 + k) * 4
            A('ds_read_b128 v[%d:%d], v%d offset:%d' % (Rg, Rg + 3, vKx0 + k, tt * 4096))
    A.c('pass 2b: V tiles while the q/k exchange is in flight')
    PQ = 120
    qload = 'buffer_load_dwordx4 v[%d:%d], v%d, %s, s%d offen sc1' % (PQ, PQ + 3, vT + 2, WS, sQKc)
    if vdefer:
        for kl in range(4):
            for t in range(4): A(smf1(kl, 2, t, vLD))
        A(qload)
    for kl in range(4):
        for t in range(4): A(smf1(kl, 2, t, vRQ))
    if not vdefer: A(qload)
    A.nop(8)
    for x in comb(acc(2, 0), acc(2, 1)): A(x)
    A('ds_write_b128 v%d, v[%d:%d]' % (vXvW, acc(2, 0), acc(2, 0) + 3))
    for x in comb(acc(2, 2), acc(2, 3)): A(x)
    A('ds_write_b128 v%d, v[%d:%d] offset:1024' % (vXvW, acc(2, 2), acc(2, 2) + 3))
    A('ds_read_b64_tr_b16 v[%d:%d], v%d' % (vVXF, vVXF + 1, vVx))
    A('ds_read_b64_tr_b16 v[%d:%d], v%d offset:2048' % (vVXF + 2, vVXF + 3, vVx))
    A.c('P4')
    Lq = A.uid('q4')
    A('s_waitcnt vmcnt(0)')
    check([PQ])
    A('s_cbranch_vccz %s' % Lq)
    poll([qload], [PQ], site=1)
    A.label(Lq)
    rts(5)
    A('ds_write_b128 v%d, v[%d:%d]' % (vT + 3, PQ, PQ + 3))
    A('s_waitcnt lgkmcnt(0)')
    A('s_barrier')
    vQ, vKM = W0, W0 + 16
    for k in range(4):
        A('ds_read_b128 v[%d:%d], v%d offset:%d' % (vQ + 4 * k, vQ + 4 * k + 3, vQkL, 512 * k))
        A('ds_read_b128 v[%d:%d], v%d offset:%d' % (vKM + 4 * k, vKM + 4 * k + 3, vBias, 512 * k))
    stamp(3)
    T0, T1, T2 = 104, 108, 112
    for k in range(4):
        A('s_waitcnt lgkmcnt(%d)' % (6 - 2 * k))
        c1 = '0' if k == 0 else 'v[%d:%d]' % (T1, T1 + 3); c2 = '0' if k == 0 else 'v[%d:%d]' % (T2, T2 + 3); c0 = '0' if k == 0 else 'v[%d:%d]' % (T0, T0 + 3)
        A('v_mfma_f32_16x16x32_bf16 v[%d:%d], v[%d:%d], v[%d:%d], %s' % (T1, T1 + 3, vKX + 4 * k, vKX + 4 * k + 3, vQ + 4 * k, vQ + 4 * k + 3, c1))
        A('v_mfma_f32_16x16x32_bf16 v[%d:%d], v[%d:%d], v[%d:%d], %s' % (T2, T2 + 3, vKX + 16 + 4 * k, vKX + 16 + 4 * k + 3, vQ + 4 * k, vQ + 4 * k + 3, c2))
        A('v_mfma_f32_16x16x32_bf16 v[%d:%d], v[%d:%d], v[%d:%d], %s' % (T0, T0 + 3, vKM + 4 * k, vKM + 4 * k + 3, vQ + 4 * k, vQ + 4 * k + 3, c0))
    Vp = 72
    for i in range(4): A('ds_read_b64 v[%d:%d], v%d offset:%d' % (Vp + 2 * i, Vp + 2 * i + 1, vXvR, 2048 * i))
    A.nop(3)
    A.c('P5')
    m, t = vT, vT + 1
    A('v_max3_f32 v%d, v%d, v%d, v%d' % (m, T1, T1 + 1, T1 + 2)); A('v_max3_f32 v%d, v%d, v%d, v%d' % (t, T1 + 3, T2, T2 + 1))
    A('v_max3_f32 v%d, v%d, v%d, v%d' % (m, m, T2 + 2, T2 + 3)); A('v_max3_f32 v%d, v%d, v%d, v%d' % (t, t, T0, T0 + 1))
    A('v_max_f32 v%d, v%d, v%d' % (m, m, t))
    for sw in ('v_permlane32_swap_b32', 'v_permlane16_swap_b32'):
        A('v_mov_b32 v%d, v%d' % (t, m)); A('s_nop 1'); A('%s v%d, v%d' % (sw, m, t)); A('s_nop 0'); A('v_max_f32 v%d, v%d, v%d' % (m, m, t))
    A('v_mul_f32 v%d, s%d, v%d' % (m, sC_, m))
    A('s_waitcnt lgkmcnt(0)')
    A(pkadd(Vp, Vp, Vp + 2)); A(pkadd(Vp + 4, Vp + 4, Vp + 6)); A(pkadd(Vp, Vp, Vp + 4))
    A('v_cvt_pk_bf16_f32 v%d, v%d, v%d' % (vVM, Vp, Vp + 1))
    if early_end:
        A('s_cmp_eq_u32 s%d, %d' % (sS, nsteps - 1)); A('s_cbranch_scc1 chain_last')
    A('v_mov_b32 v%d, v%d' % (t, m))
    for x in list(range(T1, T1 + 8, 2)) + [T0]:
        A('v_pk_fma_f32 v[%d:%d], v[%d:%d], s[56:57], v[%d:%d] neg_lo:[0,0,1] neg_hi:[0,0,1]' % (x, x + 1, x, x + 1, m, m + 1))
    for x in list(range(T1, T1 + 8)) + [T0, T0 + 1]: A('v_exp_f32 v%d, v%d' % (x, x))
    vPx, vPm2 = 56, 60; vO, vO2, vSm, vSm2 = 64, 68, 120, 88
    A('v_cvt_pk_bf16_f32 v%d, v%d, v%d' % (vPx, T1, T1 + 1)); A('v_cvt_pk_bf16_f32 v%d, v%d, v%d' % (vPx + 1, T1 + 2, T1 + 3))
    A('v_cvt_pk_bf16_f32 v%d, v%d, v%d' % (vPx + 2, T2, T2 + 1)); A('v_cvt_pk_bf16_f32 v%d, v%d, v%d' % (vPx + 3, T2 + 2, T2 + 3))
    A('v_cvt_pk_bf16_f32 v%d, v%d, v%d' % (vPm2, T0, T0 + 1)); A('v_mov_b32 v%d, 0' % (vPm2 + 1))
    A('s_nop 0')
    A('v_mfma_f32_16x16x32_bf16 v[%d:%d], v[%d:%d], v[%d:%d], 0' % (vO, vO + 3, vVXF, vVXF + 3, vPx, vPx + 3))
    A('v_mfma_f32_16x16x16_bf16 v[%d:%d], v[%d:%d], v[%d:%d], 0' % (vO2, vO2 + 3, vVM, vVM + 1, vPm2, vPm2 + 1))
    A('v_mfma_f32_16x16x16_bf16 v[%d:%d], v[%d:%d], v[%d:%d], 0' % (vSm, vSm + 3, vOnes, vOnes1, vPx, vPx + 1))
    A('v_mfma_f32_16x16x16_bf16 v[%d:%d], v[%d:%d], v[%d:%d], v[%d:%d]' % (vSm, vSm + 3, vOnes, vOnes1, vPx + 2, vPx + 3, vSm, vSm + 3))
    A('v_mfma_f32_16x16x16_bf16 v[%d:%d], v[%d:%d], v[%d:%d], v[%d:%d]' % (vSm, vSm + 3, vOnes, vOnes1, vPm2, vPm2 + 1, vSm, vSm + 3))
    ops = [(kap, tt) for kap in range(8) for tt in range(2)]
    breg = [96, 104, 112, 120, 40, 48]
    def wo_read(n, Rg):
        off = n * 2048
        A('ds_read_b128 v[%d:%d], v%d offset:%d' % (Rg, Rg + 3, vWoR, off))
        A('ds_read_b128 v[%d:%d], v%d offset:%d' % (Rg + 4, Rg + 7, vWoR, off + 1024))
    for n in range(2): wo_read(n, breg[n])
    A.nop(4)
    A('v_rcp_f32 v%d, v%d' % (m, vSm))
    A(pkadd(vO, vO, vO2)); A(pkadd(vO + 2, vO + 2, vO2 + 2))
    for i in range(4): A('v_mul_f32 v%d, v%d, v%d' % (vO + i, vO + i, m))
    A('v_cvt_pk_bf16_f32 v%d, v%d, v%d' % (vO, vO, vO + 1)); A('v_cvt_pk_bf16_f32 v%d, v%d, v%d' % (vO + 1, vO + 2, vO + 3))
    A('v_pk_min_u16 v%d, v%d, s%d' % (vO, vO, sFE)); A('v_pk_min_u16 v%d, v%d, s%d' % (vO + 1, vO + 1, sFE))
    A(st('buffer_store_dwordx2 v[%d:%d], v%d, %s, s%d offen' % (vO, vO + 1, vOSt, WS, sOBc)))
    rts(6)
    for n in range(2, 6): wo_read(n, breg[n])
    stamp(4)
    A.c('P6')
    vOA = 60; acc0 = vT; acc1 = 92
    A('s_add_u32 s%d, s%d, 1' % (sT3, sS))
    calc(sT3)
    if d6: A('s_sleep %d' % d6)
    A('s_add_u32 s%d, s%d, 4096' % (sT2, sOBc2))
    loads = ['buffer_load_dwordx4 v[%d:%d], v%d, %s, s%d offen offset:%d sc1' % (vOA + 4 * k, vOA + 4 * k + 3, vL16, WS, sOBc2 if k < 4 else sT2, 1024 * (k & 3)) for k in range(8)]
    chk = []
    for k in range(8): chk += [vOA + 4 * k, vOA + 4 * k + 2]
    poll(loads, chk, site=2)
    rts(7)
    stamp(5)
    for i in range(4):
        A('v_mov_b32 v%d, 0' % (acc0 + i)); A('v_mov_b32 v%d, 0' % (acc1 + i))
    A('s_waitcnt lgkmcnt(0)')
    nb = len(breg); issued = nb
    for n, (kap, tt) in enumerate(ops):
        ac = acc1 if tt else acc0
        Rg = breg[n % nb]
        if n >= nb: A('s_waitcnt lgkmcnt(%d)' % min((min(issued, 16) - (n + 1)) * 2, 15))
        A('v_smfmac_f32_16x16x64_bf16 v[%d:%d], v[%d:%d], v[%d:%d], v%d' % (ac, ac + 3, vOA + 4 * kap, vOA + 4 * kap + 3, Rg, Rg + 7, vIdx))
        if issued < 16: wo_read(issued, Rg); issued += 1
    A.nop(9)
    A(pkadd(acc0, acc0, acc0 + 2)); A(pkadd(acc1, acc1, acc1 + 2))
    A('ds_write_b32 v%d, v%d' % (vRedW, acc0)); A('ds_write_b32 v%d, v%d offset:128' % (vRedW, acc0 + 1))
    A('ds_write_b32 v%d, v%d offset:64' % (vRedW, acc1)); A('ds_write_b32 v%d, v%d offset:192' % (vRedW, acc1 + 1))
    A('s_waitcnt lgkmcnt(0)')
    A('s_barrier')
    rts(8)
    Lw1b = A.uid('rw1')
    A('s_cmp_lg_u32 s%d, 0' % sW); A('s_cbranch_scc1 %s' % Lw1b)
    S = W0
    for k in range(4):
        A('ds_read_b128 v[%d:%d], v%d offset:%d' % (S + 8 * k, S + 8 * k + 3, vRedR, 1024 * k))
        A('ds_read_b128 v[%d:%d], v%d offset:%d' % (S + 8 * k + 4, S + 8 * k + 7, vRedR, 1024 * k + 16))
    for k in range(1, 4):
        A('s_waitcnt lgkmcnt(%d)' % (6 - 2 * k))
        for i in range(0, 8, 2): A(pkadd(S + i, S + i, S + 8 * k + i))
    for i in range(4): A('v_cvt_pk_bf16_f32 v%d, v%d, v%d' % (S + 8 + i, S + 2 * i, S + 2 * i + 1))
    for i in range(4): A('v_pk_min_u16 v%d, v%d, s%d' % (S + 8 + i, S + 8 + i, sFE))
    A('s_add_u32 s%d, s%d, %d' % (sT2, sMEMn, RDELTA))
    A(st('buffer_store_dwordx4 v[%d:%d], v%d, %s, s%d offen' % (S + 8, S + 11, vPm, WS, sMEMn)))
    A('buffer_store_dwordx4 v[%d:%d], v%d, %s, s%d offen sc1' % (S + 8, S + 11, vPm, WS, sT2))
    rts(9)
    A.label(Lw1b)
    A('s_add_u32 s%d, s%d, 1' % (sT3, sS))
    calc_ob_memn(sT3)
    A('s_barrier')
    stamp(6)
    A('s_add_u32 s%d, s%d, 1' % (sS, sS)); A('s_cmp_lt_u32 s%d, %d' % (sS, nsteps)); A('s_cbranch_scc1 chain_step')
    if looptime:
        A('s_memrealtime s[%d:%d]' % (sRT + 2, sRT + 3)); A('s_waitcnt lgkmcnt(0)')
        A('s_sub_u32 s%d, s%d, s%d' % (sACC + 8, sRT + 2, sRT))
    if early_end:
        A('s_branch chain_fin')
        A.label('chain_last')
        A('s_mov_b32 s%d, %d' % (sT3, nsteps))
        calc(sT3)
        A.label('chain_fin')
    A('buffer_load_dwordx4 v[%d:%d], v%d, %s, s%d offen offset:2048 sc1' % (vKR, vKR + 3, vQkLd, WS, sQKv))
    A('buffer_store_dword v%d, v%d, %s, s%d offen sc1' % (vOnes, vFlg, WS, sFLo))
    A('buffer_store_dword v%d, v%d, %s, s%d offen sc1' % (vVM, vVmSt, WS, sVMs))
    A('s_waitcnt vmcnt(2)')
    A('buffer_store_dwordx4 v[%d:%d], v%d, %s, s%d offen sc1' % (vKR, vKR + 3, vKmSt, WS, sKMs))
    A('s_waitcnt vmcnt(0)')
    A('s_add_u32 s%d, s%d, 1024' % (sT1, sFLo))
    A('buffer_store_dword v%d, v%d, %s, s%d offen sc1' % (vOnes, vFlg, WS, sT1))
    if timing or looptime:
        A('s_lshl_b32 s%d, s%d, 5' % (sT0, sX)); A('s_add_u32 s%d, s%d, s%d' % (sT0, sT0, sC)); A('s_lshl_b32 s%d, s%d, 2' % (sT0, sT0))
        A('s_add_u32 s%d, s%d, s%d' % (sT0, sT0, sW)); A('s_lshl_b32 s%d, s%d, 6' % (sT0, sT0)); A('s_add_u32 s%d, s%d, %d' % (sT0, sT0, CNT + 65536))
        for i in range(16): A('v_mov_b32 v%d, s%d' % (W0 + i, sACC + i))
        A('v_mov_b32 v%d, 0' % vT); A('s_mov_b64 exec, 1')
        for q in range(4): A('buffer_store_dwordx4 v[%d:%d], v%d, %s, s%d offen offset:%d' % (W0 + 4 * q, W0 + 4 * q + 3, vT, WS, sT0, 16 * q))
    A('s_waitcnt vmcnt(0)')
    if finish:
        A('s_mov_b64 exec, -1')
        A('s_branch %s' % finish)
    else:
        A('s_endpgm')
    A.label('chain_abort')
    A('s_mov_b64 exec, 1')
    A('v_mov_b32 v%d, 1' % vT); A('v_mov_b32 v%d, 128' % (vT + 1))
    A('global_atomic_add v%d, v%d, s[%d:%d] sc1' % (vT + 1, vT, S_DBG, S_DBG + 1))
    A('s_waitcnt vmcnt(0)')
    A('s_endpgm')
```

```python
import sys
from asmlib import *
from layout import *
import chain9 as chain
from gemm2 import *
from gemm3 import Gemm
from gemmbs import GemmBS
from units3 import *

BM = 128
SBM = 64
NBIG = 31
NB = NBLK
KNAME = 'sequential_preLN__memory_aug_recurrent_mem_tr__mixer_s_mlp__prompt_kernel'
SPIN = 1 << 22
sXW, sTK, sIt, sFlag, sItem, sQi, sTab, sDep, sCnt, sSp = 80, 81, 82, 83, 84, 85, 86, 88, 89, 90
sMsk = 92
sRB, sNT, sKS = 94, 95, 96
sK0, sNKi = 78, 79
sRow0, sBig = 70, 71
sShI, sShR = 75, 76
sS0, sS1, sS2 = 58, 59, 91
sChunk = 97
sD0, sD1, sD2 = 72, 73, 74
sC3 = 77
T_ATT, T_O, T_R1, T_W1, T_W2, T_R2, T_W3, T_W4, T_R3, T_ROWLOOP = range(1, 11)
O_SPLIT = [(0, 11), (11, 11), (22, 11), (33, 11), (44, 10), (54, 10)]
W4_SPLIT = [(0, 10), (10, 10), (20, 9), (29, 9), (38, 9), (47, 9)]
def word(t, a, b=0, c=0, k0=0, nk=0, end=0):
    assert a < 64 and b < 32 and c < 8 and k0 < 64 and nk < 32
    return (t << 28) | (a << 22) | (b << 17) | (c << 14) | (k0 << 8) | (nk << 3) | end

def build_table():
    T = {(x, t): [0, 0, 0] for x in range(8) for t in range(32)}
    slot = [0] * 6
    def take(x):
        w = (x, slot[x]); slot[x] += 1; assert slot[x] <= 32; return w
    for x in range(6):
        for nt in range(8): T[take(x)] = [word(T_O, 0, nt, x, *O_SPLIT[x]), 0, 0]
    for nt in range(8): T[take(0)] = [word(T_W1, 0, nt), 0, 0]
    for nt in range(8): T[take(1)] = [word(T_W2, 0, nt), 0, 0]
    for nt in range(28): T[take(2 + nt // 7)] = [word(T_W3, 0, nt), 0, 0]
    for x in range(6):
        for nt in range(8): T[take(x)] = [word(T_W4, 0, nt, x, *W4_SPLIT[x]), 0, 0]
    free = [(x, t) for x in range(6) for t in range(slot[x], 32)]
    assert len(free) >= 48, len(free)
    LB = NBIG
    w4 = lambda i: word(T_W4, LB, i % 8, i // 8, *W4_SPLIT[i // 8], end=1)
    for i in range(16): T[free[i]] = [word(T_ATT, 0, i), w4(36 + i) if i < 12 else 0, 0]
    for c in range(32): T[free[16 + c]] = [word(T_ROWLOOP, 0, c), 0, 0]
    for m in range(64):
        w = []
        if m < 48: w.append(word(T_O, LB, m % 8, m // 8, *O_SPLIT[m // 8], end=1))
        if m < 28: w.append(word(T_W3, LB, m, end=1))
        elif m < 48: w.append(w4(m - 28))
        elif m < 56: w += [word(T_W1, LB, m - 48, end=1), w4(20 + m - 48)]
        else: w += [word(T_W2, LB, m - 56, end=1), w4(28 + m - 56)]
        T[6 + m // 32, m % 32] = (w + [0, 0, 0])[:3]
    return T

TRACE = [0]
def mk_srd(A, n, karg, size):
    A('s_load_dwordx2 s[%d:%d], s[0:1], %d' % (n, n + 1, karg))
    A('s_mov_b32 s%d, %d' % (n + 2, size))
    A('s_mov_b32 s%d, 0x00020000' % (n + 3))
    A('s_waitcnt lgkmcnt(0)')
def ws_srd(A, n):
    for i in range(4): A('s_mov_b32 s%d, s%d' % (n + i, 8 + i))
def gemm_params(A, lda, ldb, ldc, nk, mode, shift=0):
    A('s_mov_b32 s%d, %d' % (sLda, lda)); A('s_mov_b32 s%d, %d' % (sLdb, ldb)); A('s_mov_b32 s%d, %d' % (sLdc, ldc))
    A('s_mov_b32 s%d, %d' % (sNk, nk)); A('s_mov_b32 s%d, %d' % (sShift, lda if shift else 0)); A('s_mov_b32 s%d, %d' % (sMode, mode))

def wave_id(A, dst):
    A('v_lshrrev_b32 v250, 6, v0'); A('s_nop 0'); A('v_readfirstlane_b32 s%d, v250' % dst); A('s_nop 3')

def wait_flags(A):
    Ld = A.uid('wf'); Ll = A.uid('wl')
    wave_id(A, sSp)
    A('s_cmp_lg_u32 s%d, 0' % sSp); A('s_cbranch_scc1 %s' % Ld)
    A('v_cmp_gt_u32 vcc, s%d, v0' % sCnt)
    A('s_mov_b64 s[%d:%d], vcc' % (sMsk, sMsk + 1))
    A('v_lshlrev_b32 v250, 2, v0')
    A('s_mov_b32 s%d, 0' % sSp)
    A('s_mov_b64 exec, s[%d:%d]' % (sMsk, sMsk + 1))
    A.label(Ll)
    A('buffer_load_dword v251, v250, s[8:11], s%d offen sc1' % sDep)
    A('s_add_u32 s%d, s%d, 1' % (sSp, sSp)); A('s_cmp_gt_u32 s%d, %d' % (sSp, SPIN)); A('s_cbranch_scc1 worker_abort')
    A('s_waitcnt vmcnt(0)')
    A('v_cmp_eq_u32 vcc, 0, v251')
    A('s_cbranch_vccz %s_ok' % Ll)
    A('s_sleep 4'); A('s_branch %s' % Ll)
    A.label(Ll + '_ok')
    A('s_mov_b64 exec, -1')
    A.label(Ld)
    A('s_barrier')
    if TRACE[0]: A('s_memrealtime s[100:101]')

def signal_flag(A):
    A('s_waitcnt vmcnt(0)')
    A('s_barrier')
    L = A.uid('sf')
    A('v_cmp_eq_u32 vcc, 0, v0')
    A('s_and_saveexec_b64 s[%d:%d], vcc' % (sMsk, sMsk + 1))
    A('s_cbranch_execz %s' % L)
    A('v_mov_b32 v250, 0'); A('v_mov_b32 v251, 1')
    A('buffer_store_dword v251, v250, s[8:11], s%d offen sc1' % sFlag)
    A.label(L)
    A('s_mov_b64 exec, s[%d:%d]' % (sMsk, sMsk + 1))

def kvwait(A, seg_sreg, issue_only=False, check_only=False):
    c = chain
    def addr():
        A('s_lshr_b32 s%d, s%d, 2' % (c.sT0, seg_sreg)); A('s_mul_i32 s%d, s%d, 384' % (c.sT0, c.sT0))
        A('s_lshl_b32 s%d, s%d, 2' % (c.sT1, c.sH)); A('s_add_u32 s%d, s%d, s%d' % (c.sT0, c.sT0, c.sT1))
        A('s_add_u32 s%d, s%d, %d' % (c.sT0, c.sT0, FQKV + 128)); A('v_mov_b32 v125, 0')
    def loads():
        A('buffer_load_dword v126, v125, s[8:11], s%d offen sc1' % c.sT0)
        A('buffer_load_dword v127, v125, s[8:11], s%d offen offset:128 sc1' % c.sT0)
    if issue_only:
        addr(); loads(); return
    L = A.uid('kv'); Lok = A.uid('kvok')
    if check_only:
        A('v_and_b32 v126, v126, v127'); A('v_cmp_eq_u32 vcc, 0, v126'); A('s_cbranch_vccz %s' % Lok)
    addr()
    A('s_mov_b32 s%d, 0' % c.sSPIN)
    A.label(L)
    loads()
    A('s_add_u32 s%d, s%d, 1' % (c.sSPIN, c.sSPIN)); A('s_cmp_gt_u32 s%d, %d' % (c.sSPIN, SPIN)); A('s_cbranch_scc1 chain_abort')
    A('s_waitcnt vmcnt(0)')
    A('v_and_b32 v126, v126, v127'); A('v_cmp_eq_u32 vcc, 0, v126'); A('s_cbranch_vccnz %s' % L)
    A.label(Lok)

def gen(intra='', chain_kw=None, trace=0, coop=1, wake=56, wpre=0):
    wpre = int(wpre); coop = int(coop); trace = int(trace); TRACE[0] = trace; wake = int(wake)
    A = Asm()
    G = GemmBS(A, 128, stamps=bool(trace))
    GS = GemmBS(A, SBM, stamps=bool(trace))
    A.raw('; @launch grid=(256,1,1) block=(256,1,1) lds=163840')
    A.raw('.amdgcn_target "amdgcn-amd-amdhsa--gfx950"')
    A.raw('.text')
    kernel_header(A, KNAME)
    A('s_cmp_ge_u32 s2, 256'); A('s_cbranch_scc1 L_exit_main')
    A('s_load_dwordx2 s[4:5], s[0:1], %d' % D_WS)
    A('s_load_dwordx2 s[6:7], s[0:1], %d' % D_DBG)
    A('s_getreg_b32 s16, hwreg(HW_REG_XCC_ID)')
    A('s_and_b32 s16, s16, 15')
    A('s_waitcnt lgkmcnt(0)')
    A('s_mov_b32 s8, s4'); A('s_mov_b32 s9, s5'); A('s_mov_b32 s10, %d' % WS_SIZE); A('s_mov_b32 s11, 0x00020000')
    A('v_cmp_eq_u32 vcc, 0, v0'); A('s_and_saveexec_b64 s[20:21], vcc'); A('s_cbranch_execz L_nt')
    A('s_lshl_b32 s17, s16, 2'); A('v_mov_b32 v1, s17'); A('v_mov_b32 v2, 1')
    A('global_atomic_add v3, v1, v2, s[6:7] sc0 sc1'); A('s_waitcnt vmcnt(0)')
    A('v_mov_b32 v1, 0'); A('ds_write_b32 v1, v3'); A('s_waitcnt lgkmcnt(0)')
    A.label('L_nt')
    A('s_mov_b64 exec, s[20:21]'); A('s_barrier')
    A('v_mov_b32 v1, 0'); A('ds_read_b32 v3, v1'); A('s_waitcnt lgkmcnt(0)'); A('v_readfirstlane_b32 s17, v3'); A('s_barrier')
    A('s_cmp_ge_u32 s17, 32'); A('s_cbranch_scc1 L_exit_main')
    A('s_cmp_ge_u32 s16, 2'); A('s_cbranch_scc1 worker')
    chain.gen_chain(A, intra=intra, kvwait=kvwait, finish='chain_to_worker', **(chain_kw or {}))
    A.label('chain_to_worker')
    A('v_mbcnt_lo_u32_b32 v0, -1, 0'); A('v_mbcnt_hi_u32_b32 v0, -1, v0')
    A('s_lshl_b32 s%d, s%d, 6' % (44, chain.sW)); A('v_add_u32 v0, s44, v0')
    A('s_add_u32 s%d, s%d, 6' % (sXW, chain.sX)); A('s_mov_b32 s%d, s%d' % (sTK, chain.sC))
    A('s_mov_b32 s%d, 8' % sIt)
    for n in (SRD_A, SRD_B, SRD_C, SRD_R): ws_srd(A, n)
    A('s_mov_b32 s%d, 0' % sChunk)
    A('s_barrier')
    A('s_branch streams')
    A.label('worker')
    A('s_sub_u32 s%d, s16, 2' % sXW); A('s_mov_b32 s%d, s17' % sTK)
    A('s_cmp_ge_u32 s%d, 6' % sXW); A('s_cbranch_scc1 L_exit_main')
    A('s_mov_b32 s%d, 0' % sIt)
    for n in (SRD_A, SRD_B, SRD_C, SRD_R): ws_srd(A, n)
    A('s_mov_b32 s%d, 0' % sS0); A('s_mov_b32 s%d, 0' % sS1); A('s_mov_b32 s%d, 0' % sS2); A('s_mov_b32 s%d, 0' % sChunk)
    A('s_lshl_b32 s%d, s%d, 5' % (sQi, sXW)); A('s_add_u32 s%d, s%d, s%d' % (sQi, sQi, sTK))
    if wpre:
        A('s_lshl_b32 s%d, s%d, 8' % (sT0, sQi)); A('v_add_u32 v20, s%d, v0' % sT0)
        A('v_lshlrev_b32 v21, 7, v20'); A('v_add_u32 v22, %d, v21' % (49152 * 128))
        for k_, karg in enumerate((A_WO, A_WV, A_WK, A_WQ)):
            mk_srd(A, SRD_C, karg, 8 * MB)
            A('buffer_load_dword v%d, v21, %s, 0 offen' % (24 + 2 * k_, srd(SRD_C)))
            A('buffer_load_dword v%d, v22, %s, 0 offen' % (25 + 2 * k_, srd(SRD_C)))
        ws_srd(A, SRD_C)
    A('v_mov_b32 v8, 0'); A('v_mov_b32 v9, 0'); A('v_mov_b32 v10, 0'); A('v_mov_b32 v11, 0')
    A('v_lshlrev_b32 v12, 4, v0')
    Lz1 = A.uid('z'); Lz2 = A.uid('z')
    A('s_cmp_ge_u32 s%d, 32' % sQi); A('s_cbranch_scc1 %s' % Lz1)
    A('s_lshl_b32 s%d, s%d, 12' % (sT0, sQi)); A('s_add_u32 s%d, s%d, %d' % (sT0, sT0, FLG_SEG))
    A('buffer_store_dwordx4 v[8:11], v12, s[8:11], s%d offen sc1' % sT0)
    A.label(Lz1)
    A('s_cmp_lg_u32 s%d, 32' % sQi); A('s_cbranch_scc1 %s' % Lz2)
    A('s_mov_b32 s%d, %d' % (sT0, GB0)); A('buffer_store_dwordx4 v[8:11], v12, s[8:11], s%d offen sc1' % sT0)
    A('s_mov_b32 s%d, %d' % (sT0, GB + 2048 * 2048)); A('buffer_store_dwordx4 v[8:11], v12, s[8:11], s%d offen sc1' % sT0)
    A.label(Lz2)
    A('s_waitcnt vmcnt(0)'); A('s_barrier')
    Lz3 = A.uid('z')
    A('v_cmp_eq_u32 vcc, 0, v0'); A('s_and_saveexec_b64 s[%d:%d], vcc' % (sMsk, sMsk + 1)); A('s_cbranch_execz %s' % Lz3)
    A('v_mov_b32 v250, 68'); A('v_mov_b32 v251, 1'); A('global_atomic_add v250, v251, s[6:7] sc1')
    A.label(Lz3)
    A('s_mov_b64 exec, s[%d:%d]' % (sMsk, sMsk + 1))
    mk_srd(A, SRD_R, A_X, 4 * MB)
    A('s_mov_b32 s%d, s%d' % (sChunk, sQi))
    A.label('ln_item')
    A('s_lshl_b32 s%d, s%d, 3' % (sRow, sChunk))
    unit_ln1(A)
    Lzw = A.uid('zw')
    A('s_mov_b32 s%d, 0' % sSp); A('v_mov_b32 v250, 68')
    A.label(Lzw)
    A('global_load_dword v251, v250, s[6:7] sc1')
    A('s_add_u32 s%d, s%d, 1' % (sSp, sSp)); A('s_cmp_gt_u32 s%d, %d' % (sSp, SPIN)); A('s_cbranch_scc1 worker_abort')
    A('s_waitcnt vmcnt(0)')
    A('v_readfirstlane_b32 s%d, v251' % sT0); A('s_nop 3'); A('s_cmp_lt_u32 s%d, 192' % sT0); A('s_cbranch_scc1 %s' % Lzw)
    A('s_lshl_b32 s%d, s%d, 2' % (sT0, sChunk)); A('s_add_u32 s%d, s%d, %d' % (sFlag, sT0, FXL))
    signal_flag(A)
    A('s_add_u32 s%d, s%d, 192' % (sChunk, sChunk)); A('s_cmp_lt_u32 s%d, 256' % sChunk); A('s_cbranch_scc1 ln_item')
    A('s_mov_b32 s%d, 0' % sChunk)
    ws_srd(A, SRD_R)
    A.label('qkv_next')
    A('s_cmp_ge_u32 s%d, 8' % sIt); A('s_cbranch_scc1 streams')
    A('s_lshr_b32 s%d, s%d, 4' % (sRB, sTK)); A('s_lshl_b32 s%d, s%d, 1' % (sT0, sIt)); A('s_add_u32 s%d, s%d, s%d' % (sRB, sRB, sT0))
    A('s_and_b32 s%d, s%d, 15' % (sT1, sTK))
    A('s_cmp_lt_u32 s%d, 4' % sXW); A('s_cselect_b32 s%d, 11, 10' % sT2)
    A('s_cmp_lt_u32 s%d, s%d' % (sT1, sT2)); A('s_cbranch_scc0 qkv_q')
    A('s_mul_i32 s%d, s%d, 6' % (sT3, sT1)); A('s_add_u32 s%d, s%d, s%d' % (sT3, sT3, sXW))
    A('s_lshr_b32 s%d, s%d, 5' % (sKS, sT3)); A('s_add_u32 s%d, s%d, 1' % (sKS, sKS)); A('s_and_b32 s%d, s%d, 31' % (sNT, sT3))
    A('s_branch qkv_go')
    A.label('qkv_q')
    A('s_sub_u32 s%d, s%d, s%d' % (sT3, sT1, sT2)); A('s_mul_i32 s%d, s%d, 5' % (sT4, sXW))
    A('s_sub_u32 s%d, s%d, 4' % (sT5, sXW)); A('s_mul_i32 s%d, s%d, 6' % (sT5, sT5)); A('s_add_u32 s%d, s%d, 20' % (sT5, sT5))
    A('s_cmp_lt_u32 s%d, 4' % sXW); A('s_cselect_b32 s%d, s%d, s%d' % (sT4, sT4, sT5))
    A('s_add_u32 s%d, s%d, s%d' % (sNT, sT3, sT4)); A('s_mov_b32 s%d, 0' % sKS)
    A.label('qkv_go')
    A('s_add_u32 s%d, s%d, 1' % (sIt, sIt))
    A('s_lshl_b32 s%d, s%d, 3' % (sT0, sKS)); A('s_add_u32 s%d, s%d, %d' % (sT0, sT0, A_WQ))
    A('s_load_dwordx2 s[%d:%d], s[0:1], s%d' % (SRD_B, SRD_B + 1, sT0))
    A('s_mov_b32 s%d, %d' % (SRD_B + 2, 8 * MB)); A('s_mov_b32 s%d, 0x00020000' % (SRD_B + 3))
    ws_srd(A, SRD_A); ws_srd(A, SRD_C)
    gemm_params(A, 2048, 8192, 8192, 16, 0)
    A('s_mul_i32 s%d, s%d, %d' % (sAoff, sRB, BM * 2048)); A('s_add_u32 s%d, s%d, %d' % (sAoff, sAoff, XLN))
    A('s_lshl_b32 s%d, s%d, 8' % (sBoff, sNT))
    A('s_mul_i32 s%d, s%d, %d' % (sCoff, sRB, BM * 8192)); A('s_add_u32 s%d, s%d, s%d' % (sCoff, sCoff, sBoff))
    A('s_lshl_b32 s%d, s%d, 24' % (sT0, sKS)); A('s_add_u32 s%d, s%d, s%d' % (sCoff, sCoff, sT0)); A('s_add_u32 s%d, s%d, %d' % (sCoff, sCoff, QX))
    A('s_mul_i32 s%d, s%d, 3' % (sT0, sRB)); A('s_add_u32 s%d, s%d, s%d' % (sT0, sT0, sKS))
    A('s_lshl_b32 s%d, s%d, 5' % (sT0, sT0)); A('s_add_u32 s%d, s%d, s%d' % (sT0, sT0, sNT))
    A('s_lshl_b32 s%d, s%d, 2' % (sT0, sT0)); A('s_add_u32 s%d, s%d, %d' % (sFlag, sT0, FQKV))
    A('s_mov_b32 s%d, 1' % sItem)
    A('s_and_b32 s%d, s%d, 15' % (sShI, sTK)); A('s_mov_b32 s%d, 8' % sShR)
    if trace:
        A('s_lshl_b32 s%d, s%d, 5' % (sQi, sXW)); A('s_add_u32 s%d, s%d, s%d' % (sQi, sQi, sTK)); A('s_lshl_b32 s%d, s%d, 3' % (sQi, sQi))
        A('s_add_u32 s%d, s%d, s%d' % (sQi, sQi, sIt)); A('s_add_u32 s%d, s%d, 22527' % (sQi, sQi))
        A('s_memrealtime s[98:99]'); A('s_memrealtime s[100:101]')
    A('s_waitcnt lgkmcnt(0)')
    A('s_cmp_lg_u32 s%d, 1' % sIt); A('s_cbranch_scc1 qkv_dep')
    G.load_b()
    A.label('qkv_dep')
    A('s_lshl_b32 s%d, s%d, 6' % (sDep, sRB)); A('s_add_u32 s%d, s%d, %d' % (sDep, sDep, FXL)); A('s_mov_b32 s%d, 16' % sCnt)
    G.setup(); wait_flags(A)
    A('s_branch gemm_main')

    def decode(src):
        A('s_bfe_u32 s%d, s%d, 0x60016' % (sRB, src)); A('s_bfe_u32 s%d, s%d, 0x50011' % (sNT, src)); A('s_bfe_u32 s%d, s%d, 0x3000e' % (sKS, src))
        A('s_bfe_u32 s%d, s%d, 0x60008' % (sK0, src)); A('s_bfe_u32 s%d, s%d, 0x50003' % (sNKi, src))
    def blk_rows():
        A('s_lshl_b32 s%d, s%d, 6' % (sRow0, sRB)); A('s_mov_b32 s%d, 0' % sBig)
    def own(base, code):
        code(); A('s_lshl_b32 s%d, s%d, 2' % (sT0, sT0)); A('s_add_u32 s%d, s%d, %d' % (sFlag, sT0, base))
    def btouch():
        A('v_and_b32 v200, 63, v0'); A('v_lshrrev_b32 v201, 6, v0')
        A('v_lshrrev_b32 v202, 1, v200'); A('v_lshl_add_u32 v202, v201, 8, v202')
        A('v_and_b32 v203, 1, v200'); A('v_lshlrev_b32 v203, 7, v203')
        A('s_lshl_b32 s%d, s%d, 6' % (sT4, sNk)); A('v_mov_b32 v206, 0x7ff00000')
        for j in range(8):
            A('v_add_u32 v204, %d, v202' % (32 * j)); A('v_mul_lo_u32 v205, v204, s%d' % sLdb); A('v_add_u32 v205, v205, v203')
            A('v_cmp_gt_u32 vcc, s%d, v204' % sT4); A('s_nop 1'); A('v_cndmask_b32 v205, v206, v205, vcc')
            A('buffer_load_dword v%d, v205, %s, s%d offen' % (208 + j, srd(SRD_B), sBoff))
    types = {
        T_O: dict(split=True, ownbase=FO, abuf=OX, lda=8192, bk=A_WO, bs=8 * MB, ldb=2048, p=PO),
        T_W4: dict(split=True, ownbase=FW4, abuf=UB, lda=7168, bk=B_W4, bs=7 * MB, ldb=2048, p=P4),
        T_W1: dict(split=False, ownbase=FW1, ostr=8, abuf=ZB, bk=B_W1, bs=2 * MB, ldb=2048, c=GB, ldc=2048, mode=1),
        T_W2: dict(split=False, ownbase=FW2, ostr=8, abuf=GB - 2048, bk=B_W2, bs=2 * MB, ldb=2048, c=X1B, ldc=2048, mode=2, shift=1, resid=YB),
        T_W3: dict(split=False, ownbase=FW3, ostr=32, abuf=Z2B, bk=B_W3, bs=7 * MB, ldb=7168, c=UB, ldc=7168, mode=1),
    }
    def gemm_setup(ty):
        d = types[ty]
        mk_srd(A, SRD_B, d['bk'], d['bs']); ws_srd(A, SRD_A); ws_srd(A, SRD_C); ws_srd(A, SRD_R)
        if d['split']:
            own(d['ownbase'], lambda: (A('s_lshl_b32 s%d, s%d, 6' % (sT0, sRB)), A('s_lshl_b32 s%d, s%d, 3' % (sT1, sKS)), A('s_add_u32 s%d, s%d, s%d' % (sT0, sT0, sT1)), A('s_add_u32 s%d, s%d, s%d' % (sT0, sT0, sNT))))
            gemm_params(A, d['lda'], d['ldb'], 2048, 0, 0)
            A('s_mov_b32 s%d, s%d' % (sNk, sNKi)); A('s_mov_b32 s%d, s%d' % (sShI, sNT)); A('s_mov_b32 s%d, 16' % sShR)
            A('s_mul_i32 s%d, s%d, %d' % (sAoff, sRow0, d['lda'])); A('s_lshl_b32 s%d, s%d, 7' % (sT0, sK0)); A('s_add_u32 s%d, s%d, s%d' % (sAoff, sAoff, sT0))
            A('s_add_u32 s%d, s%d, %d' % (sAoff, sAoff, d['abuf']))
            A('s_mul_i32 s%d, s%d, %d' % (sBoff, sK0, 64 * d['ldb'])); A('s_lshl_b32 s%d, s%d, 8' % (sT0, sNT)); A('s_add_u32 s%d, s%d, s%d' % (sBoff, sBoff, sT0))
            A('s_lshl_b32 s%d, s%d, 11' % (sCoff, sRow0)); A('s_add_u32 s%d, s%d, s%d' % (sCoff, sCoff, sT0))
            A('s_lshl_b32 s%d, s%d, 22' % (sT0, sKS)); A('s_add_u32 s%d, s%d, s%d' % (sCoff, sCoff, sT0)); A('s_add_u32 s%d, s%d, %d' % (sCoff, sCoff, d['p']))
        else:
            own(d['ownbase'], lambda: (A('s_mul_i32 s%d, s%d, %d' % (sT0, sRB, d['ostr'])), A('s_add_u32 s%d, s%d, s%d' % (sT0, sT0, sNT))))
            gemm_params(A, 2048, d['ldb'], d['ldc'], 16, d['mode'], d.get('shift', 0))
            A('s_mov_b32 s%d, s%d' % (sShI, sK0)); A('s_cmp_eq_u32 s%d, 7' % sNKi); A('s_cselect_b32 s%d, 19, 16' % sShR)
            A('s_lshl_b32 s%d, s%d, 11' % (sAoff, sRow0)); A('s_add_u32 s%d, s%d, %d' % (sAoff, sAoff, d['abuf']))
            A('s_lshl_b32 s%d, s%d, 8' % (sBoff, sNT))
            A('s_mul_i32 s%d, s%d, %d' % (sCoff, sRow0, d['ldc'])); A('s_add_u32 s%d, s%d, s%d' % (sCoff, sCoff, sBoff))
            if 'resid' in d: A('s_add_u32 s%d, s%d, %d' % (sRoff, sCoff, d['resid']))
            A('s_add_u32 s%d, s%d, %d' % (sCoff, sCoff, d['c']))

    TB = build_table()
    A.label('streams')
    A('s_getpc_b64 s[%d:%d]' % (sTab, sTab + 1))
    A.label('q_pc')
    A('s_add_u32 s%d, s%d, qtable-q_pc' % (sTab, sTab)); A('s_addc_u32 s%d, s%d, 0' % (sTab + 1, sTab + 1))
    A('s_lshl_b32 s%d, s%d, 5' % (sT0, sXW)); A('s_add_u32 s%d, s%d, s%d' % (sT0, sT0, sTK)); A('s_lshl_b32 s%d, s%d, 4' % (sT0, sT0))
    A('s_load_dword s%d, s[%d:%d], s%d' % (sS0, sTab, sTab + 1, sT0))
    A('s_add_u32 s%d, s%d, 4' % (sT1, sT0)); A('s_load_dword s%d, s[%d:%d], s%d' % (sS1, sTab, sTab + 1, sT1))
    A('s_add_u32 s%d, s%d, 8' % (sT2, sT0)); A('s_load_dword s%d, s[%d:%d], s%d' % (sS2, sTab, sTab + 1, sT2))
    A('s_waitcnt lgkmcnt(0)')
    A('s_lshr_b32 s%d, s%d, 28' % (sT2, sS0))
    A('s_cmp_eq_u32 s%d, %d' % (sT2, T_ATT)); A('s_cbranch_scc1 att_loop')
    A('s_cmp_eq_u32 s%d, %d' % (sT2, T_ROWLOOP)); A('s_cbranch_scc1 u_rowloop')
    A.label('ms_next')
    A('s_cmp_lg_u32 s%d, 0' % sS0); A('s_cbranch_scc1 ms_have')
    A('s_mov_b32 s%d, s%d' % (sS0, sS1)); A('s_mov_b32 s%d, s%d' % (sS1, sS2)); A('s_mov_b32 s%d, 0' % sS2)
    A('s_or_b32 s%d, s%d, s%d' % (sT0, sS0, sS1)); A('s_cmp_eq_u32 s%d, 0' % sT0); A('s_cbranch_scc1 L_exit_main')
    A('s_branch ms_next')
    A.label('ms_have')
    decode(sS0); blk_rows()
    A('s_lshr_b32 s%d, s%d, 28' % (sT5, sS0))
    for ty in types:
        Lt = A.uid('mt')
        A('s_cmp_lg_u32 s%d, %d' % (sT5, ty)); A('s_cbranch_scc1 %s' % Lt)
        gemm_setup(ty)
        A.label(Lt)
    G.load_b()
    A.label('ms_top')
    A('s_cmp_eq_u32 s%d, 0' % sS0); A('s_cbranch_scc1 ms_next')
    A('s_bfe_u32 s%d, s%d, 0x60016' % (sT0, sS0)); A('s_lshr_b32 s%d, s%d, 28' % (sT5, sS0))
    A('s_mov_b32 s%d, 16' % sCnt)
    A('s_lshl_b32 s%d, s%d, 7' % (sT2, sT0))
    A('s_add_u32 s%d, s%d, %d' % (sDep, sT2, FATT))
    A('s_add_u32 s%d, s%d, %d' % (sT3, sT2, FR1)); A('s_cmp_eq_u32 s%d, %d' % (sT5, T_W1)); A('s_cselect_b32 s%d, s%d, s%d' % (sDep, sT3, sDep))
    A('s_add_u32 s%d, s%d, %d' % (sT3, sT2, FR2)); A('s_cmp_eq_u32 s%d, %d' % (sT5, T_W3)); A('s_cselect_b32 s%d, s%d, s%d' % (sDep, sT3, sDep))
    A('s_add_u32 s%d, s%d, %d' % (sT3, sT2, FW3)); A('s_cmp_eq_u32 s%d, %d' % (sT5, T_W4)); A('s_cselect_b32 s%d, s%d, s%d' % (sDep, sT3, sDep)); A('s_cselect_b32 s%d, 28, s%d' % (sCnt, sCnt))
    Lw2 = A.uid('m2')
    A('s_cmp_lg_u32 s%d, %d' % (sT5, T_W2)); A('s_cbranch_scc1 %s' % Lw2)
    A('s_sub_u32 s%d, s%d, 1' % (sT2, sT0)); A('s_cmp_eq_u32 s%d, 0' % sT0); A('s_cselect_b32 s%d, 0, s%d' % (sT2, sT2))
    A('s_add_u32 s%d, s%d, 1' % (sT3, sT0)); A('s_cmp_eq_u32 s%d, %d' % (sT0, NB - 1)); A('s_cselect_b32 s%d, s%d, s%d' % (sT3, sT0, sT3))
    A('s_sub_u32 s%d, s%d, s%d' % (sT3, sT3, sT2)); A('s_add_u32 s%d, s%d, 1' % (sT3, sT3)); A('s_lshl_b32 s%d, s%d, 3' % (sCnt, sT3))
    A('s_lshl_b32 s%d, s%d, 5' % (sT2, sT2)); A('s_add_u32 s%d, s%d, %d' % (sDep, sT2, FW1))
    A.label(Lw2)
    A('s_mov_b32 s%d, s%d' % (sItem, sS0))
    A('s_add_u32 s%d, s%d, %d' % (sS0, sS0, 1 << 22)); A('s_bfe_u32 s%d, s%d, 0x60016' % (sT0, sS0))
    A('s_and_b32 s%d, s%d, 7' % (sT1, sS0)); A('s_add_u32 s%d, s%d, %d' % (sT1, sT1, NBIG))
    A('s_cmp_eq_u32 s%d, s%d' % (sT0, sT1)); A('s_cselect_b32 s%d, 0, s%d' % (sS0, sS0))
    decode(sItem); blk_rows()
    A('s_lshr_b32 s%d, s%d, 28' % (sT5, sItem))
    if trace:
        A('s_lshl_b32 s%d, s%d, 11' % (sQi, sT5)); A('s_mul_i32 s%d, s%d, 48' % (sT0, sRB)); A('s_add_u32 s%d, s%d, s%d' % (sQi, sQi, sT0))
        A('s_lshl_b32 s%d, s%d, 3' % (sT0, sKS)); A('s_add_u32 s%d, s%d, s%d' % (sQi, sQi, sT0)); A('s_add_u32 s%d, s%d, s%d' % (sQi, sQi, sNT))
        A('s_memrealtime s[98:99]')
    A('s_mov_b32 s%d, 0' % sItem)
    for ty in types:
        Lt = A.uid('mr')
        A('s_cmp_lg_u32 s%d, %d' % (sT5, ty)); A('s_cbranch_scc1 %s' % Lt)
        gemm_setup(ty)
        A.label(Lt)
    GS.setup(); wait_flags(A); A('s_branch gemm_main_s')

    A.label('att_loop')
    A('s_bfe_u32 s%d, s%d, 0x50011' % (sChunk, sS0))
    sAS = sD1
    A('s_lshr_b32 s%d, s%d, 3' % (sAS, sChunk))
    A.label('att_next')
    A('s_cmp_ge_u32 s%d, 64' % sAS); A('s_cbranch_scc1 att_fin')
    A('s_mov_b32 s%d, s%d' % (sRB, sAS)); A('s_and_b32 s%d, s%d, 7' % (sNT, sChunk)); A('s_add_u32 s%d, s%d, 2' % (sAS, sAS))
    if trace:
        A('s_lshl_b32 s%d, s%d, 3' % (sQi, sRB)); A('s_add_u32 s%d, s%d, s%d' % (sQi, sQi, sNT)); A('s_add_u32 s%d, s%d, 2048' % (sQi, sQi))
        A('s_memrealtime s[98:99]')
    wave_id(A, sSp)
    Lad = A.uid('ad'); Lap = A.uid('ap')
    A('s_cmp_lg_u32 s%d, 0' % sSp); A('s_cbranch_scc1 %s' % Lad)
    A('s_lshr_b32 s%d, s%d, 2' % (sT5, sRB)); A('s_mul_i32 s%d, s%d, 384' % (sT0, sT5)); A('s_lshl_b32 s%d, s%d, 4' % (sT1, sNT)); A('s_add_u32 s%d, s%d, s%d' % (sT0, sT0, sT1))
    A('s_add_u32 s%d, s%d, %d' % (sT0, sT0, FQKV))
    A('v_lshrrev_b32 v248, 2, v0'); A('v_lshlrev_b32 v248, 7, v248'); A('v_and_b32 v249, 3, v0'); A('v_lshl_add_u32 v248, v249, 2, v248'); A('v_add_u32 v248, s%d, v248' % sT0)
    A('s_lshl_b32 s%d, s%d, 10' % (sT0, sRB)); A('s_lshl_b32 s%d, s%d, 7' % (sT1, sNT)); A('s_add_u32 s%d, s%d, s%d' % (sT0, sT0, sT1)); A('s_add_u32 s%d, s%d, %d' % (sT0, sT0, FLG_SEG - 128))
    A('v_lshlrev_b32 v249, 2, v0'); A('v_add_u32 v249, s%d, v249' % sT0)
    A('v_cmp_gt_u32 vcc, 32, v0'); A('s_nop 1'); A('v_cndmask_b32 v250, v249, v248, vcc')
    A('s_mov_b32 s%d, 0xfff' % sMsk); A('s_mov_b32 s%d, -1' % (sMsk + 1)); A('s_mov_b64 exec, s[%d:%d]' % (sMsk, sMsk + 1))
    A('s_mov_b32 s%d, 0' % sSp)
    A.label(Lap)
    A('buffer_load_dword v251, v250, s[8:11], 0 offen sc1')
    A('s_add_u32 s%d, s%d, 1' % (sSp, sSp)); A('s_cmp_gt_u32 s%d, %d' % (sSp, SPIN)); A('s_cbranch_scc1 worker_abort')
    A('s_waitcnt vmcnt(0)')
    A('v_cmp_eq_u32 vcc, 0, v251'); A('s_cbranch_vccz %s_ok' % Lap)
    A('s_sleep 2'); A('s_branch %s' % Lap)
    A.label(Lap + '_ok')
    A('s_mov_b64 exec, -1')
    A.label(Lad)
    A('s_barrier')
    if trace: A('s_memrealtime s[100:101]')
    def code():
        A('s_lshr_b32 s%d, s%d, 1' % (sT0, sRB)); A('s_lshl_b32 s%d, s%d, 5' % (sT0, sT0))
        A('s_and_b32 s%d, s%d, 1' % (sT1, sRB)); A('s_lshl_b32 s%d, s%d, 3' % (sT1, sT1)); A('s_add_u32 s%d, s%d, s%d' % (sT0, sT0, sT1))
        A('s_add_u32 s%d, s%d, s%d' % (sT0, sT0, sNT))
    own(FATT, code)
    A('s_mov_b32 s%d, s%d' % (sSeg, sRB)); A('s_lshl_b32 s%d, s%d, 2' % (sHead, sNT))
    A('s_mov_b32 s%d, 3' % sItem)
    unit_att(A)
    A('s_branch unit_done')

    A.label('att_fin')
    A('s_mov_b32 s%d, 0' % sS0)
    A('s_branch ms_next')
    sN1, sN2, sN3 = sS0, sS1, sS2
    A.label('u_rowloop')
    A('s_bfe_u32 s%d, s%d, 0x50011' % (sChunk, sS0))
    A('s_mov_b32 s%d, 0' % sN1); A('s_mov_b32 s%d, 0' % sN2); A('s_mov_b32 s%d, 0' % sN3)
    A.label('rl_top')
    A('s_cmp_ge_u32 s%d, 16' % sN3); A('s_cbranch_scc1 L_exit_main')
    wave_id(A, sSp)
    A('s_cmp_lg_u32 s%d, 0' % sSp); A('s_cbranch_scc1 rl_wait')
    A('v_lshlrev_b32 v250, 2, v0'); A('s_mov_b32 s%d, 0' % sSp)
    A.label('rl_poll')
    A('s_lshr_b32 s%d, s%d, 4' % (sT1, sChunk))
    for reg, base, sh, n_ in ((247, FO, 8, sN1), (248, FW2, 5, sN2), (249, FW4, 8, sN3)):
        A('s_min_u32 s%d, s%d, 15' % (sT0, n_)); A('s_lshl_b32 s%d, s%d, 1' % (sT0, sT0)); A('s_add_u32 s%d, s%d, s%d' % (sT0, sT0, sT1))
        A('s_lshl_b32 s%d, s%d, %d' % (sT0, sT0, sh)); A('s_add_u32 s%d, s%d, %d' % (sT0, sT0, base))
        A('buffer_load_dword v%d, v250, s[8:11], s%d offen sc1' % (reg, sT0))
    A('s_add_u32 s%d, s%d, 1' % (sSp, sSp)); A('s_cmp_gt_u32 s%d, %d' % (sSp, SPIN)); A('s_cbranch_scc1 worker_abort')
    A('s_waitcnt vmcnt(0)')
    A('s_mov_b32 s%d, 0' % sT5)
    for code_, reg, cnt, n_ in ((1, 247, 48, sN1), (2, 248, 8, sN2), (3, 249, 48, sN3)):
        Ln = A.uid('rn')
        A('s_cmp_lg_u32 s%d, 0' % sT5); A('s_cbranch_scc1 %s' % Ln)
        A('s_cmp_ge_u32 s%d, 16' % n_); A('s_cbranch_scc1 %s' % Ln)
        A('v_cmp_eq_u32 vcc, 0, v%d' % reg)
        if cnt == 48: A('s_and_b32 vcc_hi, vcc_hi, 0xffff')
        else: A('s_and_b32 vcc_lo, vcc_lo, 0xff'); A('s_mov_b32 vcc_hi, 0')
        A('s_cmp_lg_u64 vcc, 0'); A('s_cbranch_scc1 %s' % Ln)
        A('s_mov_b32 s%d, %d' % (sT5, code_))
        A.label(Ln)
    A('s_cmp_lg_u32 s%d, 0' % sT5); A('s_cbranch_scc1 rl_got')
    A('s_sleep 2'); A('s_branch rl_poll')
    A.label('rl_got')
    A('v_mov_b32 v250, 163832'); A('v_mov_b32 v251, s%d' % sT5); A('s_mov_b64 exec, 1'); A('ds_write_b32 v250, v251'); A('s_mov_b64 exec, -1'); A('s_waitcnt lgkmcnt(0)')
    A.label('rl_wait')
    A('s_barrier')
    A('v_mov_b32 v250, 163832'); A('ds_read_b32 v251, v250'); A('s_waitcnt lgkmcnt(0)'); A('v_readfirstlane_b32 s%d, v251' % sT5)
    A('s_barrier')
    if trace: A('s_memrealtime s[98:99]'); A('s_memrealtime s[100:101]')
    A('s_mov_b32 s%d, 2' % sItem)
    for c_ in (2, 3):
        A('s_cmp_eq_u32 s%d, %d' % (sT5, c_)); A('s_cbranch_scc1 rl_%d' % c_)
    def pick(n_, T_, lab):
        A('s_lshl_b32 s%d, s%d, 1' % (sRB, n_)); A('s_lshr_b32 s%d, s%d, 4' % (sT1, sChunk)); A('s_add_u32 s%d, s%d, s%d' % (sRB, sRB, sT1)); A('s_and_b32 s%d, s%d, 15' % (sNT, sChunk))
        if trace:
            A('s_mul_i32 s%d, s%d, 48' % (sQi, sRB)); A('s_add_u32 s%d, s%d, s%d' % (sQi, sQi, sNT)); A('s_add_u32 s%d, s%d, %d' % (sQi, sQi, T_ * 2048))
        A('s_add_u32 s%d, s%d, 1' % (n_, n_)); blk_rows(); A('s_branch %s' % lab)
    pick(sN1, T_R1, 'u_r1')
    A.label('rl_2'); pick(sN2, T_R2, 'u_r2')
    A.label('rl_3'); pick(sN3, T_R3, 'u_r3')
    def rowu(lab, ownbase, fn, pre=None):
        A.label(lab)
        if ownbase is not None:
            own(ownbase, lambda: (A('s_lshl_b32 s%d, s%d, 5' % (sT0, sRB)), A('s_add_u32 s%d, s%d, s%d' % (sT0, sT0, sNT))))
        if pre: pre()
        A('s_lshl_b32 s%d, s%d, 2' % (sT0, sNT)); A('s_add_u32 s%d, s%d, s%d' % (sRow, sRow0, sT0))
        fn(A)
        A('s_branch %s' % ('unit_done' if ownbase is not None else 'unit_nosig'))
    rowu('u_r1', FR1, unit_r1, lambda: mk_srd(A, SRD_R, A_X, 4 * MB))
    rowu('u_r2', FR2, unit_r2)
    rowu('u_r3', None, unit_r3, lambda: mk_srd(A, SRD_C, D_OUT, 4 * MB))

    def epis(G_, sfx):
        A('s_cmp_eq_u32 s%d, 1' % sMode); A('s_cbranch_scc1 epi1%s' % sfx)
        A('s_cmp_eq_u32 s%d, 2' % sMode); A('s_cbranch_scc1 epi2%s' % sfx)
        G_.epi_bf16(); A('s_branch unit_done')
        A.label('epi1' + sfx); G_.epi_bf16(gelu=True); A('s_branch unit_done')
        A.label('epi2' + sfx); G_.epi_bf16(resid=True); A('s_branch unit_done')
    A.label('gemm_main')
    G.mainloop()
    G.epi_bf16(); A('s_branch unit_done')
    A.label('gemm_main_s')
    GS.mainloop()
    epis(GS, 's')
    def trace_out():
        if trace:
            A('s_memrealtime s[68:69]'); A('s_waitcnt lgkmcnt(0)')
            Lt = A.uid('tr')
            A('v_cmp_eq_u32 vcc, 0, v0'); A('s_and_saveexec_b64 s[%d:%d], vcc' % (sMsk, sMsk + 1)); A('s_cbranch_execz %s' % Lt)
            A('v_mov_b32 v240, s98'); A('v_mov_b32 v241, s100'); A('v_mov_b32 v242, s66'); A('v_mov_b32 v243, s68')
            A('s_sub_u32 s%d, s62, s60' % sT1); A('s_sub_u32 s%d, s64, s62' % sT2)
            A('v_mov_b32 v244, s%d' % sT1); A('v_mov_b32 v245, s%d' % sT2); A('v_mov_b32 v246, 0'); A('v_mov_b32 v247, 0')
            A('s_lshl_b32 s%d, s%d, 5' % (sT0, sQi)); A('s_add_u32 s%d, s%d, %d' % (sT0, sT0, TRC)); A('v_mov_b32 v250, 0')
            A('buffer_store_dwordx4 v[240:243], v250, s[8:11], s%d offen' % sT0)
            A('buffer_store_dwordx4 v[244:247], v250, s[8:11], s%d offen offset:16' % sT0)
            A.label(Lt)
            A('s_mov_b64 exec, s[%d:%d]' % (sMsk, sMsk + 1))
    A.label('unit_done')
    if trace: A('s_memrealtime s[66:67]')
    signal_flag(A)
    trace_out()
    A('s_cmp_eq_u32 s%d, 1' % sItem); A('s_cbranch_scc1 qkv_next')
    A('s_cmp_eq_u32 s%d, 2' % sItem); A('s_cbranch_scc1 rl_top')
    A('s_cmp_eq_u32 s%d, 3' % sItem); A('s_cbranch_scc1 att_next')
    A('s_branch ms_top')
    A.label('unit_nosig')
    if trace: A('s_memrealtime s[66:67]')
    A('s_waitcnt vmcnt(0)'); A('s_barrier')
    trace_out()
    A('s_branch rl_top')
    A.label('worker_abort')
    A('s_mov_b64 exec, 1')
    A('v_mov_b32 v250, 1'); A('v_mov_b32 v251, 132')
    A('global_atomic_add v251, v250, s[6:7] sc1'); A('s_waitcnt vmcnt(0)')
    A.label('L_exit_main')
    A('s_endpgm')
    A.raw('.p2align 2')
    A.raw('.type qtable,@object')
    A.label('qtable')
    for x in range(8):
        for t in range(32):
            A.raw('    .long ' + ', '.join('0x%08x' % w for w in TB[x, t] + [0]))
    A.raw('.section .rodata,"a"')
    A.raw('.p2align 6'); kernel_desc(A, KNAME)
    return A.text()
if __name__ == '__main__':
    kw = {}
    for x in sys.argv[2:]:
        k, v = x.split('=')
        kw[k] = v
    ck = dict(rearly=int(kw.pop('rearly', 5)), vdefer=int(kw.pop('vdefer', 0)), sel=int(kw.pop('sel', 0)))
    if kw.get('trace'): ck['steptrace'] = True
    if kw.pop('rt', None): ck['rt'] = 1
    for k_ in ('touch', 'd1', 'd4', 'd6'):
        if k_ in kw: ck[k_] = int(kw.pop(k_))
    kw['chain_kw'] = ck
    open(sys.argv[1], 'w').write(gen(**kw))
```

```python
from asmlib import *
from layout import *
import struct, math

LDS_WO = 0
LDS_XB = 131072
LDS_XV = LDS_XB + 12288
LDS_RED = LDS_XB + 16384
LDS_KX = 151552
LDS_VX = 159744
LDS_CHAIN_END = 163840
SPIN_LIMIT = 1 << 22
RDELTA = PART - MEMB

SRD_WS = 8
SRD_T = 12
S_DBG = 6
sX, sC, sW, sH, sJ, sS = 16, 17, 18, 19, 20, 21
sMEMc, sMEMn, sMEMp, sQKc, sQKp, sOBc, sOBp, sMRc, sQKv, sKMs, sVMs, sFLo, sDMo, sMRp, sOBc2 = range(22, 37)
sT0, sT1, sT2, sT3 = 37, 38, 39, 40
sSPIN = 41
sHI, sN8 = 42, 44
sC_, sFE = 46, 47
sTM = 48
sLO32 = 54
sKMM = 58
sACC = 60
sRT = 80
sKMb, sVMb, sFLb, sQKb, sMEMb, sMRb, sOBb, sKXb, sVXb = range(86, 95)
OOBS = 0x70000000
OOBV = 0x7ff00000

def wreg(kl, mu, t):
    idx = kl * 12 + mu * 4 + t
    return 256 + idx * 8 if idx < 32 else 128 + (idx - 32) * 8

def gen_chain(A, intra='', timing=False, nsteps=64, d4=0, d6=0, d1=0, kvwait=None, looptime=False, steptrace=False, rpos=0, dbgwait=0, noflag=0, nokm=0, finish=None, rt=0, rearly=0, vdefer=0, touch=0, early_end=1, sel=1):
    I = intra
    def st(x): return (x + ' ' + I).rstrip()
    WS = 's[%d:%d]' % (SRD_WS, SRD_WS + 3)
    (vL16, vXq0, vXq1, vXq2, vXq3, vXqR, vXvW, vXvR, vQkSt, vQkLd, vQkL, vOSt, vIdx, vBias, vKx0, vKx1, vKx2, vKx3, vVx, vWoR,
     vKmSt, vVmSt, vD0, vD1, vD2, vD3, vPq, vPo, vPm, vRedW, vRedR, vFlg, vVM, vVM1, vOnes, vOnes1) = range(36)
    vXq = [vXq0, vXq1, vXq2, vXq3]; vKxD4 = [vD0, vD1, vD2, vD3]
    vT = 36
    W0 = 40
    vLane, vG, vN = 120, 121, 122
    t0, t1, t2, t3 = 123, 124, 125, 126
    A.c('=== chain v4 ===')
    A('v_and_b32 v%d, 63, v0' % vLane)
    A('v_lshrrev_b32 v%d, 6, v0' % t0)
    A('s_nop 0')
    A('v_readfirstlane_b32 s%d, v%d' % (sW, t0))
    A('v_lshrrev_b32 v%d, 4, v%d' % (vG, vLane))
    A('v_and_b32 v%d, 15, v%d' % (vN, vLane))
    A('s_lshr_b32 s%d, s%d, 1' % (sT0, sC))
    A('s_and_b32 s%d, s%d, 1' % (sJ, sC))
    A('s_lshl_b32 s%d, s%d, 4' % (sH, sX))
    A('s_add_u32 s%d, s%d, s%d' % (sH, sH, sT0))
    A('v_cmp_le_u32 s[%d:%d], 32, v%d' % (sHI, sHI + 1, vLane))
    A('v_cmp_gt_u32 s[%d:%d], 8, v%d' % (sN8, sN8 + 1, vN))
    cval = struct.unpack('<I', struct.pack('<f', (128 ** -0.5) * math.log2(math.e)))[0]
    A('s_mov_b32 s%d, 0x%08x' % (sC_, cval))
    A('s_mov_b32 s%d, 0xfffefffe' % sFE)
    A('s_mov_b32 s56, 0x%08x' % cval); A('s_mov_b32 s57, 0x%08x' % cval)
    A('s_mov_b32 s%d, -1' % sLO32); A('s_mov_b32 s%d, 0' % (sLO32 + 1))
    A('v_lshlrev_b32 v%d, 4, v%d' % (vL16, vLane))
    for t in range(4):
        A('s_sub_u32 s%d, s%d, %d' % (sT0, sW, t + 1)); A('s_and_b32 s%d, s%d, 3' % (sT0, sT0)); A('s_lshl_b32 s%d, s%d, 10' % (sT0, sT0))
        A('s_add_u32 s%d, s%d, %d' % (sT0, sT0, LDS_XB + t * 3072))
        A('v_add_u32 v%d, s%d, v%d' % (vXq[t], sT0, vL16))
    A('s_mul_i32 s%d, s%d, 3072' % (sT0, sW)); A('s_add_u32 s%d, s%d, %d' % (sT0, sT0, LDS_XB))
    A('v_add_u32 v%d, s%d, v%d' % (vXqR, sT0, vL16))
    A('s_lshl_b32 s%d, s%d, 11' % (sT0, sW)); A('s_add_u32 s%d, s%d, %d' % (sT0, sT0, LDS_XV))
    A('v_add_u32 v%d, s%d, v%d' % (vXvW, sT0, vL16))
    A('s_lshr_b32 s%d, s%d, 1' % (sT0, sW)); A('s_lshl_b32 s%d, s%d, 10' % (sT0, sT0))
    A('s_and_b32 s%d, s%d, 1' % (sT1, sW)); A('s_lshl_b32 s%d, s%d, 3' % (sT1, sT1))
    A('s_add_u32 s%d, s%d, s%d' % (sT0, sT0, sT1)); A('s_add_u32 s%d, s%d, %d' % (sT0, sT0, LDS_XV))
    A('v_add_u32 v%d, s%d, v%d' % (vXvR, sT0, vL16))
    A('s_lshl_b32 s%d, s%d, 15' % (sT0, sW))
    A('v_add_u32 v%d, s%d, v%d' % (vWoR, sT0, vL16))
    A('s_lshl_b32 s%d, s%d, 10' % (sT0, sW)); A('s_add_u32 s%d, s%d, %d' % (sT0, sT0, LDS_RED))
    A('v_lshlrev_b32 v%d, 8, v%d' % (vRedW, vG))
    A('v_lshl_add_u32 v%d, v%d, 2, v%d' % (vRedW, vN, vRedW))
    A('v_add_u32 v%d, s%d, v%d' % (vRedW, sT0, vRedW))
    A('v_lshrrev_b32 v%d, 2, v%d' % (t0, vN)); A('v_lshlrev_b32 v%d, 1, v%d' % (t0, t0)); A('v_and_b32 v%d, 1, v%d' % (t1, vN)); A('v_add_u32 v%d, v%d, v%d' % (t0, t0, t1))
    A('v_lshlrev_b32 v%d, 7, v%d' % (vRedR, t0))
    A('v_bfe_u32 v%d, v%d, 1, 1' % (t1, vN)); A('v_lshl_add_u32 v%d, v%d, 5, v%d' % (vRedR, t1, vRedR))
    A('v_bfe_u32 v%d, v%d, 4, 1' % (t1, vLane)); A('v_lshl_add_u32 v%d, v%d, 6, v%d' % (vRedR, t1, vRedR))
    A('v_add_u32 v%d, %d, v%d' % (vRedR, LDS_RED, vRedR))
    vRr = 119
    A('v_mov_b32 v%d, v%d' % (vRr, t0))
    A('v_and_b32 v%d, 7, v%d' % (t0, vN))
    A('v_lshrrev_b32 v%d, 3, v%d' % (t1, vN))
    A('v_lshlrev_b32 v%d, 7, v%d' % (vQkSt, t1))
    A('v_lshl_add_u32 v%d, v%d, 5, v%d' % (vQkSt, vG, vQkSt))
    A('v_lshl_add_u32 v%d, v%d, 1, v%d' % (vQkSt, t0, vQkSt))
    A('s_lshl_b32 s%d, s%d, 10' % (sT0, sJ)); A('s_lshl_b32 s%d, s%d, 8' % (sT1, sW)); A('s_add_u32 s%d, s%d, s%d' % (sT0, sT0, sT1))
    A('v_add_u32 v%d, s%d, v%d' % (vQkSt, sT0, vQkSt))
    A('v_lshlrev_b32 v%d, 7, v%d' % (vQkLd, vG))
    A('v_lshl_add_u32 v%d, v%d, 4, v%d' % (vQkLd, t0, vQkLd))
    A('v_add_u32 v%d, %d, v%d' % (vQkL, LDS_XB, vQkLd))
    A('v_lshlrev_b32 v%d, 7, v%d' % (vBias, vG)); A('v_lshl_add_u32 v%d, v%d, 4, v%d' % (vBias, vRr, vBias)); A('v_add_u32 v%d, %d, v%d' % (vBias, LDS_XB + 2048, vBias))
    A('v_and_b32 v%d, 1, v%d' % (t2, vG))
    A('v_lshrrev_b32 v%d, 1, v%d' % (t3, vN)); A('v_lshlrev_b32 v%d, 2, v%d' % (vOSt, t3))
    A('v_and_b32 v%d, 1, v%d' % (t3, vN)); A('v_add_u32 v%d, v%d, v%d' % (vOSt, vOSt, t3))
    A('v_lshrrev_b32 v%d, 1, v%d' % (t3, vG)); A('v_lshl_add_u32 v%d, v%d, 1, v%d' % (vOSt, t3, vOSt))
    A('v_lshlrev_b32 v%d, 4, v%d' % (vOSt, vOSt))
    A('v_lshl_add_u32 v%d, v%d, 3, v%d' % (vOSt, t2, vOSt))
    A('s_lshl_b32 s%d, s%d, 10' % (sT1, sC)); A('s_lshl_b32 s%d, s%d, 8' % (sT2, sW)); A('s_add_u32 s%d, s%d, s%d' % (sT1, sT1, sT2))
    A('v_add_u32 v%d, s%d, v%d' % (vOSt, sT1, vOSt))
    A('v_mov_b32 v%d, 0x%x' % (t3, OOBV))
    A('v_cndmask_b32 v%d, v%d, v%d, s[%d:%d]' % (vOSt, t3, vOSt, sN8, sN8 + 1))
    A('v_mov_b32 v%d, 0x4444' % vIdx); A('v_mov_b32 v%d, 0xeeee' % t2)
    A('v_and_b32 v%d, 2, v%d' % (t3, vN)); A('v_cmp_ne_u32 vcc, 0, v%d' % t3); A('s_nop 1')
    A('v_cndmask_b32 v%d, v%d, v%d, vcc' % (vIdx, vIdx, t2))
    A('v_mov_b32 v%d, 0x3f803f80' % vOnes); A('v_mov_b32 v%d, 0x3f803f80' % vOnes1)
    A('v_xor_b32 v%d, v%d, v%d' % (t2, vG, vN)); A('v_lshlrev_b32 v%d, 4, v%d' % (t2, t2)); A('v_lshl_add_u32 v%d, v%d, 8, v%d' % (t2, vN, t2))
    A('v_add_u32 v%d, %d, v%d' % (vKx0, LDS_KX, t2))
    for k in range(1, 4): A('v_xor_b32 v%d, %d, v%d' % (vKx0 + k, k * 64, vKx0))
    A('v_lshrrev_b32 v%d, 2, v%d' % (t2, vN)); A('v_lshl_add_u32 v%d, v%d, 2, v%d' % (t2, vG, t2))
    A('v_lshrrev_b32 v%d, 1, v%d' % (t3, t2)); A('v_and_b32 v%d, 3, v%d' % (t3, t3)); A('v_xor_b32 v%d, s%d, v%d' % (t3, sW, t3))
    A('v_lshlrev_b32 v%d, 5, v%d' % (t3, t3)); A('v_lshl_add_u32 v%d, v%d, 7, v%d' % (t3, t2, t3))
    A('v_and_b32 v%d, 3, v%d' % (t2, vN)); A('v_lshl_add_u32 v%d, v%d, 3, v%d' % (t3, t2, t3))
    A('v_add_u32 v%d, %d, v%d' % (vVx, LDS_VX, t3))
    A('v_lshlrev_b32 v%d, 4, v%d' % (vKmSt, vG)); A('v_lshl_add_u32 v%d, v%d, 13, v%d' % (vKmSt, vN, vKmSt))
    A('v_lshrrev_b32 v%d, 2, v%d' % (t2, vN))
    A('v_cmp_eq_u32 s[%d:%d], s%d, v%d' % (sKMM, sKMM + 1, sJ, t2))
    A('v_mov_b32 v%d, 0x%x' % (t3, OOBV))
    A('v_lshlrev_b32 v%d, 2, v%d' % (vVmSt, vLane))
    A('v_mov_b32 v%d, 0' % vVM1)
    A('v_cndmask_b32 v%d, v%d, v%d, s[%d:%d]' % (vKmSt, t3, vKmSt, sKMM, sKMM + 1))
    A('v_cmp_eq_u32 vcc, 0, v%d' % vLane); A('s_nop 1'); A('v_cndmask_b32 v%d, v%d, 0, vcc' % (vFlg, t3))
    for i in range(4):
        A('v_add_u32 v%d, %d, v%d' % (t2, 4 * i, vG)); A('v_xor_b32 v%d, v%d, v%d' % (t3, t2, vN)); A('v_lshlrev_b32 v%d, 4, v%d' % (t3, t3))
        A('v_lshl_add_u32 v%d, v%d, 13, v%d' % (t3, t2, t3)); A('v_subrev_u32 v%d, %d, v%d' % (vKxD4[i], 1024 * i, t3))
    Lw3 = A.uid('w3')
    A('s_cmp_lg_u32 s%d, 3' % sW); A('s_cbranch_scc1 %s' % Lw3)
    for i in range(4):
        A('v_lshrrev_b32 v%d, 3, v%d' % (t2, vLane)); A('v_add_u32 v%d, %d, v%d' % (t2, 8 * i, t2))
        A('v_lshrrev_b32 v%d, 1, v%d' % (t3, t2)); A('v_and_b32 v%d, 3, v%d' % (t3, t3))
        A('v_bfe_u32 v%d, v%d, 1, 2' % (t1, vLane)); A('v_xor_b32 v%d, v%d, v%d' % (t3, t3, t1)); A('v_lshlrev_b32 v%d, 5, v%d' % (t3, t3))
        A('v_and_b32 v%d, 1, v%d' % (t1, vLane)); A('v_lshl_add_u32 v%d, v%d, 4, v%d' % (t3, t1, t3))
        A('v_lshl_add_u32 v%d, v%d, 13, v%d' % (t3, t2, t3)); A('v_subrev_u32 v%d, %d, v%d' % (vKxD4[i], 1024 * i, t3))
    A.label(Lw3)
    A('v_bfe_u32 v%d, v%d, 4, 1' % (t2, vLane)); A('v_lshlrev_b32 v%d, 11, v%d' % (vPq, t2)); A('v_lshl_add_u32 v%d, v%d, 4, v%d' % (vPq, vN, vPq))
    A('s_lshl_b32 s%d, s%d, 10' % (sT0, sJ)); A('s_lshl_b32 s%d, s%d, 8' % (sT1, sW)); A('s_add_u32 s%d, s%d, s%d' % (sT0, sT0, sT1))
    A('v_add_u32 v%d, s%d, v%d' % (vPq, sT0, vPq))
    A('s_lshl_b32 s%d, s%d, 10' % (sT0, sC)); A('s_add_u32 s%d, s%d, s%d' % (sT0, sT0, sT1))
    A('v_add_u32 v%d, s%d, v%d' % (vPo, sT0, vL16))
    A('s_lshl_b32 s%d, s%d, 9' % (sT0, sC)); A('v_add_u32 v%d, s%d, v%d' % (vPm, sT0, vL16))
    A('v_mov_b32 v%d, 0x%x' % (t3, OOBV))
    A('v_cndmask_b32 v%d, v%d, v%d, s[%d:%d]' % (vPq, vPq, t3, sHI, sHI + 1))
    A('v_cndmask_b32 v%d, v%d, v%d, s[%d:%d]' % (vPm, vPm, t3, sHI, sHI + 1))
    A('v_cmp_le_u32 vcc, 16, v%d' % vLane); A('s_nop 1'); A('v_cndmask_b32 v%d, v%d, v%d, vcc' % (vPo, vPo, t3))
    A('s_lshl_b32 s%d, s%d, 8' % (sT0, sH)); A('s_lshl_b32 s%d, s%d, 6' % (sT1, sW))
    A('s_add_u32 s%d, s%d, s%d' % (sKMb, sT0, sT1)); A('s_add_u32 s%d, s%d, %d' % (sKMb, sKMb, KM))
    A('s_lshl_b32 s%d, s%d, 3' % (sT0, sH)); A('s_lshl_b32 s%d, s%d, 2' % (sT1, sJ))
    A('s_add_u32 s%d, s%d, s%d' % (sT0, sT0, sT1)); A('s_add_u32 s%d, s%d, s%d' % (sT0, sT0, sW))
    A('s_lshl_b32 s%d, s%d, 8' % (sVMb, sT0)); A('s_add_u32 s%d, s%d, %d' % (sVMb, sVMb, VMF))
    A('s_lshl_b32 s%d, s%d, 2' % (sFLb, sT0)); A('s_add_u32 s%d, s%d, %d' % (sFLb, sFLb, FLG_SEG))
    A('s_lshl_b32 s%d, s%d, 14' % (sQKb, sH)); A('s_add_u32 s%d, s%d, %d' % (sQKb, sQKb, QKB))
    A('s_lshl_b32 s%d, s%d, 16' % (sMEMb, sX)); A('s_add_u32 s%d, s%d, %d' % (sMEMb, sMEMb, MEMB))
    A('s_xor_b32 s%d, s%d, 1' % (sT0, sX)); A('s_lshl_b32 s%d, s%d, 16' % (sMRb, sT0)); A('s_add_u32 s%d, s%d, %d' % (sMRb, sMRb, MEMB + RDELTA))
    A('s_lshl_b32 s%d, s%d, 17' % (sOBb, sX)); A('s_add_u32 s%d, s%d, %d' % (sOBb, sOBb, OB))
    A('s_lshl_b32 s%d, s%d, 8' % (sT0, sH))
    A('s_sub_u32 s%d, s%d, 1' % (sT1, sW)); A('s_lshl_b32 s%d, s%d, 17' % (sT2, sT1)); A('s_add_u32 s%d, s%d, s%d' % (sKXb, sT0, sT2)); A('s_add_u32 s%d, s%d, %d' % (sKXb, sKXb, KX))
    A('s_lshl_b32 s%d, s%d, 12' % (sVXb, sT1)); A('s_add_u32 s%d, s%d, %d' % (sVXb, sVXb, LDS_KX))
    A('s_lshl_b32 s%d, s%d, 7' % (sT1, sJ)); A('s_add_u32 s%d, s%d, s%d' % (sT0, sT0, sT1)); A('s_add_u32 s%d, s%d, %d' % (sT0, sT0, VX))
    A('s_cmp_eq_u32 s%d, 3' % sW); A('s_cselect_b32 s%d, s%d, s%d' % (sKXb, sT0, sKXb)); A('s_cselect_b32 s%d, %d, s%d' % (sVXb, LDS_VX, sVXb))
    def calc(n):
        A('s_and_b32 s%d, s%d, 3' % (sT0, n))
        A('s_lshl_b32 s%d, s%d, 14' % (sT1, sT0)); A('s_lshl_b32 s%d, s%d, 12' % (sT2, sW)); A('s_add_u32 s%d, s%d, s%d' % (sT1, sT1, sT2))
        A('s_add_u32 s%d, s%d, s%d' % (sMEMc, sMEMb, sT1)); A('s_add_u32 s%d, s%d, s%d' % (sMRc, sMRb, sT1))
        A('s_lshl_b32 s%d, s%d, 12' % (sT1, sT0)); A('s_add_u32 s%d, s%d, s%d' % (sQKc, sQKb, sT1))
        A('s_add_u32 s%d, s%d, 3' % (sT0, n)); A('s_and_b32 s%d, s%d, 3' % (sT0, sT0))
        A('s_lshl_b32 s%d, s%d, 12' % (sT1, sT0)); A('s_add_u32 s%d, s%d, s%d' % (sQKv, sQKb, sT1))
        A('s_lshl_b32 s%d, s%d, 9' % (sT1, sW)); A('s_add_u32 s%d, s%d, s%d' % (sQKv, sQKv, sT1))
        A('s_add_u32 s%d, s%d, 2' % (sT0, n)); A('s_and_b32 s%d, s%d, 3' % (sT0, sT0))
        A('s_lshl_b32 s%d, s%d, 12' % (sT1, sT0)); A('s_add_u32 s%d, s%d, s%d' % (sQKp, sQKb, sT1))
        A('s_lshl_b32 s%d, s%d, 14' % (sT1, sT0)); A('s_add_u32 s%d, s%d, s%d' % (sMEMp, sMEMb, sT1)); A('s_add_u32 s%d, s%d, %d' % (sMRp, sMEMp, RDELTA))
        A('s_lshl_b32 s%d, s%d, 15' % (sT1, sT0)); A('s_add_u32 s%d, s%d, s%d' % (sOBp, sOBb, sT1))
        A('s_sub_u32 s%d, s%d, 1' % (sT0, n))
        A('s_lshl_b32 s%d, s%d, 16' % (sT1, sT0)); A('s_add_u32 s%d, s%d, s%d' % (sKMs, sKMb, sT1)); A('s_add_u32 s%d, s%d, s%d' % (sVMs, sVMb, sT1))
        A('s_sub_u32 s%d, s%d, 2' % (sT0, n)); A('s_lshl_b32 s%d, s%d, 10' % (sT1, sT0)); A('s_add_u32 s%d, s%d, s%d' % (sFLo, sFLb, sT1))
        A('s_cmp_lt_u32 s%d, 2' % n); A('s_cselect_b32 s%d, 0x%x, s%d' % (sFLo, OOBS, sFLo))
        A('s_cmp_lt_u32 s%d, 1' % n); A('s_cselect_b32 s%d, 0x%x, s%d' % (sKMs, OOBS, sKMs)); A('s_cselect_b32 s%d, 0x%x, s%d' % (sVMs, OOBS, sVMs))
        A('s_lshl_b32 s%d, s%d, 18' % (sDMo, n)); A('s_add_u32 s%d, s%d, s%d' % (sDMo, sDMo, sKXb))
    def calc_ob_memn(n):
        A('s_and_b32 s%d, s%d, 3' % (sT0, n))
        A('s_lshl_b32 s%d, s%d, 15' % (sT1, sT0)); A('s_add_u32 s%d, s%d, s%d' % (sOBc, sOBb, sT1))
        A('s_lshl_b32 s%d, s%d, 13' % (sT1, sW)); A('s_add_u32 s%d, s%d, s%d' % (sOBc2, sOBc, sT1))
        A('s_add_u32 s%d, s%d, 1' % (sT0, n)); A('s_and_b32 s%d, s%d, 3' % (sT0, sT0))
        A('s_lshl_b32 s%d, s%d, 14' % (sT1, sT0)); A('s_add_u32 s%d, s%d, s%d' % (sMEMn, sMEMb, sT1))

    for i in range(4): A('v_mov_b32 v%d, -1' % (W0 + i))
    for sl in range(4):
        A('s_add_u32 s%d, s%d, %d' % (sT0, sQKb, sl * 4096))
        A(st('buffer_store_dwordx4 v[%d:%d], v%d, %s, s%d offen' % (W0, W0 + 3, vPq, WS, sT0)))
        A('s_add_u32 s%d, s%d, %d' % (sT0, sOBb, sl * 32768))
        A(st('buffer_store_dwordx4 v[%d:%d], v%d, %s, s%d offen' % (W0, W0 + 3, vPo, WS, sT0)))
        Lq = A.uid('pp')
        A('s_cmp_lg_u32 s%d, 0' % sW); A('s_cbranch_scc1 %s' % Lq)
        A('s_add_u32 s%d, s%d, %d' % (sT0, sMEMb, sl * 16384))
        A(st('buffer_store_dwordx4 v[%d:%d], v%d, %s, s%d offen' % (W0, W0 + 3, vPm, WS, sT0)))
        A('s_add_u32 s%d, s%d, %d' % (sT0, sT0, RDELTA))
        A('buffer_store_dwordx4 v[%d:%d], v%d, %s, s%d offen sc1' % (W0, W0 + 3, vPm, WS, sT0))
        A.label(Lq)
    A('s_waitcnt vmcnt(0)')
    Lm = A.uid('m0')
    A('s_cmp_lg_u32 s%d, 0' % sW); A('s_cbranch_scc1 %s' % Lm)
    A('s_load_dwordx2 s[%d:%d], s[0:1], %d' % (SRD_T, SRD_T + 1, A_MEM0))
    A('s_mov_b32 s%d, 16384' % (SRD_T + 2)); A('s_mov_b32 s%d, 0x00020000' % (SRD_T + 3))
    A('s_waitcnt lgkmcnt(0)')
    A('v_lshlrev_b32 v%d, 11, v%d' % (t2, vRr))
    A('v_bfe_u32 v%d, v%d, 1, 1' % (t3, vN)); A('v_lshl_add_u32 v%d, v%d, 4, v%d' % (t2, t3, t2))
    A('v_bfe_u32 v%d, v%d, 4, 1' % (t3, vLane)); A('v_lshl_add_u32 v%d, v%d, 5, v%d' % (t2, t3, t2))
    A('s_lshl_b32 s%d, s%d, 6' % (sT1, sC)); A('v_add_u32 v%d, s%d, v%d' % (t2, sT1, t2))
    A('buffer_load_dwordx4 v[%d:%d], v%d, s[%d:%d], 0 offen' % (W0, W0 + 3, t2, SRD_T, SRD_T + 3))
    A('s_waitcnt vmcnt(0)')
    for i in range(4): A('v_pk_min_u16 v%d, v%d, s%d' % (W0 + i, W0 + i, sFE))
    Lz0 = A.uid('mz')
    A('s_cmp_eq_u32 s%d, 0' % sX); A('s_cbranch_scc1 %s' % Lz0)
    for i in range(4): A('v_mov_b32 v%d, 0' % (W0 + i))
    A.label(Lz0)
    A(st('buffer_store_dwordx4 v[%d:%d], v%d, %s, s%d offen' % (W0, W0 + 3, vPm, WS, sMEMb)))
    A('s_add_u32 s%d, s%d, %d' % (sT2, sMEMb, RDELTA))
    A('buffer_store_dwordx4 v[%d:%d], v%d, %s, s%d offen sc1' % (W0, W0 + 3, vPm, WS, sT2))
    A('s_waitcnt vmcnt(0)')
    A.label(Lm)
    A('s_mov_b64 exec, 1')
    A('v_mov_b32 v%d, 1' % t2); A('v_mov_b32 v%d, 64' % t3)
    A('global_atomic_add v%d, v%d, s[%d:%d] sc1' % (t3, t2, S_DBG, S_DBG + 1))
    A('s_mov_b64 exec, -1')

    vDq, vTr, vDo, vWt0, vWt1 = W0, W0 + 1, W0 + 3, W0 + 4, W0 + 5
    A('v_lshrrev_b32 v%d, 3, v%d' % (t2, vLane)); A('v_lshlrev_b32 v%d, 13, v%d' % (vDq, t2))
    A('v_and_b32 v%d, 7, v%d' % (t3, vLane)); A('v_lshl_add_u32 v%d, v%d, 4, v%d' % (vDq, t3, vDq))
    A('v_bfe_u32 v%d, v%d, 2, 1' % (t2, vN)); A('v_and_b32 v%d, 1, v%d' % (t3, vG)); A('v_lshl_add_u32 v%d, v%d, 2, v%d' % (t2, t3, t2))
    A('v_lshrrev_b32 v%d, 3, v%d' % (t3, vN)); A('v_lshl_add_u32 v%d, v%d, 3, v%d' % (t2, t3, t2))
    A('v_lshrrev_b32 v%d, 1, v%d' % (t3, vG)); A('v_lshl_add_u32 v%d, v%d, 4, v%d' % (t2, t3, t2))
    A('v_lshlrev_b32 v%d, 7, v%d' % (t2, t2)); A('v_and_b32 v%d, 3, v%d' % (t3, vN)); A('v_lshl_add_u32 v%d, v%d, 3, v%d' % (t2, t3, t2))
    A('s_and_b32 s%d, s%d, 1' % (sT0, sW)); A('s_lshl_b32 s%d, s%d, 15' % (sT0, sT0))
    A('v_add_u32 v%d, s%d, v%d' % (vTr, sT0, t2))
    A('v_add_u32 v%d, 65536, v%d' % (vTr + 1, vTr))
    A('v_lshrrev_b32 v%d, 2, v%d' % (t2, vLane)); A('v_and_b32 v%d, 9, v%d' % (t3, t2))
    A('v_bfe_u32 v%d, v%d, 1, 1' % (t1, t2)); A('v_lshl_add_u32 v%d, v%d, 2, v%d' % (t3, t1, t3))
    A('v_bfe_u32 v%d, v%d, 2, 1' % (t1, t2)); A('v_lshl_add_u32 v%d, v%d, 1, v%d' % (t3, t1, t3))
    A('v_lshlrev_b32 v%d, 11, v%d' % (vDo, t3))
    A('v_bfe_u32 v%d, v%d, 1, 1' % (t1, vLane)); A('v_lshrrev_b32 v%d, 5, v%d' % (t0, vLane)); A('v_xor_b32 v%d, v%d, v%d' % (t1, t1, t0))
    A('v_lshl_add_u32 v%d, v%d, 5, v%d' % (vDo, t1, vDo)); A('v_and_b32 v%d, 1, v%d' % (t1, vLane)); A('v_lshl_add_u32 v%d, v%d, 4, v%d' % (vDo, t1, vDo))
    A('v_bfe_u32 v%d, v%d, 2, 1' % (t2, vN)); A('v_and_b32 v%d, 1, v%d' % (t3, vG)); A('v_lshl_add_u32 v%d, v%d, 1, v%d' % (t2, t3, t2))
    A('v_lshrrev_b32 v%d, 3, v%d' % (t3, vN)); A('v_lshl_add_u32 v%d, v%d, 3, v%d' % (t2, t3, t2))
    A('v_lshrrev_b32 v%d, 1, v%d' % (t1, vG)); A('v_lshl_add_u32 v%d, v%d, 4, v%d' % (t2, t1, t2))
    A('v_lshlrev_b32 v%d, 6, v%d' % (t2, t2)); A('v_lshl_add_u32 v%d, v%d, 5, v%d' % (t2, t3, t2))
    A('v_and_b32 v%d, 3, v%d' % (t1, vN)); A('v_lshl_add_u32 v%d, v%d, 3, v%d' % (t2, t1, t2))
    A('s_lshl_b32 s%d, s%d, 15' % (sT0, sW)); A('v_add_u32 v%d, s%d, v%d' % (vWt0, sT0, t2)); A('v_xor_b32 v%d, 32, v%d' % (vWt1, vWt0))
    wptr = [A_WQ, A_WK, A_WV]
    def issue_chunk(cidx):
        half = cidx & 1
        if cidx < 6:
            A('s_load_dwordx2 s[%d:%d], s[0:1], %d' % (SRD_T, SRD_T + 1, wptr[cidx >> 1]))
            A('s_mov_b32 s%d, %d' % (SRD_T + 2, 8 * MB)); A('s_mov_b32 s%d, 0x00020000' % (SRD_T + 3))
            A('s_lshl_b32 s%d, s%d, 8' % (sT0, sH)); A('s_lshl_b32 s%d, s%d, 7' % (sT1, sJ)); A('s_add_u32 s%d, s%d, s%d' % (sT0, sT0, sT1))
            A('s_lshl_b32 s%d, s%d, 20' % (sT1, sW)); A('s_add_u32 s%d, s%d, s%d' % (sT0, sT0, sT1))
            A('s_add_u32 s%d, s%d, %d' % (sT0, sT0, half * 512 * 8192))
            step_g, vd = 65536, vDq
        else:
            A('s_load_dwordx2 s[%d:%d], s[0:1], %d' % (SRD_T, SRD_T + 1, A_WO))
            A('s_mov_b32 s%d, %d' % (SRD_T + 2, 8 * MB)); A('s_mov_b32 s%d, 0x00020000' % (SRD_T + 3))
            A('s_lshl_b32 s%d, s%d, 22' % (sT0, sX)); A('s_lshl_b32 s%d, s%d, 6' % (sT1, sC)); A('s_add_u32 s%d, s%d, s%d' % (sT0, sT0, sT1))
            A('s_lshl_b32 s%d, s%d, 19' % (sT1, sW)); A('s_add_u32 s%d, s%d, s%d' % (sT0, sT0, sT1))
            A('s_add_u32 s%d, s%d, %d' % (sT0, sT0, half * 1024 * 2048))
            step_g, vd = 32768, vDo
        A('s_lshl_b32 s%d, s%d, 14' % (sT1, sW)); A('s_add_u32 s%d, s%d, %d' % (sT1, sT1, half * 65536))
        A('s_waitcnt lgkmcnt(0)')
        for i in range(16):
            A('s_add_u32 m0, s%d, %d' % (sT1, i * 1024))
            A('s_add_u32 s%d, s%d, %d' % (sT2, sT0, i * step_g))
            A('buffer_load_dwordx4 v%d, s[%d:%d], s%d offen lds' % (vd, SRD_T, SRD_T + 3, sT2))
    def read_chunk(cidx):
        half = cidx & 1; mu = cidx >> 1
        Le = A.uid('rce')
        A('s_lshr_b32 s%d, s%d, 1' % (sT0, sW)); A('s_cmp_lg_u32 s%d, %d' % (sT0, half)); A('s_cbranch_scc1 %s' % Le)
        for kl in range(4):
            for t in range(4):
                Rg = wreg(kl, mu, t)
                for sg in range(4):
                    off = kl * 8192 + t * 32 + (sg & 1) * 256 + (sg >> 1) * 4096
                    A('ds_read_b64_tr_b16 %s, v%d offset:%d' % (r(Rg + 2 * sg, 2), vTr + half, off))
                if t % 2 == 1: A('s_waitcnt lgkmcnt(0)')
        A.label(Le)
    issue_chunk(0)
    for cidx in range(6):
        issue_chunk(cidx + 1)
        A('s_waitcnt vmcnt(16)'); A('s_barrier')
        read_chunk(cidx)
        A('s_waitcnt lgkmcnt(0)'); A('s_barrier')
    issue_chunk(7)
    A('s_mov_b32 s%d, 0' % sS)
    if kvwait:
        Lzw = A.uid('zw')
        A('s_mov_b32 s%d, 0' % sSPIN); A('v_mov_b32 v%d, 68' % (vT + 1))
        A.label(Lzw)
        A('global_load_dword v%d, v%d, s[%d:%d] sc1' % (vT, vT + 1, S_DBG, S_DBG + 1))
        A('s_add_u32 s%d, s%d, 1' % (sSPIN, sSPIN)); A('s_cmp_gt_u32 s%d, %d' % (sSPIN, SPIN_LIMIT)); A('s_cbranch_scc1 chain_abort')
        A('s_waitcnt vmcnt(0)')
        A('v_readfirstlane_b32 s%d, v%d' % (sT0, vT)); A('s_nop 3'); A('s_cmp_lt_u32 s%d, 192' % sT0); A('s_cbranch_scc1 %s' % Lzw)
        kvwait(A, sS)
    A('s_waitcnt vmcnt(0)'); A('s_barrier')
    CV = W0 + 8
    for hf in range(2):
        for kl in range(4):
            kap = 4 * hf + kl
            for tt in range(2):
                Rg = CV + (kl * 2 + tt) * 8
                for sg in range(4):
                    off = kap * 4096 + (sg & 1) * 256 + (sg >> 1) * 2048
                    A('ds_read_b64_tr_b16 v[%d:%d], v%d offset:%d' % (Rg + 2 * sg, Rg + 2 * sg + 1, vWt1 if tt else vWt0, off))
            A('s_waitcnt lgkmcnt(0)')
        for kl in range(4):
            kap = 4 * hf + kl
            for tt in range(2):
                Rg = CV + (kl * 2 + tt) * 8; off = (kap * 2 + tt) * 2048
                A('ds_write_b128 v%d, v[%d:%d] offset:%d' % (vWoR, Rg, Rg + 3, off))
                A('ds_write_b128 v%d, v[%d:%d] offset:%d' % (vWoR, Rg + 4, Rg + 7, off + 1024))
        A('s_waitcnt lgkmcnt(0)')
    Lw = A.uid('pw')
    A('s_mov_b32 s%d, 0' % sSPIN); A('v_mov_b32 v%d, 64' % (vT + 1))
    A.label(Lw)
    A('global_load_dword v%d, v%d, s[%d:%d] sc1' % (vT, vT + 1, S_DBG, S_DBG + 1))
    A('s_waitcnt vmcnt(0)')
    A('v_readfirstlane_b32 s%d, v%d' % (sT0, vT))
    A('s_add_u32 s%d, s%d, 1' % (sSPIN, sSPIN)); A('s_cmp_gt_u32 s%d, %d' % (sSPIN, SPIN_LIMIT)); A('s_cbranch_scc1 chain_abort')
    A('s_cmp_lt_u32 s%d, 256' % sT0); A('s_cbranch_scc1 %s' % Lw)
    A('s_barrier')
    if timing or looptime:
        for i in range(16): A('s_mov_b32 s%d, 0' % (sACC + i))
    def stamp(i):
        if timing:
            A('s_memtime s[%d:%d]' % (sTM + 2, sTM + 3)); A('s_waitcnt lgkmcnt(0)')
            A('s_sub_u32 s%d, s%d, s%d' % (sTM + 4, sTM + 2, sTM)); A('s_add_u32 s%d, s%d, s%d' % (sACC + i, sACC + i, sTM + 4))
            A('s_mov_b32 s%d, s%d' % (sTM, sTM + 2))
    if timing:
        A('s_memtime s[%d:%d]' % (sTM, sTM + 1)); A('s_waitcnt lgkmcnt(0)')
    def rts(p):
        if rt:
            L = A.uid('rt')
            A('s_sub_u32 s77, s%d, 20' % sS); A('s_cmp_ge_u32 s77, 8'); A('s_cbranch_scc1 %s' % L)
            A('s_memrealtime s[78:79]')
            A('s_lshl_b32 s76, s%d, 5' % sX); A('s_add_u32 s76, s76, s%d' % sC); A('s_lshl_b32 s76, s76, 2'); A('s_add_u32 s76, s76, s%d' % sW)
            A('s_lshl_b32 s76, s76, 3'); A('s_add_u32 s76, s76, s77'); A('s_lshl_b32 s76, s76, 6'); A('s_add_u32 s76, s76, %d' % (TRC + 4 * MB + p * 4))
            A('s_waitcnt lgkmcnt(0)')
            A('v_mov_b32 v%d, s78' % (vRT)); A('buffer_store_dword v%d, v%d, %s, s76 offen' % (vRT, vFlg, WS))
            A.label(L)
    vRT = 36
    def check(regs):
        m = vT; rs = list(regs)
        if len(rs) == 1: A('v_cmp_eq_u32 vcc, -1, v%d' % rs[0]); return
        if len(rs) == 2: A('v_max_u32 v%d, v%d, v%d' % (m, rs[0], rs[1])); rs = []
        else: A('v_max3_u32 v%d, v%d, v%d, v%d' % (m, rs[0], rs[1], rs[2])); rs = rs[3:]
        while len(rs) >= 2:
            A('v_max3_u32 v%d, v%d, v%d, v%d' % (m, m, rs[0], rs[1])); rs = rs[2:]
        if rs: A('v_max_u32 v%d, v%d, v%d' % (m, m, rs[0]))
        A('v_cmp_eq_u32 vcc, -1, v%d' % m)
    def poll(loads, regs, site=None):
        L = A.uid('poll')
        A('s_mov_b32 s%d, 0' % sSPIN)
        A.label(L)
        for x in loads: A(x)
        A('s_add_u32 s%d, s%d, 1' % (sSPIN, sSPIN)); A('s_cmp_gt_u32 s%d, %d' % (sSPIN, SPIN_LIMIT)); A('s_cbranch_scc1 chain_abort')
        A('s_waitcnt vmcnt(0)')
        check(regs)
        A('s_cbranch_vccnz %s' % L)
        if timing and site is not None: A('s_add_u32 s%d, s%d, s%d' % (sACC + 10 + site, sACC + 10 + site, sSPIN))

    def poll_sel(loads, chks, site=None, first_issued=False, wait0=None):
        L = A.uid('ps'); Ld = A.uid('pd')
        A('s_mov_b32 s%d, 0' % sSPIN)
        if not first_issued:
            for x in loads: A(x)
        A('s_waitcnt vmcnt(%s)' % (wait0 if wait0 is not None else 0))
        check([c_ for ch in chks for c_ in ch])
        A('s_cbranch_vccz %s' % Ld)
        A.label(L)
        for x, ch in zip(loads, chks):
            Ls = A.uid('pk')
            if len(ch) == 1: A('v_cmp_eq_u32 vcc, -1, v%d' % ch[0])
            else:
                A('v_max_u32 v%d, v%d, v%d' % (vT, ch[0], ch[1])); A('v_cmp_eq_u32 vcc, -1, v%d' % vT)
            A('s_cbranch_vccz %s' % Ls)
            A(x)
            A.label(Ls)
        A('s_add_u32 s%d, s%d, 1' % (sSPIN, sSPIN)); A('s_cmp_gt_u32 s%d, %d' % (sSPIN, SPIN_LIMIT)); A('s_cbranch_scc1 chain_abort')
        A('s_waitcnt vmcnt(0)')
        check([c_ for ch in chks for c_ in ch])
        A('s_cbranch_vccnz %s' % L)
        A.label(Ld)
    calc(sS); calc_ob_memn(sS)
    vLD = W0
    vRQ = W0 + 16
    vAcc = W0 + 32
    vKR = 120
    vKX = 72; vVXF = 116
    def acc(mu, t): return vAcc + (mu * 4 + t) * 4
    def kpass(areg, fill=None):
        fill = list(fill or [])
        n = 0
        mus = (0, 1) if vdefer else (0, 1, 2)
        per = 2 if vdefer else 3
        for kl in range(4):
            for mu in mus:
                for t in range(4):
                    a_ = acc(mu, t)
                    A('v_smfmac_f32_16x16x64_bf16 v[%d:%d], v[%d:%d], %s, v%d' % (a_, a_ + 3, areg + 4 * kl, areg + 4 * kl + 3, r(wreg(kl, mu, t), 8), vIdx))
                    n += 1
                    if fill and n % per == 0:
                        for x in fill.pop(0): A(x)
        for g_ in fill:
            for x in g_: A(x)

    if looptime:
        A('s_memrealtime s[%d:%d]' % (sRT, sRT + 1)); A('s_waitcnt lgkmcnt(0)')
    A.label('chain_step')
    if steptrace:
        Lst = A.uid('st')
        A('s_cmp_lg_u32 s%d, 0' % sW); A('s_cbranch_scc1 %s' % Lst)
        A('s_memrealtime s[84:85]')
        A('s_lshl_b32 s%d, s%d, 5' % (sT0, sX)); A('s_add_u32 s%d, s%d, s%d' % (sT0, sT0, sC)); A('s_lshl_b32 s%d, s%d, 7' % (sT0, sT0))
        A('s_add_u32 s%d, s%d, s%d' % (sT0, sT0, sS)); A('s_lshl_b32 s%d, s%d, 2' % (sT0, sT0)); A('s_add_u32 s%d, s%d, %d' % (sT0, sT0, TRC_CH))
        A('s_waitcnt lgkmcnt(0)')
        A('v_mov_b32 v%d, s84' % vT); A('v_mov_b32 v%d, 0' % (vT + 1)); A('s_mov_b64 exec, 1')
        A('buffer_store_dword v%d, v%d, %s, s%d offen' % (vT, vT + 1, WS, sT0)); A('s_mov_b64 exec, -1')
        A.label(Lst)
    A.c('P1a')
    rts(0)
    for i in range(48): A('v_mov_b32 v%d, 0' % (vAcc + i))
    if d1: A('s_sleep %d' % d1)
    A('buffer_load_dwordx4 v[%d:%d], v%d, %s, s%d offen offset:2048 sc1' % (vKR, vKR + 3, vQkLd, WS, sQKv))
    if kvwait:
        Lkq = A.uid('kq')
        A('v_mov_b32 v126, 1'); A('v_mov_b32 v127, 1')
        A('s_and_b32 s%d, s%d, 3' % (sT0, sS)); A('s_cmp_lg_u32 s%d, 0' % sT0); A('s_cbranch_scc1 %s' % Lkq)
        kvwait(A, sS, issue_only=True)
        A.label(Lkq)
    loads = ['buffer_load_dwordx4 v[%d:%d], v%d, %s, s%d offen offset:%d sc1' % (vLD + 4 * k, vLD + 4 * k + 3, vL16, WS, sMEMc, 1024 * k) for k in range(4)]
    rloads = ['buffer_load_dwordx4 v[%d:%d], v%d, %s, s%d offen offset:%d sc1' % (vRQ + 4 * k, vRQ + 4 * k + 3, vL16, WS, sMRc, 1024 * k) for k in range(4)]
    if rearly:
        Lp1 = A.uid('p1e')
        for x in loads: A(x)
        A('s_sleep %d' % rearly)
        for x in rloads: A(x)
        if not sel: A('s_waitcnt vmcnt(4)')
        if sel:
            poll_sel(loads, [[vLD + 4 * k] for k in range(4)], first_issued=True, wait0=4)
        else:
            check([vLD + 4 * k for k in range(4)])
            A('s_cbranch_vccz %s' % Lp1)
            poll(loads, [vLD + 4 * k for k in range(4)], site=0)
            A.label(Lp1)
    else:
        poll(loads, [vLD + 4 * k for k in range(4)], site=0)
    if kvwait: kvwait(A, sS, check_only=True)
    stamp(0)
    rts(1)
    rloads = ['buffer_load_dwordx4 v[%d:%d], v%d, %s, s%d offen offset:%d sc1' % (vRQ + 4 * k, vRQ + 4 * k + 3, vL16, WS, sMRc, 1024 * k) for k in range(4)]
    P4r = 124
    common = [['buffer_store_dwordx4 v[%d:%d], v%d, %s, s%d offen %s' % (vKR, vKR + 3, vKmSt, WS, sKMs, '' if nokm else 'sc1')],
              ['buffer_store_dword v%d, v%d, %s, s%d offen %s' % (vVM, vVmSt, WS, sVMs, '' if nokm else 'sc1')],
              ['buffer_store_dword v%d, v%d, %s, s%d offen sc1' % (vOnes, vFlg, WS, sFLo)],
              ['v_mov_b32 v%d, -1' % (P4r + i) for i in range(2)], ['v_mov_b32 v%d, -1' % (P4r + i) for i in range(2, 4)],
              [st('buffer_store_dwordx4 v[%d:%d], v%d, %s, s%d offen' % (P4r, P4r + 3, vPq, WS, sQKp))],
              [st('buffer_store_dwordx4 v[%d:%d], v%d, %s, s%d offen' % (P4r, P4r + 3, vPo, WS, sOBp))]]
    Lw0 = A.uid('w0p'); Lj = A.uid('w0j')
    def with_r(groups):
        g = list(groups)
        if rearly:
            younger = sum(1 for grp in g for x in grp if x.startswith('buffer_'))
            return g, younger
        g.insert(min(rpos, len(g)), rloads)
        idx = min(rpos, len(groups))
        younger = sum(1 for grp in g[idx + 1:] for x in grp if x.startswith('buffer_'))
        return g, younger
    A('s_cmp_eq_u32 s%d, 0' % sW); A('s_cbranch_scc1 %s' % Lw0)
    fill = [['s_mov_b32 m0, s%d' % sVXb, 'buffer_load_dwordx4 v%d, %s, s%d offen sc1 lds' % (vKxD4[0], WS, sDMo)]]
    fill[0].insert(1, 's_nop 0')
    for i in range(1, 4): fill.append(['buffer_load_dwordx4 v%d, %s, s%d offen offset:%d sc1 lds' % (vKxD4[i], WS, sDMo, 1024 * i)])
    if touch:
        fill.append(['s_add_u32 s%d, s%d, %d' % (sT1, sDMo, 1 << 18), 'buffer_load_dword v%d, v%d, %s, s%d offen sc1' % (vT + 1, vTch, WS, sT1)])
    g, y = with_r(fill + common)
    kpass(vLD, g)
    A('s_waitcnt vmcnt(%d)' % y)
    A('s_branch %s' % Lj)
    A.label(Lw0)
    g, y0 = with_r(common + [[st('buffer_store_dwordx4 v[%d:%d], v%d, %s, s%d offen' % (P4r, P4r + 3, vPm, WS, sMEMp))],
                             ['buffer_store_dwordx4 v[%d:%d], v%d, %s, s%d offen sc1' % (P4r, P4r + 3, vPm, WS, sMRp)]])
    kpass(vLD, g)
    A('s_waitcnt vmcnt(%d)' % y0)
    A.label(Lj)
    stamp(1)
    A.c('P1b')
    rts(2)
    Lrk = A.uid('rk')
    check([vRQ + 4 * k for k in range(4)])
    A('s_cbranch_vccz %s' % Lrk)
    poll(rloads, [vRQ + 4 * k for k in range(4)], site=3)
    A.label(Lrk)
    def smf1(kl, mu, t, areg):
        a_ = acc(mu, t)
        return 'v_smfmac_f32_16x16x64_bf16 v[%d:%d], v[%d:%d], %s, v%d' % (a_, a_ + 3, areg + 4 * kl, areg + 4 * kl + 3, r(wreg(kl, mu, t), 8), vIdx)
    def pkadd(d, a_, b_): return 'v_pk_add_f32 v[%d:%d], v[%d:%d], v[%d:%d]' % (d, d + 1, a_, a_ + 1, b_, b_ + 1)
    def comb(ra, rb_):
        return [pkadd(ra, ra, ra + 2), pkadd(ra + 2, rb_, rb_ + 2)]
    own = 52; X1 = 40
    Lvar = [A.uid('pv%d_' % w_) for w_ in range(4)]; Lcom = A.uid('pvc')
    for w_ in range(1, 4):
        A('s_cmp_eq_u32 s%d, %d' % (sW, w_)); A('s_cbranch_scc1 %s' % Lvar[w_])
    for w_ in range(4):
        A.label(Lvar[w_])
        order = [(w_ + 1) & 3, (w_ + 2) & 3, (w_ + 3) & 3, w_]
        seq = []
        for t in order: seq += [smf1(kl, mu, t, vRQ) for kl in range(4) for mu in (0, 1)]
        fl = {}
        for i_, t in enumerate(order[:3]):
            st_ = 8 * i_ + 15
            fl.setdefault(st_, []).extend(comb(acc(0, t), acc(1, t)))
            fl.setdefault(min(st_ + 1, 31), []).append('ds_write_b128 v%d, v[%d:%d]' % (vXq[t], acc(0, t), acc(0, t) + 3))
        for i, m_ in enumerate(seq):
            A(m_)
            for x in fl.pop(i, []): A(x)
        A('s_waitcnt vmcnt(5) lgkmcnt(0)')
        A('s_barrier')
        for i in range(3): A('ds_read_b128 v[%d:%d], v%d offset:%d' % (X1 + 4 * i, X1 + 4 * i + 3, vXqR, 1024 * i))
        A.nop(3)
        for x in comb(acc(0, w_), acc(1, w_)): A(x)
        A('s_waitcnt lgkmcnt(0)')
        A(pkadd(own, acc(0, w_), X1)); A(pkadd(own + 2, acc(0, w_) + 2, X1 + 2))
        if w_ < 3: A('s_branch %s' % Lcom)
    A.label(Lcom)
    stamp(2)
    rts(3)
    A(pkadd(X1 + 4, X1 + 4, X1 + 8)); A(pkadd(X1 + 6, X1 + 6, X1 + 10))
    A(pkadd(own, own, X1 + 4)); A(pkadd(own + 2, own + 2, X1 + 6))
    kk_ = X1
    A('v_cvt_pk_bf16_f32 v%d, v%d, v%d' % (kk_, own, own + 1))
    A('v_cvt_pk_bf16_f32 v%d, v%d, v%d' % (kk_ + 1, own + 2, own + 3))
    A('v_pk_min_u16 v%d, v%d, s%d' % (kk_, kk_, sFE)); A('v_pk_min_u16 v%d, v%d, s%d' % (kk_ + 1, kk_ + 1, sFE))
    A(st('buffer_store_short v%d, v%d, %s, s%d offen' % (kk_, vQkSt, WS, sQKc)))
    A(st('buffer_store_short_d16_hi v%d, v%d, %s, s%d offen offset:16' % (kk_, vQkSt, WS, sQKc)))
    A(st('buffer_store_short v%d, v%d, %s, s%d offen offset:2048' % (kk_ + 1, vQkSt, WS, sQKc)))
    A(st('buffer_store_short_d16_hi v%d, v%d, %s, s%d offen offset:2064' % (kk_ + 1, vQkSt, WS, sQKc)))
    A('s_lshl_b32 s%d, s%d, 10' % (sT1, sW))
    A('v_add_u32 v%d, s%d, v%d' % (vT + 2, sT1, vL16))
    A('v_add_u32 v%d, %d, v%d' % (vT + 3, LDS_XB, vT + 2))
    rts(4)
    for tt in range(2):
        for k in range(4):
            Rg = vKX + (tt * 4 + k) * 4
            A('ds_read_b128 v[%d:%d], v%d offset:%d' % (Rg, Rg + 3, vKx0 + k, tt * 4096))
    A.c('pass 2b: V tiles while the q/k exchange is in flight')
    PQ = 120
    qload = 'buffer_load_dwordx4 v[%d:%d], v%d, %s, s%d offen sc1' % (PQ, PQ + 3, vT + 2, WS, sQKc)
    if vdefer:
        for kl in range(4):
            for t in range(4): A(smf1(kl, 2, t, vLD))
        A(qload)
    for kl in range(4):
        for t in range(4): A(smf1(kl, 2, t, vRQ))
    if not vdefer: A(qload)
    A.nop(8)
    for x in comb(acc(2, 0), acc(2, 1)): A(x)
    A('ds_write_b128 v%d, v[%d:%d]' % (vXvW, acc(2, 0), acc(2, 0) + 3))
    for x in comb(acc(2, 2), acc(2, 3)): A(x)
    A('ds_write_b128 v%d, v[%d:%d] offset:1024' % (vXvW, acc(2, 2), acc(2, 2) + 3))
    A('ds_read_b64_tr_b16 v[%d:%d], v%d' % (vVXF, vVXF + 1, vVx))
    A('ds_read_b64_tr_b16 v[%d:%d], v%d offset:2048' % (vVXF + 2, vVXF + 3, vVx))
    A.c('P4')
    Lq = A.uid('q4')
    A('s_waitcnt vmcnt(0)')
    check([PQ, PQ + 2])
    A('s_cbranch_vccz %s' % Lq)
    poll([qload], [PQ, PQ + 2], site=1)
    A.label(Lq)
    rts(5)
    A('ds_write_b128 v%d, v[%d:%d]' % (vT + 3, PQ, PQ + 3))
    A('s_waitcnt lgkmcnt(0)')
    A('s_barrier')
    vQ, vKM = W0, W0 + 16
    for k in range(4):
        A('ds_read_b128 v[%d:%d], v%d offset:%d' % (vQ + 4 * k, vQ + 4 * k + 3, vQkL, 512 * k))
        A('ds_read_b128 v[%d:%d], v%d offset:%d' % (vKM + 4 * k, vKM + 4 * k + 3, vBias, 512 * k))
    stamp(3)
    T0, T1, T2 = 104, 108, 112
    for k in range(4):
        A('s_waitcnt lgkmcnt(%d)' % (6 - 2 * k))
        c1 = '0' if k == 0 else 'v[%d:%d]' % (T1, T1 + 3); c2 = '0' if k == 0 else 'v[%d:%d]' % (T2, T2 + 3); c0 = '0' if k == 0 else 'v[%d:%d]' % (T0, T0 + 3)
        A('v_mfma_f32_16x16x32_bf16 v[%d:%d], v[%d:%d], v[%d:%d], %s' % (T1, T1 + 3, vKX + 4 * k, vKX + 4 * k + 3, vQ + 4 * k, vQ + 4 * k + 3, c1))
        A('v_mfma_f32_16x16x32_bf16 v[%d:%d], v[%d:%d], v[%d:%d], %s' % (T2, T2 + 3, vKX + 16 + 4 * k, vKX + 16 + 4 * k + 3, vQ + 4 * k, vQ + 4 * k + 3, c2))
        A('v_mfma_f32_16x16x32_bf16 v[%d:%d], v[%d:%d], v[%d:%d], %s' % (T0, T0 + 3, vKM + 4 * k, vKM + 4 * k + 3, vQ + 4 * k, vQ + 4 * k + 3, c0))
    Vp = 72
    for i in range(4): A('ds_read_b64 v[%d:%d], v%d offset:%d' % (Vp + 2 * i, Vp + 2 * i + 1, vXvR, 2048 * i))
    A.nop(3)
    A.c('P5')
    m, t = vT, vT + 1
    A('v_max3_f32 v%d, v%d, v%d, v%d' % (m, T1, T1 + 1, T1 + 2)); A('v_max3_f32 v%d, v%d, v%d, v%d' % (t, T1 + 3, T2, T2 + 1))
    A('v_max3_f32 v%d, v%d, v%d, v%d' % (m, m, T2 + 2, T2 + 3)); A('v_max3_f32 v%d, v%d, v%d, v%d' % (t, t, T0, T0 + 1))
    A('v_max_f32 v%d, v%d, v%d' % (m, m, t))
    for sw in ('v_permlane32_swap_b32', 'v_permlane16_swap_b32'):
        A('v_mov_b32 v%d, v%d' % (t, m)); A('s_nop 1'); A('%s v%d, v%d' % (sw, m, t)); A('s_nop 0'); A('v_max_f32 v%d, v%d, v%d' % (m, m, t))
    A('v_mul_f32 v%d, s%d, v%d' % (m, sC_, m))
    A('s_waitcnt lgkmcnt(0)')
    A(pkadd(Vp, Vp, Vp + 2)); A(pkadd(Vp + 4, Vp + 4, Vp + 6)); A(pkadd(Vp, Vp, Vp + 4))
    A('v_cvt_pk_bf16_f32 v%d, v%d, v%d' % (vVM, Vp, Vp + 1))
    if early_end:
        A('s_cmp_eq_u32 s%d, %d' % (sS, nsteps - 1)); A('s_cbranch_scc1 chain_last')
    A('v_mov_b32 v%d, v%d' % (t, m))
    for x in list(range(T1, T1 + 8, 2)) + [T0]:
        A('v_pk_fma_f32 v[%d:%d], v[%d:%d], s[56:57], v[%d:%d] neg_lo:[0,0,1] neg_hi:[0,0,1]' % (x, x + 1, x, x + 1, m, m + 1))
    for x in list(range(T1, T1 + 8)) + [T0, T0 + 1]: A('v_exp_f32 v%d, v%d' % (x, x))
    vPx, vPm2 = 56, 60; vO, vO2, vSm, vSm2 = 64, 68, 120, 88
    A('v_cvt_pk_bf16_f32 v%d, v%d, v%d' % (vPx, T1, T1 + 1)); A('v_cvt_pk_bf16_f32 v%d, v%d, v%d' % (vPx + 1, T1 + 2, T1 + 3))
    A('v_cvt_pk_bf16_f32 v%d, v%d, v%d' % (vPx + 2, T2, T2 + 1)); A('v_cvt_pk_bf16_f32 v%d, v%d, v%d' % (vPx + 3, T2 + 2, T2 + 3))
    A('v_cvt_pk_bf16_f32 v%d, v%d, v%d' % (vPm2, T0, T0 + 1)); A('v_mov_b32 v%d, 0' % (vPm2 + 1))
    A('s_nop 0')
    A('v_mfma_f32_16x16x32_bf16 v[%d:%d], v[%d:%d], v[%d:%d], 0' % (vO, vO + 3, vVXF, vVXF + 3, vPx, vPx + 3))
    A('v_mfma_f32_16x16x16_bf16 v[%d:%d], v[%d:%d], v[%d:%d], 0' % (vO2, vO2 + 3, vVM, vVM + 1, vPm2, vPm2 + 1))
    A('v_mfma_f32_16x16x16_bf16 v[%d:%d], v[%d:%d], v[%d:%d], 0' % (vSm, vSm + 3, vOnes, vOnes1, vPx, vPx + 1))
    A('v_mfma_f32_16x16x16_bf16 v[%d:%d], v[%d:%d], v[%d:%d], v[%d:%d]' % (vSm, vSm + 3, vOnes, vOnes1, vPx + 2, vPx + 3, vSm, vSm + 3))
    A('v_mfma_f32_16x16x16_bf16 v[%d:%d], v[%d:%d], v[%d:%d], v[%d:%d]' % (vSm, vSm + 3, vOnes, vOnes1, vPm2, vPm2 + 1, vSm, vSm + 3))
    ops = [(kap, tt) for kap in range(8) for tt in range(2)]
    breg = [96, 104, 112, 120, 40, 48]
    def wo_read(n, Rg):
        off = n * 2048
        A('ds_read_b128 v[%d:%d], v%d offset:%d' % (Rg, Rg + 3, vWoR, off))
        A('ds_read_b128 v[%d:%d], v%d offset:%d' % (Rg + 4, Rg + 7, vWoR, off + 1024))
    for n in range(2): wo_read(n, breg[n])
    A.nop(4)
    A('v_rcp_f32 v%d, v%d' % (m, vSm))
    A(pkadd(vO, vO, vO2)); A(pkadd(vO + 2, vO + 2, vO2 + 2))
    for i in range(4): A('v_mul_f32 v%d, v%d, v%d' % (vO + i, vO + i, m))
    A('v_cvt_pk_bf16_f32 v%d, v%d, v%d' % (vO, vO, vO + 1)); A('v_cvt_pk_bf16_f32 v%d, v%d, v%d' % (vO + 1, vO + 2, vO + 3))
    A('v_pk_min_u16 v%d, v%d, s%d' % (vO, vO, sFE)); A('v_pk_min_u16 v%d, v%d, s%d' % (vO + 1, vO + 1, sFE))
    A(st('buffer_store_dwordx2 v[%d:%d], v%d, %s, s%d offen' % (vO, vO + 1, vOSt, WS, sOBc)))
    rts(6)
    for n in range(2, 6): wo_read(n, breg[n])
    stamp(4)
    A.c('P6')
    vOA = 60; acc0 = 56; acc1 = 92
    for i in range(4):
        A('v_mov_b32 v%d, 0' % (acc0 + i)); A('v_mov_b32 v%d, 0' % (acc1 + i))
    A('s_add_u32 s%d, s%d, 1' % (sT3, sS))
    calc(sT3)
    if d6: A('s_sleep %d' % d6)
    A('s_add_u32 s%d, s%d, 4096' % (sT2, sOBc2))
    loads = ['buffer_load_dwordx4 v[%d:%d], v%d, %s, s%d offen offset:%d sc1' % (vOA + 4 * k, vOA + 4 * k + 3, vL16, WS, sOBc2 if k < 4 else sT2, 1024 * (k & 3)) for k in range(8)]
    chk = []
    for k in range(8): chk += [vOA + 4 * k, vOA + 4 * k + 2]
    if sel: poll_sel(loads, [[vOA + 4 * k, vOA + 4 * k + 2] for k in range(8)])
    else: poll(loads, chk, site=2)
    rts(7)
    stamp(5)
    A('s_waitcnt lgkmcnt(0)')
    nb = len(breg); issued = nb
    for n, (kap, tt) in enumerate(ops):
        ac = acc1 if tt else acc0
        Rg = breg[n % nb]
        if n >= nb: A('s_waitcnt lgkmcnt(%d)' % min((min(issued, 16) - (n + 1)) * 2, 15))
        A('v_smfmac_f32_16x16x64_bf16 v[%d:%d], v[%d:%d], v[%d:%d], v%d' % (ac, ac + 3, vOA + 4 * kap, vOA + 4 * kap + 3, Rg, Rg + 7, vIdx))
        if issued < 16: wo_read(issued, Rg); issued += 1
    A.nop(9)
    A(pkadd(acc0, acc0, acc0 + 2)); A(pkadd(acc1, acc1, acc1 + 2))
    A('ds_write_b32 v%d, v%d' % (vRedW, acc0)); A('ds_write_b32 v%d, v%d offset:128' % (vRedW, acc0 + 1))
    A('ds_write_b32 v%d, v%d offset:64' % (vRedW, acc1)); A('ds_write_b32 v%d, v%d offset:192' % (vRedW, acc1 + 1))
    A('s_waitcnt lgkmcnt(0)')
    A('s_barrier')
    rts(8)
    Lw1b = A.uid('rw1')
    A('s_cmp_lg_u32 s%d, 0' % sW); A('s_cbranch_scc1 %s' % Lw1b)
    S = W0
    for k in range(4):
        A('ds_read_b128 v[%d:%d], v%d offset:%d' % (S + 8 * k, S + 8 * k + 3, vRedR, 1024 * k))
        A('ds_read_b128 v[%d:%d], v%d offset:%d' % (S + 8 * k + 4, S + 8 * k + 7, vRedR, 1024 * k + 16))
    for k in range(1, 4):
        A('s_waitcnt lgkmcnt(%d)' % (6 - 2 * k))
        for i in range(0, 8, 2): A(pkadd(S + i, S + i, S + 8 * k + i))
    for i in range(4): A('v_cvt_pk_bf16_f32 v%d, v%d, v%d' % (S + 8 + i, S + 2 * i, S + 2 * i + 1))
    for i in range(4): A('v_pk_min_u16 v%d, v%d, s%d' % (S + 8 + i, S + 8 + i, sFE))
    A('s_add_u32 s%d, s%d, %d' % (sT2, sMEMn, RDELTA))
    A(st('buffer_store_dwordx4 v[%d:%d], v%d, %s, s%d offen' % (S + 8, S + 11, vPm, WS, sMEMn)))
    A('buffer_store_dwordx4 v[%d:%d], v%d, %s, s%d offen sc1' % (S + 8, S + 11, vPm, WS, sT2))
    rts(9)
    A.label(Lw1b)
    A('s_add_u32 s%d, s%d, 1' % (sT3, sS))
    calc_ob_memn(sT3)
    A('s_barrier')
    stamp(6)
    A('s_add_u32 s%d, s%d, 1' % (sS, sS)); A('s_cmp_lt_u32 s%d, %d' % (sS, nsteps)); A('s_cbranch_scc1 chain_step')
    if looptime:
        A('s_memrealtime s[%d:%d]' % (sRT + 2, sRT + 3)); A('s_waitcnt lgkmcnt(0)')
        A('s_sub_u32 s%d, s%d, s%d' % (sACC + 8, sRT + 2, sRT))
    if early_end:
        A('s_branch chain_fin')
        A.label('chain_last')
        if looptime:
            A('s_memrealtime s[%d:%d]' % (sRT + 2, sRT + 3)); A('s_waitcnt lgkmcnt(0)'); A('s_sub_u32 s%d, s%d, s%d' % (sACC + 8, sRT + 2, sRT))
        A('s_mov_b32 s%d, %d' % (sT3, nsteps))
        calc(sT3)
        A.label('chain_fin')
    A('buffer_load_dwordx4 v[%d:%d], v%d, %s, s%d offen offset:2048 sc1' % (vKR, vKR + 3, vQkLd, WS, sQKv))
    A('buffer_store_dword v%d, v%d, %s, s%d offen sc1' % (vOnes, vFlg, WS, sFLo))
    A('buffer_store_dword v%d, v%d, %s, s%d offen sc1' % (vVM, vVmSt, WS, sVMs))
    A('s_waitcnt vmcnt(2)')
    A('buffer_store_dwordx4 v[%d:%d], v%d, %s, s%d offen sc1' % (vKR, vKR + 3, vKmSt, WS, sKMs))
    A('s_waitcnt vmcnt(0)')
    A('s_add_u32 s%d, s%d, 1024' % (sT1, sFLo))
    A('buffer_store_dword v%d, v%d, %s, s%d offen sc1' % (vOnes, vFlg, WS, sT1))
    if timing or looptime:
        A('s_lshl_b32 s%d, s%d, 5' % (sT0, sX)); A('s_add_u32 s%d, s%d, s%d' % (sT0, sT0, sC)); A('s_lshl_b32 s%d, s%d, 2' % (sT0, sT0))
        A('s_add_u32 s%d, s%d, s%d' % (sT0, sT0, sW)); A('s_lshl_b32 s%d, s%d, 6' % (sT0, sT0)); A('s_add_u32 s%d, s%d, %d' % (sT0, sT0, CNT + 65536))
        for i in range(16): A('v_mov_b32 v%d, s%d' % (W0 + i, sACC + i))
        A('v_mov_b32 v%d, 0' % vT); A('s_mov_b64 exec, 1')
        for q in range(4): A('buffer_store_dwordx4 v[%d:%d], v%d, %s, s%d offen offset:%d' % (W0 + 4 * q, W0 + 4 * q + 3, vT, WS, sT0, 16 * q))
    A('s_waitcnt vmcnt(0)')
    if finish:
        A('s_mov_b64 exec, -1')
        A('s_branch %s' % finish)
    else:
        A('s_endpgm')
    A.label('chain_abort')
    A('s_mov_b64 exec, 1')
    A('v_mov_b32 v%d, 1' % vT); A('v_mov_b32 v%d, 128' % (vT + 1))
    A('global_atomic_add v%d, v%d, s[%d:%d] sc1' % (vT + 1, vT, S_DBG, S_DBG + 1))
    A('s_waitcnt vmcnt(0)')
    A('s_endpgm')
```

```python
import sys
from asmlib import *
from layout import *
import chain9 as chain
from gemm2 import *
from gemm3 import Gemm
from gemmbs import GemmBS
from units3 import *

BM = 128
SBM = 64
NBIG = 31
NB = NBLK
KNAME = 'sequential_preLN__memory_aug_recurrent_mem_tr__mixer_s_mlp__prompt_kernel'
SPIN = 1 << 22
sXW, sTK, sIt, sFlag, sItem, sQi, sTab, sDep, sCnt, sSp = 80, 81, 82, 83, 84, 85, 86, 88, 89, 90
sMsk = 92
sRB, sNT, sKS = 94, 95, 96
sK0, sNKi = 78, 79
sRow0, sBig = 70, 71
sShI, sShR = 75, 76
sS0, sS1, sS2 = 58, 59, 91
sChunk = 97
sD0, sD1, sD2 = 72, 73, 74
sC3 = 77
T_ATT, T_O, T_R1, T_W1, T_W2, T_R2, T_W3, T_W4, T_R3, T_ROWLOOP = range(1, 11)
O_SPLIT = [(0, 11), (11, 11), (22, 11), (33, 11), (44, 10), (54, 10)]
W4_SPLIT = [(0, 10), (10, 10), (20, 9), (29, 9), (38, 9), (47, 9)]
def word(t, a, b=0, c=0, k0=0, nk=0, end=0):
    assert a < 64 and b < 32 and c < 8 and k0 < 64 and nk < 32
    return (t << 28) | (a << 22) | (b << 17) | (c << 14) | (k0 << 8) | (nk << 3) | end

def build_table():
    T = {(x, t): [0, 0, 0] for x in range(8) for t in range(32)}
    slot = [0] * 6
    def take(x):
        w = (x, slot[x]); slot[x] += 1; assert slot[x] <= 32; return w
    for x in range(6):
        for nt in range(8): T[take(x)] = [word(T_O, 0, nt, x, *O_SPLIT[x]), 0, 0]
    for nt in range(8): T[take(0)] = [word(T_W1, 0, nt), 0, 0]
    for nt in range(8): T[take(1)] = [word(T_W2, 0, nt), 0, 0]
    for nt in range(28): T[take(2 + nt // 7)] = [word(T_W3, 0, nt), 0, 0]
    for x in range(6):
        for nt in range(8): T[take(x)] = [word(T_W4, 0, nt, x, *W4_SPLIT[x]), 0, 0]
    free = [(x, t) for x in range(6) for t in range(slot[x], 32)]
    assert len(free) >= 48, len(free)
    LB = NBIG
    w4 = lambda i: word(T_W4, LB, i % 8, i // 8, *W4_SPLIT[i // 8], end=1)
    for i in range(16): T[free[i]] = [word(T_ATT, i >> 3, i & 7, 0, 63), w4(36 + i) if i < 12 else 0, 0]
    for c in range(32): T[free[16 + c]] = [word(T_ROWLOOP, 0, c), 0, 0]
    for m in range(64):
        w = []
        if m < 48: w.append(word(T_O, LB, m % 8, m // 8, *O_SPLIT[m // 8], end=1))
        if m < 28: w.append(word(T_W3, LB, m, end=1))
        elif m < 48: w.append(w4(m - 28))
        elif m < 56: w += [word(T_W1, LB, m - 48, end=1), w4(20 + m - 48)]
        else: w += [word(T_ATT, 63, m - 56, 0, 0), word(T_W2, LB, m - 56, end=1), w4(28 + m - 56)]
        T[6 + m // 32, m % 32] = (w + [0, 0, 0])[:3]
    return T

TRACE = [0]
def mk_srd(A, n, karg, size):
    A('s_load_dwordx2 s[%d:%d], s[0:1], %d' % (n, n + 1, karg))
    A('s_mov_b32 s%d, %d' % (n + 2, size))
    A('s_mov_b32 s%d, 0x00020000' % (n + 3))
    A('s_waitcnt lgkmcnt(0)')
def ws_srd(A, n):
    for i in range(4): A('s_mov_b32 s%d, s%d' % (n + i, 8 + i))
def gemm_params(A, lda, ldb, ldc, nk, mode, shift=0):
    A('s_mov_b32 s%d, %d' % (sLda, lda)); A('s_mov_b32 s%d, %d' % (sLdb, ldb)); A('s_mov_b32 s%d, %d' % (sLdc, ldc))
    A('s_mov_b32 s%d, %d' % (sNk, nk)); A('s_mov_b32 s%d, %d' % (sShift, lda if shift else 0)); A('s_mov_b32 s%d, %d' % (sMode, mode))

def wave_id(A, dst):
    A('v_lshrrev_b32 v250, 6, v0'); A('s_nop 0'); A('v_readfirstlane_b32 s%d, v250' % dst); A('s_nop 3')

def wait_flags(A):
    Ld = A.uid('wf'); Ll = A.uid('wl')
    wave_id(A, sSp)
    A('s_cmp_lg_u32 s%d, 0' % sSp); A('s_cbranch_scc1 %s' % Ld)
    A('v_cmp_gt_u32 vcc, s%d, v0' % sCnt)
    A('s_mov_b64 s[%d:%d], vcc' % (sMsk, sMsk + 1))
    A('v_lshlrev_b32 v250, 2, v0')
    A('s_mov_b32 s%d, 0' % sSp)
    A('s_mov_b64 exec, s[%d:%d]' % (sMsk, sMsk + 1))
    A.label(Ll)
    A('buffer_load_dword v251, v250, s[8:11], s%d offen sc1' % sDep)
    A('s_add_u32 s%d, s%d, 1' % (sSp, sSp)); A('s_cmp_gt_u32 s%d, %d' % (sSp, SPIN)); A('s_cbranch_scc1 worker_abort')
    A('s_waitcnt vmcnt(0)')
    A('v_cmp_eq_u32 vcc, 0, v251')
    A('s_cbranch_vccz %s_ok' % Ll)
    A('s_sleep 4'); A('s_branch %s' % Ll)
    A.label(Ll + '_ok')
    A('s_mov_b64 exec, -1')
    A.label(Ld)
    A('s_barrier')
    if TRACE[0]: A('s_memrealtime s[100:101]')

def signal_flag(A):
    A('s_waitcnt vmcnt(0)')
    A('s_barrier')
    L = A.uid('sf')
    A('v_cmp_eq_u32 vcc, 0, v0')
    A('s_and_saveexec_b64 s[%d:%d], vcc' % (sMsk, sMsk + 1))
    A('s_cbranch_execz %s' % L)
    A('v_mov_b32 v250, 0'); A('v_mov_b32 v251, 1')
    A('buffer_store_dword v251, v250, s[8:11], s%d offen sc1' % sFlag)
    A.label(L)
    A('s_mov_b64 exec, s[%d:%d]' % (sMsk, sMsk + 1))

def kvwait(A, seg_sreg, issue_only=False, check_only=False):
    c = chain
    def addr():
        A('s_lshr_b32 s%d, s%d, 2' % (c.sT0, seg_sreg)); A('s_mul_i32 s%d, s%d, 384' % (c.sT0, c.sT0))
        A('s_lshl_b32 s%d, s%d, 2' % (c.sT1, c.sH)); A('s_add_u32 s%d, s%d, s%d' % (c.sT0, c.sT0, c.sT1))
        A('s_add_u32 s%d, s%d, %d' % (c.sT0, c.sT0, FQKV + 128)); A('v_mov_b32 v125, 0')
    def loads():
        A('buffer_load_dword v126, v125, s[8:11], s%d offen sc1' % c.sT0)
        A('buffer_load_dword v127, v125, s[8:11], s%d offen offset:128 sc1' % c.sT0)
    if issue_only:
        addr(); loads(); return
    L = A.uid('kv'); Lok = A.uid('kvok')
    if check_only:
        A('v_and_b32 v126, v126, v127'); A('v_cmp_eq_u32 vcc, 0, v126'); A('s_cbranch_vccz %s' % Lok)
    addr()
    A('s_mov_b32 s%d, 0' % c.sSPIN)
    A.label(L)
    loads()
    A('s_add_u32 s%d, s%d, 1' % (c.sSPIN, c.sSPIN)); A('s_cmp_gt_u32 s%d, %d' % (c.sSPIN, SPIN)); A('s_cbranch_scc1 chain_abort')
    A('s_waitcnt vmcnt(0)')
    A('v_and_b32 v126, v126, v127'); A('v_cmp_eq_u32 vcc, 0, v126'); A('s_cbranch_vccnz %s' % L)
    A.label(Lok)

def gen(intra='', chain_kw=None, trace=0, coop=1, wake=56, wpre=0):
    wpre = int(wpre); coop = int(coop); trace = int(trace); TRACE[0] = trace; wake = int(wake)
    A = Asm()
    G = GemmBS(A, 128, stamps=bool(trace))
    GS = GemmBS(A, SBM, stamps=bool(trace))
    A.raw('; @launch grid=(256,1,1) block=(256,1,1) lds=163840')
    A.raw('.amdgcn_target "amdgcn-amd-amdhsa--gfx950"')
    A.raw('.text')
    kernel_header(A, KNAME)
    A('s_cmp_ge_u32 s2, 256'); A('s_cbranch_scc1 L_exit_main')
    A('s_load_dwordx2 s[4:5], s[0:1], %d' % D_WS)
    A('s_load_dwordx2 s[6:7], s[0:1], %d' % D_DBG)
    A('s_getreg_b32 s16, hwreg(HW_REG_XCC_ID)')
    A('s_and_b32 s16, s16, 15')
    A('s_waitcnt lgkmcnt(0)')
    A('s_mov_b32 s8, s4'); A('s_mov_b32 s9, s5'); A('s_mov_b32 s10, %d' % WS_SIZE); A('s_mov_b32 s11, 0x00020000')
    A('v_cmp_eq_u32 vcc, 0, v0'); A('s_and_saveexec_b64 s[20:21], vcc'); A('s_cbranch_execz L_nt')
    A('s_lshl_b32 s17, s16, 2'); A('v_mov_b32 v1, s17'); A('v_mov_b32 v2, 1')
    A('global_atomic_add v3, v1, v2, s[6:7] sc0 sc1'); A('s_waitcnt vmcnt(0)')
    A('v_mov_b32 v1, 0'); A('ds_write_b32 v1, v3'); A('s_waitcnt lgkmcnt(0)')
    A.label('L_nt')
    A('s_mov_b64 exec, s[20:21]'); A('s_barrier')
    A('v_mov_b32 v1, 0'); A('ds_read_b32 v3, v1'); A('s_waitcnt lgkmcnt(0)'); A('v_readfirstlane_b32 s17, v3'); A('s_barrier')
    A('s_cmp_ge_u32 s17, 32'); A('s_cbranch_scc1 L_exit_main')
    A('s_cmp_ge_u32 s16, 2'); A('s_cbranch_scc1 worker')
    chain.gen_chain(A, intra=intra, kvwait=kvwait, finish='chain_to_worker', **(chain_kw or {}))
    A.label('chain_to_worker')
    A('v_mbcnt_lo_u32_b32 v0, -1, 0'); A('v_mbcnt_hi_u32_b32 v0, -1, v0')
    A('s_lshl_b32 s%d, s%d, 6' % (44, chain.sW)); A('v_add_u32 v0, s44, v0')
    A('s_add_u32 s%d, s%d, 6' % (sXW, chain.sX)); A('s_mov_b32 s%d, s%d' % (sTK, chain.sC))
    A('s_mov_b32 s%d, 8' % sIt)
    for n in (SRD_A, SRD_B, SRD_C, SRD_R): ws_srd(A, n)
    A('s_mov_b32 s%d, 0' % sChunk)
    A('s_barrier')
    A('s_branch streams')
    A.label('worker')
    A('s_sub_u32 s%d, s16, 2' % sXW); A('s_mov_b32 s%d, s17' % sTK)
    A('s_cmp_ge_u32 s%d, 6' % sXW); A('s_cbranch_scc1 L_exit_main')
    A('s_mov_b32 s%d, 0' % sIt)
    for n in (SRD_A, SRD_B, SRD_C, SRD_R): ws_srd(A, n)
    A('s_mov_b32 s%d, 0' % sS0); A('s_mov_b32 s%d, 0' % sS1); A('s_mov_b32 s%d, 0' % sS2); A('s_mov_b32 s%d, 0' % sChunk)
    A('s_lshl_b32 s%d, s%d, 5' % (sQi, sXW)); A('s_add_u32 s%d, s%d, s%d' % (sQi, sQi, sTK))
    if wpre:
        A('s_lshl_b32 s%d, s%d, 8' % (sT0, sQi)); A('v_add_u32 v20, s%d, v0' % sT0)
        A('v_lshlrev_b32 v21, 7, v20'); A('v_add_u32 v22, %d, v21' % (49152 * 128))
        for k_, karg in enumerate((A_WO, A_WV, A_WK, A_WQ)):
            mk_srd(A, SRD_C, karg, 8 * MB)
            A('buffer_load_dword v%d, v21, %s, 0 offen' % (24 + 2 * k_, srd(SRD_C)))
            A('buffer_load_dword v%d, v22, %s, 0 offen' % (25 + 2 * k_, srd(SRD_C)))
        ws_srd(A, SRD_C)
    A('v_mov_b32 v8, 0'); A('v_mov_b32 v9, 0'); A('v_mov_b32 v10, 0'); A('v_mov_b32 v11, 0')
    A('v_lshlrev_b32 v12, 4, v0')
    Lz1 = A.uid('z'); Lz2 = A.uid('z')
    A('s_cmp_ge_u32 s%d, 32' % sQi); A('s_cbranch_scc1 %s' % Lz1)
    A('s_lshl_b32 s%d, s%d, 12' % (sT0, sQi)); A('s_add_u32 s%d, s%d, %d' % (sT0, sT0, FLG_SEG))
    A('buffer_store_dwordx4 v[8:11], v12, s[8:11], s%d offen sc1' % sT0)
    A.label(Lz1)
    A('s_cmp_lg_u32 s%d, 32' % sQi); A('s_cbranch_scc1 %s' % Lz2)
    A('s_mov_b32 s%d, %d' % (sT0, GB0)); A('buffer_store_dwordx4 v[8:11], v12, s[8:11], s%d offen sc1' % sT0)
    A('s_mov_b32 s%d, %d' % (sT0, GB + 2048 * 2048)); A('buffer_store_dwordx4 v[8:11], v12, s[8:11], s%d offen sc1' % sT0)
    A.label(Lz2)
    A('s_waitcnt vmcnt(0)'); A('s_barrier')
    Lz3 = A.uid('z')
    A('v_cmp_eq_u32 vcc, 0, v0'); A('s_and_saveexec_b64 s[%d:%d], vcc' % (sMsk, sMsk + 1)); A('s_cbranch_execz %s' % Lz3)
    A('v_mov_b32 v250, 68'); A('v_mov_b32 v251, 1'); A('global_atomic_add v250, v251, s[6:7] sc1')
    A.label(Lz3)
    A('s_mov_b64 exec, s[%d:%d]' % (sMsk, sMsk + 1))
    mk_srd(A, SRD_R, A_X, 4 * MB)
    A('s_mov_b32 s%d, s%d' % (sChunk, sQi))
    A.label('ln_item')
    A('s_lshl_b32 s%d, s%d, 3' % (sRow, sChunk))
    unit_ln1(A)
    Lzw = A.uid('zw')
    A('s_mov_b32 s%d, 0' % sSp); A('v_mov_b32 v250, 68')
    A.label(Lzw)
    A('global_load_dword v251, v250, s[6:7] sc1')
    A('s_add_u32 s%d, s%d, 1' % (sSp, sSp)); A('s_cmp_gt_u32 s%d, %d' % (sSp, SPIN)); A('s_cbranch_scc1 worker_abort')
    A('s_waitcnt vmcnt(0)')
    A('v_readfirstlane_b32 s%d, v251' % sT0); A('s_nop 3'); A('s_cmp_lt_u32 s%d, 192' % sT0); A('s_cbranch_scc1 %s' % Lzw)
    A('s_lshl_b32 s%d, s%d, 2' % (sT0, sChunk)); A('s_add_u32 s%d, s%d, %d' % (sFlag, sT0, FXL))
    signal_flag(A)
    A('s_add_u32 s%d, s%d, 192' % (sChunk, sChunk)); A('s_cmp_lt_u32 s%d, 256' % sChunk); A('s_cbranch_scc1 ln_item')
    A('s_mov_b32 s%d, 0' % sChunk)
    ws_srd(A, SRD_R)
    A.label('qkv_next')
    A('s_cmp_ge_u32 s%d, 8' % sIt); A('s_cbranch_scc1 streams')
    A('s_lshr_b32 s%d, s%d, 4' % (sRB, sTK)); A('s_lshl_b32 s%d, s%d, 1' % (sT0, sIt)); A('s_add_u32 s%d, s%d, s%d' % (sRB, sRB, sT0))
    A('s_and_b32 s%d, s%d, 15' % (sT1, sTK))
    A('s_cmp_lt_u32 s%d, 4' % sXW); A('s_cselect_b32 s%d, 11, 10' % sT2)
    A('s_cmp_lt_u32 s%d, s%d' % (sT1, sT2)); A('s_cbranch_scc0 qkv_q')
    A('s_mul_i32 s%d, s%d, 6' % (sT3, sT1)); A('s_add_u32 s%d, s%d, s%d' % (sT3, sT3, sXW))
    A('s_lshr_b32 s%d, s%d, 5' % (sKS, sT3)); A('s_add_u32 s%d, s%d, 1' % (sKS, sKS)); A('s_and_b32 s%d, s%d, 31' % (sNT, sT3))
    A('s_branch qkv_go')
    A.label('qkv_q')
    A('s_sub_u32 s%d, s%d, s%d' % (sT3, sT1, sT2)); A('s_mul_i32 s%d, s%d, 5' % (sT4, sXW))
    A('s_sub_u32 s%d, s%d, 4' % (sT5, sXW)); A('s_mul_i32 s%d, s%d, 6' % (sT5, sT5)); A('s_add_u32 s%d, s%d, 20' % (sT5, sT5))
    A('s_cmp_lt_u32 s%d, 4' % sXW); A('s_cselect_b32 s%d, s%d, s%d' % (sT4, sT4, sT5))
    A('s_add_u32 s%d, s%d, s%d' % (sNT, sT3, sT4)); A('s_mov_b32 s%d, 0' % sKS)
    A.label('qkv_go')
    A('s_add_u32 s%d, s%d, 1' % (sIt, sIt))
    A('s_lshl_b32 s%d, s%d, 3' % (sT0, sKS)); A('s_add_u32 s%d, s%d, %d' % (sT0, sT0, A_WQ))
    A('s_load_dwordx2 s[%d:%d], s[0:1], s%d' % (SRD_B, SRD_B + 1, sT0))
    A('s_mov_b32 s%d, %d' % (SRD_B + 2, 8 * MB)); A('s_mov_b32 s%d, 0x00020000' % (SRD_B + 3))
    ws_srd(A, SRD_A); ws_srd(A, SRD_C)
    gemm_params(A, 2048, 8192, 8192, 16, 0)
    A('s_mul_i32 s%d, s%d, %d' % (sAoff, sRB, BM * 2048)); A('s_add_u32 s%d, s%d, %d' % (sAoff, sAoff, XLN))
    A('s_lshl_b32 s%d, s%d, 8' % (sBoff, sNT))
    A('s_mul_i32 s%d, s%d, %d' % (sCoff, sRB, BM * 8192)); A('s_add_u32 s%d, s%d, s%d' % (sCoff, sCoff, sBoff))
    A('s_lshl_b32 s%d, s%d, 24' % (sT0, sKS)); A('s_add_u32 s%d, s%d, s%d' % (sCoff, sCoff, sT0)); A('s_add_u32 s%d, s%d, %d' % (sCoff, sCoff, QX))
    A('s_mul_i32 s%d, s%d, 3' % (sT0, sRB)); A('s_add_u32 s%d, s%d, s%d' % (sT0, sT0, sKS))
    A('s_lshl_b32 s%d, s%d, 5' % (sT0, sT0)); A('s_add_u32 s%d, s%d, s%d' % (sT0, sT0, sNT))
    A('s_lshl_b32 s%d, s%d, 2' % (sT0, sT0)); A('s_add_u32 s%d, s%d, %d' % (sFlag, sT0, FQKV))
    A('s_mov_b32 s%d, 1' % sItem)
    A('s_and_b32 s%d, s%d, 15' % (sShI, sTK)); A('s_mov_b32 s%d, 8' % sShR)
    if trace:
        A('s_lshl_b32 s%d, s%d, 5' % (sQi, sXW)); A('s_add_u32 s%d, s%d, s%d' % (sQi, sQi, sTK)); A('s_lshl_b32 s%d, s%d, 3' % (sQi, sQi))
        A('s_add_u32 s%d, s%d, s%d' % (sQi, sQi, sIt)); A('s_add_u32 s%d, s%d, 22527' % (sQi, sQi))
        A('s_memrealtime s[98:99]'); A('s_memrealtime s[100:101]')
    A('s_waitcnt lgkmcnt(0)')
    A('s_cmp_lg_u32 s%d, 1' % sIt); A('s_cbranch_scc1 qkv_dep')
    G.load_b()
    A.label('qkv_dep')
    A('s_lshl_b32 s%d, s%d, 6' % (sDep, sRB)); A('s_add_u32 s%d, s%d, %d' % (sDep, sDep, FXL)); A('s_mov_b32 s%d, 16' % sCnt)
    G.setup(); wait_flags(A)
    A('s_branch gemm_main')

    def decode(src):
        A('s_bfe_u32 s%d, s%d, 0x60016' % (sRB, src)); A('s_bfe_u32 s%d, s%d, 0x50011' % (sNT, src)); A('s_bfe_u32 s%d, s%d, 0x3000e' % (sKS, src))
        A('s_bfe_u32 s%d, s%d, 0x60008' % (sK0, src)); A('s_bfe_u32 s%d, s%d, 0x50003' % (sNKi, src))
    def blk_rows():
        A('s_lshl_b32 s%d, s%d, 6' % (sRow0, sRB)); A('s_mov_b32 s%d, 0' % sBig)
    def own(base, code):
        code(); A('s_lshl_b32 s%d, s%d, 2' % (sT0, sT0)); A('s_add_u32 s%d, s%d, %d' % (sFlag, sT0, base))
    def btouch():
        A('v_and_b32 v200, 63, v0'); A('v_lshrrev_b32 v201, 6, v0')
        A('v_lshrrev_b32 v202, 1, v200'); A('v_lshl_add_u32 v202, v201, 8, v202')
        A('v_and_b32 v203, 1, v200'); A('v_lshlrev_b32 v203, 7, v203')
        A('s_lshl_b32 s%d, s%d, 6' % (sT4, sNk)); A('v_mov_b32 v206, 0x7ff00000')
        for j in range(8):
            A('v_add_u32 v204, %d, v202' % (32 * j)); A('v_mul_lo_u32 v205, v204, s%d' % sLdb); A('v_add_u32 v205, v205, v203')
            A('v_cmp_gt_u32 vcc, s%d, v204' % sT4); A('s_nop 1'); A('v_cndmask_b32 v205, v206, v205, vcc')
            A('buffer_load_dword v%d, v205, %s, s%d offen' % (208 + j, srd(SRD_B), sBoff))
    types = {
        T_O: dict(split=True, ownbase=FO, abuf=OX, lda=8192, bk=A_WO, bs=8 * MB, ldb=2048, p=PO),
        T_W4: dict(split=True, ownbase=FW4, abuf=UB, lda=7168, bk=B_W4, bs=7 * MB, ldb=2048, p=P4),
        T_W1: dict(split=False, ownbase=FW1, ostr=8, abuf=ZB, bk=B_W1, bs=2 * MB, ldb=2048, c=GB, ldc=2048, mode=1),
        T_W2: dict(split=False, ownbase=FW2, ostr=8, abuf=GB - 2048, bk=B_W2, bs=2 * MB, ldb=2048, c=X1B, ldc=2048, mode=2, shift=1, resid=YB),
        T_W3: dict(split=False, ownbase=FW3, ostr=32, abuf=Z2B, bk=B_W3, bs=7 * MB, ldb=7168, c=UB, ldc=7168, mode=1),
    }
    def gemm_setup(ty):
        d = types[ty]
        mk_srd(A, SRD_B, d['bk'], d['bs']); ws_srd(A, SRD_A); ws_srd(A, SRD_C); ws_srd(A, SRD_R)
        if d['split']:
            own(d['ownbase'], lambda: (A('s_lshl_b32 s%d, s%d, 6' % (sT0, sRB)), A('s_lshl_b32 s%d, s%d, 3' % (sT1, sKS)), A('s_add_u32 s%d, s%d, s%d' % (sT0, sT0, sT1)), A('s_add_u32 s%d, s%d, s%d' % (sT0, sT0, sNT))))
            gemm_params(A, d['lda'], d['ldb'], 2048, 0, 0)
            A('s_mov_b32 s%d, s%d' % (sNk, sNKi)); A('s_mov_b32 s%d, s%d' % (sShI, sNT)); A('s_mov_b32 s%d, 16' % sShR)
            A('s_mul_i32 s%d, s%d, %d' % (sAoff, sRow0, d['lda'])); A('s_lshl_b32 s%d, s%d, 7' % (sT0, sK0)); A('s_add_u32 s%d, s%d, s%d' % (sAoff, sAoff, sT0))
            A('s_add_u32 s%d, s%d, %d' % (sAoff, sAoff, d['abuf']))
            A('s_mul_i32 s%d, s%d, %d' % (sBoff, sK0, 64 * d['ldb'])); A('s_lshl_b32 s%d, s%d, 8' % (sT0, sNT)); A('s_add_u32 s%d, s%d, s%d' % (sBoff, sBoff, sT0))
            A('s_lshl_b32 s%d, s%d, 11' % (sCoff, sRow0)); A('s_add_u32 s%d, s%d, s%d' % (sCoff, sCoff, sT0))
            A('s_lshl_b32 s%d, s%d, 22' % (sT0, sKS)); A('s_add_u32 s%d, s%d, s%d' % (sCoff, sCoff, sT0)); A('s_add_u32 s%d, s%d, %d' % (sCoff, sCoff, d['p']))
        else:
            own(d['ownbase'], lambda: (A('s_mul_i32 s%d, s%d, %d' % (sT0, sRB, d['ostr'])), A('s_add_u32 s%d, s%d, s%d' % (sT0, sT0, sNT))))
            gemm_params(A, 2048, d['ldb'], d['ldc'], 16, d['mode'], d.get('shift', 0))
            A('s_mov_b32 s%d, s%d' % (sShI, sK0)); A('s_cmp_eq_u32 s%d, 7' % sNKi); A('s_cselect_b32 s%d, 19, 16' % sShR)
            A('s_lshl_b32 s%d, s%d, 11' % (sAoff, sRow0)); A('s_add_u32 s%d, s%d, %d' % (sAoff, sAoff, d['abuf']))
            A('s_lshl_b32 s%d, s%d, 8' % (sBoff, sNT))
            A('s_mul_i32 s%d, s%d, %d' % (sCoff, sRow0, d['ldc'])); A('s_add_u32 s%d, s%d, s%d' % (sCoff, sCoff, sBoff))
            if 'resid' in d: A('s_add_u32 s%d, s%d, %d' % (sRoff, sCoff, d['resid']))
            A('s_add_u32 s%d, s%d, %d' % (sCoff, sCoff, d['c']))

    TB = build_table()
    A.label('streams')
    A('s_getpc_b64 s[%d:%d]' % (sTab, sTab + 1))
    A.label('q_pc')
    A('s_add_u32 s%d, s%d, qtable-q_pc' % (sTab, sTab)); A('s_addc_u32 s%d, s%d, 0' % (sTab + 1, sTab + 1))
    A('s_lshl_b32 s%d, s%d, 5' % (sT0, sXW)); A('s_add_u32 s%d, s%d, s%d' % (sT0, sT0, sTK)); A('s_lshl_b32 s%d, s%d, 4' % (sT0, sT0))
    A('s_load_dword s%d, s[%d:%d], s%d' % (sS0, sTab, sTab + 1, sT0))
    A('s_add_u32 s%d, s%d, 4' % (sT1, sT0)); A('s_load_dword s%d, s[%d:%d], s%d' % (sS1, sTab, sTab + 1, sT1))
    A('s_add_u32 s%d, s%d, 8' % (sT2, sT0)); A('s_load_dword s%d, s[%d:%d], s%d' % (sS2, sTab, sTab + 1, sT2))
    A('s_waitcnt lgkmcnt(0)')
    A('s_lshr_b32 s%d, s%d, 28' % (sT2, sS0))
    A('s_cmp_eq_u32 s%d, %d' % (sT2, T_ATT)); A('s_cbranch_scc1 att_loop')
    A('s_cmp_eq_u32 s%d, %d' % (sT2, T_ROWLOOP)); A('s_cbranch_scc1 u_rowloop')
    A.label('ms_next')
    A('s_cmp_lg_u32 s%d, 0' % sS0); A('s_cbranch_scc1 ms_have')
    A('s_mov_b32 s%d, s%d' % (sS0, sS1)); A('s_mov_b32 s%d, s%d' % (sS1, sS2)); A('s_mov_b32 s%d, 0' % sS2)
    A('s_or_b32 s%d, s%d, s%d' % (sT0, sS0, sS1)); A('s_cmp_eq_u32 s%d, 0' % sT0); A('s_cbranch_scc1 L_exit_main')
    A('s_branch ms_next')
    A.label('ms_have')
    decode(sS0); blk_rows()
    A('s_lshr_b32 s%d, s%d, 28' % (sT5, sS0))
    for ty in types:
        Lt = A.uid('mt')
        A('s_cmp_lg_u32 s%d, %d' % (sT5, ty)); A('s_cbranch_scc1 %s' % Lt)
        gemm_setup(ty)
        A.label(Lt)
    G.load_b()
    A.label('ms_top')
    A('s_cmp_eq_u32 s%d, 0' % sS0); A('s_cbranch_scc1 ms_next')
    A('s_bfe_u32 s%d, s%d, 0x60016' % (sT0, sS0)); A('s_lshr_b32 s%d, s%d, 28' % (sT5, sS0))
    A('s_mov_b32 s%d, 16' % sCnt)
    A('s_lshl_b32 s%d, s%d, 7' % (sT2, sT0))
    A('s_add_u32 s%d, s%d, %d' % (sDep, sT2, FATT))
    A('s_add_u32 s%d, s%d, %d' % (sT3, sT2, FR1)); A('s_cmp_eq_u32 s%d, %d' % (sT5, T_W1)); A('s_cselect_b32 s%d, s%d, s%d' % (sDep, sT3, sDep))
    A('s_add_u32 s%d, s%d, %d' % (sT3, sT2, FR2)); A('s_cmp_eq_u32 s%d, %d' % (sT5, T_W3)); A('s_cselect_b32 s%d, s%d, s%d' % (sDep, sT3, sDep))
    A('s_add_u32 s%d, s%d, %d' % (sT3, sT2, FW3)); A('s_cmp_eq_u32 s%d, %d' % (sT5, T_W4)); A('s_cselect_b32 s%d, s%d, s%d' % (sDep, sT3, sDep)); A('s_cselect_b32 s%d, 28, s%d' % (sCnt, sCnt))
    Lw2 = A.uid('m2')
    A('s_cmp_lg_u32 s%d, %d' % (sT5, T_W2)); A('s_cbranch_scc1 %s' % Lw2)
    A('s_sub_u32 s%d, s%d, 1' % (sT2, sT0)); A('s_cmp_eq_u32 s%d, 0' % sT0); A('s_cselect_b32 s%d, 0, s%d' % (sT2, sT2))
    A('s_add_u32 s%d, s%d, 1' % (sT3, sT0)); A('s_cmp_eq_u32 s%d, %d' % (sT0, NB - 1)); A('s_cselect_b32 s%d, s%d, s%d' % (sT3, sT0, sT3))
    A('s_sub_u32 s%d, s%d, s%d' % (sT3, sT3, sT2)); A('s_add_u32 s%d, s%d, 1' % (sT3, sT3)); A('s_lshl_b32 s%d, s%d, 3' % (sCnt, sT3))
    A('s_lshl_b32 s%d, s%d, 5' % (sT2, sT2)); A('s_add_u32 s%d, s%d, %d' % (sDep, sT2, FW1))
    A.label(Lw2)
    A('s_mov_b32 s%d, s%d' % (sItem, sS0))
    A('s_add_u32 s%d, s%d, %d' % (sS0, sS0, 1 << 22)); A('s_bfe_u32 s%d, s%d, 0x60016' % (sT0, sS0))
    A('s_and_b32 s%d, s%d, 7' % (sT1, sS0)); A('s_add_u32 s%d, s%d, %d' % (sT1, sT1, NBIG))
    A('s_cmp_eq_u32 s%d, s%d' % (sT0, sT1)); A('s_cselect_b32 s%d, 0, s%d' % (sS0, sS0))
    decode(sItem); blk_rows()
    A('s_lshr_b32 s%d, s%d, 28' % (sT5, sItem))
    if trace:
        A('s_lshl_b32 s%d, s%d, 11' % (sQi, sT5)); A('s_mul_i32 s%d, s%d, 48' % (sT0, sRB)); A('s_add_u32 s%d, s%d, s%d' % (sQi, sQi, sT0))
        A('s_lshl_b32 s%d, s%d, 3' % (sT0, sKS)); A('s_add_u32 s%d, s%d, s%d' % (sQi, sQi, sT0)); A('s_add_u32 s%d, s%d, s%d' % (sQi, sQi, sNT))
        A('s_memrealtime s[98:99]')
    A('s_mov_b32 s%d, 0' % sItem)
    for ty in types:
        Lt = A.uid('mr')
        A('s_cmp_lg_u32 s%d, %d' % (sT5, ty)); A('s_cbranch_scc1 %s' % Lt)
        gemm_setup(ty)
        A.label(Lt)
    GS.setup(); wait_flags(A); A('s_branch gemm_main_s')

    A.label('att_loop')
    A('s_bfe_u32 s%d, s%d, 0x50011' % (sChunk, sS0))
    sAS = sD1; sAL = sD2
    A('s_bfe_u32 s%d, s%d, 0x60016' % (sAS, sS0))
    A('s_bfe_u32 s%d, s%d, 0x60008' % (sAL, sS0))
    A('s_cmp_eq_u32 s%d, 0' % sAL); A('s_cselect_b32 s%d, 64, s%d' % (sAL, sAL))
    A.label('att_next')
    A('s_cmp_ge_u32 s%d, s%d' % (sAS, sAL)); A('s_cbranch_scc1 att_fin')
    A('s_mov_b32 s%d, s%d' % (sRB, sAS)); A('s_and_b32 s%d, s%d, 7' % (sNT, sChunk)); A('s_add_u32 s%d, s%d, 2' % (sAS, sAS))
    if trace:
        A('s_lshl_b32 s%d, s%d, 3' % (sQi, sRB)); A('s_add_u32 s%d, s%d, s%d' % (sQi, sQi, sNT)); A('s_add_u32 s%d, s%d, 2048' % (sQi, sQi))
        A('s_memrealtime s[98:99]')
    wave_id(A, sSp)
    Lad = A.uid('ad'); Lap = A.uid('ap')
    A('s_cmp_lg_u32 s%d, 0' % sSp); A('s_cbranch_scc1 %s' % Lad)
    A('s_lshr_b32 s%d, s%d, 2' % (sT5, sRB)); A('s_mul_i32 s%d, s%d, 384' % (sT0, sT5)); A('s_lshl_b32 s%d, s%d, 4' % (sT1, sNT)); A('s_add_u32 s%d, s%d, s%d' % (sT0, sT0, sT1))
    A('s_add_u32 s%d, s%d, %d' % (sT0, sT0, FQKV))
    A('v_lshrrev_b32 v248, 2, v0'); A('v_lshlrev_b32 v248, 7, v248'); A('v_and_b32 v249, 3, v0'); A('v_lshl_add_u32 v248, v249, 2, v248'); A('v_add_u32 v248, s%d, v248' % sT0)
    A('s_lshl_b32 s%d, s%d, 10' % (sT0, sRB)); A('s_lshl_b32 s%d, s%d, 7' % (sT1, sNT)); A('s_add_u32 s%d, s%d, s%d' % (sT0, sT0, sT1)); A('s_add_u32 s%d, s%d, %d' % (sT0, sT0, FLG_SEG - 128))
    A('v_lshlrev_b32 v249, 2, v0'); A('v_add_u32 v249, s%d, v249' % sT0)
    A('v_cmp_gt_u32 vcc, 32, v0'); A('s_nop 1'); A('v_cndmask_b32 v250, v249, v248, vcc')
    A('s_mov_b32 s%d, 0xfff' % sMsk); A('s_mov_b32 s%d, -1' % (sMsk + 1)); A('s_mov_b64 exec, s[%d:%d]' % (sMsk, sMsk + 1))
    A('s_mov_b32 s%d, 0' % sSp)
    A.label(Lap)
    A('buffer_load_dword v251, v250, s[8:11], 0 offen sc1')
    A('s_add_u32 s%d, s%d, 1' % (sSp, sSp)); A('s_cmp_gt_u32 s%d, %d' % (sSp, SPIN)); A('s_cbranch_scc1 worker_abort')
    A('s_waitcnt vmcnt(0)')
    A('v_cmp_eq_u32 vcc, 0, v251'); A('s_cbranch_vccz %s_ok' % Lap)
    A('s_sleep 2'); A('s_branch %s' % Lap)
    A.label(Lap + '_ok')
    A('s_mov_b64 exec, -1')
    A.label(Lad)
    A('s_barrier')
    if trace: A('s_memrealtime s[100:101]')
    def code():
        A('s_lshr_b32 s%d, s%d, 1' % (sT0, sRB)); A('s_lshl_b32 s%d, s%d, 5' % (sT0, sT0))
        A('s_and_b32 s%d, s%d, 1' % (sT1, sRB)); A('s_lshl_b32 s%d, s%d, 3' % (sT1, sT1)); A('s_add_u32 s%d, s%d, s%d' % (sT0, sT0, sT1))
        A('s_add_u32 s%d, s%d, s%d' % (sT0, sT0, sNT))
    own(FATT, code)
    A('s_mov_b32 s%d, s%d' % (sSeg, sRB)); A('s_lshl_b32 s%d, s%d, 2' % (sHead, sNT))
    A('s_mov_b32 s%d, 3' % sItem)
    unit_att(A)
    A('s_branch unit_done')

    A.label('att_fin')
    A('s_mov_b32 s%d, 0' % sS0)
    A('s_branch ms_next')
    sN1, sN2, sN3 = sS0, sS1, sS2
    A.label('u_rowloop')
    A('s_bfe_u32 s%d, s%d, 0x50011' % (sChunk, sS0))
    A('s_mov_b32 s%d, 0' % sN1); A('s_mov_b32 s%d, 0' % sN2); A('s_mov_b32 s%d, 0' % sN3)
    A.label('rl_top')
    A('s_cmp_ge_u32 s%d, 16' % sN3); A('s_cbranch_scc1 L_exit_main')
    wave_id(A, sSp)
    A('s_cmp_lg_u32 s%d, 0' % sSp); A('s_cbranch_scc1 rl_wait')
    A('v_lshlrev_b32 v250, 2, v0'); A('s_mov_b32 s%d, 0' % sSp)
    A.label('rl_poll')
    A('s_lshr_b32 s%d, s%d, 4' % (sT1, sChunk))
    for reg, base, sh, n_ in ((247, FO, 8, sN1), (248, FW2, 5, sN2), (249, FW4, 8, sN3)):
        A('s_min_u32 s%d, s%d, 15' % (sT0, n_)); A('s_lshl_b32 s%d, s%d, 1' % (sT0, sT0)); A('s_add_u32 s%d, s%d, s%d' % (sT0, sT0, sT1))
        A('s_lshl_b32 s%d, s%d, %d' % (sT0, sT0, sh)); A('s_add_u32 s%d, s%d, %d' % (sT0, sT0, base))
        A('buffer_load_dword v%d, v250, s[8:11], s%d offen sc1' % (reg, sT0))
    A('s_add_u32 s%d, s%d, 1' % (sSp, sSp)); A('s_cmp_gt_u32 s%d, %d' % (sSp, SPIN)); A('s_cbranch_scc1 worker_abort')
    A('s_waitcnt vmcnt(0)')
    A('s_mov_b32 s%d, 0' % sT5)
    for code_, reg, cnt, n_ in ((1, 247, 48, sN1), (2, 248, 8, sN2), (3, 249, 48, sN3)):
        Ln = A.uid('rn')
        A('s_cmp_lg_u32 s%d, 0' % sT5); A('s_cbranch_scc1 %s' % Ln)
        A('s_cmp_ge_u32 s%d, 16' % n_); A('s_cbranch_scc1 %s' % Ln)
        A('v_cmp_eq_u32 vcc, 0, v%d' % reg)
        if cnt == 48: A('s_and_b32 vcc_hi, vcc_hi, 0xffff')
        else: A('s_and_b32 vcc_lo, vcc_lo, 0xff'); A('s_mov_b32 vcc_hi, 0')
        A('s_cmp_lg_u64 vcc, 0'); A('s_cbranch_scc1 %s' % Ln)
        A('s_mov_b32 s%d, %d' % (sT5, code_))
        A.label(Ln)
    A('s_cmp_lg_u32 s%d, 0' % sT5); A('s_cbranch_scc1 rl_got')
    A('s_sleep 2'); A('s_branch rl_poll')
    A.label('rl_got')
    A('v_mov_b32 v250, 163832'); A('v_mov_b32 v251, s%d' % sT5); A('s_mov_b64 exec, 1'); A('ds_write_b32 v250, v251'); A('s_mov_b64 exec, -1'); A('s_waitcnt lgkmcnt(0)')
    A.label('rl_wait')
    A('s_barrier')
    A('v_mov_b32 v250, 163832'); A('ds_read_b32 v251, v250'); A('s_waitcnt lgkmcnt(0)'); A('v_readfirstlane_b32 s%d, v251' % sT5)
    A('s_barrier')
    if trace: A('s_memrealtime s[98:99]'); A('s_memrealtime s[100:101]')
    A('s_mov_b32 s%d, 2' % sItem)
    for c_ in (2, 3):
        A('s_cmp_eq_u32 s%d, %d' % (sT5, c_)); A('s_cbranch_scc1 rl_%d' % c_)
    def pick(n_, T_, lab):
        A('s_lshl_b32 s%d, s%d, 1' % (sRB, n_)); A('s_lshr_b32 s%d, s%d, 4' % (sT1, sChunk)); A('s_add_u32 s%d, s%d, s%d' % (sRB, sRB, sT1)); A('s_and_b32 s%d, s%d, 15' % (sNT, sChunk))
        if trace:
            A('s_mul_i32 s%d, s%d, 48' % (sQi, sRB)); A('s_add_u32 s%d, s%d, s%d' % (sQi, sQi, sNT)); A('s_add_u32 s%d, s%d, %d' % (sQi, sQi, T_ * 2048))
        A('s_add_u32 s%d, s%d, 1' % (n_, n_)); blk_rows(); A('s_branch %s' % lab)
    pick(sN1, T_R1, 'u_r1')
    A.label('rl_2'); pick(sN2, T_R2, 'u_r2')
    A.label('rl_3'); pick(sN3, T_R3, 'u_r3')
    def rowu(lab, ownbase, fn, pre=None):
        A.label(lab)
        if ownbase is not None:
            own(ownbase, lambda: (A('s_lshl_b32 s%d, s%d, 5' % (sT0, sRB)), A('s_add_u32 s%d, s%d, s%d' % (sT0, sT0, sNT))))
        if pre: pre()
        A('s_lshl_b32 s%d, s%d, 2' % (sT0, sNT)); A('s_add_u32 s%d, s%d, s%d' % (sRow, sRow0, sT0))
        fn(A)
        A('s_branch %s' % ('unit_done' if ownbase is not None else 'unit_nosig'))
    rowu('u_r1', FR1, unit_r1, lambda: mk_srd(A, SRD_R, A_X, 4 * MB))
    rowu('u_r2', FR2, unit_r2)
    rowu('u_r3', None, unit_r3, lambda: mk_srd(A, SRD_C, D_OUT, 4 * MB))

    def epis(G_, sfx):
        A('s_cmp_eq_u32 s%d, 1' % sMode); A('s_cbranch_scc1 epi1%s' % sfx)
        A('s_cmp_eq_u32 s%d, 2' % sMode); A('s_cbranch_scc1 epi2%s' % sfx)
        G_.epi_bf16(); A('s_branch unit_done')
        A.label('epi1' + sfx); G_.epi_bf16(gelu=True); A('s_branch unit_done')
        A.label('epi2' + sfx); G_.epi_bf16(resid=True); A('s_branch unit_done')
    A.label('gemm_main')
    G.mainloop()
    G.epi_bf16(); A('s_branch unit_done')
    A.label('gemm_main_s')
    GS.mainloop()
    epis(GS, 's')
    def trace_out():
        if trace:
            A('s_memrealtime s[68:69]'); A('s_waitcnt lgkmcnt(0)')
            Lt = A.uid('tr')
            A('v_cmp_eq_u32 vcc, 0, v0'); A('s_and_saveexec_b64 s[%d:%d], vcc' % (sMsk, sMsk + 1)); A('s_cbranch_execz %s' % Lt)
            A('v_mov_b32 v240, s98'); A('v_mov_b32 v241, s100'); A('v_mov_b32 v242, s66'); A('v_mov_b32 v243, s68')
            A('s_sub_u32 s%d, s62, s60' % sT1); A('s_sub_u32 s%d, s64, s62' % sT2)
            A('v_mov_b32 v244, s%d' % sT1); A('v_mov_b32 v245, s%d' % sT2); A('v_mov_b32 v246, 0'); A('v_mov_b32 v247, 0')
            A('s_lshl_b32 s%d, s%d, 5' % (sT0, sQi)); A('s_add_u32 s%d, s%d, %d' % (sT0, sT0, TRC)); A('v_mov_b32 v250, 0')
            A('buffer_store_dwordx4 v[240:243], v250, s[8:11], s%d offen' % sT0)
            A('buffer_store_dwordx4 v[244:247], v250, s[8:11], s%d offen offset:16' % sT0)
            A.label(Lt)
            A('s_mov_b64 exec, s[%d:%d]' % (sMsk, sMsk + 1))
    A.label('unit_done')
    if trace: A('s_memrealtime s[66:67]')
    signal_flag(A)
    trace_out()
    A('s_cmp_eq_u32 s%d, 1' % sItem); A('s_cbranch_scc1 qkv_next')
    A('s_cmp_eq_u32 s%d, 2' % sItem); A('s_cbranch_scc1 rl_top')
    A('s_cmp_eq_u32 s%d, 3' % sItem); A('s_cbranch_scc1 att_next')
    A('s_branch ms_top')
    A.label('unit_nosig')
    if trace: A('s_memrealtime s[66:67]')
    A('s_waitcnt vmcnt(0)'); A('s_barrier')
    trace_out()
    A('s_branch rl_top')
    A.label('worker_abort')
    A('s_mov_b64 exec, 1')
    A('v_mov_b32 v250, 1'); A('v_mov_b32 v251, 132')
    A('global_atomic_add v251, v250, s[6:7] sc1'); A('s_waitcnt vmcnt(0)')
    A.label('L_exit_main')
    A('s_endpgm')
    A.raw('.p2align 2')
    A.raw('.type qtable,@object')
    A.label('qtable')
    for x in range(8):
        for t in range(32):
            A.raw('    .long ' + ', '.join('0x%08x' % w for w in TB[x, t] + [0]))
    A.raw('.section .rodata,"a"')
    A.raw('.p2align 6'); kernel_desc(A, KNAME)
    return A.text()
if __name__ == '__main__':
    kw = {}
    for x in sys.argv[2:]:
        k, v = x.split('=')
        kw[k] = v
    ck = dict(rearly=int(kw.pop('rearly', 5)), vdefer=int(kw.pop('vdefer', 0)), sel=int(kw.pop('sel', 0)))
    if kw.get('trace'): ck['steptrace'] = True
    if kw.pop('rt', None): ck['rt'] = 1
    for k_ in ('touch', 'd1', 'd4', 'd6'):
        if k_ in kw: ck[k_] = int(kw.pop(k_))
    kw['chain_kw'] = ck
    open(sys.argv[1], 'w').write(gen(**kw))
```

```python
from asmlib import *
from layout import *
import struct, math
from gemm2 import SRD_WS, SRD_A, SRD_B, SRD_C, SRD_R, sAoff, sBoff, sCoff, sLda, sLdb, sLdc, sNk, sKi, sStR, sStW, sRoff, sB64, sMode, sW, sWm, sWn, sT0, sT1, sT2, sT3, sT4, sT5, sA2, sShift, sK1, sK2, sMX, sMW, srd, fhex
import gemm3

class GemmBS(gemm3.Gemm):
    NSL = 8
    def __init__(self, A, BM=128, stamps=False):
        self.A = A; self.stamps = stamps
        self.BM = BM; self.TM = BM // 16; self.TN = 2
        self.SLOT = BM * 128; self.ND = BM // 32
        self.vLane, self.vG, self.vC = 1, 2, 3
        self.vXd = 4
        self.vXa = 8
        self.vT = 24
        self.set = [32, 64]
        self.ACC = 128
        self.look = self.NSL - 1
    def acc(self, tm, tn): return self.ACC + (tm * 2 + tn) * 4
    def lanes(self):
        A = self.A
        A('v_and_b32 v%d, 63, v0' % self.vLane); A('v_lshrrev_b32 v%d, 6, v0' % self.vT); A('s_nop 0')
        A('v_readfirstlane_b32 s%d, v%d' % (sW, self.vT))
        A('v_lshrrev_b32 v%d, 4, v%d' % (self.vG, self.vLane)); A('v_and_b32 v%d, 15, v%d' % (self.vC, self.vLane)); A('s_nop 1')
    def load_b(self):
        A = self.A
        self.lanes()
        t0, t1, t2, t3 = self.vT, self.vT + 1, self.vT + 2, self.vT + 3
        G, C = self.vG, self.vC
        vWd, vWr = 12, 16
        A('v_lshrrev_b32 v%d, 1, v%d' % (t0, C)); A('v_and_b32 v%d, 1, v%d' % (t3, C)); A('s_lshl_b32 s%d, s%d, 4' % (sT0, sW))
        for jj in range(4):
            A('v_xor_b32 v%d, v%d, v%d' % (t1, t0, G))
            if (jj >> 1) & 1: A('v_xor_b32 v%d, 4, v%d' % (t1, t1))
            A('v_lshlrev_b32 v%d, 5, v%d' % (t1, t1)); A('v_lshl_add_u32 v%d, v%d, 4, v%d' % (t1, t3, t1))
            A('s_add_u32 s%d, s%d, %d' % (sT1, sT0, 4 * jj)); A('v_add_u32 v%d, s%d, v%d' % (t2, sT1, G))
            A('v_mul_lo_u32 v%d, v%d, s%d' % (t2, t2, sLdb)); A('v_add_u32 v%d, v%d, v%d' % (t2, t2, t1))
            A('v_subrev_u32 v%d, %d, v%d' % (vWd + jj, 1024 * jj, t2))
        A('v_lshrrev_b32 v%d, 2, v%d' % (t0, C)); A('v_and_b32 v%d, 1, v%d' % (t1, G)); A('v_lshl_add_u32 v%d, v%d, 2, v%d' % (t1, t1, t0))
        A('v_lshl_add_u32 v%d, v%d, 3, v%d' % (t0, G, t0)); A('v_lshlrev_b32 v%d, 8, v%d' % (t0, t0))
        A('v_and_b32 v%d, 3, v%d' % (t2, C)); A('v_lshl_add_u32 v%d, v%d, 3, v%d' % (t0, t2, t0))
        A('s_lshl_b32 s%d, s%d, 1' % (sT0, sW))
        for tn in range(2):
            A('s_add_u32 s%d, s%d, %d' % (sT1, sT0, tn)); A('v_xor_b32 v%d, s%d, v%d' % (t2, sT1, t1)); A('v_lshl_add_u32 v%d, v%d, 5, v%d' % (vWr + tn, t2, t0))
        A('s_lshl_b32 s%d, s%d, 6' % (sB64, sLdb))
        A('s_lshl_b32 s%d, s%d, 12' % (sMW, sW))
        A('s_mov_b32 s%d, s%d' % (sT4, sBoff))
        A('s_mov_b32 s%d, 0' % sKi)
        def issue(g):
            for s_ in range(4):
                A('s_cmp_lt_u32 s%d, s%d' % (sKi, sNk)); A('s_cselect_b32 s%d, s%d, 0x70000000' % (sT3, sT4))
                A('s_add_u32 m0, s%d, %d' % (sMW, (g & 1) * 65536 + s_ * 16384)); A('s_add_u32 s%d, s%d, 1' % (sKi, sKi))
                for jj in range(4):
                    A('buffer_load_dwordx4 v%d, %s, s%d offen offset:%d lds' % (vWd + jj, srd(SRD_B), sT3, 1024 * jj))
                A('s_add_u32 s%d, s%d, s%d' % (sT4, sT4, sB64))
        A('v_add_u32 v%d, 65536, v%d' % (vWr + 2, vWr)); A('v_add_u32 v%d, 65536, v%d' % (vWr + 3, vWr + 1))
        issue(0); issue(1)
        for g in range(4):
            A('s_waitcnt vmcnt(%d)' % (16 if g < 3 else 0)); A('s_barrier')
            for s_ in range(4):
                st = 4 * g + s_
                for kk in range(2):
                    for tn in range(2):
                        for h in range(2):
                            Rg = 16 * st + 8 * kk + 4 * tn + 2 * h
                            A('ds_read_b64_tr_b16 a[%d:%d], v%d offset:%d' % (Rg, Rg + 1, vWr + 2 * (g & 1) + tn, s_ * 16384 + kk * 8192 + h * 1024))
                A('s_waitcnt lgkmcnt(0)')
            A('s_barrier')
            if g + 2 < 4: issue(g + 2)
    def setup(self):
        A = self.A
        self.lanes()
        t0, t1, t2 = self.vT, self.vT + 1, self.vT + 2
        L, G, C = self.vLane, self.vG, self.vC
        A('v_lshrrev_b32 v%d, 3, v%d' % (t0, L)); A('v_and_b32 v%d, 7, v%d' % (t1, L)); A('v_xor_b32 v%d, v%d, v%d' % (t1, t1, t0)); A('v_lshlrev_b32 v%d, 4, v%d' % (t1, t1))
        A('s_mul_i32 s%d, s%d, %d' % (sT0, sW, self.BM // 4))
        for jj in range(self.ND):
            A('s_add_u32 s%d, s%d, %d' % (sT1, sT0, 8 * jj)); A('v_add_u32 v%d, s%d, v%d' % (t2, sT1, t0))
            A('v_mul_lo_u32 v%d, v%d, s%d' % (t2, t2, sLda)); A('v_add_u32 v%d, v%d, v%d' % (t2, t2, t1))
            A('v_subrev_u32 v%d, %d, v%d' % (self.vXd + jj, 1024 * jj, t2))
        A('s_mul_i32 s%d, s%d, %d' % (sMX, sW, self.ND * 1024))
        A('v_and_b32 v%d, 7, v%d' % (t0, C)); A('v_xor_b32 v%d, v%d, v%d' % (t0, t0, G)); A('v_lshlrev_b32 v%d, 4, v%d' % (t0, t0)); A('v_lshl_add_u32 v%d, v%d, 7, v%d' % (self.vXa, C, t0))
        A('v_xor_b32 v%d, 64, v%d' % (self.vXa + 1, self.vXa))
        A('v_add_u32 v%d, 65536, v%d' % (self.vXa + 2, self.vXa)); A('v_add_u32 v%d, 65536, v%d' % (self.vXa + 3, self.vXa + 1))
    def xreads(self, st, kk, slot):
        base = self.set[st]; off = slot * self.SLOT; wi = off // 65536; off -= wi * 65536
        return ['ds_read_b128 v[%d:%d], v%d offset:%d' % (base + 4 * tm, base + 4 * tm + 3, self.vXa + 2 * wi + kk, off + tm * 2048) for tm in range(self.TM)]
    def xdma(self, slot):
        out = []
        pre = ['s_cmp_lt_u32 s%d, s%d' % (sKi, sNk), 's_cselect_b32 s%d, s%d, 0x70000000' % (sA2, sAoff), 's_add_u32 m0, s%d, %d' % (sMX, slot * self.SLOT), 's_add_u32 s%d, s%d, 1' % (sKi, sKi)]
        for jj in range(self.ND):
            post = ['s_add_u32 s%d, s%d, 128' % (sAoff, sAoff)] + self.shift_list() if jj == self.ND - 1 else []
            out.append((pre if jj == 0 else []) + ['buffer_load_dwordx4 v%d, %s, s%d offen offset:%d sc1 lds' % (self.vXd + jj, srd(SRD_A), sA2, 1024 * jj)] + post)
        return out
    def shift_list(self):
        return []
    def mf(self, st, stage, kk, first):
        base = self.set[st]; out = []
        for tm in range(self.TM):
            for tn in range(2):
                ac = self.acc(tm, tn); b_ = 16 * stage + 8 * kk + 4 * tn
                c = '0' if first else 'v[%d:%d]' % (ac, ac + 3)
                out.append('v_mfma_f32_16x16x32_bf16 v[%d:%d], a[%d:%d], v[%d:%d], %s' % (ac, ac + 3, b_, b_ + 3, base + 4 * tm, base + 4 * tm + 3, c))
        return out
    def mainloop(self):
        A = self.A; NS = self.NSL; ND = self.ND; n = 2 * self.TM
        self.stamp(0)
        A('s_mov_b32 s%d, 0' % sKi)
        plan = {}; nxt = 3
        for s_ in range(16):
            lst = []
            while nxt < 16 and nxt <= s_ + NS - 1 and len(lst) < 2:
                lst.append(nxt); nxt += 1
            plan[s_] = lst
        issued = []
        def static_shift(j):
            d = {4: 2, 8: -3, 12: 4}.get(j + 1)
            if d is None: return []
            return ['s_mul_i32 s%d, s%d, %d' % (sT0, sShift, d), 's_add_u32 s%d, s%d, s%d' % (sAoff, sAoff, sT0)]
        for st in range(3):
            g = self.xdma(st % NS); g[-1] += static_shift(st)
            for grp in g:
                for x in grp: A(x)
            issued += [st] * ND
        A('s_waitcnt vmcnt(%d)' % (2 * ND)); A('s_barrier')
        for x in self.xreads(0, 0, 0): A(x)
        self.stamp(1)
        Lend = A.uid('be')
        for s_ in range(16):
            slot = s_ % NS
            mf0 = self.mf(0, s_, 0, s_ == 0); mf1 = self.mf(1, s_, 1, False)
            slots = [[] for _ in range(2 * n)]
            for i, x in enumerate(self.xreads(1, 1, slot)): slots[i].append(x)
            bar = n - 3
            groups = []
            for j in plan[s_]:
                g = self.xdma(j % NS); g[-1] += static_shift(j)
                groups += [(j, grp) for grp in g]
            pos = [int((i + 0.5) * 2 * n / len(groups)) for i in range(len(groups))] if groups else []
            before = [j for (j, _), p_ in zip(groups, pos) if p_ <= bar]
            for (j, grp), p_ in zip(groups, pos): slots[p_] += grp
            if s_ < 15:
                for i, x in enumerate(self.xreads(0, 0, (s_ + 1) % NS)): slots[n + i].insert(0, x)
            A('s_waitcnt lgkmcnt(0)')
            for i in range(2 * n):
                A(mf0[i] if i < n else mf1[i - n])
                for x in slots[i]: A(x)
                if i == bar:
                    seq = issued + before
                    younger = sum(1 for j in seq if j > s_ + 1)
                    A('s_waitcnt vmcnt(%d) lgkmcnt(0)' % younger)
                    A('s_barrier')
            issued += [j for j, _ in groups]
            if s_ < 15:
                A('s_cmp_le_u32 s%d, %d' % (sNk, s_ + 1)); A('s_cbranch_scc1 %s' % Lend)
        A.label(Lend)
        A('s_waitcnt lgkmcnt(0)')
        A.nop(10)
        self.stamp(2)
    def epi_addr(self, bytes_per_col):
        A = self.A
        vCo, t0 = self.vT, self.vT + 1
        A('v_mul_lo_u32 v%d, v%d, s%d' % (vCo, self.vC, sLdc))
        A('v_and_b32 v%d, 1, v%d' % (t0, self.vG)); A('v_lshl_add_u32 v%d, v%d, 5, v%d' % (vCo, t0, vCo))
        A('v_lshrrev_b32 v%d, 1, v%d' % (t0, self.vG)); A('v_lshl_add_u32 v%d, v%d, 4, v%d' % (vCo, t0, vCo))
        A('s_lshl_b32 s%d, s%d, 6' % (sT1, sW)); A('v_add_u32 v%d, s%d, v%d' % (vCo, sT1, vCo))
        A('s_lshl_b32 s%d, s%d, 4' % (sT2, sLdc))
        return vCo
    def epi_bf16(self, gelu=False, resid=False, cfl='sc1'):
        A = self.A
        if gelu: self.gelu_setup()
        vCo = self.epi_addr(2)
        D = 32; RR = 64
        if resid:
            for tm in range(self.TM):
                A('s_mul_i32 s%d, s%d, %d' % (sT3, sT2, tm)); A('s_add_u32 s%d, s%d, s%d' % (sT3, sT3, sRoff))
                A('buffer_load_dwordx4 v[%d:%d], v%d, %s, s%d offen sc1' % (RR + 4 * tm, RR + 4 * tm + 3, vCo, srd(SRD_R), sT3))
        for tm in range(self.TM):
            A('s_mul_i32 s%d, s%d, %d' % (sT3, sT2, tm)); A('s_add_u32 s%d, s%d, s%d' % (sT3, sT3, sCoff))
            a0 = self.acc(tm, 0); a1 = self.acc(tm, 1)
            if gelu: self.gelu(list(range(a0, a0 + 8)), D + 8)
            P = D + 4 * (tm & 1)
            A('v_cvt_pk_bf16_f32 v%d, v%d, v%d' % (P, a0, a0 + 1)); A('v_cvt_pk_bf16_f32 v%d, v%d, v%d' % (P + 1, a0 + 2, a0 + 3))
            A('v_cvt_pk_bf16_f32 v%d, v%d, v%d' % (P + 2, a1, a1 + 1)); A('v_cvt_pk_bf16_f32 v%d, v%d, v%d' % (P + 3, a1 + 2, a1 + 3))
            A('s_nop 1')
            A('v_permlane16_swap_b32 v%d, v%d' % (P, P + 2)); A('v_permlane16_swap_b32 v%d, v%d' % (P + 1, P + 3))
            if resid:
                R = RR + 4 * tm
                if tm == 0: A('s_waitcnt vmcnt(0)')
                for i in range(4):
                    t = D + 8
                    A('v_lshlrev_b32 v%d, 16, v%d' % (t, P + i)); A('v_and_b32 v%d, 0xffff0000, v%d' % (t + 1, P + i))
                    A('v_lshlrev_b32 v%d, 16, v%d' % (t + 2, R + i)); A('v_and_b32 v%d, 0xffff0000, v%d' % (t + 3, R + i))
                    A('v_pk_add_f32 v[%d:%d], v[%d:%d], v[%d:%d]' % (t, t + 1, t, t + 1, t + 2, t + 3))
                    A('v_cvt_pk_bf16_f32 v%d, v%d, v%d' % (P + i, t, t + 1))
            else:
                A('s_nop 0')
            A('buffer_store_dwordx4 v[%d:%d], v%d, %s, s%d offen %s' % (P, P + 3, vCo, srd(SRD_C), sT3, cfl))
```

```python
import sys
from asmlib import *
from layout import *
import chain10 as chain
from gemm2 import *
from gemm3 import Gemm
from gemmbs import GemmBS
from units3 import *

BM = 128
SBM = 64
NBIG = 31
NB = NBLK
KNAME = 'sequential_preLN__memory_aug_recurrent_mem_tr__mixer_s_mlp__prompt_kernel'
SPIN = 1 << 22
sXW, sTK, sIt, sFlag, sItem, sQi, sTab, sDep, sCnt, sSp = 80, 81, 82, 83, 84, 85, 86, 88, 89, 90
sMsk = 92
sRB, sNT, sKS = 94, 95, 96
sK0, sNKi = 78, 79
sRow0, sBig = 70, 71
sShI, sShR = 75, 76
sS0, sS1, sS2 = 58, 59, 91
sChunk = 97
sD0, sD1, sD2 = 72, 73, 74
sC3 = 77
T_ATT, T_O, T_R1, T_W1, T_W2, T_R2, T_W3, T_W4, T_R3, T_ROWLOOP = range(1, 11)
O_SPLIT = [(0, 11), (11, 11), (22, 11), (33, 11), (44, 10), (54, 10)]
W4_SPLIT = [(0, 10), (10, 10), (20, 9), (29, 9), (38, 9), (47, 9)]
def word(t, a, b=0, c=0, k0=0, nk=0, end=0):
    assert a < 64 and b < 32 and c < 8 and k0 < 64 and nk < 32
    return (t << 28) | (a << 22) | (b << 17) | (c << 14) | (k0 << 8) | (nk << 3) | end

def build_table():
    T = {(x, t): [0, 0, 0] for x in range(8) for t in range(32)}
    slot = [0] * 6
    def take(x):
        w = (x, slot[x]); slot[x] += 1; assert slot[x] <= 32; return w
    for x in range(6):
        for nt in range(8): T[take(x)] = [word(T_O, 0, nt, x, *O_SPLIT[x]), 0, 0]
    for nt in range(8): T[take(0)] = [word(T_W1, 0, nt), 0, 0]
    for nt in range(8): T[take(1)] = [word(T_W2, 0, nt), 0, 0]
    for nt in range(28): T[take(2 + nt // 7)] = [word(T_W3, 0, nt), 0, 0]
    for x in range(6):
        for nt in range(8): T[take(x)] = [word(T_W4, 0, nt, x, *W4_SPLIT[x]), 0, 0]
    free = [(x, t) for x in range(6) for t in range(slot[x], 32)]
    assert len(free) >= 48, len(free)
    LB = NBIG
    w4 = lambda i: word(T_W4, LB, i % 8, i // 8, *W4_SPLIT[i // 8], end=1)
    for i in range(16): T[free[i]] = [word(T_ATT, i >> 3, i & 7, 0, 63), w4(36 + i) if i < 12 else 0, 0]
    for c in range(32): T[free[16 + c]] = [word(T_ROWLOOP, 0, c), 0, 0]
    for m in range(64):
        w = []
        if m < 48: w.append(word(T_O, LB, m % 8, m // 8, *O_SPLIT[m // 8], end=1))
        if m < 28: w.append(word(T_W3, LB, m, end=1))
        elif m < 48: w.append(w4(m - 28))
        elif m < 56: w += [word(T_W1, LB, m - 48, end=1), w4(20 + m - 48)]
        else: w += [word(T_ATT, 63, m - 56, 0, 0), word(T_W2, LB, m - 56, end=1), w4(28 + m - 56)]
        T[6 + m // 32, m % 32] = (w + [0, 0, 0])[:3]
    return T

TRACE = [0]
def mk_srd(A, n, karg, size):
    A('s_load_dwordx2 s[%d:%d], s[0:1], %d' % (n, n + 1, karg))
    A('s_mov_b32 s%d, %d' % (n + 2, size))
    A('s_mov_b32 s%d, 0x00020000' % (n + 3))
    A('s_waitcnt lgkmcnt(0)')
def ws_srd(A, n):
    for i in range(4): A('s_mov_b32 s%d, s%d' % (n + i, 8 + i))
def gemm_params(A, lda, ldb, ldc, nk, mode, shift=0):
    A('s_mov_b32 s%d, %d' % (sLda, lda)); A('s_mov_b32 s%d, %d' % (sLdb, ldb)); A('s_mov_b32 s%d, %d' % (sLdc, ldc))
    A('s_mov_b32 s%d, %d' % (sNk, nk)); A('s_mov_b32 s%d, %d' % (sShift, lda if shift else 0)); A('s_mov_b32 s%d, %d' % (sMode, mode))

def wave_id(A, dst):
    A('v_lshrrev_b32 v250, 6, v0'); A('s_nop 0'); A('v_readfirstlane_b32 s%d, v250' % dst); A('s_nop 3')

def wait_flags(A):
    Ld = A.uid('wf'); Ll = A.uid('wl')
    wave_id(A, sSp)
    A('s_cmp_lg_u32 s%d, 0' % sSp); A('s_cbranch_scc1 %s' % Ld)
    A('v_cmp_gt_u32 vcc, s%d, v0' % sCnt)
    A('s_mov_b64 s[%d:%d], vcc' % (sMsk, sMsk + 1))
    A('v_lshlrev_b32 v250, 2, v0')
    A('s_mov_b32 s%d, 0' % sSp)
    A('s_mov_b64 exec, s[%d:%d]' % (sMsk, sMsk + 1))
    A.label(Ll)
    A('buffer_load_dword v251, v250, s[8:11], s%d offen sc1' % sDep)
    A('s_add_u32 s%d, s%d, 1' % (sSp, sSp)); A('s_cmp_gt_u32 s%d, %d' % (sSp, SPIN)); A('s_cbranch_scc1 worker_abort')
    A('s_waitcnt vmcnt(0)')
    A('v_cmp_eq_u32 vcc, 0, v251')
    A('s_cbranch_vccz %s_ok' % Ll)
    A('s_sleep 4'); A('s_branch %s' % Ll)
    A.label(Ll + '_ok')
    A('s_mov_b64 exec, -1')
    A.label(Ld)
    A('s_barrier')
    if TRACE[0]: A('s_memrealtime s[100:101]')

def signal_flag(A):
    A('s_waitcnt vmcnt(0)')
    A('s_barrier')
    L = A.uid('sf')
    A('v_cmp_eq_u32 vcc, 0, v0')
    A('s_and_saveexec_b64 s[%d:%d], vcc' % (sMsk, sMsk + 1))
    A('s_cbranch_execz %s' % L)
    A('v_mov_b32 v250, 0'); A('v_mov_b32 v251, 1')
    A('buffer_store_dword v251, v250, s[8:11], s%d offen sc1' % sFlag)
    A.label(L)
    A('s_mov_b64 exec, s[%d:%d]' % (sMsk, sMsk + 1))

def kvwait(A, seg_sreg, issue_only=False, check_only=False):
    c = chain
    def addr():
        A('s_lshr_b32 s%d, s%d, 2' % (c.sT0, seg_sreg)); A('s_mul_i32 s%d, s%d, 384' % (c.sT0, c.sT0))
        A('s_lshl_b32 s%d, s%d, 2' % (c.sT1, c.sH)); A('s_add_u32 s%d, s%d, s%d' % (c.sT0, c.sT0, c.sT1))
        A('s_add_u32 s%d, s%d, %d' % (c.sT0, c.sT0, FQKV + 128)); A('v_mov_b32 v125, 0')
    def loads():
        A('buffer_load_dword v126, v125, s[8:11], s%d offen sc1' % c.sT0)
        A('buffer_load_dword v127, v125, s[8:11], s%d offen offset:128 sc1' % c.sT0)
    if issue_only:
        addr(); loads(); return
    L = A.uid('kv'); Lok = A.uid('kvok')
    if check_only:
        A('v_and_b32 v126, v126, v127'); A('v_cmp_eq_u32 vcc, 0, v126'); A('s_cbranch_vccz %s' % Lok)
    addr()
    A('s_mov_b32 s%d, 0' % c.sSPIN)
    A.label(L)
    loads()
    A('s_add_u32 s%d, s%d, 1' % (c.sSPIN, c.sSPIN)); A('s_cmp_gt_u32 s%d, %d' % (c.sSPIN, SPIN)); A('s_cbranch_scc1 chain_abort')
    A('s_waitcnt vmcnt(0)')
    A('v_and_b32 v126, v126, v127'); A('v_cmp_eq_u32 vcc, 0, v126'); A('s_cbranch_vccnz %s' % L)
    A.label(Lok)

def gen(intra='', chain_kw=None, trace=0, coop=1, wake=56, wpre=0):
    wpre = int(wpre); coop = int(coop); trace = int(trace); TRACE[0] = trace; wake = int(wake)
    A = Asm()
    G = GemmBS(A, 128, stamps=bool(trace))
    GS = GemmBS(A, SBM, stamps=bool(trace))
    A.raw('; @launch grid=(256,1,1) block=(256,1,1) lds=163840')
    A.raw('.amdgcn_target "amdgcn-amd-amdhsa--gfx950"')
    A.raw('.text')
    kernel_header(A, KNAME)
    A('s_cmp_ge_u32 s2, 256'); A('s_cbranch_scc1 L_exit_main')
    A('s_load_dwordx2 s[4:5], s[0:1], %d' % D_WS)
    A('s_load_dwordx2 s[6:7], s[0:1], %d' % D_DBG)
    if trace: A('s_memrealtime s[64:65]')
    A('s_getreg_b32 s16, hwreg(HW_REG_XCC_ID)')
    A('s_and_b32 s16, s16, 15')
    A('s_waitcnt lgkmcnt(0)')
    A('s_mov_b32 s8, s4'); A('s_mov_b32 s9, s5'); A('s_mov_b32 s10, %d' % WS_SIZE); A('s_mov_b32 s11, 0x00020000')
    A('v_cmp_eq_u32 vcc, 0, v0'); A('s_and_saveexec_b64 s[20:21], vcc'); A('s_cbranch_execz L_nt')
    A('s_lshl_b32 s17, s16, 2'); A('v_mov_b32 v1, s17'); A('v_mov_b32 v2, 1')
    A('global_atomic_add v3, v1, v2, s[6:7] sc0 sc1'); A('s_waitcnt vmcnt(0)')
    A('v_mov_b32 v1, 0'); A('ds_write_b32 v1, v3'); A('s_waitcnt lgkmcnt(0)')
    A.label('L_nt')
    A('s_mov_b64 exec, s[20:21]'); A('s_barrier')
    A('v_mov_b32 v1, 0'); A('ds_read_b32 v3, v1'); A('s_waitcnt lgkmcnt(0)'); A('v_readfirstlane_b32 s17, v3'); A('s_barrier')
    A('s_cmp_ge_u32 s17, 32'); A('s_cbranch_scc1 L_exit_main')
    if trace:
        A('s_memrealtime s[60:61]'); A('s_lshl_b32 s62, s16, 5'); A('s_add_u32 s62, s62, s17'); A('s_lshl_b32 s62, s62, 2'); A('s_add_u32 s62, s62, %d' % (TRC + 6 * MB))
        A('s_waitcnt lgkmcnt(0)'); A('v_mov_b32 v1, s64'); A('v_mov_b32 v2, 0'); A('buffer_store_dword v1, v2, s[8:11], s62 offen')
    A('s_cmp_ge_u32 s16, 2'); A('s_cbranch_scc1 worker')
    chain.gen_chain(A, intra=intra, kvwait=kvwait, finish='chain_to_worker', **(chain_kw or {}))
    A.label('chain_to_worker')
    A('v_mbcnt_lo_u32_b32 v0, -1, 0'); A('v_mbcnt_hi_u32_b32 v0, -1, v0')
    A('s_lshl_b32 s%d, s%d, 6' % (44, chain.sW)); A('v_add_u32 v0, s44, v0')
    A('s_add_u32 s%d, s%d, 6' % (sXW, chain.sX)); A('s_mov_b32 s%d, s%d' % (sTK, chain.sC))
    A('s_mov_b32 s%d, 8' % sIt)
    for n in (SRD_A, SRD_B, SRD_C, SRD_R): ws_srd(A, n)
    A('s_mov_b32 s%d, 0' % sChunk)
    A('s_barrier')
    A('s_branch streams')
    A.label('worker')
    A('s_sub_u32 s%d, s16, 2' % sXW); A('s_mov_b32 s%d, s17' % sTK)
    A('s_cmp_ge_u32 s%d, 6' % sXW); A('s_cbranch_scc1 L_exit_main')
    A('s_mov_b32 s%d, 0' % sIt)
    for n in (SRD_A, SRD_B, SRD_C, SRD_R): ws_srd(A, n)
    A('s_mov_b32 s%d, 0' % sS0); A('s_mov_b32 s%d, 0' % sS1); A('s_mov_b32 s%d, 0' % sS2); A('s_mov_b32 s%d, 0' % sChunk)
    A('s_lshl_b32 s%d, s%d, 5' % (sQi, sXW)); A('s_add_u32 s%d, s%d, s%d' % (sQi, sQi, sTK))
    if wpre:
        A('s_lshl_b32 s%d, s%d, 8' % (sT0, sQi)); A('v_add_u32 v20, s%d, v0' % sT0)
        A('v_lshlrev_b32 v21, 7, v20'); A('v_add_u32 v22, %d, v21' % (49152 * 128))
        for k_, karg in enumerate((A_WO, A_WV, A_WK, A_WQ)):
            mk_srd(A, SRD_C, karg, 8 * MB)
            A('buffer_load_dword v%d, v21, %s, 0 offen' % (24 + 2 * k_, srd(SRD_C)))
            A('buffer_load_dword v%d, v22, %s, 0 offen' % (25 + 2 * k_, srd(SRD_C)))
        ws_srd(A, SRD_C)
    A('v_mov_b32 v8, 0'); A('v_mov_b32 v9, 0'); A('v_mov_b32 v10, 0'); A('v_mov_b32 v11, 0')
    A('v_lshlrev_b32 v12, 4, v0')
    Lz1 = A.uid('z'); Lz2 = A.uid('z')
    A('s_cmp_ge_u32 s%d, 32' % sQi); A('s_cbranch_scc1 %s' % Lz1)
    A('s_lshl_b32 s%d, s%d, 12' % (sT0, sQi)); A('s_add_u32 s%d, s%d, %d' % (sT0, sT0, FLG_SEG))
    A('buffer_store_dwordx4 v[8:11], v12, s[8:11], s%d offen sc1' % sT0)
    A.label(Lz1)
    A('s_cmp_lg_u32 s%d, 32' % sQi); A('s_cbranch_scc1 %s' % Lz2)
    A('s_mov_b32 s%d, %d' % (sT0, GB0)); A('buffer_store_dwordx4 v[8:11], v12, s[8:11], s%d offen sc1' % sT0)
    A('s_mov_b32 s%d, %d' % (sT0, GB + 2048 * 2048)); A('buffer_store_dwordx4 v[8:11], v12, s[8:11], s%d offen sc1' % sT0)
    A.label(Lz2)
    A('s_waitcnt vmcnt(0)'); A('s_barrier')
    Lz3 = A.uid('z')
    A('v_cmp_eq_u32 vcc, 0, v0'); A('s_and_saveexec_b64 s[%d:%d], vcc' % (sMsk, sMsk + 1)); A('s_cbranch_execz %s' % Lz3)
    A('v_mov_b32 v250, 68'); A('v_mov_b32 v251, 1'); A('global_atomic_add v250, v251, s[6:7] sc1')
    A.label(Lz3)
    A('s_mov_b64 exec, s[%d:%d]' % (sMsk, sMsk + 1))
    mk_srd(A, SRD_R, A_X, 4 * MB)
    A('s_mov_b32 s%d, s%d' % (sChunk, sQi))
    A.label('ln_item')
    A('s_lshl_b32 s%d, s%d, 3' % (sRow, sChunk))
    unit_ln1(A)
    Lzw = A.uid('zw')
    A('s_mov_b32 s%d, 0' % sSp); A('v_mov_b32 v250, 68')
    A.label(Lzw)
    A('global_load_dword v251, v250, s[6:7] sc1')
    A('s_add_u32 s%d, s%d, 1' % (sSp, sSp)); A('s_cmp_gt_u32 s%d, %d' % (sSp, SPIN)); A('s_cbranch_scc1 worker_abort')
    A('s_waitcnt vmcnt(0)')
    A('v_readfirstlane_b32 s%d, v251' % sT0); A('s_nop 3'); A('s_cmp_lt_u32 s%d, 192' % sT0); A('s_cbranch_scc1 %s' % Lzw)
    A('s_lshl_b32 s%d, s%d, 2' % (sT0, sChunk)); A('s_add_u32 s%d, s%d, %d' % (sFlag, sT0, FXL))
    signal_flag(A)
    A('s_add_u32 s%d, s%d, 192' % (sChunk, sChunk)); A('s_cmp_lt_u32 s%d, 256' % sChunk); A('s_cbranch_scc1 ln_item')
    A('s_mov_b32 s%d, 0' % sChunk)
    ws_srd(A, SRD_R)
    A.label('qkv_next')
    A('s_cmp_ge_u32 s%d, 8' % sIt); A('s_cbranch_scc1 streams')
    A('s_lshr_b32 s%d, s%d, 4' % (sRB, sTK)); A('s_lshl_b32 s%d, s%d, 1' % (sT0, sIt)); A('s_add_u32 s%d, s%d, s%d' % (sRB, sRB, sT0))
    A('s_and_b32 s%d, s%d, 15' % (sT1, sTK))
    A('s_cmp_lt_u32 s%d, 4' % sXW); A('s_cselect_b32 s%d, 11, 10' % sT2)
    A('s_cmp_lt_u32 s%d, s%d' % (sT1, sT2)); A('s_cbranch_scc0 qkv_q')
    A('s_mul_i32 s%d, s%d, 6' % (sT3, sT1)); A('s_add_u32 s%d, s%d, s%d' % (sT3, sT3, sXW))
    A('s_lshr_b32 s%d, s%d, 5' % (sKS, sT3)); A('s_add_u32 s%d, s%d, 1' % (sKS, sKS)); A('s_and_b32 s%d, s%d, 31' % (sNT, sT3))
    A('s_branch qkv_go')
    A.label('qkv_q')
    A('s_sub_u32 s%d, s%d, s%d' % (sT3, sT1, sT2)); A('s_mul_i32 s%d, s%d, 5' % (sT4, sXW))
    A('s_sub_u32 s%d, s%d, 4' % (sT5, sXW)); A('s_mul_i32 s%d, s%d, 6' % (sT5, sT5)); A('s_add_u32 s%d, s%d, 20' % (sT5, sT5))
    A('s_cmp_lt_u32 s%d, 4' % sXW); A('s_cselect_b32 s%d, s%d, s%d' % (sT4, sT4, sT5))
    A('s_add_u32 s%d, s%d, s%d' % (sNT, sT3, sT4)); A('s_mov_b32 s%d, 0' % sKS)
    A.label('qkv_go')
    A('s_add_u32 s%d, s%d, 1' % (sIt, sIt))
    A('s_lshl_b32 s%d, s%d, 3' % (sT0, sKS)); A('s_add_u32 s%d, s%d, %d' % (sT0, sT0, A_WQ))
    A('s_load_dwordx2 s[%d:%d], s[0:1], s%d' % (SRD_B, SRD_B + 1, sT0))
    A('s_mov_b32 s%d, %d' % (SRD_B + 2, 8 * MB)); A('s_mov_b32 s%d, 0x00020000' % (SRD_B + 3))
    ws_srd(A, SRD_A); ws_srd(A, SRD_C)
    gemm_params(A, 2048, 8192, 8192, 16, 0)
    A('s_mul_i32 s%d, s%d, %d' % (sAoff, sRB, BM * 2048)); A('s_add_u32 s%d, s%d, %d' % (sAoff, sAoff, XLN))
    A('s_lshl_b32 s%d, s%d, 8' % (sBoff, sNT))
    A('s_mul_i32 s%d, s%d, %d' % (sCoff, sRB, BM * 8192)); A('s_add_u32 s%d, s%d, s%d' % (sCoff, sCoff, sBoff))
    A('s_lshl_b32 s%d, s%d, 24' % (sT0, sKS)); A('s_add_u32 s%d, s%d, s%d' % (sCoff, sCoff, sT0)); A('s_add_u32 s%d, s%d, %d' % (sCoff, sCoff, QX))
    A('s_mul_i32 s%d, s%d, 3' % (sT0, sRB)); A('s_add_u32 s%d, s%d, s%d' % (sT0, sT0, sKS))
    A('s_lshl_b32 s%d, s%d, 5' % (sT0, sT0)); A('s_add_u32 s%d, s%d, s%d' % (sT0, sT0, sNT))
    A('s_lshl_b32 s%d, s%d, 2' % (sT0, sT0)); A('s_add_u32 s%d, s%d, %d' % (sFlag, sT0, FQKV))
    A('s_mov_b32 s%d, 1' % sItem)
    A('s_and_b32 s%d, s%d, 15' % (sShI, sTK)); A('s_mov_b32 s%d, 8' % sShR)
    if trace:
        A('s_lshl_b32 s%d, s%d, 5' % (sQi, sXW)); A('s_add_u32 s%d, s%d, s%d' % (sQi, sQi, sTK)); A('s_lshl_b32 s%d, s%d, 3' % (sQi, sQi))
        A('s_add_u32 s%d, s%d, s%d' % (sQi, sQi, sIt)); A('s_add_u32 s%d, s%d, 22527' % (sQi, sQi))
        A('s_memrealtime s[98:99]'); A('s_memrealtime s[100:101]')
    A('s_waitcnt lgkmcnt(0)')
    A('s_cmp_lg_u32 s%d, 1' % sIt); A('s_cbranch_scc1 qkv_dep')
    G.load_b()
    A.label('qkv_dep')
    A('s_lshl_b32 s%d, s%d, 6' % (sDep, sRB)); A('s_add_u32 s%d, s%d, %d' % (sDep, sDep, FXL)); A('s_mov_b32 s%d, 16' % sCnt)
    G.setup(); wait_flags(A)
    A('s_branch gemm_main')

    def decode(src):
        A('s_bfe_u32 s%d, s%d, 0x60016' % (sRB, src)); A('s_bfe_u32 s%d, s%d, 0x50011' % (sNT, src)); A('s_bfe_u32 s%d, s%d, 0x3000e' % (sKS, src))
        A('s_bfe_u32 s%d, s%d, 0x60008' % (sK0, src)); A('s_bfe_u32 s%d, s%d, 0x50003' % (sNKi, src))
    def blk_rows():
        A('s_lshl_b32 s%d, s%d, 6' % (sRow0, sRB)); A('s_mov_b32 s%d, 0' % sBig)
    def own(base, code):
        code(); A('s_lshl_b32 s%d, s%d, 2' % (sT0, sT0)); A('s_add_u32 s%d, s%d, %d' % (sFlag, sT0, base))
    def btouch():
        A('v_and_b32 v200, 63, v0'); A('v_lshrrev_b32 v201, 6, v0')
        A('v_lshrrev_b32 v202, 1, v200'); A('v_lshl_add_u32 v202, v201, 8, v202')
        A('v_and_b32 v203, 1, v200'); A('v_lshlrev_b32 v203, 7, v203')
        A('s_lshl_b32 s%d, s%d, 6' % (sT4, sNk)); A('v_mov_b32 v206, 0x7ff00000')
        for j in range(8):
            A('v_add_u32 v204, %d, v202' % (32 * j)); A('v_mul_lo_u32 v205, v204, s%d' % sLdb); A('v_add_u32 v205, v205, v203')
            A('v_cmp_gt_u32 vcc, s%d, v204' % sT4); A('s_nop 1'); A('v_cndmask_b32 v205, v206, v205, vcc')
            A('buffer_load_dword v%d, v205, %s, s%d offen' % (208 + j, srd(SRD_B), sBoff))
    types = {
        T_O: dict(split=True, ownbase=FO, abuf=OX, lda=8192, bk=A_WO, bs=8 * MB, ldb=2048, p=PO),
        T_W4: dict(split=True, ownbase=FW4, abuf=UB, lda=7168, bk=B_W4, bs=7 * MB, ldb=2048, p=P4),
        T_W1: dict(split=False, ownbase=FW1, ostr=8, abuf=ZB, bk=B_W1, bs=2 * MB, ldb=2048, c=GB, ldc=2048, mode=1),
        T_W2: dict(split=False, ownbase=FW2, ostr=8, abuf=GB - 2048, bk=B_W2, bs=2 * MB, ldb=2048, c=X1B, ldc=2048, mode=2, shift=1, resid=YB),
        T_W3: dict(split=False, ownbase=FW3, ostr=32, abuf=Z2B, bk=B_W3, bs=7 * MB, ldb=7168, c=UB, ldc=7168, mode=1),
    }
    def gemm_setup(ty):
        d = types[ty]
        mk_srd(A, SRD_B, d['bk'], d['bs']); ws_srd(A, SRD_A); ws_srd(A, SRD_C); ws_srd(A, SRD_R)
        if d['split']:
            own(d['ownbase'], lambda: (A('s_lshl_b32 s%d, s%d, 6' % (sT0, sRB)), A('s_lshl_b32 s%d, s%d, 3' % (sT1, sKS)), A('s_add_u32 s%d, s%d, s%d' % (sT0, sT0, sT1)), A('s_add_u32 s%d, s%d, s%d' % (sT0, sT0, sNT))))
            gemm_params(A, d['lda'], d['ldb'], 2048, 0, 0)
            A('s_mov_b32 s%d, s%d' % (sNk, sNKi)); A('s_mov_b32 s%d, s%d' % (sShI, sNT)); A('s_mov_b32 s%d, 16' % sShR)
            A('s_mul_i32 s%d, s%d, %d' % (sAoff, sRow0, d['lda'])); A('s_lshl_b32 s%d, s%d, 7' % (sT0, sK0)); A('s_add_u32 s%d, s%d, s%d' % (sAoff, sAoff, sT0))
            A('s_add_u32 s%d, s%d, %d' % (sAoff, sAoff, d['abuf']))
            A('s_mul_i32 s%d, s%d, %d' % (sBoff, sK0, 64 * d['ldb'])); A('s_lshl_b32 s%d, s%d, 8' % (sT0, sNT)); A('s_add_u32 s%d, s%d, s%d' % (sBoff, sBoff, sT0))
            A('s_lshl_b32 s%d, s%d, 11' % (sCoff, sRow0)); A('s_add_u32 s%d, s%d, s%d' % (sCoff, sCoff, sT0))
            A('s_lshl_b32 s%d, s%d, 22' % (sT0, sKS)); A('s_add_u32 s%d, s%d, s%d' % (sCoff, sCoff, sT0)); A('s_add_u32 s%d, s%d, %d' % (sCoff, sCoff, d['p']))
        else:
            own(d['ownbase'], lambda: (A('s_mul_i32 s%d, s%d, %d' % (sT0, sRB, d['ostr'])), A('s_add_u32 s%d, s%d, s%d' % (sT0, sT0, sNT))))
            gemm_params(A, 2048, d['ldb'], d['ldc'], 16, d['mode'], d.get('shift', 0))
            A('s_mov_b32 s%d, s%d' % (sShI, sK0)); A('s_cmp_eq_u32 s%d, 7' % sNKi); A('s_cselect_b32 s%d, 19, 16' % sShR)
            A('s_lshl_b32 s%d, s%d, 11' % (sAoff, sRow0)); A('s_add_u32 s%d, s%d, %d' % (sAoff, sAoff, d['abuf']))
            A('s_lshl_b32 s%d, s%d, 8' % (sBoff, sNT))
            A('s_mul_i32 s%d, s%d, %d' % (sCoff, sRow0, d['ldc'])); A('s_add_u32 s%d, s%d, s%d' % (sCoff, sCoff, sBoff))
            if 'resid' in d: A('s_add_u32 s%d, s%d, %d' % (sRoff, sCoff, d['resid']))
            A('s_add_u32 s%d, s%d, %d' % (sCoff, sCoff, d['c']))

    TB = build_table()
    A.label('streams')
    A('s_getpc_b64 s[%d:%d]' % (sTab, sTab + 1))
    A.label('q_pc')
    A('s_add_u32 s%d, s%d, qtable-q_pc' % (sTab, sTab)); A('s_addc_u32 s%d, s%d, 0' % (sTab + 1, sTab + 1))
    A('s_lshl_b32 s%d, s%d, 5' % (sT0, sXW)); A('s_add_u32 s%d, s%d, s%d' % (sT0, sT0, sTK)); A('s_lshl_b32 s%d, s%d, 4' % (sT0, sT0))
    A('s_load_dword s%d, s[%d:%d], s%d' % (sS0, sTab, sTab + 1, sT0))
    A('s_add_u32 s%d, s%d, 4' % (sT1, sT0)); A('s_load_dword s%d, s[%d:%d], s%d' % (sS1, sTab, sTab + 1, sT1))
    A('s_add_u32 s%d, s%d, 8' % (sT2, sT0)); A('s_load_dword s%d, s[%d:%d], s%d' % (sS2, sTab, sTab + 1, sT2))
    A('s_waitcnt lgkmcnt(0)')
    A('s_lshr_b32 s%d, s%d, 28' % (sT2, sS0))
    A('s_cmp_eq_u32 s%d, %d' % (sT2, T_ATT)); A('s_cbranch_scc1 att_loop')
    A('s_cmp_eq_u32 s%d, %d' % (sT2, T_ROWLOOP)); A('s_cbranch_scc1 u_rowloop')
    A.label('ms_next')
    A('s_cmp_lg_u32 s%d, 0' % sS0); A('s_cbranch_scc1 ms_have')
    A('s_mov_b32 s%d, s%d' % (sS0, sS1)); A('s_mov_b32 s%d, s%d' % (sS1, sS2)); A('s_mov_b32 s%d, 0' % sS2)
    A('s_or_b32 s%d, s%d, s%d' % (sT0, sS0, sS1)); A('s_cmp_eq_u32 s%d, 0' % sT0); A('s_cbranch_scc1 L_exit_main')
    A('s_branch ms_next')
    A.label('ms_have')
    decode(sS0); blk_rows()
    A('s_lshr_b32 s%d, s%d, 28' % (sT5, sS0))
    for ty in types:
        Lt = A.uid('mt')
        A('s_cmp_lg_u32 s%d, %d' % (sT5, ty)); A('s_cbranch_scc1 %s' % Lt)
        gemm_setup(ty)
        A.label(Lt)
    G.load_b()
    A.label('ms_top')
    A('s_cmp_eq_u32 s%d, 0' % sS0); A('s_cbranch_scc1 ms_next')
    A('s_bfe_u32 s%d, s%d, 0x60016' % (sT0, sS0)); A('s_lshr_b32 s%d, s%d, 28' % (sT5, sS0))
    A('s_mov_b32 s%d, 16' % sCnt)
    A('s_lshl_b32 s%d, s%d, 7' % (sT2, sT0))
    A('s_add_u32 s%d, s%d, %d' % (sDep, sT2, FATT))
    A('s_add_u32 s%d, s%d, %d' % (sT3, sT2, FR1)); A('s_cmp_eq_u32 s%d, %d' % (sT5, T_W1)); A('s_cselect_b32 s%d, s%d, s%d' % (sDep, sT3, sDep))
    A('s_add_u32 s%d, s%d, %d' % (sT3, sT2, FR2)); A('s_cmp_eq_u32 s%d, %d' % (sT5, T_W3)); A('s_cselect_b32 s%d, s%d, s%d' % (sDep, sT3, sDep))
    A('s_add_u32 s%d, s%d, %d' % (sT3, sT2, FW3)); A('s_cmp_eq_u32 s%d, %d' % (sT5, T_W4)); A('s_cselect_b32 s%d, s%d, s%d' % (sDep, sT3, sDep)); A('s_cselect_b32 s%d, 28, s%d' % (sCnt, sCnt))
    Lw2 = A.uid('m2')
    A('s_cmp_lg_u32 s%d, %d' % (sT5, T_W2)); A('s_cbranch_scc1 %s' % Lw2)
    A('s_sub_u32 s%d, s%d, 1' % (sT2, sT0)); A('s_cmp_eq_u32 s%d, 0' % sT0); A('s_cselect_b32 s%d, 0, s%d' % (sT2, sT2))
    A('s_add_u32 s%d, s%d, 1' % (sT3, sT0)); A('s_cmp_eq_u32 s%d, %d' % (sT0, NB - 1)); A('s_cselect_b32 s%d, s%d, s%d' % (sT3, sT0, sT3))
    A('s_sub_u32 s%d, s%d, s%d' % (sT3, sT3, sT2)); A('s_add_u32 s%d, s%d, 1' % (sT3, sT3)); A('s_lshl_b32 s%d, s%d, 3' % (sCnt, sT3))
    A('s_lshl_b32 s%d, s%d, 5' % (sT2, sT2)); A('s_add_u32 s%d, s%d, %d' % (sDep, sT2, FW1))
    A.label(Lw2)
    A('s_mov_b32 s%d, s%d' % (sItem, sS0))
    A('s_add_u32 s%d, s%d, %d' % (sS0, sS0, 1 << 22)); A('s_bfe_u32 s%d, s%d, 0x60016' % (sT0, sS0))
    A('s_and_b32 s%d, s%d, 7' % (sT1, sS0)); A('s_add_u32 s%d, s%d, %d' % (sT1, sT1, NBIG))
    A('s_cmp_eq_u32 s%d, s%d' % (sT0, sT1)); A('s_cselect_b32 s%d, 0, s%d' % (sS0, sS0))
    decode(sItem); blk_rows()
    A('s_lshr_b32 s%d, s%d, 28' % (sT5, sItem))
    if trace:
        A('s_lshl_b32 s%d, s%d, 11' % (sQi, sT5)); A('s_mul_i32 s%d, s%d, 48' % (sT0, sRB)); A('s_add_u32 s%d, s%d, s%d' % (sQi, sQi, sT0))
        A('s_lshl_b32 s%d, s%d, 3' % (sT0, sKS)); A('s_add_u32 s%d, s%d, s%d' % (sQi, sQi, sT0)); A('s_add_u32 s%d, s%d, s%d' % (sQi, sQi, sNT))
        A('s_memrealtime s[98:99]')
    A('s_mov_b32 s%d, 0' % sItem)
    for ty in types:
        Lt = A.uid('mr')
        A('s_cmp_lg_u32 s%d, %d' % (sT5, ty)); A('s_cbranch_scc1 %s' % Lt)
        gemm_setup(ty)
        A.label(Lt)
    GS.setup(); wait_flags(A); A('s_branch gemm_main_s')

    A.label('att_loop')
    A('s_bfe_u32 s%d, s%d, 0x50011' % (sChunk, sS0))
    sAS = sD1; sAL = sD2
    A('s_bfe_u32 s%d, s%d, 0x60016' % (sAS, sS0))
    A('s_bfe_u32 s%d, s%d, 0x60008' % (sAL, sS0))
    A('s_cmp_eq_u32 s%d, 0' % sAL); A('s_cselect_b32 s%d, 64, s%d' % (sAL, sAL))
    A.label('att_next')
    A('s_cmp_ge_u32 s%d, s%d' % (sAS, sAL)); A('s_cbranch_scc1 att_fin')
    A('s_mov_b32 s%d, s%d' % (sRB, sAS)); A('s_and_b32 s%d, s%d, 7' % (sNT, sChunk)); A('s_add_u32 s%d, s%d, 2' % (sAS, sAS))
    if trace:
        A('s_lshl_b32 s%d, s%d, 3' % (sQi, sRB)); A('s_add_u32 s%d, s%d, s%d' % (sQi, sQi, sNT)); A('s_add_u32 s%d, s%d, 2048' % (sQi, sQi))
        A('s_memrealtime s[98:99]')
    wave_id(A, sSp)
    Lad = A.uid('ad'); Lap = A.uid('ap')
    A('s_cmp_lg_u32 s%d, 0' % sSp); A('s_cbranch_scc1 %s' % Lad)
    A('s_lshr_b32 s%d, s%d, 2' % (sT5, sRB)); A('s_mul_i32 s%d, s%d, 384' % (sT0, sT5)); A('s_lshl_b32 s%d, s%d, 4' % (sT1, sNT)); A('s_add_u32 s%d, s%d, s%d' % (sT0, sT0, sT1))
    A('s_add_u32 s%d, s%d, %d' % (sT0, sT0, FQKV))
    A('v_lshrrev_b32 v248, 2, v0'); A('v_lshlrev_b32 v248, 7, v248'); A('v_and_b32 v249, 3, v0'); A('v_lshl_add_u32 v248, v249, 2, v248'); A('v_add_u32 v248, s%d, v248' % sT0)
    A('s_lshl_b32 s%d, s%d, 10' % (sT0, sRB)); A('s_lshl_b32 s%d, s%d, 7' % (sT1, sNT)); A('s_add_u32 s%d, s%d, s%d' % (sT0, sT0, sT1)); A('s_add_u32 s%d, s%d, %d' % (sT0, sT0, FLG_SEG - 128))
    A('v_lshlrev_b32 v249, 2, v0'); A('v_add_u32 v249, s%d, v249' % sT0)
    A('v_cmp_gt_u32 vcc, 32, v0'); A('s_nop 1'); A('v_cndmask_b32 v250, v249, v248, vcc')
    A('s_mov_b32 s%d, 0xfff' % sMsk); A('s_mov_b32 s%d, -1' % (sMsk + 1)); A('s_mov_b64 exec, s[%d:%d]' % (sMsk, sMsk + 1))
    A('s_mov_b32 s%d, 0' % sSp)
    A.label(Lap)
    A('buffer_load_dword v251, v250, s[8:11], 0 offen sc1')
    A('s_add_u32 s%d, s%d, 1' % (sSp, sSp)); A('s_cmp_gt_u32 s%d, %d' % (sSp, SPIN)); A('s_cbranch_scc1 worker_abort')
    A('s_waitcnt vmcnt(0)')
    A('v_cmp_eq_u32 vcc, 0, v251'); A('s_cbranch_vccz %s_ok' % Lap)
    A('s_sleep 2'); A('s_branch %s' % Lap)
    A.label(Lap + '_ok')
    A('s_mov_b64 exec, -1')
    A.label(Lad)
    A('s_barrier')
    if trace: A('s_memrealtime s[100:101]')
    def code():
        A('s_lshr_b32 s%d, s%d, 1' % (sT0, sRB)); A('s_lshl_b32 s%d, s%d, 5' % (sT0, sT0))
        A('s_and_b32 s%d, s%d, 1' % (sT1, sRB)); A('s_lshl_b32 s%d, s%d, 3' % (sT1, sT1)); A('s_add_u32 s%d, s%d, s%d' % (sT0, sT0, sT1))
        A('s_add_u32 s%d, s%d, s%d' % (sT0, sT0, sNT))
    own(FATT, code)
    A('s_mov_b32 s%d, s%d' % (sSeg, sRB)); A('s_lshl_b32 s%d, s%d, 2' % (sHead, sNT))
    A('s_mov_b32 s%d, 3' % sItem)
    unit_att(A)
    A('s_branch unit_done')

    A.label('att_fin')
    A('s_mov_b32 s%d, 0' % sS0)
    A('s_branch ms_next')
    sN1, sN2, sN3 = sS0, sS1, sS2
    A.label('u_rowloop')
    A('s_bfe_u32 s%d, s%d, 0x50011' % (sChunk, sS0))
    A('s_mov_b32 s%d, 0' % sN1); A('s_mov_b32 s%d, 0' % sN2); A('s_mov_b32 s%d, 0' % sN3)
    A.label('rl_top')
    A('s_cmp_ge_u32 s%d, 16' % sN3); A('s_cbranch_scc1 L_exit_main')
    wave_id(A, sSp)
    A('s_cmp_lg_u32 s%d, 0' % sSp); A('s_cbranch_scc1 rl_wait')
    A('v_lshlrev_b32 v250, 2, v0'); A('s_mov_b32 s%d, 0' % sSp)
    A.label('rl_poll')
    A('s_lshr_b32 s%d, s%d, 4' % (sT1, sChunk))
    for reg, base, sh, n_ in ((247, FO, 8, sN1), (248, FW2, 5, sN2), (249, FW4, 8, sN3)):
        A('s_min_u32 s%d, s%d, 15' % (sT0, n_)); A('s_lshl_b32 s%d, s%d, 1' % (sT0, sT0)); A('s_add_u32 s%d, s%d, s%d' % (sT0, sT0, sT1))
        A('s_lshl_b32 s%d, s%d, %d' % (sT0, sT0, sh)); A('s_add_u32 s%d, s%d, %d' % (sT0, sT0, base))
        A('buffer_load_dword v%d, v250, s[8:11], s%d offen sc1' % (reg, sT0))
    A('s_add_u32 s%d, s%d, 1' % (sSp, sSp)); A('s_cmp_gt_u32 s%d, %d' % (sSp, SPIN)); A('s_cbranch_scc1 worker_abort')
    A('s_waitcnt vmcnt(0)')
    A('s_mov_b32 s%d, 0' % sT5)
    for code_, reg, cnt, n_ in ((1, 247, 48, sN1), (2, 248, 8, sN2), (3, 249, 48, sN3)):
        Ln = A.uid('rn')
        A('s_cmp_lg_u32 s%d, 0' % sT5); A('s_cbranch_scc1 %s' % Ln)
        A('s_cmp_ge_u32 s%d, 16' % n_); A('s_cbranch_scc1 %s' % Ln)
        A('v_cmp_eq_u32 vcc, 0, v%d' % reg)
        if cnt == 48: A('s_and_b32 vcc_hi, vcc_hi, 0xffff')
        else: A('s_and_b32 vcc_lo, vcc_lo, 0xff'); A('s_mov_b32 vcc_hi, 0')
        A('s_cmp_lg_u64 vcc, 0'); A('s_cbranch_scc1 %s' % Ln)
        A('s_mov_b32 s%d, %d' % (sT5, code_))
        A.label(Ln)
    A('s_cmp_lg_u32 s%d, 0' % sT5); A('s_cbranch_scc1 rl_got')
    A('s_sleep 2'); A('s_branch rl_poll')
    A.label('rl_got')
    A('v_mov_b32 v250, 163832'); A('v_mov_b32 v251, s%d' % sT5); A('s_mov_b64 exec, 1'); A('ds_write_b32 v250, v251'); A('s_mov_b64 exec, -1'); A('s_waitcnt lgkmcnt(0)')
    A.label('rl_wait')
    A('s_barrier')
    A('v_mov_b32 v250, 163832'); A('ds_read_b32 v251, v250'); A('s_waitcnt lgkmcnt(0)'); A('v_readfirstlane_b32 s%d, v251' % sT5)
    A('s_barrier')
    if trace: A('s_memrealtime s[98:99]'); A('s_memrealtime s[100:101]')
    A('s_mov_b32 s%d, 2' % sItem)
    for c_ in (2, 3):
        A('s_cmp_eq_u32 s%d, %d' % (sT5, c_)); A('s_cbranch_scc1 rl_%d' % c_)
    def pick(n_, T_, lab):
        A('s_lshl_b32 s%d, s%d, 1' % (sRB, n_)); A('s_lshr_b32 s%d, s%d, 4' % (sT1, sChunk)); A('s_add_u32 s%d, s%d, s%d' % (sRB, sRB, sT1)); A('s_and_b32 s%d, s%d, 15' % (sNT, sChunk))
        if trace:
            A('s_mul_i32 s%d, s%d, 48' % (sQi, sRB)); A('s_add_u32 s%d, s%d, s%d' % (sQi, sQi, sNT)); A('s_add_u32 s%d, s%d, %d' % (sQi, sQi, T_ * 2048))
        A('s_add_u32 s%d, s%d, 1' % (n_, n_)); blk_rows(); A('s_branch %s' % lab)
    pick(sN1, T_R1, 'u_r1')
    A.label('rl_2'); pick(sN2, T_R2, 'u_r2')
    A.label('rl_3'); pick(sN3, T_R3, 'u_r3')
    def rowu(lab, ownbase, fn, pre=None):
        A.label(lab)
        if ownbase is not None:
            own(ownbase, lambda: (A('s_lshl_b32 s%d, s%d, 5' % (sT0, sRB)), A('s_add_u32 s%d, s%d, s%d' % (sT0, sT0, sNT))))
        if pre: pre()
        A('s_lshl_b32 s%d, s%d, 2' % (sT0, sNT)); A('s_add_u32 s%d, s%d, s%d' % (sRow, sRow0, sT0))
        fn(A)
        A('s_branch %s' % ('unit_done' if ownbase is not None else 'unit_nosig'))
    rowu('u_r1', FR1, unit_r1, lambda: mk_srd(A, SRD_R, A_X, 4 * MB))
    rowu('u_r2', FR2, unit_r2)
    rowu('u_r3', None, unit_r3, lambda: mk_srd(A, SRD_C, D_OUT, 4 * MB))

    def epis(G_, sfx):
        A('s_cmp_eq_u32 s%d, 1' % sMode); A('s_cbranch_scc1 epi1%s' % sfx)
        A('s_cmp_eq_u32 s%d, 2' % sMode); A('s_cbranch_scc1 epi2%s' % sfx)
        G_.epi_bf16(); A('s_branch unit_done')
        A.label('epi1' + sfx); G_.epi_bf16(gelu=True); A('s_branch unit_done')
        A.label('epi2' + sfx); G_.epi_bf16(resid=True); A('s_branch unit_done')
    A.label('gemm_main')
    G.mainloop()
    G.epi_bf16(); A('s_branch unit_done')
    A.label('gemm_main_s')
    GS.mainloop()
    epis(GS, 's')
    def trace_out():
        if trace:
            A('s_memrealtime s[68:69]'); A('s_waitcnt lgkmcnt(0)')
            Lt = A.uid('tr')
            A('v_cmp_eq_u32 vcc, 0, v0'); A('s_and_saveexec_b64 s[%d:%d], vcc' % (sMsk, sMsk + 1)); A('s_cbranch_execz %s' % Lt)
            A('v_mov_b32 v240, s98'); A('v_mov_b32 v241, s100'); A('v_mov_b32 v242, s66'); A('v_mov_b32 v243, s68')
            A('s_sub_u32 s%d, s62, s60' % sT1); A('s_sub_u32 s%d, s64, s62' % sT2)
            A('v_mov_b32 v244, s%d' % sT1); A('v_mov_b32 v245, s%d' % sT2); A('v_mov_b32 v246, 0'); A('v_mov_b32 v247, 0')
            A('s_lshl_b32 s%d, s%d, 5' % (sT0, sQi)); A('s_add_u32 s%d, s%d, %d' % (sT0, sT0, TRC)); A('v_mov_b32 v250, 0')
            A('buffer_store_dwordx4 v[240:243], v250, s[8:11], s%d offen' % sT0)
            A('buffer_store_dwordx4 v[244:247], v250, s[8:11], s%d offen offset:16' % sT0)
            A.label(Lt)
            A('s_mov_b64 exec, s[%d:%d]' % (sMsk, sMsk + 1))
    A.label('unit_done')
    if trace: A('s_memrealtime s[66:67]')
    signal_flag(A)
    trace_out()
    A('s_cmp_eq_u32 s%d, 1' % sItem); A('s_cbranch_scc1 qkv_next')
    A('s_cmp_eq_u32 s%d, 2' % sItem); A('s_cbranch_scc1 rl_top')
    A('s_cmp_eq_u32 s%d, 3' % sItem); A('s_cbranch_scc1 att_next')
    A('s_branch ms_top')
    A.label('unit_nosig')
    if trace: A('s_memrealtime s[66:67]')
    A('s_waitcnt vmcnt(0)'); A('s_barrier')
    trace_out()
    A('s_branch rl_top')
    A.label('worker_abort')
    A('s_mov_b64 exec, 1')
    A('v_mov_b32 v250, 1'); A('v_mov_b32 v251, 132')
    A('global_atomic_add v251, v250, s[6:7] sc1'); A('s_waitcnt vmcnt(0)')
    A.label('L_exit_main')
    A('s_endpgm')
    A.raw('.p2align 2')
    A.raw('.type qtable,@object')
    A.label('qtable')
    for x in range(8):
        for t in range(32):
            A.raw('    .long ' + ', '.join('0x%08x' % w for w in TB[x, t] + [0]))
    A.raw('.section .rodata,"a"')
    A.raw('.p2align 6'); kernel_desc(A, KNAME)
    return A.text()
if __name__ == '__main__':
    kw = {}
    for x in sys.argv[2:]:
        k, v = x.split('=')
        kw[k] = v
    ck = dict(rearly=int(kw.pop('rearly', 5)), vdefer=int(kw.pop('vdefer', 0)), sel=int(kw.pop('sel', 0)))
    if kw.get('trace'): ck['steptrace'] = True
    if kw.pop('rt', None): ck['rt'] = 1
    for k_ in ('touch', 'd1', 'd4', 'd6'):
        if k_ in kw: ck[k_] = int(kw.pop(k_))
    kw['chain_kw'] = ck
    open(sys.argv[1], 'w').write(gen(**kw))
```

```python
from asmlib import *
from layout import *
import struct, math
from gemm2 import SRD_WS, SRD_A, SRD_B, SRD_C, SRD_R, sAoff, sBoff, sCoff, sLda, sLdb, sLdc, sNk, sKi, sStR, sStW, sRoff, sB64, sMode, sW, sWm, sWn, sT0, sT1, sT2, sT3, sT4, sT5, sA2, sShift, sK1, sK2, sMX, sMW, srd, fhex
import gemm3

class GemmBS(gemm3.Gemm):
    NSL = 8
    def __init__(self, A, BM=128, stamps=False):
        self.A = A; self.stamps = stamps
        self.BM = BM; self.TM = BM // 16; self.TN = 2
        self.SLOT = BM * 128; self.ND = BM // 32
        self.vLane, self.vG, self.vC = 1, 2, 3
        self.vXd = 4
        self.vXa = 8
        self.vT = 24
        self.set = [32, 64]
        self.ACC = 128
        self.look = self.NSL - 1
    def acc(self, tm, tn): return self.ACC + (tm * 2 + tn) * 4
    def lanes(self):
        A = self.A
        A('v_and_b32 v%d, 63, v0' % self.vLane); A('v_lshrrev_b32 v%d, 6, v0' % self.vT); A('s_nop 0')
        A('v_readfirstlane_b32 s%d, v%d' % (sW, self.vT))
        A('v_lshrrev_b32 v%d, 4, v%d' % (self.vG, self.vLane)); A('v_and_b32 v%d, 15, v%d' % (self.vC, self.vLane)); A('s_nop 1')
    def load_b(self):
        A = self.A
        self.lanes()
        t0, t1, t2, t3 = self.vT, self.vT + 1, self.vT + 2, self.vT + 3
        G, C = self.vG, self.vC
        vWd, vWr = 12, 16
        A('v_lshrrev_b32 v%d, 1, v%d' % (t0, C)); A('v_and_b32 v%d, 1, v%d' % (t3, C)); A('s_lshl_b32 s%d, s%d, 4' % (sT0, sW))
        for jj in range(4):
            A('v_xor_b32 v%d, v%d, v%d' % (t1, t0, G))
            if (jj >> 1) & 1: A('v_xor_b32 v%d, 4, v%d' % (t1, t1))
            A('v_lshlrev_b32 v%d, 5, v%d' % (t1, t1)); A('v_lshl_add_u32 v%d, v%d, 4, v%d' % (t1, t3, t1))
            A('s_add_u32 s%d, s%d, %d' % (sT1, sT0, 4 * jj)); A('v_add_u32 v%d, s%d, v%d' % (t2, sT1, G))
            A('v_mul_lo_u32 v%d, v%d, s%d' % (t2, t2, sLdb)); A('v_add_u32 v%d, v%d, v%d' % (t2, t2, t1))
            A('v_subrev_u32 v%d, %d, v%d' % (vWd + jj, 1024 * jj, t2))
        A('v_lshrrev_b32 v%d, 2, v%d' % (t0, C)); A('v_and_b32 v%d, 1, v%d' % (t1, G)); A('v_lshl_add_u32 v%d, v%d, 2, v%d' % (t1, t1, t0))
        A('v_lshl_add_u32 v%d, v%d, 3, v%d' % (t0, G, t0)); A('v_lshlrev_b32 v%d, 8, v%d' % (t0, t0))
        A('v_and_b32 v%d, 3, v%d' % (t2, C)); A('v_lshl_add_u32 v%d, v%d, 3, v%d' % (t0, t2, t0))
        A('s_lshl_b32 s%d, s%d, 1' % (sT0, sW))
        for tn in range(2):
            A('s_add_u32 s%d, s%d, %d' % (sT1, sT0, tn)); A('v_xor_b32 v%d, s%d, v%d' % (t2, sT1, t1)); A('v_lshl_add_u32 v%d, v%d, 5, v%d' % (vWr + tn, t2, t0))
        A('s_lshl_b32 s%d, s%d, 6' % (sB64, sLdb))
        A('s_lshl_b32 s%d, s%d, 12' % (sMW, sW))
        A('s_mov_b32 s%d, s%d' % (sT4, sBoff))
        A('s_mov_b32 s%d, 0' % sKi)
        def issue(g):
            for s_ in range(4):
                A('s_cmp_lt_u32 s%d, s%d' % (sKi, sNk)); A('s_cselect_b32 s%d, s%d, 0x70000000' % (sT3, sT4))
                A('s_add_u32 m0, s%d, %d' % (sMW, (g & 1) * 65536 + s_ * 16384)); A('s_add_u32 s%d, s%d, 1' % (sKi, sKi))
                for jj in range(4):
                    A('buffer_load_dwordx4 v%d, %s, s%d offen offset:%d lds' % (vWd + jj, srd(SRD_B), sT3, 1024 * jj))
                A('s_add_u32 s%d, s%d, s%d' % (sT4, sT4, sB64))
        A('v_add_u32 v%d, 65536, v%d' % (vWr + 2, vWr)); A('v_add_u32 v%d, 65536, v%d' % (vWr + 3, vWr + 1))
        issue(0); issue(1)
        for g in range(4):
            A('s_waitcnt vmcnt(%d)' % (16 if g < 3 else 0)); A('s_barrier')
            for s_ in range(4):
                st = 4 * g + s_
                for kk in range(2):
                    for tn in range(2):
                        for h in range(2):
                            Rg = 16 * st + 8 * kk + 4 * tn + 2 * h
                            A('ds_read_b64_tr_b16 a[%d:%d], v%d offset:%d' % (Rg, Rg + 1, vWr + 2 * (g & 1) + tn, s_ * 16384 + kk * 8192 + h * 1024))
                A('s_waitcnt lgkmcnt(0)')
            A('s_barrier')
            if g + 2 < 4: issue(g + 2)
    def setup(self):
        A = self.A
        self.lanes()
        t0, t1, t2 = self.vT, self.vT + 1, self.vT + 2
        L, G, C = self.vLane, self.vG, self.vC
        A('v_lshrrev_b32 v%d, 3, v%d' % (t0, L)); A('v_and_b32 v%d, 7, v%d' % (t1, L)); A('v_xor_b32 v%d, v%d, v%d' % (t1, t1, t0)); A('v_lshlrev_b32 v%d, 4, v%d' % (t1, t1))
        A('s_mul_i32 s%d, s%d, %d' % (sT0, sW, self.BM // 4))
        for jj in range(self.ND):
            A('s_add_u32 s%d, s%d, %d' % (sT1, sT0, 8 * jj)); A('v_add_u32 v%d, s%d, v%d' % (t2, sT1, t0))
            A('v_mul_lo_u32 v%d, v%d, s%d' % (t2, t2, sLda)); A('v_add_u32 v%d, v%d, v%d' % (t2, t2, t1))
            A('v_subrev_u32 v%d, %d, v%d' % (self.vXd + jj, 1024 * jj, t2))
        A('s_mul_i32 s%d, s%d, %d' % (sMX, sW, self.ND * 1024))
        A('v_and_b32 v%d, 7, v%d' % (t0, C)); A('v_xor_b32 v%d, v%d, v%d' % (t0, t0, G)); A('v_lshlrev_b32 v%d, 4, v%d' % (t0, t0)); A('v_lshl_add_u32 v%d, v%d, 7, v%d' % (self.vXa, C, t0))
        A('v_xor_b32 v%d, 64, v%d' % (self.vXa + 1, self.vXa))
        A('v_add_u32 v%d, 65536, v%d' % (self.vXa + 2, self.vXa)); A('v_add_u32 v%d, 65536, v%d' % (self.vXa + 3, self.vXa + 1))
    def xreads(self, st, kk, slot):
        base = self.set[st]; off = slot * self.SLOT; wi = off // 65536; off -= wi * 65536
        return ['ds_read_b128 v[%d:%d], v%d offset:%d' % (base + 4 * tm, base + 4 * tm + 3, self.vXa + 2 * wi + kk, off + tm * 2048) for tm in range(self.TM)]
    def xdma(self, slot):
        out = []
        pre = ['s_cmp_lt_u32 s%d, s%d' % (sKi, sNk), 's_cselect_b32 s%d, s%d, 0x70000000' % (sA2, sAoff), 's_add_u32 m0, s%d, %d' % (sMX, slot * self.SLOT), 's_add_u32 s%d, s%d, 1' % (sKi, sKi)]
        for jj in range(self.ND):
            post = ['s_add_u32 s%d, s%d, 128' % (sAoff, sAoff)] + self.shift_list() if jj == self.ND - 1 else []
            out.append((pre if jj == 0 else []) + ['buffer_load_dwordx4 v%d, %s, s%d offen offset:%d sc1 lds' % (self.vXd + jj, srd(SRD_A), sA2, 1024 * jj)] + post)
        return out
    def shift_list(self):
        return []
    def mf(self, st, stage, kk, first):
        base = self.set[st]; out = []
        for tm in range(self.TM):
            for tn in range(2):
                ac = self.acc(tm, tn); b_ = 16 * stage + 8 * kk + 4 * tn
                c = '0' if first else 'v[%d:%d]' % (ac, ac + 3)
                out.append('v_mfma_f32_16x16x32_bf16 v[%d:%d], a[%d:%d], v[%d:%d], %s' % (ac, ac + 3, b_, b_ + 3, base + 4 * tm, base + 4 * tm + 3, c))
        return out
    def mainloop(self):
        A = self.A; NS = self.NSL; ND = self.ND; n = 2 * self.TM
        self.stamp(0)
        A('s_mov_b32 s%d, 0' % sKi)
        plan = {}; nxt = 3
        for s_ in range(16):
            lst = []
            while nxt < 16 and nxt <= s_ + NS - 1 and len(lst) < 2:
                lst.append(nxt); nxt += 1
            plan[s_] = lst
        issued = []
        def static_shift(j):
            d = {4: 2, 8: -3, 12: 4}.get(j + 1)
            if d is None: return []
            return ['s_mul_i32 s%d, s%d, %d' % (sT0, sShift, d), 's_add_u32 s%d, s%d, s%d' % (sAoff, sAoff, sT0)]
        for st in range(3):
            g = self.xdma(st % NS); g[-1] += static_shift(st)
            for grp in g:
                for x in grp: A(x)
            issued += [st] * ND
        A('s_waitcnt vmcnt(%d)' % (2 * ND)); A('s_barrier')
        for x in self.xreads(0, 0, 0): A(x)
        self.stamp(1)
        Lend = A.uid('be')
        for s_ in range(16):
            slot = s_ % NS
            mf0 = self.mf(0, s_, 0, s_ == 0); mf1 = self.mf(1, s_, 1, False)
            slots = [[] for _ in range(2 * n)]
            for i, x in enumerate(self.xreads(1, 1, slot)): slots[i].append(x)
            bar = n - 3
            groups = []
            for j in plan[s_]:
                g = self.xdma(j % NS); g[-1] += static_shift(j)
                groups += [(j, grp) for grp in g]
            pos = [int((i + 0.5) * 2 * n / len(groups)) for i in range(len(groups))] if groups else []
            before = [j for (j, _), p_ in zip(groups, pos) if p_ <= bar]
            for (j, grp), p_ in zip(groups, pos): slots[p_] += grp
            if s_ < 15:
                for i, x in enumerate(self.xreads(0, 0, (s_ + 1) % NS)): slots[n + i].insert(0, x)
            A('s_waitcnt lgkmcnt(0)')
            for i in range(2 * n):
                A(mf0[i] if i < n else mf1[i - n])
                for x in slots[i]: A(x)
                if i == bar:
                    seq = issued + before
                    younger = sum(1 for j in seq if j > s_ + 1)
                    A('s_waitcnt vmcnt(%d) lgkmcnt(0)' % younger)
                    A('s_barrier')
            issued += [j for j, _ in groups]
            if s_ < 15:
                A('s_cmp_le_u32 s%d, %d' % (sNk, s_ + 1)); A('s_cbranch_scc1 %s' % Lend)
        A.label(Lend)
        A('s_waitcnt lgkmcnt(0)')
        A.nop(10)
        self.stamp(2)
    def epi_addr(self, bytes_per_col):
        A = self.A
        vCo, t0 = self.vT, self.vT + 1
        A('v_mul_lo_u32 v%d, v%d, s%d' % (vCo, self.vC, sLdc))
        A('v_and_b32 v%d, 1, v%d' % (t0, self.vG)); A('v_lshl_add_u32 v%d, v%d, 5, v%d' % (vCo, t0, vCo))
        A('v_lshrrev_b32 v%d, 1, v%d' % (t0, self.vG)); A('v_lshl_add_u32 v%d, v%d, 4, v%d' % (vCo, t0, vCo))
        A('s_lshl_b32 s%d, s%d, 6' % (sT1, sW)); A('v_add_u32 v%d, s%d, v%d' % (vCo, sT1, vCo))
        A('s_lshl_b32 s%d, s%d, 4' % (sT2, sLdc))
        return vCo
    def epi_bf16(self, gelu=False, resid=False, cfl='sc1'):
        A = self.A
        if gelu: self.gelu_setup()
        vCo = self.epi_addr(2)
        D = 32; RR = 96
        if resid and not getattr(self, 'pre_resid', False):
            for tm in range(self.TM):
                A('s_mul_i32 s%d, s%d, %d' % (sT3, sT2, tm)); A('s_add_u32 s%d, s%d, s%d' % (sT3, sT3, sRoff))
                A('buffer_load_dwordx4 v[%d:%d], v%d, %s, s%d offen sc1' % (RR + 4 * tm, RR + 4 * tm + 3, vCo, srd(SRD_R), sT3))
        for tm in range(self.TM):
            A('s_mul_i32 s%d, s%d, %d' % (sT3, sT2, tm)); A('s_add_u32 s%d, s%d, s%d' % (sT3, sT3, sCoff))
            a0 = self.acc(tm, 0); a1 = self.acc(tm, 1)
            if gelu: self.gelu(list(range(a0, a0 + 8)), D + 8)
            P = D + 4 * (tm & 1)
            A('v_cvt_pk_bf16_f32 v%d, v%d, v%d' % (P, a0, a0 + 1)); A('v_cvt_pk_bf16_f32 v%d, v%d, v%d' % (P + 1, a0 + 2, a0 + 3))
            A('v_cvt_pk_bf16_f32 v%d, v%d, v%d' % (P + 2, a1, a1 + 1)); A('v_cvt_pk_bf16_f32 v%d, v%d, v%d' % (P + 3, a1 + 2, a1 + 3))
            A('s_nop 1')
            A('v_permlane16_swap_b32 v%d, v%d' % (P, P + 2)); A('v_permlane16_swap_b32 v%d, v%d' % (P + 1, P + 3))
            if resid:
                R = RR + 4 * tm
                if tm == 0 and not getattr(self, 'pre_resid', False): A('s_waitcnt vmcnt(0)')
                for i in range(4):
                    t = D + 8
                    A('v_lshlrev_b32 v%d, 16, v%d' % (t, P + i)); A('v_and_b32 v%d, 0xffff0000, v%d' % (t + 1, P + i))
                    A('v_lshlrev_b32 v%d, 16, v%d' % (t + 2, R + i)); A('v_and_b32 v%d, 0xffff0000, v%d' % (t + 3, R + i))
                    A('v_pk_add_f32 v[%d:%d], v[%d:%d], v[%d:%d]' % (t, t + 1, t, t + 1, t + 2, t + 3))
                    A('v_cvt_pk_bf16_f32 v%d, v%d, v%d' % (P + i, t, t + 1))
            else:
                A('s_nop 0')
            A('buffer_store_dwordx4 v[%d:%d], v%d, %s, s%d offen %s' % (P, P + 3, vCo, srd(SRD_C), sT3, cfl))

    def resid_preload(self):
        A = self.A
        vCo = self.epi_addr(2)
        for tm in range(self.TM):
            A('s_mul_i32 s%d, s%d, %d' % (sT3, sT2, tm)); A('s_add_u32 s%d, s%d, s%d' % (sT3, sT3, sRoff))
            A('buffer_load_dwordx4 v[%d:%d], v%d, %s, s%d offen sc1' % (96 + 4 * tm, 96 + 4 * tm + 3, vCo, srd(SRD_R), sT3))
```

```python
from asmlib import *
from layout import *
import struct, math

LDS_WO = 0
LDS_XB = 131072
LDS_XV = LDS_XB + 12288
LDS_RED = LDS_XB + 16384
LDS_KX = 151552
LDS_VX = 159744
LDS_CHAIN_END = 163840
SPIN_LIMIT = 1 << 22
RDELTA = PART - MEMB

SRD_WS = 8
SRD_T = 12
S_DBG = 6
sX, sC, sW, sH, sJ, sS = 16, 17, 18, 19, 20, 21
sMEMc, sMEMn, sMEMp, sQKc, sQKp, sOBc, sOBp, sMRc, sQKv, sKMs, sVMs, sFLo, sDMo, sMRp, sOBc2 = range(22, 37)
sT0, sT1, sT2, sT3 = 37, 38, 39, 40
sSPIN = 41
sHI, sN8 = 42, 44
sC_, sFE = 46, 47
sTM = 48
sLO32 = 54
sKMM = 58
sACC = 60
sRT = 80
sKMb, sVMb, sFLb, sQKb, sMEMb, sMRb, sOBb, sKXb, sVXb = range(86, 95)
OOBS = 0x70000000
OOBV = 0x7ff00000

def wreg(kl, mu, t):
    idx = kl * 12 + mu * 4 + t
    return 256 + idx * 8 if idx < 32 else 128 + (idx - 32) * 8

def gen_chain(A, intra='', timing=False, nsteps=64, d4=0, d6=0, d1=0, kvwait=None, looptime=False, steptrace=False, rpos=0, dbgwait=0, noflag=0, nokm=0, finish=None, rt=0, rearly=0, vdefer=0, touch=0, early_end=1, sel=1, sigchunk=-1):
    I = intra
    def st(x): return (x + ' ' + I).rstrip()
    WS = 's[%d:%d]' % (SRD_WS, SRD_WS + 3)
    (vL16, vXq0, vXq1, vXq2, vXq3, vXqR, vXvW, vXvR, vQkSt, vQkLd, vQkL, vOSt, vIdx, vBias, vKx0, vKx1, vKx2, vKx3, vVx, vWoR,
     vKmSt, vVmSt, vD0, vD1, vD2, vD3, vPq, vPo, vPm, vRedW, vRedR, vFlg, vVM, vVM1, vOnes, vOnes1) = range(36)
    vXq = [vXq0, vXq1, vXq2, vXq3]; vKxD4 = [vD0, vD1, vD2, vD3]
    vT = 36
    W0 = 40
    vLane, vG, vN = 120, 121, 122
    t0, t1, t2, t3 = 123, 124, 125, 126
    A.c('=== chain v4 ===')
    A('v_and_b32 v%d, 63, v0' % vLane)
    A('v_lshrrev_b32 v%d, 6, v0' % t0)
    A('s_nop 0')
    A('v_readfirstlane_b32 s%d, v%d' % (sW, t0))
    A('v_lshrrev_b32 v%d, 4, v%d' % (vG, vLane))
    A('v_and_b32 v%d, 15, v%d' % (vN, vLane))
    A('s_lshr_b32 s%d, s%d, 1' % (sT0, sC))
    A('s_and_b32 s%d, s%d, 1' % (sJ, sC))
    A('s_lshl_b32 s%d, s%d, 4' % (sH, sX))
    A('s_add_u32 s%d, s%d, s%d' % (sH, sH, sT0))
    A('v_cmp_le_u32 s[%d:%d], 32, v%d' % (sHI, sHI + 1, vLane))
    A('v_cmp_gt_u32 s[%d:%d], 8, v%d' % (sN8, sN8 + 1, vN))
    cval = struct.unpack('<I', struct.pack('<f', (128 ** -0.5) * math.log2(math.e)))[0]
    A('s_mov_b32 s%d, 0x%08x' % (sC_, cval))
    A('s_mov_b32 s%d, 0xfffefffe' % sFE)
    A('s_mov_b32 s56, 0x%08x' % cval); A('s_mov_b32 s57, 0x%08x' % cval)
    A('s_mov_b32 s%d, -1' % sLO32); A('s_mov_b32 s%d, 0' % (sLO32 + 1))
    A('v_lshlrev_b32 v%d, 4, v%d' % (vL16, vLane))
    for t in range(4):
        A('s_sub_u32 s%d, s%d, %d' % (sT0, sW, t + 1)); A('s_and_b32 s%d, s%d, 3' % (sT0, sT0)); A('s_lshl_b32 s%d, s%d, 10' % (sT0, sT0))
        A('s_add_u32 s%d, s%d, %d' % (sT0, sT0, LDS_XB + t * 3072))
        A('v_add_u32 v%d, s%d, v%d' % (vXq[t], sT0, vL16))
    A('s_mul_i32 s%d, s%d, 3072' % (sT0, sW)); A('s_add_u32 s%d, s%d, %d' % (sT0, sT0, LDS_XB))
    A('v_add_u32 v%d, s%d, v%d' % (vXqR, sT0, vL16))
    A('s_lshl_b32 s%d, s%d, 11' % (sT0, sW)); A('s_add_u32 s%d, s%d, %d' % (sT0, sT0, LDS_XV))
    A('v_add_u32 v%d, s%d, v%d' % (vXvW, sT0, vL16))
    A('s_lshr_b32 s%d, s%d, 1' % (sT0, sW)); A('s_lshl_b32 s%d, s%d, 10' % (sT0, sT0))
    A('s_and_b32 s%d, s%d, 1' % (sT1, sW)); A('s_lshl_b32 s%d, s%d, 3' % (sT1, sT1))
    A('s_add_u32 s%d, s%d, s%d' % (sT0, sT0, sT1)); A('s_add_u32 s%d, s%d, %d' % (sT0, sT0, LDS_XV))
    A('v_add_u32 v%d, s%d, v%d' % (vXvR, sT0, vL16))
    A('s_lshl_b32 s%d, s%d, 15' % (sT0, sW))
    A('v_add_u32 v%d, s%d, v%d' % (vWoR, sT0, vL16))
    A('s_lshl_b32 s%d, s%d, 10' % (sT0, sW)); A('s_add_u32 s%d, s%d, %d' % (sT0, sT0, LDS_RED))
    A('v_lshlrev_b32 v%d, 8, v%d' % (vRedW, vG))
    A('v_lshl_add_u32 v%d, v%d, 2, v%d' % (vRedW, vN, vRedW))
    A('v_add_u32 v%d, s%d, v%d' % (vRedW, sT0, vRedW))
    A('v_lshrrev_b32 v%d, 2, v%d' % (t0, vN)); A('v_lshlrev_b32 v%d, 1, v%d' % (t0, t0)); A('v_and_b32 v%d, 1, v%d' % (t1, vN)); A('v_add_u32 v%d, v%d, v%d' % (t0, t0, t1))
    A('v_lshlrev_b32 v%d, 7, v%d' % (vRedR, t0))
    A('v_bfe_u32 v%d, v%d, 1, 1' % (t1, vN)); A('v_lshl_add_u32 v%d, v%d, 5, v%d' % (vRedR, t1, vRedR))
    A('v_bfe_u32 v%d, v%d, 4, 1' % (t1, vLane)); A('v_lshl_add_u32 v%d, v%d, 6, v%d' % (vRedR, t1, vRedR))
    A('v_add_u32 v%d, %d, v%d' % (vRedR, LDS_RED, vRedR))
    vRr = 119
    A('v_mov_b32 v%d, v%d' % (vRr, t0))
    A('v_and_b32 v%d, 7, v%d' % (t0, vN))
    A('v_lshrrev_b32 v%d, 3, v%d' % (t1, vN))
    A('v_lshlrev_b32 v%d, 7, v%d' % (vQkSt, t1))
    A('v_lshl_add_u32 v%d, v%d, 5, v%d' % (vQkSt, vG, vQkSt))
    A('v_lshl_add_u32 v%d, v%d, 1, v%d' % (vQkSt, t0, vQkSt))
    A('s_lshl_b32 s%d, s%d, 10' % (sT0, sJ)); A('s_lshl_b32 s%d, s%d, 8' % (sT1, sW)); A('s_add_u32 s%d, s%d, s%d' % (sT0, sT0, sT1))
    A('v_add_u32 v%d, s%d, v%d' % (vQkSt, sT0, vQkSt))
    A('v_lshlrev_b32 v%d, 7, v%d' % (vQkLd, vG))
    A('v_lshl_add_u32 v%d, v%d, 4, v%d' % (vQkLd, t0, vQkLd))
    A('v_add_u32 v%d, %d, v%d' % (vQkL, LDS_XB, vQkLd))
    A('v_lshlrev_b32 v%d, 7, v%d' % (vBias, vG)); A('v_lshl_add_u32 v%d, v%d, 4, v%d' % (vBias, vRr, vBias)); A('v_add_u32 v%d, %d, v%d' % (vBias, LDS_XB + 2048, vBias))
    A('v_and_b32 v%d, 1, v%d' % (t2, vG))
    A('v_lshrrev_b32 v%d, 1, v%d' % (t3, vN)); A('v_lshlrev_b32 v%d, 2, v%d' % (vOSt, t3))
    A('v_and_b32 v%d, 1, v%d' % (t3, vN)); A('v_add_u32 v%d, v%d, v%d' % (vOSt, vOSt, t3))
    A('v_lshrrev_b32 v%d, 1, v%d' % (t3, vG)); A('v_lshl_add_u32 v%d, v%d, 1, v%d' % (vOSt, t3, vOSt))
    A('v_lshlrev_b32 v%d, 4, v%d' % (vOSt, vOSt))
    A('v_lshl_add_u32 v%d, v%d, 3, v%d' % (vOSt, t2, vOSt))
    A('s_lshl_b32 s%d, s%d, 10' % (sT1, sC)); A('s_lshl_b32 s%d, s%d, 8' % (sT2, sW)); A('s_add_u32 s%d, s%d, s%d' % (sT1, sT1, sT2))
    A('v_add_u32 v%d, s%d, v%d' % (vOSt, sT1, vOSt))
    A('v_mov_b32 v%d, 0x%x' % (t3, OOBV))
    A('v_cndmask_b32 v%d, v%d, v%d, s[%d:%d]' % (vOSt, t3, vOSt, sN8, sN8 + 1))
    A('v_mov_b32 v%d, 0x4444' % vIdx); A('v_mov_b32 v%d, 0xeeee' % t2)
    A('v_and_b32 v%d, 2, v%d' % (t3, vN)); A('v_cmp_ne_u32 vcc, 0, v%d' % t3); A('s_nop 1')
    A('v_cndmask_b32 v%d, v%d, v%d, vcc' % (vIdx, vIdx, t2))
    A('v_mov_b32 v%d, 0x3f803f80' % vOnes); A('v_mov_b32 v%d, 0x3f803f80' % vOnes1)
    A('v_xor_b32 v%d, v%d, v%d' % (t2, vG, vN)); A('v_lshlrev_b32 v%d, 4, v%d' % (t2, t2)); A('v_lshl_add_u32 v%d, v%d, 8, v%d' % (t2, vN, t2))
    A('v_add_u32 v%d, %d, v%d' % (vKx0, LDS_KX, t2))
    for k in range(1, 4): A('v_xor_b32 v%d, %d, v%d' % (vKx0 + k, k * 64, vKx0))
    A('v_lshrrev_b32 v%d, 2, v%d' % (t2, vN)); A('v_lshl_add_u32 v%d, v%d, 2, v%d' % (t2, vG, t2))
    A('v_lshrrev_b32 v%d, 1, v%d' % (t3, t2)); A('v_and_b32 v%d, 3, v%d' % (t3, t3)); A('v_xor_b32 v%d, s%d, v%d' % (t3, sW, t3))
    A('v_lshlrev_b32 v%d, 5, v%d' % (t3, t3)); A('v_lshl_add_u32 v%d, v%d, 7, v%d' % (t3, t2, t3))
    A('v_and_b32 v%d, 3, v%d' % (t2, vN)); A('v_lshl_add_u32 v%d, v%d, 3, v%d' % (t3, t2, t3))
    A('v_add_u32 v%d, %d, v%d' % (vVx, LDS_VX, t3))
    A('v_lshlrev_b32 v%d, 4, v%d' % (vKmSt, vG)); A('v_lshl_add_u32 v%d, v%d, 13, v%d' % (vKmSt, vN, vKmSt))
    A('v_lshrrev_b32 v%d, 2, v%d' % (t2, vN))
    A('v_cmp_eq_u32 s[%d:%d], s%d, v%d' % (sKMM, sKMM + 1, sJ, t2))
    A('v_mov_b32 v%d, 0x%x' % (t3, OOBV))
    A('v_lshlrev_b32 v%d, 2, v%d' % (vVmSt, vLane))
    A('v_mov_b32 v%d, 0' % vVM1)
    A('v_cndmask_b32 v%d, v%d, v%d, s[%d:%d]' % (vKmSt, t3, vKmSt, sKMM, sKMM + 1))
    A('v_cmp_eq_u32 vcc, 0, v%d' % vLane); A('s_nop 1'); A('v_cndmask_b32 v%d, v%d, 0, vcc' % (vFlg, t3))
    for i in range(4):
        A('v_add_u32 v%d, %d, v%d' % (t2, 4 * i, vG)); A('v_xor_b32 v%d, v%d, v%d' % (t3, t2, vN)); A('v_lshlrev_b32 v%d, 4, v%d' % (t3, t3))
        A('v_lshl_add_u32 v%d, v%d, 13, v%d' % (t3, t2, t3)); A('v_subrev_u32 v%d, %d, v%d' % (vKxD4[i], 1024 * i, t3))
    Lw3 = A.uid('w3')
    A('s_cmp_lg_u32 s%d, 3' % sW); A('s_cbranch_scc1 %s' % Lw3)
    for i in range(4):
        A('v_lshrrev_b32 v%d, 3, v%d' % (t2, vLane)); A('v_add_u32 v%d, %d, v%d' % (t2, 8 * i, t2))
        A('v_lshrrev_b32 v%d, 1, v%d' % (t3, t2)); A('v_and_b32 v%d, 3, v%d' % (t3, t3))
        A('v_bfe_u32 v%d, v%d, 1, 2' % (t1, vLane)); A('v_xor_b32 v%d, v%d, v%d' % (t3, t3, t1)); A('v_lshlrev_b32 v%d, 5, v%d' % (t3, t3))
        A('v_and_b32 v%d, 1, v%d' % (t1, vLane)); A('v_lshl_add_u32 v%d, v%d, 4, v%d' % (t3, t1, t3))
        A('v_lshl_add_u32 v%d, v%d, 13, v%d' % (t3, t2, t3)); A('v_subrev_u32 v%d, %d, v%d' % (vKxD4[i], 1024 * i, t3))
    A.label(Lw3)
    A('v_bfe_u32 v%d, v%d, 4, 1' % (t2, vLane)); A('v_lshlrev_b32 v%d, 11, v%d' % (vPq, t2)); A('v_lshl_add_u32 v%d, v%d, 4, v%d' % (vPq, vN, vPq))
    A('s_lshl_b32 s%d, s%d, 10' % (sT0, sJ)); A('s_lshl_b32 s%d, s%d, 8' % (sT1, sW)); A('s_add_u32 s%d, s%d, s%d' % (sT0, sT0, sT1))
    A('v_add_u32 v%d, s%d, v%d' % (vPq, sT0, vPq))
    A('s_lshl_b32 s%d, s%d, 10' % (sT0, sC)); A('s_add_u32 s%d, s%d, s%d' % (sT0, sT0, sT1))
    A('v_add_u32 v%d, s%d, v%d' % (vPo, sT0, vL16))
    A('s_lshl_b32 s%d, s%d, 9' % (sT0, sC)); A('v_add_u32 v%d, s%d, v%d' % (vPm, sT0, vL16))
    A('v_mov_b32 v%d, 0x%x' % (t3, OOBV))
    A('v_cndmask_b32 v%d, v%d, v%d, s[%d:%d]' % (vPq, vPq, t3, sHI, sHI + 1))
    A('v_cndmask_b32 v%d, v%d, v%d, s[%d:%d]' % (vPm, vPm, t3, sHI, sHI + 1))
    A('v_cmp_le_u32 vcc, 16, v%d' % vLane); A('s_nop 1'); A('v_cndmask_b32 v%d, v%d, v%d, vcc' % (vPo, vPo, t3))
    A('s_lshl_b32 s%d, s%d, 8' % (sT0, sH)); A('s_lshl_b32 s%d, s%d, 6' % (sT1, sW))
    A('s_add_u32 s%d, s%d, s%d' % (sKMb, sT0, sT1)); A('s_add_u32 s%d, s%d, %d' % (sKMb, sKMb, KM))
    A('s_lshl_b32 s%d, s%d, 3' % (sT0, sH)); A('s_lshl_b32 s%d, s%d, 2' % (sT1, sJ))
    A('s_add_u32 s%d, s%d, s%d' % (sT0, sT0, sT1)); A('s_add_u32 s%d, s%d, s%d' % (sT0, sT0, sW))
    A('s_lshl_b32 s%d, s%d, 8' % (sVMb, sT0)); A('s_add_u32 s%d, s%d, %d' % (sVMb, sVMb, VMF))
    A('s_lshl_b32 s%d, s%d, 2' % (sFLb, sT0)); A('s_add_u32 s%d, s%d, %d' % (sFLb, sFLb, FLG_SEG))
    A('s_lshl_b32 s%d, s%d, 14' % (sQKb, sH)); A('s_add_u32 s%d, s%d, %d' % (sQKb, sQKb, QKB))
    A('s_lshl_b32 s%d, s%d, 16' % (sMEMb, sX)); A('s_add_u32 s%d, s%d, %d' % (sMEMb, sMEMb, MEMB))
    A('s_xor_b32 s%d, s%d, 1' % (sT0, sX)); A('s_lshl_b32 s%d, s%d, 16' % (sMRb, sT0)); A('s_add_u32 s%d, s%d, %d' % (sMRb, sMRb, MEMB + RDELTA))
    A('s_lshl_b32 s%d, s%d, 17' % (sOBb, sX)); A('s_add_u32 s%d, s%d, %d' % (sOBb, sOBb, OB))
    A('s_lshl_b32 s%d, s%d, 8' % (sT0, sH))
    A('s_sub_u32 s%d, s%d, 1' % (sT1, sW)); A('s_lshl_b32 s%d, s%d, 17' % (sT2, sT1)); A('s_add_u32 s%d, s%d, s%d' % (sKXb, sT0, sT2)); A('s_add_u32 s%d, s%d, %d' % (sKXb, sKXb, KX))
    A('s_lshl_b32 s%d, s%d, 12' % (sVXb, sT1)); A('s_add_u32 s%d, s%d, %d' % (sVXb, sVXb, LDS_KX))
    A('s_lshl_b32 s%d, s%d, 7' % (sT1, sJ)); A('s_add_u32 s%d, s%d, s%d' % (sT0, sT0, sT1)); A('s_add_u32 s%d, s%d, %d' % (sT0, sT0, VX))
    A('s_cmp_eq_u32 s%d, 3' % sW); A('s_cselect_b32 s%d, s%d, s%d' % (sKXb, sT0, sKXb)); A('s_cselect_b32 s%d, %d, s%d' % (sVXb, LDS_VX, sVXb))
    def calc(n):
        A('s_and_b32 s%d, s%d, 3' % (sT0, n))
        A('s_lshl_b32 s%d, s%d, 14' % (sT1, sT0)); A('s_lshl_b32 s%d, s%d, 12' % (sT2, sW)); A('s_add_u32 s%d, s%d, s%d' % (sT1, sT1, sT2))
        A('s_add_u32 s%d, s%d, s%d' % (sMEMc, sMEMb, sT1)); A('s_add_u32 s%d, s%d, s%d' % (sMRc, sMRb, sT1))
        A('s_lshl_b32 s%d, s%d, 12' % (sT1, sT0)); A('s_add_u32 s%d, s%d, s%d' % (sQKc, sQKb, sT1))
        A('s_add_u32 s%d, s%d, 3' % (sT0, n)); A('s_and_b32 s%d, s%d, 3' % (sT0, sT0))
        A('s_lshl_b32 s%d, s%d, 12' % (sT1, sT0)); A('s_add_u32 s%d, s%d, s%d' % (sQKv, sQKb, sT1))
        A('s_lshl_b32 s%d, s%d, 9' % (sT1, sW)); A('s_add_u32 s%d, s%d, s%d' % (sQKv, sQKv, sT1))
        A('s_add_u32 s%d, s%d, 2' % (sT0, n)); A('s_and_b32 s%d, s%d, 3' % (sT0, sT0))
        A('s_lshl_b32 s%d, s%d, 12' % (sT1, sT0)); A('s_add_u32 s%d, s%d, s%d' % (sQKp, sQKb, sT1))
        A('s_lshl_b32 s%d, s%d, 14' % (sT1, sT0)); A('s_add_u32 s%d, s%d, s%d' % (sMEMp, sMEMb, sT1)); A('s_add_u32 s%d, s%d, %d' % (sMRp, sMEMp, RDELTA))
        A('s_lshl_b32 s%d, s%d, 15' % (sT1, sT0)); A('s_add_u32 s%d, s%d, s%d' % (sOBp, sOBb, sT1))
        A('s_sub_u32 s%d, s%d, 1' % (sT0, n))
        A('s_lshl_b32 s%d, s%d, 16' % (sT1, sT0)); A('s_add_u32 s%d, s%d, s%d' % (sKMs, sKMb, sT1)); A('s_add_u32 s%d, s%d, s%d' % (sVMs, sVMb, sT1))
        A('s_sub_u32 s%d, s%d, 2' % (sT0, n)); A('s_lshl_b32 s%d, s%d, 10' % (sT1, sT0)); A('s_add_u32 s%d, s%d, s%d' % (sFLo, sFLb, sT1))
        A('s_cmp_lt_u32 s%d, 2' % n); A('s_cselect_b32 s%d, 0x%x, s%d' % (sFLo, OOBS, sFLo))
        A('s_cmp_lt_u32 s%d, 1' % n); A('s_cselect_b32 s%d, 0x%x, s%d' % (sKMs, OOBS, sKMs)); A('s_cselect_b32 s%d, 0x%x, s%d' % (sVMs, OOBS, sVMs))
        A('s_lshl_b32 s%d, s%d, 18' % (sDMo, n)); A('s_add_u32 s%d, s%d, s%d' % (sDMo, sDMo, sKXb))
    def calc_ob_memn(n):
        A('s_and_b32 s%d, s%d, 3' % (sT0, n))
        A('s_lshl_b32 s%d, s%d, 15' % (sT1, sT0)); A('s_add_u32 s%d, s%d, s%d' % (sOBc, sOBb, sT1))
        A('s_lshl_b32 s%d, s%d, 13' % (sT1, sW)); A('s_add_u32 s%d, s%d, s%d' % (sOBc2, sOBc, sT1))
        A('s_add_u32 s%d, s%d, 1' % (sT0, n)); A('s_and_b32 s%d, s%d, 3' % (sT0, sT0))
        A('s_lshl_b32 s%d, s%d, 14' % (sT1, sT0)); A('s_add_u32 s%d, s%d, s%d' % (sMEMn, sMEMb, sT1))

    for i in range(4): A('v_mov_b32 v%d, -1' % (W0 + i))
    for sl in range(4):
        A('s_add_u32 s%d, s%d, %d' % (sT0, sQKb, sl * 4096))
        A(st('buffer_store_dwordx4 v[%d:%d], v%d, %s, s%d offen' % (W0, W0 + 3, vPq, WS, sT0)))
        A('s_add_u32 s%d, s%d, %d' % (sT0, sOBb, sl * 32768))
        A(st('buffer_store_dwordx4 v[%d:%d], v%d, %s, s%d offen' % (W0, W0 + 3, vPo, WS, sT0)))
        Lq = A.uid('pp')
        A('s_cmp_lg_u32 s%d, 0' % sW); A('s_cbranch_scc1 %s' % Lq)
        A('s_add_u32 s%d, s%d, %d' % (sT0, sMEMb, sl * 16384))
        A(st('buffer_store_dwordx4 v[%d:%d], v%d, %s, s%d offen' % (W0, W0 + 3, vPm, WS, sT0)))
        A('s_add_u32 s%d, s%d, %d' % (sT0, sT0, RDELTA))
        A('buffer_store_dwordx4 v[%d:%d], v%d, %s, s%d offen sc1' % (W0, W0 + 3, vPm, WS, sT0))
        A.label(Lq)
    A('s_waitcnt vmcnt(0)')
    Lm = A.uid('m0')
    A('s_cmp_lg_u32 s%d, 0' % sW); A('s_cbranch_scc1 %s' % Lm)
    A('s_load_dwordx2 s[%d:%d], s[0:1], %d' % (SRD_T, SRD_T + 1, A_MEM0))
    A('s_mov_b32 s%d, 16384' % (SRD_T + 2)); A('s_mov_b32 s%d, 0x00020000' % (SRD_T + 3))
    A('s_waitcnt lgkmcnt(0)')
    A('v_lshlrev_b32 v%d, 11, v%d' % (t2, vRr))
    A('v_bfe_u32 v%d, v%d, 1, 1' % (t3, vN)); A('v_lshl_add_u32 v%d, v%d, 4, v%d' % (t2, t3, t2))
    A('v_bfe_u32 v%d, v%d, 4, 1' % (t3, vLane)); A('v_lshl_add_u32 v%d, v%d, 5, v%d' % (t2, t3, t2))
    A('s_lshl_b32 s%d, s%d, 6' % (sT1, sC)); A('v_add_u32 v%d, s%d, v%d' % (t2, sT1, t2))
    A('buffer_load_dwordx4 v[%d:%d], v%d, s[%d:%d], 0 offen' % (W0, W0 + 3, t2, SRD_T, SRD_T + 3))
    A('s_waitcnt vmcnt(0)')
    for i in range(4): A('v_pk_min_u16 v%d, v%d, s%d' % (W0 + i, W0 + i, sFE))
    Lz0 = A.uid('mz')
    A('s_cmp_eq_u32 s%d, 0' % sX); A('s_cbranch_scc1 %s' % Lz0)
    for i in range(4): A('v_mov_b32 v%d, 0' % (W0 + i))
    A.label(Lz0)
    A(st('buffer_store_dwordx4 v[%d:%d], v%d, %s, s%d offen' % (W0, W0 + 3, vPm, WS, sMEMb)))
    A('s_add_u32 s%d, s%d, %d' % (sT2, sMEMb, RDELTA))
    A('buffer_store_dwordx4 v[%d:%d], v%d, %s, s%d offen sc1' % (W0, W0 + 3, vPm, WS, sT2))
    A('s_waitcnt vmcnt(0)')
    A.label(Lm)
    A('s_mov_b64 exec, 1')
    A('v_mov_b32 v%d, 1' % t2); A('v_mov_b32 v%d, 64' % t3)
    A('global_atomic_add v%d, v%d, s[%d:%d] sc1' % (t3, t2, S_DBG, S_DBG + 1))
    A('s_mov_b64 exec, -1')

    vDq, vTr, vDo, vWt0, vWt1 = W0, W0 + 1, W0 + 3, W0 + 4, W0 + 5
    A('v_lshrrev_b32 v%d, 3, v%d' % (t2, vLane)); A('v_lshlrev_b32 v%d, 13, v%d' % (vDq, t2))
    A('v_and_b32 v%d, 7, v%d' % (t3, vLane)); A('v_lshl_add_u32 v%d, v%d, 4, v%d' % (vDq, t3, vDq))
    A('v_bfe_u32 v%d, v%d, 2, 1' % (t2, vN)); A('v_and_b32 v%d, 1, v%d' % (t3, vG)); A('v_lshl_add_u32 v%d, v%d, 2, v%d' % (t2, t3, t2))
    A('v_lshrrev_b32 v%d, 3, v%d' % (t3, vN)); A('v_lshl_add_u32 v%d, v%d, 3, v%d' % (t2, t3, t2))
    A('v_lshrrev_b32 v%d, 1, v%d' % (t3, vG)); A('v_lshl_add_u32 v%d, v%d, 4, v%d' % (t2, t3, t2))
    A('v_lshlrev_b32 v%d, 7, v%d' % (t2, t2)); A('v_and_b32 v%d, 3, v%d' % (t3, vN)); A('v_lshl_add_u32 v%d, v%d, 3, v%d' % (t2, t3, t2))
    A('s_and_b32 s%d, s%d, 1' % (sT0, sW)); A('s_lshl_b32 s%d, s%d, 15' % (sT0, sT0))
    A('v_add_u32 v%d, s%d, v%d' % (vTr, sT0, t2))
    A('v_add_u32 v%d, 65536, v%d' % (vTr + 1, vTr))
    A('v_lshrrev_b32 v%d, 2, v%d' % (t2, vLane)); A('v_and_b32 v%d, 9, v%d' % (t3, t2))
    A('v_bfe_u32 v%d, v%d, 1, 1' % (t1, t2)); A('v_lshl_add_u32 v%d, v%d, 2, v%d' % (t3, t1, t3))
    A('v_bfe_u32 v%d, v%d, 2, 1' % (t1, t2)); A('v_lshl_add_u32 v%d, v%d, 1, v%d' % (t3, t1, t3))
    A('v_lshlrev_b32 v%d, 11, v%d' % (vDo, t3))
    A('v_bfe_u32 v%d, v%d, 1, 1' % (t1, vLane)); A('v_lshrrev_b32 v%d, 5, v%d' % (t0, vLane)); A('v_xor_b32 v%d, v%d, v%d' % (t1, t1, t0))
    A('v_lshl_add_u32 v%d, v%d, 5, v%d' % (vDo, t1, vDo)); A('v_and_b32 v%d, 1, v%d' % (t1, vLane)); A('v_lshl_add_u32 v%d, v%d, 4, v%d' % (vDo, t1, vDo))
    A('v_bfe_u32 v%d, v%d, 2, 1' % (t2, vN)); A('v_and_b32 v%d, 1, v%d' % (t3, vG)); A('v_lshl_add_u32 v%d, v%d, 1, v%d' % (t2, t3, t2))
    A('v_lshrrev_b32 v%d, 3, v%d' % (t3, vN)); A('v_lshl_add_u32 v%d, v%d, 3, v%d' % (t2, t3, t2))
    A('v_lshrrev_b32 v%d, 1, v%d' % (t1, vG)); A('v_lshl_add_u32 v%d, v%d, 4, v%d' % (t2, t1, t2))
    A('v_lshlrev_b32 v%d, 6, v%d' % (t2, t2)); A('v_lshl_add_u32 v%d, v%d, 5, v%d' % (t2, t3, t2))
    A('v_and_b32 v%d, 3, v%d' % (t1, vN)); A('v_lshl_add_u32 v%d, v%d, 3, v%d' % (t2, t1, t2))
    A('s_lshl_b32 s%d, s%d, 15' % (sT0, sW)); A('v_add_u32 v%d, s%d, v%d' % (vWt0, sT0, t2)); A('v_xor_b32 v%d, 32, v%d' % (vWt1, vWt0))
    wptr = [A_WQ, A_WK, A_WV]
    def issue_chunk(cidx):
        half = cidx & 1
        if cidx < 6:
            A('s_load_dwordx2 s[%d:%d], s[0:1], %d' % (SRD_T, SRD_T + 1, wptr[cidx >> 1]))
            A('s_mov_b32 s%d, %d' % (SRD_T + 2, 8 * MB)); A('s_mov_b32 s%d, 0x00020000' % (SRD_T + 3))
            A('s_lshl_b32 s%d, s%d, 8' % (sT0, sH)); A('s_lshl_b32 s%d, s%d, 7' % (sT1, sJ)); A('s_add_u32 s%d, s%d, s%d' % (sT0, sT0, sT1))
            A('s_lshl_b32 s%d, s%d, 20' % (sT1, sW)); A('s_add_u32 s%d, s%d, s%d' % (sT0, sT0, sT1))
            A('s_add_u32 s%d, s%d, %d' % (sT0, sT0, half * 512 * 8192))
            step_g, vd = 65536, vDq
        else:
            A('s_load_dwordx2 s[%d:%d], s[0:1], %d' % (SRD_T, SRD_T + 1, A_WO))
            A('s_mov_b32 s%d, %d' % (SRD_T + 2, 8 * MB)); A('s_mov_b32 s%d, 0x00020000' % (SRD_T + 3))
            A('s_lshl_b32 s%d, s%d, 22' % (sT0, sX)); A('s_lshl_b32 s%d, s%d, 6' % (sT1, sC)); A('s_add_u32 s%d, s%d, s%d' % (sT0, sT0, sT1))
            A('s_lshl_b32 s%d, s%d, 19' % (sT1, sW)); A('s_add_u32 s%d, s%d, s%d' % (sT0, sT0, sT1))
            A('s_add_u32 s%d, s%d, %d' % (sT0, sT0, half * 1024 * 2048))
            step_g, vd = 32768, vDo
        A('s_lshl_b32 s%d, s%d, 14' % (sT1, sW)); A('s_add_u32 s%d, s%d, %d' % (sT1, sT1, half * 65536))
        A('s_waitcnt lgkmcnt(0)')
        for i in range(16):
            A('s_add_u32 m0, s%d, %d' % (sT1, i * 1024))
            A('s_add_u32 s%d, s%d, %d' % (sT2, sT0, i * step_g))
            A('buffer_load_dwordx4 v%d, s[%d:%d], s%d offen lds' % (vd, SRD_T, SRD_T + 3, sT2))
    def read_chunk(cidx):
        half = cidx & 1; mu = cidx >> 1
        Le = A.uid('rce')
        A('s_lshr_b32 s%d, s%d, 1' % (sT0, sW)); A('s_cmp_lg_u32 s%d, %d' % (sT0, half)); A('s_cbranch_scc1 %s' % Le)
        for kl in range(4):
            for t in range(4):
                Rg = wreg(kl, mu, t)
                for sg in range(4):
                    off = kl * 8192 + t * 32 + (sg & 1) * 256 + (sg >> 1) * 4096
                    A('ds_read_b64_tr_b16 %s, v%d offset:%d' % (r(Rg + 2 * sg, 2), vTr + half, off))
                if t % 2 == 1: A('s_waitcnt lgkmcnt(0)')
        A.label(Le)
    issue_chunk(0)
    for cidx in range(6):
        issue_chunk(cidx + 1)
        A('s_waitcnt vmcnt(16)'); A('s_barrier')
        read_chunk(cidx)
        A('s_waitcnt lgkmcnt(0)'); A('s_barrier')
        if cidx == sigchunk:
            Lsg = A.uid('sg')
            A('s_cmp_lg_u32 s%d, 0' % sW); A('s_cbranch_scc1 %s' % Lsg)
            A('s_mov_b64 exec, 1'); A('v_mov_b32 v%d, 1' % vT); A('v_mov_b32 v%d, 72' % (vT + 1))
            A('global_atomic_add v%d, v%d, s[%d:%d] sc1' % (vT + 1, vT, S_DBG, S_DBG + 1)); A('s_mov_b64 exec, -1')
            A.label(Lsg)
    issue_chunk(7)
    A('s_mov_b32 s%d, 0' % sS)
    if kvwait:
        Lzw = A.uid('zw')
        A('s_mov_b32 s%d, 0' % sSPIN); A('v_mov_b32 v%d, 68' % (vT + 1))
        A.label(Lzw)
        A('global_load_dword v%d, v%d, s[%d:%d] sc1' % (vT, vT + 1, S_DBG, S_DBG + 1))
        A('s_add_u32 s%d, s%d, 1' % (sSPIN, sSPIN)); A('s_cmp_gt_u32 s%d, %d' % (sSPIN, SPIN_LIMIT)); A('s_cbranch_scc1 chain_abort')
        A('s_waitcnt vmcnt(0)')
        A('v_readfirstlane_b32 s%d, v%d' % (sT0, vT)); A('s_nop 3'); A('s_cmp_lt_u32 s%d, 192' % sT0); A('s_cbranch_scc1 %s' % Lzw)
        kvwait(A, sS)
    A('s_waitcnt vmcnt(0)'); A('s_barrier')
    CV = W0 + 8
    for hf in range(2):
        for kl in range(4):
            kap = 4 * hf + kl
            for tt in range(2):
                Rg = CV + (kl * 2 + tt) * 8
                for sg in range(4):
                    off = kap * 4096 + (sg & 1) * 256 + (sg >> 1) * 2048
                    A('ds_read_b64_tr_b16 v[%d:%d], v%d offset:%d' % (Rg + 2 * sg, Rg + 2 * sg + 1, vWt1 if tt else vWt0, off))
            A('s_waitcnt lgkmcnt(0)')
        for kl in range(4):
            kap = 4 * hf + kl
            for tt in range(2):
                Rg = CV + (kl * 2 + tt) * 8; off = (kap * 2 + tt) * 2048
                A('ds_write_b128 v%d, v[%d:%d] offset:%d' % (vWoR, Rg, Rg + 3, off))
                A('ds_write_b128 v%d, v[%d:%d] offset:%d' % (vWoR, Rg + 4, Rg + 7, off + 1024))
        A('s_waitcnt lgkmcnt(0)')
    Lw = A.uid('pw')
    A('s_mov_b32 s%d, 0' % sSPIN); A('v_mov_b32 v%d, 64' % (vT + 1))
    A.label(Lw)
    A('global_load_dword v%d, v%d, s[%d:%d] sc1' % (vT, vT + 1, S_DBG, S_DBG + 1))
    A('s_waitcnt vmcnt(0)')
    A('v_readfirstlane_b32 s%d, v%d' % (sT0, vT))
    A('s_add_u32 s%d, s%d, 1' % (sSPIN, sSPIN)); A('s_cmp_gt_u32 s%d, %d' % (sSPIN, SPIN_LIMIT)); A('s_cbranch_scc1 chain_abort')
    A('s_cmp_lt_u32 s%d, 256' % sT0); A('s_cbranch_scc1 %s' % Lw)
    A('s_barrier')
    if timing or looptime:
        for i in range(16): A('s_mov_b32 s%d, 0' % (sACC + i))
    def stamp(i):
        if timing:
            A('s_memtime s[%d:%d]' % (sTM + 2, sTM + 3)); A('s_waitcnt lgkmcnt(0)')
            A('s_sub_u32 s%d, s%d, s%d' % (sTM + 4, sTM + 2, sTM)); A('s_add_u32 s%d, s%d, s%d' % (sACC + i, sACC + i, sTM + 4))
            A('s_mov_b32 s%d, s%d' % (sTM, sTM + 2))
    if timing:
        A('s_memtime s[%d:%d]' % (sTM, sTM + 1)); A('s_waitcnt lgkmcnt(0)')
    def rts(p):
        if rt:
            L = A.uid('rt')
            A('s_sub_u32 s77, s%d, 20' % sS); A('s_cmp_ge_u32 s77, 8'); A('s_cbranch_scc1 %s' % L)
            A('s_memrealtime s[78:79]')
            A('s_lshl_b32 s76, s%d, 5' % sX); A('s_add_u32 s76, s76, s%d' % sC); A('s_lshl_b32 s76, s76, 2'); A('s_add_u32 s76, s76, s%d' % sW)
            A('s_lshl_b32 s76, s76, 3'); A('s_add_u32 s76, s76, s77'); A('s_lshl_b32 s76, s76, 6'); A('s_add_u32 s76, s76, %d' % (TRC + 4 * MB + p * 4))
            A('s_waitcnt lgkmcnt(0)')
            A('v_mov_b32 v%d, s78' % (vRT)); A('buffer_store_dword v%d, v%d, %s, s76 offen' % (vRT, vFlg, WS))
            A.label(L)
    vRT = 36
    def check(regs):
        m = vT; rs = list(regs)
        if len(rs) == 1: A('v_cmp_eq_u32 vcc, -1, v%d' % rs[0]); return
        if len(rs) == 2: A('v_max_u32 v%d, v%d, v%d' % (m, rs[0], rs[1])); rs = []
        else: A('v_max3_u32 v%d, v%d, v%d, v%d' % (m, rs[0], rs[1], rs[2])); rs = rs[3:]
        while len(rs) >= 2:
            A('v_max3_u32 v%d, v%d, v%d, v%d' % (m, m, rs[0], rs[1])); rs = rs[2:]
        if rs: A('v_max_u32 v%d, v%d, v%d' % (m, m, rs[0]))
        A('v_cmp_eq_u32 vcc, -1, v%d' % m)
    def poll(loads, regs, site=None):
        L = A.uid('poll')
        A('s_mov_b32 s%d, 0' % sSPIN)
        A.label(L)
        for x in loads: A(x)
        A('s_add_u32 s%d, s%d, 1' % (sSPIN, sSPIN)); A('s_cmp_gt_u32 s%d, %d' % (sSPIN, SPIN_LIMIT)); A('s_cbranch_scc1 chain_abort')
        A('s_waitcnt vmcnt(0)')
        check(regs)
        A('s_cbranch_vccnz %s' % L)
        if timing and site is not None: A('s_add_u32 s%d, s%d, s%d' % (sACC + 10 + site, sACC + 10 + site, sSPIN))

    def poll_sel(loads, chks, site=None, first_issued=False, wait0=None):
        L = A.uid('ps'); Ld = A.uid('pd')
        A('s_mov_b32 s%d, 0' % sSPIN)
        if not first_issued:
            for x in loads: A(x)
        A('s_waitcnt vmcnt(%s)' % (wait0 if wait0 is not None else 0))
        check([c_ for ch in chks for c_ in ch])
        A('s_cbranch_vccz %s' % Ld)
        A.label(L)
        for x, ch in zip(loads, chks):
            Ls = A.uid('pk')
            if len(ch) == 1: A('v_cmp_eq_u32 vcc, -1, v%d' % ch[0])
            else:
                A('v_max_u32 v%d, v%d, v%d' % (vT, ch[0], ch[1])); A('v_cmp_eq_u32 vcc, -1, v%d' % vT)
            A('s_cbranch_vccz %s' % Ls)
            A(x)
            A.label(Ls)
        A('s_add_u32 s%d, s%d, 1' % (sSPIN, sSPIN)); A('s_cmp_gt_u32 s%d, %d' % (sSPIN, SPIN_LIMIT)); A('s_cbranch_scc1 chain_abort')
        A('s_waitcnt vmcnt(0)')
        check([c_ for ch in chks for c_ in ch])
        A('s_cbranch_vccnz %s' % L)
        A.label(Ld)
    calc(sS); calc_ob_memn(sS)
    vLD = W0
    vRQ = W0 + 16
    vAcc = W0 + 32
    vKR = 120
    vKX = 72; vVXF = 116
    def acc(mu, t): return vAcc + (mu * 4 + t) * 4
    def kpass(areg, fill=None):
        fill = list(fill or [])
        n = 0
        mus = (0, 1) if vdefer else (0, 1, 2)
        per = 2 if vdefer else 3
        for kl in range(4):
            for mu in mus:
                for t in range(4):
                    a_ = acc(mu, t)
                    A('v_smfmac_f32_16x16x64_bf16 v[%d:%d], v[%d:%d], %s, v%d' % (a_, a_ + 3, areg + 4 * kl, areg + 4 * kl + 3, r(wreg(kl, mu, t), 8), vIdx))
                    n += 1
                    if fill and n % per == 0:
                        for x in fill.pop(0): A(x)
        for g_ in fill:
            for x in g_: A(x)

    if looptime:
        A('s_memrealtime s[%d:%d]' % (sRT, sRT + 1)); A('s_waitcnt lgkmcnt(0)')
    A.label('chain_step')
    if steptrace:
        Lst = A.uid('st')
        A('s_cmp_lg_u32 s%d, 0' % sW); A('s_cbranch_scc1 %s' % Lst)
        A('s_memrealtime s[84:85]')
        A('s_lshl_b32 s%d, s%d, 5' % (sT0, sX)); A('s_add_u32 s%d, s%d, s%d' % (sT0, sT0, sC)); A('s_lshl_b32 s%d, s%d, 7' % (sT0, sT0))
        A('s_add_u32 s%d, s%d, s%d' % (sT0, sT0, sS)); A('s_lshl_b32 s%d, s%d, 2' % (sT0, sT0)); A('s_add_u32 s%d, s%d, %d' % (sT0, sT0, TRC_CH))
        A('s_waitcnt lgkmcnt(0)')
        A('v_mov_b32 v%d, s84' % vT); A('v_mov_b32 v%d, 0' % (vT + 1)); A('s_mov_b64 exec, 1')
        A('buffer_store_dword v%d, v%d, %s, s%d offen' % (vT, vT + 1, WS, sT0)); A('s_mov_b64 exec, -1')
        A.label(Lst)
    A.c('P1a')
    rts(0)
    for i in range(48): A('v_mov_b32 v%d, 0' % (vAcc + i))
    if d1: A('s_sleep %d' % d1)
    A('buffer_load_dwordx4 v[%d:%d], v%d, %s, s%d offen offset:2048 sc1' % (vKR, vKR + 3, vQkLd, WS, sQKv))
    if kvwait:
        Lkq = A.uid('kq')
        A('v_mov_b32 v126, 1'); A('v_mov_b32 v127, 1')
        A('s_and_b32 s%d, s%d, 3' % (sT0, sS)); A('s_cmp_lg_u32 s%d, 0' % sT0); A('s_cbranch_scc1 %s' % Lkq)
        kvwait(A, sS, issue_only=True)
        A.label(Lkq)
    loads = ['buffer_load_dwordx4 v[%d:%d], v%d, %s, s%d offen offset:%d sc1' % (vLD + 4 * k, vLD + 4 * k + 3, vL16, WS, sMEMc, 1024 * k) for k in range(4)]
    rloads = ['buffer_load_dwordx4 v[%d:%d], v%d, %s, s%d offen offset:%d sc1' % (vRQ + 4 * k, vRQ + 4 * k + 3, vL16, WS, sMRc, 1024 * k) for k in range(4)]
    if rearly:
        Lp1 = A.uid('p1e')
        for x in loads: A(x)
        A('s_sleep %d' % rearly)
        for x in rloads: A(x)
        if not sel: A('s_waitcnt vmcnt(4)')
        if sel:
            poll_sel(loads, [[vLD + 4 * k] for k in range(4)], first_issued=True, wait0=4)
        else:
            check([vLD + 4 * k for k in range(4)])
            A('s_cbranch_vccz %s' % Lp1)
            poll(loads, [vLD + 4 * k for k in range(4)], site=0)
            A.label(Lp1)
    else:
        poll(loads, [vLD + 4 * k for k in range(4)], site=0)
    if kvwait: kvwait(A, sS, check_only=True)
    stamp(0)
    rts(1)
    rloads = ['buffer_load_dwordx4 v[%d:%d], v%d, %s, s%d offen offset:%d sc1' % (vRQ + 4 * k, vRQ + 4 * k + 3, vL16, WS, sMRc, 1024 * k) for k in range(4)]
    P4r = 124
    common = [['buffer_store_dwordx4 v[%d:%d], v%d, %s, s%d offen %s' % (vKR, vKR + 3, vKmSt, WS, sKMs, '' if nokm else 'sc1')],
              ['buffer_store_dword v%d, v%d, %s, s%d offen %s' % (vVM, vVmSt, WS, sVMs, '' if nokm else 'sc1')],
              ['buffer_store_dword v%d, v%d, %s, s%d offen sc1' % (vOnes, vFlg, WS, sFLo)],
              ['v_mov_b32 v%d, -1' % (P4r + i) for i in range(2)], ['v_mov_b32 v%d, -1' % (P4r + i) for i in range(2, 4)],
              [st('buffer_store_dwordx4 v[%d:%d], v%d, %s, s%d offen' % (P4r, P4r + 3, vPq, WS, sQKp))],
              [st('buffer_store_dwordx4 v[%d:%d], v%d, %s, s%d offen' % (P4r, P4r + 3, vPo, WS, sOBp))]]
    Lw0 = A.uid('w0p'); Lj = A.uid('w0j')
    def with_r(groups):
        g = list(groups)
        if rearly:
            younger = sum(1 for grp in g for x in grp if x.startswith('buffer_'))
            return g, younger
        g.insert(min(rpos, len(g)), rloads)
        idx = min(rpos, len(groups))
        younger = sum(1 for grp in g[idx + 1:] for x in grp if x.startswith('buffer_'))
        return g, younger
    A('s_cmp_eq_u32 s%d, 0' % sW); A('s_cbranch_scc1 %s' % Lw0)
    fill = [['s_mov_b32 m0, s%d' % sVXb, 'buffer_load_dwordx4 v%d, %s, s%d offen sc1 lds' % (vKxD4[0], WS, sDMo)]]
    fill[0].insert(1, 's_nop 0')
    for i in range(1, 4): fill.append(['buffer_load_dwordx4 v%d, %s, s%d offen offset:%d sc1 lds' % (vKxD4[i], WS, sDMo, 1024 * i)])
    if touch:
        fill.append(['s_add_u32 s%d, s%d, %d' % (sT1, sDMo, 1 << 18), 'buffer_load_dword v%d, v%d, %s, s%d offen sc1' % (vT + 1, vTch, WS, sT1)])
    g, y = with_r(fill + common)
    kpass(vLD, g)
    A('s_waitcnt vmcnt(%d)' % y)
    A('s_branch %s' % Lj)
    A.label(Lw0)
    g, y0 = with_r(common + [[st('buffer_store_dwordx4 v[%d:%d], v%d, %s, s%d offen' % (P4r, P4r + 3, vPm, WS, sMEMp))],
                             ['buffer_store_dwordx4 v[%d:%d], v%d, %s, s%d offen sc1' % (P4r, P4r + 3, vPm, WS, sMRp)]])
    kpass(vLD, g)
    A('s_waitcnt vmcnt(%d)' % y0)
    A.label(Lj)
    stamp(1)
    A.c('P1b')
    rts(2)
    Lrk = A.uid('rk')
    check([vRQ + 4 * k for k in range(4)])
    A('s_cbranch_vccz %s' % Lrk)
    poll(rloads, [vRQ + 4 * k for k in range(4)], site=3)
    A.label(Lrk)
    def smf1(kl, mu, t, areg):
        a_ = acc(mu, t)
        return 'v_smfmac_f32_16x16x64_bf16 v[%d:%d], v[%d:%d], %s, v%d' % (a_, a_ + 3, areg + 4 * kl, areg + 4 * kl + 3, r(wreg(kl, mu, t), 8), vIdx)
    def pkadd(d, a_, b_): return 'v_pk_add_f32 v[%d:%d], v[%d:%d], v[%d:%d]' % (d, d + 1, a_, a_ + 1, b_, b_ + 1)
    def comb(ra, rb_):
        return [pkadd(ra, ra, ra + 2), pkadd(ra + 2, rb_, rb_ + 2)]
    own = 52; X1 = 40
    Lvar = [A.uid('pv%d_' % w_) for w_ in range(4)]; Lcom = A.uid('pvc')
    for w_ in range(1, 4):
        A('s_cmp_eq_u32 s%d, %d' % (sW, w_)); A('s_cbranch_scc1 %s' % Lvar[w_])
    for w_ in range(4):
        A.label(Lvar[w_])
        order = [(w_ + 1) & 3, (w_ + 2) & 3, (w_ + 3) & 3, w_]
        seq = []
        for t in order: seq += [smf1(kl, mu, t, vRQ) for kl in range(4) for mu in (0, 1)]
        fl = {}
        for i_, t in enumerate(order[:3]):
            st_ = 8 * i_ + 15
            fl.setdefault(st_, []).extend(comb(acc(0, t), acc(1, t)))
            fl.setdefault(min(st_ + 1, 31), []).append('ds_write_b128 v%d, v[%d:%d]' % (vXq[t], acc(0, t), acc(0, t) + 3))
        for i, m_ in enumerate(seq):
            A(m_)
            for x in fl.pop(i, []): A(x)
        A('s_waitcnt vmcnt(5) lgkmcnt(0)')
        A('s_barrier')
        for i in range(3): A('ds_read_b128 v[%d:%d], v%d offset:%d' % (X1 + 4 * i, X1 + 4 * i + 3, vXqR, 1024 * i))
        A.nop(3)
        for x in comb(acc(0, w_), acc(1, w_)): A(x)
        A('s_waitcnt lgkmcnt(0)')
        A(pkadd(own, acc(0, w_), X1)); A(pkadd(own + 2, acc(0, w_) + 2, X1 + 2))
        if w_ < 3: A('s_branch %s' % Lcom)
    A.label(Lcom)
    stamp(2)
    rts(3)
    A(pkadd(X1 + 4, X1 + 4, X1 + 8)); A(pkadd(X1 + 6, X1 + 6, X1 + 10))
    A(pkadd(own, own, X1 + 4)); A(pkadd(own + 2, own + 2, X1 + 6))
    kk_ = X1
    A('v_cvt_pk_bf16_f32 v%d, v%d, v%d' % (kk_, own, own + 1))
    A('v_cvt_pk_bf16_f32 v%d, v%d, v%d' % (kk_ + 1, own + 2, own + 3))
    A('v_pk_min_u16 v%d, v%d, s%d' % (kk_, kk_, sFE)); A('v_pk_min_u16 v%d, v%d, s%d' % (kk_ + 1, kk_ + 1, sFE))
    A(st('buffer_store_short v%d, v%d, %s, s%d offen' % (kk_, vQkSt, WS, sQKc)))
    A(st('buffer_store_short_d16_hi v%d, v%d, %s, s%d offen offset:16' % (kk_, vQkSt, WS, sQKc)))
    A(st('buffer_store_short v%d, v%d, %s, s%d offen offset:2048' % (kk_ + 1, vQkSt, WS, sQKc)))
    A(st('buffer_store_short_d16_hi v%d, v%d, %s, s%d offen offset:2064' % (kk_ + 1, vQkSt, WS, sQKc)))
    A('s_lshl_b32 s%d, s%d, 10' % (sT1, sW))
    A('v_add_u32 v%d, s%d, v%d' % (vT + 2, sT1, vL16))
    A('v_add_u32 v%d, %d, v%d' % (vT + 3, LDS_XB, vT + 2))
    rts(4)
    for tt in range(2):
        for k in range(4):
            Rg = vKX + (tt * 4 + k) * 4
            A('ds_read_b128 v[%d:%d], v%d offset:%d' % (Rg, Rg + 3, vKx0 + k, tt * 4096))
    A.c('pass 2b: V tiles while the q/k exchange is in flight')
    PQ = 120
    qload = 'buffer_load_dwordx4 v[%d:%d], v%d, %s, s%d offen sc1' % (PQ, PQ + 3, vT + 2, WS, sQKc)
    if vdefer:
        for kl in range(4):
            for t in range(4): A(smf1(kl, 2, t, vLD))
        A(qload)
    for kl in range(4):
        for t in range(4): A(smf1(kl, 2, t, vRQ))
    if not vdefer: A(qload)
    A.nop(8)
    for x in comb(acc(2, 0), acc(2, 1)): A(x)
    A('ds_write_b128 v%d, v[%d:%d]' % (vXvW, acc(2, 0), acc(2, 0) + 3))
    for x in comb(acc(2, 2), acc(2, 3)): A(x)
    A('ds_write_b128 v%d, v[%d:%d] offset:1024' % (vXvW, acc(2, 2), acc(2, 2) + 3))
    A('ds_read_b64_tr_b16 v[%d:%d], v%d' % (vVXF, vVXF + 1, vVx))
    A('ds_read_b64_tr_b16 v[%d:%d], v%d offset:2048' % (vVXF + 2, vVXF + 3, vVx))
    A.c('P4')
    Lq = A.uid('q4')
    A('s_waitcnt vmcnt(0)')
    check([PQ, PQ + 2])
    A('s_cbranch_vccz %s' % Lq)
    poll([qload], [PQ, PQ + 2], site=1)
    A.label(Lq)
    rts(5)
    A('ds_write_b128 v%d, v[%d:%d]' % (vT + 3, PQ, PQ + 3))
    A('s_waitcnt lgkmcnt(0)')
    A('s_barrier')
    vQ, vKM = W0, W0 + 16
    for k in range(4):
        A('ds_read_b128 v[%d:%d], v%d offset:%d' % (vQ + 4 * k, vQ + 4 * k + 3, vQkL, 512 * k))
        A('ds_read_b128 v[%d:%d], v%d offset:%d' % (vKM + 4 * k, vKM + 4 * k + 3, vBias, 512 * k))
    stamp(3)
    T0, T1, T2 = 104, 108, 112
    for k in range(4):
        A('s_waitcnt lgkmcnt(%d)' % (6 - 2 * k))
        c1 = '0' if k == 0 else 'v[%d:%d]' % (T1, T1 + 3); c2 = '0' if k == 0 else 'v[%d:%d]' % (T2, T2 + 3); c0 = '0' if k == 0 else 'v[%d:%d]' % (T0, T0 + 3)
        A('v_mfma_f32_16x16x32_bf16 v[%d:%d], v[%d:%d], v[%d:%d], %s' % (T1, T1 + 3, vKX + 4 * k, vKX + 4 * k + 3, vQ + 4 * k, vQ + 4 * k + 3, c1))
        A('v_mfma_f32_16x16x32_bf16 v[%d:%d], v[%d:%d], v[%d:%d], %s' % (T2, T2 + 3, vKX + 16 + 4 * k, vKX + 16 + 4 * k + 3, vQ + 4 * k, vQ + 4 * k + 3, c2))
        A('v_mfma_f32_16x16x32_bf16 v[%d:%d], v[%d:%d], v[%d:%d], %s' % (T0, T0 + 3, vKM + 4 * k, vKM + 4 * k + 3, vQ + 4 * k, vQ + 4 * k + 3, c0))
    Vp = 72
    for i in range(4): A('ds_read_b64 v[%d:%d], v%d offset:%d' % (Vp + 2 * i, Vp + 2 * i + 1, vXvR, 2048 * i))
    A.nop(3)
    A.c('P5')
    m, t = vT, vT + 1
    A('v_max3_f32 v%d, v%d, v%d, v%d' % (m, T1, T1 + 1, T1 + 2)); A('v_max3_f32 v%d, v%d, v%d, v%d' % (t, T1 + 3, T2, T2 + 1))
    A('v_max3_f32 v%d, v%d, v%d, v%d' % (m, m, T2 + 2, T2 + 3)); A('v_max3_f32 v%d, v%d, v%d, v%d' % (t, t, T0, T0 + 1))
    A('v_max_f32 v%d, v%d, v%d' % (m, m, t))
    for sw in ('v_permlane32_swap_b32', 'v_permlane16_swap_b32'):
        A('v_mov_b32 v%d, v%d' % (t, m)); A('s_nop 1'); A('%s v%d, v%d' % (sw, m, t)); A('s_nop 0'); A('v_max_f32 v%d, v%d, v%d' % (m, m, t))
    A('v_mul_f32 v%d, s%d, v%d' % (m, sC_, m))
    A('s_waitcnt lgkmcnt(0)')
    A(pkadd(Vp, Vp, Vp + 2)); A(pkadd(Vp + 4, Vp + 4, Vp + 6)); A(pkadd(Vp, Vp, Vp + 4))
    A('v_cvt_pk_bf16_f32 v%d, v%d, v%d' % (vVM, Vp, Vp + 1))
    if early_end:
        A('s_cmp_eq_u32 s%d, %d' % (sS, nsteps - 1)); A('s_cbranch_scc1 chain_last')
    A('v_mov_b32 v%d, v%d' % (t, m))
    for x in list(range(T1, T1 + 8, 2)) + [T0]:
        A('v_pk_fma_f32 v[%d:%d], v[%d:%d], s[56:57], v[%d:%d] neg_lo:[0,0,1] neg_hi:[0,0,1]' % (x, x + 1, x, x + 1, m, m + 1))
    for x in list(range(T1, T1 + 8)) + [T0, T0 + 1]: A('v_exp_f32 v%d, v%d' % (x, x))
    vPx, vPm2 = 56, 60; vO, vO2, vSm, vSm2 = 64, 68, 120, 88
    A('v_cvt_pk_bf16_f32 v%d, v%d, v%d' % (vPx, T1, T1 + 1)); A('v_cvt_pk_bf16_f32 v%d, v%d, v%d' % (vPx + 1, T1 + 2, T1 + 3))
    A('v_cvt_pk_bf16_f32 v%d, v%d, v%d' % (vPx + 2, T2, T2 + 1)); A('v_cvt_pk_bf16_f32 v%d, v%d, v%d' % (vPx + 3, T2 + 2, T2 + 3))
    A('v_cvt_pk_bf16_f32 v%d, v%d, v%d' % (vPm2, T0, T0 + 1)); A('v_mov_b32 v%d, 0' % (vPm2 + 1))
    A('s_nop 0')
    A('v_mfma_f32_16x16x32_bf16 v[%d:%d], v[%d:%d], v[%d:%d], 0' % (vO, vO + 3, vVXF, vVXF + 3, vPx, vPx + 3))
    A('v_mfma_f32_16x16x16_bf16 v[%d:%d], v[%d:%d], v[%d:%d], 0' % (vO2, vO2 + 3, vVM, vVM + 1, vPm2, vPm2 + 1))
    A('v_mfma_f32_16x16x16_bf16 v[%d:%d], v[%d:%d], v[%d:%d], 0' % (vSm, vSm + 3, vOnes, vOnes1, vPx, vPx + 1))
    A('v_mfma_f32_16x16x16_bf16 v[%d:%d], v[%d:%d], v[%d:%d], v[%d:%d]' % (vSm, vSm + 3, vOnes, vOnes1, vPx + 2, vPx + 3, vSm, vSm + 3))
    A('v_mfma_f32_16x16x16_bf16 v[%d:%d], v[%d:%d], v[%d:%d], v[%d:%d]' % (vSm, vSm + 3, vOnes, vOnes1, vPm2, vPm2 + 1, vSm, vSm + 3))
    ops = [(kap, tt) for kap in range(8) for tt in range(2)]
    breg = [96, 104, 112, 120, 40, 48]
    def wo_read(n, Rg):
        off = n * 2048
        A('ds_read_b128 v[%d:%d], v%d offset:%d' % (Rg, Rg + 3, vWoR, off))
        A('ds_read_b128 v[%d:%d], v%d offset:%d' % (Rg + 4, Rg + 7, vWoR, off + 1024))
    for n in range(2): wo_read(n, breg[n])
    A.nop(4)
    A('v_rcp_f32 v%d, v%d' % (m, vSm))
    A(pkadd(vO, vO, vO2)); A(pkadd(vO + 2, vO + 2, vO2 + 2))
    for i in range(4): A('v_mul_f32 v%d, v%d, v%d' % (vO + i, vO + i, m))
    A('v_cvt_pk_bf16_f32 v%d, v%d, v%d' % (vO, vO, vO + 1)); A('v_cvt_pk_bf16_f32 v%d, v%d, v%d' % (vO + 1, vO + 2, vO + 3))
    A('v_pk_min_u16 v%d, v%d, s%d' % (vO, vO, sFE)); A('v_pk_min_u16 v%d, v%d, s%d' % (vO + 1, vO + 1, sFE))
    A(st('buffer_store_dwordx2 v[%d:%d], v%d, %s, s%d offen' % (vO, vO + 1, vOSt, WS, sOBc)))
    rts(6)
    for n in range(2, 6): wo_read(n, breg[n])
    stamp(4)
    A.c('P6')
    vOA = 60; acc0 = 56; acc1 = 92
    for i in range(4):
        A('v_mov_b32 v%d, 0' % (acc0 + i)); A('v_mov_b32 v%d, 0' % (acc1 + i))
    A('s_add_u32 s%d, s%d, 1' % (sT3, sS))
    calc(sT3)
    if d6: A('s_sleep %d' % d6)
    A('s_add_u32 s%d, s%d, 4096' % (sT2, sOBc2))
    loads = ['buffer_load_dwordx4 v[%d:%d], v%d, %s, s%d offen offset:%d sc1' % (vOA + 4 * k, vOA + 4 * k + 3, vL16, WS, sOBc2 if k < 4 else sT2, 1024 * (k & 3)) for k in range(8)]
    chk = []
    for k in range(8): chk += [vOA + 4 * k, vOA + 4 * k + 2]
    if sel: poll_sel(loads, [[vOA + 4 * k, vOA + 4 * k + 2] for k in range(8)])
    else: poll(loads, chk, site=2)
    rts(7)
    stamp(5)
    A('s_waitcnt lgkmcnt(0)')
    nb = len(breg); issued = nb
    for n, (kap, tt) in enumerate(ops):
        ac = acc1 if tt else acc0
        Rg = breg[n % nb]
        if n >= nb: A('s_waitcnt lgkmcnt(%d)' % min((min(issued, 16) - (n + 1)) * 2, 15))
        A('v_smfmac_f32_16x16x64_bf16 v[%d:%d], v[%d:%d], v[%d:%d], v%d' % (ac, ac + 3, vOA + 4 * kap, vOA + 4 * kap + 3, Rg, Rg + 7, vIdx))
        if issued < 16: wo_read(issued, Rg); issued += 1
    A.nop(9)
    A(pkadd(acc0, acc0, acc0 + 2)); A(pkadd(acc1, acc1, acc1 + 2))
    A('ds_write_b32 v%d, v%d' % (vRedW, acc0)); A('ds_write_b32 v%d, v%d offset:128' % (vRedW, acc0 + 1))
    A('ds_write_b32 v%d, v%d offset:64' % (vRedW, acc1)); A('ds_write_b32 v%d, v%d offset:192' % (vRedW, acc1 + 1))
    A('s_waitcnt lgkmcnt(0)')
    A('s_barrier')
    rts(8)
    Lw1b = A.uid('rw1')
    A('s_cmp_lg_u32 s%d, 0' % sW); A('s_cbranch_scc1 %s' % Lw1b)
    S = W0
    for k in range(4):
        A('ds_read_b128 v[%d:%d], v%d offset:%d' % (S + 8 * k, S + 8 * k + 3, vRedR, 1024 * k))
        A('ds_read_b128 v[%d:%d], v%d offset:%d' % (S + 8 * k + 4, S + 8 * k + 7, vRedR, 1024 * k + 16))
    for k in range(1, 4):
        A('s_waitcnt lgkmcnt(%d)' % (6 - 2 * k))
        for i in range(0, 8, 2): A(pkadd(S + i, S + i, S + 8 * k + i))
    for i in range(4): A('v_cvt_pk_bf16_f32 v%d, v%d, v%d' % (S + 8 + i, S + 2 * i, S + 2 * i + 1))
    for i in range(4): A('v_pk_min_u16 v%d, v%d, s%d' % (S + 8 + i, S + 8 + i, sFE))
    A('s_add_u32 s%d, s%d, %d' % (sT2, sMEMn, RDELTA))
    A(st('buffer_store_dwordx4 v[%d:%d], v%d, %s, s%d offen' % (S + 8, S + 11, vPm, WS, sMEMn)))
    A('buffer_store_dwordx4 v[%d:%d], v%d, %s, s%d offen sc1' % (S + 8, S + 11, vPm, WS, sT2))
    rts(9)
    A.label(Lw1b)
    A('s_add_u32 s%d, s%d, 1' % (sT3, sS))
    calc_ob_memn(sT3)
    A('s_barrier')
    stamp(6)
    A('s_add_u32 s%d, s%d, 1' % (sS, sS)); A('s_cmp_lt_u32 s%d, %d' % (sS, nsteps)); A('s_cbranch_scc1 chain_step')
    if looptime:
        A('s_memrealtime s[%d:%d]' % (sRT + 2, sRT + 3)); A('s_waitcnt lgkmcnt(0)')
        A('s_sub_u32 s%d, s%d, s%d' % (sACC + 8, sRT + 2, sRT))
    if early_end:
        A('s_branch chain_fin')
        A.label('chain_last')
        if looptime:
            A('s_memrealtime s[%d:%d]' % (sRT + 2, sRT + 3)); A('s_waitcnt lgkmcnt(0)'); A('s_sub_u32 s%d, s%d, s%d' % (sACC + 8, sRT + 2, sRT))
        A('s_mov_b32 s%d, %d' % (sT3, nsteps))
        calc(sT3)
        A.label('chain_fin')
    A('buffer_load_dwordx4 v[%d:%d], v%d, %s, s%d offen offset:2048 sc1' % (vKR, vKR + 3, vQkLd, WS, sQKv))
    A('buffer_store_dword v%d, v%d, %s, s%d offen sc1' % (vOnes, vFlg, WS, sFLo))
    A('buffer_store_dword v%d, v%d, %s, s%d offen sc1' % (vVM, vVmSt, WS, sVMs))
    A('s_waitcnt vmcnt(2)')
    A('buffer_store_dwordx4 v[%d:%d], v%d, %s, s%d offen sc1' % (vKR, vKR + 3, vKmSt, WS, sKMs))
    A('s_waitcnt vmcnt(0)')
    A('s_add_u32 s%d, s%d, 1024' % (sT1, sFLo))
    A('buffer_store_dword v%d, v%d, %s, s%d offen sc1' % (vOnes, vFlg, WS, sT1))
    if timing or looptime:
        A('s_lshl_b32 s%d, s%d, 5' % (sT0, sX)); A('s_add_u32 s%d, s%d, s%d' % (sT0, sT0, sC)); A('s_lshl_b32 s%d, s%d, 2' % (sT0, sT0))
        A('s_add_u32 s%d, s%d, s%d' % (sT0, sT0, sW)); A('s_lshl_b32 s%d, s%d, 6' % (sT0, sT0)); A('s_add_u32 s%d, s%d, %d' % (sT0, sT0, CNT + 65536))
        for i in range(16): A('v_mov_b32 v%d, s%d' % (W0 + i, sACC + i))
        A('v_mov_b32 v%d, 0' % vT); A('s_mov_b64 exec, 1')
        for q in range(4): A('buffer_store_dwordx4 v[%d:%d], v%d, %s, s%d offen offset:%d' % (W0 + 4 * q, W0 + 4 * q + 3, vT, WS, sT0, 16 * q))
    A('s_waitcnt vmcnt(0)')
    if finish:
        A('s_mov_b64 exec, -1')
        A('s_branch %s' % finish)
    else:
        A('s_endpgm')
    A.label('chain_abort')
    A('s_mov_b64 exec, 1')
    A('v_mov_b32 v%d, 1' % vT); A('v_mov_b32 v%d, 128' % (vT + 1))
    A('global_atomic_add v%d, v%d, s[%d:%d] sc1' % (vT + 1, vT, S_DBG, S_DBG + 1))
    A('s_waitcnt vmcnt(0)')
    A('s_endpgm')
```

```python
from asmlib import *
from layout import *
from gemm2 import *
import struct, math
def fhex(x): return '0x%08x' % struct.unpack('<I', struct.pack('<f', x))[0]

def wave_allreduce(A, op, x, t):
    for rot in (8, 4, 2, 1):
        A('s_nop 1')
        A('v_%s_dpp v%d, v%d, v%d row_ror:%d row_mask:0xf bank_mask:0xf' % (op, x, x, x, rot))
    A('v_mov_b32 v%d, v%d' % (t, x))
    A('s_nop 1')
    A('v_permlane16_swap_b32 v%d, v%d' % (x, t))
    A('s_nop 0')
    A('v_%s v%d, v%d, v%d' % (op, x, x, t))
    A('v_mov_b32 v%d, v%d' % (t, x))
    A('s_nop 1')
    A('v_permlane32_swap_b32 v%d, v%d' % (x, t))
    A('s_nop 0')
    A('v_%s v%d, v%d, v%d' % (op, x, x, t))

def unpack8(A, src, dst):
    for i in range(4):
        A('v_lshlrev_b32 v%d, 16, v%d' % (dst + 2 * i, src + i))
        A('v_and_b32 v%d, 0xffff0000, v%d' % (dst + 2 * i + 1, src + i))
def pack8(A, src, dst):
    for i in range(4):
        A('v_cvt_pk_bf16_f32 v%d, v%d, v%d' % (dst + i, src + 2 * i, src + 2 * i + 1))
def round_bf16(A, regs, tmp):
    for i in range(0, len(regs), 2):
        A('v_cvt_pk_bf16_f32 v%d, v%d, v%d' % (tmp, regs[i], regs[i + 1]))
        A('v_lshlrev_b32 v%d, 16, v%d' % (regs[i], tmp))
        A('v_and_b32 v%d, 0xffff0000, v%d' % (regs[i + 1], tmp))

def rnd1(A, x, tmp):
    A('v_cvt_pk_bf16_f32 v%d, v%d, v%d' % (tmp, x, x))
    A('v_lshlrev_b32 v%d, 16, v%d' % (x, tmp))
def layernorm16(A, X, t):
    m, u, w, q = t, t + 1, t + 2, t + 3
    A('v_add_f32 v%d, v%d, v%d' % (m, X, X + 1))
    for i in range(2, 16): A('v_add_f32 v%d, v%d, v%d' % (m, m, X + i))
    wave_allreduce(A, 'add_f32', m, u)
    A('v_mul_f32 v%d, %s, v%d' % (m, fhex(1.0 / 1024), m))
    A('v_sub_f32 v%d, v%d, v%d' % (q, X, m))
    A('v_mul_f32 v%d, v%d, v%d' % (w, q, q))
    for i in range(1, 16):
        A('v_sub_f32 v%d, v%d, v%d' % (q, X + i, m))
        A('v_fmac_f32 v%d, v%d, v%d' % (w, q, q))
    wave_allreduce(A, 'add_f32', w, u)
    A('v_mul_f32 v%d, %s, v%d' % (w, fhex(1.0 / 1024), w))
    rnd1(A, w, u); rnd1(A, m, u)
    A('v_add_f32 v%d, %s, v%d' % (w, fhex(1e-5), w))
    rnd1(A, w, u)
    A('v_sqrt_f32 v%d, v%d' % (w, w))
    A('s_nop 0')
    rnd1(A, w, u)
    A('v_rcp_f32 v%d, v%d' % (w, w))
    for i in range(16): A('v_sub_f32 v%d, v%d, v%d' % (X + i, X + i, m))
    round_bf16(A, list(range(X, X + 16)), u)
    for i in range(16): A('v_mul_f32 v%d, v%d, v%d' % (X + i, X + i, w))

def lane_setup(A):
    A('v_and_b32 v1, 63, v0')
    A('v_lshrrev_b32 v2, 6, v0')
    A('s_nop 0')
    A('v_readfirstlane_b32 s%d, v2' % sW)
    A('v_lshlrev_b32 v3, 4, v1')
    A('v_lshlrev_b32 v4, 5, v1')
    A('s_nop 1')

def load_row_bf16(A, dst, srdn, soff, fl):
    A('buffer_load_dwordx4 v[%d:%d], v3, %s, s%d offen %s' % (dst, dst + 3, srd(srdn), soff, fl))
    A('buffer_load_dwordx4 v[%d:%d], v3, %s, s%d offen offset:1024 %s' % (dst + 4, dst + 7, srd(srdn), soff, fl))
def store_row_bf16(A, src, srdn, soff, fl):
    A('buffer_store_dwordx4 v[%d:%d], v3, %s, s%d offen %s' % (src, src + 3, srd(srdn), soff, fl))
    A('buffer_store_dwordx4 v[%d:%d], v3, %s, s%d offen offset:1024 %s' % (src + 4, src + 7, srd(srdn), soff, fl))
def load_row_f32(A, dst, srdn, soff, fl):
    A('buffer_load_dwordx4 v[%d:%d], v4, %s, s%d offen %s' % (dst, dst + 3, srd(srdn), soff, fl))
    A('buffer_load_dwordx4 v[%d:%d], v4, %s, s%d offen offset:16 %s' % (dst + 4, dst + 7, srd(srdn), soff, fl))
    A('buffer_load_dwordx4 v[%d:%d], v4, %s, s%d offen offset:2048 %s' % (dst + 8, dst + 11, srd(srdn), soff, fl))
    A('buffer_load_dwordx4 v[%d:%d], v4, %s, s%d offen offset:2064 %s' % (dst + 12, dst + 15, srd(srdn), soff, fl))

sRow = 55
def unit_ln1_load(A, base=64, rows_per_wave=2):
    lane_setup(A)
    A('s_mul_i32 s%d, s%d, %d' % (sT0, sW, rows_per_wave))
    A('s_add_u32 s%d, s%d, s%d' % (sT0, sT0, sRow))
    A('s_lshl_b32 s%d, s%d, 11' % (sT1, sT0))
    for r_ in range(rows_per_wave):
        A('s_add_u32 s%d, s%d, %d' % (sT2, sT1, 2048 * r_))
        load_row_bf16(A, base + 8 * r_, SRD_R, sT2, '')
def unit_ln1_compute(A, base=64, rows_per_wave=2):
    lane_setup(A)
    A('s_mul_i32 s%d, s%d, %d' % (sT0, sW, rows_per_wave))
    A('s_add_u32 s%d, s%d, s%d' % (sT0, sT0, sRow))
    A('s_lshl_b32 s%d, s%d, 11' % (sT1, sT0))
    A('s_waitcnt vmcnt(0)')
    for r_ in range(rows_per_wave):
        X = 96
        unpack8(A, base + 8 * r_, X); unpack8(A, base + 4 + 8 * r_, X + 8)
        layernorm16(A, X, 8)
        pack8(A, X, 48); pack8(A, X + 8, 52)
        A('s_add_u32 s%d, s%d, %d' % (sT2, sT1, XLN + 2048 * r_))
        store_row_bf16(A, 48, SRD_WS, sT2, 'sc1')
        A('s_nop 1')
def unit_ln1(A, rows_per_wave=2):
    unit_ln1_load(A, 64, rows_per_wave); unit_ln1_compute(A, 64, rows_per_wave)

NPART = 6
OUTFL = ''
def sum_partials(A, P, X, tmp):
    Y = X + 16
    unpack8(A, P, X); unpack8(A, P + 4, X + 8)
    for p in range(1, NPART):
        unpack8(A, P + 8 * p, Y); unpack8(A, P + 8 * p + 4, Y + 8)
        for i in range(0, 16, 2):
            A('v_pk_add_f32 v[%d:%d], v[%d:%d], v[%d:%d]' % (X + i, X + i + 1, X + i, X + i + 1, Y + i, Y + i + 1))
    round_bf16(A, list(range(X, X + 16)), tmp)

def row_setup(A):
    lane_setup(A)
    A('s_add_u32 s%d, s%d, s%d' % (sT0, sW, sRow))
    A('s_lshl_b32 s%d, s%d, 11' % (sT1, sT0))
    A('s_lshl_b32 s%d, s%d, 12' % (sT3, sT0))

def unit_r1(A):
    row_setup(A)
    B = 16
    for p in range(NPART):
        A('s_add_u32 s%d, s%d, %d' % (sT2, sT1, PO + p * 4 * MB))
        load_row_bf16(A, B + 8 * p, SRD_WS, sT2, 'sc1')
    load_row_bf16(A, B + 16 * NPART, SRD_R, sT1, '')
    A('s_waitcnt vmcnt(0)')
    X, Y = 160, 176
    sum_partials(A, B, X, 8)
    unpack8(A, B + 16 * NPART, Y); unpack8(A, B + 16 * NPART + 4, Y + 8)
    for i in range(16): A('v_add_f32 v%d, v%d, v%d' % (X + i, X + i, Y + i))
    pack8(A, X, 192); pack8(A, X + 8, 196)
    A('s_add_u32 s%d, s%d, %d' % (sT2, sT1, HB))
    store_row_bf16(A, 192, SRD_WS, sT2, 'sc1')
    unpack8(A, 192, X); unpack8(A, 196, X + 8)
    layernorm16(A, X, 8)
    pack8(A, X, 200); pack8(A, X + 8, 204)
    A('s_add_u32 s%d, s%d, %d' % (sT2, sT1, YB))
    store_row_bf16(A, 200, SRD_WS, sT2, 'sc1')
    unpack8(A, 200, X); unpack8(A, 204, X + 8)
    layernorm16(A, X, 8)
    pack8(A, X, 208); pack8(A, X + 8, 212)
    A('s_add_u32 s%d, s%d, %d' % (sT2, sT1, ZB))
    store_row_bf16(A, 208, SRD_WS, sT2, 'sc1')

def unit_r2(A):
    row_setup(A)
    A('s_add_u32 s%d, s%d, %d' % (sT2, sT1, X1B))
    load_row_bf16(A, 16, SRD_WS, sT2, 'sc1')
    A('s_waitcnt vmcnt(0)')
    X = 64
    unpack8(A, 16, X); unpack8(A, 20, X + 8)
    layernorm16(A, X, 8)
    pack8(A, X, 48); pack8(A, X + 8, 52)
    A('s_add_u32 s%d, s%d, %d' % (sT2, sT1, Z2B))
    store_row_bf16(A, 48, SRD_WS, sT2, 'sc1')

def unit_r3(A):
    row_setup(A)
    B = 16
    for p in range(NPART):
        A('s_add_u32 s%d, s%d, %d' % (sT2, sT1, P4 + p * 4 * MB))
        load_row_bf16(A, B + 8 * p, SRD_WS, sT2, 'sc1')
    A('s_add_u32 s%d, s%d, %d' % (sT2, sT1, X1B))
    load_row_bf16(A, B + 16 * NPART, SRD_WS, sT2, 'sc1')
    A('s_add_u32 s%d, s%d, %d' % (sT2, sT1, HB))
    load_row_bf16(A, B + 16 * NPART + 8, SRD_WS, sT2, 'sc1')
    A('s_waitcnt vmcnt(0)')
    X, Y = 160, 176
    sum_partials(A, B, X, 8)
    unpack8(A, B + 16 * NPART, Y); unpack8(A, B + 16 * NPART + 4, Y + 8)
    for i in range(16): A('v_add_f32 v%d, v%d, v%d' % (X + i, X + i, Y + i))
    round_bf16(A, list(range(X, X + 16)), 8)
    unpack8(A, B + 16 * NPART + 8, Y); unpack8(A, B + 16 * NPART + 12, Y + 8)
    for i in range(16): A('v_add_f32 v%d, v%d, v%d' % (X + i, X + i, Y + i))
    pack8(A, X, 192); pack8(A, X + 8, 196)
    store_row_bf16(A, 192, SRD_C, sT1, OUTFL)

sSeg, sHead = 56, 57
def unit_att(A):
    WSTR = 27648
    L, G, N = 1, 2, 3
    t0, t1, t2, t3 = 4, 5, 6, 7
    A('v_and_b32 v%d, 63, v0' % L)
    A('v_lshrrev_b32 v%d, 6, v0' % t0)
    A('s_nop 0')
    A('v_readfirstlane_b32 s%d, v%d' % (sW, t0))
    A('v_lshrrev_b32 v%d, 4, v%d' % (G, L))
    A('v_and_b32 v%d, 15, v%d' % (N, L))
    A('s_nop 1')
    A('s_add_u32 s%d, s%d, s%d' % (sT5, sHead, sW))
    A('s_mul_i32 s%d, s%d, %d' % (sT4, sW, WSTR))
    A('s_lshl_b32 s%d, s%d, 18' % (sT0, sSeg))
    A('s_lshl_b32 s%d, s%d, 8' % (sT1, sT5))
    A('s_add_u32 s%d, s%d, s%d' % (sT0, sT0, sT1))
    vDq, vDv = 8, 16
    for i in range(4):
        A('v_add_u32 v%d, %d, v%d' % (t0, 4 * i, G))
        A('v_xor_b32 v%d, v%d, v%d' % (t1, t0, N))
        A('v_lshlrev_b32 v%d, 4, v%d' % (t1, t1))
        A('v_lshl_add_u32 v%d, v%d, 13, v%d' % (t1, t0, t1))
        A('v_subrev_u32 v%d, %d, v%d' % (vDq + i, 1024 * i, t1))
        A('v_and_b32 v%d, 7, v%d' % (t2, t0))
        A('v_lshrrev_b32 v%d, 1, v%d' % (t3, N))
        A('v_xor_b32 v%d, v%d, v%d' % (t2, t2, t3))
        A('v_lshlrev_b32 v%d, 5, v%d' % (t2, t2))
        A('v_and_b32 v%d, 1, v%d' % (t3, N))
        A('v_lshl_add_u32 v%d, v%d, 4, v%d' % (t2, t3, t2))
        A('v_lshl_add_u32 v%d, v%d, 13, v%d' % (t2, t0, t2))
        A('v_subrev_u32 v%d, %d, v%d' % (vDv + i, 1024 * i, t2))
    def dma_tile(gbase, ldsoff, vD):
        for hf in range(2):
            A('s_add_u32 m0, s%d, %d' % (sT4, ldsoff + hf * 4096))
            A('s_add_u32 s%d, s%d, %d' % (sT2, sT0, gbase + hf * 16 * 8192))
            for i in range(4):
                A('buffer_load_dwordx4 v%d, %s, s%d offen offset:%d sc1 lds' % (vD + i, srd(SRD_WS), sT2, 1024 * i))
    dma_tile(QX, 0, vDq); dma_tile(KX, 8192, vDq); dma_tile(VX, 16384, vDv)
    A('s_lshl_b32 s%d, s%d, 16' % (sT2, sSeg))
    A('s_add_u32 s%d, s%d, s%d' % (sT2, sT2, sT1))
    A('s_add_u32 s%d, s%d, %d' % (sT2, sT2, KM))
    A('s_add_u32 m0, s%d, %d' % (sT4, 24576))
    A('s_nop 0')
    for i in range(2):
        A('buffer_load_dwordx4 v%d, %s, s%d offen offset:%d sc1 lds' % (vDq + i, srd(SRD_WS), sT2, 1024 * i))
    vVM = 96
    A('s_lshl_b32 s%d, s%d, 5' % (sT2, sSeg))
    A('s_add_u32 s%d, s%d, s%d' % (sT2, sT2, sT5))
    A('s_lshl_b32 s%d, s%d, 11' % (sT2, sT2))
    A('s_add_u32 s%d, s%d, %d' % (sT2, sT2, VMF))
    A('v_lshlrev_b32 v%d, 2, v%d' % (t0, L))
    for te in range(8):
        A('buffer_load_dword v%d, v%d, %s, s%d offen offset:%d sc1' % (vVM + 2 * te, t0, srd(SRD_WS), sT2, 256 * te))
        A('v_mov_b32 v%d, 0' % (vVM + 2 * te + 1))
    vFr = 20
    A('v_xor_b32 v%d, v%d, v%d' % (t0, G, N))
    A('v_lshlrev_b32 v%d, 4, v%d' % (t0, t0))
    A('v_lshl_add_u32 v%d, v%d, 8, v%d' % (t0, N, t0))
    A('v_add_u32 v%d, s%d, v%d' % (vFr, sT4, t0))
    for k in range(1, 4): A('v_xor_b32 v%d, %d, v%d' % (vFr + k, k * 64, vFr))
    vKmA = 24
    A('v_lshrrev_b32 v%d, 2, v%d' % (t1, N)); A('v_lshlrev_b32 v%d, 1, v%d' % (t1, t1)); A('v_and_b32 v%d, 1, v%d' % (t0, N)); A('v_add_u32 v%d, v%d, v%d' % (t1, t1, t0))
    A('v_xor_b32 v%d, v%d, v%d' % (t0, G, t1))
    A('v_lshlrev_b32 v%d, 4, v%d' % (t0, t0))
    A('v_lshl_add_u32 v%d, v%d, 8, v%d' % (t0, t1, t0))
    A('v_add_u32 v%d, s%d, v%d' % (vKmA, sT4, t0))
    A('v_add_u32 v%d, 24576, v%d' % (vKmA, vKmA))
    for k in range(1, 4): A('v_xor_b32 v%d, %d, v%d' % (vKmA + k, k * 64, vKmA))
    vVt = 28
    A('v_lshrrev_b32 v%d, 2, v%d' % (t0, N))
    A('v_lshl_add_u32 v%d, v%d, 2, v%d' % (t0, G, t0))
    A('v_and_b32 v%d, 7, v%d' % (t1, t0))
    A('v_lshlrev_b32 v%d, 5, v%d' % (t1, t1))
    A('v_lshl_add_u32 v%d, v%d, 8, v%d' % (t1, t0, t1))
    A('v_and_b32 v%d, 3, v%d' % (t2, N))
    A('v_lshl_add_u32 v%d, v%d, 3, v%d' % (t1, t2, t1))
    A('v_add_u32 v%d, s%d, v%d' % (vVt, sT4, t1))
    A('v_add_u32 v%d, 16384, v%d' % (vVt, vVt))
    A('s_waitcnt vmcnt(0)')
    vQf = 32
    vKf = 64
    vMf = 112
    for qt in range(2):
        for k in range(4):
            A('ds_read_b128 v[%d:%d], v%d offset:%d' % (vQf + (qt * 4 + k) * 4, vQf + (qt * 4 + k) * 4 + 3, vFr + k, qt * 4096))
    for tt in range(2):
        for k in range(4):
            A('ds_read_b128 v[%d:%d], v%d offset:%d' % (vKf + (tt * 4 + k) * 4, vKf + (tt * 4 + k) * 4 + 3, vFr + k, 8192 + tt * 4096))
        A('s_waitcnt lgkmcnt(8)')
    for k in range(4):
        A('ds_read_b128 v[%d:%d], v%d' % (vMf + 4 * k, vMf + 4 * k + 3, vKmA + k))
    A('s_waitcnt lgkmcnt(0)')
    S = {(0, 'm'): 128, (0, 0): 132, (1, 'm'): 136, (1, 0): 140, (1, 1): 144}
    for k in range(4):
        for (qt, kt), R in S.items():
            a_ = vMf + 4 * k if kt == 'm' else vKf + (kt * 4 + k) * 4
            b_ = vQf + (qt * 4 + k) * 4
            c_ = '0' if k == 0 else 'v[%d:%d]' % (R, R + 3)
            A('v_mfma_f32_16x16x32_bf16 v[%d:%d], v[%d:%d], v[%d:%d], %s' % (R, R + 3, a_, a_ + 3, b_, b_ + 3, c_))
    vVf = 148
    for te in range(8):
        A('v_xor_b32 v%d, %d, v%d' % (t0 + (te & 1), te * 32, vVt))
        for tt in range(2):
            A('ds_read_b64_tr_b16 v[%d:%d], v%d offset:%d' % (vVf + (te * 2 + tt) * 2, vVf + (te * 2 + tt) * 2 + 1, t0 + (te & 1), tt * 4096))
    A('v_lshlrev_b32 v%d, 2, v%d' % (t2, G))
    NEG = 30
    A('v_mov_b32 v%d, 0xf149f2ca' % NEG)
    for i in range(4):
        A('v_add_u32 v%d, %d, v%d' % (t3, i, t2))
        A('v_cmp_gt_u32 vcc, v%d, v%d' % (t3, N))
        A('s_nop 1')
        A('v_cndmask_b32 v%d, v%d, v%d, vcc' % (S[(0, 0)] + i, S[(0, 0)] + i, NEG))
        A('v_cndmask_b32 v%d, v%d, v%d, vcc' % (S[(1, 1)] + i, S[(1, 1)] + i, NEG))
    for qt in range(2):
        for i in (2, 3): A('v_mov_b32 v%d, v%d' % (S[(qt, 'm')] + i, NEG))
    A('s_mov_b32 s%d, %s' % (sT3, fhex(math.log2(math.e))))
    A('s_mov_b32 s%d, %s' % (sT2, fhex(128 ** -0.5)))
    vP = 180
    Ppk = {}
    pi = vP
    for qt in range(2):
        tiles = [S[(qt, 'm')], S[(qt, 0)]] + ([S[(1, 1)]] if qt else [])
        regs = [R + i for R in tiles for i in range(4)]
        m, t = 192, 193
        round_bf16(A, regs, t)
        for x in regs: A('v_mul_f32 v%d, s%d, v%d' % (x, sT2, x))
        round_bf16(A, regs, t)
        A('v_max3_f32 v%d, v%d, v%d, v%d' % (m, regs[0], regs[1], regs[2]))
        rs = regs[3:]
        while len(rs) >= 2:
            A('v_max3_f32 v%d, v%d, v%d, v%d' % (m, m, rs[0], rs[1])); rs = rs[2:]
        if rs: A('v_max_f32 v%d, v%d, v%d' % (m, m, rs[0]))
        for sw in ('v_permlane32_swap_b32', 'v_permlane16_swap_b32'):
            A('v_mov_b32 v%d, v%d' % (t, m)); A('s_nop 1')
            A('%s v%d, v%d' % (sw, m, t)); A('s_nop 0')
            A('v_max_f32 v%d, v%d, v%d' % (m, m, t))
        for x in regs: A('v_sub_f32 v%d, v%d, v%d' % (x, x, m))
        for x in regs: A('v_mul_f32 v%d, s%d, v%d' % (x, sT3, x))
        for x in regs: A('v_exp_f32 v%d, v%d' % (x, x))
        A('s_nop 0')
        A('v_add_f32 v%d, v%d, v%d' % (m, regs[0], regs[1]))
        for x in regs[2:]: A('v_add_f32 v%d, v%d, v%d' % (m, m, x))
        for sw in ('v_permlane32_swap_b32', 'v_permlane16_swap_b32'):
            A('v_mov_b32 v%d, v%d' % (t, m)); A('s_nop 1')
            A('%s v%d, v%d' % (sw, m, t)); A('s_nop 0')
            A('v_add_f32 v%d, v%d, v%d' % (m, m, t))
        A('v_rcp_f32 v%d, v%d' % (m, m))
        A('s_nop 0')
        for x in regs: A('v_mul_f32 v%d, v%d, v%d' % (x, x, m))
        for ti, R in enumerate(tiles):
            key = 'm' if ti == 0 else ti - 1
            Ppk[(qt, key)] = pi
            A('v_cvt_pk_bf16_f32 v%d, v%d, v%d' % (pi, R, R + 1))
            A('v_cvt_pk_bf16_f32 v%d, v%d, v%d' % (pi + 1, R + 2, R + 3))
            pi += 2
    A('s_waitcnt lgkmcnt(0)')
    vO = 32
    for qt in range(2):
        for te in range(8):
            R = vO + (qt * 8 + te) * 4
            A('v_mfma_f32_16x16x16_bf16 v[%d:%d], v[%d:%d], v[%d:%d], 0' % (R, R + 3, vVM + 2 * te, vVM + 2 * te + 1, Ppk[(qt, 'm')], Ppk[(qt, 'm')] + 1))
    for qt in range(2):
        for tt in range(2 if qt else 1):
            for te in range(8):
                R = vO + (qt * 8 + te) * 4
                a_ = vVf + (te * 2 + tt) * 2
                A('v_mfma_f32_16x16x16_bf16 v[%d:%d], v[%d:%d], v[%d:%d], v[%d:%d]' % (R, R + 3, a_, a_ + 1, Ppk[(qt, tt)], Ppk[(qt, tt)] + 1, R, R + 3))
    A.nop(10)
    RS = 272
    vSw, vSr, vGo = 4, 5, 6
    A('v_mul_u32_u24 v%d, %d, v%d' % (vSw, RS, N))
    A('v_lshl_add_u32 v%d, v%d, 3, v%d' % (vSw, G, vSw))
    A('v_add_u32 v%d, s%d, v%d' % (vSw, sT4, vSw))
    for qt in range(2):
        for te in range(8):
            R = vO + (qt * 8 + te) * 4
            A('v_cvt_pk_bf16_f32 v%d, v%d, v%d' % (R, R, R + 1))
            A('v_cvt_pk_bf16_f32 v%d, v%d, v%d' % (R + 1, R + 2, R + 3))
            A('ds_write_b64 v%d, v[%d:%d] offset:%d' % (vSw, R, R + 1, qt * 16 * RS + te * 32))
    A('v_mul_u32_u24 v%d, %d, v%d' % (vSr, RS, G))
    A('v_lshl_add_u32 v%d, v%d, 4, v%d' % (vSr, N, vSr))
    A('v_add_u32 v%d, s%d, v%d' % (vSr, sT4, vSr))
    A('v_lshlrev_b32 v%d, 13, v%d' % (vGo, G))
    A('v_lshl_add_u32 v%d, v%d, 4, v%d' % (vGo, N, vGo))
    A('s_waitcnt lgkmcnt(0)')
    for b in range(8):
        A('ds_read_b128 v[%d:%d], v%d offset:%d' % (96 + 4 * b, 96 + 4 * b + 3, vSr, b * 4 * RS))
    A('s_waitcnt lgkmcnt(0)')
    for b in range(8):
        A('s_add_u32 s%d, s%d, %d' % (sT2, sT0, OX + b * 4 * 8192))
        A('buffer_store_dwordx4 v[%d:%d], v%d, %s, s%d offen sc1' % (96 + 4 * b, 96 + 4 * b + 3, vGo, srd(SRD_WS), sT2))
```

```python
import sys
from asmlib import *
from layout import *
import chain11 as chain
from gemm2 import *
from gemm3 import Gemm
from gemmbs import GemmBS
from units3 import *

BM = 128
SBM = 64
NBIG = 31
NB = NBLK
KNAME = 'sequential_preLN__memory_aug_recurrent_mem_tr__mixer_s_mlp__prompt_kernel'
SPIN = 1 << 22
sXW, sTK, sIt, sFlag, sItem, sQi, sTab, sDep, sCnt, sSp = 80, 81, 82, 83, 84, 85, 86, 88, 89, 90
sMsk = 92
sRB, sNT, sKS = 94, 95, 96
sK0, sNKi = 78, 79
sRow0, sBig = 70, 71
sShI, sShR = 75, 76
sS0, sS1, sS2 = 58, 59, 91
sChunk = 97
sD0, sD1, sD2 = 72, 73, 74
sC3 = 77
T_ATT, T_O, T_R1, T_W1, T_W2, T_R2, T_W3, T_W4, T_R3, T_ROWLOOP = range(1, 11)
O_SPLIT = [(0, 11), (11, 11), (22, 11), (33, 11), (44, 10), (54, 10)]
W4_SPLIT = [(0, 10), (10, 10), (20, 9), (29, 9), (38, 9), (47, 9)]
def word(t, a, b=0, c=0, k0=0, nk=0, end=0):
    assert a < 64 and b < 32 and c < 8 and k0 < 64 and nk < 32
    return (t << 28) | (a << 22) | (b << 17) | (c << 14) | (k0 << 8) | (nk << 3) | end

def build_table():
    T = {(x, t): [0, 0, 0] for x in range(8) for t in range(32)}
    slot = [0] * 6
    def take(x):
        w = (x, slot[x]); slot[x] += 1; assert slot[x] <= 32; return w
    for x in range(6):
        for nt in range(8): T[take(x)] = [word(T_O, 0, nt, x, *O_SPLIT[x]), 0, 0]
    for nt in range(8): T[take(0)] = [word(T_W1, 0, nt), 0, 0]
    for nt in range(8): T[take(1)] = [word(T_W2, 0, nt), 0, 0]
    for nt in range(28): T[take(2 + nt // 7)] = [word(T_W3, 0, nt), 0, 0]
    for x in range(6):
        for nt in range(8): T[take(x)] = [word(T_W4, 0, nt, x, *W4_SPLIT[x]), 0, 0]
    free = [(x, t) for x in range(6) for t in range(slot[x], 32)]
    assert len(free) >= 48, len(free)
    LB = NBIG
    w4 = lambda i: word(T_W4, LB, i % 8, i // 8, *W4_SPLIT[i // 8], end=1)
    for i in range(16): T[free[i]] = [word(T_ATT, i >> 3, i & 7, 0, 63), w4(36 + i) if i < 12 else 0, 0]
    for c in range(32): T[free[16 + c]] = [word(T_ROWLOOP, 0, c), 0, 0]
    for m in range(64):
        w = []
        if m < 48: w.append(word(T_O, LB, m % 8, m // 8, *O_SPLIT[m // 8], end=1))
        if m < 28: w.append(word(T_W3, LB, m, end=1))
        elif m < 48: w.append(w4(m - 28))
        elif m < 56: w += [word(T_W1, LB, m - 48, end=1), w4(20 + m - 48)]
        else: w += [word(T_ATT, 63, m - 56, 0, 0), word(T_W2, LB, m - 56, end=1), w4(28 + m - 56)]
        T[6 + m // 32, m % 32] = (w + [0, 0, 0])[:3]
    return T

TRACE = [0]
def mk_srd(A, n, karg, size):
    A('s_load_dwordx2 s[%d:%d], s[0:1], %d' % (n, n + 1, karg))
    A('s_mov_b32 s%d, %d' % (n + 2, size))
    A('s_mov_b32 s%d, 0x00020000' % (n + 3))
    A('s_waitcnt lgkmcnt(0)')
def ws_srd(A, n):
    for i in range(4): A('s_mov_b32 s%d, s%d' % (n + i, 8 + i))
def gemm_params(A, lda, ldb, ldc, nk, mode, shift=0):
    A('s_mov_b32 s%d, %d' % (sLda, lda)); A('s_mov_b32 s%d, %d' % (sLdb, ldb)); A('s_mov_b32 s%d, %d' % (sLdc, ldc))
    A('s_mov_b32 s%d, %d' % (sNk, nk)); A('s_mov_b32 s%d, %d' % (sShift, lda if shift else 0)); A('s_mov_b32 s%d, %d' % (sMode, mode))

def wave_id(A, dst):
    A('v_lshrrev_b32 v250, 6, v0'); A('s_nop 0'); A('v_readfirstlane_b32 s%d, v250' % dst); A('s_nop 3')

def wait_flags(A):
    Ld = A.uid('wf'); Ll = A.uid('wl')
    wave_id(A, sSp)
    A('s_cmp_lg_u32 s%d, 0' % sSp); A('s_cbranch_scc1 %s' % Ld)
    A('v_cmp_gt_u32 vcc, s%d, v0' % sCnt)
    A('s_mov_b64 s[%d:%d], vcc' % (sMsk, sMsk + 1))
    A('v_lshlrev_b32 v250, 2, v0')
    A('s_mov_b32 s%d, 0' % sSp)
    A('s_mov_b64 exec, s[%d:%d]' % (sMsk, sMsk + 1))
    A.label(Ll)
    A('buffer_load_dword v251, v250, s[8:11], s%d offen sc1' % sDep)
    A('s_add_u32 s%d, s%d, 1' % (sSp, sSp)); A('s_cmp_gt_u32 s%d, %d' % (sSp, SPIN)); A('s_cbranch_scc1 worker_abort')
    A('s_waitcnt vmcnt(0)')
    A('v_cmp_eq_u32 vcc, 0, v251')
    A('s_cbranch_vccz %s_ok' % Ll)
    A('s_sleep 4'); A('s_branch %s' % Ll)
    A.label(Ll + '_ok')
    A('s_mov_b64 exec, -1')
    A.label(Ld)
    A('s_barrier')
    if TRACE[0]: A('s_memrealtime s[100:101]')

def signal_flag(A):
    A('s_waitcnt vmcnt(0)')
    A('s_barrier')
    L = A.uid('sf')
    A('v_cmp_eq_u32 vcc, 0, v0')
    A('s_and_saveexec_b64 s[%d:%d], vcc' % (sMsk, sMsk + 1))
    A('s_cbranch_execz %s' % L)
    A('v_mov_b32 v250, 0'); A('v_mov_b32 v251, 1')
    A('buffer_store_dword v251, v250, s[8:11], s%d offen sc1' % sFlag)
    A.label(L)
    A('s_mov_b64 exec, s[%d:%d]' % (sMsk, sMsk + 1))

def kvwait(A, seg_sreg, issue_only=False, check_only=False):
    c = chain
    def addr():
        A('s_lshr_b32 s%d, s%d, 2' % (c.sT0, seg_sreg)); A('s_mul_i32 s%d, s%d, 384' % (c.sT0, c.sT0))
        A('s_lshl_b32 s%d, s%d, 2' % (c.sT1, c.sH)); A('s_add_u32 s%d, s%d, s%d' % (c.sT0, c.sT0, c.sT1))
        A('s_add_u32 s%d, s%d, %d' % (c.sT0, c.sT0, FQKV + 128)); A('v_mov_b32 v125, 0')
    def loads():
        A('buffer_load_dword v126, v125, s[8:11], s%d offen sc1' % c.sT0)
        A('buffer_load_dword v127, v125, s[8:11], s%d offen offset:128 sc1' % c.sT0)
    if issue_only:
        addr(); loads(); return
    L = A.uid('kv'); Lok = A.uid('kvok')
    if check_only:
        A('v_and_b32 v126, v126, v127'); A('v_cmp_eq_u32 vcc, 0, v126'); A('s_cbranch_vccz %s' % Lok)
    addr()
    A('s_mov_b32 s%d, 0' % c.sSPIN)
    A.label(L)
    loads()
    A('s_add_u32 s%d, s%d, 1' % (c.sSPIN, c.sSPIN)); A('s_cmp_gt_u32 s%d, %d' % (c.sSPIN, SPIN)); A('s_cbranch_scc1 chain_abort')
    A('s_waitcnt vmcnt(0)')
    A('v_and_b32 v126, v126, v127'); A('v_cmp_eq_u32 vcc, 0, v126'); A('s_cbranch_vccnz %s' % L)
    A.label(Lok)

def gen(intra='', chain_kw=None, trace=0, coop=1, wake=56, wpre=0, hold=0):
    hold = int(hold)
    wpre = int(wpre); coop = int(coop); trace = int(trace); TRACE[0] = trace; wake = int(wake)
    A = Asm()
    G = GemmBS(A, 128, stamps=bool(trace))
    GS = GemmBS(A, SBM, stamps=bool(trace))
    A.raw('; @launch grid=(256,1,1) block=(256,1,1) lds=163840')
    A.raw('.amdgcn_target "amdgcn-amd-amdhsa--gfx950"')
    A.raw('.text')
    kernel_header(A, KNAME)
    A('s_cmp_ge_u32 s2, 256'); A('s_cbranch_scc1 L_exit_main')
    A('s_load_dwordx2 s[4:5], s[0:1], %d' % D_WS)
    A('s_load_dwordx2 s[6:7], s[0:1], %d' % D_DBG)
    if trace: A('s_memrealtime s[64:65]')
    A('s_getreg_b32 s16, hwreg(HW_REG_XCC_ID)')
    A('s_and_b32 s16, s16, 15')
    A('s_waitcnt lgkmcnt(0)')
    A('s_mov_b32 s8, s4'); A('s_mov_b32 s9, s5'); A('s_mov_b32 s10, %d' % WS_SIZE); A('s_mov_b32 s11, 0x00020000')
    A('v_cmp_eq_u32 vcc, 0, v0'); A('s_and_saveexec_b64 s[20:21], vcc'); A('s_cbranch_execz L_nt')
    A('s_lshl_b32 s17, s16, 2'); A('v_mov_b32 v1, s17'); A('v_mov_b32 v2, 1')
    A('global_atomic_add v3, v1, v2, s[6:7] sc0 sc1'); A('s_waitcnt vmcnt(0)')
    A('v_mov_b32 v1, 0'); A('ds_write_b32 v1, v3'); A('s_waitcnt lgkmcnt(0)')
    A.label('L_nt')
    A('s_mov_b64 exec, s[20:21]'); A('s_barrier')
    A('v_mov_b32 v1, 0'); A('ds_read_b32 v3, v1'); A('s_waitcnt lgkmcnt(0)'); A('v_readfirstlane_b32 s17, v3'); A('s_barrier')
    A('s_cmp_ge_u32 s17, 32'); A('s_cbranch_scc1 L_exit_main')
    if trace:
        A('s_memrealtime s[60:61]'); A('s_lshl_b32 s62, s16, 5'); A('s_add_u32 s62, s62, s17'); A('s_lshl_b32 s62, s62, 2'); A('s_add_u32 s62, s62, %d' % (TRC + 6 * MB))
        A('s_waitcnt lgkmcnt(0)'); A('v_mov_b32 v1, s64'); A('v_mov_b32 v2, 0'); A('buffer_store_dword v1, v2, s[8:11], s62 offen')
    A('s_cmp_ge_u32 s16, 2'); A('s_cbranch_scc1 worker')
    chain.gen_chain(A, intra=intra, kvwait=kvwait, finish='chain_to_worker', **(chain_kw or {}))
    A.label('chain_to_worker')
    A('v_mbcnt_lo_u32_b32 v0, -1, 0'); A('v_mbcnt_hi_u32_b32 v0, -1, v0')
    A('s_lshl_b32 s%d, s%d, 6' % (44, chain.sW)); A('v_add_u32 v0, s44, v0')
    A('s_add_u32 s%d, s%d, 6' % (sXW, chain.sX)); A('s_mov_b32 s%d, s%d' % (sTK, chain.sC))
    A('s_mov_b32 s%d, 8' % sIt)
    for n in (SRD_A, SRD_B, SRD_C, SRD_R): ws_srd(A, n)
    A('s_mov_b32 s%d, 0' % sChunk)
    A('s_barrier')
    A('s_branch streams')
    A.label('worker')
    A('s_sub_u32 s%d, s16, 2' % sXW); A('s_mov_b32 s%d, s17' % sTK)
    A('s_cmp_ge_u32 s%d, 6' % sXW); A('s_cbranch_scc1 L_exit_main')
    A('s_mov_b32 s%d, 0' % sIt)
    for n in (SRD_A, SRD_B, SRD_C, SRD_R): ws_srd(A, n)
    A('s_mov_b32 s%d, 0' % sS0); A('s_mov_b32 s%d, 0' % sS1); A('s_mov_b32 s%d, 0' % sS2); A('s_mov_b32 s%d, 0' % sChunk)
    A('s_lshl_b32 s%d, s%d, 5' % (sQi, sXW)); A('s_add_u32 s%d, s%d, s%d' % (sQi, sQi, sTK))
    if wpre:
        A('s_lshl_b32 s%d, s%d, 8' % (sT0, sQi)); A('v_add_u32 v20, s%d, v0' % sT0)
        A('v_lshlrev_b32 v21, 7, v20'); A('v_add_u32 v22, %d, v21' % (49152 * 128))
        for k_, karg in enumerate((A_WO, A_WV, A_WK, A_WQ)):
            mk_srd(A, SRD_C, karg, 8 * MB)
            A('buffer_load_dword v%d, v21, %s, 0 offen' % (24 + 2 * k_, srd(SRD_C)))
            A('buffer_load_dword v%d, v22, %s, 0 offen' % (25 + 2 * k_, srd(SRD_C)))
        ws_srd(A, SRD_C)
    A('v_mov_b32 v8, 0'); A('v_mov_b32 v9, 0'); A('v_mov_b32 v10, 0'); A('v_mov_b32 v11, 0')
    A('v_lshlrev_b32 v12, 4, v0')
    Lz1 = A.uid('z'); Lz2 = A.uid('z')
    A('s_cmp_ge_u32 s%d, 32' % sQi); A('s_cbranch_scc1 %s' % Lz1)
    A('s_lshl_b32 s%d, s%d, 12' % (sT0, sQi)); A('s_add_u32 s%d, s%d, %d' % (sT0, sT0, FLG_SEG))
    A('buffer_store_dwordx4 v[8:11], v12, s[8:11], s%d offen sc1' % sT0)
    A.label(Lz1)
    A('s_cmp_lg_u32 s%d, 32' % sQi); A('s_cbranch_scc1 %s' % Lz2)
    A('s_mov_b32 s%d, %d' % (sT0, GB0)); A('buffer_store_dwordx4 v[8:11], v12, s[8:11], s%d offen sc1' % sT0)
    A('s_mov_b32 s%d, %d' % (sT0, GB + 2048 * 2048)); A('buffer_store_dwordx4 v[8:11], v12, s[8:11], s%d offen sc1' % sT0)
    A.label(Lz2)
    A('s_waitcnt vmcnt(0)'); A('s_barrier')
    Lz3 = A.uid('z')
    A('v_cmp_eq_u32 vcc, 0, v0'); A('s_and_saveexec_b64 s[%d:%d], vcc' % (sMsk, sMsk + 1)); A('s_cbranch_execz %s' % Lz3)
    A('v_mov_b32 v250, 68'); A('v_mov_b32 v251, 1'); A('global_atomic_add v250, v251, s[6:7] sc1')
    A.label(Lz3)
    A('s_mov_b64 exec, s[%d:%d]' % (sMsk, sMsk + 1))
    mk_srd(A, SRD_R, A_X, 4 * MB)
    A('s_mov_b32 s%d, s%d' % (sChunk, sQi))
    A.label('ln_item')
    A('s_lshl_b32 s%d, s%d, 3' % (sRow, sChunk))
    unit_ln1(A)
    Lzw = A.uid('zw')
    A('s_mov_b32 s%d, 0' % sSp); A('v_mov_b32 v250, 68')
    A.label(Lzw)
    A('global_load_dword v251, v250, s[6:7] sc1')
    A('s_add_u32 s%d, s%d, 1' % (sSp, sSp)); A('s_cmp_gt_u32 s%d, %d' % (sSp, SPIN)); A('s_cbranch_scc1 worker_abort')
    A('s_waitcnt vmcnt(0)')
    A('v_readfirstlane_b32 s%d, v251' % sT0); A('s_nop 3'); A('s_cmp_lt_u32 s%d, 192' % sT0); A('s_cbranch_scc1 %s' % Lzw)
    A('s_lshl_b32 s%d, s%d, 2' % (sT0, sChunk)); A('s_add_u32 s%d, s%d, %d' % (sFlag, sT0, FXL))
    signal_flag(A)
    A('s_add_u32 s%d, s%d, 192' % (sChunk, sChunk)); A('s_cmp_lt_u32 s%d, 256' % sChunk); A('s_cbranch_scc1 ln_item')
    A('s_mov_b32 s%d, 0' % sChunk)
    ws_srd(A, SRD_R)
    A.label('qkv_next')
    A('s_cmp_ge_u32 s%d, 8' % sIt); A('s_cbranch_scc1 streams')
    A('s_lshr_b32 s%d, s%d, 4' % (sRB, sTK)); A('s_lshl_b32 s%d, s%d, 1' % (sT0, sIt)); A('s_add_u32 s%d, s%d, s%d' % (sRB, sRB, sT0))
    A('s_and_b32 s%d, s%d, 15' % (sT1, sTK))
    A('s_cmp_lt_u32 s%d, 4' % sXW); A('s_cselect_b32 s%d, 11, 10' % sT2)
    A('s_cmp_lt_u32 s%d, s%d' % (sT1, sT2)); A('s_cbranch_scc0 qkv_q')
    A('s_mul_i32 s%d, s%d, 6' % (sT3, sT1)); A('s_add_u32 s%d, s%d, s%d' % (sT3, sT3, sXW))
    A('s_lshr_b32 s%d, s%d, 5' % (sKS, sT3)); A('s_add_u32 s%d, s%d, 1' % (sKS, sKS)); A('s_and_b32 s%d, s%d, 31' % (sNT, sT3))
    A('s_branch qkv_go')
    A.label('qkv_q')
    A('s_sub_u32 s%d, s%d, s%d' % (sT3, sT1, sT2)); A('s_mul_i32 s%d, s%d, 5' % (sT4, sXW))
    A('s_sub_u32 s%d, s%d, 4' % (sT5, sXW)); A('s_mul_i32 s%d, s%d, 6' % (sT5, sT5)); A('s_add_u32 s%d, s%d, 20' % (sT5, sT5))
    A('s_cmp_lt_u32 s%d, 4' % sXW); A('s_cselect_b32 s%d, s%d, s%d' % (sT4, sT4, sT5))
    A('s_add_u32 s%d, s%d, s%d' % (sNT, sT3, sT4)); A('s_mov_b32 s%d, 0' % sKS)
    A.label('qkv_go')
    A('s_add_u32 s%d, s%d, 1' % (sIt, sIt))
    A('s_lshl_b32 s%d, s%d, 3' % (sT0, sKS)); A('s_add_u32 s%d, s%d, %d' % (sT0, sT0, A_WQ))
    A('s_load_dwordx2 s[%d:%d], s[0:1], s%d' % (SRD_B, SRD_B + 1, sT0))
    A('s_mov_b32 s%d, %d' % (SRD_B + 2, 8 * MB)); A('s_mov_b32 s%d, 0x00020000' % (SRD_B + 3))
    ws_srd(A, SRD_A); ws_srd(A, SRD_C)
    gemm_params(A, 2048, 8192, 8192, 16, 0)
    A('s_mul_i32 s%d, s%d, %d' % (sAoff, sRB, BM * 2048)); A('s_add_u32 s%d, s%d, %d' % (sAoff, sAoff, XLN))
    A('s_lshl_b32 s%d, s%d, 8' % (sBoff, sNT))
    A('s_mul_i32 s%d, s%d, %d' % (sCoff, sRB, BM * 8192)); A('s_add_u32 s%d, s%d, s%d' % (sCoff, sCoff, sBoff))
    A('s_lshl_b32 s%d, s%d, 24' % (sT0, sKS)); A('s_add_u32 s%d, s%d, s%d' % (sCoff, sCoff, sT0)); A('s_add_u32 s%d, s%d, %d' % (sCoff, sCoff, QX))
    A('s_mul_i32 s%d, s%d, 3' % (sT0, sRB)); A('s_add_u32 s%d, s%d, s%d' % (sT0, sT0, sKS))
    A('s_lshl_b32 s%d, s%d, 5' % (sT0, sT0)); A('s_add_u32 s%d, s%d, s%d' % (sT0, sT0, sNT))
    A('s_lshl_b32 s%d, s%d, 2' % (sT0, sT0)); A('s_add_u32 s%d, s%d, %d' % (sFlag, sT0, FQKV))
    A('s_mov_b32 s%d, 1' % sItem)
    A('s_and_b32 s%d, s%d, 15' % (sShI, sTK)); A('s_mov_b32 s%d, 8' % sShR)
    if trace:
        A('s_lshl_b32 s%d, s%d, 5' % (sQi, sXW)); A('s_add_u32 s%d, s%d, s%d' % (sQi, sQi, sTK)); A('s_lshl_b32 s%d, s%d, 3' % (sQi, sQi))
        A('s_add_u32 s%d, s%d, s%d' % (sQi, sQi, sIt)); A('s_add_u32 s%d, s%d, 22527' % (sQi, sQi))
        A('s_memrealtime s[98:99]'); A('s_memrealtime s[100:101]')
    A('s_waitcnt lgkmcnt(0)')
    A('s_cmp_lg_u32 s%d, 1' % sIt); A('s_cbranch_scc1 qkv_dep')
    if hold:
        Lh = A.uid('h'); Lhs = A.uid('hs')
        if hold == 1:
            A('s_cmp_lt_u32 s%d, 16' % sTK); A('s_cselect_b32 s%d, 1, 0' % sT0); A('s_cmp_lg_u32 s%d, 0' % sKS); A('s_cselect_b32 s%d, s%d, 0' % (sT0, sT0))
            A('s_cmp_eq_u32 s%d, 1' % sT0); A('s_cbranch_scc1 %s' % Lhs)
        A('s_mov_b32 s%d, 0' % sSp); A('v_mov_b32 v250, 72')
        A.label(Lh)
        A('global_load_dword v251, v250, s[6:7] sc1')
        A('s_add_u32 s%d, s%d, 1' % (sSp, sSp)); A('s_cmp_gt_u32 s%d, %d' % (sSp, SPIN)); A('s_cbranch_scc1 worker_abort')
        A('s_waitcnt vmcnt(0)')
        A('v_readfirstlane_b32 s%d, v251' % sT0); A('s_nop 3'); A('s_cmp_ge_u32 s%d, 64' % sT0); A('s_cbranch_scc1 %s' % Lhs)
        A('s_sleep 8'); A('s_branch %s' % Lh)
        A.label(Lhs)
    G.load_b()
    A.label('qkv_dep')
    A('s_lshl_b32 s%d, s%d, 6' % (sDep, sRB)); A('s_add_u32 s%d, s%d, %d' % (sDep, sDep, FXL)); A('s_mov_b32 s%d, 16' % sCnt)
    G.setup(); wait_flags(A)
    A('s_branch gemm_main')

    def decode(src):
        A('s_bfe_u32 s%d, s%d, 0x60016' % (sRB, src)); A('s_bfe_u32 s%d, s%d, 0x50011' % (sNT, src)); A('s_bfe_u32 s%d, s%d, 0x3000e' % (sKS, src))
        A('s_bfe_u32 s%d, s%d, 0x60008' % (sK0, src)); A('s_bfe_u32 s%d, s%d, 0x50003' % (sNKi, src))
    def blk_rows():
        A('s_lshl_b32 s%d, s%d, 6' % (sRow0, sRB)); A('s_mov_b32 s%d, 0' % sBig)
    def own(base, code):
        code(); A('s_lshl_b32 s%d, s%d, 2' % (sT0, sT0)); A('s_add_u32 s%d, s%d, %d' % (sFlag, sT0, base))
    def btouch():
        A('v_and_b32 v200, 63, v0'); A('v_lshrrev_b32 v201, 6, v0')
        A('v_lshrrev_b32 v202, 1, v200'); A('v_lshl_add_u32 v202, v201, 8, v202')
        A('v_and_b32 v203, 1, v200'); A('v_lshlrev_b32 v203, 7, v203')
        A('s_lshl_b32 s%d, s%d, 6' % (sT4, sNk)); A('v_mov_b32 v206, 0x7ff00000')
        for j in range(8):
            A('v_add_u32 v204, %d, v202' % (32 * j)); A('v_mul_lo_u32 v205, v204, s%d' % sLdb); A('v_add_u32 v205, v205, v203')
            A('v_cmp_gt_u32 vcc, s%d, v204' % sT4); A('s_nop 1'); A('v_cndmask_b32 v205, v206, v205, vcc')
            A('buffer_load_dword v%d, v205, %s, s%d offen' % (208 + j, srd(SRD_B), sBoff))
    types = {
        T_O: dict(split=True, ownbase=FO, abuf=OX, lda=8192, bk=A_WO, bs=8 * MB, ldb=2048, p=PO),
        T_W4: dict(split=True, ownbase=FW4, abuf=UB, lda=7168, bk=B_W4, bs=7 * MB, ldb=2048, p=P4),
        T_W1: dict(split=False, ownbase=FW1, ostr=8, abuf=ZB, bk=B_W1, bs=2 * MB, ldb=2048, c=GB, ldc=2048, mode=1),
        T_W2: dict(split=False, ownbase=FW2, ostr=8, abuf=GB - 2048, bk=B_W2, bs=2 * MB, ldb=2048, c=X1B, ldc=2048, mode=2, shift=1, resid=YB),
        T_W3: dict(split=False, ownbase=FW3, ostr=32, abuf=Z2B, bk=B_W3, bs=7 * MB, ldb=7168, c=UB, ldc=7168, mode=1),
    }
    def gemm_setup(ty):
        d = types[ty]
        mk_srd(A, SRD_B, d['bk'], d['bs']); ws_srd(A, SRD_A); ws_srd(A, SRD_C); ws_srd(A, SRD_R)
        if d['split']:
            own(d['ownbase'], lambda: (A('s_lshl_b32 s%d, s%d, 6' % (sT0, sRB)), A('s_lshl_b32 s%d, s%d, 3' % (sT1, sKS)), A('s_add_u32 s%d, s%d, s%d' % (sT0, sT0, sT1)), A('s_add_u32 s%d, s%d, s%d' % (sT0, sT0, sNT))))
            gemm_params(A, d['lda'], d['ldb'], 2048, 0, 0)
            A('s_mov_b32 s%d, s%d' % (sNk, sNKi)); A('s_mov_b32 s%d, s%d' % (sShI, sNT)); A('s_mov_b32 s%d, 16' % sShR)
            A('s_mul_i32 s%d, s%d, %d' % (sAoff, sRow0, d['lda'])); A('s_lshl_b32 s%d, s%d, 7' % (sT0, sK0)); A('s_add_u32 s%d, s%d, s%d' % (sAoff, sAoff, sT0))
            A('s_add_u32 s%d, s%d, %d' % (sAoff, sAoff, d['abuf']))
            A('s_mul_i32 s%d, s%d, %d' % (sBoff, sK0, 64 * d['ldb'])); A('s_lshl_b32 s%d, s%d, 8' % (sT0, sNT)); A('s_add_u32 s%d, s%d, s%d' % (sBoff, sBoff, sT0))
            A('s_lshl_b32 s%d, s%d, 11' % (sCoff, sRow0)); A('s_add_u32 s%d, s%d, s%d' % (sCoff, sCoff, sT0))
            A('s_lshl_b32 s%d, s%d, 22' % (sT0, sKS)); A('s_add_u32 s%d, s%d, s%d' % (sCoff, sCoff, sT0)); A('s_add_u32 s%d, s%d, %d' % (sCoff, sCoff, d['p']))
        else:
            own(d['ownbase'], lambda: (A('s_mul_i32 s%d, s%d, %d' % (sT0, sRB, d['ostr'])), A('s_add_u32 s%d, s%d, s%d' % (sT0, sT0, sNT))))
            gemm_params(A, 2048, d['ldb'], d['ldc'], 16, d['mode'], d.get('shift', 0))
            A('s_mov_b32 s%d, s%d' % (sShI, sK0)); A('s_cmp_eq_u32 s%d, 7' % sNKi); A('s_cselect_b32 s%d, 19, 16' % sShR)
            A('s_lshl_b32 s%d, s%d, 11' % (sAoff, sRow0)); A('s_add_u32 s%d, s%d, %d' % (sAoff, sAoff, d['abuf']))
            A('s_lshl_b32 s%d, s%d, 8' % (sBoff, sNT))
            A('s_mul_i32 s%d, s%d, %d' % (sCoff, sRow0, d['ldc'])); A('s_add_u32 s%d, s%d, s%d' % (sCoff, sCoff, sBoff))
            if 'resid' in d: A('s_add_u32 s%d, s%d, %d' % (sRoff, sCoff, d['resid']))
            A('s_add_u32 s%d, s%d, %d' % (sCoff, sCoff, d['c']))

    TB = build_table()
    A.label('streams')
    A('s_getpc_b64 s[%d:%d]' % (sTab, sTab + 1))
    A.label('q_pc')
    A('s_add_u32 s%d, s%d, qtable-q_pc' % (sTab, sTab)); A('s_addc_u32 s%d, s%d, 0' % (sTab + 1, sTab + 1))
    A('s_lshl_b32 s%d, s%d, 5' % (sT0, sXW)); A('s_add_u32 s%d, s%d, s%d' % (sT0, sT0, sTK)); A('s_lshl_b32 s%d, s%d, 4' % (sT0, sT0))
    A('s_load_dword s%d, s[%d:%d], s%d' % (sS0, sTab, sTab + 1, sT0))
    A('s_add_u32 s%d, s%d, 4' % (sT1, sT0)); A('s_load_dword s%d, s[%d:%d], s%d' % (sS1, sTab, sTab + 1, sT1))
    A('s_add_u32 s%d, s%d, 8' % (sT2, sT0)); A('s_load_dword s%d, s[%d:%d], s%d' % (sS2, sTab, sTab + 1, sT2))
    A('s_waitcnt lgkmcnt(0)')
    A('s_lshr_b32 s%d, s%d, 28' % (sT2, sS0))
    A('s_cmp_eq_u32 s%d, %d' % (sT2, T_ATT)); A('s_cbranch_scc1 att_loop')
    A('s_cmp_eq_u32 s%d, %d' % (sT2, T_ROWLOOP)); A('s_cbranch_scc1 u_rowloop')
    A.label('ms_next')
    A('s_cmp_lg_u32 s%d, 0' % sS0); A('s_cbranch_scc1 ms_have')
    A('s_mov_b32 s%d, s%d' % (sS0, sS1)); A('s_mov_b32 s%d, s%d' % (sS1, sS2)); A('s_mov_b32 s%d, 0' % sS2)
    A('s_or_b32 s%d, s%d, s%d' % (sT0, sS0, sS1)); A('s_cmp_eq_u32 s%d, 0' % sT0); A('s_cbranch_scc1 L_exit_main')
    A('s_branch ms_next')
    A.label('ms_have')
    decode(sS0); blk_rows()
    A('s_lshr_b32 s%d, s%d, 28' % (sT5, sS0))
    for ty in types:
        Lt = A.uid('mt')
        A('s_cmp_lg_u32 s%d, %d' % (sT5, ty)); A('s_cbranch_scc1 %s' % Lt)
        gemm_setup(ty)
        A.label(Lt)
    G.load_b()
    A.label('ms_top')
    A('s_cmp_eq_u32 s%d, 0' % sS0); A('s_cbranch_scc1 ms_next')
    A('s_bfe_u32 s%d, s%d, 0x60016' % (sT0, sS0)); A('s_lshr_b32 s%d, s%d, 28' % (sT5, sS0))
    A('s_mov_b32 s%d, 16' % sCnt)
    A('s_lshl_b32 s%d, s%d, 7' % (sT2, sT0))
    A('s_add_u32 s%d, s%d, %d' % (sDep, sT2, FATT))
    A('s_add_u32 s%d, s%d, %d' % (sT3, sT2, FR1)); A('s_cmp_eq_u32 s%d, %d' % (sT5, T_W1)); A('s_cselect_b32 s%d, s%d, s%d' % (sDep, sT3, sDep))
    A('s_add_u32 s%d, s%d, %d' % (sT3, sT2, FR2)); A('s_cmp_eq_u32 s%d, %d' % (sT5, T_W3)); A('s_cselect_b32 s%d, s%d, s%d' % (sDep, sT3, sDep))
    A('s_add_u32 s%d, s%d, %d' % (sT3, sT2, FW3)); A('s_cmp_eq_u32 s%d, %d' % (sT5, T_W4)); A('s_cselect_b32 s%d, s%d, s%d' % (sDep, sT3, sDep)); A('s_cselect_b32 s%d, 28, s%d' % (sCnt, sCnt))
    Lw2 = A.uid('m2')
    A('s_cmp_lg_u32 s%d, %d' % (sT5, T_W2)); A('s_cbranch_scc1 %s' % Lw2)
    A('s_sub_u32 s%d, s%d, 1' % (sT2, sT0)); A('s_cmp_eq_u32 s%d, 0' % sT0); A('s_cselect_b32 s%d, 0, s%d' % (sT2, sT2))
    A('s_add_u32 s%d, s%d, 1' % (sT3, sT0)); A('s_cmp_eq_u32 s%d, %d' % (sT0, NB - 1)); A('s_cselect_b32 s%d, s%d, s%d' % (sT3, sT0, sT3))
    A('s_sub_u32 s%d, s%d, s%d' % (sT3, sT3, sT2)); A('s_add_u32 s%d, s%d, 1' % (sT3, sT3)); A('s_lshl_b32 s%d, s%d, 3' % (sCnt, sT3))
    A('s_lshl_b32 s%d, s%d, 5' % (sT2, sT2)); A('s_add_u32 s%d, s%d, %d' % (sDep, sT2, FW1))
    A.label(Lw2)
    A('s_mov_b32 s%d, s%d' % (sItem, sS0))
    A('s_add_u32 s%d, s%d, %d' % (sS0, sS0, 1 << 22)); A('s_bfe_u32 s%d, s%d, 0x60016' % (sT0, sS0))
    A('s_and_b32 s%d, s%d, 7' % (sT1, sS0)); A('s_add_u32 s%d, s%d, %d' % (sT1, sT1, NBIG))
    A('s_cmp_eq_u32 s%d, s%d' % (sT0, sT1)); A('s_cselect_b32 s%d, 0, s%d' % (sS0, sS0))
    decode(sItem); blk_rows()
    A('s_lshr_b32 s%d, s%d, 28' % (sT5, sItem))
    if trace:
        A('s_lshl_b32 s%d, s%d, 11' % (sQi, sT5)); A('s_mul_i32 s%d, s%d, 48' % (sT0, sRB)); A('s_add_u32 s%d, s%d, s%d' % (sQi, sQi, sT0))
        A('s_lshl_b32 s%d, s%d, 3' % (sT0, sKS)); A('s_add_u32 s%d, s%d, s%d' % (sQi, sQi, sT0)); A('s_add_u32 s%d, s%d, s%d' % (sQi, sQi, sNT))
        A('s_memrealtime s[98:99]')
    A('s_mov_b32 s%d, 0' % sItem)
    for ty in types:
        Lt = A.uid('mr')
        A('s_cmp_lg_u32 s%d, %d' % (sT5, ty)); A('s_cbranch_scc1 %s' % Lt)
        gemm_setup(ty)
        A.label(Lt)
    GS.setup(); wait_flags(A); A('s_branch gemm_main_s')

    A.label('att_loop')
    A('s_bfe_u32 s%d, s%d, 0x50011' % (sChunk, sS0))
    sAS = sD1; sAL = sD2
    A('s_bfe_u32 s%d, s%d, 0x60016' % (sAS, sS0))
    A('s_bfe_u32 s%d, s%d, 0x60008' % (sAL, sS0))
    A('s_cmp_eq_u32 s%d, 0' % sAL); A('s_cselect_b32 s%d, 64, s%d' % (sAL, sAL))
    A.label('att_next')
    A('s_cmp_ge_u32 s%d, s%d' % (sAS, sAL)); A('s_cbranch_scc1 att_fin')
    A('s_mov_b32 s%d, s%d' % (sRB, sAS)); A('s_and_b32 s%d, s%d, 7' % (sNT, sChunk)); A('s_add_u32 s%d, s%d, 2' % (sAS, sAS))
    if trace:
        A('s_lshl_b32 s%d, s%d, 3' % (sQi, sRB)); A('s_add_u32 s%d, s%d, s%d' % (sQi, sQi, sNT)); A('s_add_u32 s%d, s%d, 2048' % (sQi, sQi))
        A('s_memrealtime s[98:99]')
    wave_id(A, sSp)
    Lad = A.uid('ad'); Lap = A.uid('ap')
    A('s_cmp_lg_u32 s%d, 0' % sSp); A('s_cbranch_scc1 %s' % Lad)
    A('s_lshr_b32 s%d, s%d, 2' % (sT5, sRB)); A('s_mul_i32 s%d, s%d, 384' % (sT0, sT5)); A('s_lshl_b32 s%d, s%d, 4' % (sT1, sNT)); A('s_add_u32 s%d, s%d, s%d' % (sT0, sT0, sT1))
    A('s_add_u32 s%d, s%d, %d' % (sT0, sT0, FQKV))
    A('v_lshrrev_b32 v248, 2, v0'); A('v_lshlrev_b32 v248, 7, v248'); A('v_and_b32 v249, 3, v0'); A('v_lshl_add_u32 v248, v249, 2, v248'); A('v_add_u32 v248, s%d, v248' % sT0)
    A('s_lshl_b32 s%d, s%d, 10' % (sT0, sRB)); A('s_lshl_b32 s%d, s%d, 7' % (sT1, sNT)); A('s_add_u32 s%d, s%d, s%d' % (sT0, sT0, sT1)); A('s_add_u32 s%d, s%d, %d' % (sT0, sT0, FLG_SEG - 128))
    A('v_lshlrev_b32 v249, 2, v0'); A('v_add_u32 v249, s%d, v249' % sT0)
    A('v_cmp_gt_u32 vcc, 32, v0'); A('s_nop 1'); A('v_cndmask_b32 v250, v249, v248, vcc')
    A('s_mov_b32 s%d, 0xfff' % sMsk); A('s_mov_b32 s%d, -1' % (sMsk + 1)); A('s_mov_b64 exec, s[%d:%d]' % (sMsk, sMsk + 1))
    A('s_mov_b32 s%d, 0' % sSp)
    A.label(Lap)
    A('buffer_load_dword v251, v250, s[8:11], 0 offen sc1')
    A('s_add_u32 s%d, s%d, 1' % (sSp, sSp)); A('s_cmp_gt_u32 s%d, %d' % (sSp, SPIN)); A('s_cbranch_scc1 worker_abort')
    A('s_waitcnt vmcnt(0)')
    A('v_cmp_eq_u32 vcc, 0, v251'); A('s_cbranch_vccz %s_ok' % Lap)
    A('s_sleep 2'); A('s_branch %s' % Lap)
    A.label(Lap + '_ok')
    A('s_mov_b64 exec, -1')
    A.label(Lad)
    A('s_barrier')
    if trace: A('s_memrealtime s[100:101]')
    def code():
        A('s_lshr_b32 s%d, s%d, 1' % (sT0, sRB)); A('s_lshl_b32 s%d, s%d, 5' % (sT0, sT0))
        A('s_and_b32 s%d, s%d, 1' % (sT1, sRB)); A('s_lshl_b32 s%d, s%d, 3' % (sT1, sT1)); A('s_add_u32 s%d, s%d, s%d' % (sT0, sT0, sT1))
        A('s_add_u32 s%d, s%d, s%d' % (sT0, sT0, sNT))
    own(FATT, code)
    A('s_mov_b32 s%d, s%d' % (sSeg, sRB)); A('s_lshl_b32 s%d, s%d, 2' % (sHead, sNT))
    A('s_mov_b32 s%d, 3' % sItem)
    unit_att(A)
    A('s_branch unit_done')

    A.label('att_fin')
    A('s_mov_b32 s%d, 0' % sS0)
    A('s_branch ms_next')
    sN1, sN2, sN3 = sS0, sS1, sS2
    A.label('u_rowloop')
    A('s_bfe_u32 s%d, s%d, 0x50011' % (sChunk, sS0))
    A('s_mov_b32 s%d, 0' % sN1); A('s_mov_b32 s%d, 0' % sN2); A('s_mov_b32 s%d, 0' % sN3)
    A.label('rl_top')
    A('s_cmp_ge_u32 s%d, 16' % sN3); A('s_cbranch_scc1 L_exit_main')
    wave_id(A, sSp)
    A('s_cmp_lg_u32 s%d, 0' % sSp); A('s_cbranch_scc1 rl_wait')
    A('v_lshlrev_b32 v250, 2, v0'); A('s_mov_b32 s%d, 0' % sSp)
    A.label('rl_poll')
    A('s_lshr_b32 s%d, s%d, 4' % (sT1, sChunk))
    for reg, base, sh, n_ in ((247, FO, 8, sN1), (248, FW2, 5, sN2), (249, FW4, 8, sN3)):
        A('s_min_u32 s%d, s%d, 15' % (sT0, n_)); A('s_lshl_b32 s%d, s%d, 1' % (sT0, sT0)); A('s_add_u32 s%d, s%d, s%d' % (sT0, sT0, sT1))
        A('s_lshl_b32 s%d, s%d, %d' % (sT0, sT0, sh)); A('s_add_u32 s%d, s%d, %d' % (sT0, sT0, base))
        A('buffer_load_dword v%d, v250, s[8:11], s%d offen sc1' % (reg, sT0))
    A('s_add_u32 s%d, s%d, 1' % (sSp, sSp)); A('s_cmp_gt_u32 s%d, %d' % (sSp, SPIN)); A('s_cbranch_scc1 worker_abort')
    A('s_waitcnt vmcnt(0)')
    A('s_mov_b32 s%d, 0' % sT5)
    for code_, reg, cnt, n_ in ((1, 247, 48, sN1), (2, 248, 8, sN2), (3, 249, 48, sN3)):
        Ln = A.uid('rn')
        A('s_cmp_lg_u32 s%d, 0' % sT5); A('s_cbranch_scc1 %s' % Ln)
        A('s_cmp_ge_u32 s%d, 16' % n_); A('s_cbranch_scc1 %s' % Ln)
        A('v_cmp_eq_u32 vcc, 0, v%d' % reg)
        if cnt == 48: A('s_and_b32 vcc_hi, vcc_hi, 0xffff')
        else: A('s_and_b32 vcc_lo, vcc_lo, 0xff'); A('s_mov_b32 vcc_hi, 0')
        A('s_cmp_lg_u64 vcc, 0'); A('s_cbranch_scc1 %s' % Ln)
        A('s_mov_b32 s%d, %d' % (sT5, code_))
        A.label(Ln)
    A('s_cmp_lg_u32 s%d, 0' % sT5); A('s_cbranch_scc1 rl_got')
    A('s_sleep 2'); A('s_branch rl_poll')
    A.label('rl_got')
    A('v_mov_b32 v250, 163832'); A('v_mov_b32 v251, s%d' % sT5); A('s_mov_b64 exec, 1'); A('ds_write_b32 v250, v251'); A('s_mov_b64 exec, -1'); A('s_waitcnt lgkmcnt(0)')
    A.label('rl_wait')
    A('s_barrier')
    A('v_mov_b32 v250, 163832'); A('ds_read_b32 v251, v250'); A('s_waitcnt lgkmcnt(0)'); A('v_readfirstlane_b32 s%d, v251' % sT5)
    A('s_barrier')
    if trace: A('s_memrealtime s[98:99]'); A('s_memrealtime s[100:101]')
    A('s_mov_b32 s%d, 2' % sItem)
    for c_ in (2, 3):
        A('s_cmp_eq_u32 s%d, %d' % (sT5, c_)); A('s_cbranch_scc1 rl_%d' % c_)
    def pick(n_, T_, lab):
        A('s_lshl_b32 s%d, s%d, 1' % (sRB, n_)); A('s_lshr_b32 s%d, s%d, 4' % (sT1, sChunk)); A('s_add_u32 s%d, s%d, s%d' % (sRB, sRB, sT1)); A('s_and_b32 s%d, s%d, 15' % (sNT, sChunk))
        if trace:
            A('s_mul_i32 s%d, s%d, 48' % (sQi, sRB)); A('s_add_u32 s%d, s%d, s%d' % (sQi, sQi, sNT)); A('s_add_u32 s%d, s%d, %d' % (sQi, sQi, T_ * 2048))
        A('s_add_u32 s%d, s%d, 1' % (n_, n_)); blk_rows(); A('s_branch %s' % lab)
    pick(sN1, T_R1, 'u_r1')
    A.label('rl_2'); pick(sN2, T_R2, 'u_r2')
    A.label('rl_3'); pick(sN3, T_R3, 'u_r3')
    def rowu(lab, ownbase, fn, pre=None):
        A.label(lab)
        if ownbase is not None:
            own(ownbase, lambda: (A('s_lshl_b32 s%d, s%d, 5' % (sT0, sRB)), A('s_add_u32 s%d, s%d, s%d' % (sT0, sT0, sNT))))
        if pre: pre()
        A('s_lshl_b32 s%d, s%d, 2' % (sT0, sNT)); A('s_add_u32 s%d, s%d, s%d' % (sRow, sRow0, sT0))
        fn(A)
        A('s_branch %s' % ('unit_done' if ownbase is not None else 'unit_nosig'))
    rowu('u_r1', FR1, unit_r1, lambda: mk_srd(A, SRD_R, A_X, 4 * MB))
    rowu('u_r2', FR2, unit_r2)
    rowu('u_r3', None, unit_r3, lambda: mk_srd(A, SRD_C, D_OUT, 4 * MB))

    def epis(G_, sfx):
        A('s_cmp_eq_u32 s%d, 1' % sMode); A('s_cbranch_scc1 epi1%s' % sfx)
        A('s_cmp_eq_u32 s%d, 2' % sMode); A('s_cbranch_scc1 epi2%s' % sfx)
        G_.epi_bf16(); A('s_branch unit_done')
        A.label('epi1' + sfx); G_.epi_bf16(gelu=True); A('s_branch unit_done')
        A.label('epi2' + sfx); G_.epi_bf16(resid=True); A('s_branch unit_done')
    A.label('gemm_main')
    G.mainloop()
    G.epi_bf16(); A('s_branch unit_done')
    A.label('gemm_main_s')
    GS.mainloop()
    epis(GS, 's')
    def trace_out():
        if trace:
            A('s_memrealtime s[68:69]'); A('s_waitcnt lgkmcnt(0)')
            Lt = A.uid('tr')
            A('v_cmp_eq_u32 vcc, 0, v0'); A('s_and_saveexec_b64 s[%d:%d], vcc' % (sMsk, sMsk + 1)); A('s_cbranch_execz %s' % Lt)
            A('v_mov_b32 v240, s98'); A('v_mov_b32 v241, s100'); A('v_mov_b32 v242, s66'); A('v_mov_b32 v243, s68')
            A('s_sub_u32 s%d, s62, s60' % sT1); A('s_sub_u32 s%d, s64, s62' % sT2)
            A('v_mov_b32 v244, s%d' % sT1); A('v_mov_b32 v245, s%d' % sT2); A('v_mov_b32 v246, 0'); A('v_mov_b32 v247, 0')
            A('s_lshl_b32 s%d, s%d, 5' % (sT0, sQi)); A('s_add_u32 s%d, s%d, %d' % (sT0, sT0, TRC)); A('v_mov_b32 v250, 0')
            A('buffer_store_dwordx4 v[240:243], v250, s[8:11], s%d offen' % sT0)
            A('buffer_store_dwordx4 v[244:247], v250, s[8:11], s%d offen offset:16' % sT0)
            A.label(Lt)
            A('s_mov_b64 exec, s[%d:%d]' % (sMsk, sMsk + 1))
    A.label('unit_done')
    if trace: A('s_memrealtime s[66:67]')
    signal_flag(A)
    trace_out()
    A('s_cmp_eq_u32 s%d, 1' % sItem); A('s_cbranch_scc1 qkv_next')
    A('s_cmp_eq_u32 s%d, 2' % sItem); A('s_cbranch_scc1 rl_top')
    A('s_cmp_eq_u32 s%d, 3' % sItem); A('s_cbranch_scc1 att_next')
    A('s_branch ms_top')
    A.label('unit_nosig')
    if trace: A('s_memrealtime s[66:67]')
    A('s_waitcnt vmcnt(0)'); A('s_barrier')
    trace_out()
    A('s_branch rl_top')
    A.label('worker_abort')
    A('s_mov_b64 exec, 1')
    A('v_mov_b32 v250, 1'); A('v_mov_b32 v251, 132')
    A('global_atomic_add v251, v250, s[6:7] sc1'); A('s_waitcnt vmcnt(0)')
    A.label('L_exit_main')
    A('s_endpgm')
    A.raw('.p2align 2')
    A.raw('.type qtable,@object')
    A.label('qtable')
    for x in range(8):
        for t in range(32):
            A.raw('    .long ' + ', '.join('0x%08x' % w for w in TB[x, t] + [0]))
    A.raw('.section .rodata,"a"')
    A.raw('.p2align 6'); kernel_desc(A, KNAME)
    return A.text()
if __name__ == '__main__':
    kw = {}
    for x in sys.argv[2:]:
        k, v = x.split('=')
        kw[k] = v
    ck = dict(rearly=int(kw.pop('rearly', 5)), vdefer=int(kw.pop('vdefer', 0)), sel=int(kw.pop('sel', 0)))
    if kw.get('trace'): ck['steptrace'] = True
    if kw.pop('rt', None): ck['rt'] = 1
    for k_ in ('touch', 'd1', 'd4', 'd6', 'sigchunk'):
        if k_ in kw: ck[k_] = int(kw.pop(k_))
    kw['chain_kw'] = ck
    open(sys.argv[1], 'w').write(gen(**kw))
```

```python
import sys
from asmlib import *
from layout import *
import chain11 as chain
from gemm2 import *
from gemm3 import Gemm
from gemmbs import GemmBS
from units3 import *

BM = 128
SBM = 64
NBIG = 31
NB = NBLK
KNAME = 'sequential_preLN__memory_aug_recurrent_mem_tr__mixer_s_mlp__prompt_kernel'
SPIN = 1 << 22
sXW, sTK, sIt, sFlag, sItem, sQi, sTab, sDep, sCnt, sSp = 80, 81, 82, 83, 84, 85, 86, 88, 89, 90
sMsk = 92
sRB, sNT, sKS = 94, 95, 96
sK0, sNKi = 78, 79
sRow0, sBig = 70, 71
sShI, sShR = 75, 76
sS0, sS1, sS2 = 58, 59, 91
sChunk = 97
sD0, sD1, sD2 = 72, 73, 74
sC3 = 77
T_ATT, T_O, T_R1, T_W1, T_W2, T_R2, T_W3, T_W4, T_R3, T_ROWLOOP = range(1, 11)
O_SPLIT = [(0, 11), (11, 11), (22, 11), (33, 11), (44, 10), (54, 10)]
W4_SPLIT = [(0, 10), (10, 10), (20, 9), (29, 9), (38, 9), (47, 9)]
def word(t, a, b=0, c=0, k0=0, nk=0, end=0):
    assert a < 64 and b < 32 and c < 8 and k0 < 64 and nk < 32
    return (t << 28) | (a << 22) | (b << 17) | (c << 14) | (k0 << 8) | (nk << 3) | end

def build_table():
    T = {(x, t): [0, 0, 0] for x in range(8) for t in range(32)}
    slot = [0] * 6
    def take(x):
        w = (x, slot[x]); slot[x] += 1; assert slot[x] <= 32; return w
    for x in range(6):
        for nt in range(8):
            m = x * 8 + nt
            T[take(x)] = [word(T_O, 0, nt, x, *O_SPLIT[x]), word(T_W3, 30, m) if m < 28 else 0, 0]
    for nt in range(8): T[take(0)] = [word(T_W1, 0, nt), 0, 0]
    for nt in range(8): T[take(1)] = [word(T_W2, 0, nt), 0, 0]
    for nt in range(28): T[take(2 + nt // 7)] = [word(T_W3, 0, nt, end=7), 0, 0]
    for x in range(6):
        for nt in range(8): T[take(x)] = [word(T_W4, 0, nt, x, *W4_SPLIT[x]), 0, 0]
    free = [(x, t) for x in range(6) for t in range(slot[x], 32)]
    assert len(free) >= 48, len(free)
    LB = NBIG
    w4 = lambda i: word(T_W4, LB, i % 8, i // 8, *W4_SPLIT[i // 8], end=1)
    for i in range(16): T[free[i]] = [word(T_ATT, i >> 3, i & 7, 0, 63), w4(36 + i) if i < 12 else 0, 0]
    for c in range(32): T[free[16 + c]] = [word(T_ROWLOOP, 0, c), 0, 0]
    for m in range(64):
        w = []
        if m < 48: w.append(word(T_O, LB, m % 8, m // 8, *O_SPLIT[m // 8], end=1))
        if m < 28: w.append(word(T_W3, LB, m, end=1))
        elif m < 48: w.append(w4(m - 28))
        elif m < 56: w += [word(T_W1, LB, m - 48, end=1), w4(20 + m - 48)]
        else: w += [word(T_ATT, 63, m - 56, 0, 0), word(T_W2, LB, m - 56, end=1), w4(28 + m - 56)]
        T[6 + m // 32, m % 32] = (w + [0, 0, 0])[:3]
    return T

TRACE = [0]
SLP = [4]
def mk_srd(A, n, karg, size):
    A('s_load_dwordx2 s[%d:%d], s[0:1], %d' % (n, n + 1, karg))
    A('s_mov_b32 s%d, %d' % (n + 2, size))
    A('s_mov_b32 s%d, 0x00020000' % (n + 3))
    A('s_waitcnt lgkmcnt(0)')
def ws_srd(A, n):
    for i in range(4): A('s_mov_b32 s%d, s%d' % (n + i, 8 + i))
def gemm_params(A, lda, ldb, ldc, nk, mode, shift=0):
    A('s_mov_b32 s%d, %d' % (sLda, lda)); A('s_mov_b32 s%d, %d' % (sLdb, ldb)); A('s_mov_b32 s%d, %d' % (sLdc, ldc))
    A('s_mov_b32 s%d, %d' % (sNk, nk)); A('s_mov_b32 s%d, %d' % (sShift, lda if shift else 0)); A('s_mov_b32 s%d, %d' % (sMode, mode))

def wave_id(A, dst):
    A('v_lshrrev_b32 v250, 6, v0'); A('s_nop 0'); A('v_readfirstlane_b32 s%d, v250' % dst); A('s_nop 3')

def wait_flags(A):
    Ld = A.uid('wf'); Ll = A.uid('wl')
    wave_id(A, sSp)
    A('s_cmp_lg_u32 s%d, 0' % sSp); A('s_cbranch_scc1 %s' % Ld)
    A('v_cmp_gt_u32 vcc, s%d, v0' % sCnt)
    A('s_mov_b64 s[%d:%d], vcc' % (sMsk, sMsk + 1))
    A('v_lshlrev_b32 v250, 2, v0')
    A('s_mov_b32 s%d, 0' % sSp)
    A('s_mov_b64 exec, s[%d:%d]' % (sMsk, sMsk + 1))
    A.label(Ll)
    A('buffer_load_dword v251, v250, s[8:11], s%d offen sc1' % sDep)
    A('s_add_u32 s%d, s%d, 1' % (sSp, sSp)); A('s_cmp_gt_u32 s%d, %d' % (sSp, SPIN)); A('s_cbranch_scc1 worker_abort')
    A('s_waitcnt vmcnt(0)')
    A('v_cmp_eq_u32 vcc, 0, v251')
    A('s_cbranch_vccz %s_ok' % Ll)
    A('s_sleep %d' % SLP[0]); A('s_branch %s' % Ll)
    A.label(Ll + '_ok')
    A('s_mov_b64 exec, -1')
    A.label(Ld)
    A('s_barrier')
    if TRACE[0]: A('s_memrealtime s[100:101]')

def signal_flag(A):
    A('s_waitcnt vmcnt(0)')
    A('s_barrier')
    L = A.uid('sf')
    A('v_cmp_eq_u32 vcc, 0, v0')
    A('s_and_saveexec_b64 s[%d:%d], vcc' % (sMsk, sMsk + 1))
    A('s_cbranch_execz %s' % L)
    A('v_mov_b32 v250, 0'); A('v_mov_b32 v251, 1')
    A('buffer_store_dword v251, v250, s[8:11], s%d offen sc1' % sFlag)
    A.label(L)
    A('s_mov_b64 exec, s[%d:%d]' % (sMsk, sMsk + 1))

def kvwait(A, seg_sreg, issue_only=False, check_only=False):
    c = chain
    def addr():
        A('s_lshr_b32 s%d, s%d, 2' % (c.sT0, seg_sreg)); A('s_mul_i32 s%d, s%d, 384' % (c.sT0, c.sT0))
        A('s_lshl_b32 s%d, s%d, 2' % (c.sT1, c.sH)); A('s_add_u32 s%d, s%d, s%d' % (c.sT0, c.sT0, c.sT1))
        A('s_add_u32 s%d, s%d, %d' % (c.sT0, c.sT0, FQKV + 128)); A('v_mov_b32 v125, 0')
    def loads():
        A('buffer_load_dword v126, v125, s[8:11], s%d offen sc1' % c.sT0)
        A('buffer_load_dword v127, v125, s[8:11], s%d offen offset:128 sc1' % c.sT0)
    if issue_only:
        addr(); loads(); return
    L = A.uid('kv'); Lok = A.uid('kvok')
    if check_only:
        A('v_and_b32 v126, v126, v127'); A('v_cmp_eq_u32 vcc, 0, v126'); A('s_cbranch_vccz %s' % Lok)
    addr()
    A('s_mov_b32 s%d, 0' % c.sSPIN)
    A.label(L)
    loads()
    A('s_add_u32 s%d, s%d, 1' % (c.sSPIN, c.sSPIN)); A('s_cmp_gt_u32 s%d, %d' % (c.sSPIN, SPIN)); A('s_cbranch_scc1 chain_abort')
    A('s_waitcnt vmcnt(0)')
    A('v_and_b32 v126, v126, v127'); A('v_cmp_eq_u32 vcc, 0, v126'); A('s_cbranch_vccnz %s' % L)
    A.label(Lok)

def gen(intra='', chain_kw=None, trace=0, coop=1, wake=56, wpre=0, hold=1):
    hold = int(hold)
    wpre = int(wpre); coop = int(coop); trace = int(trace); TRACE[0] = trace; wake = int(wake)
    A = Asm()
    G = GemmBS(A, 128, stamps=bool(trace))
    GS = GemmBS(A, SBM, stamps=bool(trace))
    for line in (
        "; Persistent single-launch kernel: 256 workgroups, one per CU (LDS 160 KiB).  Roles come from the hardware XCC id + a per-XCD ticket:",
        ";  - XCC 0/1: the 64-step memory recurrence (weights resident in registers/LDS, 2:4 sparse MFMA for the 8 memory rows,",
        ";    hand-offs through L2 / write-through stores with poison-tagged ring buffers)",
        ";  - XCC 2..7: LN1, QKV GEMM, token attention, output projection and the mixer MLP as flag-synchronised weight-stationary GEMM streams",
        "; Kernarg: 15 pointers (A_x, A_mem0, A_Wq, A_Wk, A_Wv, A_Wo, A_seg_len, B_x, B_w1..B_w4, d_out, d_debug, d_ws)"):
        A.raw(line)
    A.raw('; @launch grid=(256,1,1) block=(256,1,1) lds=163840')
    A.raw('.amdgcn_target "amdgcn-amd-amdhsa--gfx950"')
    A.raw('.text')
    kernel_header(A, KNAME)
    A('s_cmp_ge_u32 s2, 256'); A('s_cbranch_scc1 L_exit_main')
    A('s_load_dwordx2 s[4:5], s[0:1], %d' % D_WS)
    A('s_load_dwordx2 s[6:7], s[0:1], %d' % D_DBG)
    if trace: A('s_memrealtime s[64:65]')
    A('s_getreg_b32 s16, hwreg(HW_REG_XCC_ID)')
    A('s_and_b32 s16, s16, 15')
    A('s_waitcnt lgkmcnt(0)')
    A('s_mov_b32 s8, s4'); A('s_mov_b32 s9, s5'); A('s_mov_b32 s10, %d' % WS_SIZE); A('s_mov_b32 s11, 0x00020000')
    A('v_cmp_eq_u32 vcc, 0, v0'); A('s_and_saveexec_b64 s[20:21], vcc'); A('s_cbranch_execz L_nt')
    A('s_lshl_b32 s17, s16, 2'); A('v_mov_b32 v1, s17'); A('v_mov_b32 v2, 1')
    A('global_atomic_add v3, v1, v2, s[6:7] sc0 sc1'); A('s_waitcnt vmcnt(0)')
    A('v_mov_b32 v1, 0'); A('ds_write_b32 v1, v3'); A('s_waitcnt lgkmcnt(0)')
    A.label('L_nt')
    A('s_mov_b64 exec, s[20:21]'); A('s_barrier')
    A('v_mov_b32 v1, 0'); A('ds_read_b32 v3, v1'); A('s_waitcnt lgkmcnt(0)'); A('v_readfirstlane_b32 s17, v3'); A('s_barrier')
    A('s_cmp_ge_u32 s17, 32'); A('s_cbranch_scc1 L_exit_main')
    if trace:
        A('s_memrealtime s[60:61]'); A('s_lshl_b32 s62, s16, 5'); A('s_add_u32 s62, s62, s17'); A('s_lshl_b32 s62, s62, 2'); A('s_add_u32 s62, s62, %d' % (TRC + 6 * MB))
        A('s_waitcnt lgkmcnt(0)'); A('v_mov_b32 v1, s64'); A('v_mov_b32 v2, 0'); A('buffer_store_dword v1, v2, s[8:11], s62 offen')
    A('s_cmp_ge_u32 s16, 2'); A('s_cbranch_scc1 worker')
    chain.gen_chain(A, intra=intra, kvwait=kvwait, finish='chain_to_worker', **(chain_kw or {}))
    A.label('chain_to_worker')
    A('v_mbcnt_lo_u32_b32 v0, -1, 0'); A('v_mbcnt_hi_u32_b32 v0, -1, v0')
    A('s_lshl_b32 s%d, s%d, 6' % (44, chain.sW)); A('v_add_u32 v0, s44, v0')
    A('s_add_u32 s%d, s%d, 6' % (sXW, chain.sX)); A('s_mov_b32 s%d, s%d' % (sTK, chain.sC))
    A('s_mov_b32 s%d, 8' % sIt)
    for n in (SRD_A, SRD_B, SRD_C, SRD_R): ws_srd(A, n)
    A('s_mov_b32 s%d, 0' % sChunk)
    A('s_barrier')
    A('s_branch streams')
    A.label('worker')
    A('s_sub_u32 s%d, s16, 2' % sXW); A('s_mov_b32 s%d, s17' % sTK)
    A('s_cmp_ge_u32 s%d, 6' % sXW); A('s_cbranch_scc1 L_exit_main')
    A('s_mov_b32 s%d, 0' % sIt)
    for n in (SRD_A, SRD_B, SRD_C, SRD_R): ws_srd(A, n)
    A('s_mov_b32 s%d, 0' % sS0); A('s_mov_b32 s%d, 0' % sS1); A('s_mov_b32 s%d, 0' % sS2); A('s_mov_b32 s%d, 0' % sChunk)
    A('s_lshl_b32 s%d, s%d, 5' % (sQi, sXW)); A('s_add_u32 s%d, s%d, s%d' % (sQi, sQi, sTK))
    if wpre:
        A('s_lshl_b32 s%d, s%d, 8' % (sT0, sQi)); A('v_add_u32 v20, s%d, v0' % sT0)
        A('v_lshlrev_b32 v21, 7, v20'); A('v_add_u32 v22, %d, v21' % (49152 * 128))
        for k_, karg in enumerate((A_WO, A_WV, A_WK, A_WQ)):
            mk_srd(A, SRD_C, karg, 8 * MB)
            A('buffer_load_dword v%d, v21, %s, 0 offen' % (24 + 2 * k_, srd(SRD_C)))
            A('buffer_load_dword v%d, v22, %s, 0 offen' % (25 + 2 * k_, srd(SRD_C)))
        ws_srd(A, SRD_C)
    A('v_mov_b32 v8, 0'); A('v_mov_b32 v9, 0'); A('v_mov_b32 v10, 0'); A('v_mov_b32 v11, 0')
    A('v_lshlrev_b32 v12, 4, v0')
    Lz1 = A.uid('z'); Lz2 = A.uid('z')
    A('s_cmp_ge_u32 s%d, 32' % sQi); A('s_cbranch_scc1 %s' % Lz1)
    A('s_lshl_b32 s%d, s%d, 12' % (sT0, sQi)); A('s_add_u32 s%d, s%d, %d' % (sT0, sT0, FLG_SEG))
    A('buffer_store_dwordx4 v[8:11], v12, s[8:11], s%d offen sc1' % sT0)
    A.label(Lz1)
    A('s_cmp_lg_u32 s%d, 32' % sQi); A('s_cbranch_scc1 %s' % Lz2)
    A('s_mov_b32 s%d, %d' % (sT0, GB0)); A('buffer_store_dwordx4 v[8:11], v12, s[8:11], s%d offen sc1' % sT0)
    A('s_mov_b32 s%d, %d' % (sT0, GB + 2048 * 2048)); A('buffer_store_dwordx4 v[8:11], v12, s[8:11], s%d offen sc1' % sT0)
    A.label(Lz2)
    A('s_waitcnt vmcnt(0)'); A('s_barrier')
    Lz3 = A.uid('z')
    A('v_cmp_eq_u32 vcc, 0, v0'); A('s_and_saveexec_b64 s[%d:%d], vcc' % (sMsk, sMsk + 1)); A('s_cbranch_execz %s' % Lz3)
    A('v_mov_b32 v250, 68'); A('v_mov_b32 v251, 1'); A('global_atomic_add v250, v251, s[6:7] sc1')
    A.label(Lz3)
    A('s_mov_b64 exec, s[%d:%d]' % (sMsk, sMsk + 1))
    mk_srd(A, SRD_R, A_X, 4 * MB)
    A('s_mov_b32 s%d, s%d' % (sChunk, sQi))
    A.label('ln_item')
    A('s_lshl_b32 s%d, s%d, 3' % (sRow, sChunk))
    unit_ln1(A)
    Lzw = A.uid('zw')
    A('s_mov_b32 s%d, 0' % sSp); A('v_mov_b32 v250, 68')
    A.label(Lzw)
    A('global_load_dword v251, v250, s[6:7] sc1')
    A('s_add_u32 s%d, s%d, 1' % (sSp, sSp)); A('s_cmp_gt_u32 s%d, %d' % (sSp, SPIN)); A('s_cbranch_scc1 worker_abort')
    A('s_waitcnt vmcnt(0)')
    A('v_readfirstlane_b32 s%d, v251' % sT0); A('s_nop 3'); A('s_cmp_lt_u32 s%d, 192' % sT0); A('s_cbranch_scc1 %s' % Lzw)
    A('s_lshl_b32 s%d, s%d, 2' % (sT0, sChunk)); A('s_add_u32 s%d, s%d, %d' % (sFlag, sT0, FXL))
    signal_flag(A)
    A('s_add_u32 s%d, s%d, 192' % (sChunk, sChunk)); A('s_cmp_lt_u32 s%d, 256' % sChunk); A('s_cbranch_scc1 ln_item')
    A('s_mov_b32 s%d, 0' % sChunk)
    ws_srd(A, SRD_R)
    A.label('qkv_next')
    A('s_cmp_ge_u32 s%d, 8' % sIt); A('s_cbranch_scc1 streams')
    A('s_lshr_b32 s%d, s%d, 4' % (sRB, sTK)); A('s_lshl_b32 s%d, s%d, 1' % (sT0, sIt)); A('s_add_u32 s%d, s%d, s%d' % (sRB, sRB, sT0))
    A('s_and_b32 s%d, s%d, 15' % (sT1, sTK))
    A('s_cmp_lt_u32 s%d, 4' % sXW); A('s_cselect_b32 s%d, 11, 10' % sT2)
    A('s_cmp_lt_u32 s%d, s%d' % (sT1, sT2)); A('s_cbranch_scc0 qkv_q')
    A('s_mul_i32 s%d, s%d, 6' % (sT3, sT1)); A('s_add_u32 s%d, s%d, s%d' % (sT3, sT3, sXW))
    A('s_lshr_b32 s%d, s%d, 5' % (sKS, sT3)); A('s_add_u32 s%d, s%d, 1' % (sKS, sKS)); A('s_and_b32 s%d, s%d, 31' % (sNT, sT3))
    A('s_branch qkv_go')
    A.label('qkv_q')
    A('s_sub_u32 s%d, s%d, s%d' % (sT3, sT1, sT2)); A('s_mul_i32 s%d, s%d, 5' % (sT4, sXW))
    A('s_sub_u32 s%d, s%d, 4' % (sT5, sXW)); A('s_mul_i32 s%d, s%d, 6' % (sT5, sT5)); A('s_add_u32 s%d, s%d, 20' % (sT5, sT5))
    A('s_cmp_lt_u32 s%d, 4' % sXW); A('s_cselect_b32 s%d, s%d, s%d' % (sT4, sT4, sT5))
    A('s_add_u32 s%d, s%d, s%d' % (sNT, sT3, sT4)); A('s_mov_b32 s%d, 0' % sKS)
    A.label('qkv_go')
    A('s_add_u32 s%d, s%d, 1' % (sIt, sIt))
    A('s_lshl_b32 s%d, s%d, 3' % (sT0, sKS)); A('s_add_u32 s%d, s%d, %d' % (sT0, sT0, A_WQ))
    A('s_load_dwordx2 s[%d:%d], s[0:1], s%d' % (SRD_B, SRD_B + 1, sT0))
    A('s_mov_b32 s%d, %d' % (SRD_B + 2, 8 * MB)); A('s_mov_b32 s%d, 0x00020000' % (SRD_B + 3))
    ws_srd(A, SRD_A); ws_srd(A, SRD_C)
    gemm_params(A, 2048, 8192, 8192, 16, 0)
    A('s_mul_i32 s%d, s%d, %d' % (sAoff, sRB, BM * 2048)); A('s_add_u32 s%d, s%d, %d' % (sAoff, sAoff, XLN))
    A('s_lshl_b32 s%d, s%d, 8' % (sBoff, sNT))
    A('s_mul_i32 s%d, s%d, %d' % (sCoff, sRB, BM * 8192)); A('s_add_u32 s%d, s%d, s%d' % (sCoff, sCoff, sBoff))
    A('s_lshl_b32 s%d, s%d, 24' % (sT0, sKS)); A('s_add_u32 s%d, s%d, s%d' % (sCoff, sCoff, sT0)); A('s_add_u32 s%d, s%d, %d' % (sCoff, sCoff, QX))
    A('s_mul_i32 s%d, s%d, 3' % (sT0, sRB)); A('s_add_u32 s%d, s%d, s%d' % (sT0, sT0, sKS))
    A('s_lshl_b32 s%d, s%d, 5' % (sT0, sT0)); A('s_add_u32 s%d, s%d, s%d' % (sT0, sT0, sNT))
    A('s_lshl_b32 s%d, s%d, 2' % (sT0, sT0)); A('s_add_u32 s%d, s%d, %d' % (sFlag, sT0, FQKV))
    A('s_mov_b32 s%d, 1' % sItem)
    A('s_and_b32 s%d, s%d, 15' % (sShI, sTK)); A('s_mov_b32 s%d, 8' % sShR)
    if trace:
        A('s_lshl_b32 s%d, s%d, 5' % (sQi, sXW)); A('s_add_u32 s%d, s%d, s%d' % (sQi, sQi, sTK)); A('s_lshl_b32 s%d, s%d, 3' % (sQi, sQi))
        A('s_add_u32 s%d, s%d, s%d' % (sQi, sQi, sIt)); A('s_add_u32 s%d, s%d, 22527' % (sQi, sQi))
        A('s_memrealtime s[98:99]'); A('s_memrealtime s[100:101]')
    A('s_waitcnt lgkmcnt(0)')
    A('s_cmp_lg_u32 s%d, 1' % sIt); A('s_cbranch_scc1 qkv_dep')
    if hold:
        Lh = A.uid('h'); Lhs = A.uid('hs')
        if hold == 1:
            A('s_cmp_lt_u32 s%d, 16' % sTK); A('s_cselect_b32 s%d, 1, 0' % sT0); A('s_cmp_lg_u32 s%d, 0' % sKS); A('s_cselect_b32 s%d, s%d, 0' % (sT0, sT0))
            A('s_cmp_eq_u32 s%d, 1' % sT0); A('s_cbranch_scc1 %s' % Lhs)
        A('s_mov_b32 s%d, 0' % sSp); A('v_mov_b32 v250, 72')
        A.label(Lh)
        A('global_load_dword v251, v250, s[6:7] sc1')
        A('s_add_u32 s%d, s%d, 1' % (sSp, sSp)); A('s_cmp_gt_u32 s%d, %d' % (sSp, SPIN)); A('s_cbranch_scc1 worker_abort')
        A('s_waitcnt vmcnt(0)')
        A('v_readfirstlane_b32 s%d, v251' % sT0); A('s_nop 3'); A('s_cmp_ge_u32 s%d, 64' % sT0); A('s_cbranch_scc1 %s' % Lhs)
        A('s_sleep 8'); A('s_branch %s' % Lh)
        A.label(Lhs)
    G.load_b()
    A.label('qkv_dep')
    A('s_lshl_b32 s%d, s%d, 6' % (sDep, sRB)); A('s_add_u32 s%d, s%d, %d' % (sDep, sDep, FXL)); A('s_mov_b32 s%d, 16' % sCnt)
    G.setup(); wait_flags(A)
    A('s_branch gemm_main')

    def decode(src):
        A('s_bfe_u32 s%d, s%d, 0x60016' % (sRB, src)); A('s_bfe_u32 s%d, s%d, 0x50011' % (sNT, src)); A('s_bfe_u32 s%d, s%d, 0x3000e' % (sKS, src))
        A('s_bfe_u32 s%d, s%d, 0x60008' % (sK0, src)); A('s_bfe_u32 s%d, s%d, 0x50003' % (sNKi, src))
    def blk_rows():
        A('s_lshl_b32 s%d, s%d, 6' % (sRow0, sRB)); A('s_mov_b32 s%d, 0' % sBig)
    def own(base, code):
        code(); A('s_lshl_b32 s%d, s%d, 2' % (sT0, sT0)); A('s_add_u32 s%d, s%d, %d' % (sFlag, sT0, base))
    def btouch():
        A('v_and_b32 v200, 63, v0'); A('v_lshrrev_b32 v201, 6, v0')
        A('v_lshrrev_b32 v202, 1, v200'); A('v_lshl_add_u32 v202, v201, 8, v202')
        A('v_and_b32 v203, 1, v200'); A('v_lshlrev_b32 v203, 7, v203')
        A('s_lshl_b32 s%d, s%d, 6' % (sT4, sNk)); A('v_mov_b32 v206, 0x7ff00000')
        for j in range(8):
            A('v_add_u32 v204, %d, v202' % (32 * j)); A('v_mul_lo_u32 v205, v204, s%d' % sLdb); A('v_add_u32 v205, v205, v203')
            A('v_cmp_gt_u32 vcc, s%d, v204' % sT4); A('s_nop 1'); A('v_cndmask_b32 v205, v206, v205, vcc')
            A('buffer_load_dword v%d, v205, %s, s%d offen' % (208 + j, srd(SRD_B), sBoff))
    types = {
        T_O: dict(split=True, ownbase=FO, abuf=OX, lda=8192, bk=A_WO, bs=8 * MB, ldb=2048, p=PO),
        T_W4: dict(split=True, ownbase=FW4, abuf=UB, lda=7168, bk=B_W4, bs=7 * MB, ldb=2048, p=P4),
        T_W1: dict(split=False, ownbase=FW1, ostr=8, abuf=ZB, bk=B_W1, bs=2 * MB, ldb=2048, c=GB, ldc=2048, mode=1),
        T_W2: dict(split=False, ownbase=FW2, ostr=8, abuf=GB - 2048, bk=B_W2, bs=2 * MB, ldb=2048, c=X1B, ldc=2048, mode=2, shift=1, resid=YB),
        T_W3: dict(split=False, ownbase=FW3, ostr=32, abuf=Z2B, bk=B_W3, bs=7 * MB, ldb=7168, c=UB, ldc=7168, mode=1),
    }
    def gemm_setup(ty):
        d = types[ty]
        mk_srd(A, SRD_B, d['bk'], d['bs']); ws_srd(A, SRD_A); ws_srd(A, SRD_C); ws_srd(A, SRD_R)
        if d['split']:
            own(d['ownbase'], lambda: (A('s_lshl_b32 s%d, s%d, 6' % (sT0, sRB)), A('s_lshl_b32 s%d, s%d, 3' % (sT1, sKS)), A('s_add_u32 s%d, s%d, s%d' % (sT0, sT0, sT1)), A('s_add_u32 s%d, s%d, s%d' % (sT0, sT0, sNT))))
            gemm_params(A, d['lda'], d['ldb'], 2048, 0, 0)
            A('s_mov_b32 s%d, s%d' % (sNk, sNKi)); A('s_mov_b32 s%d, s%d' % (sShI, sNT)); A('s_mov_b32 s%d, 16' % sShR)
            A('s_mul_i32 s%d, s%d, %d' % (sAoff, sRow0, d['lda'])); A('s_lshl_b32 s%d, s%d, 7' % (sT0, sK0)); A('s_add_u32 s%d, s%d, s%d' % (sAoff, sAoff, sT0))
            A('s_add_u32 s%d, s%d, %d' % (sAoff, sAoff, d['abuf']))
            A('s_mul_i32 s%d, s%d, %d' % (sBoff, sK0, 64 * d['ldb'])); A('s_lshl_b32 s%d, s%d, 8' % (sT0, sNT)); A('s_add_u32 s%d, s%d, s%d' % (sBoff, sBoff, sT0))
            A('s_lshl_b32 s%d, s%d, 11' % (sCoff, sRow0)); A('s_add_u32 s%d, s%d, s%d' % (sCoff, sCoff, sT0))
            A('s_lshl_b32 s%d, s%d, 22' % (sT0, sKS)); A('s_add_u32 s%d, s%d, s%d' % (sCoff, sCoff, sT0)); A('s_add_u32 s%d, s%d, %d' % (sCoff, sCoff, d['p']))
        else:
            own(d['ownbase'], lambda: (A('s_mul_i32 s%d, s%d, %d' % (sT0, sRB, d['ostr'])), A('s_add_u32 s%d, s%d, s%d' % (sT0, sT0, sNT))))
            gemm_params(A, 2048, d['ldb'], d['ldc'], 16, d['mode'], d.get('shift', 0))
            A('s_mov_b32 s%d, s%d' % (sShI, sK0)); A('s_cmp_eq_u32 s%d, 7' % sNKi); A('s_cselect_b32 s%d, 19, 16' % sShR)
            A('s_lshl_b32 s%d, s%d, 11' % (sAoff, sRow0)); A('s_add_u32 s%d, s%d, %d' % (sAoff, sAoff, d['abuf']))
            A('s_lshl_b32 s%d, s%d, 8' % (sBoff, sNT))
            A('s_mul_i32 s%d, s%d, %d' % (sCoff, sRow0, d['ldc'])); A('s_add_u32 s%d, s%d, s%d' % (sCoff, sCoff, sBoff))
            if 'resid' in d: A('s_add_u32 s%d, s%d, %d' % (sRoff, sCoff, d['resid']))
            A('s_add_u32 s%d, s%d, %d' % (sCoff, sCoff, d['c']))

    TB = build_table()
    A.label('streams')
    A('s_getpc_b64 s[%d:%d]' % (sTab, sTab + 1))
    A.label('q_pc')
    A('s_add_u32 s%d, s%d, qtable-q_pc' % (sTab, sTab)); A('s_addc_u32 s%d, s%d, 0' % (sTab + 1, sTab + 1))
    A('s_lshl_b32 s%d, s%d, 5' % (sT0, sXW)); A('s_add_u32 s%d, s%d, s%d' % (sT0, sT0, sTK)); A('s_lshl_b32 s%d, s%d, 4' % (sT0, sT0))
    A('s_load_dword s%d, s[%d:%d], s%d' % (sS0, sTab, sTab + 1, sT0))
    A('s_add_u32 s%d, s%d, 4' % (sT1, sT0)); A('s_load_dword s%d, s[%d:%d], s%d' % (sS1, sTab, sTab + 1, sT1))
    A('s_add_u32 s%d, s%d, 8' % (sT2, sT0)); A('s_load_dword s%d, s[%d:%d], s%d' % (sS2, sTab, sTab + 1, sT2))
    A('s_waitcnt lgkmcnt(0)')
    A('s_lshr_b32 s%d, s%d, 28' % (sT2, sS0))
    A('s_cmp_eq_u32 s%d, %d' % (sT2, T_ATT)); A('s_cbranch_scc1 att_loop')
    A('s_cmp_eq_u32 s%d, %d' % (sT2, T_ROWLOOP)); A('s_cbranch_scc1 u_rowloop')
    A.label('ms_next')
    A('s_cmp_lg_u32 s%d, 0' % sS0); A('s_cbranch_scc1 ms_have')
    A('s_mov_b32 s%d, s%d' % (sS0, sS1)); A('s_mov_b32 s%d, s%d' % (sS1, sS2)); A('s_mov_b32 s%d, 0' % sS2)
    A('s_or_b32 s%d, s%d, s%d' % (sT0, sS0, sS1)); A('s_cmp_eq_u32 s%d, 0' % sT0); A('s_cbranch_scc1 L_exit_main')
    A('s_branch ms_next')
    A.label('ms_have')
    decode(sS0); blk_rows()
    A('s_lshr_b32 s%d, s%d, 28' % (sT5, sS0))
    for ty in types:
        Lt = A.uid('mt')
        A('s_cmp_lg_u32 s%d, %d' % (sT5, ty)); A('s_cbranch_scc1 %s' % Lt)
        gemm_setup(ty)
        A.label(Lt)
    G.load_b()
    A.label('ms_top')
    A('s_cmp_eq_u32 s%d, 0' % sS0); A('s_cbranch_scc1 ms_next')
    A('s_bfe_u32 s%d, s%d, 0x60016' % (sT0, sS0)); A('s_lshr_b32 s%d, s%d, 28' % (sT5, sS0))
    A('s_mov_b32 s%d, 16' % sCnt)
    A('s_lshl_b32 s%d, s%d, 7' % (sT2, sT0))
    A('s_add_u32 s%d, s%d, %d' % (sDep, sT2, FATT))
    A('s_add_u32 s%d, s%d, %d' % (sT3, sT2, FR1)); A('s_cmp_eq_u32 s%d, %d' % (sT5, T_W1)); A('s_cselect_b32 s%d, s%d, s%d' % (sDep, sT3, sDep))
    A('s_add_u32 s%d, s%d, %d' % (sT3, sT2, FR2)); A('s_cmp_eq_u32 s%d, %d' % (sT5, T_W3)); A('s_cselect_b32 s%d, s%d, s%d' % (sDep, sT3, sDep))
    A('s_add_u32 s%d, s%d, %d' % (sT3, sT2, FW3)); A('s_cmp_eq_u32 s%d, %d' % (sT5, T_W4)); A('s_cselect_b32 s%d, s%d, s%d' % (sDep, sT3, sDep)); A('s_cselect_b32 s%d, 28, s%d' % (sCnt, sCnt))
    Lw2 = A.uid('m2')
    A('s_cmp_lg_u32 s%d, %d' % (sT5, T_W2)); A('s_cbranch_scc1 %s' % Lw2)
    A('s_sub_u32 s%d, s%d, 1' % (sT2, sT0)); A('s_cmp_eq_u32 s%d, 0' % sT0); A('s_cselect_b32 s%d, 0, s%d' % (sT2, sT2))
    A('s_add_u32 s%d, s%d, 1' % (sT3, sT0)); A('s_cmp_eq_u32 s%d, %d' % (sT0, NB - 1)); A('s_cselect_b32 s%d, s%d, s%d' % (sT3, sT0, sT3))
    A('s_sub_u32 s%d, s%d, s%d' % (sT3, sT3, sT2)); A('s_add_u32 s%d, s%d, 1' % (sT3, sT3)); A('s_lshl_b32 s%d, s%d, 3' % (sCnt, sT3))
    A('s_lshl_b32 s%d, s%d, 5' % (sT2, sT2)); A('s_add_u32 s%d, s%d, %d' % (sDep, sT2, FW1))
    A.label(Lw2)
    A('s_mov_b32 s%d, s%d' % (sItem, sS0))
    A('s_add_u32 s%d, s%d, %d' % (sS0, sS0, 1 << 22)); A('s_bfe_u32 s%d, s%d, 0x60016' % (sT0, sS0))
    A('s_add_u32 s%d, s%d, 1' % (sT1, sS0)); A('s_and_b32 s%d, s%d, 7' % (sT1, sT1)); A('s_add_u32 s%d, s%d, %d' % (sT1, sT1, NBIG - 1))
    A('s_cmp_eq_u32 s%d, s%d' % (sT0, sT1)); A('s_cselect_b32 s%d, 0, s%d' % (sS0, sS0))
    decode(sItem); blk_rows()
    A('s_lshr_b32 s%d, s%d, 28' % (sT5, sItem))
    if trace:
        A('s_lshl_b32 s%d, s%d, 11' % (sQi, sT5)); A('s_mul_i32 s%d, s%d, 48' % (sT0, sRB)); A('s_add_u32 s%d, s%d, s%d' % (sQi, sQi, sT0))
        A('s_lshl_b32 s%d, s%d, 3' % (sT0, sKS)); A('s_add_u32 s%d, s%d, s%d' % (sQi, sQi, sT0)); A('s_add_u32 s%d, s%d, s%d' % (sQi, sQi, sNT))
        A('s_memrealtime s[98:99]')
    A('s_mov_b32 s%d, 0' % sItem)
    for ty in types:
        Lt = A.uid('mr')
        A('s_cmp_lg_u32 s%d, %d' % (sT5, ty)); A('s_cbranch_scc1 %s' % Lt)
        gemm_setup(ty)
        A.label(Lt)
    GS.setup(); wait_flags(A); A('s_branch gemm_main_s')

    A.label('att_loop')
    A('s_bfe_u32 s%d, s%d, 0x50011' % (sChunk, sS0))
    sAS = sD1; sAL = sD2
    A('s_bfe_u32 s%d, s%d, 0x60016' % (sAS, sS0))
    A('s_bfe_u32 s%d, s%d, 0x60008' % (sAL, sS0))
    A('s_cmp_eq_u32 s%d, 0' % sAL); A('s_cselect_b32 s%d, 64, s%d' % (sAL, sAL))
    A.label('att_next')
    A('s_cmp_ge_u32 s%d, s%d' % (sAS, sAL)); A('s_cbranch_scc1 att_fin')
    A('s_mov_b32 s%d, s%d' % (sRB, sAS)); A('s_and_b32 s%d, s%d, 7' % (sNT, sChunk)); A('s_add_u32 s%d, s%d, 2' % (sAS, sAS))
    if trace:
        A('s_lshl_b32 s%d, s%d, 3' % (sQi, sRB)); A('s_add_u32 s%d, s%d, s%d' % (sQi, sQi, sNT)); A('s_add_u32 s%d, s%d, 2048' % (sQi, sQi))
        A('s_memrealtime s[98:99]')
    wave_id(A, sSp)
    Lad = A.uid('ad'); Lap = A.uid('ap')
    A('s_cmp_lg_u32 s%d, 0' % sSp); A('s_cbranch_scc1 %s' % Lad)
    A('s_lshr_b32 s%d, s%d, 2' % (sT5, sRB)); A('s_mul_i32 s%d, s%d, 384' % (sT0, sT5)); A('s_lshl_b32 s%d, s%d, 4' % (sT1, sNT)); A('s_add_u32 s%d, s%d, s%d' % (sT0, sT0, sT1))
    A('s_add_u32 s%d, s%d, %d' % (sT0, sT0, FQKV))
    A('v_lshrrev_b32 v248, 2, v0'); A('v_lshlrev_b32 v248, 7, v248'); A('v_and_b32 v249, 3, v0'); A('v_lshl_add_u32 v248, v249, 2, v248'); A('v_add_u32 v248, s%d, v248' % sT0)
    A('s_lshl_b32 s%d, s%d, 10' % (sT0, sRB)); A('s_lshl_b32 s%d, s%d, 7' % (sT1, sNT)); A('s_add_u32 s%d, s%d, s%d' % (sT0, sT0, sT1)); A('s_add_u32 s%d, s%d, %d' % (sT0, sT0, FLG_SEG - 128))
    A('v_lshlrev_b32 v249, 2, v0'); A('v_add_u32 v249, s%d, v249' % sT0)
    A('v_cmp_gt_u32 vcc, 32, v0'); A('s_nop 1'); A('v_cndmask_b32 v250, v249, v248, vcc')
    A('s_mov_b32 s%d, 0xfff' % sMsk); A('s_mov_b32 s%d, -1' % (sMsk + 1)); A('s_mov_b64 exec, s[%d:%d]' % (sMsk, sMsk + 1))
    A('s_mov_b32 s%d, 0' % sSp)
    A.label(Lap)
    A('buffer_load_dword v251, v250, s[8:11], 0 offen sc1')
    A('s_add_u32 s%d, s%d, 1' % (sSp, sSp)); A('s_cmp_gt_u32 s%d, %d' % (sSp, SPIN)); A('s_cbranch_scc1 worker_abort')
    A('s_waitcnt vmcnt(0)')
    A('v_cmp_eq_u32 vcc, 0, v251'); A('s_cbranch_vccz %s_ok' % Lap)
    A('s_sleep 2'); A('s_branch %s' % Lap)
    A.label(Lap + '_ok')
    A('s_mov_b64 exec, -1')
    A.label(Lad)
    A('s_barrier')
    if trace: A('s_memrealtime s[100:101]')
    def code():
        A('s_lshr_b32 s%d, s%d, 1' % (sT0, sRB)); A('s_lshl_b32 s%d, s%d, 5' % (sT0, sT0))
        A('s_and_b32 s%d, s%d, 1' % (sT1, sRB)); A('s_lshl_b32 s%d, s%d, 3' % (sT1, sT1)); A('s_add_u32 s%d, s%d, s%d' % (sT0, sT0, sT1))
        A('s_add_u32 s%d, s%d, s%d' % (sT0, sT0, sNT))
    own(FATT, code)
    A('s_mov_b32 s%d, s%d' % (sSeg, sRB)); A('s_lshl_b32 s%d, s%d, 2' % (sHead, sNT))
    A('s_mov_b32 s%d, 3' % sItem)
    unit_att(A)
    A('s_branch unit_done')

    A.label('att_fin')
    A('s_mov_b32 s%d, 0' % sS0)
    A('s_branch ms_next')
    sN1, sN2, sN3 = sS0, sS1, sS2
    A.label('u_rowloop')
    A('s_bfe_u32 s%d, s%d, 0x50011' % (sChunk, sS0))
    A('s_mov_b32 s%d, 0' % sN1); A('s_mov_b32 s%d, 0' % sN2); A('s_mov_b32 s%d, 0' % sN3)
    A.label('rl_top')
    A('s_cmp_ge_u32 s%d, 16' % sN3); A('s_cbranch_scc1 L_exit_main')
    wave_id(A, sSp)
    A('s_cmp_lg_u32 s%d, 0' % sSp); A('s_cbranch_scc1 rl_wait')
    A('v_lshlrev_b32 v250, 2, v0'); A('s_mov_b32 s%d, 0' % sSp)
    A.label('rl_poll')
    A('s_lshr_b32 s%d, s%d, 4' % (sT1, sChunk))
    for reg, base, sh, n_ in ((247, FO, 8, sN1), (248, FW2, 5, sN2), (249, FW4, 8, sN3)):
        A('s_min_u32 s%d, s%d, 15' % (sT0, n_)); A('s_lshl_b32 s%d, s%d, 1' % (sT0, sT0)); A('s_add_u32 s%d, s%d, s%d' % (sT0, sT0, sT1))
        A('s_lshl_b32 s%d, s%d, %d' % (sT0, sT0, sh)); A('s_add_u32 s%d, s%d, %d' % (sT0, sT0, base))
        A('buffer_load_dword v%d, v250, s[8:11], s%d offen sc1' % (reg, sT0))
    A('s_add_u32 s%d, s%d, 1' % (sSp, sSp)); A('s_cmp_gt_u32 s%d, %d' % (sSp, SPIN)); A('s_cbranch_scc1 worker_abort')
    A('s_waitcnt vmcnt(0)')
    A('s_mov_b32 s%d, 0' % sT5)
    for code_, reg, cnt, n_ in ((1, 247, 48, sN1), (2, 248, 8, sN2), (3, 249, 48, sN3)):
        Ln = A.uid('rn')
        A('s_cmp_lg_u32 s%d, 0' % sT5); A('s_cbranch_scc1 %s' % Ln)
        A('s_cmp_ge_u32 s%d, 16' % n_); A('s_cbranch_scc1 %s' % Ln)
        A('v_cmp_eq_u32 vcc, 0, v%d' % reg)
        if cnt == 48: A('s_and_b32 vcc_hi, vcc_hi, 0xffff')
        else: A('s_and_b32 vcc_lo, vcc_lo, 0xff'); A('s_mov_b32 vcc_hi, 0')
        A('s_cmp_lg_u64 vcc, 0'); A('s_cbranch_scc1 %s' % Ln)
        A('s_mov_b32 s%d, %d' % (sT5, code_))
        A.label(Ln)
    A('s_cmp_lg_u32 s%d, 0' % sT5); A('s_cbranch_scc1 rl_got')
    A('s_sleep 2'); A('s_branch rl_poll')
    A.label('rl_got')
    A('v_mov_b32 v250, 163832'); A('v_mov_b32 v251, s%d' % sT5); A('s_mov_b64 exec, 1'); A('ds_write_b32 v250, v251'); A('s_mov_b64 exec, -1'); A('s_waitcnt lgkmcnt(0)')
    A.label('rl_wait')
    A('s_barrier')
    A('v_mov_b32 v250, 163832'); A('ds_read_b32 v251, v250'); A('s_waitcnt lgkmcnt(0)'); A('v_readfirstlane_b32 s%d, v251' % sT5)
    A('s_barrier')
    if trace: A('s_memrealtime s[98:99]'); A('s_memrealtime s[100:101]')
    A('s_mov_b32 s%d, 2' % sItem)
    for c_ in (2, 3):
        A('s_cmp_eq_u32 s%d, %d' % (sT5, c_)); A('s_cbranch_scc1 rl_%d' % c_)
    def pick(n_, T_, lab):
        A('s_lshl_b32 s%d, s%d, 1' % (sRB, n_)); A('s_lshr_b32 s%d, s%d, 4' % (sT1, sChunk)); A('s_add_u32 s%d, s%d, s%d' % (sRB, sRB, sT1)); A('s_and_b32 s%d, s%d, 15' % (sNT, sChunk))
        if trace:
            A('s_mul_i32 s%d, s%d, 48' % (sQi, sRB)); A('s_add_u32 s%d, s%d, s%d' % (sQi, sQi, sNT)); A('s_add_u32 s%d, s%d, %d' % (sQi, sQi, T_ * 2048))
        A('s_add_u32 s%d, s%d, 1' % (n_, n_)); blk_rows(); A('s_branch %s' % lab)
    pick(sN1, T_R1, 'u_r1')
    A.label('rl_2'); pick(sN2, T_R2, 'u_r2')
    A.label('rl_3'); pick(sN3, T_R3, 'u_r3')
    def rowu(lab, ownbase, fn, pre=None):
        A.label(lab)
        if ownbase is not None:
            own(ownbase, lambda: (A('s_lshl_b32 s%d, s%d, 5' % (sT0, sRB)), A('s_add_u32 s%d, s%d, s%d' % (sT0, sT0, sNT))))
        if pre: pre()
        A('s_lshl_b32 s%d, s%d, 2' % (sT0, sNT)); A('s_add_u32 s%d, s%d, s%d' % (sRow, sRow0, sT0))
        fn(A)
        A('s_branch %s' % ('unit_done' if ownbase is not None else 'unit_nosig'))
    rowu('u_r1', FR1, unit_r1, lambda: mk_srd(A, SRD_R, A_X, 4 * MB))
    rowu('u_r2', FR2, unit_r2)
    rowu('u_r3', None, unit_r3, lambda: mk_srd(A, SRD_C, D_OUT, 4 * MB))

    def epis(G_, sfx):
        A('s_cmp_eq_u32 s%d, 1' % sMode); A('s_cbranch_scc1 epi1%s' % sfx)
        A('s_cmp_eq_u32 s%d, 2' % sMode); A('s_cbranch_scc1 epi2%s' % sfx)
        G_.epi_bf16(); A('s_branch unit_done')
        A.label('epi1' + sfx); G_.epi_bf16(gelu=True); A('s_branch unit_done')
        A.label('epi2' + sfx); G_.epi_bf16(resid=True); A('s_branch unit_done')
    A.label('gemm_main')
    G.mainloop()
    G.epi_bf16(); A('s_branch unit_done')
    A.label('gemm_main_s')
    GS.mainloop()
    epis(GS, 's')
    def trace_out():
        if trace:
            A('s_memrealtime s[68:69]'); A('s_waitcnt lgkmcnt(0)')
            Lt = A.uid('tr')
            A('v_cmp_eq_u32 vcc, 0, v0'); A('s_and_saveexec_b64 s[%d:%d], vcc' % (sMsk, sMsk + 1)); A('s_cbranch_execz %s' % Lt)
            A('v_mov_b32 v240, s98'); A('v_mov_b32 v241, s100'); A('v_mov_b32 v242, s66'); A('v_mov_b32 v243, s68')
            A('s_sub_u32 s%d, s62, s60' % sT1); A('s_sub_u32 s%d, s64, s62' % sT2)
            A('v_mov_b32 v244, s%d' % sT1); A('v_mov_b32 v245, s%d' % sT2); A('v_mov_b32 v246, 0'); A('v_mov_b32 v247, 0')
            A('s_lshl_b32 s%d, s%d, 5' % (sT0, sQi)); A('s_add_u32 s%d, s%d, %d' % (sT0, sT0, TRC)); A('v_mov_b32 v250, 0')
            A('buffer_store_dwordx4 v[240:243], v250, s[8:11], s%d offen' % sT0)
            A('buffer_store_dwordx4 v[244:247], v250, s[8:11], s%d offen offset:16' % sT0)
            A.label(Lt)
            A('s_mov_b64 exec, s[%d:%d]' % (sMsk, sMsk + 1))
    A.label('unit_done')
    if trace: A('s_memrealtime s[66:67]')
    signal_flag(A)
    trace_out()
    A('s_cmp_eq_u32 s%d, 1' % sItem); A('s_cbranch_scc1 qkv_next')
    A('s_cmp_eq_u32 s%d, 2' % sItem); A('s_cbranch_scc1 rl_top')
    A('s_cmp_eq_u32 s%d, 3' % sItem); A('s_cbranch_scc1 att_next')
    A('s_branch ms_top')
    A.label('unit_nosig')
    if trace: A('s_memrealtime s[66:67]')
    A('s_waitcnt vmcnt(0)'); A('s_barrier')
    trace_out()
    A('s_branch rl_top')
    A.label('worker_abort')
    A('s_mov_b64 exec, 1')
    A('v_mov_b32 v250, 1'); A('v_mov_b32 v251, 132')
    A('global_atomic_add v251, v250, s[6:7] sc1'); A('s_waitcnt vmcnt(0)')
    A.label('L_exit_main')
    A('s_endpgm')
    A.raw('.p2align 2')
    A.raw('.type qtable,@object')
    A.label('qtable')
    for x in range(8):
        for t in range(32):
            A.raw('    .long ' + ', '.join('0x%08x' % w for w in TB[x, t] + [0]))
    A.raw('.section .rodata,"a"')
    A.raw('.p2align 6'); kernel_desc(A, KNAME)
    return A.text()
if __name__ == '__main__':
    kw = {}
    for x in sys.argv[2:]:
        k, v = x.split('=')
        kw[k] = v
    if 'slp' in kw: SLP[0] = int(kw.pop('slp'))
    ck = dict(rearly=int(kw.pop('rearly', 5)), vdefer=int(kw.pop('vdefer', 0)), sel=int(kw.pop('sel', 0)), sigchunk=3)
    if kw.get('trace'): ck['steptrace'] = True
    if kw.pop('rt', None): ck['rt'] = 1
    for k_ in ('touch', 'd1', 'd4', 'd6', 'sigchunk'):
        if k_ in kw: ck[k_] = int(kw.pop(k_))
    kw['chain_kw'] = ck
    open(sys.argv[1], 'w').write(gen(**kw))
```

```python
import sys
from asmlib import *
from layout import *
import chain11 as chain
from gemm2 import *
from gemm3 import Gemm
from gemmbs import GemmBS
from units3 import *

BM = 128
SBM = 64
NBIG = 31
NB = NBLK
KNAME = 'sequential_preLN__memory_aug_recurrent_mem_tr__mixer_s_mlp__prompt_kernel'
SPIN = 1 << 22
sXW, sTK, sIt, sFlag, sItem, sQi, sTab, sDep, sCnt, sSp = 80, 81, 82, 83, 84, 85, 86, 88, 89, 90
sMsk = 92
sRB, sNT, sKS = 94, 95, 96
sK0, sNKi = 78, 79
sRow0, sBig = 70, 71
sShI, sShR = 75, 76
sS0, sS1, sS2 = 58, 59, 91
sChunk = 97
sD0, sD1, sD2 = 72, 73, 74
sC3 = 77
T_ATT, T_O, T_R1, T_W1, T_W2, T_R2, T_W3, T_W4, T_R3, T_ROWLOOP = range(1, 11)
O_SPLIT = [(0, 11), (11, 11), (22, 11), (33, 11), (44, 10), (54, 10)]
W4_SPLIT = [(0, 10), (10, 10), (20, 9), (29, 9), (38, 9), (47, 9)]
def word(t, a, b=0, c=0, k0=0, nk=0, end=0):
    assert a < 64 and b < 32 and c < 8 and k0 < 64 and nk < 32
    return (t << 28) | (a << 22) | (b << 17) | (c << 14) | (k0 << 8) | (nk << 3) | end

def build_table():
    T = {(x, t): [0, 0, 0] for x in range(8) for t in range(32)}
    slot = [0] * 6
    def take(x):
        w = (x, slot[x]); slot[x] += 1; assert slot[x] <= 32; return w
    for x in range(6):
        for nt in range(8):
            m = x * 8 + nt
            T[take(x)] = [word(T_O, 0, nt, x, *O_SPLIT[x]), word(T_W3, 30, m) if m < 28 else 0, 0]
    for nt in range(8): T[take(0)] = [word(T_W1, 0, nt), 0, 0]
    for nt in range(8): T[take(1)] = [word(T_W2, 0, nt), 0, 0]
    for nt in range(28): T[take(2 + nt // 7)] = [word(T_W3, 0, nt, end=7), 0, 0]
    for x in range(6):
        for nt in range(8): T[take(x)] = [word(T_W4, 0, nt, x, *W4_SPLIT[x]), 0, 0]
    free = [(x, t) for x in range(6) for t in range(slot[x], 32)]
    assert len(free) >= 48, len(free)
    LB = NBIG
    w4 = lambda i: word(T_W4, LB, i % 8, i // 8, *W4_SPLIT[i // 8], end=1)
    for i in range(16): T[free[i]] = [word(T_ATT, i >> 3, i & 7, 0, 63), w4(36 + i) if i < 12 else 0, 0]
    for c in range(32): T[free[16 + c]] = [word(T_ROWLOOP, 0, c), 0, 0]
    for m in range(64):
        w = []
        if m < 48: w.append(word(T_O, LB, m % 8, m // 8, *O_SPLIT[m // 8], end=1))
        if m < 28: w.append(word(T_W3, LB, m, end=1))
        elif m < 48: w.append(w4(m - 28))
        elif m < 56: w += [word(T_W1, LB, m - 48, end=1), w4(20 + m - 48)]
        else: w += [word(T_ATT, 63, m - 56, 0, 0), word(T_W2, LB, m - 56, end=1), w4(28 + m - 56)]
        T[6 + m // 32, m % 32] = (w + [0, 0, 0])[:3]
    return T

TRACE = [0]
SLP = [4]
def mk_srd(A, n, karg, size):
    A('s_load_dwordx2 s[%d:%d], s[0:1], %d' % (n, n + 1, karg))
    A('s_mov_b32 s%d, %d' % (n + 2, size))
    A('s_mov_b32 s%d, 0x00020000' % (n + 3))
    A('s_waitcnt lgkmcnt(0)')
def ws_srd(A, n):
    for i in range(4): A('s_mov_b32 s%d, s%d' % (n + i, 8 + i))
def gemm_params(A, lda, ldb, ldc, nk, mode, shift=0):
    A('s_mov_b32 s%d, %d' % (sLda, lda)); A('s_mov_b32 s%d, %d' % (sLdb, ldb)); A('s_mov_b32 s%d, %d' % (sLdc, ldc))
    A('s_mov_b32 s%d, %d' % (sNk, nk)); A('s_mov_b32 s%d, %d' % (sShift, lda if shift else 0)); A('s_mov_b32 s%d, %d' % (sMode, mode))

def wave_id(A, dst):
    A('v_lshrrev_b32 v250, 6, v0'); A('s_nop 0'); A('v_readfirstlane_b32 s%d, v250' % dst); A('s_nop 3')

def wait_flags(A):
    Ld = A.uid('wf'); Ll = A.uid('wl')
    wave_id(A, sSp)
    A('s_cmp_lg_u32 s%d, 0' % sSp); A('s_cbranch_scc1 %s' % Ld)
    A('v_cmp_gt_u32 vcc, s%d, v0' % sCnt)
    A('s_mov_b64 s[%d:%d], vcc' % (sMsk, sMsk + 1))
    A('v_lshlrev_b32 v250, 2, v0')
    A('s_mov_b32 s%d, 0' % sSp)
    A('s_mov_b64 exec, s[%d:%d]' % (sMsk, sMsk + 1))
    A.label(Ll)
    A('buffer_load_dword v251, v250, s[8:11], s%d offen sc1' % sDep)
    A('s_add_u32 s%d, s%d, 1' % (sSp, sSp)); A('s_cmp_gt_u32 s%d, %d' % (sSp, SPIN)); A('s_cbranch_scc1 worker_abort')
    A('s_waitcnt vmcnt(0)')
    A('v_cmp_eq_u32 vcc, 0, v251')
    A('s_cbranch_vccz %s_ok' % Ll)
    A('s_sleep %d' % SLP[0]); A('s_branch %s' % Ll)
    A.label(Ll + '_ok')
    A('s_mov_b64 exec, -1')
    A.label(Ld)
    A('s_barrier')
    if TRACE[0]: A('s_memrealtime s[100:101]')

def signal_flag(A):
    A('s_waitcnt vmcnt(0)')
    A('s_barrier')
    L = A.uid('sf')
    A('v_cmp_eq_u32 vcc, 0, v0')
    A('s_and_saveexec_b64 s[%d:%d], vcc' % (sMsk, sMsk + 1))
    A('s_cbranch_execz %s' % L)
    A('v_mov_b32 v250, 0'); A('v_mov_b32 v251, 1')
    A('buffer_store_dword v251, v250, s[8:11], s%d offen sc1' % sFlag)
    A.label(L)
    A('s_mov_b64 exec, s[%d:%d]' % (sMsk, sMsk + 1))

def kvwait(A, seg_sreg, issue_only=False, check_only=False):
    c = chain
    def addr():
        A('s_lshr_b32 s%d, s%d, 2' % (c.sT0, seg_sreg)); A('s_mul_i32 s%d, s%d, 384' % (c.sT0, c.sT0))
        A('s_lshl_b32 s%d, s%d, 2' % (c.sT1, c.sH)); A('s_add_u32 s%d, s%d, s%d' % (c.sT0, c.sT0, c.sT1))
        A('s_add_u32 s%d, s%d, %d' % (c.sT0, c.sT0, FQKV + 128)); A('v_mov_b32 v125, 0')
    def loads():
        A('buffer_load_dword v126, v125, s[8:11], s%d offen sc1' % c.sT0)
        A('buffer_load_dword v127, v125, s[8:11], s%d offen offset:128 sc1' % c.sT0)
    if issue_only:
        addr(); loads(); return
    L = A.uid('kv'); Lok = A.uid('kvok')
    if check_only:
        A('v_and_b32 v126, v126, v127'); A('v_cmp_eq_u32 vcc, 0, v126'); A('s_cbranch_vccz %s' % Lok)
    addr()
    A('s_mov_b32 s%d, 0' % c.sSPIN)
    A.label(L)
    loads()
    A('s_add_u32 s%d, s%d, 1' % (c.sSPIN, c.sSPIN)); A('s_cmp_gt_u32 s%d, %d' % (c.sSPIN, SPIN)); A('s_cbranch_scc1 chain_abort')
    A('s_waitcnt vmcnt(0)')
    A('v_and_b32 v126, v126, v127'); A('v_cmp_eq_u32 vcc, 0, v126'); A('s_cbranch_vccnz %s' % L)
    A.label(Lok)

def gen(intra='', chain_kw=None, trace=0, coop=1, wake=56, wpre=0, hold=1, ctouch=0, wpre2=3):
    wpre2 = int(wpre2)
    ctouch = int(ctouch)
    hold = int(hold)
    wpre = int(wpre); coop = int(coop); trace = int(trace); TRACE[0] = trace; wake = int(wake)
    A = Asm()
    G = GemmBS(A, 128, stamps=bool(trace))
    GS = GemmBS(A, SBM, stamps=bool(trace))
    for line in (
        "; Persistent single-launch kernel: 256 workgroups, one per CU (LDS 160 KiB).  Roles come from the hardware XCC id + a per-XCD ticket:",
        ";  - XCC 0/1: the 64-step memory recurrence (weights resident in registers/LDS, 2:4 sparse MFMA for the 8 memory rows,",
        ";    hand-offs through L2 / write-through stores with poison-tagged ring buffers)",
        ";  - XCC 2..7: LN1, QKV GEMM, token attention, output projection and the mixer MLP as flag-synchronised weight-stationary GEMM streams",
        "; Kernarg: 15 pointers (A_x, A_mem0, A_Wq, A_Wk, A_Wv, A_Wo, A_seg_len, B_x, B_w1..B_w4, d_out, d_debug, d_ws)"):
        A.raw(line)
    A.raw('; @launch grid=(256,1,1) block=(256,1,1) lds=163840')
    A.raw('.amdgcn_target "amdgcn-amd-amdhsa--gfx950"')
    A.raw('.text')
    kernel_header(A, KNAME)
    A('s_cmp_ge_u32 s2, 256'); A('s_cbranch_scc1 L_exit_main')
    A('s_load_dwordx2 s[4:5], s[0:1], %d' % D_WS)
    A('s_load_dwordx2 s[6:7], s[0:1], %d' % D_DBG)
    if trace: A('s_memrealtime s[64:65]')
    if ctouch:
        A('s_getpc_b64 s[12:13]')
        A.label('code_base')
        A('v_lshlrev_b32 v4, 7, v0')
        for i in range(ctouch):
            A('v_add_u32 v5, %d, v4' % (i * 32768))
            A('v_min_u32 v5, qtable-code_base, v5')
            A('global_load_dword v%d, v5, s[12:13]' % (240 + i))
    A('s_getreg_b32 s16, hwreg(HW_REG_XCC_ID)')
    A('s_and_b32 s16, s16, 15')
    A('s_waitcnt lgkmcnt(0)')
    A('s_mov_b32 s8, s4'); A('s_mov_b32 s9, s5'); A('s_mov_b32 s10, %d' % WS_SIZE); A('s_mov_b32 s11, 0x00020000')
    A('v_cmp_eq_u32 vcc, 0, v0'); A('s_and_saveexec_b64 s[20:21], vcc'); A('s_cbranch_execz L_nt')
    A('s_lshl_b32 s17, s16, 2'); A('v_mov_b32 v1, s17'); A('v_mov_b32 v2, 1')
    A('global_atomic_add v3, v1, v2, s[6:7] sc0 sc1'); A('s_waitcnt vmcnt(0)')
    A('v_mov_b32 v1, 0'); A('ds_write_b32 v1, v3'); A('s_waitcnt lgkmcnt(0)')
    A.label('L_nt')
    A('s_mov_b64 exec, s[20:21]')
    if ctouch: A('s_waitcnt vmcnt(0)')
    A('s_barrier')
    A('v_mov_b32 v1, 0'); A('ds_read_b32 v3, v1'); A('s_waitcnt lgkmcnt(0)'); A('v_readfirstlane_b32 s17, v3'); A('s_barrier')
    A('s_cmp_ge_u32 s17, 32'); A('s_cbranch_scc1 L_exit_main')
    if trace:
        A('s_memrealtime s[60:61]'); A('s_lshl_b32 s62, s16, 5'); A('s_add_u32 s62, s62, s17'); A('s_lshl_b32 s62, s62, 2'); A('s_add_u32 s62, s62, %d' % (TRC + 6 * MB))
        A('s_waitcnt lgkmcnt(0)'); A('v_mov_b32 v1, s64'); A('v_mov_b32 v2, 0'); A('buffer_store_dword v1, v2, s[8:11], s62 offen')
    A('s_cmp_ge_u32 s16, 2'); A('s_cbranch_scc1 worker')
    chain.gen_chain(A, intra=intra, kvwait=kvwait, finish='chain_to_worker', **(chain_kw or {}))
    A.label('chain_to_worker')
    A('v_mbcnt_lo_u32_b32 v0, -1, 0'); A('v_mbcnt_hi_u32_b32 v0, -1, v0')
    A('s_lshl_b32 s%d, s%d, 6' % (44, chain.sW)); A('v_add_u32 v0, s44, v0')
    A('s_add_u32 s%d, s%d, 6' % (sXW, chain.sX)); A('s_mov_b32 s%d, s%d' % (sTK, chain.sC))
    A('s_mov_b32 s%d, 8' % sIt)
    for n in (SRD_A, SRD_B, SRD_C, SRD_R): ws_srd(A, n)
    A('s_mov_b32 s%d, 0' % sChunk)
    A('s_barrier')
    A('s_branch streams')
    A.label('worker')
    A('s_sub_u32 s%d, s16, 2' % sXW); A('s_mov_b32 s%d, s17' % sTK)
    A('s_cmp_ge_u32 s%d, 6' % sXW); A('s_cbranch_scc1 L_exit_main')
    A('s_mov_b32 s%d, 0' % sIt)
    for n in (SRD_A, SRD_B, SRD_C, SRD_R): ws_srd(A, n)
    A('s_mov_b32 s%d, 0' % sS0); A('s_mov_b32 s%d, 0' % sS1); A('s_mov_b32 s%d, 0' % sS2); A('s_mov_b32 s%d, 0' % sChunk)
    A('s_lshl_b32 s%d, s%d, 5' % (sQi, sXW)); A('s_add_u32 s%d, s%d, s%d' % (sQi, sQi, sTK))
    if wpre:
        A('s_lshl_b32 s%d, s%d, 8' % (sT0, sQi)); A('v_add_u32 v20, s%d, v0' % sT0)
        A('v_lshlrev_b32 v21, 7, v20'); A('v_add_u32 v22, %d, v21' % (49152 * 128))
        for k_, karg in enumerate((A_WO, A_WV, A_WK, A_WQ)):
            mk_srd(A, SRD_C, karg, 8 * MB)
            A('buffer_load_dword v%d, v21, %s, 0 offen' % (24 + 2 * k_, srd(SRD_C)))
            A('buffer_load_dword v%d, v22, %s, 0 offen' % (25 + 2 * k_, srd(SRD_C)))
        ws_srd(A, SRD_C)
    A('v_mov_b32 v8, 0'); A('v_mov_b32 v9, 0'); A('v_mov_b32 v10, 0'); A('v_mov_b32 v11, 0')
    A('v_lshlrev_b32 v12, 4, v0')
    Lz1 = A.uid('z'); Lz2 = A.uid('z')
    A('s_cmp_ge_u32 s%d, 32' % sQi); A('s_cbranch_scc1 %s' % Lz1)
    A('s_lshl_b32 s%d, s%d, 12' % (sT0, sQi)); A('s_add_u32 s%d, s%d, %d' % (sT0, sT0, FLG_SEG))
    A('buffer_store_dwordx4 v[8:11], v12, s[8:11], s%d offen sc1' % sT0)
    A.label(Lz1)
    A('s_cmp_lg_u32 s%d, 32' % sQi); A('s_cbranch_scc1 %s' % Lz2)
    A('s_mov_b32 s%d, %d' % (sT0, GB0)); A('buffer_store_dwordx4 v[8:11], v12, s[8:11], s%d offen sc1' % sT0)
    A('s_mov_b32 s%d, %d' % (sT0, GB + 2048 * 2048)); A('buffer_store_dwordx4 v[8:11], v12, s[8:11], s%d offen sc1' % sT0)
    A.label(Lz2)
    A('s_waitcnt vmcnt(0)'); A('s_barrier')
    Lz3 = A.uid('z')
    A('v_cmp_eq_u32 vcc, 0, v0'); A('s_and_saveexec_b64 s[%d:%d], vcc' % (sMsk, sMsk + 1)); A('s_cbranch_execz %s' % Lz3)
    A('v_mov_b32 v250, 68'); A('v_mov_b32 v251, 1'); A('global_atomic_add v250, v251, s[6:7] sc1')
    A.label(Lz3)
    A('s_mov_b64 exec, s[%d:%d]' % (sMsk, sMsk + 1))
    mk_srd(A, SRD_R, A_X, 4 * MB)
    A('s_mov_b32 s%d, s%d' % (sChunk, sQi))
    A.label('ln_item')
    A('s_lshl_b32 s%d, s%d, 3' % (sRow, sChunk))
    unit_ln1(A)
    Lzw = A.uid('zw')
    A('s_mov_b32 s%d, 0' % sSp); A('v_mov_b32 v250, 68')
    A.label(Lzw)
    A('global_load_dword v251, v250, s[6:7] sc1')
    A('s_add_u32 s%d, s%d, 1' % (sSp, sSp)); A('s_cmp_gt_u32 s%d, %d' % (sSp, SPIN)); A('s_cbranch_scc1 worker_abort')
    A('s_waitcnt vmcnt(0)')
    A('v_readfirstlane_b32 s%d, v251' % sT0); A('s_nop 3'); A('s_cmp_lt_u32 s%d, 192' % sT0); A('s_cbranch_scc1 %s' % Lzw)
    A('s_lshl_b32 s%d, s%d, 2' % (sT0, sChunk)); A('s_add_u32 s%d, s%d, %d' % (sFlag, sT0, FXL))
    signal_flag(A)
    A('s_add_u32 s%d, s%d, 192' % (sChunk, sChunk)); A('s_cmp_lt_u32 s%d, 256' % sChunk); A('s_cbranch_scc1 ln_item')
    A('s_mov_b32 s%d, 0' % sChunk)
    ws_srd(A, SRD_R)
    A.label('qkv_next')
    A('s_cmp_ge_u32 s%d, 8' % sIt); A('s_cbranch_scc1 streams')
    A('s_lshr_b32 s%d, s%d, 4' % (sRB, sTK)); A('s_lshl_b32 s%d, s%d, 1' % (sT0, sIt)); A('s_add_u32 s%d, s%d, s%d' % (sRB, sRB, sT0))
    A('s_and_b32 s%d, s%d, 15' % (sT1, sTK))
    A('s_cmp_lt_u32 s%d, 4' % sXW); A('s_cselect_b32 s%d, 11, 10' % sT2)
    A('s_cmp_lt_u32 s%d, s%d' % (sT1, sT2)); A('s_cbranch_scc0 qkv_q')
    A('s_mul_i32 s%d, s%d, 6' % (sT3, sT1)); A('s_add_u32 s%d, s%d, s%d' % (sT3, sT3, sXW))
    A('s_lshr_b32 s%d, s%d, 5' % (sKS, sT3)); A('s_add_u32 s%d, s%d, 1' % (sKS, sKS)); A('s_and_b32 s%d, s%d, 31' % (sNT, sT3))
    A('s_branch qkv_go')
    A.label('qkv_q')
    A('s_sub_u32 s%d, s%d, s%d' % (sT3, sT1, sT2)); A('s_mul_i32 s%d, s%d, 5' % (sT4, sXW))
    A('s_sub_u32 s%d, s%d, 4' % (sT5, sXW)); A('s_mul_i32 s%d, s%d, 6' % (sT5, sT5)); A('s_add_u32 s%d, s%d, 20' % (sT5, sT5))
    A('s_cmp_lt_u32 s%d, 4' % sXW); A('s_cselect_b32 s%d, s%d, s%d' % (sT4, sT4, sT5))
    A('s_add_u32 s%d, s%d, s%d' % (sNT, sT3, sT4)); A('s_mov_b32 s%d, 0' % sKS)
    A.label('qkv_go')
    A('s_add_u32 s%d, s%d, 1' % (sIt, sIt))
    A('s_lshl_b32 s%d, s%d, 3' % (sT0, sKS)); A('s_add_u32 s%d, s%d, %d' % (sT0, sT0, A_WQ))
    A('s_load_dwordx2 s[%d:%d], s[0:1], s%d' % (SRD_B, SRD_B + 1, sT0))
    A('s_mov_b32 s%d, %d' % (SRD_B + 2, 8 * MB)); A('s_mov_b32 s%d, 0x00020000' % (SRD_B + 3))
    ws_srd(A, SRD_A); ws_srd(A, SRD_C)
    gemm_params(A, 2048, 8192, 8192, 16, 0)
    A('s_mul_i32 s%d, s%d, %d' % (sAoff, sRB, BM * 2048)); A('s_add_u32 s%d, s%d, %d' % (sAoff, sAoff, XLN))
    A('s_lshl_b32 s%d, s%d, 8' % (sBoff, sNT))
    A('s_mul_i32 s%d, s%d, %d' % (sCoff, sRB, BM * 8192)); A('s_add_u32 s%d, s%d, s%d' % (sCoff, sCoff, sBoff))
    A('s_lshl_b32 s%d, s%d, 24' % (sT0, sKS)); A('s_add_u32 s%d, s%d, s%d' % (sCoff, sCoff, sT0)); A('s_add_u32 s%d, s%d, %d' % (sCoff, sCoff, QX))
    A('s_mul_i32 s%d, s%d, 3' % (sT0, sRB)); A('s_add_u32 s%d, s%d, s%d' % (sT0, sT0, sKS))
    A('s_lshl_b32 s%d, s%d, 5' % (sT0, sT0)); A('s_add_u32 s%d, s%d, s%d' % (sT0, sT0, sNT))
    A('s_lshl_b32 s%d, s%d, 2' % (sT0, sT0)); A('s_add_u32 s%d, s%d, %d' % (sFlag, sT0, FQKV))
    A('s_mov_b32 s%d, 1' % sItem)
    A('s_and_b32 s%d, s%d, 15' % (sShI, sTK)); A('s_mov_b32 s%d, 8' % sShR)
    if trace:
        A('s_lshl_b32 s%d, s%d, 5' % (sQi, sXW)); A('s_add_u32 s%d, s%d, s%d' % (sQi, sQi, sTK)); A('s_lshl_b32 s%d, s%d, 3' % (sQi, sQi))
        A('s_add_u32 s%d, s%d, s%d' % (sQi, sQi, sIt)); A('s_add_u32 s%d, s%d, 22527' % (sQi, sQi))
        A('s_memrealtime s[98:99]'); A('s_memrealtime s[100:101]')
    A('s_waitcnt lgkmcnt(0)')
    A('s_cmp_lg_u32 s%d, 1' % sIt); A('s_cbranch_scc1 qkv_dep')
    if hold:
        Lh = A.uid('h'); Lhs = A.uid('hs')
        if hold == 1:
            A('s_cmp_lt_u32 s%d, 16' % sTK); A('s_cselect_b32 s%d, 1, 0' % sT0); A('s_cmp_lg_u32 s%d, 0' % sKS); A('s_cselect_b32 s%d, s%d, 0' % (sT0, sT0))
            A('s_cmp_eq_u32 s%d, 1' % sT0); A('s_cbranch_scc1 %s' % Lhs)
        if wpre2:
            Lnp = A.uid('np')
            A('s_cmp_lt_u32 s%d, 16' % sTK); A('s_cbranch_scc1 %s' % Lnp)
            A('s_lshl_b32 s%d, s%d, 4' % (sT0, sXW)); A('s_add_u32 s%d, s%d, s%d' % (sT0, sT0, sTK)); A('s_sub_u32 s%d, s%d, 16' % (sT0, sT0)); A('s_lshl_b32 s%d, s%d, 8' % (sT0, sT0))
            A('v_add_u32 v220, s%d, v0' % sT0); A('v_lshlrev_b32 v220, 7, v220')
            mats = {1: (A_WV,), 2: (A_WV, A_WO), 3: (A_WO,)}[wpre2]
            for k_, karg in enumerate(mats):
                mk_srd(A, SRD_R, karg, 8 * MB)
                for j in range(3):
                    A('v_add_u32 v221, %d, v220' % (j * 24576 * 128))
                    A('buffer_load_dword v%d, v221, %s, 0 offen' % (224 + 3 * k_ + j, srd(SRD_R)))
            mk_srd(A, SRD_R, A_X, 4 * MB)
            A.label(Lnp)
        A('s_mov_b32 s%d, 0' % sSp); A('v_mov_b32 v250, 72')
        A.label(Lh)
        A('global_load_dword v251, v250, s[6:7] sc1')
        A('s_add_u32 s%d, s%d, 1' % (sSp, sSp)); A('s_cmp_gt_u32 s%d, %d' % (sSp, SPIN)); A('s_cbranch_scc1 worker_abort')
        A('s_waitcnt vmcnt(0)')
        A('v_readfirstlane_b32 s%d, v251' % sT0); A('s_nop 3'); A('s_cmp_ge_u32 s%d, 64' % sT0); A('s_cbranch_scc1 %s' % Lhs)
        A('s_sleep 8'); A('s_branch %s' % Lh)
        A.label(Lhs)
    G.load_b()
    A.label('qkv_dep')
    A('s_lshl_b32 s%d, s%d, 6' % (sDep, sRB)); A('s_add_u32 s%d, s%d, %d' % (sDep, sDep, FXL)); A('s_mov_b32 s%d, 16' % sCnt)
    G.setup(); wait_flags(A)
    A('s_branch gemm_main')

    def decode(src):
        A('s_bfe_u32 s%d, s%d, 0x60016' % (sRB, src)); A('s_bfe_u32 s%d, s%d, 0x50011' % (sNT, src)); A('s_bfe_u32 s%d, s%d, 0x3000e' % (sKS, src))
        A('s_bfe_u32 s%d, s%d, 0x60008' % (sK0, src)); A('s_bfe_u32 s%d, s%d, 0x50003' % (sNKi, src))
    def blk_rows():
        A('s_lshl_b32 s%d, s%d, 6' % (sRow0, sRB)); A('s_mov_b32 s%d, 0' % sBig)
    def own(base, code):
        code(); A('s_lshl_b32 s%d, s%d, 2' % (sT0, sT0)); A('s_add_u32 s%d, s%d, %d' % (sFlag, sT0, base))
    def btouch():
        A('v_and_b32 v200, 63, v0'); A('v_lshrrev_b32 v201, 6, v0')
        A('v_lshrrev_b32 v202, 1, v200'); A('v_lshl_add_u32 v202, v201, 8, v202')
        A('v_and_b32 v203, 1, v200'); A('v_lshlrev_b32 v203, 7, v203')
        A('s_lshl_b32 s%d, s%d, 6' % (sT4, sNk)); A('v_mov_b32 v206, 0x7ff00000')
        for j in range(8):
            A('v_add_u32 v204, %d, v202' % (32 * j)); A('v_mul_lo_u32 v205, v204, s%d' % sLdb); A('v_add_u32 v205, v205, v203')
            A('v_cmp_gt_u32 vcc, s%d, v204' % sT4); A('s_nop 1'); A('v_cndmask_b32 v205, v206, v205, vcc')
            A('buffer_load_dword v%d, v205, %s, s%d offen' % (208 + j, srd(SRD_B), sBoff))
    types = {
        T_O: dict(split=True, ownbase=FO, abuf=OX, lda=8192, bk=A_WO, bs=8 * MB, ldb=2048, p=PO),
        T_W4: dict(split=True, ownbase=FW4, abuf=UB, lda=7168, bk=B_W4, bs=7 * MB, ldb=2048, p=P4),
        T_W1: dict(split=False, ownbase=FW1, ostr=8, abuf=ZB, bk=B_W1, bs=2 * MB, ldb=2048, c=GB, ldc=2048, mode=1),
        T_W2: dict(split=False, ownbase=FW2, ostr=8, abuf=GB - 2048, bk=B_W2, bs=2 * MB, ldb=2048, c=X1B, ldc=2048, mode=2, shift=1, resid=YB),
        T_W3: dict(split=False, ownbase=FW3, ostr=32, abuf=Z2B, bk=B_W3, bs=7 * MB, ldb=7168, c=UB, ldc=7168, mode=1),
    }
    def gemm_setup(ty):
        d = types[ty]
        mk_srd(A, SRD_B, d['bk'], d['bs']); ws_srd(A, SRD_A); ws_srd(A, SRD_C); ws_srd(A, SRD_R)
        if d['split']:
            own(d['ownbase'], lambda: (A('s_lshl_b32 s%d, s%d, 6' % (sT0, sRB)), A('s_lshl_b32 s%d, s%d, 3' % (sT1, sKS)), A('s_add_u32 s%d, s%d, s%d' % (sT0, sT0, sT1)), A('s_add_u32 s%d, s%d, s%d' % (sT0, sT0, sNT))))
            gemm_params(A, d['lda'], d['ldb'], 2048, 0, 0)
            A('s_mov_b32 s%d, s%d' % (sNk, sNKi)); A('s_mov_b32 s%d, s%d' % (sShI, sNT)); A('s_mov_b32 s%d, 16' % sShR)
            A('s_mul_i32 s%d, s%d, %d' % (sAoff, sRow0, d['lda'])); A('s_lshl_b32 s%d, s%d, 7' % (sT0, sK0)); A('s_add_u32 s%d, s%d, s%d' % (sAoff, sAoff, sT0))
            A('s_add_u32 s%d, s%d, %d' % (sAoff, sAoff, d['abuf']))
            A('s_mul_i32 s%d, s%d, %d' % (sBoff, sK0, 64 * d['ldb'])); A('s_lshl_b32 s%d, s%d, 8' % (sT0, sNT)); A('s_add_u32 s%d, s%d, s%d' % (sBoff, sBoff, sT0))
            A('s_lshl_b32 s%d, s%d, 11' % (sCoff, sRow0)); A('s_add_u32 s%d, s%d, s%d' % (sCoff, sCoff, sT0))
            A('s_lshl_b32 s%d, s%d, 22' % (sT0, sKS)); A('s_add_u32 s%d, s%d, s%d' % (sCoff, sCoff, sT0)); A('s_add_u32 s%d, s%d, %d' % (sCoff, sCoff, d['p']))
        else:
            own(d['ownbase'], lambda: (A('s_mul_i32 s%d, s%d, %d' % (sT0, sRB, d['ostr'])), A('s_add_u32 s%d, s%d, s%d' % (sT0, sT0, sNT))))
            gemm_params(A, 2048, d['ldb'], d['ldc'], 16, d['mode'], d.get('shift', 0))
            A('s_mov_b32 s%d, s%d' % (sShI, sK0)); A('s_cmp_eq_u32 s%d, 7' % sNKi); A('s_cselect_b32 s%d, 19, 16' % sShR)
            A('s_lshl_b32 s%d, s%d, 11' % (sAoff, sRow0)); A('s_add_u32 s%d, s%d, %d' % (sAoff, sAoff, d['abuf']))
            A('s_lshl_b32 s%d, s%d, 8' % (sBoff, sNT))
            A('s_mul_i32 s%d, s%d, %d' % (sCoff, sRow0, d['ldc'])); A('s_add_u32 s%d, s%d, s%d' % (sCoff, sCoff, sBoff))
            if 'resid' in d: A('s_add_u32 s%d, s%d, %d' % (sRoff, sCoff, d['resid']))
            A('s_add_u32 s%d, s%d, %d' % (sCoff, sCoff, d['c']))

    TB = build_table()
    A.label('streams')
    A('s_getpc_b64 s[%d:%d]' % (sTab, sTab + 1))
    A.label('q_pc')
    A('s_add_u32 s%d, s%d, qtable-q_pc' % (sTab, sTab)); A('s_addc_u32 s%d, s%d, 0' % (sTab + 1, sTab + 1))
    A('s_lshl_b32 s%d, s%d, 5' % (sT0, sXW)); A('s_add_u32 s%d, s%d, s%d' % (sT0, sT0, sTK)); A('s_lshl_b32 s%d, s%d, 4' % (sT0, sT0))
    A('s_load_dword s%d, s[%d:%d], s%d' % (sS0, sTab, sTab + 1, sT0))
    A('s_add_u32 s%d, s%d, 4' % (sT1, sT0)); A('s_load_dword s%d, s[%d:%d], s%d' % (sS1, sTab, sTab + 1, sT1))
    A('s_add_u32 s%d, s%d, 8' % (sT2, sT0)); A('s_load_dword s%d, s[%d:%d], s%d' % (sS2, sTab, sTab + 1, sT2))
    A('s_waitcnt lgkmcnt(0)')
    A('s_lshr_b32 s%d, s%d, 28' % (sT2, sS0))
    A('s_cmp_eq_u32 s%d, %d' % (sT2, T_ATT)); A('s_cbranch_scc1 att_loop')
    A('s_cmp_eq_u32 s%d, %d' % (sT2, T_ROWLOOP)); A('s_cbranch_scc1 u_rowloop')
    A.label('ms_next')
    A('s_cmp_lg_u32 s%d, 0' % sS0); A('s_cbranch_scc1 ms_have')
    A('s_mov_b32 s%d, s%d' % (sS0, sS1)); A('s_mov_b32 s%d, s%d' % (sS1, sS2)); A('s_mov_b32 s%d, 0' % sS2)
    A('s_or_b32 s%d, s%d, s%d' % (sT0, sS0, sS1)); A('s_cmp_eq_u32 s%d, 0' % sT0); A('s_cbranch_scc1 L_exit_main')
    A('s_branch ms_next')
    A.label('ms_have')
    decode(sS0); blk_rows()
    A('s_lshr_b32 s%d, s%d, 28' % (sT5, sS0))
    for ty in types:
        Lt = A.uid('mt')
        A('s_cmp_lg_u32 s%d, %d' % (sT5, ty)); A('s_cbranch_scc1 %s' % Lt)
        gemm_setup(ty)
        A.label(Lt)
    G.load_b()
    A.label('ms_top')
    A('s_cmp_eq_u32 s%d, 0' % sS0); A('s_cbranch_scc1 ms_next')
    A('s_bfe_u32 s%d, s%d, 0x60016' % (sT0, sS0)); A('s_lshr_b32 s%d, s%d, 28' % (sT5, sS0))
    A('s_mov_b32 s%d, 16' % sCnt)
    A('s_lshl_b32 s%d, s%d, 7' % (sT2, sT0))
    A('s_add_u32 s%d, s%d, %d' % (sDep, sT2, FATT))
    A('s_add_u32 s%d, s%d, %d' % (sT3, sT2, FR1)); A('s_cmp_eq_u32 s%d, %d' % (sT5, T_W1)); A('s_cselect_b32 s%d, s%d, s%d' % (sDep, sT3, sDep))
    A('s_add_u32 s%d, s%d, %d' % (sT3, sT2, FR2)); A('s_cmp_eq_u32 s%d, %d' % (sT5, T_W3)); A('s_cselect_b32 s%d, s%d, s%d' % (sDep, sT3, sDep))
    A('s_add_u32 s%d, s%d, %d' % (sT3, sT2, FW3)); A('s_cmp_eq_u32 s%d, %d' % (sT5, T_W4)); A('s_cselect_b32 s%d, s%d, s%d' % (sDep, sT3, sDep)); A('s_cselect_b32 s%d, 28, s%d' % (sCnt, sCnt))
    Lw2 = A.uid('m2')
    A('s_cmp_lg_u32 s%d, %d' % (sT5, T_W2)); A('s_cbranch_scc1 %s' % Lw2)
    A('s_sub_u32 s%d, s%d, 1' % (sT2, sT0)); A('s_cmp_eq_u32 s%d, 0' % sT0); A('s_cselect_b32 s%d, 0, s%d' % (sT2, sT2))
    A('s_add_u32 s%d, s%d, 1' % (sT3, sT0)); A('s_cmp_eq_u32 s%d, %d' % (sT0, NB - 1)); A('s_cselect_b32 s%d, s%d, s%d' % (sT3, sT0, sT3))
    A('s_sub_u32 s%d, s%d, s%d' % (sT3, sT3, sT2)); A('s_add_u32 s%d, s%d, 1' % (sT3, sT3)); A('s_lshl_b32 s%d, s%d, 3' % (sCnt, sT3))
    A('s_lshl_b32 s%d, s%d, 5' % (sT2, sT2)); A('s_add_u32 s%d, s%d, %d' % (sDep, sT2, FW1))
    A.label(Lw2)
    A('s_mov_b32 s%d, s%d' % (sItem, sS0))
    A('s_add_u32 s%d, s%d, %d' % (sS0, sS0, 1 << 22)); A('s_bfe_u32 s%d, s%d, 0x60016' % (sT0, sS0))
    A('s_add_u32 s%d, s%d, 1' % (sT1, sS0)); A('s_and_b32 s%d, s%d, 7' % (sT1, sT1)); A('s_add_u32 s%d, s%d, %d' % (sT1, sT1, NBIG - 1))
    A('s_cmp_eq_u32 s%d, s%d' % (sT0, sT1)); A('s_cselect_b32 s%d, 0, s%d' % (sS0, sS0))
    decode(sItem); blk_rows()
    A('s_lshr_b32 s%d, s%d, 28' % (sT5, sItem))
    if trace:
        A('s_lshl_b32 s%d, s%d, 11' % (sQi, sT5)); A('s_mul_i32 s%d, s%d, 48' % (sT0, sRB)); A('s_add_u32 s%d, s%d, s%d' % (sQi, sQi, sT0))
        A('s_lshl_b32 s%d, s%d, 3' % (sT0, sKS)); A('s_add_u32 s%d, s%d, s%d' % (sQi, sQi, sT0)); A('s_add_u32 s%d, s%d, s%d' % (sQi, sQi, sNT))
        A('s_memrealtime s[98:99]')
    A('s_mov_b32 s%d, 0' % sItem)
    for ty in types:
        Lt = A.uid('mr')
        A('s_cmp_lg_u32 s%d, %d' % (sT5, ty)); A('s_cbranch_scc1 %s' % Lt)
        gemm_setup(ty)
        A.label(Lt)
    GS.setup(); wait_flags(A); A('s_branch gemm_main_s')

    A.label('att_loop')
    A('s_bfe_u32 s%d, s%d, 0x50011' % (sChunk, sS0))
    sAS = sD1; sAL = sD2
    A('s_bfe_u32 s%d, s%d, 0x60016' % (sAS, sS0))
    A('s_bfe_u32 s%d, s%d, 0x60008' % (sAL, sS0))
    A('s_cmp_eq_u32 s%d, 0' % sAL); A('s_cselect_b32 s%d, 64, s%d' % (sAL, sAL))
    A.label('att_next')
    A('s_cmp_ge_u32 s%d, s%d' % (sAS, sAL)); A('s_cbranch_scc1 att_fin')
    A('s_mov_b32 s%d, s%d' % (sRB, sAS)); A('s_and_b32 s%d, s%d, 7' % (sNT, sChunk)); A('s_add_u32 s%d, s%d, 2' % (sAS, sAS))
    if trace:
        A('s_lshl_b32 s%d, s%d, 3' % (sQi, sRB)); A('s_add_u32 s%d, s%d, s%d' % (sQi, sQi, sNT)); A('s_add_u32 s%d, s%d, 2048' % (sQi, sQi))
        A('s_memrealtime s[98:99]')
    wave_id(A, sSp)
    Lad = A.uid('ad'); Lap = A.uid('ap')
    A('s_cmp_lg_u32 s%d, 0' % sSp); A('s_cbranch_scc1 %s' % Lad)
    A('s_lshr_b32 s%d, s%d, 2' % (sT5, sRB)); A('s_mul_i32 s%d, s%d, 384' % (sT0, sT5)); A('s_lshl_b32 s%d, s%d, 4' % (sT1, sNT)); A('s_add_u32 s%d, s%d, s%d' % (sT0, sT0, sT1))
    A('s_add_u32 s%d, s%d, %d' % (sT0, sT0, FQKV))
    A('v_lshrrev_b32 v248, 2, v0'); A('v_lshlrev_b32 v248, 7, v248'); A('v_and_b32 v249, 3, v0'); A('v_lshl_add_u32 v248, v249, 2, v248'); A('v_add_u32 v248, s%d, v248' % sT0)
    A('s_lshl_b32 s%d, s%d, 10' % (sT0, sRB)); A('s_lshl_b32 s%d, s%d, 7' % (sT1, sNT)); A('s_add_u32 s%d, s%d, s%d' % (sT0, sT0, sT1)); A('s_add_u32 s%d, s%d, %d' % (sT0, sT0, FLG_SEG - 128))
    A('v_lshlrev_b32 v249, 2, v0'); A('v_add_u32 v249, s%d, v249' % sT0)
    A('v_cmp_gt_u32 vcc, 32, v0'); A('s_nop 1'); A('v_cndmask_b32 v250, v249, v248, vcc')
    A('s_mov_b32 s%d, 0xfff' % sMsk); A('s_mov_b32 s%d, -1' % (sMsk + 1)); A('s_mov_b64 exec, s[%d:%d]' % (sMsk, sMsk + 1))
    A('s_mov_b32 s%d, 0' % sSp)
    A.label(Lap)
    A('buffer_load_dword v251, v250, s[8:11], 0 offen sc1')
    A('s_add_u32 s%d, s%d, 1' % (sSp, sSp)); A('s_cmp_gt_u32 s%d, %d' % (sSp, SPIN)); A('s_cbranch_scc1 worker_abort')
    A('s_waitcnt vmcnt(0)')
    A('v_cmp_eq_u32 vcc, 0, v251'); A('s_cbranch_vccz %s_ok' % Lap)
    A('s_sleep 2'); A('s_branch %s' % Lap)
    A.label(Lap + '_ok')
    A('s_mov_b64 exec, -1')
    A.label(Lad)
    A('s_barrier')
    if trace: A('s_memrealtime s[100:101]')
    def code():
        A('s_lshr_b32 s%d, s%d, 1' % (sT0, sRB)); A('s_lshl_b32 s%d, s%d, 5' % (sT0, sT0))
        A('s_and_b32 s%d, s%d, 1' % (sT1, sRB)); A('s_lshl_b32 s%d, s%d, 3' % (sT1, sT1)); A('s_add_u32 s%d, s%d, s%d' % (sT0, sT0, sT1))
        A('s_add_u32 s%d, s%d, s%d' % (sT0, sT0, sNT))
    own(FATT, code)
    A('s_mov_b32 s%d, s%d' % (sSeg, sRB)); A('s_lshl_b32 s%d, s%d, 2' % (sHead, sNT))
    A('s_mov_b32 s%d, 3' % sItem)
    unit_att(A)
    A('s_branch unit_done')

    A.label('att_fin')
    A('s_mov_b32 s%d, 0' % sS0)
    A('s_branch ms_next')
    sN1, sN2, sN3 = sS0, sS1, sS2
    A.label('u_rowloop')
    A('s_bfe_u32 s%d, s%d, 0x50011' % (sChunk, sS0))
    A('s_mov_b32 s%d, 0' % sN1); A('s_mov_b32 s%d, 0' % sN2); A('s_mov_b32 s%d, 0' % sN3)
    A.label('rl_top')
    A('s_cmp_ge_u32 s%d, 16' % sN3); A('s_cbranch_scc1 L_exit_main')
    wave_id(A, sSp)
    A('s_cmp_lg_u32 s%d, 0' % sSp); A('s_cbranch_scc1 rl_wait')
    A('v_lshlrev_b32 v250, 2, v0'); A('s_mov_b32 s%d, 0' % sSp)
    A.label('rl_poll')
    A('s_lshr_b32 s%d, s%d, 4' % (sT1, sChunk))
    for reg, base, sh, n_ in ((247, FO, 8, sN1), (248, FW2, 5, sN2), (249, FW4, 8, sN3)):
        A('s_min_u32 s%d, s%d, 15' % (sT0, n_)); A('s_lshl_b32 s%d, s%d, 1' % (sT0, sT0)); A('s_add_u32 s%d, s%d, s%d' % (sT0, sT0, sT1))
        A('s_lshl_b32 s%d, s%d, %d' % (sT0, sT0, sh)); A('s_add_u32 s%d, s%d, %d' % (sT0, sT0, base))
        A('buffer_load_dword v%d, v250, s[8:11], s%d offen sc1' % (reg, sT0))
    A('s_add_u32 s%d, s%d, 1' % (sSp, sSp)); A('s_cmp_gt_u32 s%d, %d' % (sSp, SPIN)); A('s_cbranch_scc1 worker_abort')
    A('s_waitcnt vmcnt(0)')
    A('s_mov_b32 s%d, 0' % sT5)
    for code_, reg, cnt, n_ in ((1, 247, 48, sN1), (2, 248, 8, sN2), (3, 249, 48, sN3)):
        Ln = A.uid('rn')
        A('s_cmp_lg_u32 s%d, 0' % sT5); A('s_cbranch_scc1 %s' % Ln)
        A('s_cmp_ge_u32 s%d, 16' % n_); A('s_cbranch_scc1 %s' % Ln)
        A('v_cmp_eq_u32 vcc, 0, v%d' % reg)
        if cnt == 48: A('s_and_b32 vcc_hi, vcc_hi, 0xffff')
        else: A('s_and_b32 vcc_lo, vcc_lo, 0xff'); A('s_mov_b32 vcc_hi, 0')
        A('s_cmp_lg_u64 vcc, 0'); A('s_cbranch_scc1 %s' % Ln)
        A('s_mov_b32 s%d, %d' % (sT5, code_))
        A.label(Ln)
    A('s_cmp_lg_u32 s%d, 0' % sT5); A('s_cbranch_scc1 rl_got')
    A('s_sleep 2'); A('s_branch rl_poll')
    A.label('rl_got')
    A('v_mov_b32 v250, 163832'); A('v_mov_b32 v251, s%d' % sT5); A('s_mov_b64 exec, 1'); A('ds_write_b32 v250, v251'); A('s_mov_b64 exec, -1'); A('s_waitcnt lgkmcnt(0)')
    A.label('rl_wait')
    A('s_barrier')
    A('v_mov_b32 v250, 163832'); A('ds_read_b32 v251, v250'); A('s_waitcnt lgkmcnt(0)'); A('v_readfirstlane_b32 s%d, v251' % sT5)
    A('s_barrier')
    if trace: A('s_memrealtime s[98:99]'); A('s_memrealtime s[100:101]')
    A('s_mov_b32 s%d, 2' % sItem)
    for c_ in (2, 3):
        A('s_cmp_eq_u32 s%d, %d' % (sT5, c_)); A('s_cbranch_scc1 rl_%d' % c_)
    def pick(n_, T_, lab):
        A('s_lshl_b32 s%d, s%d, 1' % (sRB, n_)); A('s_lshr_b32 s%d, s%d, 4' % (sT1, sChunk)); A('s_add_u32 s%d, s%d, s%d' % (sRB, sRB, sT1)); A('s_and_b32 s%d, s%d, 15' % (sNT, sChunk))
        if trace:
            A('s_mul_i32 s%d, s%d, 48' % (sQi, sRB)); A('s_add_u32 s%d, s%d, s%d' % (sQi, sQi, sNT)); A('s_add_u32 s%d, s%d, %d' % (sQi, sQi, T_ * 2048))
        A('s_add_u32 s%d, s%d, 1' % (n_, n_)); blk_rows(); A('s_branch %s' % lab)
    pick(sN1, T_R1, 'u_r1')
    A.label('rl_2'); pick(sN2, T_R2, 'u_r2')
    A.label('rl_3'); pick(sN3, T_R3, 'u_r3')
    def rowu(lab, ownbase, fn, pre=None):
        A.label(lab)
        if ownbase is not None:
            own(ownbase, lambda: (A('s_lshl_b32 s%d, s%d, 5' % (sT0, sRB)), A('s_add_u32 s%d, s%d, s%d' % (sT0, sT0, sNT))))
        if pre: pre()
        A('s_lshl_b32 s%d, s%d, 2' % (sT0, sNT)); A('s_add_u32 s%d, s%d, s%d' % (sRow, sRow0, sT0))
        fn(A)
        A('s_branch %s' % ('unit_done' if ownbase is not None else 'unit_nosig'))
    rowu('u_r1', FR1, unit_r1, lambda: mk_srd(A, SRD_R, A_X, 4 * MB))
    rowu('u_r2', FR2, unit_r2)
    rowu('u_r3', None, unit_r3, lambda: mk_srd(A, SRD_C, D_OUT, 4 * MB))

    def epis(G_, sfx):
        A('s_cmp_eq_u32 s%d, 1' % sMode); A('s_cbranch_scc1 epi1%s' % sfx)
        A('s_cmp_eq_u32 s%d, 2' % sMode); A('s_cbranch_scc1 epi2%s' % sfx)
        G_.epi_bf16(); A('s_branch unit_done')
        A.label('epi1' + sfx); G_.epi_bf16(gelu=True); A('s_branch unit_done')
        A.label('epi2' + sfx); G_.epi_bf16(resid=True); A('s_branch unit_done')
    A.label('gemm_main')
    G.mainloop()
    G.epi_bf16(); A('s_branch unit_done')
    A.label('gemm_main_s')
    GS.mainloop()
    epis(GS, 's')
    def trace_out():
        if trace:
            A('s_memrealtime s[68:69]'); A('s_waitcnt lgkmcnt(0)')
            Lt = A.uid('tr')
            A('v_cmp_eq_u32 vcc, 0, v0'); A('s_and_saveexec_b64 s[%d:%d], vcc' % (sMsk, sMsk + 1)); A('s_cbranch_execz %s' % Lt)
            A('v_mov_b32 v240, s98'); A('v_mov_b32 v241, s100'); A('v_mov_b32 v242, s66'); A('v_mov_b32 v243, s68')
            A('s_sub_u32 s%d, s62, s60' % sT1); A('s_sub_u32 s%d, s64, s62' % sT2)
            A('v_mov_b32 v244, s%d' % sT1); A('v_mov_b32 v245, s%d' % sT2); A('v_mov_b32 v246, 0'); A('v_mov_b32 v247, 0')
            A('s_lshl_b32 s%d, s%d, 5' % (sT0, sQi)); A('s_add_u32 s%d, s%d, %d' % (sT0, sT0, TRC)); A('v_mov_b32 v250, 0')
            A('buffer_store_dwordx4 v[240:243], v250, s[8:11], s%d offen' % sT0)
            A('buffer_store_dwordx4 v[244:247], v250, s[8:11], s%d offen offset:16' % sT0)
            A.label(Lt)
            A('s_mov_b64 exec, s[%d:%d]' % (sMsk, sMsk + 1))
    A.label('unit_done')
    if trace: A('s_memrealtime s[66:67]')
    signal_flag(A)
    trace_out()
    A('s_cmp_eq_u32 s%d, 1' % sItem); A('s_cbranch_scc1 qkv_next')
    A('s_cmp_eq_u32 s%d, 2' % sItem); A('s_cbranch_scc1 rl_top')
    A('s_cmp_eq_u32 s%d, 3' % sItem); A('s_cbranch_scc1 att_next')
    A('s_branch ms_top')
    A.label('unit_nosig')
    if trace: A('s_memrealtime s[66:67]')
    A('s_waitcnt vmcnt(0)'); A('s_barrier')
    trace_out()
    A('s_branch rl_top')
    A.label('worker_abort')
    A('s_mov_b64 exec, 1')
    A('v_mov_b32 v250, 1'); A('v_mov_b32 v251, 132')
    A('global_atomic_add v251, v250, s[6:7] sc1'); A('s_waitcnt vmcnt(0)')
    A.label('L_exit_main')
    A('s_endpgm')
    A.raw('.p2align 2')
    A.raw('.type qtable,@object')
    A.label('qtable')
    for x in range(8):
        for t in range(32):
            A.raw('    .long ' + ', '.join('0x%08x' % w for w in TB[x, t] + [0]))
    A.raw('.section .rodata,"a"')
    A.raw('.p2align 6'); kernel_desc(A, KNAME)
    return A.text()
if __name__ == '__main__':
    kw = {}
    for x in sys.argv[2:]:
        k, v = x.split('=')
        kw[k] = v
    if 'slp' in kw: SLP[0] = int(kw.pop('slp'))
    ck = dict(rearly=int(kw.pop('rearly', 5)), vdefer=int(kw.pop('vdefer', 0)), sel=int(kw.pop('sel', 0)), sigchunk=3)
    if kw.get('trace'): ck['steptrace'] = True
    if kw.pop('rt', None): ck['rt'] = 1
    for k_ in ('touch', 'd1', 'd4', 'd6', 'sigchunk'):
        if k_ in kw: ck[k_] = int(kw.pop(k_))
    kw['chain_kw'] = ck
    open(sys.argv[1], 'w').write(gen(**kw))
```
